```python
import torch

def _softmax(x, axis=-1):
    return torch.softmax(x, dim=axis)
def _gelu(x):
    return torch.nn.functional.gelu(x, approximate="tanh")
def _silu(x):
    return torch.nn.functional.silu(x)
def _sigmoid(x):
    return torch.sigmoid(x)
def _layernorm(x, axis=-1, eps=1e-5):
    m = x.mean(dim=axis, keepdim=True)
    v = x.var(dim=axis, keepdim=True, unbiased=False)
    return (x - m) / torch.sqrt(v + eps)
def _scatter_add(tgt, idx, src, axis=0):
    return tgt.clone().index_add_(axis, idx, src)
def _segment_sum(src, seg, n):
    out = torch.zeros((n,) + src.shape[1:], dtype=src.dtype)
    return out.index_add_(0, seg, src)
def _pad(x, pw):
    flat = tuple(v for pair in reversed(pw) for v in pair)
    return torch.nn.functional.pad(x, flat)

kernel_name = 'recurrent_scan__linear_kernel_hedgehog__dense_activation_silu__prompt'

def setup_inputs():

    _w = (lambda a: (lambda t: t.to(torch.bfloat16) if t.is_floating_point() else t)(torch.as_tensor(a)))
    def _A_setup():
        B, S, D, H = 1, 2048, 512, 32
        Dh = D // H
        return {
            "x": _w((lambda *s: torch.randn(*s, dtype=torch.bfloat16) * 0.05)(B, S, D)),
            "wqkv": _w((lambda *s: torch.randn(*s, dtype=torch.bfloat16) * 0.4)(D, 3 * D)),
            "w_phi": _w((lambda *s: torch.randn(*s, dtype=torch.bfloat16) * 0.4)(H, Dh, Dh) * (Dh ** -0.5)),
            "wo": _w((lambda *s: torch.randn(*s, dtype=torch.bfloat16) * 0.2)(D, D)),
        }
    _A_in = _A_setup()

    def _B_setup():
        B, S, D, F = 1, 2048, 512, 1792
        return {
            "x": _w((lambda *s: torch.randn(*s, dtype=torch.bfloat16) * 0.05)(B, S, D)),
            "w1": _w((lambda *s: torch.randn(*s, dtype=torch.bfloat16) * 0.4)(D, F) * (D ** -0.5)),
            "w2": _w((lambda *s: torch.randn(*s, dtype=torch.bfloat16) * 0.1)(F, D) * (F ** -0.5)),
        }
    _B_in = _B_setup()

    return {
        "A_x": _A_in["x"],
        "A_wqkv": _A_in["wqkv"],
        "A_w_phi": _A_in["w_phi"],
        "A_wo": _A_in["wo"],
        "B_x": _B_in["x"],
        "B_w1": _B_in["w1"],
        "B_w2": _B_in["w2"],
    }

def reference(A_x, A_wqkv, A_w_phi, A_wo, B_x, B_w1, B_w2):
    def _A_ref(x, wqkv, w_phi, wo):
        B, S, D = x.shape
        H = 32; Dh = D // H
        qkv = (lambda x, *d: x.permute(*d))((x @ wqkv).reshape(B, S, 3, H, Dh), 2, 0, 3, 1, 4)
        q, k, v = qkv[0], qkv[1], qkv[2]
        pq = torch.einsum("bhsd,hdf->bhsf", q, w_phi)
        pk = torch.einsum("bhsd,hdf->bhsf", k, w_phi)
        phi_q = torch.concatenate([_softmax(pq, axis=-1), _softmax(-pq, axis=-1)], axis=-1)
        phi_k = torch.concatenate([_softmax(pk, axis=-1), _softmax(-pk, axis=-1)], axis=-1)
        kv = torch.einsum("bhsf,bhsd->bhfd", phi_k, v)
        z  = torch.einsum("bhsf->bhf", phi_k)
        num = torch.einsum("bhqf,bhfd->bhqd", phi_q, kv)
        den = torch.einsum("bhqf,bhf->bhq", phi_q, z)[..., None] + 1e-6
        o = num / den
        return (lambda x, *d: x.permute(*d))(o, 0, 2, 1, 3).reshape(B, S, D) @ wo

    def _B_ref(x, w1, w2):
        h = torch.einsum("bsd,df->bsf", x, w1)
        h = _silu(h)
        out = torch.einsum("bsf,fd->bsd", h, w2)
        return out

    x = A_x
    xn = _layernorm(x, axis=-1)
    s = _A_ref(xn, A_wqkv, A_w_phi, A_wo)
    g = _silu(_B_ref(xn, B_w1, B_w2))
    return x + s * g
```

```python
import re
TRANS = ('v_exp_f32','v_log_f32','v_rcp_f32','v_rsq_f32','v_sqrt_f32','v_sin_f32','v_cos_f32','v_rcp_iflag_f32')
def regs_of(tok):
    tok = tok.strip()
    tok = tok.lstrip('-')
    if tok.startswith('abs(') or tok.startswith('|'):
        tok = tok.replace('abs(','').replace(')','').replace('|','')
    m = re.fullmatch(r'([vsa])(\d+)', tok)
    if m: return {(m.group(1), int(m.group(2)))}
    m = re.fullmatch(r'([vsa])\[(\d+):(\d+)\]', tok)
    if m: return {(m.group(1), i) for i in range(int(m.group(2)), int(m.group(3))+1)}
    if tok in ('vcc','vcc_lo','vcc_hi'): return {('s','vcc')}
    if tok in ('exec','exec_lo','exec_hi'): return {('s','exec')}
    if tok == 'm0': return {('s','m0')}
    return set()
class Ins:
    def __init__(self, text):
        self.text = text
        t = text.split(';')[0].strip()
        self.label = t.endswith(':')
        self.dir = t.startswith('.')
        self.op = ''
        self.dst = set(); self.src = set(); self.srcC = set(); self.srcAB = set(); self.data=set()
        if self.label or self.dir or not t: return
        parts = t.split(None, 1)
        op = parts[0]; self.op = re.sub(r'_(e32|e64|dpp|sdwa)$','',op); self.fullop = op
        rest = parts[1] if len(parts) > 1 else ''
        ops = [o.strip() for o in re.split(r',(?![^\[]*\])', rest)]
        if ops:
            last = ops[-1].split()
            self.mods = ' '.join(last[1:]) if last else ''
            ops[-1] = last[0] if last else ''
        self.ops = ops
        op = self.op
        self.mfma = op.startswith('v_mfma') or op.startswith('v_smfmac')
        self.valu = op.startswith('v_') and not self.mfma
        self.vmem = op.startswith('buffer_') or op.startswith('global_')
        self.ds = op.startswith('ds_')
        self.salu = op.startswith('s_')
        self.trans = op in TRANS
        self.dpp = '_dpp' in self.fullop or 'quad_perm' in self.mods or 'row_' in self.mods
        self.lds_dma = self.vmem and (' lds' in (' '+self.mods) or 'load_lds' in op)
        R = [regs_of(o) for o in ops]
        if self.mfma:
            self.dst = R[0]; self.srcAB = R[1] | R[2]; self.srcC = R[3]; self.src = self.srcAB | self.srcC
            self.passes = 8 if '32x32' in op else 4
        elif self.valu:
            if op.startswith('v_cmp'):
                self.dst = R[0]; self.src = set().union(*R[1:])
                if op.startswith('v_cmpx'): self.dst |= {('s','exec')}
            elif 'permlane' in op and 'swap' in op:
                self.dst = R[0] | R[1]; self.src = R[0] | R[1]
            elif op in ('v_add_co_u32','v_sub_co_u32','v_addc_co_u32','v_subb_co_u32'):
                self.dst = R[0] | R[1]; self.src = set().union(*R[2:])
            else:
                self.dst = R[0]; self.src = set().union(*R[1:]) if len(R) > 1 else set()
                if op in ('v_fmac_f32','v_dot2c_f32_bf16','v_pk_fmac_f16','v_writelane_b32') or self.dpp: self.src |= R[0]
        elif self.vmem:
            if 'store' in op or ('atomic' in op):
                if op.startswith('buffer_'):
                    self.data = R[0]; self.src = set().union(*R)
                    if 'atomic' in op and 'sc0' in self.mods: self.dst = R[0]
                else:
                    self.src = set().union(*R); self.data = R[1] if 'store' in op else set()
                    if 'atomic' in op and 'sc0' in self.mods: self.dst = R[0]
            elif self.lds_dma or op in ('buffer_wbl2','buffer_inv'):
                self.src = set().union(*R) if R else set()
                if self.lds_dma: self.src |= {('s','m0')}
            else:
                self.dst = R[0]; self.src = set().union(*R[1:])
                if 'd16' in op: self.src |= R[0]
        elif self.ds:
            if op.startswith('ds_write') or op in ('ds_add_f32','ds_add_u32','ds_max_f32'):
                self.src = set().union(*R)
            else:
                self.dst = R[0]; self.src = set().union(*R[1:])
        elif self.salu:
            if op.startswith('s_cmp') or op.startswith('s_cbranch') or op in ('s_branch','s_barrier','s_nop','s_waitcnt','s_endpgm','s_setprio','s_sleep') or op.startswith('s_bitcmp'):
                self.src = set().union(*R) if R else set()
            else:
                self.dst = R[0]; self.src = set().union(*R[1:]) if len(R) > 1 else set()
                if 'saveexec' in op: self.dst |= {('s','exec')}
    def states(self):
        if self.label or self.dir or not self.op: return 0
        if self.op == 's_nop': return int(self.ops[0], 0) + 1
        return 1
def vonly(s): return {r for r in s if r[0] in 'va'}
def sonly(s): return {r for r in s if r[0] == 's'}
def need(p, c):
    n = 0
    if p.mfma:
        P = p.passes
        if c.mfma:
            if c.srcC & p.dst:
                if not (c.srcC == p.dst and c.passes == P): n = max(n, P + 2)
            if c.srcAB & p.dst: n = max(n, P + 4)
            if (c.dst & p.dst) and not (c.srcC == p.dst): n = max(n, P + 4)
        elif c.valu or c.vmem or c.ds:
            if (c.src | c.dst) & p.dst: n = max(n, P + 4)
            if c.valu and (c.dst & p.srcC): n = max(n, P - 1)
    if p.valu:
        pv = vonly(p.dst); ps = sonly(p.dst)
        if c.mfma and (c.src & pv): n = max(n, 2)
        if c.mfma and ('s','exec') in ps: n = max(n, 4)
        if c.valu:
            if p.trans and not c.trans and (c.src & pv): n = max(n, 1)
            if p.trans and c.trans and (c.src & pv): n = max(n, 1)
            if c.dpp and (c.src & pv): n = max(n, 2)
            if c.dpp and ('s','exec') in ps: n = max(n, 5)
            if 'permlane' in c.op and (c.src & pv): n = max(n, 2)
            if c.op in ('v_readlane_b32','v_readfirstlane_b32') and (c.src & pv): n = max(n, 1)
            if c.src & ps:
                n = max(n, 4 if c.op in ('v_readlane_b32','v_writelane_b32') else 2)
            if c.op == 'v_cndmask_b32' and ('s','vcc') in ps: n = max(n, 2)
            if ('s','exec') in ps and (c.op in ('v_readlane_b32','v_readfirstlane_b32','v_writelane_b32') or 'permlane' in c.op): n = max(n, 4)
            if p.op.startswith('v_dot2') and (c.src | c.dst) & pv:
                if not (c.op == p.op): n = max(n, 3)
                else: n = max(n, 0)
            if ('sdwa' in p.fullop or 'op_sel' in p.mods) and not p.op.startswith('v_pk_') and (c.src & pv): n = max(n, 1)
        if c.vmem and (c.src & ps): n = max(n, 5)
        if p.trans and (c.vmem or c.ds) and (c.src & pv): n = max(n, 1)
        if c.salu and (c.src & ps): n = max(n, 1)
    if p.salu and ('s','m0') in p.dst and c.vmem and c.lds_dma: n = max(n, 1)
    if p.vmem and p.data and len(p.data) >= 3 and (c.dst & p.data): n = max(n, 2)
    if p.ds and p.op.startswith('ds_write') and False: pass
    return n
def fix_hazards(lines, verbose=False):
    out = []
    total = 0
    for ln in lines:
        c = Ins(ln)
        if c.op and c.op != 's_nop':
            d = 0; req = 0
            for p in reversed(out):
                if d >= 20: break
                if p.op:
                    if p.op in ('s_branch','s_endpgm','s_setpc_b64'): break
                    k = need(p, c) - d
                    if k > req: req = k
                d += p.states()
            if req > 0:
                total += req
                while req > 0:
                    k = min(req, 16)
                    out.append(Ins(f's_nop {k-1}')); req -= k
        out.append(c)
    if verbose: print('inserted wait states:', total)
    return [i.text for i in out]

class Asm:
    def __init__(self):
        self.L = []
        self.uid = 0
    def __call__(self, s):
        for ln in s.split('\n'):
            ln = ln.strip()
            if ln: self.L.append(ln)
    def lab(self, p='L'):
        self.uid += 1
        return f'{p}_{self.uid}'
class Pool:
    def __init__(self, kind, lo, hi):
        self.kind = kind; self.free = set(range(lo, hi)); self.hi_water = lo
    def alloc(self, n=1, align=None):
        if align is None: align = 1 if n == 1 else (2 if self.kind == 'v' else (2 if n == 2 else 4))
        for b in sorted(self.free):
            if b % align: continue
            if all((b + i) in self.free for i in range(n)):
                for i in range(n): self.free.discard(b + i)
                self.hi_water = max(self.hi_water, b + n)
                return R(self.kind, b, n)
        raise RuntimeError(f'out of {self.kind} regs for {n}')
    def at(self, b, n=1):
        for i in range(n):
            assert (b + i) in self.free, f'{self.kind}{b+i} busy'
            self.free.discard(b + i)
        self.hi_water = max(self.hi_water, b + n)
        return R(self.kind, b, n)
    def release(self, *rs):
        for r in rs:
            for i in range(r.n):
                assert (r.b + i) not in self.free
                self.free.add(r.b + i)
class R:
    def __init__(self, k, b, n): self.k = k; self.b = b; self.n = n
    def __str__(self): return f'{self.k}{self.b}' if self.n == 1 else f'{self.k}[{self.b}:{self.b+self.n-1}]'
    __repr__ = __str__
    def __format__(self, spec): return str(self)
    def __getitem__(self, i):
        if isinstance(i, slice):
            a = i.start or 0; e = i.stop if i.stop is not None else self.n
            assert 0 <= a < e <= self.n, (a, e, self.n)
            return R(self.k, self.b + a, e - a)
        assert 0 <= i < self.n, (i, self.n)
        return R(self.k, self.b + i, 1)
    def sub(self, a, n): return self[a:a+n]
```

```python
import sys
from asmlib import *
NAME = 'recurrent_scan__linear_kernel_hedgehog__dense_activation_silu__prompt'
SZ_X, SZ_QKV, SZ_PHI, SZ_WO, SZ_W1, SZ_W2, SZ_OUT, SZ_WS = 2048*512*2, 512*1536*2, 32*16*16*2, 512*512*2, 512*1792*2, 1792*512*2, 2048*512*2, 0x10000000
ACT = 0
STM = 0x00A00000; STR = STM + 8192; COLS = STM + 16384
KVP = 0x00B00000
EQ = 0x01000000
OOB = 0x40000000
SB = 45056
LOG2E = 1.4426950408889634
import struct
def f2u(x): return struct.unpack('<I', struct.pack('<f', x))[0]
ROT = 1
DBG = len(sys.argv) > 3

sX, sW, sWS, sPHI, sW2, sOUT = R('s',8,4), R('s',12,4), R('s',16,4), R('s',20,4), R('s',24,4), R('s',28,4)

def header(A, name):
    A(f'.globl {name}\n.p2align 8\n.type {name},@function\n{name}:')
def desc(name, vgpr=256, sgpr=96):
    return f'''.amdhsa_kernel {name}
  .amdhsa_next_free_vgpr {vgpr}
  .amdhsa_next_free_sgpr {sgpr}
  .amdhsa_accum_offset {vgpr}
  .amdhsa_group_segment_fixed_size 0
  .amdhsa_kernarg_size 80
  .amdhsa_user_sgpr_count 2
  .amdhsa_user_sgpr_kernarg_segment_ptr 1
  .amdhsa_system_sgpr_workgroup_id_x 1
.end_amdhsa_kernel'''
def srd(A, s, off, size):
    A(f's_load_dwordx2 {s[0:2]}, s[0:1], {off}')
    A(f's_mov_b32 {s[2]}, {size}')
    A(f's_mov_b32 {s[3]}, 0x20000')

def wave_allsum(A, v, t):
    A(f'v_add_f32_dpp {v}, {v}, {v} quad_perm:[1,0,3,2] row_mask:0xf bank_mask:0xf')
    A(f'v_add_f32_dpp {v}, {v}, {v} quad_perm:[2,3,0,1] row_mask:0xf bank_mask:0xf')
    A(f'v_add_f32_dpp {v}, {v}, {v} row_half_mirror row_mask:0xf bank_mask:0xf')
    A(f'v_add_f32_dpp {v}, {v}, {v} row_mirror row_mask:0xf bank_mask:0xf')
    A(f'v_mov_b32 {t}, {v}')
    A(f'v_permlane16_swap_b32 {v}, {t}')
    A(f'v_add_f32 {v}, {v}, {t}')
    A(f'v_mov_b32 {t}, {v}')
    A(f'v_permlane32_swap_b32 {v}, {t}')
    A(f'v_add_f32 {v}, {v}, {t}')

def unpack8(A, dst, src):
    for i in range(4):
        A(f'v_lshlrev_b32 {dst[2*i]}, 16, {src[i]}')
        A(f'v_and_b32 {dst[2*i+1]}, 0xffff0000, {src[i]}')

def k0(A):
    header(A, 'k0_kernel')
    A('s_cmp_ge_u32 s2, 256\ns_cbranch_scc1 K0_done')
    srd(A, sX, 0, SZ_X); srd(A, sWS, 72, SZ_WS)
    A('s_cmp_lt_u32 s2, 24')
    A('s_cselect_b32 s4, 8, 40')
    A(f's_load_dwordx2 {sW[0:2]}, s[0:1], s4')
    A(f's_mov_b32 {sW[2]}, {SZ_W1}\ns_cmov_b32 {sW[2]}, {SZ_QKV}')
    A(f's_mov_b32 {sW[3]}, 0x20000')
    A('s_mov_b32 s5, 3584\ns_cmov_b32 s5, 3072')
    A('s_cselect_b32 s6, 0, 24')
    A('s_sub_u32 s6, s2, s6')
    A('v_lshrrev_b32 v2, 6, v0\nv_and_b32 v1, 63, v0')
    A('v_readfirstlane_b32 s3, v2')
    A('s_lshl_b32 s7, s2, 3\ns_add_u32 s7, s7, s3')
    A('s_lshl_b32 s32, s7, 10')
    A('v_lshlrev_b32 v3, 4, v1')
    A('s_waitcnt lgkmcnt(0)')
    A(f'buffer_load_dwordx4 v[4:7], v3, {sX}, s32 offen')
    A('s_waitcnt vmcnt(0)')
    x = R('v',8,8)
    unpack8(A, x, R('v',4,4))
    A('v_add_f32 v16, v8, v9')
    for i in range(2,8): A(f'v_add_f32 v16, v16, {x[i]}')
    wave_allsum(A, R('v',16,1), R('v',17,1))
    A(f'v_mul_f32 v16, {f2u(1/512):#x}, v16')
    for i in range(8): A(f'v_sub_f32 {x[i]}, {x[i]}, v16')
    A('v_mul_f32 v18, v8, v8')
    for i in range(1,8): A(f'v_fmac_f32 v18, {x[i]}, {x[i]}')
    wave_allsum(A, R('v',18,1), R('v',17,1))
    A(f'v_mov_b32 v17, {f2u(1e-5):#x}')
    A(f'v_fmac_f32 v17, {f2u(1/512):#x}, v18')
    A('v_rsq_f32 v17, v17')
    A('s_lshl_b32 s32, s7, 2')
    A(f's_add_u32 s32, s32, {STM}')
    A(f'v_mov_b32 v19, {OOB}\nv_cmp_eq_u32 vcc, 0, v1\nv_cndmask_b32 v19, v19, v1, vcc')
    A(f'buffer_store_dword v16, v19, {sWS}, s32 offen')
    A(f's_add_u32 s32, s32, 8192')
    A(f'buffer_store_dword v17, v19, {sWS}, s32 offen')
    A('s_cmp_ge_u32 s2, 52\ns_cbranch_scc1 K0_done')
    A('v_lshlrev_b32 v20, 2, v0\nv_mov_b32 v21, 0\nds_write_b32 v20, v21\ns_waitcnt lgkmcnt(0)\ns_barrier')
    A('v_lshrrev_b32 v3, 3, v1\nv_mul_lo_u32 v3, v3, s5\nv_and_b32 v4, 7, v1\nv_lshlrev_b32 v22, 5, v4\nv_lshlrev_b32 v4, 4, v4\nv_add_u32 v3, v3, v4')
    A('s_lshl_b32 s33, s3, 6\ns_mul_i32 s33, s33, s5\ns_lshl_b32 s34, s6, 7\ns_add_u32 s33, s33, s34')
    A('s_lshl_b32 s35, s5, 3')
    for i in range(8):
        A(f'buffer_load_dwordx4 v[{32+4*i}:{35+4*i}], v3, {sW}, s33 offen')
        A('s_add_u32 s33, s33, s35')
    acc = R('v',24,8)
    for i in range(8): A(f'v_mov_b32 {acc[i]}, 0')
    A('s_waitcnt vmcnt(0)')
    for i in range(8):
        unpack8(A, x, R('v',32+4*i,4))
        for c in range(8): A(f'v_add_f32 {acc[c]}, {acc[c]}, {x[c]}')
    for c in range(8): A(f'ds_add_f32 v22, {acc[c]} offset:{4*c}')
    A('s_waitcnt lgkmcnt(0)\ns_barrier')
    A('s_cmp_lg_u32 s3, 0\ns_cbranch_scc1 K0_done')
    A('ds_read_b32 v21, v20\ns_lshl_b32 s32, s2, 8')
    A(f's_add_u32 s32, s32, {COLS}')
    A('s_waitcnt lgkmcnt(0)')
    A(f'buffer_store_dword v21, v20, {sWS}, s32 offen')
    A('K0_done:\ns_endpgm')

sI, sJ, sWV, sWQ, sRot, sT0, sT1, sXo, sWo, sHo, sXb, sWb, sHb, sLb = [R('s',32+i,1) for i in range(14)]
sE = [R('s',48+i,1) for i in range(16)]

def p1_ids(A):
    A(f's_and_b32 s4, s2, 7\ns_lshr_b32 s5, s2, 3')
    A(f's_and_b32 s6, s4, 1\ns_lshl_b32 s6, s6, 3\ns_and_b32 s7, s5, 7\ns_add_u32 {sI}, s6, s7')
    A(f's_lshr_b32 s7, s4, 1\ns_lshl_b32 s7, s7, 2\ns_lshr_b32 s6, s5, 3\ns_add_u32 s7, s7, s6')
    A(
      f's_lshl_b32 s6, s6, 1\ns_add_u32 {sRot}, s6, s5\ns_and_b32 {sRot}, {sRot}, {ROTMASK()}')
    A(f's_and_b32 s3, s7, 1\ns_lshr_b32 {sJ}, s7, 1')
def ROTMASK(): return {1:0,2:4,4:6,8:7}[ROT]

class P1:
    def __init__(self, A, typ, G):
        self.A = A; self.typ = typ; self.G = G
        self.V = Pool('v', 2, 256)
        self.lane = R('v',1,1)
        self.lrow = 3584 if typ == 'F' else 3072
        if typ == 'A': self.ntt, self.units = 4, [(0,0),(1,0),(2,0)]
        elif G == 0:   self.ntt, self.units = 4, [(0,q) for q in range(4)]
        else:          self.ntt, self.units = 2, [(2,q) for q in range(4)] + [(3,4),(3,5)]
        self.half = (typ == 'F' and G == 1)
        self.np = 6 if self.half else 5
    def setup_dma(self):
        A, V, l = self.A, self.V, self.lane
        self.vx0, self.vx1, self.vw = V.alloc(), V.alloc(), V.alloc()
        t0, t1, t2 = V.alloc(), V.alloc(), V.alloc()
        A(f's_and_b32 {sT0}, {sWV}, 1')
        A(f'v_lshrrev_b32 {t0}, 3, {l}\nv_and_b32 {t1}, 7, {l}')
        A(f's_lshl_b32 {sT1}, {sT0}, 2\nv_lshrrev_b32 {t2}, 1, {t0}\nv_or_b32 {t2}, {sT1}, {t2}\nv_xor_b32 {t2}, {t2}, {t1}\nv_lshlrev_b32 {t2}, 4, {t2}')
        A(f'v_lshl_add_u32 {self.vx0}, {t0}, 10, {t2}\nv_add_u32 {self.vx1}, 0x10000, {self.vx0}')
        A(f'v_and_b32 {t2}, 2, {t0}\nv_or_b32 {t2}, {sT1}, {t2}\nv_xor_b32 {t2}, {t2}, {t1}\nv_lshlrev_b32 {t2}, 4, {t2}')
        A(f'v_mul_u32_u24 {self.vw}, {self.lrow}, {t0}\nv_add_u32 {self.vw}, {self.vw}, {t2}')
        A(f's_lshl_b32 {sXb}, {sI}, 17\ns_lshl_b32 {sT0}, {sWV}, 13\ns_add_u32 {sXb}, {sXb}, {sT0}')
        if self.typ == 'F':
            A(f's_mul_i32 {sHb}, {sJ}, 448\ns_and_b32 {sT0}, {sJ}, 1\ns_lshl_b32 {sT1}, {sT0}, 6\ns_add_u32 {sWb}, {sHb}, {sT1}')
            if self.half:
                A(f's_xor_b32 {sT0}, {sT0}, 1\ns_mul_i32 {sT0}, {sT0}, 384\ns_add_u32 {sHb}, {sHb}, {sT0}')
                A(f's_mul_i32 {sT0}, {sWQ}, {16*self.lrow}\ns_add_u32 {sHb}, {sHb}, {sT0}')
                self.vh = V.alloc()
                A(f'v_lshrrev_b32 {t0}, 2, {l}\nv_and_b32 {t1}, 3, {l}\nv_lshrrev_b32 {t2}, 4, {l}\nv_and_b32 {t2}, 2, {t2}\nv_xor_b32 {t2}, {t2}, {t1}\nv_lshlrev_b32 {t2}, 4, {t2}')
                A(f'v_mul_u32_u24 {self.vh}, {self.lrow}, {t0}\nv_add_u32 {self.vh}, {self.vh}, {t2}')
        else:
            A(f's_lshl_b32 {sWb}, {sJ}, 7')
        A(f's_mul_i32 {sT0}, {sWV}, {8*self.lrow}\ns_add_u32 {sWb}, {sWb}, {sT0}')
        A(f's_lshl_b32 {sLb}, {sWV}, 10')
        V.release(t0, t1, t2)
    def issue(self, st):
        A = self.A
        buf = ((st + 1) % 3) * SB
        A(f's_add_u32 {sT0}, {sRot}, {st}\ns_and_b32 {sT0}, {sT0}, 7')
        A(f's_lshl_b32 {sXo}, {sT0}, 7\ns_add_u32 {sXo}, {sXo}, {sXb}')
        A(f's_mul_i32 {sT0}, {sT0}, {64*self.lrow}\ns_add_u32 {sWo}, {sT0}, {sWb}')
        if self.half: A(f's_add_u32 {sHo}, {sT0}, {sHb}')
        cs = 128 if self.typ == 'F' else 1024
        A(f's_add_u32 m0, {sLb}, {buf}\nbuffer_load_dwordx4 {self.vx0}, {sX}, {sXo} offen lds')
        A(f's_add_u32 m0, {sLb}, {buf+16384}\nbuffer_load_dwordx4 {self.vw}, {sW}, {sWo} offen lds')
        A(f's_add_u32 m0, {sLb}, {buf+8192}\nbuffer_load_dwordx4 {self.vx1}, {sX}, {sXo} offen lds')
        A(f's_add_u32 m0, {sLb}, {buf+16384+8192-cs}\nbuffer_load_dwordx4 {self.vw}, {sW}, {sWo} offen offset:{cs} lds')
        A(f's_add_u32 m0, {sLb}, {buf+16384+16384-2*cs}\nbuffer_load_dwordx4 {self.vw}, {sW}, {sWo} offen offset:{2*cs} lds')
        if self.half:
            A(f's_add_u32 m0, {sLb}, {buf+16384+24576-4096}\nbuffer_load_dwordx4 {self.vh}, {sW}, {sHo} offen lds')
    def setup_frag(self):
        A, V, l = self.A, self.V, self.lane
        self.ax = [V.alloc(), V.alloc()]
        t, g, t0, t1 = V.alloc(), V.alloc(), V.alloc(), V.alloc()
        A(f'v_and_b32 {t}, 15, {l}\nv_lshrrev_b32 {g}, 4, {l}')
        if self.typ == 'A': rb = f'{64*128*self.G}'
        elif self.G == 0:
            A(f's_lshr_b32 {sT0}, {sWQ}, 1\ns_lshl_b32 {sT0}, {sT0}, 13'); rb = str(sT0)
        else:
            A(f's_lshl_b32 {sT0}, {sWQ}, 12'); rb = str(sT0)
        A(f'v_lshrrev_b32 {t0}, 1, {t}\nv_xor_b32 {t0}, {t0}, {g}\nv_lshlrev_b32 {t0}, 4, {t0}\nv_lshl_add_u32 {t0}, {t}, 7, {t0}')
        A(f'v_add_u32 {t0}, {rb}, {t0}\nv_add_u32 {self.ax[0]}, {SB}, {t0}\nv_xor_b32 {t0}, 64, {t0}\nv_add_u32 {self.ax[1]}, {SB}, {t0}')
        nq = {('A',0):1,('A',1):1,('F',0):4,('F',1):6}[(self.typ,self.G)]
        self.aw = [V.alloc() for _ in range(nq)]
        f = V.alloc()
        A(f'v_lshrrev_b32 {f}, 3, {t}\nv_and_b32 {t0}, 1, {g}\nv_lshl_or_b32 {f}, {t0}, 1, {f}')
        A(f'v_lshrrev_b32 {t0}, 2, {t}\nv_lshlrev_b32 {t0}, 7, {t0}\nv_lshl_add_u32 {t0}, {g}, 10, {t0}\nv_and_b32 {t1}, 3, {t}\nv_lshl_add_u32 {t0}, {t1}, 3, {t0}')
        if self.typ == 'A':
            A(f'v_xor_b32 {t1}, {sWQ}, {f}\nv_lshl_add_u32 {t1}, {t1}, 5, {t0}\nv_add_u32 {self.aw[0]}, {SB+16384}, {t1}')
        else:
            if self.G == 0:
                A(f's_and_b32 {sT0}, {sWQ}, 1\ns_lshl_b32 {sT0}, {sT0}, 13\ns_add_u32 {sT0}, {sT0}, {SB+16384}')
            else:
                A(f's_mov_b32 {sT0}, {SB+16384}')
            for q in range(4):
                A(f'v_xor_b32 {t1}, {q}, {f}\nv_lshl_add_u32 {t1}, {t1}, 5, {t0}\nv_add_u32 {self.aw[q]}, {sT0}, {t1}')
            if self.half:
                A(f'v_lshrrev_b32 {t0}, 2, {t}\nv_lshlrev_b32 {t0}, 6, {t0}\nv_lshl_add_u32 {t0}, {g}, 9, {t0}\nv_and_b32 {t1}, 3, {t}\nv_lshl_add_u32 {t0}, {t1}, 3, {t0}')
                A(f'v_and_b32 {f}, 1, {g}')
                for q in range(2):
                    A(f'v_xor_b32 {t1}, {q}, {f}\nv_lshl_add_u32 {t1}, {t1}, 5, {t0}\nv_add_u32 {self.aw[4+q]}, {SB+16384}, {t1}')
        V.release(t, g, t0, t1, f)
        nu = len(self.units)
        self.acc = [[V.alloc(4, 4) for u in range(nu)] for tt in range(self.ntt)]
        self.xf = [[V.alloc(4, 4) for tt in range(self.ntt)] for kk in range(2)]
        self.wf = [[V.alloc(4, 4) for u in range(nu)] for kk in range(2)]
    def load_phase(self, st):
        A = self.A
        for kk in range(2):
            for u, (b, q) in enumerate(self.units):
                for hf in range(2):
                    off = b*8192 + (kk*4096 + hf*512 if b < 3 else kk*2048 + hf*256)
                    A(f'ds_read_b64_tr_b16 {self.wf[kk][u][2*hf:2*hf+2]}, {self.aw[q]} offset:{off}')
            for tt in range(self.ntt):
                A(f'ds_read_b128 {self.xf[kk][tt]}, {self.ax[kk]} offset:{tt*2048}')
        if st < 7:
            d = SB if (st + 1) % 3 != 2 else -2*SB
            for r in self.ax + self.aw:
                A(f'v_add_u32 {r}, {d & 0xffffffff:#x}, {r}')
        if st + 2 < 8: self.issue(st + 2)
    def comp_phase(self, st):
        A = self.A
        for kk in range(2):
            for u in range(len(self.units)):
                for tt in range(self.ntt):
                    c = '0' if (st == 0 and kk == 0) else str(self.acc[tt][u])
                    a, b = self.wf[kk][u], self.xf[kk][tt]
                    if self.typ == 'A' and u == 2: a, b = b, a
                    A(f'v_mfma_f32_16x16x32_bf16 {self.acc[tt][u]}, {a}, {b}, {c}')
    def main(self, pre_vm=0):
        A = self.A; n = self.np
        self.issue(0); self.issue(1)
        self.setup_frag()
        A(f's_waitcnt vmcnt({n})\ns_barrier')
        if self.G == 0:
            for s in range(8):
                self.load_phase(s)
                A('s_waitcnt lgkmcnt(0)\ns_barrier')
                self.comp_phase(s)
                if s < 7:
                    A(f's_waitcnt vmcnt({n if s + 2 < 8 else 0})')
                A('s_barrier')
        else:
            A('s_barrier')
            for s in range(8):
                self.load_phase(s)
                if s < 7: A(f's_waitcnt vmcnt({n if s + 2 < 8 else 0}) lgkmcnt(0)')
                else: A('s_waitcnt lgkmcnt(0)')
                A('s_barrier')
                self.comp_phase(s)
                if s < 7: A('s_barrier')
        V = self.V
        for kk in range(2):
            V.release(*self.xf[kk]); V.release(*self.wf[kk])
        V.release(*self.ax); V.release(*self.aw); V.release(self.vx0, self.vx1, self.vw)
        if self.half: V.release(self.vh)
    def epi_F(self):
        A, V, l = self.A, self.V, self.lane
        nu = len(self.units)
        t, g = V.alloc(), V.alloc()
        A(f'v_and_b32 {t}, 15, {l}\nv_lshrrev_b32 {g}, 4, {l}\nv_lshlrev_b32 {t}, 2, {t}\nv_lshlrev_b32 {g}, 4, {g}')
        e0, e1, e2, e3, e4 = sE[0], sE[1], sE[2], sE[3], sE[4]
        if self.G == 0: A(f's_lshr_b32 {e0}, {sWQ}, 1\ns_lshl_b32 {e0}, {e0}, 6')
        else: A(f's_lshl_b32 {e0}, {sWQ}, 5')
        A(f's_lshl_b32 {e1}, {sI}, 7\ns_add_u32 {e0}, {e0}, {e1}')
        A(f's_lshl_b32 {e1}, {e0}, 2\ns_add_u32 {e1}, {e1}, {STM}\ns_add_u32 {e2}, {e1}, 8192')
        ms = [V.alloc(2) for _ in range(self.ntt)]
        nr = [V.alloc(2) for _ in range(self.ntt)]
        sg = [V.alloc(2) for _ in range(self.ntt)]
        for tt in range(self.ntt):
            A(f'buffer_load_dword {ms[tt][0]}, {t}, {sWS}, {e1} offen offset:{64*tt}')
            A(f'buffer_load_dword {nr[tt][0]}, {t}, {sWS}, {e2} offen offset:{64*tt}')
        A(f's_mul_i32 {e3}, {sJ}, 7\ns_and_b32 {sT0}, {sJ}, 1\ns_add_u32 {e4}, {e3}, {sT0}')
        if self.G == 0: A(f's_and_b32 {sT1}, {sWQ}, 1\ns_lshl_b32 {sT1}, {sT1}, 1\ns_add_u32 {e4}, {e4}, {sT1}')
        else:
            A(f's_add_u32 {e4}, {e4}, 4')
            A(f's_xor_b32 {sT0}, {sT0}, 1\ns_mul_i32 {sT0}, {sT0}, 6\ns_add_u32 {e3}, {e3}, {sT0}')
        cc = [V.alloc(4, 4) for _ in range(nu)]
        A(f's_lshl_b32 {e1}, {e4}, 7\ns_add_u32 {e1}, {e1}, {COLS + 1536*4}')
        for u in range(4): A(f'buffer_load_dwordx4 {cc[u]}, {g}, {sWS}, {e1} offen offset:{64*u}')
        if self.half:
            A(f's_lshl_b32 {e1}, {e3}, 7\ns_add_u32 {e1}, {e1}, {COLS + 1536*4}')
            for u in range(2): A(f'buffer_load_dwordx4 {cc[4+u]}, {g}, {sWS}, {e1} offen offset:{64*u}')
        A(f's_lshr_b32 {sT0}, {e0}, 6\ns_mul_i32 {sT0}, {sT0}, {72*4096}\ns_lshr_b32 {sT1}, {e0}, 4\ns_and_b32 {sT1}, {sT1}, 3\ns_lshl_b32 {sT1}, {sT1}, 10\ns_add_u32 {sT0}, {sT0}, {sT1}')
        A(f's_lshl_b32 {e4}, {e4}, 12\ns_add_u32 {e4}, {e4}, {sT0}\ns_add_u32 {e2}, {e4}, 4096')
        A(f's_lshl_b32 {e3}, {e3}, 12\ns_add_u32 {e3}, {e3}, {sT0}')
        l16 = V.alloc()
        A(f'v_lshlrev_b32 {l16}, 4, {l}')
        A('s_waitcnt vmcnt(0)')
        for tt in range(self.ntt):
            A(f'v_rcp_f32 {sg[tt][0]}, {nr[tt][0]}')
            A(f'v_sub_f32 {ms[tt][1]}, 0, {ms[tt][0]}\nv_sub_f32 {ms[tt][0]}, 0, {ms[tt][0]}')
            A(f'v_mul_f32 {nr[tt][0]}, {f2u(-LOG2E):#x}, {nr[tt][0]}\nv_mov_b32 {nr[tt][1]}, {nr[tt][0]}\nv_mov_b32 {sg[tt][1]}, {sg[tt][0]}')
        tmp = [V.alloc(8, 4) for _ in range(2)]
        outp = [V.alloc(4, 4) for _ in range(2)]
        k = 0
        for tt in range(self.ntt):
            for pr in range(nu // 2):
                p = tmp[k % 2]; o = outp[k % 2]; k += 1
                src = [self.acc[tt][2*pr][0:2], self.acc[tt][2*pr][2:4], self.acc[tt][2*pr+1][0:2], self.acc[tt][2*pr+1][2:4]]
                cs = [cc[2*pr][0:2], cc[2*pr][2:4], cc[2*pr+1][0:2], cc[2*pr+1][2:4]]
                for i in range(4): A(f'v_pk_fma_f32 {src[i]}, {cs[i]}, {ms[tt]}, {src[i]}')
                for i in range(4): A(f'v_pk_mul_f32 {p[2*i:2*i+2]}, {src[i]}, {nr[tt]}')
                for i in range(8): A(f'v_exp_f32 {p[i]}, {p[i]}')
                for i in range(4): A(f'v_pk_fma_f32 {p[2*i:2*i+2]}, {p[2*i:2*i+2]}, {sg[tt]}, {sg[tt]}')
                for i in range(8): A(f'v_rcp_f32 {p[i]}, {p[i]}')
                for i in range(4): A(f'v_pk_mul_f32 {p[2*i:2*i+2]}, {src[i]}, {p[2*i:2*i+2]}')
                for i in range(4): A(f'v_cvt_pk_bf16_f32 {o[i]}, {p[2*i]}, {p[2*i+1]}')
                so = [e4, e2, e3][pr]
                A(f'buffer_store_dwordx4 {o}, {l16}, {sWS}, {so} offen offset:{tt*1024}')
    def phi_load(self):
        A, V, l = self.A, self.V, self.lane
        self.aphi = V.alloc(4, 4); self.aphi_hi = V.alloc(4, 4)
        t0, t1 = V.alloc(), V.alloc()
        A(f'v_bfe_u32 {t0}, {l}, 3, 2\nv_lshlrev_b32 {t0}, 3, {t0}\nv_and_b32 {t1}, 3, {l}\nv_lshl_add_u32 {t0}, {t1}, 1, {t0}')
        A(f'v_lshrrev_b32 {t1}, 5, {l}\nv_lshl_add_u32 {t0}, {t1}, 8, {t0}')
        A(f's_lshl_b32 {sT0}, {sJ}, 2\ns_add_u32 {sT0}, {sT0}, {sWQ}\ns_lshl_b32 {sT0}, {sT0}, 9')
        for j in range(8):
            A(f'buffer_load_ushort {(self.aphi_hi if j & 1 else self.aphi)[j//2]}, {t0}, {sPHI}, {sT0} offen offset:{32*j}')
        V.release(t0, t1)
    def feat(self, accs, cvec, negm, rl, P16, B4):
        A, V = self.A, self.V
        for T in range(2):
            for h in range(2):
                s = accs[T][2*h:2*h+2]
                A(f'v_pk_fma_f32 {s}, {cvec[2*h:2*h+2]}, {negm[T]}, {s}')
        for T in range(2):
            for h in range(2):
                A(f'v_cvt_pk_bf16_f32 {B4[2*T+h]}, {accs[T][2*h]}, {accs[T][2*h+1]}')
        A(f'v_permlane16_swap_b32 {B4[0]}, {B4[2]}\nv_permlane16_swap_b32 {B4[1]}, {B4[3]}')
        A(f'v_mfma_f32_32x32x16_bf16 {P16}, {self.aphi}, {B4}, 0')
        mx = B4[0]; m2 = B4[1]
        A(f'v_max3_f32 {mx}, {P16[0]}, {P16[1]}, {P16[2]}\nv_max3_f32 {m2}, {P16[3]}, {P16[4]}, {P16[5]}')
        A(f'v_max3_f32 {mx}, {mx}, {P16[6]}, {P16[7]}\nv_max3_f32 {m2}, {m2}, {P16[8]}, {P16[9]}')
        A(f'v_max3_f32 {mx}, {mx}, {P16[10]}, {P16[11]}\nv_max3_f32 {m2}, {m2}, {P16[12]}, {P16[13]}')
        A(f'v_max3_f32 {mx}, {mx}, {P16[14]}, {P16[15]}\nv_max_f32 {mx}, {mx}, {m2}')
        A(f'v_mul_f32_e64 {B4[2]}, -{mx}, {rl[0]}\nv_mul_f32_e64 {B4[3]}, -{mx}, {rl[0]}')
        for i in range(8): A(f'v_pk_fma_f32 {P16[2*i:2*i+2]}, {P16[2*i:2*i+2]}, {rl}, {B4[2:4]}')
        for i in range(16): A(f'v_exp_f32 {P16[i]}, {P16[i]}')
    def epi_A1(self):
        A, V, l = self.A, self.V, self.lane
        e0, e1, e2, e3 = sE[0], sE[1], sE[2], sE[3]
        t4, g16, t32 = V.alloc(), V.alloc(), V.alloc()
        A(f'v_and_b32 {t4}, 15, {l}\nv_lshlrev_b32 {t4}, 2, {t4}\nv_and_b32 {g16}, 48, {l}\nv_and_b32 {t32}, 31, {l}\nv_lshlrev_b32 {t32}, 2, {t32}')
        A(f's_lshl_b32 {e0}, {sI}, 9\ns_add_u32 {e0}, {e0}, {STM + 256*self.G}\ns_add_u32 {e1}, {e0}, 8192')
        negm = [V.alloc(2) for _ in range(4)]
        rl = [V.alloc(2) for _ in range(2)]
        M4 = [V.alloc(4, 4) for _ in range(4)]; R4 = [V.alloc(4, 4) for _ in range(4)]
        cq, ck, cv = V.alloc(4, 4), V.alloc(4, 4), V.alloc(2)
        for T in range(4):
            A(f'buffer_load_dword {negm[T][0]}, {t4}, {sWS}, {e0} offen offset:{64*T}')
            A(f'buffer_load_dwordx4 {M4[T]}, {g16}, {sWS}, {e0} offen offset:{64*T}')
            A(f'buffer_load_dwordx4 {R4[T]}, {g16}, {sWS}, {e1} offen offset:{64*T}')
        for p in range(2): A(f'buffer_load_dword {rl[p][0]}, {t32}, {sWS}, {e1} offen offset:{128*p}')
        A(f's_lshl_b32 {e2}, {sJ}, 2\ns_add_u32 {e2}, {e2}, {sWQ}\ns_lshl_b32 {e2}, {e2}, 6\ns_add_u32 {e2}, {e2}, {COLS}')
        A(f'buffer_load_dwordx4 {cq}, {g16}, {sWS}, {e2} offen')
        A(f'buffer_load_dwordx4 {ck}, {g16}, {sWS}, {e2} offen offset:2048')
        A(f's_add_u32 {e2}, {e2}, 4096')
        A(f'buffer_load_dword {cv[0]}, {t4}, {sWS}, {e2} offen')
        t0, t1 = V.alloc(), V.alloc()
        A(f'v_bfe_u32 {t0}, {l}, 2, 1\nv_mul_u32_u24 {t0}, 0x8000, {t0}\nv_lshl_or_b32 {t0}, {t0}, 16, {t0}')
        bsel = [V.alloc(4, 4) for _ in range(2)]; ones = V.alloc(4, 4)
        val, key = V.alloc(), V.alloc()
        A(f'v_and_b32 {t1}, 1, {l}\nv_lshlrev_b32 {t1}, 4, {t1}\nv_mov_b32 {val}, 0x3f80\nv_lshlrev_b32 {val}, {t1}, {val}')
        A(f'v_bfe_u32 {key}, {l}, 1, 2\nv_bfe_u32 {t1}, {l}, 4, 1\nv_lshl_or_b32 {key}, {t1}, 2, {key}')
        A(f'v_lshrrev_b32 {t1}, 2, {l}\nv_xor_b32 {t1}, {t1}, {l}\nv_and_b32 {t1}, 8, {t1}\nv_or_b32 {key}, {key}, {t1}')
        for T in range(2):
            for rr in range(4):
                A(f'v_cmp_eq_u32 vcc, {rr + 4*T}, {key}\nv_cndmask_b32 {bsel[T][rr]}, 0, {val}, vcc')
        for rr in range(4): A(f'v_mov_b32 {ones[rr]}, 0x3f803f80')
        A('s_waitcnt vmcnt(0)')
        for rr in range(4): A(f'v_lshl_or_b32 {self.aphi[rr]}, {self.aphi_hi[rr]}, 16, {self.aphi[rr]}\nv_xor_b32 {self.aphi[rr]}, {self.aphi[rr]}, {t0}')
        V.release(self.aphi_hi)
        for T in range(4): A(f'v_sub_f32 {negm[T][1]}, 0, {negm[T][0]}\nv_sub_f32 {negm[T][0]}, 0, {negm[T][0]}')
        for p in range(2): A(f'v_mul_f32 {rl[p][0]}, {f2u(LOG2E):#x}, {rl[p][0]}\nv_mov_b32 {rl[p][1]}, {rl[p][0]}')
        A(f'v_sub_f32 {cv[1]}, 0, {cv[0]}\nv_sub_f32 {cv[0]}, 0, {cv[0]}')
        V.release(t0, t1, val, key)
        P16, B4, E8, TR, PT, VB = V.alloc(16, 4), V.alloc(4, 4), V.alloc(8, 4), V.alloc(16, 4), V.alloc(8, 4), V.alloc(4, 4)
        kv = [V.alloc(4, 4) for _ in range(2)]; zz = [V.alloc(4, 4) for _ in range(2)]
        sm = V.alloc(8, 4)
        for p in range(2):
            self.feat([self.acc[2*p][1], self.acc[2*p+1][1]], ck, negm[2*p:2*p+2], rl[p], P16, B4)
            if DBG:
                if p == 0: dbg = [V.alloc(16, 4) for _ in range(2)]
                for i in range(16): A(f'v_mov_b32 {dbg[p][i]}, {P16[i]}')
            for i in range(4): A(f'v_pk_add_f32 {sm[2*i:2*i+2]}, {P16[4*i:4*i+2]}, {P16[4*i+2:4*i+4]}')
            A(f'v_pk_add_f32 {sm[0:2]}, {sm[0:2]}, {sm[2:4]}\nv_pk_add_f32 {sm[4:6]}, {sm[4:6]}, {sm[6:8]}\nv_pk_add_f32 {sm[0:2]}, {sm[0:2]}, {sm[4:6]}')
            A(f'v_add_f32 {sm[0]}, {sm[0]}, {sm[1]}\nv_rcp_f32 {sm[0]}, {sm[0]}\nv_mov_b32 {sm[1]}, {sm[0]}')
            for i in range(8): A(f'v_pk_mul_f32 {P16[2*i:2*i+2]}, {P16[2*i:2*i+2]}, {sm[0:2]}')
            for i in range(8): A(f'v_cvt_pk_bf16_f32 {E8[i]}, {P16[2*i]}, {P16[2*i+1]}')
            for m in range(2):
                for T in range(2):
                    A(f'v_mfma_f32_16x16x32_bf16 {TR[8*m+4*T:8*m+4*T+4]}, {E8[4*m:4*m+4]}, {bsel[T]}, 0')
            for T in range(2):
                a = self.acc[2*p+T][2]
                for h in range(2):
                    A(f'v_pk_fma_f32 {a[2*h:2*h+2]}, {M4[2*p+T][2*h:2*h+2]}, {cv}, {a[2*h:2*h+2]}')
                for h in range(2):
                    A(f'v_pk_mul_f32 {a[2*h:2*h+2]}, {a[2*h:2*h+2]}, {R4[2*p+T][2*h:2*h+2]}')
                for h in range(2):
                    A(f'v_cvt_pk_bf16_f32 {VB[2*T+h]}, {a[2*h]}, {a[2*h+1]}')
            for i in range(8): A(f'v_cvt_pk_bf16_f32 {PT[i]}, {TR[2*i]}, {TR[2*i+1]}')
            for m in range(2):
                A(f'v_mfma_f32_16x16x32_bf16 {kv[m]}, {PT[4*m:4*m+4]}, {VB}, {kv[m] if p else 0}')
                A(f'v_mfma_f32_16x16x32_bf16 {zz[m]}, {PT[4*m:4*m+4]}, {ones}, {zz[m] if p else 0}')
        a0, a1 = V.alloc(), V.alloc()
        A(f'v_lshl_add_u32 {a0}, {t4}, 4, {g16}')
        A(f'v_add_u32 {a1}, 1024, {g16}\nv_mov_b32 {sm[0]}, {OOB}\nv_cmp_eq_u32 vcc, 0, {t4}\nv_cndmask_b32 {a1}, {sm[0]}, {a1}, vcc')
        A(f's_lshl_b32 {e3}, {sJ}, 4\ns_add_u32 {e3}, {e3}, {sI}\ns_lshl_b32 {e3}, {e3}, 3\ns_add_u32 {e3}, {e3}, {sWV}\ns_mul_i32 {e3}, {e3}, 2176\ns_add_u32 {e3}, {e3}, {KVP}')
        for m in range(2):
            A(f'buffer_store_dwordx4 {kv[m]}, {a0}, {sWS}, {e3} offen offset:{1088*m}')
            A(f'buffer_store_dwordx4 {zz[m]}, {a1}, {sWS}, {e3} offen offset:{1088*m}')
        V.release(*M4); V.release(*R4)
        self.eq = [V.alloc(8, 4) for _ in range(2)]
        for p in range(2):
            self.feat([self.acc[2*p][0], self.acc[2*p+1][0]], cq, negm[2*p:2*p+2], rl[p], P16, B4)
            for i in range(8): A(f'v_cvt_pk_bf16_f32 {self.eq[p][i]}, {P16[2*i]}, {P16[2*i+1]}')
        A(f'v_lshlrev_b32 {a0}, 4, {l}')
        A(f's_lshl_b32 {e3}, {sJ}, 4\ns_add_u32 {e3}, {e3}, {sI}\ns_lshl_b32 {e3}, {e3}, 3\ns_add_u32 {e3}, {e3}, {sWV}\ns_lshl_b32 {e3}, {e3}, 12\ns_add_u32 {e3}, {e3}, {EQ}')
        for p in range(2):
            for h in range(2):
                A(f'buffer_store_dwordx4 {self.eq[p][4*h:4*h+4]}, {a0}, {sWS}, {e3} offen offset:{(2*p+h)*1024}')

        if DBG:
            A(f's_sub_u32 {e3}, {e3}, {EQ}\ns_lshl_b32 {e3}, {e3}, 1\ns_add_u32 {e3}, {e3}, 0x01800000')
            for p in range(2):
                for h in range(4):
                    A(f'buffer_store_dwordx4 {dbg[p][4*h:4*h+4]}, {a0}, {sWS}, {e3} offen offset:{h*1024}')
                A(f's_add_u32 {e3}, {e3}, 4096')

def k1(A):
    header(A, 'k1_kernel')
    A('s_cmp_ge_u32 s2, 256\ns_cbranch_scc1 K1_done')
    p1_ids(A)
    srd(A, sX, 0, SZ_X); srd(A, sWS, 72, SZ_WS); srd(A, sPHI, 16, SZ_PHI)
    A('s_cmp_eq_u32 s3, 0\ns_cselect_b32 s4, 8, 40')
    A(f's_load_dwordx2 {sW[0:2]}, s[0:1], s4')
    A(f's_mov_b32 {sW[2]}, {SZ_W1}\ns_cmov_b32 {sW[2]}, {SZ_QKV}\ns_mov_b32 {sW[3]}, 0x20000')
    A(f'v_lshrrev_b32 v2, 6, v0\nv_and_b32 v1, 63, v0\nv_readfirstlane_b32 {sWV}, v2')
    A(f's_and_b32 {sWQ}, {sWV}, 3')
    A(f's_lshl_b32 s3, s3, 1\ns_lshr_b32 s4, {sWV}, 2\ns_add_u32 s3, s3, s4')
    A('s_cmp_eq_u32 s3, 1\ns_cbranch_scc1 K1_A1\ns_cmp_eq_u32 s3, 2\ns_cbranch_scc1 K1_F0\ns_cmp_eq_u32 s3, 3\ns_cbranch_scc1 K1_F1')
    for typ, G in (('A',0),('A',1),('F',0),('F',1)):
        A(f'K1_{typ}{G}:')
        p = P1(A, typ, G)
        p.setup_dma()
        A('s_waitcnt lgkmcnt(0)')
        if typ == 'A': p.phi_load()
        p.main()
        if typ == 'F': p.epi_F()
        else: p.epi_A1()
        A('s_endpgm')
    A('K1_done:\ns_endpgm')

def o_part(A, V, l, eq, AK, AZ, G_expr):
    e0, e1 = sE[0], sE[1]
    N, DS = V.alloc(16, 4), V.alloc(16, 4)
    ab = V.alloc(4); t = V.alloc(2); o = V.alloc(4, 4); ad = V.alloc()
    A(f's_lshl_b32 {e0}, {sI}, 1\ns_add_u32 {e0}, {e0}, {G_expr}\ns_mul_i32 {e0}, {e0}, 72\ns_lshl_b32 {e1}, {sJ}, 1\ns_add_u32 {e0}, {e0}, {e1}')
    A(f's_lshr_b32 {e1}, {sWQ}, 1\ns_add_u32 {e0}, {e0}, {e1}\ns_add_u32 {e0}, {e0}, 56\ns_lshl_b32 {e0}, {e0}, 12')
    A(f's_and_b32 {e1}, {sWQ}, 1\ns_lshl_b32 {e1}, {e1}, 9\ns_add_u32 {e0}, {e0}, {e1}')
    A(f'v_and_b32 {ad}, 15, {l}\nv_lshlrev_b32 {ad}, 4, {ad}\nv_bfe_u32 {t[0]}, {l}, 4, 1\nv_lshl_add_u32 {ad}, {t[0]}, 10, {ad}\nv_lshrrev_b32 {t[0]}, 5, {l}\nv_lshl_add_u32 {ad}, {t[0]}, 8, {ad}')
    for p in range(2):
        A(f'v_mfma_f32_32x32x16_bf16 {DS}, {AZ[0]}, {eq[p][0:4]}, 0')
        A(f'v_mfma_f32_32x32x16_bf16 {DS}, {AZ[1]}, {eq[p][4:8]}, {DS}')
        A(f'v_mfma_f32_32x32x16_bf16 {N}, {AK[0]}, {eq[p][0:4]}, 0')
        A(f'v_mfma_f32_32x32x16_bf16 {N}, {AK[1]}, {eq[p][4:8]}, {N}')
        A(f'v_mov_b32 {t[1]}, {f2u(1e-6):#x}')
        A(f'v_fma_f32 {t[0]}, {t[1]}, {DS[2]}, {DS[0]}')
        A(f'v_mul_f32 {t[0]}, {t[0]}, {DS[3]}')
        A(f'v_fmac_f32 {t[0]}, {DS[1]}, {DS[2]}')
        A(f'v_rcp_f32 {t[0]}, {t[0]}')
        A(f'v_mul_f32 {ab[0]}, {DS[3]}, {t[0]}\nv_mul_f32 {ab[1]}, {DS[3]}, {t[0]}\nv_mul_f32 {ab[2]}, {DS[2]}, {t[0]}\nv_mul_f32 {ab[3]}, {DS[2]}, {t[0]}')
        for i in range(4): A(f'v_pk_mul_f32 {N[2*i:2*i+2]}, {N[2*i:2*i+2]}, {ab[0:2]}')
        for i in range(4): A(f'v_pk_fma_f32 {N[2*i:2*i+2]}, {N[8+2*i:10+2*i]}, {ab[2:4]}, {N[2*i:2*i+2]}')
        for i in range(4): A(f'v_cvt_pk_bf16_f32 {o[i]}, {N[2*i]}, {N[2*i+1]}')
        A(f'buffer_store_dwordx4 {o}, {ad}, {sWS}, {e0} offen offset:{2048*p}')
        if p == 0: A('s_nop 1')

def k15(A):
    header(A, 'k15_kernel')
    A('s_cmp_ge_u32 s2, 128\ns_cbranch_scc1 K15_done')
    srd(A, sWS, 72, SZ_WS)
    A(f's_and_b32 {sI}, s2, 15\ns_lshr_b32 {sJ}, s2, 4')
    A(f'v_lshrrev_b32 v2, 6, v0\nv_and_b32 v1, 63, v0\nv_readfirstlane_b32 {sWV}, v2')
    A(f's_and_b32 {sWQ}, {sWV}, 3\ns_lshr_b32 s3, {sWV}, 2')
    V = Pool('v', 2, 128); l = R('v',1,1)
    eq = [V.alloc(8, 4) for _ in range(2)]
    a0, ak, az, t0, t1 = [V.alloc() for _ in range(5)]
    e2, e3 = sE[2], sE[3]
    A(f'v_lshlrev_b32 {a0}, 4, {l}')
    A(f's_lshl_b32 {e3}, s2, 3\ns_add_u32 {e3}, {e3}, {sWV}\ns_lshl_b32 {e3}, {e3}, 12\ns_add_u32 {e3}, {e3}, {EQ}')
    A('s_waitcnt lgkmcnt(0)')
    for p in range(2):
        for h in range(2):
            A(f'buffer_load_dwordx4 {eq[p][4*h:4*h+4]}, {a0}, {sWS}, {e3} offen offset:{(2*p+h)*1024}')
    A(f'v_and_b32 {ak}, 15, {l}\nv_lshlrev_b32 {ak}, 6, {ak}\nv_and_b32 {t0}, 32, {l}\nv_add_u32 {ak}, {ak}, {t0}')
    A(f'v_lshrrev_b32 {t0}, 1, {l}\nv_xor_b32 {t0}, {t0}, {l}\nv_and_b32 {t0}, 16, {t0}\nv_lshlrev_b32 {t0}, 26, {t0}\nv_add_u32 {ak}, {ak}, {t0}')
    A(f'v_lshrrev_b32 {t0}, 5, {l}\nv_and_b32 {t1}, 3, {l}\nv_xor_b32 {t1}, {t1}, {t0}')
    A(f'v_and_b32 {az}, 32, {l}\nv_add_u32 {az}, 1024, {az}\nv_lshlrev_b32 {t0}, 28, {t1}\nv_add_u32 {az}, {az}, {t0}')
    A(f'v_cmp_eq_u32 vcc, 2, {t1}\nv_mov_b32 {t0}, 0x3f803f80\nv_cndmask_b32 {t1}, 0, {t0}, vcc')
    acc = V.alloc(32, 4); ld = V.alloc(32, 4)
    for i in range(32): A(f'v_mov_b32 {acc[i]}, 0')
    A(f's_lshl_b32 {e3}, {sJ}, 7\ns_add_u32 {e3}, {e3}, {sWQ}\ns_mul_i32 {e3}, {e3}, 2176\ns_add_u32 {e3}, {e3}, {KVP}')
    A(f's_mov_b32 {e2}, 32')
    A('K15_loop:')
    for m in range(2):
        for h in range(2):
            A(f'buffer_load_dwordx4 {ld[8*m+4*h:8*m+4*h+4]}, {ak}, {sWS}, {e3} offen offset:{1088*m+16*h}')
            A(f'buffer_load_dwordx4 {ld[16+8*m+4*h:16+8*m+4*h+4]}, {az}, {sWS}, {e3} offen offset:{1088*m+16*h}')
    A('s_waitcnt vmcnt(0)')
    for i in range(32): A(f'v_add_f32 {acc[i]}, {acc[i]}, {ld[i]}')
    A(f's_add_u32 {e3}, {e3}, {4*2176}\ns_sub_u32 {e2}, {e2}, 1\ns_cmp_lg_u32 {e2}, 0\ns_cbranch_scc1 K15_loop')
    AK = [ld[0:4], ld[4:8]]; AZ = [ld[8:12], ld[12:16]]
    for m in range(2):
        for i in range(4):
            A(f'v_cvt_pk_bf16_f32 {AK[m][i]}, {acc[8*m+2*i]}, {acc[8*m+2*i+1]}')
            A(f'v_cvt_pk_bf16_f32 {AZ[m][i]}, {acc[16+8*m+2*i]}, {acc[16+8*m+2*i+1]}')
            A(f'v_or_b32 {AZ[m][i]}, {AZ[m][i]}, {t1}')
    V.release(acc)
    o_part(A, V, l, eq, AK, AZ, 's3')
    A('K15_done:\ns_endpgm')

sI2, sJ2, sK0, sCur, sBb, sAb, sP1, sP2 = [R('s',64+i,1) for i in range(8)]
class P2:
    def __init__(self, A, V, n):
        self.A = A; self.V = V; self.n = n; self.lane = R('v',1,1)
    def setup(self):
        A, V, l = self.A, self.V, self.lane
        self.vb = V.alloc(); self.va = V.alloc(); self.ab = [V.alloc() for _ in range(4)]
        t0, t1, t2 = V.alloc(), V.alloc(), V.alloc()
        A(f'v_lshrrev_b32 {t0}, 3, {l}\nv_and_b32 {t1}, 6, {t0}\nv_and_b32 {t2}, 7, {l}\nv_xor_b32 {t1}, {t1}, {t2}\nv_lshlrev_b32 {t1}, 4, {t1}\nv_lshl_add_u32 {self.vb}, {t0}, 10, {t1}')
        A(f'v_lshlrev_b32 {self.va}, 4, {l}')
        A(f'v_lshrrev_b32 {t0}, 2, {l}\nv_lshlrev_b32 {t0}, 7, {t0}\nv_and_b32 {t1}, 3, {l}\nv_lshl_add_u32 {t0}, {t1}, 3, {t0}\ns_lshl_b32 {sT0}, {sWV}, 12\nv_add_u32 {t0}, {sT0}, {t0}')
        A(f'v_bfe_u32 {t1}, {l}, 3, 2')
        for q in range(4):
            A(f'v_xor_b32 {t2}, {q}, {t1}\nv_lshl_add_u32 {self.ab[q]}, {t2}, 5, {t0}')
        V.release(t0, t1, t2)
        self.B = [V.alloc(16, 4) for _ in range(6)]
        self.hi = False
    def step_idx(self):
        A = self.A
        A(f's_add_u32 {sCur}, {sCur}, 1\ns_cmp_eq_u32 {sCur}, {self.n}\ns_cselect_b32 {sCur}, 0, {sCur}')
    def dma_b(self, k):
        A = self.A
        A(f's_lshl_b32 {sT0}, {sCur}, 15\ns_add_u32 {sT0}, {sT0}, {sBb}')
        base = (k % 4) * 32768
        A(f's_add_u32 m0, {sLb}, {base}\nbuffer_load_dwordx4 {self.vb}, {sW2}, {sT0} offen lds')
        A(f's_add_u32 {sT1}, {sT0}, {sP1}\ns_add_u32 m0, {sLb}, {base+1024}\nbuffer_load_dwordx4 {self.vb}, {sW2}, {sT1} offen lds')
        A(f's_add_u32 {sT1}, {sT0}, {sP2}\ns_add_u32 m0, {sLb}, {base+2048}\nbuffer_load_dwordx4 {self.vb}, {sW2}, {sT1} offen lds')
        A(f's_add_u32 {sT1}, {sT0}, 24576\ns_add_u32 m0, {sLb}, {base+3072}\nbuffer_load_dwordx4 {self.vb}, {sW2}, {sT1} offen lds')
        self.step_idx()
    def tr_b(self, k, dst):
        A = self.A
        sl = k % 4
        want = sl >= 2
        if want != self.hi:
            for r in self.ab: A(f'v_add_u32 {r}, {(65536 if want else -65536) & 0xffffffff:#x}, {r}')
            self.hi = want
        for q in range(4):
            for hf in range(2):
                A(f'ds_read_b64_tr_b16 {dst[4*q+2*hf:4*q+2*hf+2]}, {self.ab[q]} offset:{(sl&1)*32768 + hf*2048}')
    def load_b(self):
        A, n = self.A, self.n
        for k in range(4): self.dma_b(k)
        for k in range(4):
            A(f's_waitcnt vmcnt({12})')
            self.tr_b(k, self.B[k])
            A('s_waitcnt lgkmcnt(0)')
            self.dma_b(4 + k)
        for k in range(4, n - 4):
            A(f's_waitcnt vmcnt(12)')
            self.tr_b(k, self.B[k])
            A('s_waitcnt lgkmcnt(0)')
            self.dma_b(4 + k)
    def ld_a(self, s, flags=''):
        A = self.A
        A(f's_lshl_b32 {sT0}, {sCur}, 12\ns_add_u32 {sT0}, {sT0}, {sAb}')
        for tt in range(4):
            A(f'buffer_load_dwordx4 {self.Ab[s % 5][4*tt:4*tt+4]}, {self.va}, {sWS}, {sT0} offen offset:{tt*1024} {flags}')
        self.step_idx()
    def main(self):
        A, V, n = self.A, self.V, self.n
        self.acc = V.alloc(64, 4)
        self.Ab = [V.alloc(16, 4) for _ in range(5)]
        for s in range(5): self.ld_a(s)
        for s in range(n):
            out = min(n, s + 5) - (s + 1)
            B = self.B[s] if s < n - 4 else self.B[s - (n - 4)]
            A(f's_waitcnt vmcnt({4*out})' + (' lgkmcnt(0)' if s >= n - 4 else ''))
            for q in range(4):
                for tt in range(4):
                    a = self.acc[16*tt+4*q:16*tt+4*q+4]
                    A(f'v_mfma_f32_16x16x32_bf16 {a}, {B[4*q:4*q+4]}, {self.Ab[s%5][4*tt:4*tt+4]}, {a if s else 0}')
            if s < 4: self.tr_b(n - 4 + s, self.B[s])
            if s + 5 < n: self.ld_a(s + 5)
        V.release(*self.B); V.release(*self.Ab); V.release(*self.ab); V.release(self.vb)
def p2_final(A, V, acc):
    l = R('v',1,1)
    t0, t1, t2 = V.alloc(), V.alloc(), V.alloc()
    xr = V.alloc(4, 4); go = V.alloc()
    A(f'v_lshrrev_b32 {t0}, 3, {l}\nv_and_b32 {t1}, 7, {l}\nv_lshlrev_b32 {go}, 4, {t1}\nv_lshl_add_u32 {go}, {t0}, 10, {go}')
    A(f's_lshl_b32 {sE[0]}, {sI2}, 16\ns_lshl_b32 {sT0}, {sWV}, 13\ns_add_u32 {sE[0]}, {sE[0]}, {sT0}\ns_lshl_b32 {sT0}, {sJ2}, 7\ns_add_u32 {sE[0]}, {sE[0]}, {sT0}')
    A(f'buffer_load_dwordx4 {xr}, {go}, {sX}, {sE[0]} offen')
    wa = [V.alloc() for _ in range(4)]
    A(f'v_and_b32 {t2}, 15, {l}\nv_lshlrev_b32 {t2}, 8, {t2}\ns_lshl_b32 {sT0}, {sWV}, 12\nv_add_u32 {t2}, {sT0}, {t2}')
    g = V.alloc()
    A(f'v_lshrrev_b32 {g}, 4, {l}\nv_xor_b32 {g}, {g}, {t1}')
    A(f'v_lshl_add_u32 {wa[0]}, {g}, 4, {t2}\nv_xor_b32 {wa[1]}, 64, {wa[0]}\nv_add_u32 {wa[2]}, 0x10000, {wa[0]}\nv_add_u32 {wa[3]}, 0x10000, {wa[1]}')
    for tt in range(4):
        for q in range(4):
            A(f'ds_write_b128 {wa[(q&1) + 2*(tt>>1)]}, {acc[16*tt+4*q:16*tt+4*q+4]} offset:{(tt&1)*32768 + (q>>1)*128}')
    ra = [V.alloc(), V.alloc()]
    A(f's_lshr_b32 {sT0}, {sWV}, 1\ns_lshl_b32 {sT0}, {sT0}, 15\ns_and_b32 {sT1}, {sWV}, 1\ns_lshl_b32 {sT1}, {sT1}, 11\ns_add_u32 {sT0}, {sT0}, {sT1}')
    A(f'v_lshlrev_b32 {t1}, 1, {t1}\nv_xor_b32 {t1}, {t1}, {t0}\nv_lshlrev_b32 {t1}, 4, {t1}\nv_lshl_add_u32 {t1}, {t0}, 8, {t1}\nv_add_u32 {ra[0]}, {sT0}, {t1}\nv_xor_b32 {ra[1]}, 16, {ra[0]}')
    A('s_waitcnt lgkmcnt(0)\ns_barrier')
    P = acc
    for w in range(8):
        for h in range(2):
            A(f'ds_read_b128 {P[8*w+4*h:8*w+4*h+4]}, {ra[h]} offset:{w*4096}')
    for w in range(1, 6):
        A(f's_waitcnt lgkmcnt({14 - 2*w})')
        for i in range(4): A(f'v_pk_add_f32 {P[2*i:2*i+2]}, {P[2*i:2*i+2]}, {P[8*w+2*i:8*w+2*i+2]}')
    e = P[8:16]; c = P[16:20]
    A(f'v_mov_b32 {c[0]}, {f2u(-LOG2E):#x}\nv_mov_b32 {c[1]}, {c[0]}\nv_mov_b32 {c[2]}, 1.0\nv_mov_b32 {c[3]}, 1.0')
    for i in range(4): A(f'v_pk_mul_f32 {e[2*i:2*i+2]}, {P[2*i:2*i+2]}, {c[0:2]}')
    for i in range(8): A(f'v_exp_f32 {e[i]}, {e[i]}')
    for i in range(4): A(f'v_pk_add_f32 {e[2*i:2*i+2]}, {e[2*i:2*i+2]}, {c[2:4]}')
    for i in range(8): A(f'v_rcp_f32 {e[i]}, {e[i]}')
    A('s_waitcnt lgkmcnt(0)')
    for i in range(4): A(f'v_pk_add_f32 {P[48+2*i:50+2*i]}, {P[48+2*i:50+2*i]}, {P[56+2*i:58+2*i]}')
    for i in range(4): A(f'v_pk_mul_f32 {e[2*i:2*i+2]}, {e[2*i:2*i+2]}, {P[2*i:2*i+2]}')
    A('s_waitcnt vmcnt(0)')
    unpack8(A, P[24:32], xr)
    for i in range(4): A(f'v_pk_fma_f32 {e[2*i:2*i+2]}, {e[2*i:2*i+2]}, {P[48+2*i:50+2*i]}, {P[24+2*i:26+2*i]}')
    for i in range(4): A(f'v_cvt_pk_bf16_f32 {xr[i]}, {e[2*i]}, {e[2*i+1]}')
    A(f'buffer_store_dwordx4 {xr}, {go}, {sOUT}, {sE[0]} offen')

def k2(A):
    header(A, 'k2_kernel')
    A('s_cmp_ge_u32 s2, 256\ns_cbranch_scc1 K2_done')
    A(f'v_lshrrev_b32 v2, 6, v0\nv_and_b32 v1, 63, v0\nv_readfirstlane_b32 {sWV}, v2')
    srd(A, sX, 0, SZ_X); srd(A, sWS, 72, SZ_WS); srd(A, sOUT, 56, SZ_OUT)
    A(f's_cmp_ge_u32 {sWV}, 6\ns_cselect_b32 s4, 24, 48')
    A(f's_load_dwordx2 {sW2[0:2]}, s[0:1], s4')
    A(f's_mov_b32 {sW2[2]}, {SZ_W2}\ns_cmov_b32 {sW2[2]}, {SZ_WO}\ns_mov_b32 {sW2[3]}, 0x20000')
    A(f's_mov_b32 {sP1}, 8192\ns_cmov_b32 {sP1}, 16384\ns_xor_b32 {sP2}, {sP1}, 24576')
    A(f's_and_b32 s4, s2, 7\ns_lshr_b32 s5, s2, 3\ns_lshl_b32 s4, s4, 2\ns_and_b32 s6, s5, 3\ns_add_u32 {sI2}, s4, s6\ns_lshr_b32 {sJ2}, s5, 2')
    A(f's_mov_b32 s4, 0x1c120900\ns_mov_b32 s5, 0x40382f26\ns_lshl_b32 s6, {sWV}, 3\ns_lshr_b64 s[4:5], s[4:5], s6\ns_and_b32 {sK0}, s4, 0xff')
    A(f's_mul_i32 {sAb}, {sI2}, 72\ns_add_u32 {sAb}, {sAb}, {sK0}\ns_lshl_b32 {sAb}, {sAb}, 12')
    A(f's_cmp_ge_u32 {sWV}, 6\ns_cselect_b32 s4, 56, 0\ns_sub_u32 s4, {sK0}, s4\ns_lshl_b32 {sBb}, s4, 15\ns_lshl_b32 s4, {sJ2}, 7\ns_add_u32 {sBb}, {sBb}, s4')
    A(f's_lshl_b32 {sLb}, {sWV}, 12')
    A(f's_mov_b32 {sCur}, {sJ2}')
    A(f's_cmp_ge_u32 {sWV}, 6\ns_cbranch_scc1 K2_8\ns_and_b32 s4, {sWV}, 6\ns_cmp_eq_u32 s4, 2\ns_cbranch_scc1 K2_10')
    accb = None
    for n in (9, 10, 8):
        A(f'K2_{n}:')
        V = Pool('v', 2, 256)
        p = P2(A, V, n); p.setup()
        A('s_waitcnt lgkmcnt(0)')
        p.load_b(); p.main()
        assert accb is None or accb == p.acc.b
        accb = p.acc.b
        if n != 8: A('s_nop 7\ns_branch K2_fin')
    A('s_nop 7\nK2_fin:')
    p2_final(A, V, p.acc)
    A('K2_done:\ns_endpgm')

def build():
    A = Asm()
    k0(A); k1(A); k15(A); k2(A)
    body = fix_hazards(A.L, verbose=True)
    hdr = ['; @launch kernel=k0_kernel grid=(256,1,1) block=(512,1,1) lds=2048',
           '; @launch kernel=k1_kernel grid=(256,1,1) block=(512,1,1) lds=163840',
           '; @launch kernel=k15_kernel grid=(128,1,1) block=(512,1,1) lds=0',
           '; @launch kernel=k2_kernel grid=(256,1,1) block=(512,1,1) lds=163840',
           '.amdgcn_target "amdgcn-amd-amdhsa--gfx950"', '.text']
    tail = ['.section .rodata,"a"']
    for k, v in (('k0_kernel',64),('k1_kernel',256),('k15_kernel',128),('k2_kernel',256)):
        tail += ['.p2align 6', desc(k, v)]
    return '\n'.join(hdr + body + tail) + '\n'
if __name__ == '__main__':
    out = sys.argv[1] if len(sys.argv) > 1 else 'v1.s'
    if len(sys.argv) > 2: ROT = int(sys.argv[2])
    open(out, 'w').write(build())
```

```python
import re
TRANS = ('v_exp_f32','v_log_f32','v_rcp_f32','v_rsq_f32','v_sqrt_f32','v_sin_f32','v_cos_f32','v_rcp_iflag_f32')
def regs_of(tok):
    tok = tok.strip()
    tok = tok.lstrip('-')
    if tok.startswith('abs(') or tok.startswith('|'):
        tok = tok.replace('abs(','').replace(')','').replace('|','')
    m = re.fullmatch(r'([vsa])(\d+)', tok)
    if m: return {(m.group(1), int(m.group(2)))}
    m = re.fullmatch(r'([vsa])\[(\d+):(\d+)\]', tok)
    if m: return {(m.group(1), i) for i in range(int(m.group(2)), int(m.group(3))+1)}
    if tok in ('vcc','vcc_lo','vcc_hi'): return {('s','vcc')}
    if tok in ('exec','exec_lo','exec_hi'): return {('s','exec')}
    if tok == 'm0': return {('s','m0')}
    return set()
class Ins:
    def __init__(self, text):
        self.text = text
        t = text.split(';')[0].strip()
        self.label = t.endswith(':')
        self.dir = t.startswith('.')
        self.op = ''
        self.dst = set(); self.src = set(); self.srcC = set(); self.srcAB = set(); self.data=set()
        if self.label or self.dir or not t: return
        parts = t.split(None, 1)
        op = parts[0]; self.op = re.sub(r'_(e32|e64|dpp|sdwa)$','',op); self.fullop = op
        rest = parts[1] if len(parts) > 1 else ''
        ops = [o.strip() for o in re.split(r',(?![^\[]*\])', rest)]
        if ops:
            last = ops[-1].split()
            self.mods = ' '.join(last[1:]) if last else ''
            ops[-1] = last[0] if last else ''
        self.ops = ops
        op = self.op
        self.mfma = op.startswith('v_mfma') or op.startswith('v_smfmac')
        self.valu = op.startswith('v_') and not self.mfma
        self.vmem = op.startswith('buffer_') or op.startswith('global_')
        self.ds = op.startswith('ds_')
        self.salu = op.startswith('s_')
        self.trans = op in TRANS
        self.dpp = '_dpp' in self.fullop or 'quad_perm' in self.mods or 'row_' in self.mods
        self.lds_dma = self.vmem and (' lds' in (' '+self.mods) or 'load_lds' in op)
        R = [regs_of(o) for o in ops]
        if self.mfma:
            self.dst = R[0]; self.srcAB = R[1] | R[2]; self.srcC = R[3]; self.src = self.srcAB | self.srcC
            self.passes = 8 if '32x32' in op else 4
        elif self.valu:
            if op.startswith('v_cmp'):
                self.dst = R[0]; self.src = set().union(*R[1:])
                if op.startswith('v_cmpx'): self.dst |= {('s','exec')}
            elif 'permlane' in op and 'swap' in op:
                self.dst = R[0] | R[1]; self.src = R[0] | R[1]
            elif op in ('v_add_co_u32','v_sub_co_u32','v_addc_co_u32','v_subb_co_u32'):
                self.dst = R[0] | R[1]; self.src = set().union(*R[2:])
            else:
                self.dst = R[0]; self.src = set().union(*R[1:]) if len(R) > 1 else set()
                if op in ('v_fmac_f32','v_dot2c_f32_bf16','v_pk_fmac_f16','v_writelane_b32') or self.dpp: self.src |= R[0]
        elif self.vmem:
            if 'store' in op or ('atomic' in op):
                if op.startswith('buffer_'):
                    self.data = R[0]; self.src = set().union(*R)
                    if 'atomic' in op and 'sc0' in self.mods: self.dst = R[0]
                else:
                    self.src = set().union(*R); self.data = R[1] if 'store' in op else set()
                    if 'atomic' in op and 'sc0' in self.mods: self.dst = R[0]
            elif self.lds_dma or op in ('buffer_wbl2','buffer_inv'):
                self.src = set().union(*R) if R else set()
                if self.lds_dma: self.src |= {('s','m0')}
            else:
                self.dst = R[0]; self.src = set().union(*R[1:])
                if 'd16' in op: self.src |= R[0]
        elif self.ds:
            if op.startswith('ds_write') or op in ('ds_add_f32','ds_add_u32','ds_max_f32'):
                self.src = set().union(*R)
            else:
                self.dst = R[0]; self.src = set().union(*R[1:])
        elif self.salu:
            if op.startswith('s_cmp') or op.startswith('s_cbranch') or op in ('s_branch','s_barrier','s_nop','s_waitcnt','s_endpgm','s_setprio','s_sleep') or op.startswith('s_bitcmp'):
                self.src = set().union(*R) if R else set()
            else:
                self.dst = R[0]; self.src = set().union(*R[1:]) if len(R) > 1 else set()
                if 'saveexec' in op: self.dst |= {('s','exec')}
    def states(self):
        if self.label or self.dir or not self.op: return 0
        if self.op == 's_nop': return int(self.ops[0], 0) + 1
        return 1
def vonly(s): return {r for r in s if r[0] in 'va'}
def sonly(s): return {r for r in s if r[0] == 's'}
def need(p, c):
    n = 0
    if p.mfma:
        P = p.passes
        if c.mfma:
            if c.srcC & p.dst:
                if not (c.srcC == p.dst and c.passes == P): n = max(n, P + 2)
            if c.srcAB & p.dst: n = max(n, P + 4)
            if (c.dst & p.dst) and not (c.srcC == p.dst): n = max(n, P + 4)
        elif c.valu or c.vmem or c.ds:
            if (c.src | c.dst) & p.dst: n = max(n, P + 4)
            if c.valu and (c.dst & p.srcC): n = max(n, P - 1)
    if p.valu:
        pv = vonly(p.dst); ps = sonly(p.dst)
        if c.mfma and (c.src & pv): n = max(n, 2)
        if c.mfma and ('s','exec') in ps: n = max(n, 4)
        if c.valu:
            if p.trans and not c.trans and (c.src & pv): n = max(n, 1)
            if p.trans and c.trans and (c.src & pv): n = max(n, 1)
            if c.dpp and (c.src & pv): n = max(n, 2)
            if c.dpp and ('s','exec') in ps: n = max(n, 5)
            if 'permlane' in c.op and (c.src & pv): n = max(n, 2)
            if c.op in ('v_readlane_b32','v_readfirstlane_b32') and (c.src & pv): n = max(n, 1)
            if c.src & ps:
                n = max(n, 4 if c.op in ('v_readlane_b32','v_writelane_b32') else 2)
            if c.op == 'v_cndmask_b32' and ('s','vcc') in ps: n = max(n, 2)
            if ('s','exec') in ps and (c.op in ('v_readlane_b32','v_readfirstlane_b32','v_writelane_b32') or 'permlane' in c.op): n = max(n, 4)
            if p.op.startswith('v_dot2') and (c.src | c.dst) & pv:
                if not (c.op == p.op): n = max(n, 3)
                else: n = max(n, 0)
            if ('sdwa' in p.fullop or 'op_sel' in p.mods) and not p.op.startswith('v_pk_') and (c.src & pv): n = max(n, 1)
        if c.vmem and (c.src & ps): n = max(n, 5)
        if p.trans and (c.vmem or c.ds) and (c.src & pv): n = max(n, 1)
        if c.salu and (c.src & ps): n = max(n, 1)
    if p.salu and ('s','m0') in p.dst and c.vmem and c.lds_dma: n = max(n, 1)
    if p.vmem and p.data and len(p.data) >= 3 and (c.dst & p.data): n = max(n, 2)
    if p.ds and p.op.startswith('ds_write') and False: pass
    return n
def fix_hazards(lines, verbose=False):
    out = []
    total = 0
    for ln in lines:
        c = Ins(ln)
        if c.op and c.op != 's_nop':
            d = 0; req = 0
            for p in reversed(out):
                if d >= 20: break
                if p.op:
                    if p.op in ('s_branch','s_endpgm','s_setpc_b64'): break
                    k = need(p, c) - d
                    if k > req: req = k
                d += p.states()
            if req > 0:
                total += req
                while req > 0:
                    k = min(req, 16)
                    out.append(Ins(f's_nop {k-1}')); req -= k
        out.append(c)
    if verbose: print('inserted wait states:', total)
    return [i.text for i in out]

class Asm:
    def __init__(self):
        self.L = []
        self.uid = 0
    def __call__(self, s):
        for ln in s.split('\n'):
            ln = ln.strip()
            if ln: self.L.append(ln)
    def lab(self, p='L'):
        self.uid += 1
        return f'{p}_{self.uid}'
class Pool:
    def __init__(self, kind, lo, hi):
        self.kind = kind; self.free = set(range(lo, hi)); self.hi_water = lo
    def alloc(self, n=1, align=None):
        if align is None: align = 1 if n == 1 else (2 if self.kind == 'v' else (2 if n == 2 else 4))
        for b in sorted(self.free):
            if b % align: continue
            if all((b + i) in self.free for i in range(n)):
                for i in range(n): self.free.discard(b + i)
                self.hi_water = max(self.hi_water, b + n)
                return R(self.kind, b, n)
        raise RuntimeError(f'out of {self.kind} regs for {n}')
    def at(self, b, n=1):
        for i in range(n):
            assert (b + i) in self.free, f'{self.kind}{b+i} busy'
            self.free.discard(b + i)
        self.hi_water = max(self.hi_water, b + n)
        return R(self.kind, b, n)
    def release(self, *rs):
        for r in rs:
            for i in range(r.n):
                assert (r.b + i) not in self.free
                self.free.add(r.b + i)
class R:
    def __init__(self, k, b, n): self.k = k; self.b = b; self.n = n
    def __str__(self): return f'{self.k}{self.b}' if self.n == 1 else f'{self.k}[{self.b}:{self.b+self.n-1}]'
    __repr__ = __str__
    def __format__(self, spec): return str(self)
    def __getitem__(self, i):
        if isinstance(i, slice):
            a = i.start or 0; e = i.stop if i.stop is not None else self.n
            assert 0 <= a < e <= self.n, (a, e, self.n)
            return R(self.k, self.b + a, e - a)
        assert 0 <= i < self.n, (i, self.n)
        return R(self.k, self.b + i, 1)
    def sub(self, a, n): return self[a:a+n]

def icost(c):
    if c.mfma: return 4
    if c.valu:
        if c.trans or 'permlane' in c.op: return 8
        if c.op == 'v_cndmask_b32': return 8
        return 4
    return 4
def sched(lines, window=400, vm_gap=0):
    I = []
    for l in lines:
        for x in l.split('\n'):
            x = x.strip()
            if x: I.append(Ins(x))
    n = len(I)
    SCC = ('s', 'scc')
    for c in I:
        assert c.op and not c.op.startswith('s_waitcnt') and not c.op.startswith('s_cbranch') and c.op not in ('s_branch', 's_barrier'), c.text
        c.rd = set(c.src); c.wr = set(c.dst)
        if c.salu: c.rd.add(SCC); c.wr.add(SCC)
        if c.op == 'v_cndmask_b32' and len(c.ops) == 4: pass
        if c.vmem: c.rd.add(('m', 'vm')); c.wr.add(('m', 'vm'))
        if c.ds: c.rd.add(('m', 'ds')); c.wr.add(('m', 'ds'))
    preds = [[] for _ in range(n)]; succs = [[] for _ in range(n)]
    lastw = {}; readers = {}
    for j, c in enumerate(I):
        ps = set()
        for r in c.rd:
            if r in lastw: ps.add(lastw[r])
        for r in c.wr:
            if r in lastw: ps.add(lastw[r])
            ps |= readers.get(r, set())
        ps.discard(j)
        for p in ps:
            k = need(I[p], c)
            preds[j].append((p, k)); succs[p].append((j, k))
        for r in c.rd: readers.setdefault(r, set()).add(j)
        for r in c.wr: lastw[r] = j; readers[r] = set()
    pr = [0]*n
    for j in range(n-1, -1, -1):
        b = 0
        for s, k in succs[j]: b = max(b, pr[s] + 4*k)
        pr[j] = b + icost(I[j])
    done_pos = [None]*n
    left = [len(preds[j]) for j in range(n)]
    ready = [j for j in range(n) if left[j] == 0]
    out = []; pos = 0; t = 0; mf_free = 0; nops = 0; last_vm = -10**9
    while ready:
        best = None
        for j in ready:
            w = 0
            for p, k in preds[j]: w = max(w, k - (pos - done_pos[p] - 1))
            stall = 4*w
            if I[j].mfma: stall = max(stall, mf_free - t)
            if I[j].vmem: stall = max(stall, last_vm + vm_gap - t)
            key = (stall > 0, stall if stall > 0 else 0, -pr[j] - (100000 if (I[j].vmem or I[j].ds) else 0), j)
            if best is None or key < best[0]: best = (key, j, w)
        _, j, w = best
        c = I[j]
        pos += w; t += 4*w; nops += w
        if c.mfma:
            t = max(t, mf_free); mf_free = t + 4*c.passes
        if c.vmem: last_vm = t
        done_pos[j] = pos; pos += 1; t += icost(c)
        out.append(c.text); ready.remove(j)
        for s, k in succs[j]:
            left[s] -= 1
            if left[s] == 0: ready.append(s)
    assert len(out) == n
    return out, t, nops
```

```python
import sys, struct
from asmlib import *
NAME = 'recurrent_scan__linear_kernel_hedgehog__dense_activation_silu__prompt'
SZ_X, SZ_QKV, SZ_PHI, SZ_WO, SZ_W1, SZ_W2, SZ_OUT, SZ_WS = 2048*512*2, 512*1536*2, 32*16*16*2, 512*512*2, 512*1792*2, 1792*512*2, 2048*512*2, 0x1000000
EPOCH, STAT, KT, CSP, CNT, ACT, KP = 0, 0x8000, 0x10000, 0x40000, 0x80000, 0x100000, 0xB00000
OOB = 0x40000000
SB = 45056
def phys(s): return (2 - s % 3) * SB
X0, X1, WOB, Y0, Y1, TS, MISC = 0, 16384, 32768, 102400, 118784, 135168, 151552
L_NM, L_RL, L_R, L_CS, L_TAG = MISC, MISC+512, MISC+1024, MISC+1536, MISC+2560
JUNK = MISC + 4096
LOG2E = 1.4426950408889634
def f2u(x): return struct.unpack('<I', struct.pack('<f', x))[0]
OPT = dict(stamp=0, touch=5, spin=1<<16, slp=2, hold=3, keep=8, nmA=0, nmF=0, n6A=2, n7A=2, n6F=0, n7F=0, sp0=6, wob=13, wobA=7, tlA=0, tlF=0, gat=4, chk=6, opoll=0, lprio=0, brot=1, npre=9, vmgap=64, dbg=0, hst=0, ack1=0, ack2=0, slpa=0, slph=4, slpo=4)
for a in sys.argv[2:]:
    k, v = a.split('='); assert k in OPT, k; OPT[k] = int(v)

sX, sW, sWS, sPHI, sW2, sOUT, sWO = [R('s', 8+4*i, 4) for i in range(7)]
(sI, sJ, sWV, sWQ, sRot, sT0, sT1, sXo, sWo, sHo, sXb, sWb, sHb, sLb, sTag, sSpin,
 sI2, sJ2, sCur, sCurA, sBb, sAb, sLb2, sJJ, sLrow, sTB1, sTB2, sTB3) = [R('s', 36+i, 1) for i in range(28)]
sTB = [sTag, sTB1, sTB2, sTB3]
sM2 = R('s', 64, 2)
sE = [R('s', 66+i, 1) for i in range(6)]
NS = 12
sSel = [R('s', 96, 1), R('s', 97, 1)]; sF = [R('s', 98+i, 1) for i in range(4)]
lane = R('v', 1, 1)
v_l16 = R('v', 3, 1)
vx0, vx1, vw = R('v', 10, 1), R('v', 11, 1), R('v', 12, 1)
xrow = R('v', 240, 8)

class Ctx:
    def __init__(self, A): self.A = A; self.n = 0
    def vm(self, s):
        self.A(s); self.n += 1; return self.n
    def wait(self, tok, extra=''):
        k = min(self.n - tok, 63); assert k >= 0
        self.A(f's_waitcnt vmcnt({k}) {extra}'.strip())
class LG:
    def __init__(self, A): self.A = A; self.n = 0; self.done = 0
    def ds(self, s):
        self.A(s); self.n += 1; return self.n
    def need(self, tok, keep=None):
        if tok <= self.done: return
        k = min(self.n - tok, OPT['keep'] if keep is None else keep, 15)
        self.A(f's_waitcnt lgkmcnt({k})'); self.done = self.n - k
    def all(self):
        self.A('s_waitcnt lgkmcnt(0)'); self.done = self.n
def stamp(A, i):
    if OPT['stamp'] == 3: A(f's_memtime s[{72+2*i}:{73+2*i}]')
    elif OPT['stamp'] == 1 or (OPT['stamp'] and i == NS-1): A(f's_memrealtime s[{72+2*i}:{73+2*i}]')
def stampb(A, i):
    if OPT['stamp'] == 4: A(f's_memtime s[{72+2*i}:{73+2*i}]')
def stampe(A, i):
    if OPT['stamp'] == 5 and i < 11: A(f's_memtime s[{72+2*i}:{73+2*i}]')
def stampc(A, i):
    if OPT['stamp'] == 2: A(f's_memtime s[{72+2*i}:{73+2*i}]')
def stamp_out(A):
    if not OPT['stamp']: return
    A(f's_waitcnt vmcnt(0)')
    stamp(A, NS-1)
    A('s_waitcnt lgkmcnt(0)')
    A(f's_lshl_b32 s4, s2, 3\ns_add_u32 s4, s4, {sWV}\ns_lshl_b32 s4, s4, 7\ns_add_u32 s4, s4, {15*1024*1024}')
    A(f'v_lshlrev_b32 v2, 26, v1')
    for i in range(NS):
        A(f'v_mov_b32 v4, s{72+2*i}\nv_mov_b32 v5, s{73+2*i}\nbuffer_store_dwordx2 v[4:5], v2, {sWS}, s4 offen offset:{8*i}')
def srd(A, s, off, size):
    A(f's_load_dwordx2 {s[0:2]}, s[0:1], {off}\ns_mov_b32 {s[2]}, {size}\ns_mov_b32 {s[3]}, 0x20000')
def dpp_add(v, m): return f'v_add_f32_dpp {v}, {v}, {v} {m} row_mask:0xf bank_mask:0xf'
def emit_sched(A, L, name='', **kw):
    out, t, nops = sched(L, **kw)
    if name: print(f'  sched {name}: {len(out)} instrs, est {t} clk, nops {nops}')
    for x in out: A(x)
def poll(A, ld, check, first_loaded=False, sleep=1, mask_exec=False):
    l0, l1, l2 = A.lab('PL'), A.lab('PC'), A.lab('PD')
    A(f's_mov_b32 {sSpin}, {OPT["spin"]}')
    if first_loaded: A(f's_branch {l1}')
    A(f'{l0}:'); A(ld); A('s_waitcnt vmcnt(0)')
    if mask_exec: A('s_mov_b64 exec, -1')
    A(f'{l1}:')
    check()
    A(f's_cbranch_scc0 {l2}')
    if sleep: A(f's_sleep {sleep}')
    if mask_exec: A('s_mov_b64 exec, s[4:5]')
    A(f's_sub_u32 {sSpin}, {sSpin}, 1\ns_cbranch_scc0 {l0}')
    if mask_exec: A('s_mov_b64 exec, -1')
    A(f'{l2}:')
def chk_words(A, regs, tmp):
    def f():
        if len(regs) == 1: A(f'v_cmp_ne_u32 vcc, {sTag}, {regs[0]}')
        else:
            np_ = len(regs)//2
            for i in range(np_): A(f'v_bitop3_b32 {tmp[i]}, {regs[2*i]}, {regs[2*i+1]}, {sTag} bitop3:0x7e')
            i = 1
            while i < np_:
                if i + 1 < np_: A(f'v_or3_b32 {tmp[0]}, {tmp[0]}, {tmp[i]}, {tmp[i+1]}'); i += 2
                else: A(f'v_or_b32 {tmp[0]}, {tmp[0]}, {tmp[i]}'); i += 1
            A(f'v_cmp_ne_u32 vcc, 0, {tmp[0]}')
        A(f's_and_b64 s[4:5], vcc, exec')
    return f
def spoll(A, so, n, sleep):
    l0, l1 = A.lab('SP'), A.lab('SD')
    A(f's_add_u32 {sT1}, {sTag}, {n}\ns_mov_b32 {sSpin}, {OPT["spin"]}')
    A(f'{l0}:\ns_mov_b32 {sT0}, 0\ns_atomic_add {sT0}, {sWS[0:2]}, {so} glc\ns_waitcnt lgkmcnt(0)\ns_cmp_eq_u32 {sT0}, {sT1}\ns_cbranch_scc1 {l1}')
    if sleep: A(f's_sleep {sleep}')
    A(f's_sub_u32 {sSpin}, {sSpin}, 1\ns_cbranch_scc0 {l0}\n{l1}:')
def sarrive(A, *sos):
    A(f's_waitcnt vmcnt(0)')
    for so in sos: A(f's_atomic_add {sLrow}, {sWS[0:2]}, {so}')
def cnt_i2(A, d, i2, extra):
    A(f's_lshr_b32 {d}, {i2}, 1\ns_lshl_b32 {d}, {d}, 14\ns_and_b32 s4, {i2}, 1\ns_lshl_b32 s4, s4, 11\ns_add_u32 {d}, {d}, s4\ns_add_u32 {d}, {d}, {CNT + extra}')
def quad_diff(A, q, d, t):
    A(f'v_perm_b32 {d}, {q[1]}, {q[0]}, {sSel[0]}\nv_perm_b32 {t}, {q[3]}, {q[2]}, {sSel[1]}\nv_bitop3_b32 {d}, {d}, {t}, {sTag} bitop3:0x96')
def tag_consts(A):
    A(f's_lshr_b32 {sTB1}, {sTag}, 8\ns_lshr_b32 {sTB2}, {sTag}, 16\ns_lshr_b32 {sTB3}, {sTag}, 24')
    A(f's_mov_b32 {sSel[0]}, 0x0c0c0400\ns_mov_b32 {sSel[1]}, 0x04000c0c')
def tag_quad(q, ff): return [f'v_bfi_b32 {q[k]}, {ff}, {sTB[k]}, {q[k]}' for k in range(4)]
def lds_spin(A, va, off, n, vt):
    l0, l1 = A.lab('LS'), A.lab('LD')
    A(f's_mov_b32 {sSpin}, {OPT["spin"]*4}')
    A(f'{l0}:\nds_read_b32 {vt}, {va} offset:{off}\ns_waitcnt lgkmcnt(0)\nv_readfirstlane_b32 {sT0}, {vt}\ns_cmp_ge_u32 {sT0}, {n}\ns_cbranch_scc1 {l1}')
    A(f's_sleep 1\ns_sub_u32 {sSpin}, {sSpin}, 1\ns_cbranch_scc0 {l0}\n{l1}:')
def lds_inc(A, va, off, vt):
    A(f'v_mov_b32 {vt}, 1\ns_mov_b64 exec, 1\nds_add_u32 {va}, {vt} offset:{off}\ns_mov_b64 exec, -1')
def p2_ids(A):
    A(f's_and_b32 s4, s2, 7\ns_lshr_b32 s5, s2, 3')
    A(f's_lshl_b32 s4, s4, 2\ns_lshr_b32 s6, s5, 3\ns_add_u32 {sI2}, s4, s6\ns_and_b32 {sJ2}, s5, 7')
def tr_addr(A, vab, base, t0, t1):
    l = lane
    A(f'v_lshrrev_b32 {t0}, 2, {l}\nv_lshlrev_b32 {t0}, 7, {t0}\nv_and_b32 {t1}, 3, {l}\nv_lshl_add_u32 {t0}, {t1}, 3, {t0}\nv_add_u32 {t0}, {base}, {t0}')
    A(f'v_bfe_u32 {t1}, {l}, 3, 2')
    for q in range(4):
        A(f'v_xor_b32 {vab[q]}, {q}, {t1}\nv_lshl_add_u32 {vab[q]}, {vab[q]}, 5, {t0}')

class CW:
    def __init__(self, A, typ):
        self.A = A; self.typ = typ
        self.C = Ctx(A); self.G = LG(A)
        self.V = Pool('v', 4, 256); self.V.at(9, 4); self.V.at(240, 16)
    def prologue(self):
        A, V, C, l, typ = self.A, self.V, self.C, lane, self.typ
        C.n = 7; tk_row = 2; self.tk0 = 7
        F = typ == 'F'
        if not F: self.phi_load()
        self.ax = [V.alloc(), V.alloc()]
        self.aw = [V.alloc() for _ in range(6 if F else 1)]
        t, g, t0, t1, f = [R('v', 232+i, 1) for i in range(5)]
        b0 = phys(0)
        A(f'v_and_b32 {t}, 15, {l}\nv_lshrrev_b32 {g}, 4, {l}')
        A(f'v_lshrrev_b32 {t0}, 1, {t}\nv_xor_b32 {t0}, {t0}, {g}\nv_lshlrev_b32 {t0}, 4, {t0}\nv_lshl_add_u32 {t0}, {t}, 7, {t0}')
        if F: A(f's_lshl_b32 {sT0}, {sWQ}, 12\nv_add_u32 {t0}, {sT0}, {t0}')
        A(f'v_add_u32 {self.ax[0]}, {b0}, {t0}\nv_xor_b32 {t0}, 64, {t0}\nv_add_u32 {self.ax[1]}, {b0}, {t0}')
        A(f'v_lshrrev_b32 {f}, 3, {t}\nv_and_b32 {t0}, 1, {g}\nv_lshl_or_b32 {f}, {t0}, 1, {f}')
        A(f'v_lshrrev_b32 {t0}, 2, {t}\nv_lshlrev_b32 {t0}, 7, {t0}\nv_lshl_add_u32 {t0}, {g}, 10, {t0}\nv_and_b32 {t1}, 3, {t}\nv_lshl_add_u32 {t0}, {t1}, 3, {t0}\nv_add_u32 {t0}, {b0+16384}, {t0}')
        if not F:
            A(f'v_xor_b32 {t1}, {sWQ}, {f}\nv_lshl_add_u32 {self.aw[0]}, {t1}, 5, {t0}')
        else:
            for q in range(4): A(f'v_xor_b32 {t1}, {q}, {f}\nv_lshl_add_u32 {self.aw[q]}, {t1}, 5, {t0}')
            A(f'v_lshrrev_b32 {t0}, 2, {t}\nv_lshlrev_b32 {t0}, 6, {t0}\nv_lshl_add_u32 {t0}, {g}, 9, {t0}\nv_and_b32 {t1}, 3, {t}\nv_lshl_add_u32 {t0}, {t1}, 3, {t0}\nv_add_u32 {t0}, {b0+16384}, {t0}')
            A(f'v_and_b32 {f}, 1, {g}')
            for q in range(2): A(f'v_xor_b32 {t1}, {q}, {f}\nv_lshl_add_u32 {self.aw[4+q]}, {t1}, 5, {t0}')
        A(f's_lshl_b32 {sT0}, {sI}, 4\ns_add_u32 {sT0}, {sT0}, {sJJ}\ns_lshl2_add_u32 {sT0}, {sT0}, {sWQ}\ns_lshl_b32 {sT0}, {sT0}, 8\ns_add_u32 {sT0}, {sT0}, {CNT}')
        A('s_waitcnt lgkmcnt(0)')
        A(f's_mul_i32 {sTag}, {sTag}, 0x9E3779B1\ns_add_u32 {sTag}, {sTag}, 0x7F4A7C15\ns_mov_b32 {sSpin}, {sTag}')
        A(f's_atomic_swap {sSpin}, {sWS[0:2]}, {sT0} glc')
        p2_ids(A)
        if not F: self.consts_A()
        x = R('v', 216, 16); o = R('v', 248, 4); t = R('v', 252, 1); ad = R('v', 253, 1); u = R('v', 254, 1)
        A(f'v_and_b32 {ad}, 31, {l}\nv_lshlrev_b32 {ad}, 26, {ad}\nv_lshrrev_b32 {t}, 1, {l}\nv_add_u32 {ad}, {ad}, {t}')
        A(f's_lshr_b32 {sE[0]}, {sE[0]}, 6\ns_add_u32 {sE[0]}, {sE[0]}, {STAT}')
        A(f'v_mov_b32 {u}, {L_TAG}')
        C.wait(tk_row)
        for i in range(8): A(f'v_lshlrev_b32 {x[2*i]}, 16, {xrow[i]}\nv_and_b32 {x[2*i+1]}, 0xffff0000, {xrow[i]}')
        y = xrow
        for i in range(4): A(f'v_pk_add_f32 {y[2*i:2*i+2]}, {x[4*i:4*i+2]}, {x[4*i+2:4*i+4]}')
        A(f'v_pk_add_f32 {y[0:2]}, {y[0:2]}, {y[2:4]}\nv_pk_add_f32 {y[4:6]}, {y[4:6]}, {y[6:8]}\nv_pk_add_f32 {y[0:2]}, {y[0:2]}, {y[4:6]}\nv_add_f32 {o[0]}, {y[0]}, {y[1]}')
        def hsum(v):
            for m in ('quad_perm:[1,0,3,2]', 'quad_perm:[2,3,0,1]', 'row_half_mirror', 'row_mirror'): A(dpp_add(v, m))
            A(f'v_mov_b32 {t}, {v}\nv_permlane16_swap_b32 {v}, {t}\nv_add_f32 {v}, {v}, {t}')
        hsum(o[0])
        A(f'v_mul_f32 {o[0]}, {f2u(1/512):#x}, {o[0]}')
        for i in range(16): A(f'v_sub_f32 {x[i]}, {x[i]}, {o[0]}')
        A(f'v_pk_mul_f32 {y[0:2]}, {x[0:2]}, {x[0:2]}\nv_pk_mul_f32 {y[2:4]}, {x[2:4]}, {x[2:4]}')
        for i in range(2, 8): A(f'v_pk_fma_f32 {y[2*(i&1):2*(i&1)+2]}, {x[2*i:2*i+2]}, {x[2*i:2*i+2]}, {y[2*(i&1):2*(i&1)+2]}')
        A(f'v_pk_add_f32 {y[0:2]}, {y[0:2]}, {y[2:4]}\nv_add_f32 {o[2]}, {y[0]}, {y[1]}')
        hsum(o[2])
        A(f'v_mov_b32 {o[1]}, {f2u(1e-5):#x}\nv_fmac_f32 {o[1]}, {f2u(1/512):#x}, {o[2]}\nv_rsq_f32 {o[1]}, {o[1]}')
        A(f'v_mov_b32 {o[2]}, {sTag}\nv_mov_b32 {o[3]}, {sTag}\ns_waitcnt lgkmcnt(0)')
        C.vm(f'buffer_store_dwordx4 {o}, {ad}, {sWS}, {sE[0]} offen sc1')
        z = R('v', 232, 4)
        A(f'v_mov_b32 {z[0]}, {sTag}\nv_mov_b32 {z[1]}, 0\nv_mov_b32 {z[2]}, 0\nv_mov_b32 {z[3]}, 0\nds_write_b128 {u}, {z}')
        if OPT['touch'] & 4:
            A(f's_mul_i32 {sT0}, s2, 7168\ns_lshl_b32 {sT1}, {sWV}, 11\ns_add_u32 {sT0}, {sT0}, {sT1}\ns_mov_b32 m0, {JUNK}')
            C.vm(f'buffer_load_dwordx4 {v_l16}, {sW2}, {sT0} offen lds')
            A(f's_cmp_eq_u32 {sWV}, 3\ns_cselect_b32 {sT1}, {OOB}, 0\ns_add_u32 {sT0}, {sT0}, {sT1}')
            C.vm(f'buffer_load_dwordx4 {v_l16}, {sW2}, {sT0} offen offset:1024 lds')
            A(f's_lshl_b32 {sT0}, s2, 11\ns_lshl_b32 {sT1}, {sWV}, 10\ns_add_u32 {sT0}, {sT0}, {sT1}\ns_cmp_lt_u32 {sWV}, 2\ns_cselect_b32 {sT0}, {sT0}, {OOB}')
            C.vm(f'buffer_load_dwordx4 {v_l16}, {sWO}, {sT0} offen lds')
        tag_consts(A)
        A(f's_mov_b32 {sLrow}, 1')
        V.release(R('v', 240, 16), R('v', 9, 4))
    def phi_load(self):
        A, V, l = self.A, self.V, lane
        self.aphi = V.alloc(4, 4); self.aphi_hi = R('v', 208, 4)
        t0, t1 = R('v', 232, 1), R('v', 233, 1)
        A(f'v_bfe_u32 {t0}, {l}, 3, 2\nv_lshlrev_b32 {t0}, 3, {t0}\nv_and_b32 {t1}, 3, {l}\nv_lshl_add_u32 {t0}, {t1}, 1, {t0}')
        A(f'v_lshrrev_b32 {t1}, 5, {l}\nv_lshl_add_u32 {t0}, {t1}, 8, {t0}')
        A(f's_lshl_b32 {sT0}, {sJ}, 2\ns_add_u32 {sT0}, {sT0}, {sWQ}\ns_lshl_b32 {sT0}, {sT0}, 9')
        for j in range(8):
            self.tk_phi = self.C.vm(f'buffer_load_ushort {(self.aphi_hi if j & 1 else self.aphi)[j//2]}, {t0}, {sPHI}, {sT0} offen offset:{32*j}')
    def consts_A(self):
        A, V, l = self.A, self.V, lane
        t0, t1, val, key = [R('v', 232+i, 1) for i in range(4)]
        self.sel16 = V.alloc(16, 4)
        self.bsel = [self.sel16[0:4], self.sel16[4:8]]; self.zsel = [self.sel16[8:12], self.sel16[12:16]]
        A(f'v_and_b32 {t1}, 1, {l}\nv_lshlrev_b32 {t1}, 4, {t1}\nv_mov_b32 {val}, 0x3f80\nv_lshlrev_b32 {val}, {t1}, {val}')
        A(f'v_bfe_u32 {key}, {l}, 1, 2\nv_bfe_u32 {t1}, {l}, 4, 1\nv_lshl_or_b32 {key}, {t1}, 2, {key}')
        A(f'v_lshrrev_b32 {t1}, 2, {l}\nv_xor_b32 {t1}, {t1}, {l}\nv_and_b32 {t1}, 8, {t1}\nv_or_b32 {key}, {key}, {t1}')
        for T in range(2):
            for rr in range(4):
                A(f'v_cmp_eq_u32 vcc, {rr + 4*T}, {key}\nv_cndmask_b32 {self.bsel[T][rr]}, 0, {val}, vcc')
        A(f'v_and_b32 {key}, 15, {l}\nv_mov_b32 {val}, 0x3f803f80')
        for m in range(2):
            A(f'v_cmp_eq_u32 vcc, {m}, {key}\nv_cndmask_b32 {self.zsel[m][0]}, 0, {val}, vcc')
            for rr in range(1, 4): A(f'v_mov_b32 {self.zsel[m][rr]}, {self.zsel[m][0]}')
    def rd_w(self, dst, u, kk):
        b, q = self.units[u]
        return [f'ds_read_b64_tr_b16 {dst[2*hf:2*hf+2]}, {self.aw[q]} offset:{b*8192 + (kk*4096 + hf*512 if b < 3 else kk*2048 + hf*256)}' for hf in range(2)]
    def rd_x(self, dst, tt, kk): return [f'ds_read_b128 {dst}, {self.ax[kk]} offset:{tt*2048}']
    def main(self):
        A, V, C, G, typ = self.A, self.V, self.C, self.G, self.typ
        F = typ == 'F'
        if F:
            self.ntt = 2; self.units = [(b, q) for b in range(3) for q in range(4)] + [(3, 4), (3, 5)]
        else:
            self.ntt = 8; self.units = [(0, 0), (1, 0), (2, 0)]
        nu = len(self.units)
        self.acc = [[V.alloc(4, 4) for u in range(nu)] for tt in range(self.ntt)]
        nr, nd = (nu, self.ntt) if F else (self.ntt, nu)
        self.Rg = [V.alloc(4, 4) for _ in range(nr)]
        self.Dg = [V.alloc(4*nd, 4) for _ in range(2)]
        rdR, rdD = (self.rd_w, self.rd_x) if F else (self.rd_x, self.rd_w)
        last_R, last_pre, fill = self.pre_epi()
        stamp(A, 1)
        C.wait(self.tk0, 'lgkmcnt(0)'); A('s_barrier')
        stampb(A, 1)
        stamp(A, 2)
        tokR = {}; tokD = {}
        Q = []
        def issue(k):
            for _ in range(k):
                if not Q: return
                s, key = Q.pop(0); tk = G.ds(s)
                if key: (tokR if key[0] == 'R' else tokD)[key[1:]] = tk
        def kq(L, key): return [(s, key if i == len(L)-1 else None) for i, s in enumerate(L)]
        for d in range(nd): Q += kq(rdD(self.Dg[0][4*d:4*d+4], d, 0), ('D', 0, d))
        for j in range(nr): Q += kq(rdR(self.Rg[j], j, 0), ('R', 0, j))
        issue(12)
        for n in range(16):
            st, kk = n >> 1, n & 1
            pend = []
            blocked = kk == 1
            nD = []
            if n < 15:
                for d in range(nd): nD += kq(rdD(self.Dg[(n+1) & 1][4*d:4*d+4], d, kk ^ 1), ('D', n+1, d))
            else: nD = [(s, None) for s in last_pre]
            if blocked: pend += nD
            else: Q += nD
            adds = []
            if kk == 1 and st < 7:
                dlt = phys(st+1) - phys(st)
                adds = [f'v_add_u32 {r}, {dlt & 0xffffffff:#x}, {r}' for r in self.ax + self.aw]
            if n == 15: adds = list(self.pre_v)
            fl = list(fill.get(n, []))
            if n == 6: stampc(A, 1)
            if n == 8: stampc(A, 8)
            for j in range(nr):
                if blocked and j == OPT['hold']:
                    assert not Q
                    for a in adds: A(a)
                    adds = []
                    if n == 7: stampc(A, 2)
                    G.all()
                    if n == 7: stampc(A, 3)
                    A('s_barrier')
                    if n == 7: stampc(A, 4)
                    if n == 7: stamp(A, 3)
                    stampb(A, 2 + st)
                    blocked = False; Q += pend; pend = []
                for d in range(nd):
                    tt, u = (d, j) if F else (j, d)
                    G.need(max(tokR[(n, j)], tokD[(n, d)]))
                    w, x = (self.Rg[j], self.Dg[n & 1][4*d:4*d+4]) if F else (self.Dg[n & 1][4*d:4*d+4], self.Rg[j])
                    a, b = (x, w) if (not F and u == 2) else (w, x)
                    acc = self.acc[tt][u]
                    A(f'v_mfma_f32_16x16x32_bf16 {acc}, {a}, {b}, {acc if n else 0}')
                    if Q: issue(2 if len(Q) > 3 else 1)
                    elif adds:
                        A(adds.pop(0))
                        if adds: A(adds.pop(0))
                    elif fl: A(fl.pop(0))
                nw = kq(rdR(self.Rg[j], j, kk ^ 1), ('R', n+1, j)) if n < 15 else [(s, None) for s in last_R[j]]
                if blocked: pend += nw
                else: Q += nw
            for x in fl: A(x)
        issue(100)
        stampb(A, 10)
        stamp(A, 5)
        V.release(*self.ax); V.release(*self.aw)
    def pre_epi(self):
        A, V, l = self.A, self.V, lane
        if self.typ == 'F':
            at, ag = V.alloc(), V.alloc()
            A(f's_lshl_b32 {sT0}, {sWQ}, 7\ns_add_u32 {sT0}, {sT0}, {L_NM}\nv_and_b32 {at}, 15, {l}\nv_lshl_add_u32 {at}, {at}, 2, {sT0}')
            A(f'v_and_b32 {ag}, 48, {l}\nv_add_u32 {ag}, {L_CS}, {ag}')
            self.ms = [V.alloc(2) for _ in range(2)]; self.nr = [V.alloc(2) for _ in range(2)]
            pre = []
            for tt in range(2):
                pre += [f'ds_read2_b32 {self.ms[tt]}, {at} offset0:{16*tt} offset1:{16*tt}', f'ds_read2_b32 {self.nr[tt]}, {at} offset0:{128+16*tt} offset1:{128+16*tt}']
            lastR = [[f'ds_read_b128 {self.Rg[u]}, {ag} offset:{64*u}'] for u in range(14)]
            self.kL = V.alloc(2)
            A(f'v_mov_b32 {self.kL[0]}, {f2u(-LOG2E):#x}\nv_mov_b32 {self.kL[1]}, {self.kL[0]}')
            A(f's_lshl_b32 {sT0}, {sI}, 1\ns_lshr_b32 {sT1}, {sWQ}, 1\ns_add_u32 {sT0}, {sT0}, {sT1}')
            cnt_i2(A, sF[2], sT0, 1024)
            A(f's_lshr_b32 {sT1}, {sJ}, 1\ns_lshl_b32 {sT1}, {sT1}, 8\ns_add_u32 {sF[2]}, {sF[2]}, {sT1}')
            A(f's_mul_i32 {sT0}, {sT0}, 72\ns_mul_i32 {sT1}, {sJ}, 7\ns_add_u32 {sT0}, {sT0}, {sT1}\ns_lshl_b32 {sT0}, {sT0}, 12')
            A(f's_and_b32 {sT1}, {sWQ}, 1\ns_lshl_b32 {sF[0]}, {sT1}, 11\ns_add_u32 {sT0}, {sT0}, {sF[0]}\ns_add_u32 {sT0}, {sT0}, {ACT}')
            A(f's_and_b32 {sT1}, {sJ}, 1')
            A(f's_lshl_b32 {sF[0]}, {sT1}, 12\ns_add_u32 {sF[0]}, {sF[0]}, {sT0}')
            A(f's_xor_b32 {sT1}, {sT1}, 1\ns_mul_i32 {sT1}, {sT1}, {6*4096}\ns_add_u32 {sF[1]}, {sT0}, {sT1}')
            self.pre_v = []
            return lastR, pre, {}
        self.MR = [V.alloc(16, 4) for _ in range(4)]
        self.cv = V.alloc(2)
        R_ = self.Rg
        self.negm = [R_[T//2][2*(T & 1):2*(T & 1)+2] for T in range(8)]
        self.rl = [R_[4 + p//2][2*(p & 1):2*(p & 1)+2] for p in range(4)]
        self.ck, self.cq = R_[6], R_[7]
        D0 = self.Dg[0]
        a4, ag, a32, ac = D0[0], D0[1], D0[2], D0[3]
        pre_v = [f'v_and_b32 {a4}, 15, {l}', f'v_lshlrev_b32 {a4}, 2, {a4}', f'v_and_b32 {ag}, 48, {l}', f'v_and_b32 {a32}, 31, {l}',
                 f'v_add_u32 {ac}, {sF[3]}, {a4}', f'v_add_u32 {a4}, {L_NM}, {a4}', f'v_lshlrev_b32 {a32}, 2, {a32}', f'v_add_u32 {a32}, {L_RL}, {a32}',
                 f'v_add_u32 {D0[4]}, {sF[3]}, {ag}', f'v_add_u32 {ag}, {L_NM}, {ag}']
        A(f's_lshl_b32 {sF[3]}, {sWQ}, 6\ns_add_u32 {sF[3]}, {sF[3]}, {L_CS}')
        pre = [f'ds_read2_b32 {self.cv}, {ac} offset0:128 offset1:128']
        for p in range(4):
            for T in range(2):
                pre += [f'ds_read_b128 {self.MR[p][8*T:8*T+4]}, {ag} offset:{64*(2*p+T)}', f'ds_read_b128 {self.MR[p][8*T+4:8*T+8]}, {ag} offset:{1024+64*(2*p+T)}']
        lastR = [[f'ds_read2_b32 {self.negm[T]}, {a4} offset0:{16*T} offset1:{16*T}' for T in (2*j, 2*j+1)] for j in range(4)]
        lastR += [[f'ds_read2_b32 {self.rl[p]}, {a32} offset0:{32*p} offset1:{32*p}' for p in (2*j, 2*j+1)] for j in range(2)]
        lastR += [[f'ds_read_b128 {self.ck}, {D0[4]} offset:256'], [f'ds_read_b128 {self.cq}, {D0[4]}']]
        sg = self.cv[0]
        hi = self.aphi_hi
        assert any(hi.b >= m.b and hi.b + 4 <= m.b + 16 for m in self.MR)
        ph = [f's_waitcnt vmcnt({self.C.n - self.tk_phi})', f'v_bfe_u32 {sg}, {l}, 2, 1', f'v_mul_u32_u24 {sg}, 0x8000, {sg}', f'v_lshl_or_b32 {sg}, {sg}, 16, {sg}']
        for rr in range(4): ph += [f'v_lshl_or_b32 {self.aphi[rr]}, {hi[rr]}, 16, {self.aphi[rr]}']
        for rr in range(4): ph += [f'v_xor_b32 {self.aphi[rr]}, {self.aphi[rr]}, {sg}']
        self.pre_v = pre_v
        e0, e1, e2, e3 = sE[0:4]
        A(f's_lshl_b32 {e2}, {sJ}, 2\ns_add_u32 {e2}, {e2}, {sWQ}\ns_mul_i32 {e3}, {e2}, {16*2176}\ns_add_u32 {e3}, {e3}, {KP}')
        A(f's_mul_i32 {e0}, {sI}, 2176\ns_add_u32 {e0}, {e0}, {e3}')
        A(f's_lshl2_add_u32 {sXb}, {sJJ}, {sWQ}\ns_lshl_b32 {sXb}, {sXb}, 8\ns_add_u32 {sXb}, {sXb}, {CNT}\ns_add_u32 {sWb}, {sXb}, 16384')
        A(f's_lshl_b32 {sT0}, {sI}, 6\ns_add_u32 {e1}, {e3}, {sT0}')
        A(f's_mul_i32 {e2}, {e2}, 2176\ns_add_u32 {e2}, {e2}, {KT}\ns_add_u32 {e3}, {e2}, {sT0}')
        A(f's_cmp_eq_u32 {sI}, 0\ns_cselect_b32 {sE[4]}, {e1}, {OOB}\ns_cselect_b32 {sE[5]}, {e3}, {OOB}\ns_cselect_b64 {sM2}, -1, 0')
        A(f's_mul_i32 {sF[0]}, {sI}, {2*72*4096}\ns_lshl_b32 {sT0}, {sJ}, 11\ns_add_u32 {sF[0]}, {sF[0]}, {sT0}\ns_lshl_b32 {sT0}, {sWQ}, 9\ns_add_u32 {sF[0]}, {sF[0]}, {sT0}\ns_add_u32 {sF[0]}, {sF[0]}, {ACT + 56*4096}')
        A(f's_lshl_b32 {sF[1]}, {sI}, 14\ns_add_u32 {sF[1]}, {sF[1]}, {CNT + 5120}\ns_add_u32 {sHb}, {sF[1]}, 2048')
        A(f's_or_b32 {sT0}, {sWQ}, {sJ}\ns_or_b32 {sT0}, {sT0}, {sI}\ns_cselect_b32 {sF[2]}, {OOB}, {EPOCH}')
        return lastR, pre, {4: ph}
    def epi_F(self):
        A, V, C = self.A, self.V, self.C
        cc = self.Rg
        NT = 3
        tmp = [V.alloc(8, 4) for _ in range(NT)]; outp = [V.alloc(4, 4) for _ in range(NT)]
        for pr in range(1, 6): A(f's_add_u32 {sE[pr]}, {sF[0]}, {pr*4096}')
        so = [sF[0]] + sE[1:6] + [sF[1]]
        self.G.all()
        L = []; k = 0
        for pr in range(7):
            for tt in range(2):
                p = tmp[k % NT]; o = outp[k % NT]; k += 1
                src = [self.acc[tt][2*pr][0:2], self.acc[tt][2*pr][2:4], self.acc[tt][2*pr+1][0:2], self.acc[tt][2*pr+1][2:4]]
                cs = [cc[2*pr][0:2], cc[2*pr][2:4], cc[2*pr+1][0:2], cc[2*pr+1][2:4]]
                for i in range(4): L.append(f'v_pk_fma_f32 {src[i]}, {cs[i]}, {self.ms[tt]}, {src[i]}')
                for i in range(4): L.append(f'v_pk_mul_f32 {src[i]}, {src[i]}, {self.nr[tt]}')
                for i in range(8): L.append(f'v_exp_f32 {p[i]}, {src[i//2][i&1]}')
                for i in range(4): L.append(f'v_pk_fma_f32 {p[2*i:2*i+2]}, {p[2*i:2*i+2]}, {self.kL}, {self.kL}')
                for i in range(8): L.append(f'v_rcp_f32 {p[i]}, {p[i]}')
                for i in range(4): L.append(f'v_pk_mul_f32 {p[2*i:2*i+2]}, {src[i]}, {p[2*i:2*i+2]}')
                for i in range(4): L.append(f'v_cvt_pk_bf16_f32 {o[i]}, {p[2*i]}, {p[2*i+1]}')
                L.append(f'buffer_store_dwordx4 {o}, {v_l16}, {sWS}, {so[pr]} offen offset:{tt*1024} ' + ['sc1', '', 'sc1 nt', 'sc0 sc1', 'nt'][OPT['hst']])
        if OPT['dbg'] & 8: L = [x for x in L if not x.startswith('buffer')]
        stampe(A, 1); ns = 0
        for x in L:
            A(x)
            if x.startswith('buffer'):
                ns += 1
                if ns % 2 == 0: stampe(A, 1 + ns//2)
        C.n += 14
        stamp(A, 6)
        sarrive(A, sF[2])
        stampe(A, 9)
        stamp(A, 7)
    def feat(self, a0, a1, cvec, negm, rl, P16, E):
        L = []; B4 = a0
        for T, a in enumerate((a0, a1)):
            for h in range(2): L.append(f'v_pk_fma_f32 {a[2*h:2*h+2]}, {cvec[2*h:2*h+2]}, {negm[T]}, {a[2*h:2*h+2]}')
        for T, a in enumerate((a0, a1)):
            for h in range(2): L.append(f'v_cvt_pk_bf16_f32 {B4[2*T+h]}, {a[2*h]}, {a[2*h+1]}')
        L += [f'v_permlane16_swap_b32 {B4[0]}, {B4[2]}', f'v_permlane16_swap_b32 {B4[1]}, {B4[3]}']
        L.append(f'v_mfma_f32_32x32x16_bf16 {P16}, {self.aphi}, {B4}, 0')
        mx = B4[0]; m2 = B4[1]
        L += [f'v_max3_f32 {mx}, {P16[0]}, {P16[1]}, {P16[2]}', f'v_max3_f32 {m2}, {P16[3]}, {P16[4]}, {P16[5]}',
              f'v_max3_f32 {mx}, {mx}, {P16[6]}, {P16[7]}', f'v_max3_f32 {m2}, {m2}, {P16[8]}, {P16[9]}',
              f'v_max3_f32 {mx}, {mx}, {P16[10]}, {P16[11]}', f'v_max3_f32 {m2}, {m2}, {P16[12]}, {P16[13]}',
              f'v_max3_f32 {mx}, {mx}, {P16[14]}, {P16[15]}', f'v_max_f32 {mx}, {mx}, {m2}',
              f'v_mul_f32_e64 {B4[2]}, -{mx}, {rl[0]}', f'v_mul_f32_e64 {B4[3]}, -{mx}, {rl[0]}']
        for i in range(8): L.append(f'v_pk_fma_f32 {P16[2*i:2*i+2]}, {P16[2*i:2*i+2]}, {rl}, {B4[2:4]}')
        for i in range(16): L.append(f'v_exp_f32 {P16[i]}, {P16[i]}')
        s0, s1 = B4[0:2], B4[2:4]
        L += [f'v_pk_add_f32 {s0}, {P16[0:2]}, {P16[2:4]}', f'v_pk_add_f32 {s1}, {P16[4:6]}, {P16[6:8]}']
        for i in range(4, 8): L.append(f'v_pk_add_f32 {(s0, s1)[i&1]}, {(s0, s1)[i&1]}, {P16[2*i:2*i+2]}')
        L += [f'v_pk_add_f32 {s0}, {s0}, {s1}', f'v_add_f32 {B4[0]}, {B4[0]}, {B4[1]}', f'v_rcp_f32 {B4[0]}, {B4[0]}', f'v_mov_b32 {B4[1]}, {B4[0]}']
        for i in range(8): L.append(f'v_pk_mul_f32 {P16[2*i:2*i+2]}, {P16[2*i:2*i+2]}, {B4[0:2]}')
        for i in range(8): L.append(f'v_cvt_pk_bf16_f32 {E(i)}, {P16[2*i]}, {P16[2*i+1]}')
        return L
    def epi_A(self):
        A, V, C, l = self.A, self.V, self.C, lane
        e0, e1, e2, e3 = sE[0:4]
        acc, MR, negm, rl, bsel, zsel = self.acc, self.MR, self.negm, self.rl, self.bsel, self.zsel
        D0, D1 = self.Dg
        self.G.all()
        kv = [D0[0:4], D0[4:8]]; zz = D0[8:12]
        a0, a1, ff, t0, t1, ah, as_, ak, ad, l26, vtag, fa = [D1[i] for i in range(12)]
        L = []
        for p in range(4):
            P16 = MR[p]; VB = acc[2*p][2]; Eq = [acc[2*p+1][1], acc[2*p+1][2]]
            for T in range(2):
                a = acc[2*p+T][2]; M4 = P16[8*T:8*T+4]; R4 = P16[8*T+4:8*T+8]
                for h in range(2): L.append(f'v_pk_fma_f32 {a[2*h:2*h+2]}, {M4[2*h:2*h+2]}, {self.cv}, {a[2*h:2*h+2]}')
                for h in range(2): L.append(f'v_pk_mul_f32 {a[2*h:2*h+2]}, {a[2*h:2*h+2]}, {R4[2*h:2*h+2]}')
                for h in range(2): L.append(f'v_cvt_pk_bf16_f32 {VB[2*T+h]}, {a[2*h]}, {a[2*h+1]}')
            L += self.feat(acc[2*p][1], acc[2*p+1][1], self.ck, negm[2*p:2*p+2], rl[p], P16, lambda i: Eq[i//4][i % 4])
            for m in range(2):
                for T in range(2): L.append(f'v_mfma_f32_16x16x32_bf16 {P16[8*m+4*T:8*m+4*T+4]}, {Eq[m]}, {bsel[T]}, 0')
            for i in range(8): L.append(f'v_cvt_pk_bf16_f32 {Eq[i//4][i%4]}, {P16[2*i]}, {P16[2*i+1]}')
            for m in range(2): L.append(f'v_mfma_f32_16x16x32_bf16 {kv[m]}, {Eq[m]}, {VB}, {kv[m] if p else 0}')
            for m in range(2): L.append(f'v_mfma_f32_16x16x32_bf16 {zz}, {Eq[m]}, {zsel[m]}, {zz if (p or m) else 0}')
        L += [f'v_and_b32 {t0}, 15, {l}', f'v_and_b32 {t1}, 48, {l}', f'v_lshl_add_u32 {a0}, {t0}, 6, {t1}', f'v_mov_b32 {ff}, 0xff',
              f'v_mul_u32_u24 {a1}, 1088, {t0}', f'v_add_u32 {a1}, {a1}, {t1}', f'v_lshrrev_b32 {t0}, 1, {t0}', f'v_lshl_add_u32 {a1}, {t0}, 27, {a1}']
        for m in range(2):
            L += tag_quad(kv[m], ff) + [f'buffer_store_dwordx4 {kv[m]}, {a0}, {sWS}, {e0} offen offset:{1088*m} sc1']
        L += tag_quad(zz, ff) + [f'buffer_store_dwordx4 {zz}, {a1}, {sWS}, {e0} offen offset:1024 sc1']
        L += [f'v_lshlrev_b32 {l26}, 26, {l}', f'v_mov_b32 {vtag}, {sTag}', f'v_mov_b32 {fa}, 1']
        if not OPT['ack1']: L.append(f'buffer_atomic_add {fa}, {l26}, {sWS}, {sXb} offen sc1')
        stampe(A, 1)
        emit_sched(A, L, 'kside'); C.n += 4
        stampe(A, 2)
        stamp(A, 6)
        h1 = [self.sel16[4*i:4*i+4] for i in range(4)]
        ld1 = [f'buffer_load_dwordx4 {h1[0]}, {ah}, {sWS}, {e1} offen sc1', f'buffer_load_dwordx4 {h1[1]}, {ah}, {sWS}, {e1} offen offset:1088 sc1',
               f'buffer_load_dwordx4 {h1[2]}, {ah}, {sWS}, {sE[4]} offen offset:1024 sc1', f'buffer_load_dwordx4 {h1[3]}, {ah}, {sWS}, {sE[4]} offen offset:2112 sc1']
        perm = [1, 0, 2, 3]
        eq = [[acc[2*p+1][0], acc[2*p][1]] for p in range(4)]
        def qside(ps):
            L = []
            for p in ps:
                L += self.feat(acc[2*p][0], acc[2*p+1][0], self.cq, negm[2*p:2*p+2], rl[p], MR[p], lambda i: eq[p][i//4][perm[i % 4]])
            return L
        adr = [f'v_lshrrev_b32 {ah}, 2, {l}', f'v_mul_u32_u24 {ah}, 2176, {ah}', f'v_and_b32 {t0}, 3, {l}', f'v_lshl_add_u32 {ah}, {t0}, 4, {ah}',
               f'v_lshrrev_b32 {as_}, 5, {l}', f'v_mul_u32_u24 {as_}, 1088, {as_}', f'v_lshl_add_u32 {as_}, {t0}, 4, {as_}', f'v_bfe_u32 {t0}, {l}, 4, 1', f'v_lshl_add_u32 {as_}, {t0}, 3, {as_}',
               f'v_and_b32 {t1}, 12, {l}', f'v_lshl_add_u32 {as_}, {t1}, 26, {as_}',
               f'v_and_b32 {ad}, 15, {l}', f'v_lshlrev_b32 {ad}, 4, {ad}', f'v_lshl_add_u32 {ad}, {t0}, 14, {ad}', f'v_lshrrev_b32 {t0}, 5, {l}', f'v_lshl_add_u32 {ad}, {t0}, 8, {ad}',
               f'v_and_b32 {ak}, 31, {l}', f'v_min_u32 {ak}, 16, {ak}', f'v_lshlrev_b32 {ak}, 6, {ak}', f'v_lshl_add_u32 {ak}, {t0}, 5, {ak}']
        if OPT['ack1']:
            emit_sched(A, qside([0]) + adr, 'q0')
            sarrive(A, sXb)
            emit_sched(A, qside([1]), 'q1')
        else: emit_sched(A, qside([0, 1]) + adr, 'q01')
        stampe(A, 3)
        spoll(A, sXb, 16, OPT['slpa'])
        stamp(A, 7)
        stampe(A, 4)
        for x in ld1: A(x)
        emit_sched(A, qside([2]), 'q2')
        stampe(A, 5)
        A('s_waitcnt vmcnt(0)')
        tm = D0
        def chk1():
            for i in range(4): quad_diff(A, h1[i], tm[i], tm[4+i])
            A(f'v_or_b32 {tm[0]}, {tm[0]}, {tm[1]}\nv_or_b32 {tm[2]}, {tm[2]}, {tm[3]}\nv_cmp_ne_u32 vcc, 0, {tm[2]}\nv_cmp_ne_u32 s[4:5], 0, {tm[0]}')
            A(f's_and_b64 vcc, vcc, {sM2}\ns_or_b64 s[4:5], s[4:5], vcc')
        poll(A, '\n'.join(ld1), chk1, sleep=OPT['slp'], mask_exec=True, first_loaded=True)
        stampe(A, 6)
        L = []
        for x, y, so, off in ((h1[0], h1[1], e3, 0), (h1[2], h1[3], sE[5], 1024)):
            for k in range(4): L += [f'v_and_b32 {x[k]}, 0xffffff00, {x[k]}', f'v_and_b32 {y[k]}, 0xffffff00, {y[k]}']
            for k in range(4): L += [f'v_permlane32_swap_b32 {x[k]}, {y[k]}', f'v_add_f32 {x[k]}, {x[k]}, {y[k]}']
            for k in range(2): L += [f'v_permlane16_swap_b32 {x[k]}, {x[k+2]}', f'v_add_f32 {x[k]}, {x[k]}, {x[k+2]}', dpp_add(x[k], 'row_ror:4'), dpp_add(x[k], 'row_ror:8')]
            L += [f'v_cvt_pk_bf16_f32 {x[0]}, {x[0]}, {x[1]}', f'v_mov_b32 {x[1]}, {sTag}', f'buffer_store_dwordx2 {x[0:2]}, {as_}, {sWS}, {so} offen offset:{off} sc1']
        if not OPT['ack2']: L.append(f'buffer_atomic_add {fa}, {l26}, {sWS}, {sWb} offen sc1')
        emit_sched(A, L, 'reduce'); C.n += 3
        stamp(A, 8)
        ld = [self.Rg[0], self.Rg[1], self.Rg[2], self.Rg[3]]; assert all(ld[i].b == ld[0].b + 4*i for i in range(4))
        ldall = R('v', ld[0].b, 16)
        ld2 = [f'buffer_load_dwordx4 {ld[2*m+h]}, {ak}, {sWS}, {e2} offen offset:{1088*m+16*h} sc1' for m in range(2) for h in range(2)]
        A(f's_add_u32 {e0}, {sF[0]}, 32768\ns_add_u32 {e1}, {sF[0]}, {72*4096}\ns_add_u32 {e3}, {e1}, 32768')
        emit_sched(A, qside([3]), 'q3')
        if OPT['ack2']: sarrive(A, sWb)
        A(f'buffer_store_dword {vtag}, {l26}, {sWS}, {sF[2]} offen sc1')
        spoll(A, sWb, 16, OPT['slpa'])
        stampe(A, 7)
        poll(A, '\n'.join(ld2), chk_words(A, [ldall[2*i+1] for i in range(8)], tm), sleep=OPT['slp'], mask_exec=True)
        stamp(A, 4)
        L = []
        for m in range(2): L += [f'v_mov_b32 {ldall[8*m+3]}, {ldall[8*m]}', f'v_mov_b32 {ldall[8*m+5]}, {ldall[8*m+6]}']
        for p in range(4):
            N = MR[p]; o = acc[2*p][2]
            L.append(f'v_mfma_f32_32x32x16_bf16 {N}, {ldall[2:6]}, {eq[p][0]}, 0')
            L.append(f'v_mfma_f32_32x32x16_bf16 {N}, {ldall[10:14]}, {eq[p][1]}, {N}')
            L += [f'v_add_f32 {N[8]}, {f2u(1e-6):#x}, {N[8]}', f'v_rcp_f32 {N[8]}, {N[8]}', f'v_mov_b32 {N[9]}, {N[8]}']
            for i in range(4): L.append(f'v_pk_mul_f32 {N[2*i:2*i+2]}, {N[2*i:2*i+2]}, {N[8:10]}')
            for i in range(4): L.append(f'v_cvt_pk_bf16_f32 {o[i]}, {N[2*i]}, {N[2*i+1]}')
            L.append(f'buffer_store_dwordx4 {o}, {ad}, {sWS}, {[sF[0], e0, e1, e3][p]} offen sc1')
        stampe(A, 8)
        emit_sched(A, L, 'oside'); C.n += 4
        stampe(A, 9)
        sarrive(A, sF[1], sHb)
        stampe(A, 10)

def p2_C(A):
    l = lane; C = Ctx(A); G = LG(A)
    NP = OPT['npre']
    V = Pool('v', 4, 256)
    vab = [V.alloc() for _ in range(4)]
    go, vm_, t0, t1 = V.alloc(), V.alloc(), V.alloc(), V.alloc()
    xq = V.alloc(8, 4); acc = V.alloc(16, 4); ao = V.alloc(64, 4)
    Bs = [V.alloc(16, 4) for _ in range(NP)]
    A(f'v_and_b32 {t0}, 15, {l}\nv_lshlrev_b32 {go}, 10, {t0}\nv_bfe_u32 {t0}, {l}, 4, 1\nv_lshl_add_u32 {go}, {t0}, 5, {go}\nv_lshrrev_b32 {t0}, 5, {l}\nv_lshl_add_u32 {go}, {t0}, 4, {go}')
    A(f's_lshl_b32 {sE[0]}, {sI2}, 16\ns_lshl_b32 {sT0}, {sWQ}, 14\ns_add_u32 {sE[0]}, {sE[0]}, {sT0}\ns_lshl_b32 {sT1}, {sJ2}, 7\ns_add_u32 {sE[0]}, {sE[0]}, {sT1}')
    for P in range(2): A(f'buffer_load_dwordx4 {xq[4*P:4*P+4]}, {go}, {sX}, {sE[0]} offen offset:{64*P}')
    A(f's_mul_i32 {sE[1]}, {sI2}, {72*4096}\ns_add_u32 {sE[1]}, {sE[1]}, {sT0}\ns_add_u32 {sE[1]}, {sE[1]}, {ACT + 56*4096}')
    for i in range(1, 4): A(f's_add_u32 {sE[1+i]}, {sE[1]}, {4096*i}')
    cnt_i2(A, sE[5], sI2, 5120)
    tr_addr(A, vab, WOB, t0, t1)
    A(f'v_mov_b32 {vm_}, {L_TAG}')
    lds_spin(A, vm_, 4, 4, t0)
    tokB = {}
    def trl(k): return [(f'ds_read_b64_tr_b16 {Bs[k % NP][4*q+2*hf:4*q+2*hf+2]}, {vab[q]} offset:{k*4096 + hf*2048}', (k, q)) for q in range(4) for hf in range(2)]
    for k in range(NP):
        for s, key in trl(k): G.ds(s); tokB[key] = 0
    if OPT['opoll']:
        spoll(A, sE[5], 32, OPT['slpo'])
        G.all()
    else:
        lk, le = A.lab('NO'), A.lab('OE')
        A(f's_cmp_lg_u32 {sWV}, 0\ns_cbranch_scc1 {lk}')
        spoll(A, sE[5], 32, OPT['slpo'])
        A(f'v_mov_b32 {t0}, 1\nds_write_b32 {vm_}, {t0} offset:12\ns_branch {le}')
        A(f'{lk}:')
        lds_spin(A, vm_, 12, 1, t0)
        A(f'{le}:')
    stamp(A, 9)
    tok = {}
    for s in range(16):
        tok[s] = C.vm(f'buffer_load_dwordx4 {ao[4*s:4*s+4]}, {v_l16}, {sWS}, {sE[1 + s//4]} offen offset:{(s & 3)*1024} sc1')
    G.all()
    A(f's_lshl_b32 {sT0}, {sWQ}, 12\nv_add_u32 {t1}, {sT0}, {v_l16}')
    Q = []
    for s in range(16):
        C.wait(tok[s])
        if s == 0:
            for P in range(2): A(f'v_permlane16_swap_b32 {xq[4*P]}, {xq[4*P+2]}\nv_permlane16_swap_b32 {xq[4*P+1]}, {xq[4*P+3]}')
        for q in range(4):
            G.need(tokB[(s, q)])
            A(f'v_mfma_f32_16x16x32_bf16 {acc[4*q:4*q+4]}, {Bs[s % NP][4*q:4*q+4]}, {ao[4*s:4*s+4]}, {acc[4*q:4*q+4] if s else 0}')
            for _ in range(2):
                if Q: x, key = Q.pop(0); tokB[key] = G.ds(x)
        if s + NP < 16: Q += trl(s + NP)
    xf = ao[0:16]; g = ao[16:32]
    stamp(A, 10)
    A('s_barrier')
    for u in range(4): A(f'ds_read_b128 {g[4*u:4*u+4]}, {t1} offset:{X0 + 1024*u}')
    for i in range(8): A(f'v_lshlrev_b32 {xf[2*i]}, 16, {xq[i]}\nv_and_b32 {xf[2*i+1]}, 0xffff0000, {xq[i]}')
    for P in range(2):
        A(f's_waitcnt lgkmcnt({2 - 2*P})')
        for i in range(4*P, 4*P+4): A(f'v_pk_fma_f32 {g[2*i:2*i+2]}, {g[2*i:2*i+2]}, {acc[2*i:2*i+2]}, {xf[2*i:2*i+2]}')
        for i in range(4*P, 4*P+4): A(f'v_cvt_pk_bf16_f32 {xq[i]}, {g[2*i]}, {g[2*i+1]}')
    for P in range(2):
        A(f'v_permlane16_swap_b32 {xq[4*P]}, {xq[4*P+2]}\nv_permlane16_swap_b32 {xq[4*P+1]}, {xq[4*P+3]}')
    for P in range(2): A(f'buffer_store_dwordx4 {xq[4*P:4*P+4]}, {go}, {sOUT}, {sE[0]} offen offset:{64*P}')

vb = [R('v', 4+i, 1) for i in range(4)]
vb0, vb1 = R('v', 8, 1), R('v', 9, 1)
RS = [R('v', 80+16*i, 16) for i in range(11)]
ACCL = R('v', 16, 64)
vbh = [R('v', 13, 1), R('v', 14, 1), R('v', 15, 1), R('v', 2, 1)]
va = [R('v', 10, 1), R('v', 11, 1), R('v', 12, 1), R('v', 0, 1)]
vx2, vx3, vw1, vh, pt, pa, pm, p1 = [ACCL[48+i] for i in range(8)]
class BP:
    def __init__(self, A, C, G):
        self.A, self.C, self.G = A, C, G
        self.next = 0; self.free = []; self.fly = []; self.slot = {}; self.tok = {}; self.cool = []
    def dma(self, k, sl):
        A = self.A
        A(f's_lshl_b32 {sT0}, {sCur}, 15\ns_add_u32 {sT0}, {sT0}, {sBb}\ns_add_u32 {sT1}, {sT0}, 16384')
        A(f's_add_u32 {sCur}, {sCur}, 1\ns_cmp_eq_u32 {sCur}, 14\ns_cselect_b32 {sCur}, 0, {sCur}')
        for i in range(4):
            A(f's_add_u32 m0, {sLb2}, {sl + 1024*i}')
            self.tok[k] = self.C.vm(f'buffer_load_dwordx4 {(vb0, vb1)[i & 1]}, {sW2}, {(sT0, sT1)[i >> 1]} offen lds')
        self.slot[k] = sl
    def trl(self, k):
        sl = self.slot[k]; hi = sl >= Y0
        off = sl - Y0 if hi else sl
        dst = RS[k % 8]
        return [f'ds_read_b64_tr_b16 {dst[4*q+2*hf:4*q+2*hf+2]}, {(vbh if hi else vb)[q]} offset:{off + hf*2048}' for q in range(4) for hf in range(2)]
    def retire(self):
        k = self.fly.pop(0)
        self.C.wait(self.tok[k])
        for s in self.trl(k): tk = self.G.ds(s)
        self.cool.append((self.slot[k], tk))
    def step(self):
        if self.next >= 13: return False
        if not self.free:
            if not self.cool: self.retire()
            if len(self.cool) == 1 and self.fly and self.next - self.fly[0] >= 3: self.retire()
            sl, tk = self.cool.pop(0); self.G.need(tk, 8); self.free.append(sl)
        k = self.next; self.next += 1
        self.dma(k, self.free.pop(0))
        if k < 8: self.fly.append(k)
        return True

class LW:
    def __init__(self, A, typ):
        self.A = A; self.typ = typ; self.C = Ctx(A); self.G = LG(A); self.B = BP(A, self.C, self.G)
        self.lrow = 3584 if typ == 'F' else 3072
        self.stok = {}
    def issue(self, st, only_half=False, lo=0, hi=99):
        A = self.A if lo == 0 else (lambda x: None); buf = phys(st); F = self.typ == 'F'
        cs = 128 if F else 1024
        if not only_half:
            A(f's_add_u32 {sT0}, {sRot}, {st}\ns_and_b32 {sT0}, {sT0}, 7\ns_lshl_b32 {sXo}, {sT0}, 7\ns_add_u32 {sXo}, {sXo}, {sXb}')
            A(f's_mul_i32 {sT0}, {sT0}, {64*self.lrow}\ns_add_u32 {sWo}, {sT0}, {sWb}')
            xs = [(buf + 4096*p, (vx0, vx2, vx1, vx3)[p], sX, sXo, 0) for p in range(4)]
            ws = [(buf + 16384 + 8192*b + 4096*h - b*cs, (vw, vw1)[h], sW, sWo, b*cs) for h in range(2) for b in range(3)]
            items = [xs[0], ws[0], ws[1], xs[1], ws[2], xs[2], ws[3], ws[4], xs[3], ws[5]]
        else: items = []
        if F:
            A(f's_add_u32 {sHo}, {sWo}, {sHb}')
            items.append((buf + 16384 + 24576, vh, sW, sHo, 0))
        A = self.A
        for m, v, sr, so, off in items[lo:hi]:
            A(f's_add_u32 m0, {sLb}, {m}')
            self.stok[st] = self.C.vm(f'buffer_load_dwordx4 {v}, {sr}, {so} offen' + (f' offset:{off}' if off else '') + ' lds')
    def run(self):
        A, C, G, B, l = self.A, self.C, self.G, self.B, lane
        F = self.typ == 'F'; lrow = self.lrow
        C.n = 5; self.stok[0] = 5
        T = [ACCL[i] for i in range(64)]
        if OPT['lprio']: A(f's_setprio {OPT["lprio"]}')
        A(f's_sub_u32 {sXb}, {sXb}, 32768\ns_sub_u32 {sWb}, {sWb}, {32*lrow}\ns_sub_u32 {sWo}, {sWo}, {32*lrow}\ns_sub_u32 {sLb}, {sLb}, 4096')
        A(f'v_add_u32 {vx2}, 0x8000, {vx0}\nv_add_u32 {vx3}, 0x8000, {vx1}\nv_add_u32 {vw1}, {32*lrow}, {vw}')
        if F:
            t0, t1, t2 = T[0:3]
            A(f's_and_b32 {sT0}, {sJ}, 1\ns_mul_i32 {sT0}, {sT0}, 448\ns_sub_u32 {sHb}, 384, {sT0}')
            A(f's_mul_i32 {sT0}, {sWQ}, {8*lrow}\ns_add_u32 {sHb}, {sHb}, {sT0}')
            A(f'v_lshrrev_b32 {t0}, 2, {l}\nv_and_b32 {t1}, 3, {l}\nv_lshrrev_b32 {t2}, 4, {l}\nv_and_b32 {t2}, 2, {t2}\nv_xor_b32 {t2}, {t2}, {t1}\nv_lshlrev_b32 {t2}, 4, {t2}')
            A(f'v_mul_u32_u24 {vh}, {lrow}, {t0}\nv_add_u32 {vh}, {vh}, {t2}')
            self.issue(0, only_half=True)
        p2_ids(A)
        t0, t1, f = T[0:3]
        if OPT['brot'] == 0:
            A(f's_lshl_b32 s6, s6, 1\ns_add_u32 s6, s6, {sJ2}\ns_and_b32 s6, s6, 7\ns_mul_i32 s6, s6, 7\ns_lshr_b32 {sCur}, s6, 2')
        else:
            A(f's_lshl_b32 s6, s6, 1\ns_and_b32 s6, s6, 4\ns_add_u32 s6, s6, {sJ2}\ns_and_b32 s6, s6, 7\ns_mul_i32 s6, s6, 7\ns_lshr_b32 {sCur}, s6, 2')
        A(f's_mov_b32 {sCurA}, {sCur}')
        A(f's_mul_i32 s4, {sWQ}, 14\ns_mul_i32 {sAb}, {sI2}, 72\ns_add_u32 {sAb}, {sAb}, s4\ns_lshl_b32 {sAb}, {sAb}, 12\ns_add_u32 {sAb}, {sAb}, {ACT}')
        A(f's_lshl_b32 {sBb}, s4, 15\ns_lshl_b32 s5, {sJ2}, 7\ns_add_u32 {sBb}, {sBb}, s5')
        A(f's_lshl_b32 {sF[0]}, {sWQ}, 17\ns_add_u32 {sF[0]}, {sF[0]}, s5')
        A(f's_lshl_b32 {sLb2}, {sWQ}, 12')
        A(f'v_lshrrev_b32 {t0}, 3, {l}\nv_and_b32 {t1}, 6, {t0}\nv_and_b32 {f}, 7, {l}\nv_xor_b32 {t1}, {t1}, {f}\nv_lshlrev_b32 {t1}, 4, {t1}\nv_lshl_add_u32 {vb0}, {t0}, 10, {t1}\nv_add_u32 {vb1}, 0x2000, {vb0}')
        tr_addr(A, vb, sLb2, t0, t1)
        for q in range(4): A(f'v_add_u32 {vbh[q]}, {Y0}, {vb[q]}')
        A(f'v_mov_b32 {pm}, {L_TAG}\nv_mov_b32 {p1}, 1')
        cnt_i2(A, sF[1], sI2, 1024)
        A(f's_lshl_b32 s4, {sWQ}, 8\ns_add_u32 {sF[1]}, {sF[1]}, s4')
        ca = T[4:8]; t, g = T[8], T[9]; ones = ACCL[12:16]; wfr = ACCL[16:32]; cs = ACCL[32:48]; vt = T[10]; ff = T[11]
        A(f'v_and_b32 {t}, 15, {l}\nv_lshrrev_b32 {g}, 4, {l}')
        if F: A(f's_cmp_eq_u32 {sWQ}, 3\ns_cselect_b32 s4, 6, 7\ns_cselect_b32 s5, 1, 3\ns_cselect_b32 s6, 1, 0\ns_lshl_b32 s7, {sWQ}, 13')
        else: A(f's_mov_b32 s4, 7\ns_mov_b32 s5, 3\ns_mov_b32 s6, 0\ns_min_u32 s7, {sWQ}, 2\ns_lshl_b32 s7, s7, 13')
        A(f's_lshr_b32 {sT0}, {sI}, 3\ns_lshl_b32 {sT0}, {sT0}, 5')
        A(f'v_lshrrev_b32 {t0}, 2, {t}\nv_lshl_add_u32 {t0}, {g}, 3, {t0}\nv_add_u32 {t0}, {sT0}, {t0}\nv_lshlrev_b32 {t0}, s4, {t0}')
        A(f'v_and_b32 {t1}, 3, {t}\nv_lshl_add_u32 {t0}, {t1}, 3, {t0}\ns_add_u32 s7, s7, {phys(0)+16384}\nv_add_u32 {t0}, s7, {t0}')
        A(f'v_lshrrev_b32 {f}, 3, {t}\nv_and_b32 {t1}, 1, {g}\nv_lshl_or_b32 {f}, {t1}, 1, {f}\nv_lshrrev_b32 {f}, s6, {f}')
        for q in range(4): A(f'v_xor_b32 {t1}, {q}, {f}\nv_and_b32 {t1}, s5, {t1}\nv_lshl_add_u32 {ca[q]}, {t1}, 5, {t0}')
        A(f's_lshl_b32 s5, 4, s4')
        for r in range(4): A(f'v_mov_b32 {ones[r]}, 0x3f803f80')
        A(f'v_mov_b32 {vt}, {L_TAG}\nv_mov_b32 {ff}, 0xff')
        A(f's_lshl_b32 {sE[1]}, {sJJ}, 14\ns_lshl_b32 {sT0}, {sWQ}, 8\ns_add_u32 {sE[1]}, {sE[1]}, {sT0}\ns_add_u32 {sE[1]}, {sE[1]}, {CSP}')
        A(f's_lshl_b32 {sT0}, {sI}, 10\ns_add_u32 {sE[2]}, {sE[1]}, {sT0}')
        A(f's_lshl_b32 {sE[0]}, {sI}, 2\ns_add_u32 {sE[0]}, {sE[0]}, {sWQ}\ns_lshl_b32 {sE[0]}, {sE[0]}, 9\ns_add_u32 {sE[0]}, {sE[0]}, {STAT}')
        self.issue(1)
        stamp(A, 1)
        C.wait(self.stok[0]); stampb(A, 1); A('s_barrier')
        stamp(A, 2)
        gq = [ACCL[16+4*i:20+4*i] for i in range(4)]; sg = ACCL[32:36]; ga, sa = T[4], T[5]; tm = ACCL[40:48]
        ldg = [f'buffer_load_dwordx4 {sg}, {sa}, {sWS}, {sE[0]} offen sc1']
        ldg += [f'buffer_load_dwordx4 {gq[i]}, {ga}, {sWS}, {[sE[1], sE[3], sE[4], sE[5]][i]} offen sc1' for i in range(4)]
        nm = OPT['nmF'] if F else OPT['nmA']
        B.free = [TS]
        tl = [int(c) for c in f'{OPT["tl"+self.typ]:09d}']
        tc = [0]
        def touch(n):
            for _ in range(n):
                i = tc[0]
                if i >= 18: return
                tc[0] += 1
                r = i if i < 14 else i - 14
                if r % 4 == 0 or _ == 0:
                    A(f's_lshr_b32 {sT0}, s2, 3\ns_lshl2_add_u32 {sT0}, {sT0}, {sWQ}\ns_mul_i32 {sT0}, {sT0}, {14336 if i < 14 else 4096}\ns_add_u32 {sT0}, {sT0}, {r//4*4096}\ns_mov_b32 m0, {JUNK}')
                C.vm(f'buffer_load_dwordx4 {v_l16}, {sW2 if i < 14 else sWO}, {sT0} offen offset:{(r % 4)*1024} lds')
        for k in range(9):
            if k == 3: stampc(A, 1)
            if k == 4: stampc(A, 8)
            if k == 0:
                A(f'ds_read_b32 {vt}, {vt}')
                for q in range(4): A(f'ds_read_b64_tr_b16 {wfr[4*q:4*q+2]}, {ca[q]}')
                for q in range(4): A(f'v_add_u32 {ca[q]}, s5, {ca[q]}')
                for q in range(4): A(f'ds_read_b64_tr_b16 {wfr[4*q+2:4*q+4]}, {ca[q]}')
            if k == 0: self.issue(2, hi=OPT['sp0'])
            if k == 1: self.issue(2, lo=OPT['sp0'])
            if 0 < k < 6: self.issue(k + 2)
            if k == 6:
                for i in range(4):
                    A(f's_add_u32 {sT0}, {sWQ}, {i}\ns_and_b32 {sT0}, {sT0}, 3\ns_lshl_b32 {sT0}, {sT0}, 10\nv_add_u32 {va[i]}, {sT0}, {v_l16}')
            if k == 3: stampc(A, 2)
            if k == 0:
                A(f's_waitcnt lgkmcnt(0)\nv_readfirstlane_b32 {sTag}, {vt}')
                A('s_setprio 3')
                for q in range(4): A(f'v_mfma_f32_16x16x32_bf16 {cs[4*q:4*q+4]}, {ones}, {wfr[4*q:4*q+4]}, 0')
                tag_consts(A)
                A(f'v_lshrrev_b32 {t0}, 4, {l}\nv_lshl_add_u32 {t0}, {t0}, 26, {v_l16}')
                for q in range(4): A(f'v_bfi_b32 {cs[q]}, {ff}, {sTB[q]}, {cs[4*q]}')
                A(f's_setprio {OPT["lprio"]}')
                C.vm(f'buffer_store_dwordx4 {cs[0:4]}, {t0}, {sWS}, {sE[2]} offen sc1')
                A(f'v_and_b32 {ga}, 15, {l}\nv_lshlrev_b32 {ga}, 4, {ga}\nv_lshl_add_u32 {ga}, {g}, 10, {ga}\nv_and_b32 {sa}, 0x1f0, {v_l16}')
                A(f's_add_u32 {sE[3]}, {sE[1]}, 4096\ns_add_u32 {sE[4]}, {sE[1]}, 8192\ns_add_u32 {sE[5]}, {sE[1]}, 12288')
            if k == OPT['gat']:
                for s in ldg: tkg = C.vm(s)
            touch(tl[k])
            if 6 - nm <= k < 6: B.step()
            if k == 6:
                B.free += [X0, X1]
                for _ in range(OPT['n6'+self.typ]): B.step()
            if k == 7:
                B.free += [Y0, Y1]
                for _ in range(OPT['n7'+self.typ]): B.step()
            if k == OPT['chk']:
                C.wait(tkg)
                def chk():
                    for i in range(4): quad_diff(A, gq[i], tm[i], tm[4+i])
                    A(f'v_bitop3_b32 {tm[4]}, {sg[2]}, {sg[3]}, {sTag} bitop3:0x7e')
                    A(f'v_or3_b32 {tm[0]}, {tm[0]}, {tm[1]}, {tm[2]}\nv_or3_b32 {tm[0]}, {tm[0]}, {tm[3]}, {tm[4]}\nv_cmp_ne_u32 vcc, 0, {tm[0]}\ns_and_b64 s[4:5], vcc, exec')
                poll(A, '\n'.join(ldg), chk, first_loaded=True, sleep=OPT['slp'])
                L = []
                for i in range(4):
                    for r in range(4): L.append(f'v_and_b32 {gq[i][r]}, 0xffffff00, {gq[i][r]}')
                x = gq[0]
                for r in range(4): L += [f'v_add_f32 {x[r]}, {x[r]}, {gq[1][r]}', f'v_add_f32 {gq[2][r]}, {gq[2][r]}, {gq[3][r]}', f'v_add_f32 {x[r]}, {x[r]}, {gq[2][r]}']
                L += [f'v_permlane32_swap_b32 {x[0]}, {x[2]}', f'v_permlane32_swap_b32 {x[1]}, {x[3]}', f'v_add_f32 {x[0]}, {x[0]}, {x[2]}', f'v_add_f32 {x[1]}, {x[1]}, {x[3]}',
                      f'v_permlane16_swap_b32 {x[0]}, {x[1]}', f'v_add_f32 {x[0]}, {x[0]}, {x[1]}']
                L += [f's_lshl_b32 {sT0}, {sWQ}, 8', f's_add_u32 {sT0}, {sT0}, {L_CS}', f'v_lshl_add_u32 {ga}, {l}, 2, {sT0}', f'ds_write_b32 {ga}, {x[0]}']
                L += [f's_lshl_b32 {sT1}, {sWQ}, 7', f's_add_u32 {sT1}, {sT1}, {L_NM}', f'v_lshrrev_b32 {sa}, 2, {sa}', f'v_add_u32 {sa}, {sT1}, {sa}',
                      f'v_sub_f32 {sg[0]}, 0, {sg[0]}', f'v_mul_f32 {sg[2]}, {f2u(-LOG2E if F else LOG2E):#x}, {sg[1]}',
                      f'ds_write_b32 {sa}, {sg[0]}', f'ds_write_b32 {sa}, {sg[2]} offset:512']
                if not F: L.append(f'ds_write_b32 {sa}, {sg[1]} offset:1024')
                emit_sched(A, L)
            if k < 8:
                if k < 7: C.wait(self.stok[k+1], 'lgkmcnt(0)')
                else: A('s_waitcnt lgkmcnt(0)')
                G.done = G.n
                if k == 3: stampc(A, 3)
                stampb(A, 2 + k)
                A('s_barrier')
                if k == 3: stampc(A, 4)
        stamp(A, 5)
        if OPT['dbg'] & (1 if F else 2):
            A(f's_mov_b32 {sW2[2]}, 0\ns_mov_b32 {sWO[2]}, 0')
        if OPT['dbg'] & 4 and F:
            A('s_sleep 60')
        def wo(ks):
            for k in ks:
                A(f's_xor_b32 {sT1}, {sF[2]}, {k}\ns_lshl_b32 {sF[3]}, {sT1}, 12\ns_lshl2_add_u32 {sF[3]}, {sLb2}, {sF[3]}')
                A(f's_lshl_b32 {sT0}, {sT1}, 15\ns_add_u32 {sT0}, {sT0}, {sF[0]}\ns_add_u32 {sT1}, {sT0}, 16384')
                for i in range(4):
                    A(f's_add_u32 m0, {sF[3]}, {WOB + 1024*i}')
                    C.vm(f'buffer_load_dwordx4 {(vb0, vb1)[i >> 1]}, {sWO}, {(sT0, sT1)[i & 1]} offen lds')
        A(f's_and_b32 {sF[2]}, {sI2}, 2')
        wob = OPT['wob'] if F else OPT['wobA']
        stampe(A, 1)
        while B.next < wob and B.step():
            if B.next % 2 == 1 and B.next > 2: stampe(A, 2 + (B.next-3)//2)
        wo([0, 1])
        stampe(A, 8)
        while B.step(): pass
        wo([2, 3])
        stampe(A, 9)
        assert not B.fly
        stamp(A, 6)
        return B

def p2_L(A, B0):
    l = lane; C = Ctx(A); G = LG(A)
    B = BP(A, C, G); B.slot = dict(B0.slot)
    stamp(A, 7); stampe(A, 10)
    spoll(A, sF[1], 4, OPT['slph'])
    stamp(A, 9)
    tok = {}
    def a_off():
        A(f's_lshl_b32 {sE[1]}, {sCurA}, 12\ns_add_u32 {sE[1]}, {sE[1]}, {sAb}\ns_add_u32 {sCurA}, {sCurA}, 1\ns_cmp_eq_u32 {sCurA}, 14\ns_cselect_b32 {sCurA}, 0, {sCurA}')
    def ld_a(s, tt):
        tok[(s, tt)] = C.vm(f'buffer_load_dwordx4 {RS[8 + s % 3][4*tt:4*tt+4]}, {va[tt]}, {sWS}, {sE[1]} offen sc1')
    for s in range(3):
        a_off()
        for tt in range(4): ld_a(s, tt)
    C.wait(0)
    A(f's_mov_b64 exec, 1\nds_add_u32 {pm}, {p1} offset:4\ns_mov_b64 exec, -1')
    G.all()
    tokB = {k: 0 for k in range(8)}
    Q = []
    for s in range(14):
        Bk = RS[s % 8]; Ak = RS[8 + s % 3]
        if s + 3 < 14: a_off()
        G.need(tokB[s], 0)
        for tt in range(4):
            C.wait(tok[(s, tt)])
            for q in range(4):
                ac = ACCL[16*tt+4*q:16*tt+4*q+4]
                A(f'v_mfma_f32_16x16x32_bf16 {ac}, {Bk[4*q:4*q+4]}, {Ak[4*tt:4*tt+4]}, {ac if s else 0}')
                if Q and q < 3:
                    x = Q.pop(0)
                    if x.startswith('ds_'): tokB[s + 7] = G.ds(x)
                    else: A(x)
            if s + 3 < 14: ld_a(s + 3, tt)
        assert not Q
        if s == 2:
            G.need(tokB[8]); B.dma(13, B.slot[8])
        if s + 8 < 14:
            if s + 8 == 13: C.wait(B.tok[13])
            Q = B.trl(s + 8)
    stamp(A, 10)
    wa = va[0]; ra = va[1:4]; t, a, vm_ = vb[0:3]
    A(f'v_mov_b32 {vm_}, {L_TAG}')
    A(f's_add_u32 {sT0}, {sLb2}, {Y0}\nv_add_u32 {wa}, {sT0}, {v_l16}')
    for sg in range(1, 4):
        A(f's_sub_u32 {sT0}, {sWQ}, {sg}\ns_and_b32 {sT0}, {sT0}, 3\ns_lshl_b32 {sT0}, {sT0}, 12\ns_add_u32 {sT0}, {sT0}, {Y0 + 16384*(sg-1)}\nv_add_u32 {ra[sg-1]}, {sT0}, {v_l16}')
    for sg in range(1, 4):
        for u in range(4): A(f'ds_write_b128 {wa}, {ACCL[16*sg+4*u:16*sg+4*u+4]} offset:{16384*(sg-1) + 1024*u}')
    c = RS[3]
    A(f'v_mov_b32 {c[0]}, {f2u(-LOG2E):#x}\nv_mov_b32 {c[1]}, {c[0]}\nv_mov_b32 {c[2]}, 1.0\nv_mov_b32 {c[3]}, 1.0\nv_add_u32 {a}, {sLb2}, {v_l16}')
    lds_inc(A, vm_, 8, t)
    lds_spin(A, vm_, 8, 4, t)
    for u in range(4):
        for sg in range(3): A(f'ds_read_b128 {RS[sg][4*u:4*u+4]}, {ra[sg]} offset:{1024*u}')
    P = ACCL[0:16]; e = ACCL[16:32]
    for u in range(4):
        A(f's_waitcnt lgkmcnt({9 - 3*u})')
        for i in (2*u, 2*u+1):
            A(f'v_pk_add_f32 {P[2*i:2*i+2]}, {P[2*i:2*i+2]}, {RS[0][2*i:2*i+2]}\nv_pk_add_f32 {RS[1][2*i:2*i+2]}, {RS[1][2*i:2*i+2]}, {RS[2][2*i:2*i+2]}')
        for i in (2*u, 2*u+1): A(f'v_pk_add_f32 {P[2*i:2*i+2]}, {P[2*i:2*i+2]}, {RS[1][2*i:2*i+2]}')
    L = []
    for u in range(4):
        for i in (2*u, 2*u+1): L.append(f'v_pk_mul_f32 {e[2*i:2*i+2]}, {P[2*i:2*i+2]}, {c[0:2]}')
        for i in range(4*u, 4*u+4): L.append(f'v_exp_f32 {e[i]}, {e[i]}')
        for i in (2*u, 2*u+1): L.append(f'v_pk_add_f32 {e[2*i:2*i+2]}, {e[2*i:2*i+2]}, {c[2:4]}')
        for i in range(4*u, 4*u+4): L.append(f'v_rcp_f32 {e[i]}, {e[i]}')
        for i in (2*u, 2*u+1): L.append(f'v_pk_mul_f32 {e[2*i:2*i+2]}, {e[2*i:2*i+2]}, {P[2*i:2*i+2]}')
        L.append(f'ds_write_b128 {a}, {e[4*u:4*u+4]} offset:{X0 + 1024*u}')
    emit_sched(A, L)
    A('s_waitcnt lgkmcnt(0)')
    stamp(A, 8)
    A('s_barrier')

def kernel(A):
    K = NAME + '_kernel'
    l = lane
    A(f'.globl {K}\n.p2align 8\n.type {K},@function\n{K}:')
    A('s_cmp_ge_u32 s2, 256\ns_cbranch_scc1 K_done')
    A(f's_load_dwordx2 {sX[0:2]}, s[0:1], 0')
    A(f's_bitcmp1_b32 s2, 6\ns_cselect_b32 s7, 40, 8')
    A(f's_load_dwordx2 {sW[0:2]}, s[0:1], s7')
    A(f's_load_dwordx2 {sWS[0:2]}, s[0:1], 72')
    A(f's_mov_b32 {sW[2]}, {SZ_QKV}\ns_cmov_b32 {sW[2]}, {SZ_W1}\ns_mov_b32 {sW[3]}, 0x20000')
    A(f's_movk_i32 {sLrow}, 3072\ns_cmovk_i32 {sLrow}, 3584\ns_movk_i32 {sE[2]}, 1024\ns_cmovk_i32 {sE[2]}, 128\ns_cselect_b32 s3, 2, 0')
    if OPT['stamp']:
        for i in range(NS): A(f's_mov_b64 s[{72+2*i}:{73+2*i}], 0')
        A(f's_memrealtime s[72:73]' if OPT['stamp'] < 3 else 's_memtime s[72:73]')
    A(f'v_lshrrev_b32 v2, 6, v0\nv_and_b32 v1, 63, v0\nv_readfirstlane_b32 {sWV}, v2')
    if OPT['touch'] & 1:
        A(f's_getpc_b64 s[4:5]\nL_pc:\ns_sub_u32 s4, s4, L_pc-{K}\ns_subb_u32 s5, s5, 0')
        A(f's_lshr_b32 s6, s2, 3\ns_lshl_b32 s6, s6, 11\nv_lshlrev_b32 v2, 2, v0\nv_add_u32 v2, s6, v2\nv_min_u32 v2, K_done-{K}, v2')
        A(f'global_load_dword v0, v2, s[4:5]')
    A(f's_mov_b32 {sX[2]}, {SZ_X}\ns_mov_b32 {sX[3]}, 0x20000\ns_mov_b32 {sWS[2]}, {SZ_WS}\ns_mov_b32 {sWS[3]}, 0x20000')
    srd(A, sPHI, 16, SZ_PHI); srd(A, sOUT, 56, SZ_OUT); srd(A, sW2, 48, SZ_W2); srd(A, sWO, 24, SZ_WO)
    A(f's_and_b32 s4, s2, 7\ns_lshr_b32 s5, s2, 3')
    A(f's_lshr_b32 s7, s4, 1\ns_lshl_b32 s7, s7, 2\ns_lshr_b32 s6, s5, 3\ns_add_u32 {sJJ}, s7, s6')
    A(f's_lshl_b32 s6, s6, 1\ns_add_u32 {sRot}, s6, s5\ns_and_b32 {sRot}, {sRot}, 7')
    A(f's_and_b32 s6, s4, 1\ns_lshl_b32 s6, s6, 3\ns_and_b32 s7, s5, 7\ns_add_u32 {sI}, s6, s7')
    A(f's_lshr_b32 {sJ}, {sJJ}, 1\ns_and_b32 {sWQ}, {sWV}, 3')
    t0, t1, t2 = R('v',13,1), R('v',14,1), R('v',15,1)
    A(f's_and_b32 {sT0}, {sWV}, 1\ns_lshl_b32 {sT1}, {sT0}, 2')
    A(f'v_lshrrev_b32 {t0}, 3, {l}\nv_and_b32 {t1}, 7, {l}\nv_lshlrev_b32 {v_l16}, 4, {l}')
    A(f'v_lshrrev_b32 {t2}, 1, {t0}\nv_or_b32 {t2}, {sT1}, {t2}\nv_xor_b32 {t2}, {t2}, {t1}\nv_lshlrev_b32 {t2}, 4, {t2}')
    A(f'v_lshl_add_u32 {vx0}, {t0}, 10, {t2}\nv_add_u32 {vx1}, 0x10000, {vx0}')
    A(f'v_and_b32 {t2}, 2, {t0}\nv_or_b32 {t2}, {sT1}, {t2}\nv_xor_b32 {t2}, {t2}, {t1}\nv_lshlrev_b32 {t2}, 4, {t2}')
    A(f'v_mad_u32_u24 {vw}, {t0}, {sLrow}, {t2}')
    A(f'v_and_b32 v9, 0x200, {v_l16}\nv_add_u32 v9, v9, {v_l16}')
    A(f's_lshl_b32 {sXb}, {sI}, 17\ns_lshl_b32 {sT0}, {sJJ}, 13\ns_add_u32 {sE[0]}, {sXb}, {sT0}\ns_lshl_b32 {sT0}, {sWV}, 11\ns_add_u32 {sE[0]}, {sE[0]}, {sT0}')
    A(f's_lshl_b32 {sT0}, {sWV}, 13\ns_add_u32 {sXb}, {sXb}, {sT0}')
    A(f's_mul_i32 {sWb}, {sJ}, 448\ns_and_b32 {sT0}, {sJ}, 1\ns_lshl_b32 {sT0}, {sT0}, 6\ns_add_u32 {sWb}, {sWb}, {sT0}\ns_lshl_b32 {sT0}, {sJ}, 7\ns_cmp_eq_u32 s3, 0\ns_cmov_b32 {sWb}, {sT0}')
    A(f's_lshl_b32 {sT0}, {sWV}, 3\ns_mul_i32 {sT0}, {sT0}, {sLrow}\ns_add_u32 {sWb}, {sWb}, {sT0}')
    A(f's_lshl_b32 {sLb}, {sWV}, 10')
    A(f's_lshl_b32 {sXo}, {sRot}, 7\ns_add_u32 {sXo}, {sXo}, {sXb}\ns_lshl_b32 {sT0}, {sRot}, 6\ns_mul_i32 {sT0}, {sT0}, {sLrow}\ns_add_u32 {sWo}, {sT0}, {sWb}')
    A(f's_add_u32 {sE[3]}, {sWo}, {sE[2]}\ns_add_u32 {sE[2]}, {sE[3]}, {sE[2]}')
    b0 = phys(0)
    A(f's_add_u32 m0, {sLb}, {b0}')
    A(f's_lshr_b32 s4, {sWV}, 2\ns_add_u32 s3, s3, s4\ns_cmp_lg_u32 s4, 0')
    A('s_waitcnt lgkmcnt(0)\ns_cbranch_scc1 K_norow')
    A(f's_load_dword {sTag}, {sWS[0:2]}, {EPOCH}')
    A(f'buffer_load_dwordx4 {xrow[0:4]}, v9, {sX}, {sE[0]} offen\nbuffer_load_dwordx4 {xrow[4:8]}, v9, {sX}, {sE[0]} offen offset:512')
    A('K_norow:')
    A(f'buffer_load_dwordx4 {vx0}, {sX}, {sXo} offen lds')
    A(f's_add_u32 m0, {sLb}, {b0+16384}\nbuffer_load_dwordx4 {vw}, {sW}, {sWo} offen lds')
    A(f's_add_u32 m0, {sLb}, {b0+8192}\nbuffer_load_dwordx4 {vx1}, {sX}, {sXo} offen lds')
    A(f's_add_u32 m0, {sLb}, {b0+24576}\nbuffer_load_dwordx4 {vw}, {sW}, {sE[3]} offen lds')
    A(f's_add_u32 m0, {sLb}, {b0+32768}\nbuffer_load_dwordx4 {vw}, {sW}, {sE[2]} offen lds')
    A('s_cmp_eq_u32 s3, 1\ns_cbranch_scc1 K_LA\ns_cmp_eq_u32 s3, 0\ns_cbranch_scc1 K_CA\ns_cmp_eq_u32 s3, 2\ns_cbranch_scc1 K_CF')
    Bs = []
    for typ in 'FA':
        A(f'K_L{typ}:')
        Bs.append(LW(A, typ).run())
        p2_L(A, Bs[-1]); A('s_branch K_end')
    A('K_CF:')
    c = CW(A, 'F'); c.prologue(); c.main(); c.epi_F()
    A('s_branch K_C2')
    A('K_CA:')
    c = CW(A, 'A'); c.prologue(); c.main(); c.epi_A()
    A('K_C2:')
    p2_C(A)
    A('K_end:')
    stamp_out(A)
    A('K_done:\ns_endpgm')

def build():
    A = Asm(); kernel(A)
    body = fix_hazards(A.L, verbose=True)
    K = NAME + '_kernel'
    hdr = ['; @launch grid=(256,1,1) block=(512,1,1) lds=163840', '.amdgcn_target "amdgcn-amd-amdhsa--gfx950"', '.text']
    tail = ['.section .rodata,"a"', '.p2align 6', f'''.amdhsa_kernel {K}
  .amdhsa_next_free_vgpr 256
  .amdhsa_next_free_sgpr 102
  .amdhsa_accum_offset 256
  .amdhsa_group_segment_fixed_size 0
  .amdhsa_kernarg_size 80
  .amdhsa_user_sgpr_count 2
  .amdhsa_user_sgpr_kernarg_segment_ptr 1
  .amdhsa_system_sgpr_workgroup_id_x 1
.end_amdhsa_kernel''']
    return '\n'.join(hdr + body + tail) + '\n'
if __name__ == '__main__':
    open(sys.argv[1], 'w').write(build())
```

```python
import re
TRANS = ('v_exp_f32','v_log_f32','v_rcp_f32','v_rsq_f32','v_sqrt_f32','v_sin_f32','v_cos_f32','v_rcp_iflag_f32')
def regs_of(tok):
    tok = tok.strip()
    tok = tok.lstrip('-')
    if tok.startswith('abs(') or tok.startswith('|'):
        tok = tok.replace('abs(','').replace(')','').replace('|','')
    m = re.fullmatch(r'([vsa])(\d+)', tok)
    if m: return {(m.group(1), int(m.group(2)))}
    m = re.fullmatch(r'([vsa])\[(\d+):(\d+)\]', tok)
    if m: return {(m.group(1), i) for i in range(int(m.group(2)), int(m.group(3))+1)}
    if tok in ('vcc','vcc_lo','vcc_hi'): return {('s','vcc')}
    if tok in ('exec','exec_lo','exec_hi'): return {('s','exec')}
    if tok == 'm0': return {('s','m0')}
    return set()
class Ins:
    def __init__(self, text):
        self.text = text
        t = text.split(';')[0].strip()
        self.label = t.endswith(':')
        self.dir = t.startswith('.')
        self.op = ''
        self.dst = set(); self.src = set(); self.srcC = set(); self.srcAB = set(); self.data=set()
        if self.label or self.dir or not t: return
        parts = t.split(None, 1)
        op = parts[0]; self.op = re.sub(r'_(e32|e64|dpp|sdwa)$','',op); self.fullop = op
        rest = parts[1] if len(parts) > 1 else ''
        ops = [o.strip() for o in re.split(r',(?![^\[]*\])', rest)]
        if ops:
            last = ops[-1].split()
            self.mods = ' '.join(last[1:]) if last else ''
            ops[-1] = last[0] if last else ''
        self.ops = ops
        op = self.op
        self.mfma = op.startswith('v_mfma') or op.startswith('v_smfmac')
        self.valu = op.startswith('v_') and not self.mfma
        self.vmem = op.startswith('buffer_') or op.startswith('global_')
        self.ds = op.startswith('ds_')
        self.salu = op.startswith('s_')
        self.trans = op in TRANS
        self.dpp = '_dpp' in self.fullop or 'quad_perm' in self.mods or 'row_' in self.mods
        self.lds_dma = self.vmem and (' lds' in (' '+self.mods) or 'load_lds' in op)
        R = [regs_of(o) for o in ops]
        if self.mfma:
            self.dst = R[0]; self.srcAB = R[1] | R[2]; self.srcC = R[3]; self.src = self.srcAB | self.srcC
            self.passes = 8 if '32x32' in op else 4
        elif self.valu:
            if op.startswith('v_cmp'):
                self.dst = R[0]; self.src = set().union(*R[1:])
                if op.startswith('v_cmpx'): self.dst |= {('s','exec')}
            elif 'permlane' in op and 'swap' in op:
                self.dst = R[0] | R[1]; self.src = R[0] | R[1]
            elif op in ('v_add_co_u32','v_sub_co_u32','v_addc_co_u32','v_subb_co_u32'):
                self.dst = R[0] | R[1]; self.src = set().union(*R[2:])
            else:
                self.dst = R[0]; self.src = set().union(*R[1:]) if len(R) > 1 else set()
                if op in ('v_fmac_f32','v_dot2c_f32_bf16','v_pk_fmac_f16','v_writelane_b32') or self.dpp: self.src |= R[0]
        elif self.vmem:
            if 'store' in op or ('atomic' in op):
                if op.startswith('buffer_'):
                    self.data = R[0]; self.src = set().union(*R)
                    if 'atomic' in op and 'sc0' in self.mods: self.dst = R[0]
                else:
                    self.src = set().union(*R); self.data = R[1] if 'store' in op else set()
                    if 'atomic' in op and 'sc0' in self.mods: self.dst = R[0]
            elif self.lds_dma or op in ('buffer_wbl2','buffer_inv'):
                self.src = set().union(*R) if R else set()
                if self.lds_dma: self.src |= {('s','m0')}
            else:
                self.dst = R[0]; self.src = set().union(*R[1:])
                if 'd16' in op: self.src |= R[0]
        elif self.ds:
            if op.startswith('ds_write') or op in ('ds_add_f32','ds_add_u32','ds_max_f32'):
                self.src = set().union(*R)
            else:
                self.dst = R[0]; self.src = set().union(*R[1:])
        elif self.salu:
            if op.startswith('s_cmp') or op.startswith('s_cbranch') or op in ('s_branch','s_barrier','s_nop','s_waitcnt','s_endpgm','s_setprio','s_sleep') or op.startswith('s_bitcmp'):
                self.src = set().union(*R) if R else set()
            else:
                self.dst = R[0]; self.src = set().union(*R[1:]) if len(R) > 1 else set()
                if 'saveexec' in op: self.dst |= {('s','exec')}
    def states(self):
        if self.label or self.dir or not self.op: return 0
        if self.op == 's_nop': return int(self.ops[0], 0) + 1
        return 1
def vonly(s): return {r for r in s if r[0] in 'va'}
def sonly(s): return {r for r in s if r[0] == 's'}
def need(p, c):
    n = 0
    if p.mfma:
        P = p.passes
        if c.mfma:
            if c.srcC & p.dst:
                if not (c.srcC == p.dst and c.passes == P): n = max(n, P + 2)
            if c.srcAB & p.dst: n = max(n, P + 4)
            if (c.dst & p.dst) and not (c.srcC == p.dst): n = max(n, P + 4)
        elif c.valu or c.vmem or c.ds:
            if (c.src | c.dst) & p.dst: n = max(n, P + 4)
            if c.valu and (c.dst & p.srcC): n = max(n, P - 1)
    if p.valu:
        pv = vonly(p.dst); ps = sonly(p.dst)
        if c.mfma and (c.src & pv): n = max(n, 2)
        if c.mfma and ('s','exec') in ps: n = max(n, 4)
        if c.valu:
            if p.trans and not c.trans and (c.src & pv): n = max(n, 1)
            if p.trans and c.trans and (c.src & pv): n = max(n, 1)
            if c.dpp and (c.src & pv): n = max(n, 2)
            if c.dpp and ('s','exec') in ps: n = max(n, 5)
            if 'permlane' in c.op and (c.src & pv): n = max(n, 2)
            if c.op in ('v_readlane_b32','v_readfirstlane_b32') and (c.src & pv): n = max(n, 1)
            if c.src & ps:
                n = max(n, 4 if c.op in ('v_readlane_b32','v_writelane_b32') else 2)
            if c.op == 'v_cndmask_b32' and ('s','vcc') in ps: n = max(n, 2)
            if ('s','exec') in ps and (c.op in ('v_readlane_b32','v_readfirstlane_b32','v_writelane_b32') or 'permlane' in c.op): n = max(n, 4)
            if p.op.startswith('v_dot2') and (c.src | c.dst) & pv:
                if not (c.op == p.op): n = max(n, 3)
                else: n = max(n, 0)
            if ('sdwa' in p.fullop or 'op_sel' in p.mods) and not p.op.startswith('v_pk_') and (c.src & pv): n = max(n, 1)
        if c.vmem and (c.src & ps): n = max(n, 5)
        if p.trans and (c.vmem or c.ds) and (c.src & pv): n = max(n, 1)
        if c.salu and (c.src & ps): n = max(n, 1)
    if p.salu and ('s','m0') in p.dst and c.vmem and c.lds_dma: n = max(n, 1)
    if p.vmem and p.data and len(p.data) >= 3 and (c.dst & p.data): n = max(n, 2)
    if p.ds and p.op.startswith('ds_write') and False: pass
    return n
def fix_hazards(lines, verbose=False):
    out = []
    total = 0
    for ln in lines:
        c = Ins(ln)
        if c.op and c.op != 's_nop':
            d = 0; req = 0
            for p in reversed(out):
                if d >= 20: break
                if p.op:
                    if p.op in ('s_branch','s_endpgm','s_setpc_b64'): break
                    k = need(p, c) - d
                    if k > req: req = k
                d += p.states()
            if req > 0:
                total += req
                while req > 0:
                    k = min(req, 16)
                    out.append(Ins(f's_nop {k-1}')); req -= k
        out.append(c)
    if verbose: print('inserted wait states:', total)
    return [i.text for i in out]

class Asm:
    def __init__(self):
        self.L = []
        self.uid = 0
    def __call__(self, s):
        for ln in s.split('\n'):
            ln = ln.strip()
            if ln: self.L.append(ln)
    def lab(self, p='L'):
        self.uid += 1
        return f'{p}_{self.uid}'
class Pool:
    def __init__(self, kind, lo, hi):
        self.kind = kind; self.free = set(range(lo, hi)); self.hi_water = lo
    def alloc(self, n=1, align=None):
        if align is None: align = 1 if n == 1 else (2 if self.kind == 'v' else (2 if n == 2 else 4))
        for b in sorted(self.free):
            if b % align: continue
            if all((b + i) in self.free for i in range(n)):
                for i in range(n): self.free.discard(b + i)
                self.hi_water = max(self.hi_water, b + n)
                return R(self.kind, b, n)
        raise RuntimeError(f'out of {self.kind} regs for {n}')
    def at(self, b, n=1):
        for i in range(n):
            assert (b + i) in self.free, f'{self.kind}{b+i} busy'
            self.free.discard(b + i)
        self.hi_water = max(self.hi_water, b + n)
        return R(self.kind, b, n)
    def release(self, *rs):
        for r in rs:
            for i in range(r.n):
                assert (r.b + i) not in self.free
                self.free.add(r.b + i)
class R:
    def __init__(self, k, b, n): self.k = k; self.b = b; self.n = n
    def __str__(self): return f'{self.k}{self.b}' if self.n == 1 else f'{self.k}[{self.b}:{self.b+self.n-1}]'
    __repr__ = __str__
    def __format__(self, spec): return str(self)
    def __getitem__(self, i):
        if isinstance(i, slice):
            a = i.start or 0; e = i.stop if i.stop is not None else self.n
            assert 0 <= a < e <= self.n, (a, e, self.n)
            return R(self.k, self.b + a, e - a)
        assert 0 <= i < self.n, (i, self.n)
        return R(self.k, self.b + i, 1)
    def sub(self, a, n): return self[a:a+n]

def icost(c):
    if c.mfma: return 8
    if c.valu:
        if c.trans or 'permlane' in c.op: return 8
        if c.op == 'v_cndmask_b32': return 8
        return 4
    return 4
def sched(lines, window=400, vm_gap=0):
    I = []
    for l in lines:
        for x in l.split('\n'):
            x = x.strip()
            if x: I.append(Ins(x))
    n = len(I)
    SCC = ('s', 'scc')
    for c in I:
        assert c.op and not c.op.startswith('s_waitcnt') and not c.op.startswith('s_cbranch') and c.op not in ('s_branch', 's_barrier'), c.text
        c.rd = set(c.src); c.wr = set(c.dst)
        if c.salu: c.rd.add(SCC); c.wr.add(SCC)
        if c.op == 'v_cndmask_b32' and len(c.ops) == 4: pass
        if c.vmem: c.rd.add(('m', 'vm')); c.wr.add(('m', 'vm'))
        if c.ds: c.rd.add(('m', 'ds')); c.wr.add(('m', 'ds'))
    preds = [[] for _ in range(n)]; succs = [[] for _ in range(n)]
    lastw = {}; readers = {}
    for j, c in enumerate(I):
        ps = set()
        for r in c.rd:
            if r in lastw: ps.add(lastw[r])
        for r in c.wr:
            if r in lastw: ps.add(lastw[r])
            ps |= readers.get(r, set())
        ps.discard(j)
        for p in ps:
            k = need(I[p], c)
            preds[j].append((p, k)); succs[p].append((j, k))
        for r in c.rd: readers.setdefault(r, set()).add(j)
        for r in c.wr: lastw[r] = j; readers[r] = set()
    pr = [0]*n
    for j in range(n-1, -1, -1):
        b = 0
        for s, k in succs[j]: b = max(b, pr[s] + 4*k)
        pr[j] = b + icost(I[j])
    done_pos = [None]*n
    left = [len(preds[j]) for j in range(n)]
    ready = [j for j in range(n) if left[j] == 0]
    out = []; pos = 0; t = 0; mf_free = 0; nops = 0; last_vm = -10**9
    while ready:
        best = None
        for j in ready:
            w = 0
            for p, k in preds[j]: w = max(w, k - (pos - done_pos[p] - 1))
            stall = 4*w
            if I[j].mfma or I[j].op.startswith('v_pk_'): stall = max(stall, mf_free - t)
            if I[j].vmem: stall = max(stall, last_vm + vm_gap - t)
            key = (stall > 0, stall if stall > 0 else 0, -pr[j] - (100000 if (I[j].vmem or I[j].ds) else 0), j)
            if best is None or key < best[0]: best = (key, j, w)
        _, j, w = best
        c = I[j]
        pos += w; t += 4*w; nops += w
        if c.op.startswith('v_pk_'): t = max(t, mf_free)
        if c.mfma:
            t = max(t, mf_free); mf_free = t + 4*c.passes
        if c.vmem: last_vm = t
        done_pos[j] = pos; pos += 1; t += icost(c)
        out.append(c.text); ready.remove(j)
        for s, k in succs[j]:
            left[s] -= 1
            if left[s] == 0: ready.append(s)
    assert len(out) == n
    return out, t, nops

import subprocess, tempfile, os
PROMO = {'v_exp_f32','v_rcp_f32','v_rsq_f32','v_mov_b32','v_add_f32','v_sub_f32','v_mul_f32','v_max_f32','v_and_b32','v_or_b32','v_xor_b32',
         'v_lshlrev_b32','v_lshrrev_b32','v_add_u32','v_min_u32','v_mul_u32_u24','v_fmac_f32','v_permlane16_swap_b32','v_permlane32_swap_b32'}
def sizes_of(lines):
    src = '.amdgcn_target "amdgcn-amd-amdhsa--gfx950"\n.text\n' + '\n'.join(lines) + '\n'
    d = tempfile.mkdtemp()
    open(d + '/a.s', 'w').write(src)
    subprocess.run(['clang', '-x', 'assembler', '-target', 'amdgcn-amd-amdhsa', '-mcpu=gfx950', '-c', d + '/a.s', '-o', d + '/a.o'], check=True)
    o = subprocess.run(['llvm-objdump', '-d', d + '/a.o'], capture_output=True, text=True, check=True).stdout
    S = []
    for l in o.split('\n'):
        m = re.search(r'// [0-9A-F]{12}: ((?:[0-9A-F]{8} ?)+)', l)
        if m: S.append(4 * len(m.group(1).split()))
    return S
def align8(lines, verbose=False):
    I = [Ins(l) for l in lines]
    idx = [k for k, c in enumerate(I) if c.op]
    S = sizes_of(lines)
    assert len(S) == len(idx), (len(S), len(idx))
    out = []; off = 0; promo = ins = 0
    pos = {k: n for n, k in enumerate(idx)}
    def run8(n):
        r = 0
        while n < len(idx) and S[n] == 8:
            if I[idx[n]].valu: r += 1
            n += 1
        return r
    for k, c in enumerate(I):
        if not c.op: out.append(c.text); continue
        n = pos[k]; t = c.text; sz = S[n]
        if sz == 4 and off % 8 == 0 and n + 1 < len(idx) and S[n+1] == 8:
            r = run8(n + 1)
            if c.op in PROMO and c.fullop == c.op and r >= 1:
                t = t.replace(c.op, c.op + '_e64', 1); sz = 8; promo += 1
            elif c.op == 's_nop' and int(c.ops[0], 0) >= 1 and r >= 1:
                out.append('s_nop 0'); t = f's_nop {int(c.ops[0], 0) - 1}'; sz = 8; promo += 1
            elif r >= 6 and c.op not in ('s_branch', 's_endpgm'):
                out.append(t); t = 's_nop 0'; sz = 8; ins += 1
            elif c.op in ('s_branch', 's_endpgm'):
                out.append(t); t = 's_nop 0'; sz = 8
        out.append(t); off += sz
    if verbose: print(f'align8: promoted {promo}, inserted {ins}')
    return out
```

```python
import sys, struct
from asmlib import *
NAME = 'recurrent_scan__linear_kernel_hedgehog__dense_activation_silu__prompt'
SZ_X, SZ_QKV, SZ_PHI, SZ_WO, SZ_W1, SZ_W2, SZ_OUT, SZ_WS = 2048*512*2, 512*1536*2, 32*16*16*2, 512*512*2, 512*1792*2, 1792*512*2, 2048*512*2, 0x1000000
EPOCH, STAT, KT, CSP, CNT, ACT, KP = 0, 0x8000, 0x10000, 0x40000, 0x80000, 0x100000, 0xB00000
OOB = 0x40000000
SB = 45056
def phys(s): return (2 - s % 3) * SB
X0, X1, WOB, Y0, Y1, TS, MISC = 0, 16384, 32768, 102400, 118784, 135168, 151552
L_NM, L_RL, L_R, L_CS, L_TAG = MISC, MISC+512, MISC+1024, MISC+1536, MISC+2560
L_SG, L_PHI = MISC+2624, MISC+4096
JUNK = MISC + 8192
LOG2E = 1.4426950408889634
def f2u(x): return struct.unpack('<I', struct.pack('<f', x))[0]
OPT = dict(stamp=0, touch=5, spin=1<<16, slp=2, hold=3, keep=8, nmA=0, nmF=0, n6A=2, n7A=2, n6F=2, n7F=2, sp0=6, wob=4, wobA=4, tlA=0, tlF=0, gat=5, chk=6, opoll=0, lprio=1, brot=0, npre=9, vmgap=64, dbg=0, hst=0, rot=4, lord=1, r2=0, j3=0, c3=4, flip=1, warm=0, qf=1, tk=2, pk=3, spm=3, stk=1, q6A=8, q7A=8, q6F=8, q7F=8, sp1=99, laA=8, laF=11, wdel=2, lag=3, wolA=0, wolF=4, wper=2, cprio=0, opk=1, depA=6, depF=8, al=1, ack1=0, ack2=0, slpa=0, slph=4, slpo=4)
for a in sys.argv[2:]:
    k, v = a.split('='); assert k in OPT, k; OPT[k] = int(v)

sX, sW, sWS, sPHI, sW2, sOUT, sWO = [R('s', 8+4*i, 4) for i in range(7)]
(sI, sJ, sWV, sWQ, sRot, sT0, sT1, sXo, sWo, sHo, sXb, sWb, sHb, sLb, sTag, sSpin,
 sI2, sJ2, sCur, sCurA, sBb, sAb, sLb2, sJJ, sLrow, sTB1, sTB2, sTB3) = [R('s', 36+i, 1) for i in range(28)]
sTB = [sTag, sTB1, sTB2, sTB3]
sM2 = R('s', 64, 2)
sE = [R('s', 66+i, 1) for i in range(6)]
NS = 12
sSel = [R('s', 96, 1), R('s', 97, 1)]; sF = [R('s', 98+i, 1) for i in range(4)]
lane = R('v', 1, 1)
v_l16 = R('v', 3, 1)
vx0, vx1, vw = R('v', 10, 1), R('v', 11, 1), R('v', 12, 1)
xrow = R('v', 240, 8)

class Ctx:
    def __init__(self, A): self.A = A; self.n = 0
    def vm(self, s):
        self.A(s); self.n += 1; return self.n
    def wait(self, tok, extra=''):
        k = min(self.n - tok, 63); assert k >= 0
        self.A(f's_waitcnt vmcnt({k}) {extra}'.strip())
class LG:
    def __init__(self, A): self.A = A; self.n = 0; self.done = 0
    def ds(self, s):
        self.A(s); self.n += 1; return self.n
    def need(self, tok, keep=None):
        if tok <= self.done: return
        k = min(self.n - tok, OPT['keep'] if keep is None else keep, 15)
        self.A(f's_waitcnt lgkmcnt({k})'); self.done = self.n - k
    def all(self):
        self.A('s_waitcnt lgkmcnt(0)'); self.done = self.n
def stamp(A, i):
    if OPT['stamp'] == 3: A(f's_memtime s[{72+2*i}:{73+2*i}]')
    elif OPT['stamp'] == 1 or (OPT['stamp'] and i == NS-1): A(f's_memrealtime s[{72+2*i}:{73+2*i}]')
def stampb(A, i):
    if OPT['stamp'] == 4: A(f's_memtime s[{72+2*i}:{73+2*i}]')
def stampe(A, i):
    if OPT['stamp'] == 5 and i < 11: A(f's_memtime s[{72+2*i}:{73+2*i}]')
def stampf(A, i):
    if OPT['stamp'] == 6 and i < 11: A(f's_memtime s[{72+2*i}:{73+2*i}]')
def stampg(A, i):
    if OPT['stamp'] == 7 and i < 11: A(f's_memtime s[{72+2*i}:{73+2*i}]')
def stampc(A, i):
    if OPT['stamp'] == 2: A(f's_memtime s[{72+2*i}:{73+2*i}]')
def stamp_out(A):
    if not OPT['stamp']: return
    A(f's_waitcnt vmcnt(0)')
    stamp(A, NS-1)
    A('s_waitcnt lgkmcnt(0)')
    A(f's_lshl_b32 s4, s2, 3\ns_add_u32 s4, s4, {sWV}\ns_lshl_b32 s4, s4, 7\ns_add_u32 s4, s4, {15*1024*1024}')
    A(f'v_lshlrev_b32 v2, 26, v1')
    for i in range(NS):
        A(f'v_mov_b32 v4, s{72+2*i}\nv_mov_b32 v5, s{73+2*i}\nbuffer_store_dwordx2 v[4:5], v2, {sWS}, s4 offen offset:{8*i}')
def srd(A, s, off, size):
    A(f's_load_dwordx2 {s[0:2]}, s[0:1], {off}\ns_mov_b32 {s[2]}, {size}\ns_mov_b32 {s[3]}, 0x20000')
def dpp_add(v, m): return f'v_add_f32_dpp {v}, {v}, {v} {m} row_mask:0xf bank_mask:0xf'
def emit_sched(A, L, name='', **kw):
    out, t, nops = sched(L, **kw)
    if name: print(f'  sched {name}: {len(out)} instrs, est {t} clk, nops {nops}')
    for x in out: A(x)
def poll(A, ld, check, first_loaded=False, sleep=1, mask_exec=False):
    l0, l1, l2 = A.lab('PL'), A.lab('PC'), A.lab('PD')
    A(f's_mov_b32 {sSpin}, {OPT["spin"]}')
    if first_loaded: A(f's_branch {l1}')
    A(f'{l0}:'); A(ld); A('s_waitcnt vmcnt(0)')
    if mask_exec: A('s_mov_b64 exec, -1')
    A(f'{l1}:')
    check()
    A(f's_cbranch_scc0 {l2}')
    if sleep: A(f's_sleep {sleep}')
    if mask_exec: A('s_mov_b64 exec, s[4:5]')
    A(f's_sub_u32 {sSpin}, {sSpin}, 1\ns_cbranch_scc0 {l0}')
    if mask_exec: A('s_mov_b64 exec, -1')
    A(f'{l2}:')
def chk_words(A, regs, tmp):
    def f():
        if len(regs) == 1: A(f'v_cmp_ne_u32 vcc, {sTag}, {regs[0]}')
        else:
            np_ = len(regs)//2
            for i in range(np_): A(f'v_bitop3_b32 {tmp[i]}, {regs[2*i]}, {regs[2*i+1]}, {sTag} bitop3:0x7e')
            i = 1
            while i < np_:
                if i + 1 < np_: A(f'v_or3_b32 {tmp[0]}, {tmp[0]}, {tmp[i]}, {tmp[i+1]}'); i += 2
                else: A(f'v_or_b32 {tmp[0]}, {tmp[0]}, {tmp[i]}'); i += 1
            A(f'v_cmp_ne_u32 vcc, 0, {tmp[0]}')
        A(f's_and_b64 s[4:5], vcc, exec')
    return f
def spoll(A, so, n, sleep):
    l0, l1 = A.lab('SP'), A.lab('SD')
    A(f's_add_u32 {sT1}, {sTag}, {n}\ns_mov_b32 {sSpin}, {OPT["spin"]}')
    A(f'{l0}:\ns_mov_b32 {sT0}, 0\ns_atomic_add {sT0}, {sWS[0:2]}, {so} glc\ns_waitcnt lgkmcnt(0)\ns_cmp_eq_u32 {sT0}, {sT1}\ns_cbranch_scc1 {l1}')
    if sleep: A(f's_sleep {sleep}')
    A(f's_sub_u32 {sSpin}, {sSpin}, 1\ns_cbranch_scc0 {l0}\n{l1}:')
def sarrive(A, *sos):
    A(f's_waitcnt vmcnt(0)')
    for so in sos: A(f's_atomic_add {sLrow}, {sWS[0:2]}, {so}')
def cnt_i2(A, d, i2, extra):
    A(f's_lshr_b32 {d}, {i2}, 1\ns_lshl_b32 {d}, {d}, 14\ns_and_b32 s4, {i2}, 1\ns_lshl_b32 s4, s4, 11\ns_add_u32 {d}, {d}, s4\ns_add_u32 {d}, {d}, {CNT + extra}')
def quad_diff(A, q, d, t):
    A(f'v_perm_b32 {d}, {q[1]}, {q[0]}, {sSel[0]}\nv_perm_b32 {t}, {q[3]}, {q[2]}, {sSel[1]}\nv_bitop3_b32 {d}, {d}, {t}, {sTag} bitop3:0x96')
def tag_consts(A):
    A(f's_lshr_b32 {sTB1}, {sTag}, 8\ns_lshr_b32 {sTB2}, {sTag}, 16\ns_lshr_b32 {sTB3}, {sTag}, 24')
    A(f's_mov_b32 {sSel[0]}, 0x0c0c0400\ns_mov_b32 {sSel[1]}, 0x04000c0c')
def tag_quad(q, ff): return [f'v_bfi_b32 {q[k]}, {ff}, {sTB[k]}, {q[k]}' for k in range(4)]
def lds_spin(A, va, off, n, vt):
    l0, l1 = A.lab('LS'), A.lab('LD')
    A(f's_mov_b32 {sSpin}, {OPT["spin"]*4}')
    A(f'{l0}:\nds_read_b32 {vt}, {va} offset:{off}\ns_waitcnt lgkmcnt(0)\nv_readfirstlane_b32 {sT0}, {vt}\ns_cmp_ge_u32 {sT0}, {n}\ns_cbranch_scc1 {l1}')
    A(f's_sleep 1\ns_sub_u32 {sSpin}, {sSpin}, 1\ns_cbranch_scc0 {l0}\n{l1}:')
def lds_inc(A, va, off, vt):
    A(f'v_mov_b32 {vt}, 1\ns_mov_b64 exec, 1\nds_add_u32 {va}, {vt} offset:{off}\ns_mov_b64 exec, -1')
def p2_ids(A):
    A(f's_and_b32 s4, s2, 7\ns_lshr_b32 s5, s2, 3')
    A(f's_lshl_b32 s4, s4, 2\ns_lshr_b32 s6, s5, 3\ns_add_u32 {sI2}, s4, s6\ns_and_b32 {sJ2}, s5, 7')
def tr_addr(A, vab, base, t0, t1):
    l = lane
    A(f'v_lshrrev_b32 {t0}, 2, {l}\nv_lshlrev_b32 {t0}, 7, {t0}\nv_and_b32 {t1}, 3, {l}\nv_lshl_add_u32 {t0}, {t1}, 3, {t0}\nv_add_u32 {t0}, {base}, {t0}')
    A(f'v_bfe_u32 {t1}, {l}, 3, 2')
    for q in range(4):
        A(f'v_xor_b32 {vab[q]}, {q}, {t1}\nv_lshl_add_u32 {vab[q]}, {vab[q]}, 5, {t0}')

class CW:
    def __init__(self, A, typ):
        self.A = A; self.typ = typ
        self.C = Ctx(A); self.G = LG(A)
        self.V = Pool('v', 4, 256); self.V.at(9, 4); self.V.at(240, 16)
    def prologue(self):
        A, V, C, l, typ = self.A, self.V, self.C, lane, self.typ
        C.n = 7; tk_row = 2; self.tk0 = 7
        F = typ == 'F'
        srd(A, sOUT, 56, SZ_OUT)
        if not F: self.aphi = V.alloc(4, 4)
        self.ax = [V.alloc(), V.alloc()]
        self.aw = [V.alloc() for _ in range(6 if F else 1)]
        t, g, t0, t1, f = [R('v', 232+i, 1) for i in range(5)]
        b0 = phys(0)
        A(f'v_and_b32 {t}, 15, {l}\nv_lshrrev_b32 {g}, 4, {l}')
        A(f'v_lshrrev_b32 {t0}, 1, {t}\nv_xor_b32 {t0}, {t0}, {g}\nv_lshlrev_b32 {t0}, 4, {t0}\nv_lshl_add_u32 {t0}, {t}, 7, {t0}')
        if F: A(f's_lshl_b32 {sT0}, {sWQ}, 12\nv_add_u32 {t0}, {sT0}, {t0}')
        A(f'v_add_u32 {self.ax[0]}, {b0}, {t0}\nv_xor_b32 {t0}, 64, {t0}\nv_add_u32 {self.ax[1]}, {b0}, {t0}')
        A(f'v_lshrrev_b32 {f}, 3, {t}\nv_and_b32 {t0}, 1, {g}\nv_lshl_or_b32 {f}, {t0}, 1, {f}')
        A(f'v_lshrrev_b32 {t0}, 2, {t}\nv_lshlrev_b32 {t0}, 7, {t0}\nv_lshl_add_u32 {t0}, {g}, 10, {t0}\nv_and_b32 {t1}, 3, {t}\nv_lshl_add_u32 {t0}, {t1}, 3, {t0}\nv_add_u32 {t0}, {b0+16384}, {t0}')
        if not F:
            A(f'v_xor_b32 {t1}, {sWQ}, {f}\nv_lshl_add_u32 {self.aw[0]}, {t1}, 5, {t0}')
        else:
            for q in range(4): A(f'v_xor_b32 {t1}, {q}, {f}\nv_lshl_add_u32 {self.aw[q]}, {t1}, 5, {t0}')
            A(f'v_lshrrev_b32 {t0}, 2, {t}\nv_lshlrev_b32 {t0}, 6, {t0}\nv_lshl_add_u32 {t0}, {g}, 9, {t0}\nv_and_b32 {t1}, 3, {t}\nv_lshl_add_u32 {t0}, {t1}, 3, {t0}\nv_add_u32 {t0}, {b0+16384}, {t0}')
            A(f'v_and_b32 {f}, 1, {g}')
            for q in range(2): A(f'v_xor_b32 {t1}, {q}, {f}\nv_lshl_add_u32 {self.aw[4+q]}, {t1}, 5, {t0}')
        A(f's_lshl_b32 {sT0}, {sI}, 4\ns_add_u32 {sT0}, {sT0}, {sJJ}\ns_lshl2_add_u32 {sT0}, {sT0}, {sWQ}\ns_lshl_b32 {sT0}, {sT0}, 8\ns_add_u32 {sT0}, {sT0}, {CNT}')
        stampg(A, 4)
        A('s_waitcnt lgkmcnt(0)')
        stampg(A, 5)
        A(f's_mul_i32 {sTag}, {sTag}, 0x9E3779B1\ns_add_u32 {sTag}, {sTag}, 0x7F4A7C15\ns_mov_b32 {sSpin}, {sTag}')
        A(f's_atomic_swap {sSpin}, {sWS[0:2]}, {sT0} glc')
        p2_ids(A)
        if not F: self.consts_A()
        tag_consts(A)
        A(f's_mov_b32 {sLrow}, 1')
        V.release(R('v', 240, 16), R('v', 9, 4))
        self.tk_row = tk_row
    def stats(self):
        A, C, l, tk_row = self.A, self.C, lane, self.tk_row
        x = R('v', 216, 16); o = R('v', 248, 4); t = R('v', 252, 1); ad = R('v', 253, 1); u = R('v', 254, 1)
        A(f's_lshl_b32 {sT0}, {sWQ}, 4\ns_add_u32 {sT0}, {sT0}, {L_SG}\nv_lshrrev_b32 {ad}, 5, {l}\nv_lshl_add_u32 {ad}, {ad}, 3, {sT0}')
        z = R('v', 232, 4)
        A(f'v_mov_b32 {u}, {L_TAG}\nv_mov_b32 {z[0]}, {sTag}\nv_mov_b32 {z[1]}, 0\nv_mov_b32 {z[2]}, 0\nv_mov_b32 {z[3]}, 0\nds_write_b128 {u}, {z}')
        stampg(A, 6)
        C.wait(tk_row)
        stampg(A, 7)
        for i in range(8): A(f'v_lshlrev_b32 {x[2*i]}, 16, {xrow[i]}\nv_and_b32 {x[2*i+1]}, 0xffff0000, {xrow[i]}')
        y = xrow
        for i in range(4): A(f'v_pk_add_f32 {y[2*i:2*i+2]}, {x[4*i:4*i+2]}, {x[4*i+2:4*i+4]}')
        A(f'v_pk_add_f32 {y[0:2]}, {y[0:2]}, {y[2:4]}\nv_pk_add_f32 {y[4:6]}, {y[4:6]}, {y[6:8]}\nv_pk_add_f32 {y[0:2]}, {y[0:2]}, {y[4:6]}\nv_add_f32 {o[0]}, {y[0]}, {y[1]}')
        def hsum(v):
            for m in ('quad_perm:[1,0,3,2]', 'quad_perm:[2,3,0,1]', 'row_half_mirror', 'row_mirror'): A(dpp_add(v, m))
            A(f'v_mov_b32 {t}, {v}\nv_permlane16_swap_b32 {v}, {t}\nv_add_f32 {v}, {v}, {t}')
        hsum(o[0])
        A(f'v_mul_f32 {o[0]}, {f2u(1/512):#x}, {o[0]}')
        for i in range(16): A(f'v_sub_f32 {x[i]}, {x[i]}, {o[0]}')
        A(f'v_pk_mul_f32 {y[0:2]}, {x[0:2]}, {x[0:2]}\nv_pk_mul_f32 {y[2:4]}, {x[2:4]}, {x[2:4]}')
        for i in range(2, 8): A(f'v_pk_fma_f32 {y[2*(i&1):2*(i&1)+2]}, {x[2*i:2*i+2]}, {x[2*i:2*i+2]}, {y[2*(i&1):2*(i&1)+2]}')
        A(f'v_pk_add_f32 {y[0:2]}, {y[0:2]}, {y[2:4]}\nv_add_f32 {o[2]}, {y[0]}, {y[1]}')
        hsum(o[2])
        A(f'v_mov_b32 {o[1]}, {f2u(1e-5):#x}\nv_fmac_f32 {o[1]}, {f2u(1/512):#x}, {o[2]}\nv_rsq_f32 {o[1]}, {o[1]}')
        stampg(A, 8)
        A(f'ds_write_b64 {ad}, {o[0:2]}')
    def consts_A(self):
        A, V, l = self.A, self.V, lane
        t0, t1, val, key = [R('v', 232+i, 1) for i in range(4)]
        self.sel16 = V.alloc(16, 4)
        self.bsel = [self.sel16[0:4], self.sel16[4:8]]; self.zsel = [self.sel16[8:12], self.sel16[12:16]]
        A(f'v_and_b32 {t1}, 1, {l}\nv_lshlrev_b32 {t1}, 4, {t1}\nv_mov_b32 {val}, 0x3f80\nv_lshlrev_b32 {val}, {t1}, {val}')
        A(f'v_bfe_u32 {key}, {l}, 1, 2\nv_bfe_u32 {t1}, {l}, 4, 1\nv_lshl_or_b32 {key}, {t1}, 2, {key}')
        A(f'v_lshrrev_b32 {t1}, 2, {l}\nv_xor_b32 {t1}, {t1}, {l}\nv_and_b32 {t1}, 8, {t1}\nv_or_b32 {key}, {key}, {t1}')
        for T in range(2):
            for rr in range(4):
                A(f'v_cmp_eq_u32 vcc, {rr + 4*T}, {key}\nv_cndmask_b32 {self.bsel[T][rr]}, 0, {val}, vcc')
        A(f'v_and_b32 {key}, 15, {l}\nv_mov_b32 {val}, 0x3f803f80')
        for m in range(2):
            A(f'v_cmp_eq_u32 vcc, {m}, {key}\nv_cndmask_b32 {self.zsel[m][0]}, 0, {val}, vcc')
            for rr in range(1, 4): A(f'v_mov_b32 {self.zsel[m][rr]}, {self.zsel[m][0]}')
    def rd_w(self, dst, u, kk):
        b, q = self.units[u]
        return [f'ds_read_b64_tr_b16 {dst[2*hf:2*hf+2]}, {self.aw[q]} offset:{b*8192 + (kk*4096 + hf*512 if b < 3 else kk*2048 + hf*256)}' for hf in range(2)]
    def rd_x(self, dst, tt, kk): return [f'ds_read_b128 {dst}, {self.ax[kk]} offset:{tt*2048}']
    def main(self):
        A, V, C, G, typ = self.A, self.V, self.C, self.G, self.typ
        F = typ == 'F'
        if F:
            self.ntt = 2; self.units = [(b, q) for b in range(3) for q in range(4)] + [(3, 4), (3, 5)]
        else:
            self.ntt = 8; self.units = [(0, 0), (1, 0), (2, 0)]
        nu = len(self.units)
        self.acc = [[V.alloc(4, 4) for u in range(nu)] for tt in range(self.ntt)]
        nr, nd = (nu, self.ntt) if F else (self.ntt, nu)
        self.Rg = [V.alloc(4, 4) for _ in range(nr)]
        self.Dg = [V.alloc(4*nd, 4) for _ in range(2)]
        rdR, rdD = (self.rd_w, self.rd_x) if F else (self.rd_x, self.rd_w)
        last_R, last_pre, fill = self.pre_epi()
        self.stats()
        stamp(A, 1); stampg(A, 9)
        C.wait(self.tk0, 'lgkmcnt(0)'); stampg(A, 10); A('s_barrier')
        stampb(A, 1)
        stamp(A, 2)
        tokR = {}; tokD = {}
        Q = []
        def issue(k):
            for _ in range(k):
                if not Q: return
                s, key = Q.pop(0); tk = G.ds(s)
                if key: (tokR if key[0] == 'R' else tokD)[key[1:]] = tk
        def kq(L, key): return [(s, key if i == len(L)-1 else None) for i, s in enumerate(L)]
        for d in range(nd): Q += kq(rdD(self.Dg[0][4*d:4*d+4], d, 0), ('D', 0, d))
        for j in range(nr): Q += kq(rdR(self.Rg[j], j, 0), ('R', 0, j))
        issue(12)
        for n in range(16):
            st, kk = n >> 1, n & 1
            pend = []
            blocked = kk == 1
            nD = []
            if n < 15:
                for d in range(nd): nD += kq(rdD(self.Dg[(n+1) & 1][4*d:4*d+4], d, kk ^ 1), ('D', n+1, d))
            else: nD = [(s, None) for s in last_pre]
            if blocked: pend += nD
            else: Q += nD
            adds = []
            if kk == 1 and st < 7:
                dlt = phys(st+1) - phys(st)
                adds = [f'v_add_u32 {r}, {dlt & 0xffffffff:#x}, {r}' for r in self.ax + self.aw]
            if n == 15: adds = list(self.pre_v)
            fl = list(fill.get(n, []))
            if n == 6: stampc(A, 1)
            if n == 8: stampc(A, 8)
            for j in range(nr):
                if blocked and j == OPT['hold']:
                    assert not Q
                    for a in adds: A(a)
                    adds = []
                    if n == 7: stampc(A, 2)
                    G.all()
                    if n == 7: stampc(A, 3)
                    A('s_barrier')
                    if n == 7: stampc(A, 4)
                    if n == 7: stamp(A, 3)
                    stampb(A, 2 + st)
                    blocked = False; Q += pend; pend = []
                for d in range(nd):
                    tt, u = (d, j) if F else (j, d)
                    G.need(max(tokR[(n, j)], tokD[(n, d)]))
                    w, x = (self.Rg[j], self.Dg[n & 1][4*d:4*d+4]) if F else (self.Dg[n & 1][4*d:4*d+4], self.Rg[j])
                    a, b = (x, w) if (not F and u == 2) else (w, x)
                    acc = self.acc[tt][u]
                    A(f'v_mfma_f32_16x16x32_bf16 {acc}, {a}, {b}, {acc if n else 0}')
                    if Q: issue(2 if len(Q) > 3 else 1)
                    elif adds:
                        A(adds.pop(0))
                        if adds: A(adds.pop(0))
                    elif fl: A(fl.pop(0))
                nw = kq(rdR(self.Rg[j], j, kk ^ 1), ('R', n+1, j)) if n < 15 else [(s, None) for s in last_R[j]]
                if blocked: pend += nw
                else: Q += nw
            for x in fl: A(x)
        issue(100)
        stampb(A, 10)
        stamp(A, 5)
        V.release(*self.ax); V.release(*self.aw)
    def pre_epi(self):
        A, V, l = self.A, self.V, lane
        if self.typ == 'F':
            at, ag = V.alloc(), V.alloc()
            A(f's_lshl_b32 {sT0}, {sWQ}, 7\ns_add_u32 {sT0}, {sT0}, {L_NM}\nv_and_b32 {at}, 15, {l}\nv_lshl_add_u32 {at}, {at}, 2, {sT0}')
            A(f'v_and_b32 {ag}, 48, {l}\nv_add_u32 {ag}, {L_CS}, {ag}')
            self.ms = [V.alloc(2) for _ in range(2)]; self.nr = [V.alloc(2) for _ in range(2)]
            pre = []
            for tt in range(2):
                pre += [f'ds_read2_b32 {self.ms[tt]}, {at} offset0:{16*tt} offset1:{16*tt}', f'ds_read2_b32 {self.nr[tt]}, {at} offset0:{128+16*tt} offset1:{128+16*tt}']
            lastR = [[f'ds_read_b128 {self.Rg[u]}, {ag} offset:{64*u}'] for u in range(14)]
            self.kL = V.alloc(2)
            A(f'v_mov_b32 {self.kL[0]}, {f2u(-LOG2E):#x}\nv_mov_b32 {self.kL[1]}, {self.kL[0]}')
            A(f's_lshl_b32 {sT0}, {sI}, 1\ns_lshr_b32 {sT1}, {sWQ}, 1\ns_add_u32 {sT0}, {sT0}, {sT1}')
            cnt_i2(A, sF[2], sT0, 1024)
            A(f's_lshr_b32 {sT1}, {sJ}, 1\ns_lshl_b32 {sT1}, {sT1}, 8\ns_add_u32 {sF[2]}, {sF[2]}, {sT1}')
            A(f's_mul_i32 {sT0}, {sT0}, 72\ns_mul_i32 {sT1}, {sJ}, 7\ns_add_u32 {sT0}, {sT0}, {sT1}\ns_lshl_b32 {sT0}, {sT0}, 12')
            A(f's_and_b32 {sT1}, {sWQ}, 1\ns_lshl_b32 {sF[0]}, {sT1}, 11\ns_add_u32 {sT0}, {sT0}, {sF[0]}\ns_add_u32 {sT0}, {sT0}, {ACT}')
            A(f's_and_b32 {sT1}, {sJ}, 1')
            A(f's_lshl_b32 {sF[0]}, {sT1}, 12\ns_add_u32 {sF[0]}, {sF[0]}, {sT0}')
            A(f's_xor_b32 {sT1}, {sT1}, 1\ns_mul_i32 {sT1}, {sT1}, {6*4096}\ns_add_u32 {sF[1]}, {sT0}, {sT1}')
            self.pre_v = []
            return lastR, pre, {}
        self.MR = [V.alloc(16, 4) for _ in range(4)]
        self.cv = V.alloc(2)
        R_ = self.Rg
        self.negm = [R_[T//2][2*(T & 1):2*(T & 1)+2] for T in range(8)]
        self.rl = [R_[4 + p//2][2*(p & 1):2*(p & 1)+2] for p in range(4)]
        self.ck, self.cq = R_[6], R_[7]
        D0 = self.Dg[0]
        a4, ag, a32, ac = D0[0], D0[1], D0[2], D0[3]
        pre_v = [f'v_and_b32 {a4}, 15, {l}', f'v_lshlrev_b32 {a4}, 2, {a4}', f'v_and_b32 {ag}, 48, {l}', f'v_and_b32 {a32}, 31, {l}',
                 f'v_add_u32 {ac}, {sF[3]}, {a4}', f'v_add_u32 {a4}, {L_NM}, {a4}', f'v_lshlrev_b32 {a32}, 2, {a32}', f'v_add_u32 {a32}, {L_RL}, {a32}',
                 f'v_add_u32 {D0[4]}, {sF[3]}, {ag}', f'v_add_u32 {ag}, {L_NM}, {ag}']
        A(f's_lshl_b32 {sF[3]}, {sWQ}, 6\ns_add_u32 {sF[3]}, {sF[3]}, {L_CS}')
        pre = [f'ds_read2_b32 {self.cv}, {ac} offset0:128 offset1:128']
        for p in range(4):
            for T in range(2):
                pre += [f'ds_read_b128 {self.MR[p][8*T:8*T+4]}, {ag} offset:{64*(2*p+T)}', f'ds_read_b128 {self.MR[p][8*T+4:8*T+8]}, {ag} offset:{1024+64*(2*p+T)}']
        lastR = [[f'ds_read2_b32 {self.negm[T]}, {a4} offset0:{16*T} offset1:{16*T}' for T in (2*j, 2*j+1)] for j in range(4)]
        lastR += [[f'ds_read2_b32 {self.rl[p]}, {a32} offset0:{32*p} offset1:{32*p}' for p in (2*j, 2*j+1)] for j in range(2)]
        lastR += [[f'ds_read_b128 {self.ck}, {D0[4]} offset:256'], [f'ds_read_b128 {self.cq}, {D0[4]}']]
        pre_v.append(f'v_add_u32 {D0[5]}, {sHo}, {v_l16}')
        A(f's_lshl_b32 {sHo}, {sWQ}, 10\ns_add_u32 {sHo}, {sHo}, {L_PHI}')
        pre.append(f'ds_read_b128 {self.aphi}, {D0[5]}')
        self.pre_v = pre_v
        e0, e1, e2, e3 = sE[0:4]
        A(f's_lshl_b32 {e2}, {sJ}, 2\ns_add_u32 {e2}, {e2}, {sWQ}\ns_mul_i32 {e3}, {e2}, {16*2176}\ns_add_u32 {e3}, {e3}, {KP}')
        A(f's_mul_i32 {e0}, {sI}, 2176\ns_add_u32 {e0}, {e0}, {e3}')
        A(f's_lshl2_add_u32 {sXb}, {sJJ}, {sWQ}\ns_lshl_b32 {sXb}, {sXb}, 8\ns_add_u32 {sXb}, {sXb}, {CNT}\ns_add_u32 {sWb}, {sXb}, 16384')
        A(f's_lshl_b32 {sT0}, {sI}, 6\ns_add_u32 {e1}, {e3}, {sT0}')
        A(f's_mul_i32 {e2}, {e2}, 2176\ns_add_u32 {e2}, {e2}, {KT}\ns_add_u32 {e3}, {e2}, {sT0}')
        A(f's_cmp_eq_u32 {sI}, 0\ns_cselect_b32 {sE[4]}, {e1}, {OOB}\ns_cselect_b32 {sE[5]}, {e3}, {OOB}\ns_cselect_b64 {sM2}, -1, 0')
        A(f's_mul_i32 {sF[0]}, {sI}, {2*72*4096}\ns_lshl_b32 {sT0}, {sJ}, 11\ns_add_u32 {sF[0]}, {sF[0]}, {sT0}\ns_lshl_b32 {sT0}, {sWQ}, 9\ns_add_u32 {sF[0]}, {sF[0]}, {sT0}\ns_add_u32 {sF[0]}, {sF[0]}, {ACT + 56*4096}')
        A(f's_lshl_b32 {sF[1]}, {sI}, 14\ns_add_u32 {sF[1]}, {sF[1]}, {CNT + 5120}\ns_add_u32 {sHb}, {sF[1]}, 2048')
        A(f's_or_b32 {sT0}, {sWQ}, {sJ}\ns_or_b32 {sT0}, {sT0}, {sI}\ns_cselect_b32 {sF[2]}, {OOB}, {EPOCH}')
        return lastR, pre, {}
    def epi_F(self):
        A, V, C = self.A, self.V, self.C
        cc = self.Rg
        NT = 3
        tmp = [V.alloc(8, 4) for _ in range(NT)]; outp = [V.alloc(4, 4) for _ in range(NT)]
        for pr in range(1, 6): A(f's_add_u32 {sE[pr]}, {sF[0]}, {pr*4096}')
        so = [sF[0]] + sE[1:6] + [sF[1]]
        self.G.all()
        L = []; k = 0
        for pr in range(7):
            for tt in range(2):
                p = tmp[k % NT]; o = outp[k % NT]; k += 1
                src = [self.acc[tt][2*pr][0:2], self.acc[tt][2*pr][2:4], self.acc[tt][2*pr+1][0:2], self.acc[tt][2*pr+1][2:4]]
                cs = [cc[2*pr][0:2], cc[2*pr][2:4], cc[2*pr+1][0:2], cc[2*pr+1][2:4]]
                for i in range(4): L.append(f'v_pk_fma_f32 {src[i]}, {cs[i]}, {self.ms[tt]}, {src[i]}')
                for i in range(4): L.append(f'v_pk_mul_f32 {src[i]}, {src[i]}, {self.nr[tt]}')
                for i in range(8): L.append(f'v_exp_f32 {p[i]}, {src[i//2][i&1]}')
                for i in range(4): L.append(f'v_pk_fma_f32 {p[2*i:2*i+2]}, {p[2*i:2*i+2]}, {self.kL}, {self.kL}')
                for i in range(8): L.append(f'v_rcp_f32 {p[i]}, {p[i]}')
                for i in range(4): L.append(f'v_pk_mul_f32 {p[2*i:2*i+2]}, {src[i]}, {p[2*i:2*i+2]}')
                for i in range(4): L.append(f'v_cvt_pk_bf16_f32 {o[i]}, {p[2*i]}, {p[2*i+1]}')
                L.append(f'buffer_store_dwordx4 {o}, {v_l16}, {sWS}, {so[pr]} offen offset:{tt*1024} ' + ['sc1', '', 'sc1 nt', 'sc0 sc1', 'nt'][OPT['hst']])
        if OPT['dbg'] & 8: L = [x for x in L if not x.startswith('buffer')]
        stampe(A, 1); ns = 0
        for x in L:
            A(x)
            if x.startswith('buffer'):
                ns += 1
                if ns % 2 == 0: stampe(A, 1 + ns//2)
                if ns == 8 + OPT['lag']:
                    A(f's_waitcnt vmcnt({OPT["lag"]})\ns_atomic_add {sLrow}, {sWS[0:2]}, {sF[2]}\ns_add_u32 {sF[3]}, {sF[2]}, 8192')
        C.n += 14
        stamp(A, 6)
        sarrive(A, sF[3])
        stampe(A, 9)
        stamp(A, 7)
    def feat(self, a0, a1, cvec, negm, rl, P16, E):
        L = []; B4 = a0
        for T, a in enumerate((a0, a1)):
            for h in range(2): L.append(f'v_pk_fma_f32 {a[2*h:2*h+2]}, {cvec[2*h:2*h+2]}, {negm[T]}, {a[2*h:2*h+2]}')
        for T, a in enumerate((a0, a1)):
            for h in range(2): L.append(f'v_cvt_pk_bf16_f32 {B4[2*T+h]}, {a[2*h]}, {a[2*h+1]}')
        L += [f'v_permlane16_swap_b32 {B4[0]}, {B4[2]}', f'v_permlane16_swap_b32 {B4[1]}, {B4[3]}']
        L.append(f'v_mfma_f32_32x32x16_bf16 {P16}, {self.aphi}, {B4}, 0')
        mx = B4[0]; m2 = B4[1]
        L += [f'v_max3_f32 {mx}, {P16[0]}, {P16[1]}, {P16[2]}', f'v_max3_f32 {m2}, {P16[3]}, {P16[4]}, {P16[5]}',
              f'v_max3_f32 {mx}, {mx}, {P16[6]}, {P16[7]}', f'v_max3_f32 {m2}, {m2}, {P16[8]}, {P16[9]}',
              f'v_max3_f32 {mx}, {mx}, {P16[10]}, {P16[11]}', f'v_max3_f32 {m2}, {m2}, {P16[12]}, {P16[13]}',
              f'v_max3_f32 {mx}, {mx}, {P16[14]}, {P16[15]}', f'v_max_f32 {mx}, {mx}, {m2}',
              f'v_mul_f32_e64 {B4[2]}, -{mx}, {rl[0]}', f'v_mul_f32_e64 {B4[3]}, -{mx}, {rl[0]}']
        for i in range(8): L.append(f'v_pk_fma_f32 {P16[2*i:2*i+2]}, {P16[2*i:2*i+2]}, {rl}, {B4[2:4]}')
        for i in range(16): L.append(f'v_exp_f32 {P16[i]}, {P16[i]}')
        s0, s1 = B4[0:2], B4[2:4]
        L += [f'v_pk_add_f32 {s0}, {P16[0:2]}, {P16[2:4]}', f'v_pk_add_f32 {s1}, {P16[4:6]}, {P16[6:8]}']
        for i in range(4, 8): L.append(f'v_pk_add_f32 {(s0, s1)[i&1]}, {(s0, s1)[i&1]}, {P16[2*i:2*i+2]}')
        L += [f'v_pk_add_f32 {s0}, {s0}, {s1}', f'v_add_f32 {B4[0]}, {B4[0]}, {B4[1]}', f'v_rcp_f32 {B4[0]}, {B4[0]}', f'v_mov_b32 {B4[1]}, {B4[0]}']
        for i in range(8): L.append(f'v_pk_mul_f32 {P16[2*i:2*i+2]}, {P16[2*i:2*i+2]}, {B4[0:2]}')
        for i in range(8): L.append(f'v_cvt_pk_bf16_f32 {E(i)}, {P16[2*i]}, {P16[2*i+1]}')
        return L
    def epi_A(self):
        A, V, C, l = self.A, self.V, self.C, lane
        e0, e1, e2, e3 = sE[0:4]
        acc, MR, negm, rl, bsel, zsel = self.acc, self.MR, self.negm, self.rl, self.bsel, self.zsel
        D0, D1 = self.Dg
        if OPT['cprio']: A(f's_setprio {OPT["cprio"]}')
        self.G.all()
        kv = [D0[0:4], D0[4:8]]; zz = D0[8:12]
        a0, a1, ff, t0, t1, ah, as_, ak, ad, l26, vtag, fa = [D1[i] for i in range(12)]
        L = []
        for p in range(4):
            P16 = MR[p]; VB = acc[2*p][2]; Eq = [acc[2*p+1][1], acc[2*p+1][2]]
            for T in range(2):
                a = acc[2*p+T][2]; M4 = P16[8*T:8*T+4]; R4 = P16[8*T+4:8*T+8]
                for h in range(2): L.append(f'v_pk_fma_f32 {a[2*h:2*h+2]}, {M4[2*h:2*h+2]}, {self.cv}, {a[2*h:2*h+2]}')
                for h in range(2): L.append(f'v_pk_mul_f32 {a[2*h:2*h+2]}, {a[2*h:2*h+2]}, {R4[2*h:2*h+2]}')
                for h in range(2): L.append(f'v_cvt_pk_bf16_f32 {VB[2*T+h]}, {a[2*h]}, {a[2*h+1]}')
            L += self.feat(acc[2*p][1], acc[2*p+1][1], self.ck, negm[2*p:2*p+2], rl[p], P16, lambda i: Eq[i//4][i % 4])
            for m in range(2):
                for T in range(2): L.append(f'v_mfma_f32_16x16x32_bf16 {P16[8*m+4*T:8*m+4*T+4]}, {Eq[m]}, {bsel[T]}, 0')
            for i in range(8): L.append(f'v_cvt_pk_bf16_f32 {Eq[i//4][i%4]}, {P16[2*i]}, {P16[2*i+1]}')
            for m in range(2): L.append(f'v_mfma_f32_16x16x32_bf16 {kv[m]}, {Eq[m]}, {VB}, {kv[m] if p else 0}')
            for m in range(2): L.append(f'v_mfma_f32_16x16x32_bf16 {zz}, {Eq[m]}, {zsel[m]}, {zz if (p or m) else 0}')
        L += [f'v_and_b32 {t0}, 15, {l}', f'v_and_b32 {t1}, 48, {l}', f'v_lshl_add_u32 {a0}, {t0}, 6, {t1}', f'v_mov_b32 {ff}, 0xff',
              f'v_mul_u32_u24 {a1}, 1088, {t0}', f'v_add_u32 {a1}, {a1}, {t1}', f'v_lshrrev_b32 {t0}, 1, {t0}', f'v_lshl_add_u32 {a1}, {t0}, 27, {a1}']
        for m in range(2):
            L += tag_quad(kv[m], ff) + [f'buffer_store_dwordx4 {kv[m]}, {a0}, {sWS}, {e0} offen offset:{1088*m} sc1']
        L += tag_quad(zz, ff) + [f'buffer_store_dwordx4 {zz}, {a1}, {sWS}, {e0} offen offset:1024 sc1']
        L += [f'v_lshlrev_b32 {l26}, 26, {l}', f'v_mov_b32 {vtag}, {sTag}', f'v_mov_b32 {fa}, 1']
        if not OPT['ack1']: L.append(f'buffer_atomic_add {fa}, {l26}, {sWS}, {sXb} offen sc1')
        stampe(A, 1)
        emit_sched(A, L, 'kside'); C.n += 4
        stampe(A, 2)
        stamp(A, 6)
        h1 = [self.sel16[4*i:4*i+4] for i in range(4)]
        ld1 = [f'buffer_load_dwordx4 {h1[0]}, {ah}, {sWS}, {e1} offen sc1', f'buffer_load_dwordx4 {h1[1]}, {ah}, {sWS}, {e1} offen offset:1088 sc1',
               f'buffer_load_dwordx4 {h1[2]}, {ah}, {sWS}, {sE[4]} offen offset:1024 sc1', f'buffer_load_dwordx4 {h1[3]}, {ah}, {sWS}, {sE[4]} offen offset:2112 sc1']
        perm = [1, 0, 2, 3]
        eq = [[acc[2*p+1][0], acc[2*p][1]] for p in range(4)]
        def qside(ps):
            L = []
            for p in ps:
                L += self.feat(acc[2*p][0], acc[2*p+1][0], self.cq, negm[2*p:2*p+2], rl[p], MR[p], lambda i: eq[p][i//4][perm[i % 4]])
            return L
        adr = [f'v_lshrrev_b32 {ah}, 2, {l}', f'v_mul_u32_u24 {ah}, 2176, {ah}', f'v_and_b32 {t0}, 3, {l}', f'v_lshl_add_u32 {ah}, {t0}, 4, {ah}',
               f'v_lshrrev_b32 {as_}, 5, {l}', f'v_mul_u32_u24 {as_}, 1088, {as_}', f'v_lshl_add_u32 {as_}, {t0}, 4, {as_}', f'v_bfe_u32 {t0}, {l}, 4, 1', f'v_lshl_add_u32 {as_}, {t0}, 3, {as_}',
               f'v_and_b32 {t1}, 12, {l}', f'v_lshl_add_u32 {as_}, {t1}, 26, {as_}',
               f'v_and_b32 {ad}, 15, {l}', f'v_lshlrev_b32 {ad}, 4, {ad}', f'v_lshl_add_u32 {ad}, {t0}, 14, {ad}', f'v_lshrrev_b32 {t0}, 5, {l}', f'v_lshl_add_u32 {ad}, {t0}, 8, {ad}',
               f'v_and_b32 {ak}, 31, {l}', f'v_min_u32 {ak}, 16, {ak}', f'v_lshlrev_b32 {ak}, 6, {ak}', f'v_lshl_add_u32 {ak}, {t0}, 5, {ak}']
        if OPT['ack1']:
            emit_sched(A, qside([0]) + adr, 'q0')
            sarrive(A, sXb)
            emit_sched(A, qside([1]), 'q1')
        else: emit_sched(A, qside([0, 1]) + adr, 'q01')
        stampe(A, 3)
        spoll(A, sXb, 16, OPT['slpa'])
        stamp(A, 7)
        stampe(A, 4)
        for x in ld1: A(x)
        emit_sched(A, qside([2]), 'q2')
        stampe(A, 5)
        A('s_waitcnt vmcnt(0)')
        tm = D0
        def chk1():
            for i in range(4): quad_diff(A, h1[i], tm[i], tm[4+i])
            A(f'v_or_b32 {tm[0]}, {tm[0]}, {tm[1]}\nv_or_b32 {tm[2]}, {tm[2]}, {tm[3]}\nv_cmp_ne_u32 vcc, 0, {tm[2]}\nv_cmp_ne_u32 s[4:5], 0, {tm[0]}')
            A(f's_and_b64 vcc, vcc, {sM2}\ns_or_b64 s[4:5], s[4:5], vcc')
        poll(A, '\n'.join(ld1), chk1, sleep=OPT['slp'], mask_exec=True, first_loaded=True)
        stampe(A, 6)
        L = []
        for x, y, so, off in ((h1[0], h1[1], e3, 0), (h1[2], h1[3], sE[5], 1024)):
            for k in range(4): L += [f'v_and_b32 {x[k]}, 0xffffff00, {x[k]}', f'v_and_b32 {y[k]}, 0xffffff00, {y[k]}']
            for k in range(4): L += [f'v_permlane32_swap_b32 {x[k]}, {y[k]}', f'v_add_f32 {x[k]}, {x[k]}, {y[k]}']
            for k in range(2): L += [f'v_permlane16_swap_b32 {x[k]}, {x[k+2]}', f'v_add_f32 {x[k]}, {x[k]}, {x[k+2]}', dpp_add(x[k], 'row_ror:4'), dpp_add(x[k], 'row_ror:8')]
            L += [f'v_cvt_pk_bf16_f32 {x[0]}, {x[0]}, {x[1]}', f'v_mov_b32 {x[1]}, {sTag}', f'buffer_store_dwordx2 {x[0:2]}, {as_}, {sWS}, {so} offen offset:{off} sc1']
        if not OPT['ack2']: L.append(f'buffer_atomic_add {fa}, {l26}, {sWS}, {sWb} offen sc1')
        emit_sched(A, L, 'reduce'); C.n += 3
        stamp(A, 8)
        ld = [self.Rg[0], self.Rg[1], self.Rg[2], self.Rg[3]]; assert all(ld[i].b == ld[0].b + 4*i for i in range(4))
        ldall = R('v', ld[0].b, 16)
        ld2 = [f'buffer_load_dwordx4 {ld[2*m+h]}, {ak}, {sWS}, {e2} offen offset:{1088*m+16*h} sc1' for m in range(2) for h in range(2)]
        A(f's_add_u32 {e0}, {sF[0]}, 32768\ns_add_u32 {e1}, {sF[0]}, {72*4096}\ns_add_u32 {e3}, {e1}, 32768')
        emit_sched(A, qside([3]), 'q3')
        if OPT['ack2']: sarrive(A, sWb)
        A(f'buffer_store_dword {vtag}, {l26}, {sWS}, {sF[2]} offen sc1')
        spoll(A, sWb, 16, OPT['slpa'])
        stampe(A, 7)
        poll(A, '\n'.join(ld2), chk_words(A, [ldall[2*i+1] for i in range(8)], tm), sleep=OPT['slp'], mask_exec=True)
        stamp(A, 4)
        L = []
        for m in range(2): L += [f'v_mov_b32 {ldall[8*m+3]}, {ldall[8*m]}', f'v_mov_b32 {ldall[8*m+5]}, {ldall[8*m+6]}']
        for p in range(4):
            N = MR[p]; o = acc[2*p][2]
            L.append(f'v_mfma_f32_32x32x16_bf16 {N}, {ldall[2:6]}, {eq[p][0]}, 0')
            L.append(f'v_mfma_f32_32x32x16_bf16 {N}, {ldall[10:14]}, {eq[p][1]}, {N}')
            L += [f'v_add_f32 {N[8]}, {f2u(1e-6):#x}, {N[8]}', f'v_rcp_f32 {N[8]}, {N[8]}']
            if OPT['opk']:
                L.append(f'v_mov_b32 {N[9]}, {N[8]}')
                for i in range(4): L.append(f'v_pk_mul_f32 {N[2*i:2*i+2]}, {N[2*i:2*i+2]}, {N[8:10]}')
            else:
                for i in range(8): L.append(f'v_mul_f32 {N[i]}, {N[i]}, {N[8]}')
            for i in range(4): L.append(f'v_cvt_pk_bf16_f32 {o[i]}, {N[2*i]}, {N[2*i+1]}')
            L.append(f'buffer_store_dwordx4 {o}, {ad}, {sWS}, {[sF[0], e0, e1, e3][p]} offen sc1')
        stampe(A, 8)
        emit_sched(A, L, 'oside'); C.n += 4
        stampe(A, 9)
        sarrive(A, sF[1], sHb)
        stampe(A, 10)

def p2_C(A):
    l = lane; C = Ctx(A); G = LG(A)
    NP = OPT['npre']
    V = Pool('v', 4, 256)
    vab = [V.alloc() for _ in range(4)]
    go, vm_, t0, t1 = V.alloc(), V.alloc(), V.alloc(), V.alloc()
    xq = V.alloc(8, 4); acc = V.alloc(16, 4); ao = V.alloc(64, 4)
    Bs = [V.alloc(16, 4) for _ in range(NP)]
    A(f'v_and_b32 {t0}, 15, {l}\nv_lshlrev_b32 {go}, 10, {t0}\nv_bfe_u32 {t0}, {l}, 4, 1\nv_lshl_add_u32 {go}, {t0}, 5, {go}\nv_lshrrev_b32 {t0}, 5, {l}\nv_lshl_add_u32 {go}, {t0}, 4, {go}')
    A(f's_lshl_b32 {sE[0]}, {sI2}, 16\ns_lshl_b32 {sT0}, {sWQ}, 14\ns_add_u32 {sE[0]}, {sE[0]}, {sT0}\ns_lshl_b32 {sT1}, {sJ2}, 7\ns_add_u32 {sE[0]}, {sE[0]}, {sT1}')
    for P in range(2): A(f'buffer_load_dwordx4 {xq[4*P:4*P+4]}, {go}, {sX}, {sE[0]} offen offset:{64*P}')
    A(f's_mul_i32 {sE[1]}, {sI2}, {72*4096}\ns_add_u32 {sE[1]}, {sE[1]}, {sT0}\ns_add_u32 {sE[1]}, {sE[1]}, {ACT + 56*4096}')
    for i in range(1, 4): A(f's_add_u32 {sE[1+i]}, {sE[1]}, {4096*i}')
    cnt_i2(A, sE[5], sI2, 5120)
    tr_addr(A, vab, WOB, t0, t1)
    A(f'v_mov_b32 {vm_}, {L_TAG}')
    lds_spin(A, vm_, 4, 4, t0)
    tokB = {}
    def trl(k): return [(f'ds_read_b64_tr_b16 {Bs[k % NP][4*q+2*hf:4*q+2*hf+2]}, {vab[q]} offset:{k*4096 + hf*2048}', (k, q)) for q in range(4) for hf in range(2)]
    for k in range(NP):
        for s, key in trl(k): G.ds(s); tokB[key] = 0
    if OPT['opoll']:
        spoll(A, sE[5], 32, OPT['slpo'])
        G.all()
    else:
        lk, le = A.lab('NO'), A.lab('OE')
        A(f's_cmp_lg_u32 {sWV}, 0\ns_cbranch_scc1 {lk}')
        spoll(A, sE[5], 32, OPT['slpo'])
        A(f'v_mov_b32 {t0}, 1\nds_write_b32 {vm_}, {t0} offset:12\ns_branch {le}')
        A(f'{lk}:')
        lds_spin(A, vm_, 12, 1, t0)
        A(f'{le}:')
    stamp(A, 9); stampf(A, 0)
    tok = {}
    for s in range(16):
        tok[s] = C.vm(f'buffer_load_dwordx4 {ao[4*s:4*s+4]}, {v_l16}, {sWS}, {sE[1 + s//4]} offen offset:{(s & 3)*1024} sc1')
    stampf(A, 1)
    G.all()
    A(f's_lshl_b32 {sT0}, {sWQ}, 12\nv_add_u32 {t1}, {sT0}, {v_l16}')
    Q = []
    for s in range(16):
        C.wait(tok[s])
        if s == 0:
            for P in range(2): A(f'v_permlane16_swap_b32 {xq[4*P]}, {xq[4*P+2]}\nv_permlane16_swap_b32 {xq[4*P+1]}, {xq[4*P+3]}')
        for q in range(4):
            G.need(tokB[(s, q)])
            A(f'v_mfma_f32_16x16x32_bf16 {acc[4*q:4*q+4]}, {Bs[s % NP][4*q:4*q+4]}, {ao[4*s:4*s+4]}, {acc[4*q:4*q+4] if s else 0}')
            for _ in range(2):
                if Q: x, key = Q.pop(0); tokB[key] = G.ds(x)
        if s + NP < 16: Q += trl(s + NP)
        if s in (0, 3, 7, 11, 15): stampf(A, 2 + (s+1)//4)
    xf = ao[0:16]; g = ao[16:32]
    stamp(A, 10)
    A('s_barrier')
    stampf(A, 7)
    for u in range(4): A(f'ds_read_b128 {g[4*u:4*u+4]}, {t1} offset:{X0 + 1024*u}')
    for i in range(8): A(f'v_lshlrev_b32 {xf[2*i]}, 16, {xq[i]}\nv_and_b32 {xf[2*i+1]}, 0xffff0000, {xq[i]}')
    for P in range(2):
        A(f's_waitcnt lgkmcnt({2 - 2*P})')
        for i in range(4*P, 4*P+4): A(f'v_pk_fma_f32 {g[2*i:2*i+2]}, {g[2*i:2*i+2]}, {acc[2*i:2*i+2]}, {xf[2*i:2*i+2]}')
        for i in range(4*P, 4*P+4): A(f'v_cvt_pk_bf16_f32 {xq[i]}, {g[2*i]}, {g[2*i+1]}')
    for P in range(2):
        A(f'v_permlane16_swap_b32 {xq[4*P]}, {xq[4*P+2]}\nv_permlane16_swap_b32 {xq[4*P+1]}, {xq[4*P+3]}')
    for P in range(2): A(f'buffer_store_dwordx4 {xq[4*P:4*P+4]}, {go}, {sOUT}, {sE[0]} offen offset:{64*P}')
    stampf(A, 8)
    if OPT['stamp'] == 6: A('s_waitcnt vmcnt(0)')
    stampf(A, 9)

vb = [R('v', 4+i, 1) for i in range(4)]
vb0, vb1 = R('v', 8, 1), R('v', 9, 1)
RS = [R('v', 80+16*i, 16) for i in range(11)]
ACCL = R('v', 16, 64)
vbh = [R('v', 13, 1), R('v', 14, 1), R('v', 15, 1), R('v', 2, 1)]
va = [R('v', 10, 1), R('v', 11, 1), R('v', 12, 1), R('v', 0, 1)]
vx2, vx3, vw1, vh, pt, pa, pm, p1 = [ACCL[48+i] for i in range(8)]
def nib(d, k): return f's_bfe_u32 {d}, {sCur if k < 8 else sCurA}, {(4 << 16) | (4 * (k % 8)):#x}'
LOAD = [0, 1, 8, 9, 2, 3, 4, 5, 6, 7, 10, 11, 12, 13] if OPT['lord'] else list(range(14))
RSL = {0: 0, 1: 1, 2: 2, 3: 3, 4: 4, 5: 5, 8: 6, 9: 7, 6: 0, 7: 1, 10: 2, 11: 3, 12: 4, 13: 5} if OPT['lord'] else {k: k % 8 for k in range(14)}
sB0, sB1 = sM2[0], sM2[1]
class BP:
    def __init__(self, A, C, G):
        self.A, self.C, self.G = A, C, G
        self.next = 0; self.free = []; self.fly = []; self.slot = {}; self.tok = {}; self.cool = []; self.dep = 0; self.pend = []
    def dma(self, k, sl):
        A = self.A
        for f in self.dma_list(k, sl): f()
    def dma_list(self, k, sl):
        A = self.A
        self.slot[k] = sl
        def mk(i):
            def f():
                if i == 0: A(f'{nib(sB0, LOAD[k])}\ns_lshl_b32 {sB0}, {sB0}, 15\ns_add_u32 {sB0}, {sB0}, {sBb}\ns_add_u32 {sB1}, {sB0}, 16384')
                A(f's_add_u32 m0, {sLb2}, {sl + 1024*i}')
                if self.dep: A(f's_waitcnt vmcnt({self.dep - 1})')
                self.tok[k] = self.C.vm(f'buffer_load_dwordx4 {(vb0, vb1)[i & 1]}, {sW2}, {(sB0, sB1)[i >> 1]} offen lds')
            return f
        return [mk(i) for i in range(4)]
    def wo_list(self, k):
        A = self.A
        def mk(i):
            def f():
                if i == 0:
                    A(f's_xor_b32 {sT1}, {sF[2]}, {k}\ns_lshl_b32 {sF[3]}, {sT1}, 12\ns_lshl2_add_u32 {sF[3]}, {sLb2}, {sF[3]}')
                    A(f's_lshl_b32 {sT0}, {sT1}, 15\ns_add_u32 {sT0}, {sT0}, {sF[0]}\ns_add_u32 {sT1}, {sT0}, 16384')
                A(f's_add_u32 m0, {sF[3]}, {WOB + 1024*i}')
                if self.dep: A(f's_waitcnt vmcnt({self.dep - 1})')
                self.tokwo = self.C.vm(f'buffer_load_dwordx4 {(vb0, vb1)[i >> 1]}, {sWO}, {(sT0, sT1)[i & 1]} offen lds')
            return f
        return [mk(i) for i in range(4)]
    def trl(self, k):
        sl = self.slot[k]; hi = sl >= Y0
        off = sl - Y0 if hi else sl
        dst = RS[RSL[LOAD[k]]]
        return [f'ds_read_b64_tr_b16 {dst[4*q+2*hf:4*q+2*hf+2]}, {(vbh if hi else vb)[q]} offset:{off + hf*2048}' for q in range(4) for hf in range(2)]
    def retire(self):
        k = self.fly.pop(0)
        self.C.wait(self.tok[k])
        for s in self.trl(k): tk = self.G.ds(s)
        self.cool.append((self.slot[k], tk))
    def step(self, run=True):
        self.flush()
        if self.next >= 13: return False
        if not self.free:
            if not self.cool: self.retire()
            if len(self.cool) == 1 and self.fly and self.next - self.fly[0] >= 3: self.retire()
            sl, tk = self.cool.pop(0); self.G.need(tk, 8); self.free.append(sl)
        k = self.next; self.next += 1
        self.pend = self.dma_list(k, self.free.pop(0))
        if k < 8: self.fly.append(k)
        if run: self.flush()
        return True
    def flush(self):
        while self.pend: self.pend.pop(0)()
    def quota(self, n):
        for _ in range(n):
            if not self.pend: self.step(run=False)
            self.pend.pop(0)()

class LW:
    def __init__(self, A, typ):
        self.A = A; self.typ = typ; self.C = Ctx(A); self.G = LG(A); self.B = BP(A, self.C, self.G)
        self.lrow = 3584 if typ == 'F' else 3072
        self.stok = {}
    def issue(self, st, only_half=False, lo=0, hi=99):
        A = self.A if lo == 0 else (lambda x: None); buf = phys(st); F = self.typ == 'F'
        cs = 128 if F else 1024
        if not only_half:
            A(f's_bfe_u32 {sT0}, {sRot}, {(4 << 16) | (4*st):#x}\ns_lshl_b32 {sXo}, {sT0}, 7\ns_add_u32 {sXo}, {sXo}, {sXb}')
            A(f's_mul_i32 {sT0}, {sT0}, {64*self.lrow}\ns_add_u32 {sWo}, {sT0}, {sWb}')
            xs = [(buf + 4096*p, (vx0, vx2, vx1, vx3)[p], sX, sXo, 0) for p in range(4)]
            ws = [(buf + 16384 + 8192*b + 4096*h - b*cs, (vw, vw1)[h], sW, sWo, b*cs) for h in range(2) for b in range(3)]
            items = [xs[0], ws[0], ws[1], xs[1], ws[2], xs[2], ws[3], ws[4], xs[3], ws[5]]
        else: items = []
        if F:
            A(f's_add_u32 {sHo}, {sWo}, {sHb}')
            items.append((buf + 16384 + 24576, vh, sW, sHo, 0))
        A = self.A
        for m, v, sr, so, off in items[lo:hi]:
            A(f's_add_u32 m0, {sLb}, {m}')
            self.stok[st] = self.C.vm(f'buffer_load_dwordx4 {v}, {sr}, {so} offen' + (f' offset:{off}' if off else '') + ' lds')
    def run(self):
        A, C, G, B, l = self.A, self.C, self.G, self.B, lane
        F = self.typ == 'F'; lrow = self.lrow
        C.n = 5; self.stok[0] = 5
        T = [ACCL[i] for i in range(64)]
        if OPT['lprio']: A(f's_setprio {OPT["lprio"]}')
        srd(A, sW2, 48, SZ_W2); srd(A, sWO, 24, SZ_WO)
        if not F: srd(A, sPHI, 16, SZ_PHI)
        A(f's_sub_u32 {sLb}, {sLb}, 4096')
        A(f'v_or_b32 {vx2}, 0x8000, {vx0}\nv_or_b32 {vx3}, 0x8000, {vx1}\nv_and_b32 {vx0}, 0xffff7fff, {vx0}\nv_and_b32 {vx1}, 0xffff7fff, {vx1}')
        if OPT['flip'] & 1: A(f's_bitcmp1_b32 s2, 5\ns_cselect_b32 s4, 0, {32*lrow}\nv_subrev_u32 {vw}, s4, {vw}')
        else: A(f'v_subrev_u32 {vw}, {32*lrow}, {vw}')
        A(f'v_add_u32 {vw1}, {32*lrow}, {vw}')
        if OPT['rot'] == 4:
            A(f's_and_b32 s4, {sRot}, 3\ns_lshl_b32 s4, s4, 2\ns_lshr_b32 s4, 0x32103210, s4\ns_and_b32 s4, s4, 0xffff')
            if OPT['r2'] == 0: A(f's_mul_i32 s4, s4, 0x10001')
            elif OPT['r2'] == 1: A(f's_bitcmp1_b32 {sRot}, 0\ns_cselect_b32 s5, 0x11110000, 0\ns_xor_b32 s5, s5, 0x32100000\ns_or_b32 s4, s4, s5')
            else: A(f's_or_b32 s4, s4, 0x32100000')
            A(f's_cmp_ge_u32 {sRot}, 4\ns_cselect_b32 s5, 0x4444, 0x44440000\ns_or_b32 {sRot}, s4, s5'.replace('s_cselect_b32 s5, 0x4444, 0x44440000', 's_mov_b32 s5, 0x44440000\ns_cmovk_i32 s5, 0x4444'))
        elif OPT['rot'] == 2:
            A(f's_mul_i32 {sRot}, {sRot}, 0x11111111\ns_xor_b32 {sRot}, {sRot}, 0x76543210')
        else:
            A(f's_mov_b32 s4, 0x76543210\ns_mov_b32 s5, s4\ns_lshl_b32 s6, {sRot}, 2\ns_lshr_b64 s[4:5], s[4:5], s6\ns_mov_b32 {sRot}, s4')
        if F:
            t0, t1, t2 = T[0:3]
            A(f's_and_b32 {sT0}, {sJ}, 1\ns_mul_i32 {sT0}, {sT0}, 448\ns_sub_u32 {sHb}, 384, {sT0}')
            A(f's_mul_i32 {sT0}, {sWQ}, {16*lrow}\ns_add_u32 {sHb}, {sHb}, {sT0}')
            A(f'v_lshrrev_b32 {t0}, 2, {l}\nv_and_b32 {t1}, 3, {l}\nv_lshrrev_b32 {t2}, 4, {l}\nv_and_b32 {t2}, 2, {t2}\nv_xor_b32 {t2}, {t2}, {t1}\nv_lshlrev_b32 {t2}, 4, {t2}')
            A(f'v_mul_u32_u24 {vh}, {lrow}, {t0}\nv_add_u32 {vh}, {vh}, {t2}')
            self.issue(0, only_half=True)
        p2_ids(A)
        t0, t1, f = T[0:3]
        A(f's_lshl_b32 s6, s6, 1' + (f'\ns_and_b32 s6, s6, 4' if OPT['brot'] else '') + f'\ns_add_u32 s6, s6, {sJ2}\ns_and_b32 s6, s6, 7')
        A(f's_mov_b32 s4, 0xba983210\ns_mov_b32 s5, s4\ns_lshl_b32 s7, s6, 2\ns_lshr_b64 s[4:5], s[4:5], s7\ns_mov_b32 {sCur}, s4')
        A(f's_mul_i32 s6, s6, 3\ns_and_b32 s7, s6, 28\ns_mov_b32 s4, 0x547dc654\ns_mov_b32 s5, 0x7dc6\ns_lshr_b64 s[4:5], s[4:5], s7\ns_mov_b32 {sCurA}, s4')
        A(f's_mul_i32 s4, {sWQ}, 14\ns_mul_i32 {sAb}, {sI2}, 72\ns_add_u32 {sAb}, {sAb}, s4\ns_lshl_b32 {sAb}, {sAb}, 12\ns_add_u32 {sAb}, {sAb}, {ACT}')
        A(f's_lshl_b32 {sBb}, s4, 15\ns_lshl_b32 s5, {sJ2}, 7\ns_add_u32 {sBb}, {sBb}, s5')
        A(f's_lshl_b32 {sF[0]}, {sWQ}, 17\ns_add_u32 {sF[0]}, {sF[0]}, s5')
        A(f's_lshl_b32 {sLb2}, {sWQ}, 12')
        A(f'v_lshrrev_b32 {t0}, 3, {l}\nv_and_b32 {t1}, 6, {t0}\nv_and_b32 {f}, 7, {l}\nv_xor_b32 {t1}, {t1}, {f}\nv_lshlrev_b32 {t1}, 4, {t1}\nv_lshl_add_u32 {vb0}, {t0}, 10, {t1}\nv_add_u32 {vb1}, 0x2000, {vb0}')
        tr_addr(A, vb, sLb2, t0, t1)
        for q in range(4): A(f'v_add_u32 {vbh[q]}, {Y0}, {vb[q]}')
        A(f'v_mov_b32 {pm}, {L_TAG}\nv_mov_b32 {p1}, 1')
        cnt_i2(A, sF[1], sI2, 1024)
        A(f's_lshl_b32 s4, {sWQ}, 8\ns_add_u32 {sF[1]}, {sF[1]}, s4')
        ca = T[4:8]; t, g = T[8], T[9]; ones = ACCL[12:16]; wfr = ACCL[16:32]; cs = ACCL[32:48]; vt = T[10]; ff = T[11]
        A(f'v_and_b32 {t}, 15, {l}\nv_lshrrev_b32 {g}, 4, {l}')
        if F: A(f's_cmp_eq_u32 {sWQ}, 3\ns_cselect_b32 s4, 6, 7\ns_cselect_b32 s5, 1, 3\ns_cselect_b32 s6, 1, 0\ns_lshl_b32 s7, {sWQ}, 13')
        else: A(f's_mov_b32 s4, 7\ns_mov_b32 s5, 3\ns_mov_b32 s6, 0\ns_min_u32 s7, {sWQ}, 2\ns_lshl_b32 s7, s7, 13')
        A(f's_lshl_b32 {sT0}, {sI}, {dict([(2,4),(4,3),(8,2)])[OPT["rot"]]}\ns_and_b32 {sT0}, {sT0}, 32')
        A(f's_lshr_b32 {sE[0]}, {sE[0]}, 6\ns_lshl_b32 {sT1}, {sWQ}, 5\ns_add_u32 {sE[0]}, {sE[0]}, {sT1}\ns_add_u32 {sSpin}, {sE[0]}, {STAT}')
        sgr = ACCL[56:60]; sga = T[60]; sgs = T[61]
        A(f's_lshl_b32 {sT1}, {sWQ}, 4\ns_add_u32 {sT1}, {sT1}, {L_SG}\nv_and_b32 {sga}, 1, {l}\nv_lshl_add_u32 {sga}, {sga}, 3, {sT1}')
        A(f'v_lshrrev_b32 {sgs}, 1, {l}\nv_lshl_add_u32 {sgs}, {sgs}, 26, {v_l16}')
        A(f'v_lshrrev_b32 {t0}, 2, {t}\nv_lshl_add_u32 {t0}, {g}, 3, {t0}\nv_add_u32 {t0}, {sT0}, {t0}\nv_lshlrev_b32 {t0}, s4, {t0}')
        A(f'v_and_b32 {t1}, 3, {t}\nv_lshl_add_u32 {t0}, {t1}, 3, {t0}\ns_add_u32 s7, s7, {phys(0)+16384}')
        if OPT['rot'] == 2: A(f's_bitcmp1_b32 {sI}, 2\ns_cselect_b32 {sT1}, {phys(0) - phys(2)}, 0\ns_sub_u32 s7, s7, {sT1}')
        A(f'v_add_u32 {t0}, s7, {t0}')
        A(f'v_lshrrev_b32 {f}, 3, {t}\nv_and_b32 {t1}, 1, {g}\nv_lshl_or_b32 {f}, {t1}, 1, {f}\nv_lshrrev_b32 {f}, s6, {f}')
        for q in range(4): A(f'v_xor_b32 {t1}, {q}, {f}\nv_and_b32 {t1}, s5, {t1}\nv_lshl_add_u32 {ca[q]}, {t1}, 5, {t0}')
        A(f's_lshl_b32 s5, 4, s4')
        for r in range(4): A(f'v_mov_b32 {ones[r]}, 0x3f803f80')
        A(f'v_mov_b32 {vt}, {L_TAG}\nv_mov_b32 {ff}, 0xff')
        A(f's_lshl_b32 {sE[1]}, {sJJ}, 14\ns_lshl_b32 {sT0}, {sWQ}, 8\ns_add_u32 {sE[1]}, {sE[1]}, {sT0}\ns_add_u32 {sE[1]}, {sE[1]}, {CSP}')
        A(f's_lshl_b32 {sT0}, {sI}, 10\ns_add_u32 {sE[2]}, {sE[1]}, {sT0}')
        A(f's_lshl_b32 {sE[0]}, {sI}, 2\ns_add_u32 {sE[0]}, {sE[0]}, {sWQ}\ns_lshl_b32 {sE[0]}, {sE[0]}, 9\ns_add_u32 {sE[0]}, {sE[0]}, {STAT}')
        def mall():
            if not OPT['touch'] & 4 or F: return
            A(f's_cmp_gt_u32 {sJ}, 3\ns_subb_u32 {sT0}, {sJ}, 0\ns_lshl_b32 {sT0}, {sT0}, 4\ns_add_u32 {sT0}, {sT0}, {sI}\ns_lshl2_add_u32 {sT0}, {sT0}, {sWQ}')
            A(f's_cmp_eq_u32 {sJ}, 3\ns_cselect_b32 {sT0}, 0x10000, {sT0}\ns_lshl_b32 {sT1}, {sT0}, 11\ns_lshl_b32 {sT0}, {sT0}, 12\ns_mov_b32 m0, {JUNK}')
            for i in range(4): C.vm(f'buffer_load_dwordx4 {v_l16}, {sW2}, {sT0} offen offset:{1024*i} lds')
            for i in range(2): C.vm(f'buffer_load_dwordx4 {v_l16}, {sWO}, {sT1} offen offset:{1024*i} lds')
        if not F:
            A(f's_lshl2_add_u32 {sT0}, {sJ}, {sWQ}\ns_lshr_b32 {sT0}, {sT0}, 1\ns_lshl_b32 {sT0}, {sT0}, 10\ns_add_u32 m0, {sLb}, {L_PHI}\ns_waitcnt lgkmcnt(0)')
            C.vm(f'buffer_load_dwordx4 {v_l16}, {sPHI}, {sT0} offen lds')
        stampg(A, 4)
        if OPT['tk'] == -1:
            A('s_waitcnt lgkmcnt(0)'); mall()
        self.issue(1, hi=OPT['sp1'])
        stamp(A, 1); stampg(A, 5)
        C.wait(self.stok[0]); stampb(A, 1); stampg(A, 6); A('s_barrier')
        stampg(A, 7)
        stamp(A, 2)
        gq = [ACCL[16+4*i:20+4*i] for i in range(4)]; sg = ACCL[32:36]; ga, sa = T[4], T[5]; tm = ACCL[40:48]
        ldg = [f'buffer_load_dwordx4 {sg}, {sa}, {sWS}, {sE[0]} offen sc1']
        ldg += [f'buffer_load_dwordx4 {gq[i]}, {ga}, {sWS}, {[sE[1], sE[3], sE[4], sE[5]][i]} offen sc1' for i in range(4)]
        nm = OPT['nmF'] if F else OPT['nmA']
        B.free = [TS]
        tl = [int(c) for c in f'{OPT["tl"+self.typ]:09d}']
        tc = [0]
        def touch(n):
            for _ in range(n):
                i = tc[0]
                if i >= 18: return
                tc[0] += 1
                r = i if i < 14 else i - 14
                if r % 4 == 0 or _ == 0:
                    A(f's_lshr_b32 {sT0}, s2, 3\ns_lshl2_add_u32 {sT0}, {sT0}, {sWQ}\ns_mul_i32 {sT0}, {sT0}, {14336 if i < 14 else 4096}\ns_add_u32 {sT0}, {sT0}, {r//4*4096}\ns_mov_b32 m0, {JUNK}')
                C.vm(f'buffer_load_dwordx4 {v_l16}, {sW2 if i < 14 else sWO}, {sT0} offen offset:{(r % 4)*1024} lds')
        for k in range(9):
            if k == 3: stampc(A, 1)
            if k == 4: stampc(A, 8)
            if k == 0:
                A(f'ds_read_b32 {vt}, {vt}\nds_read_b64 {sgr[0:2]}, {sga}')
            if k == 0 or (k == 2 and OPT['rot'] == 2):
                lk = A.lab('CS')
                if OPT['rot'] == 2: A(f's_bitcmp1_b32 {sI}, 2\ns_cbranch_scc{1 if k == 0 else 0} {lk}')
                for q in range(4): A(f'ds_read_b64_tr_b16 {wfr[4*q:4*q+2]}, {ca[q]}')
                for q in range(4): A(f'v_add_u32 {ca[q]}, s5, {ca[q]}')
                for q in range(4): A(f'ds_read_b64_tr_b16 {wfr[4*q+2:4*q+4]}, {ca[q]}')
                A(f'{lk}:')
            if k == 0: self.issue(1, lo=OPT['sp1'])
            if k and OPT['spm'] >> (k-1) & 1: self.issue(k + 1, lo=OPT['sp0'])
            if k < 6: self.issue(k + 2, hi=OPT['sp0'] if OPT['spm'] >> k & 1 else 99)
            if k == 6:
                for i in range(4):
                    A(f's_add_u32 {sT0}, {sWQ}, {i}\ns_and_b32 {sT0}, {sT0}, 3\ns_lshl_b32 {sT0}, {sT0}, 10\nv_add_u32 {va[i]}, {sT0}, {v_l16}')
            if k == 3: stampc(A, 2)
            if k == OPT['stk']:
                A(f's_waitcnt lgkmcnt(0)\nv_readfirstlane_b32 {sTag}, {vt}')
                A('s_setprio 3')
                for q in range(4): A(f'v_mfma_f32_16x16x32_bf16 {cs[4*q:4*q+4]}, {ones}, {wfr[4*q:4*q+4]}, 0')
                tag_consts(A)
                A(f'v_lshrrev_b32 {t0}, 4, {l}\nv_lshl_add_u32 {t0}, {t0}, 26, {v_l16}')
                for q in range(4): A(f'v_bfi_b32 {cs[q]}, {ff}, {sTB[q]}, {cs[4*q]}')
                A(f's_setprio {OPT["lprio"]}')
                A(f'v_mov_b32 {sgr[2]}, {vt}\nv_mov_b32 {sgr[3]}, {vt}')
                A(f'v_and_b32 {ga}, 15, {l}\nv_lshlrev_b32 {ga}, 4, {ga}\nv_lshl_add_u32 {ga}, {g}, 10, {ga}\nv_and_b32 {sa}, 0x1f0, {v_l16}')
                A(f's_add_u32 {sE[3]}, {sE[1]}, 4096\ns_add_u32 {sE[4]}, {sE[1]}, 8192\ns_add_u32 {sE[5]}, {sE[1]}, 12288')
            if k == OPT['stk']:
                assert k <= OPT['pk'] and (k >= 2 or OPT['rot'] != 2)
                C.vm(f'buffer_store_dwordx4 {cs[0:4]}, {t0}, {sWS}, {sE[2]} offen sc1')
                C.vm(f'buffer_store_dwordx4 {sgr}, {sgs}, {sWS}, {sSpin} offen sc1')
            if k == OPT['tk']: mall()
            if k == OPT['c3'] and not F:
                A(f's_lshr_b32 {sT0}, s2, 4\ns_and_b32 {sT0}, {sT0}, 8\ns_and_b32 {sT1}, {sI}, 7\ns_add_u32 {sT0}, {sT0}, {sT1}\ns_lshl2_add_u32 {sT1}, {sT0}, {sWQ}\ns_mul_i32 {sT0}, {sT1}, {28*1024}\ns_mov_b32 m0, {JUNK}')
                for o in (0, 8192, 8192, 4096):
                    if o: A(f's_add_u32 {sT0}, {sT0}, {o}')
                    C.vm(f'buffer_load_dwordx4 {vb0}, {sW2}, {sT0} offen offset:384 lds')
                A(f's_lshl_b32 {sT1}, {sT1}, 13')
                C.vm(f'buffer_load_dwordx4 {vb0}, {sWO}, {sT1} offen offset:384 lds')
            plo, phi_, pa_ = ACCL[56:60], ACCL[60:64], T[6]
            if k == OPT['pk'] and not F:
                A(f'v_bfe_u32 {pa_}, {l}, 3, 2\nv_lshlrev_b32 {pa_}, 3, {pa_}\nv_and_b32 {t1}, 3, {l}\nv_lshl_add_u32 {pa_}, {t1}, 1, {pa_}')
                A(f'v_lshrrev_b32 {t1}, 5, {l}\nv_lshl_add_u32 {pa_}, {t1}, 8, {pa_}')
                A(f's_and_b32 {sT0}, {sWQ}, 1\ns_lshl_b32 {sT0}, {sT0}, 9\ns_add_u32 {sT0}, {sT0}, {sLb}\ns_add_u32 {sT0}, {sT0}, {L_PHI}\nv_add_u32 {pa_}, {sT0}, {pa_}')
                for j in range(8): A(f'ds_read_u16 {(phi_ if j & 1 else plo)[j//2]}, {pa_} offset:{32*j}')
            if k == OPT['pk'] + 1 and not F:
                L = [f'v_bfe_u32 {t1}, {l}, 2, 1', f'v_mul_u32_u24 {t1}, 0x8000, {t1}', f'v_lshl_or_b32 {t1}, {t1}, 16, {t1}']
                for rr in range(4): L += [f'v_lshl_or_b32 {plo[rr]}, {phi_[rr]}, 16, {plo[rr]}', f'v_xor_b32 {plo[rr]}, {plo[rr]}, {t1}']
                L += [f's_add_u32 {sT0}, {sLb}, {L_PHI}', f'v_add_u32 {pa_}, {sT0}, {v_l16}', f'ds_write_b128 {pa_}, {plo}']
                for x in L: A(x)
            if k == OPT['gat']:
                for s in ldg: tkg = C.vm(s)
            touch(tl[k])
            if 6 - nm <= k < 6: B.step()
            if k == 6: B.free += [X0, X1]
            if k == 7: B.free += [Y0, Y1]
            if k in (6, 7) and (k != OPT['chk'] or OPT['qf']): B.quota(OPT[f'q{k}{self.typ}'])
            if k == OPT['chk']:
                C.wait(tkg)
                def chk():
                    for i in range(4): quad_diff(A, gq[i], tm[i], tm[4+i])
                    A(f'v_bitop3_b32 {tm[4]}, {sg[2]}, {sg[3]}, {sTag} bitop3:0x7e')
                    A(f'v_or3_b32 {tm[0]}, {tm[0]}, {tm[1]}, {tm[2]}\nv_or3_b32 {tm[0]}, {tm[0]}, {tm[3]}, {tm[4]}\nv_cmp_ne_u32 vcc, 0, {tm[0]}\ns_and_b64 s[4:5], vcc, exec')
                poll(A, '\n'.join(ldg), chk, first_loaded=True, sleep=OPT['slp'])
                L = []
                for i in range(4):
                    for r in range(4): L.append(f'v_and_b32 {gq[i][r]}, 0xffffff00, {gq[i][r]}')
                x = gq[0]
                for r in range(4): L += [f'v_add_f32 {x[r]}, {x[r]}, {gq[1][r]}', f'v_add_f32 {gq[2][r]}, {gq[2][r]}, {gq[3][r]}', f'v_add_f32 {x[r]}, {x[r]}, {gq[2][r]}']
                L += [f'v_permlane32_swap_b32 {x[0]}, {x[2]}', f'v_permlane32_swap_b32 {x[1]}, {x[3]}', f'v_add_f32 {x[0]}, {x[0]}, {x[2]}', f'v_add_f32 {x[1]}, {x[1]}, {x[3]}',
                      f'v_permlane16_swap_b32 {x[0]}, {x[1]}', f'v_add_f32 {x[0]}, {x[0]}, {x[1]}']
                L += [f's_lshl_b32 {sT0}, {sWQ}, 8', f's_add_u32 {sT0}, {sT0}, {L_CS}', f'v_lshl_add_u32 {ga}, {l}, 2, {sT0}', f'ds_write_b32 {ga}, {x[0]}']
                L += [f's_lshl_b32 {sT1}, {sWQ}, 7', f's_add_u32 {sT1}, {sT1}, {L_NM}', f'v_lshrrev_b32 {sa}, 2, {sa}', f'v_add_u32 {sa}, {sT1}, {sa}',
                      f'v_sub_f32 {sg[0]}, 0, {sg[0]}', f'v_mul_f32 {sg[2]}, {f2u(-LOG2E if F else LOG2E):#x}, {sg[1]}',
                      f'ds_write_b32 {sa}, {sg[0]}', f'ds_write_b32 {sa}, {sg[2]} offset:512']
                if not F: L.append(f'ds_write_b32 {sa}, {sg[1]} offset:1024')
                emit_sched(A, L)
                if k in (6, 7) and not OPT['qf']: B.quota(OPT[f'q{k}{self.typ}'])
            if k == 0: stampg(A, 8)
            if k == 1: stampg(A, 10)
            if k < 8:
                if k < 7: C.wait(self.stok[k+1], 'lgkmcnt(0)')
                else: A('s_waitcnt lgkmcnt(0)')
                G.done = G.n
                if k == 0: stampg(A, 9)
                if k == 3: stampc(A, 3)
                stampb(A, 2 + k)
                A('s_barrier')
                if k == 3: stampc(A, 4)
        stamp(A, 5)
        if OPT['lprio']: A('s_setprio 0')
        if OPT['dbg'] & (1 if F else 2):
            A(f's_mov_b32 {sW2[2]}, 0\ns_mov_b32 {sWO[2]}, 0')
        if OPT['dbg'] & 4 and F:
            A('s_sleep 60')
        B.wleft = list(range(4 - OPT['wol' + self.typ], 4))
        def wo(ks):
            for k in ks:
                if k not in B.wleft:
                    for f in B.wo_list(k): f()
        A(f's_and_b32 {sF[2]}, {sI2}, 2')
        B.dep = OPT['dep' + self.typ]
        wob = OPT['wob'] if F else OPT['wobA']
        stampe(A, 1)
        B.flush()
        while B.next < wob and B.step():
            if B.next % 2 == 1 and B.next > 2: stampe(A, 2 + (B.next-3)//2)
        wo([0, 1])
        stampe(A, 8)
        while B.step(): pass
        wo([2, 3])
        stampe(A, 9)
        assert not B.fly
        stamp(A, 6)
        return B

def p2_L(A, B0, typ):
    l = lane; C = Ctx(A); G = LG(A)
    B = BP(A, C, G); B.slot = dict(B0.slot); B.tokwo = 0
    stamp(A, 7); stampe(A, 10)
    spoll(A, sF[1], 4, OPT['slph'])
    stamp(A, 9); stampf(A, 0)
    tok = {}
    def a_off(s): return [nib(sE[1], s), f's_lshl_b32 {sE[1]}, {sE[1]}, 12', f's_add_u32 {sE[1]}, {sE[1]}, {sAb}']
    def ld_a(s, tt):
        tok[(s, tt)] = C.vm(f'buffer_load_dwordx4 {RS[8 + s % 3][4*tt:4*tt+4]}, {va[tt]}, {sWS}, {sE[1]} offen sc1')
    la = OPT['la' + typ]
    seq = [(s, tt) for s in range(14) for tt in ([1, 2, 3, 0] if s == 13 else [0, 1, 2, 3])]
    for n in range(la):
        if n % 4 == 0:
            for x in a_off(n // 4): A(x)
        ld_a(*seq[n])
    s2 = (32 - la) // 4
    A(f's_add_u32 {sF[1]}, {sF[1]}, 8192\ns_add_u32 {sE[3]}, {sTag}, 4')
    G.done = G.n
    tokB = {k: 0 for k in range(8)}
    Q = []; X = []
    for k in B0.wleft: X += B.wo_list(k)
    sig = False
    wa, t, a, vm_ = [RS[0][i] for i in range(4)]; ra = [RS[0][4+i] for i in range(3)]; c = RS[1]; W = []
    tail = [f's_add_u32 {sT0}, {sLb2}, {Y0}', f'v_add_u32 {wa}, {sT0}, {v_l16}']
    for sg in range(1, 4):
        tail += [f's_sub_u32 {sT0}, {sWQ}, {sg}', f's_and_b32 {sT0}, {sT0}, 3', f's_lshl_b32 {sT0}, {sT0}, 12', f's_add_u32 {sT0}, {sT0}, {Y0 + 16384*(sg-1)}', f'v_add_u32 {ra[sg-1]}, {sT0}, {v_l16}']
    tail += [f'v_mov_b32 {c[0]}, {f2u(-LOG2E):#x}', f'v_mov_b32 {c[1]}, {c[0]}', f'v_mov_b32 {c[2]}, 1.0', f'v_mov_b32 {c[3]}, 1.0', f'v_add_u32 {a}, {sLb2}, {v_l16}', f'v_mov_b32 {vm_}, {L_TAG}', f'v_mov_b32 {t}, 1']
    for s in range(14):
        Bk = RS[RSL[s]]; Ak = RS[8 + s % 3]
        if s == s2 - 3: A(f's_mov_b32 {sE[2]}, 0\ns_atomic_add {sE[2]}, {sWS[0:2]}, {sF[1]} glc')
        if s == s2:
            lk = A.lab('H2')
            G.all()
            A(f's_cmp_eq_u32 {sE[2]}, {sE[3]}\ns_cbranch_scc1 {lk}')
            A(f's_mov_b32 {sE[4]}, {sT0}\ns_mov_b32 {sE[5]}, {sT1}')
            spoll(A, sF[1], 4, OPT['slph'])
            A(f's_mov_b32 {sT0}, {sE[4]}\ns_mov_b32 {sT1}, {sE[5]}')
            A(f'{lk}:')
        G.need(tokB[LOAD.index(s)], 0)
        nx = 0
        order = [1, 2, 3, 0] if s == 13 else [0, 1, 2, 3]
        for ti, tt in enumerate(order):
            nl = 4*s + ti + la
            S = a_off(nl // 4) if (nl % 4 == 0 and nl < 56) else []
            C.wait(tok[(s, tt)])
            if not sig and not X and tok[(s, tt)] > B.tokwo and (s == 0 or s > 4):
                if s == 0: A(f's_mov_b64 exec, 1\nds_add_u32 {pm}, {p1} offset:4\ns_mov_b64 exec, -1')
                else: A(f'v_mov_b32 {vb0}, {L_TAG}\nv_mov_b32 {vb1}, 1\ns_mov_b64 exec, 1\nds_add_u32 {vb0}, {vb1} offset:4\ns_mov_b64 exec, -1')
                G.n += 1; sig = True
            for q in range(4):
                ac = ACCL[16*tt+4*q:16*tt+4*q+4]
                A(f'v_mfma_f32_16x16x32_bf16 {ac}, {Bk[4*q:4*q+4]}, {Ak[4*tt:4*tt+4]}, {ac if s else 0}')
                if S: A(S.pop(0))
                elif q == 1 and X and nx < (4 if s == 3 else OPT['wper']): X.pop(0)(); nx += 1
                if Q and q < 3:
                    tokB[qk] = G.ds(Q.pop(0))
                elif s >= 10 and tail: A(tail.pop(0))
                if s == 13:
                    if tt: W.append(f'ds_write_b128 {wa}, {ac} offset:{16384*(tt-1) + 1024*q}')
                    if 4*ti + q >= 4 + OPT['wdel']: A(W.pop(0))
            if nl < 56: ld_a(*seq[nl])
        assert not Q
        if s in (0, 1, 3, 5, 7, 9, 11, 13): stampf(A, 1 + (s+1)//2)
        if s == 2:
            while len(X) % 4: X.pop(0)()
            G.need(tokB[8]); X = B.dma_list(13, B.slot[8]) + X
        if s == 3:
            while len(X) % 4: X.pop(0)()
        if s + 8 < 13: qk = s + 8; Q = B.trl(qk)
        if s == 8:
            assert tok[(8, 3)] > B.tok[13]
            qk = 13; Q = B.trl(13)
    assert sig and not tail and not X
    for x in W: A(x)
    stamp(A, 10)
    A(f's_mov_b64 exec, 1\nds_add_u32 {vm_}, {t} offset:8\ns_mov_b64 exec, -1')
    lds_spin(A, vm_, 8, 4, t)
    stampf(A, 9)
    for u in range(4):
        for sg in range(3): A(f'ds_read_b128 {RS[2+sg][4*u:4*u+4]}, {ra[sg]} offset:{1024*u}')
    P = ACCL[0:16]; e = ACCL[16:32]
    for u in range(4):
        A(f's_waitcnt lgkmcnt({9 - 3*u})')
        for i in (2*u, 2*u+1):
            A(f'v_pk_add_f32 {P[2*i:2*i+2]}, {P[2*i:2*i+2]}, {RS[2][2*i:2*i+2]}\nv_pk_add_f32 {RS[3][2*i:2*i+2]}, {RS[3][2*i:2*i+2]}, {RS[4][2*i:2*i+2]}')
        for i in (2*u, 2*u+1): A(f'v_pk_add_f32 {P[2*i:2*i+2]}, {P[2*i:2*i+2]}, {RS[3][2*i:2*i+2]}')
    L = []
    for u in range(4):
        for i in (2*u, 2*u+1): L.append(f'v_pk_mul_f32 {e[2*i:2*i+2]}, {P[2*i:2*i+2]}, {c[0:2]}')
        for i in range(4*u, 4*u+4): L.append(f'v_exp_f32 {e[i]}, {e[i]}')
        for i in (2*u, 2*u+1): L.append(f'v_pk_add_f32 {e[2*i:2*i+2]}, {e[2*i:2*i+2]}, {c[2:4]}')
        for i in range(4*u, 4*u+4): L.append(f'v_rcp_f32 {e[i]}, {e[i]}')
        for i in (2*u, 2*u+1): L.append(f'v_pk_mul_f32 {e[2*i:2*i+2]}, {e[2*i:2*i+2]}, {P[2*i:2*i+2]}')
        L.append(f'ds_write_b128 {a}, {e[4*u:4*u+4]} offset:{X0 + 1024*u}')
    emit_sched(A, L)
    A('s_waitcnt lgkmcnt(0)')
    stamp(A, 8); stampf(A, 10)
    A('s_barrier')

def kernel(A):
    K = NAME + '_kernel'
    l = lane
    A(f'.globl {K}\n.p2align 8\n.type {K},@function\n{K}:')
    if OPT['stamp']: A(f's_memrealtime s[72:73]' if OPT['stamp'] < 3 else 's_memtime s[72:73]')
    A(f's_load_dwordx2 {sX[0:2]}, s[0:1], 0')
    A(f's_bitcmp1_b32 s2, 6\ns_cselect_b32 s7, 40, 8')
    A(f's_load_dwordx2 {sW[0:2]}, s[0:1], s7')
    A(f's_load_dwordx2 {sWS[0:2]}, s[0:1], 72')
    if OPT['warm']:
        A(f'v_lshlrev_b32 v2, {OPT["warm"]}, v0\ns_waitcnt lgkmcnt(0)')
        stampg(A, 1)
        A(f'global_load_dword v255, v2, {sX[0:2]}\nglobal_load_dword v255, v2, {sW[0:2]}')
    A(f's_movk_i32 {sLrow}, 3072\ns_cmovk_i32 {sLrow}, 3584\ns_movk_i32 {sWb}, 128\ns_cmovk_i32 {sWb}, 448\ns_cselect_b32 s3, 2, 0')
    A('s_lshr_b32 s4, s2, 8\ns_cbranch_scc1 K_done')
    rho, t, k = R('v',13,1), R('v',14,1), R('v',15,1)
    A(f'v_readfirstlane_b32 {sLb}, v0\ns_lshr_b32 s5, s2, 3')
    if OPT['touch'] & 1:
        A(f's_getpc_b64 s[6:7]\nL_pc:')
        A(f's_lshl_b32 s4, s5, 11\nv_lshl_add_u32 v2, v0, 2, s4\nv_min_u32 v2, K_done-L_pc, v2')
        A(f'global_load_dword v255, v2, s[6:7]')
    fx, fw = OPT['flip'] & 2, OPT['flip'] & 1
    sLx, sLw = sE[4], sE[5]
    A(f'v_lshrrev_b32 {t}, 4, v0\nv_xor_b32 {k}, {t}, v0\nv_and_b32 {k}, 7, {k}\nv_lshlrev_b32 {k}, 4, {k}\nv_lshrrev_b32 {rho}, 3, v0')
    A(f'v_lshl_add_u32 {vx0}, {rho}, 10, {k}')
    A(f's_and_b32 s4, s5, 7\ns_and_b32 s6, s2, 1\ns_lshl3_add_u32 {sI}, s6, s4\ns_lshr_b32 s6, s2, 6\ns_lshr_b32 s7, s2, 1')
    assert OPT['rot'] == 4
    if fx: A(f's_lshr_b32 s5, s2, 2\ns_and_b32 s5, s5, 1\ns_add_u32 s5, s5, s4\ns_lshl1_add_u32 s5, s6, s5')
    else: A(f's_add_u32 s5, s4, s6')
    A(f's_and_b32 s5, s5, 3\ns_xor_b32 {sRot}, s7, s2\ns_and_b32 {sRot}, {sRot}, 1\ns_lshl2_add_u32 {sRot}, {sRot}, s5')
    A(f's_and_b32 s7, s7, 3\ns_lshl2_add_u32 {sJJ}, s7, s6')
    b0 = phys(0)
    A(f's_lshl_b32 {sXb}, {sI}, 17\ns_lshl_b32 {sXo}, {sRot}, 7\ns_add_u32 {sXo}, {sXo}, {sXb}')
    A(f's_lshl_b32 {sX[2]}, 1, 21\ns_lshl_b32 {sX[3]}, 1, 17\ns_lshl_b32 {sLb}, {sLb}, 4')
    if fx:
        A(f's_lshr_b32 s5, s2, 7\ns_lshl_b32 s7, s5, 15\nv_xor_b32 {vx0}, s7, {vx0}\ns_lshl_b32 s5, s5, 12\ns_xor_b32 {sLx}, {sLb}, s5')
    else: sLx = sLb
    A(f'v_add_u32 {vx1}, 0x10000, {vx0}\ns_add_u32 m0, {sLx}, {b0}')
    A(f'v_lshlrev_b32 {v_l16}, 4, v0\nv_and_b32 v9, 0xfffffe00, {v_l16}\nv_add_u32 v9, v9, {v_l16}\ns_lshl_b32 {sE[0]}, {sJJ}, 13\ns_add_u32 {sE[0]}, {sE[0]}, {sXb}')
    A(f's_cmp_ge_u32 {sLb}, 4096')
    if not OPT['warm']: stampg(A, 1)
    A('s_waitcnt lgkmcnt(0)')
    stampg(A, 2)
    A('s_cbranch_scc1 K_norow')
    A(f's_load_dword {sTag}, {sWS[0:2]}, {EPOCH}')
    A(f'buffer_load_dwordx4 {xrow[0:4]}, v9, {sX}, {sE[0]} offen\nbuffer_load_dwordx4 {xrow[4:8]}, v9, {sX}, {sE[0]} offen offset:512')
    A('K_norow:')
    A(f'buffer_load_dwordx4 {vx0}, {sX}, {sXo} offen lds')
    A(f's_add_u32 m0, {sLx}, {b0+8192}\ns_lshr_b32 {sJ}, {sJJ}, 1\nbuffer_load_dwordx4 {vx1}, {sX}, {sXo} offen lds')
    A(f'v_bfi_b32 {k}, 2, {rho}, {t}\nv_and_b32 {k}, 6, {k}\nv_xor_b32 {k}, {k}, v0\nv_and_b32 {k}, 7, {k}\nv_lshlrev_b32 {k}, 4, {k}')
    if fw: A(f's_and_b32 s5, s2, 32\nv_xor_b32 {rho}, s5, {rho}\ns_lshl_b32 s5, s5, 7\ns_xor_b32 {sLw}, {sLb}, s5')
    else: sLw = sLb
    A(f'v_mad_u32_u24 {vw}, {rho}, {sLrow}, {k}')
    A(f's_mul_i32 {sWb}, {sWb}, {sJ}\ns_add_u32 {sWb}, {sWb}, 64\ns_and_b32 {sWb}, {sWb}, 0xffffff80')
    A(f's_lshl_b32 {sW[2]}, {sLrow}, 9\ns_mov_b32 {sW[3]}, {sX[3]}\ns_lshl_b32 {sT0}, {sRot}, 6\ns_mul_i32 {sT0}, {sT0}, {sLrow}\ns_add_u32 {sWo}, {sT0}, {sWb}')
    A(f's_add_u32 m0, {sLw}, {b0+16384}\ns_cmp_eq_u32 s3, 0\nbuffer_load_dwordx4 {vw}, {sW}, {sWo} offen lds')
    A(f's_cselect_b32 {sE[2]}, 10, 7\ns_lshl_b32 {sE[2]}, 1, {sE[2]}\ns_add_u32 {sE[3]}, {sWo}, {sE[2]}')
    A(f's_add_u32 m0, {sLw}, {b0+24576}\ns_add_u32 {sE[2]}, {sE[3]}, {sE[2]}\nbuffer_load_dwordx4 {vw}, {sW}, {sE[3]} offen lds')
    A(f's_add_u32 m0, {sLw}, {b0+32768}\ns_lshr_b32 {sWV}, {sLb}, 10\nbuffer_load_dwordx4 {vw}, {sW}, {sE[2]} offen lds')
    A(f'v_and_b32 v1, 63, v0\nv_lshlrev_b32 {v_l16}, 4, v1')
    if OPT['stamp']:
        for i in range(3 if OPT['stamp'] == 7 else 1, NS): A(f's_mov_b64 s[{72+2*i}:{73+2*i}], 0')
    A(f's_lshl_b32 {sWS[2]}, 1, 24\ns_mov_b32 {sWS[3]}, {sX[3]}')
    A(f's_and_b32 {sWQ}, {sWV}, 3\ns_lshr_b32 s4, {sWV}, 2\ns_add_u32 s3, s3, s4')
    stampg(A, 3)
    A('s_cmp_eq_u32 s3, 1\ns_cbranch_scc1 K_LA\ns_cmp_eq_u32 s3, 0\ns_cbranch_scc1 K_CA\ns_cmp_eq_u32 s3, 2\ns_cbranch_scc1 K_CF')
    Bs = []
    for typ in 'FA':
        A(f'K_L{typ}:')
        Bs.append(LW(A, typ).run())
        p2_L(A, Bs[-1], typ); A('s_branch K_end')
    A('K_CF:')
    c = CW(A, 'F'); c.prologue(); c.main(); c.epi_F()
    A('s_branch K_C2')
    A('K_CA:')
    c = CW(A, 'A'); c.prologue(); c.main(); c.epi_A()
    A('K_C2:')
    p2_C(A)
    A('K_end:')
    stamp_out(A)
    A('K_done:\ns_endpgm')

def build():
    A = Asm(); kernel(A)
    body = fix_hazards(A.L, verbose=True)
    if OPT['al']: body = align8(body, verbose=True)
    K = NAME + '_kernel'
    hdr = ['; @launch grid=(256,1,1) block=(512,1,1) lds=163840', '.amdgcn_target "amdgcn-amd-amdhsa--gfx950"', '.text']
    tail = ['.section .rodata,"a"', '.p2align 6', f'''.amdhsa_kernel {K}
  .amdhsa_next_free_vgpr 256
  .amdhsa_next_free_sgpr 102
  .amdhsa_accum_offset 256
  .amdhsa_group_segment_fixed_size 0
  .amdhsa_kernarg_size 80
  .amdhsa_user_sgpr_count 2
  .amdhsa_user_sgpr_kernarg_segment_ptr 1
  .amdhsa_system_sgpr_workgroup_id_x 1
.end_amdhsa_kernel''']
    return '\n'.join(hdr + body + tail) + '\n'
if __name__ == '__main__':
    open(sys.argv[1], 'w').write(build())
```

```python
import sys, struct
from asmlib import *
NAME = 'recurrent_scan__linear_kernel_hedgehog__dense_activation_silu__prompt'
SZ_X, SZ_QKV, SZ_PHI, SZ_WO, SZ_W1, SZ_W2, SZ_OUT, SZ_WS = 2048*512*2, 512*1536*2, 32*16*16*2, 512*512*2, 512*1792*2, 1792*512*2, 2048*512*2, 0x1000000
EPOCH, STAT, KT, CSP, CNT, ACT, KP = 0, 0x8000, 0x10000, 0x40000, 0x80000, 0x100000, 0xB00000
OOB = 0x40000000
SB = 45056
def phys(s): return (2 - s % 3) * SB
X0, X1, WOB, Y0, Y1, TS, MISC = 0, 16384, 32768, 102400, 118784, 135168, 151552
L_NM, L_RL, L_R, L_CS, L_TAG = MISC, MISC+512, MISC+1024, MISC+1536, MISC+2560
L_SG, L_PHI = MISC+2624, MISC+4096
JUNK = MISC + 8192
LOG2E = 1.4426950408889634
def f2u(x): return struct.unpack('<I', struct.pack('<f', x))[0]
OPT = dict(stamp=0, touch=5, spin=1<<16, slp=2, hold=3, keep=8, nmA=0, nmF=0, n6A=2, n7A=2, n6F=2, n7F=2, sp0=6, wob=4, wobA=4, tlA=0, tlF=0, gat=5, chk=7, opoll=0, lprio=1, brot=0, npre=9, vmgap=64, dbg=0, hst=0, rot=4, lord=3, r2=0, j3=0, c3=5, flip=1, warm=0, qf=0, tk=2, pk=0, spm=3, stk=2, q6A=8, q7A=8, q6F=8, q7F=8, sp1=99, laA=11, laF=11, wdel=2, lag=3, wolA=0, wolF=4, wper=4, cprio=0, opk=1, depA=8, depF=8, al=1, ack1=0, ack2=0, slpa=0, slph=2, slpo=4, ost=1, hld=0, old=0, j3k=1, j3p=0, st='0000000', stl=0, stcp=0, sti=0, c3F=0, ph0=0, stub=1, stc=0, sc3=0, pa=12, ia=1, stbe=9, kva=1, lp2=0, xr=0, ph=2467, pa3=3, gs=55, ah=3, lpr=14, lpt=2, lpsA=0, lpsF=0, tto=0, qa=2, qb=1, Rk=1, Dk=0, Ro=1, Do=0, Rh=1, Dh=0, psl=5)
for a in sys.argv[2:]:
    k, v = a.split('='); assert k in OPT, k; OPT[k] = v if k == 'st' else int(v)

sX, sW, sWS, sPHI, sW2, sOUT, sWO = [R('s', 8+4*i, 4) for i in range(7)]
(sI, sJ, sWV, sWQ, sRot, sT0, sT1, sXo, sWo, sHo, sXb, sWb, sHb, sLb, sTag, sSpin,
 sI2, sJ2, sCur, sCurA, sBb, sAb, sLb2, sJJ, sLrow, sTB1, sTB2, sTB3) = [R('s', 36+i, 1) for i in range(28)]
sTB = [sTag, sTB1, sTB2, sTB3]
sM2 = R('s', 64, 2)
sE = [R('s', 66+i, 1) for i in range(6)]
NS = 12
sSel = [R('s', 96, 1), R('s', 97, 1)]; sF = [R('s', 98+i, 1) for i in range(4)]
lane = R('v', 1, 1)
v_l16 = R('v', 3, 1)
vx0, vx1, vw = R('v', 10, 1), R('v', 11, 1), R('v', 12, 1)
xrow = R('v', 240, 8)

class Ctx:
    def __init__(self, A): self.A = A; self.n = 0
    def vm(self, s):
        self.A(s); self.n += 1; return self.n
    def wait(self, tok, extra=''):
        k = min(self.n - tok, 63); assert k >= 0
        self.A(f's_waitcnt vmcnt({k}) {extra}'.strip())
class LG:
    def __init__(self, A): self.A = A; self.n = 0; self.done = 0
    def ds(self, s):
        self.A(s); self.n += 1; return self.n
    def need(self, tok, keep=None):
        if tok <= self.done: return
        k = min(self.n - tok, OPT['keep'] if keep is None else keep, 15)
        self.A(f's_waitcnt lgkmcnt({k})'); self.done = self.n - k
    def all(self):
        self.A('s_waitcnt lgkmcnt(0)'); self.done = self.n
def stamp(A, i):
    if OPT['stamp'] == 3: A(f's_memtime s[{72+2*i}:{73+2*i}]')
    elif OPT['stamp'] == 1 or (OPT['stamp'] and i == NS-1): A(f's_memrealtime s[{72+2*i}:{73+2*i}]')
def stampb(A, i):
    if OPT['stamp'] == 4: A(f's_memtime s[{72+2*i}:{73+2*i}]')
def stampe(A, i):
    if OPT['stamp'] == 5 and i < 11: A(f's_memtime s[{72+2*i}:{73+2*i}]')
def stampf(A, i):
    if OPT['stamp'] == 6 and i < 11: A(f's_memtime s[{72+2*i}:{73+2*i}]')
def stampg(A, i):
    if OPT['stamp'] == 7 and i < 11: A(f's_memtime s[{72+2*i}:{73+2*i}]')
def stampc(A, i):
    if OPT['stamp'] == 2: A(f's_memtime s[{72+2*i}:{73+2*i}]')
def stamp_out(A):
    if not OPT['stamp']: return
    A(f's_waitcnt vmcnt(0)')
    stamp(A, NS-1)
    A('s_waitcnt lgkmcnt(0)')
    A(f's_lshl_b32 s4, s2, 3\ns_add_u32 s4, s4, {sWV}\ns_lshl_b32 s4, s4, 7\ns_add_u32 s4, s4, {15*1024*1024}')
    A(f'v_lshlrev_b32 v2, 26, v1')
    for i in range(NS):
        A(f'v_mov_b32 v4, s{72+2*i}\nv_mov_b32 v5, s{73+2*i}\nbuffer_store_dwordx2 v[4:5], v2, {sWS}, s4 offen offset:{8*i}')
    A(f's_getreg_b32 s5, hwreg(HW_REG_XCC_ID)\ns_getreg_b32 s6, hwreg(HW_REG_HW_ID)\nv_mov_b32 v4, s5\nv_mov_b32 v5, s6\nbuffer_store_dwordx2 v[4:5], v2, {sWS}, s4 offen offset:96')
def srd(A, s, off, size):
    A(f's_load_dwordx2 {s[0:2]}, s[0:1], {off}\ns_mov_b32 {s[2]}, {size}\ns_mov_b32 {s[3]}, 0x20000')
def dpp_add(v, m): return f'v_add_f32_dpp {v}, {v}, {v} {m} row_mask:0xf bank_mask:0xf'
def emit_sched(A, L, name='', **kw):
    out, t, nops = sched(L, **kw)
    if name: print(f'  sched {name}: {len(out)} instrs, est {t} clk, nops {nops}')
    for x in out: A(x)
def poll(A, ld, check, first_loaded=False, sleep=1, mask_exec=False):
    l0, l1, l2 = A.lab('PL'), A.lab('PC'), A.lab('PD')
    A(f's_mov_b32 {sSpin}, {OPT["spin"]}')
    if first_loaded: A(f's_branch {l1}')
    A(f'{l0}:'); A(ld); A('s_waitcnt vmcnt(0)')
    if mask_exec: A('s_mov_b64 exec, -1')
    A(f'{l1}:')
    check()
    A(f's_cbranch_scc0 {l2}')
    if sleep: A(f's_sleep {sleep}')
    if mask_exec: A('s_mov_b64 exec, s[4:5]')
    A(f's_sub_u32 {sSpin}, {sSpin}, 1\ns_cbranch_scc0 {l0}')
    if mask_exec: A('s_mov_b64 exec, -1')
    A(f'{l2}:')
def chk_words(A, regs, tmp):
    def f():
        if len(regs) == 1: A(f'v_cmp_ne_u32 vcc, {sTag}, {regs[0]}')
        else:
            np_ = len(regs)//2
            for i in range(np_): A(f'v_bitop3_b32 {tmp[i]}, {regs[2*i]}, {regs[2*i+1]}, {sTag} bitop3:0x7e')
            i = 1
            while i < np_:
                if i + 1 < np_: A(f'v_or3_b32 {tmp[0]}, {tmp[0]}, {tmp[i]}, {tmp[i+1]}'); i += 2
                else: A(f'v_or_b32 {tmp[0]}, {tmp[0]}, {tmp[i]}'); i += 1
            A(f'v_cmp_ne_u32 vcc, 0, {tmp[0]}')
        A(f's_and_b64 s[4:5], vcc, exec')
    return f
def spoll(A, so, n, sleep):
    l0, l1 = A.lab('SP'), A.lab('SD')
    A(f's_add_u32 {sT1}, {sTag}, {n}\ns_mov_b32 {sSpin}, {OPT["spin"]}')
    A(f'{l0}:\ns_mov_b32 {sT0}, 0\ns_atomic_add {sT0}, {sWS[0:2]}, {so} glc\ns_waitcnt lgkmcnt(0)\ns_cmp_eq_u32 {sT0}, {sT1}\ns_cbranch_scc1 {l1}')
    if sleep: A(f's_sleep {sleep}')
    A(f's_sub_u32 {sSpin}, {sSpin}, 1\ns_cbranch_scc0 {l0}\n{l1}:')
def ppoll_pre(A, so, D, base, clear=True):
    if not D: return
    if clear:
        A('s_waitcnt lgkmcnt(0)')
        for d in range(D): A(f's_mov_b32 s{base+2*d}, {sTag}\ns_sub_u32 s{base+2*d+1}, {sTag}, 1')
def ppoll(A, so, n, D, base, sleep, pre=True):
    if not D: return spoll(A, so, n, sleep)
    l0, l1 = A.lab('PP'), A.lab('PQ')
    ppoll_pre(A, so, D, base, pre)
    A(f's_add_u32 {sT1}, {sTag}, {n}\ns_mov_b32 {sSpin}, {OPT["spin"]}')
    at = lambda d: f's_atomic_cmpswap s[{base+2*d}:{base+2*d+1}], {sWS[0:2]}, {so} glc'
    for d in range(1, D): A(at(d) + f'\ns_sleep {2*OPT["psl"]//D}')
    A(f'{l0}:')
    for d in range(D):
        A(at(d) + f'\ns_waitcnt lgkmcnt({D-1})\ns_cmp_eq_u32 s{base + 2*((d+1) % D)}, {sT1}\ns_cbranch_scc1 {l1}')
    A(f's_sub_u32 {sSpin}, {sSpin}, 1\ns_cbranch_scc0 {l0}\n{l1}:')
def sarrive(A, *sos):
    A(f's_waitcnt vmcnt(0)')
    for so in sos: A(f's_atomic_add {sLrow}, {sWS[0:2]}, {so}')
def cnt_i2(A, d, i2, extra):
    A(f's_lshr_b32 {d}, {i2}, 1\ns_lshl_b32 {d}, {d}, 14\ns_and_b32 s4, {i2}, 1\ns_lshl_b32 s4, s4, 11\ns_add_u32 {d}, {d}, s4\ns_add_u32 {d}, {d}, {CNT + extra}')
def quad_diff(A, q, d, t):
    A(f'v_perm_b32 {d}, {q[1]}, {q[0]}, {sSel[0]}\nv_perm_b32 {t}, {q[3]}, {q[2]}, {sSel[1]}\nv_bitop3_b32 {d}, {d}, {t}, {sTag} bitop3:0x96')
def tag_consts(A):
    A(f's_lshr_b32 {sTB1}, {sTag}, 8\ns_lshr_b32 {sTB2}, {sTag}, 16\ns_lshr_b32 {sTB3}, {sTag}, 24')
    A(f's_mov_b32 {sSel[0]}, 0x0c0c0400\ns_mov_b32 {sSel[1]}, 0x04000c0c')
def tag_quad(q, ff): return [f'v_bfi_b32 {q[k]}, {ff}, {sTB[k]}, {q[k]}' for k in range(4)]
def lds_spin(A, va, off, n, vt):
    l0, l1 = A.lab('LS'), A.lab('LD')
    A(f's_mov_b32 {sSpin}, {OPT["spin"]*4}')
    A(f'{l0}:\nds_read_b32 {vt}, {va} offset:{off}\ns_waitcnt lgkmcnt(0)\nv_readfirstlane_b32 {sT0}, {vt}\ns_cmp_ge_u32 {sT0}, {n}\ns_cbranch_scc1 {l1}')
    A(f's_sleep 1\ns_sub_u32 {sSpin}, {sSpin}, 1\ns_cbranch_scc0 {l0}\n{l1}:')
def lds_inc(A, va, off, vt):
    A(f'v_mov_b32 {vt}, 1\ns_mov_b64 exec, 1\nds_add_u32 {va}, {vt} offset:{off}\ns_mov_b64 exec, -1')
def p2_ids(A):
    A(f's_and_b32 s4, s2, 7\ns_lshr_b32 s5, s2, 3')
    A(f's_lshl_b32 s4, s4, 2\ns_lshr_b32 s6, s5, 3\ns_add_u32 {sI2}, s4, s6\ns_and_b32 {sJ2}, s5, 7')
def tr_addr(A, vab, base, t0, t1):
    l = lane
    A(f'v_lshrrev_b32 {t0}, 2, {l}\nv_lshlrev_b32 {t0}, 7, {t0}\nv_and_b32 {t1}, 3, {l}\nv_lshl_add_u32 {t0}, {t1}, 3, {t0}\nv_add_u32 {t0}, {base}, {t0}')
    A(f'v_bfe_u32 {t1}, {l}, 3, 2')
    for q in range(4):
        A(f'v_xor_b32 {vab[q]}, {q}, {t1}\nv_lshl_add_u32 {vab[q]}, {vab[q]}, 5, {t0}')

def stouch(A, lo, hi, junk='s3'):
    if lo < min(hi, 36): A(f's_lshl2_add_u32 s6, s2, {sWQ}\ns_lshl_b32 s7, s6, 9\ns_mul_i32 s6, s6, 1792')
    for i in range(lo, min(hi, 72 if OPT['sc3'] else 36)):
        if i == max(lo, 36): A(f's_lshr_b32 s6, s2, 3\ns_lshl2_add_u32 s6, s6, {sWQ}\ns_lshl_b32 s7, s6, 12\ns_mul_i32 s6, s6, {14*1024}')
        if i < 28: A(f's_load_dword {junk}, {sW2[0:2]}, s6 offset:{64*i}')
        elif i < 36: A(f's_load_dword {junk}, {sWO[0:2]}, s7 offset:{64*(i-28)}')
        elif i < 64: A(f's_load_dword {junk}, {sW2[0:2]}, s6 offset:{(i-36)//2*1024 + 384 + 64*(i & 1)}')
        else: A(f's_load_dword {junk}, {sWO[0:2]}, s7 offset:{(i-64)//2*1024 + 384 + 64*(i & 1)}')
class CW:
    def __init__(self, A, typ):
        self.A = A; self.typ = typ
        self.C = Ctx(A); self.G = LG(A)
        self.V = Pool('v', 4, 256); self.V.at(9, 4); self.V.at(240, 16)
    def prologue(self):
        A, V, C, l, typ = self.A, self.V, self.C, lane, self.typ
        C.n = 7; tk_row = 2; self.tk0 = 7
        F = typ == 'F'
        srd(A, sOUT, 56, SZ_OUT)
        if OPT['stc']: A(f's_load_dwordx2 {sW2[0:2]}, s[0:1], 48')
        if not F: self.aphi = V.alloc(4, 4)
        self.ax = [V.alloc(), V.alloc()]
        self.aw = [V.alloc() for _ in range(6 if F else 1)]
        t, g, t0, t1, f = [R('v', 232+i, 1) for i in range(5)]
        b0 = phys(0)
        A(f'v_and_b32 {t}, 15, {l}\nv_lshrrev_b32 {g}, 4, {l}')
        A(f'v_lshrrev_b32 {t0}, 1, {t}\nv_xor_b32 {t0}, {t0}, {g}\nv_lshlrev_b32 {t0}, 4, {t0}\nv_lshl_add_u32 {t0}, {t}, 7, {t0}')
        if F: A(f's_lshl_b32 {sT0}, {sWQ}, 12\nv_add_u32 {t0}, {sT0}, {t0}')
        A(f'v_add_u32 {self.ax[0]}, {b0}, {t0}\nv_xor_b32 {t0}, 64, {t0}\nv_add_u32 {self.ax[1]}, {b0}, {t0}')
        A(f'v_lshrrev_b32 {f}, 3, {t}\nv_and_b32 {t0}, 1, {g}\nv_lshl_or_b32 {f}, {t0}, 1, {f}')
        A(f'v_lshrrev_b32 {t0}, 2, {t}\nv_lshlrev_b32 {t0}, 7, {t0}\nv_lshl_add_u32 {t0}, {g}, 10, {t0}\nv_and_b32 {t1}, 3, {t}\nv_lshl_add_u32 {t0}, {t1}, 3, {t0}\nv_add_u32 {t0}, {b0+16384}, {t0}')
        if not F:
            A(f'v_xor_b32 {t1}, {sWQ}, {f}\nv_lshl_add_u32 {self.aw[0]}, {t1}, 5, {t0}')
        else:
            for q in range(4): A(f'v_xor_b32 {t1}, {q}, {f}\nv_lshl_add_u32 {self.aw[q]}, {t1}, 5, {t0}')
            A(f'v_lshrrev_b32 {t0}, 2, {t}\nv_lshlrev_b32 {t0}, 6, {t0}\nv_lshl_add_u32 {t0}, {g}, 9, {t0}\nv_and_b32 {t1}, 3, {t}\nv_lshl_add_u32 {t0}, {t1}, 3, {t0}\nv_add_u32 {t0}, {b0+16384}, {t0}')
            A(f'v_and_b32 {f}, 1, {g}')
            for q in range(2): A(f'v_xor_b32 {t1}, {q}, {f}\nv_lshl_add_u32 {self.aw[4+q]}, {t1}, 5, {t0}')
        A(f's_lshl_b32 {sT0}, {sI}, 4\ns_add_u32 {sT0}, {sT0}, {sJJ}\ns_lshl2_add_u32 {sT0}, {sT0}, {sWQ}\ns_lshl_b32 {sT0}, {sT0}, 8\ns_add_u32 {sT0}, {sT0}, {CNT}')
        stampg(A, 4)
        A('s_waitcnt lgkmcnt(0)')
        stampg(A, 5)
        A(f's_mul_i32 {sTag}, {sTag}, 0x9E3779B1\ns_add_u32 {sTag}, {sTag}, 0x7F4A7C15\ns_mov_b32 {sSpin}, {sTag}')
        A(f's_atomic_swap {sSpin}, {sWS[0:2]}, {sT0} glc')
        if OPT['Rh'] > 1 or len(PH) > 2: A(f's_mov_b32 {sCurA}, {sTag}\ns_atomic_swap {sCurA}, {sWS[0:2]}, {sT0} offset:128 glc')
        if OPT['stcp'] == 0: stouch(A, 0, OPT['stc'], sCur)
        p2_ids(A)
        if not F: self.consts_A()
        tag_consts(A)
        A(f's_mov_b32 {sLrow}, 1')
        V.release(R('v', 240, 16), R('v', 9, 4))
        self.tk_row = tk_row
    def stats(self):
        A, C, l, tk_row = self.A, self.C, lane, self.tk_row
        x = R('v', 216, 16); o = R('v', 248, 4); t = R('v', 252, 1); ad = R('v', 253, 1); u = R('v', 254, 1)
        A(f's_lshl_b32 {sT0}, {sWQ}, 4\ns_add_u32 {sT0}, {sT0}, {L_SG}\nv_lshrrev_b32 {ad}, 5, {l}\nv_lshl_add_u32 {ad}, {ad}, 3, {sT0}')
        z = R('v', 232, 4)
        A(f'v_mov_b32 {u}, {L_TAG}\nv_mov_b32 {z[0]}, {sTag}\nv_mov_b32 {z[1]}, 0\nv_mov_b32 {z[2]}, 0\nv_mov_b32 {z[3]}, 0\nds_write_b128 {u}, {z}')
        stampg(A, 6)
        if OPT['stcp'] == 1: stouch(A, 0, OPT['stc'], sCur)
        C.wait(tk_row)
        stampg(A, 7)
        for i in range(8): A(f'v_lshlrev_b32 {x[2*i]}, 16, {xrow[i]}\nv_and_b32 {x[2*i+1]}, 0xffff0000, {xrow[i]}')
        y = xrow
        for i in range(4): A(f'v_pk_add_f32 {y[2*i:2*i+2]}, {x[4*i:4*i+2]}, {x[4*i+2:4*i+4]}')
        A(f'v_pk_add_f32 {y[0:2]}, {y[0:2]}, {y[2:4]}\nv_pk_add_f32 {y[4:6]}, {y[4:6]}, {y[6:8]}\nv_pk_add_f32 {y[0:2]}, {y[0:2]}, {y[4:6]}\nv_add_f32 {o[0]}, {y[0]}, {y[1]}')
        def hsum(v):
            for m in ('quad_perm:[1,0,3,2]', 'quad_perm:[2,3,0,1]', 'row_half_mirror', 'row_mirror'): A(dpp_add(v, m))
            A(f'v_mov_b32 {t}, {v}\nv_permlane16_swap_b32 {v}, {t}\nv_add_f32 {v}, {v}, {t}')
        hsum(o[0])
        A(f'v_mul_f32 {o[0]}, {f2u(1/512):#x}, {o[0]}')
        for i in range(16): A(f'v_sub_f32 {x[i]}, {x[i]}, {o[0]}')
        A(f'v_pk_mul_f32 {y[0:2]}, {x[0:2]}, {x[0:2]}\nv_pk_mul_f32 {y[2:4]}, {x[2:4]}, {x[2:4]}')
        for i in range(2, 8): A(f'v_pk_fma_f32 {y[2*(i&1):2*(i&1)+2]}, {x[2*i:2*i+2]}, {x[2*i:2*i+2]}, {y[2*(i&1):2*(i&1)+2]}')
        A(f'v_pk_add_f32 {y[0:2]}, {y[0:2]}, {y[2:4]}\nv_add_f32 {o[2]}, {y[0]}, {y[1]}')
        hsum(o[2])
        A(f'v_mov_b32 {o[1]}, {f2u(1e-5):#x}\nv_fmac_f32 {o[1]}, {f2u(1/512):#x}, {o[2]}\nv_rsq_f32 {o[1]}, {o[1]}')
        stampg(A, 8)
        A(f'ds_write_b64 {ad}, {o[0:2]}')
    def consts_A(self):
        A, V, l = self.A, self.V, lane
        t0, t1, val, key = [R('v', 232+i, 1) for i in range(4)]
        self.sel16 = V.alloc(16, 4)
        self.bsel = [self.sel16[0:4], self.sel16[4:8]]; self.zsel = [self.sel16[8:12], self.sel16[12:16]]
        A(f'v_and_b32 {t1}, 1, {l}\nv_lshlrev_b32 {t1}, 4, {t1}\nv_mov_b32 {val}, 0x3f80\nv_lshlrev_b32 {val}, {t1}, {val}')
        A(f'v_bfe_u32 {key}, {l}, 1, 2\nv_bfe_u32 {t1}, {l}, 4, 1\nv_lshl_or_b32 {key}, {t1}, 2, {key}')
        A(f'v_lshrrev_b32 {t1}, 2, {l}\nv_xor_b32 {t1}, {t1}, {l}\nv_and_b32 {t1}, 8, {t1}\nv_or_b32 {key}, {key}, {t1}')
        for T in range(2):
            for rr in range(4):
                A(f'v_cmp_eq_u32 vcc, {rr + 4*T}, {key}\nv_cndmask_b32 {self.bsel[T][rr]}, 0, {val}, vcc')
        A(f'v_and_b32 {key}, 15, {l}\nv_mov_b32 {val}, 0x3f803f80')
        for m in range(2):
            A(f'v_cmp_eq_u32 vcc, {4*m if OPT["kva"] else m}, {key}\nv_cndmask_b32 {self.zsel[m][0]}, 0, {val}, vcc')
            for rr in range(1, 4): A(f'v_mov_b32 {self.zsel[m][rr]}, {self.zsel[m][0]}')
    def rd_w(self, dst, u, kk):
        b, q = self.units[u]
        return [f'ds_read_b64_tr_b16 {dst[2*hf:2*hf+2]}, {self.aw[q]} offset:{b*8192 + (kk*4096 + hf*512 if b < 3 else kk*2048 + hf*256)}' for hf in range(2)]
    def rd_x(self, dst, tt, kk): return [f'ds_read_b128 {dst}, {self.ax[kk]} offset:{tt*2048}']
    def main(self):
        A, V, C, G, typ = self.A, self.V, self.C, self.G, self.typ
        F = typ == 'F'
        if F:
            self.ntt = 2; self.units = [(b, q) for b in range(3) for q in range(4)] + [(3, 4), (3, 5)]
        else:
            self.ntt = 8; self.units = [(0, 0), (1, 0), (2, 0)]
        nu = len(self.units)
        self.acc = [[V.alloc(4, 4) for u in range(nu)] for tt in range(self.ntt)]
        nr, nd = (nu, self.ntt) if F else (self.ntt, nu)
        self.Rg = [V.alloc(4, 4) for _ in range(nr)]
        self.Dg = [V.alloc(4*nd, 4) for _ in range(2)]
        rdR, rdD = (self.rd_w, self.rd_x) if F else (self.rd_x, self.rd_w)
        last_R, last_pre, fill = self.pre_epi()
        self.stats()
        if OPT['stub']:
            A('s_mov_b64 exec, 0')
            for c in range(3): A(f's_cmp_eq_u32 {sWQ}, {c}\ns_cbranch_scc1 WS_{typ}{c}')
            A(f's_branch WS_{typ}3')
            if not F: A(f'K_wret:\ns_cmp_lg_u32 s3, 0\ns_cbranch_scc1 WR_F')
            A(f'WR_{typ}:\ns_mov_b64 exec, -1')
        if OPT['stcp'] == 2: stouch(A, 0, OPT['stc'], sCur)
        stamp(A, 1); stampg(A, 9)
        C.wait(self.tk0, 'lgkmcnt(0)'); stampg(A, 10); A('s_barrier')
        stampb(A, 1)
        stamp(A, 2)
        tokR = {}; tokD = {}
        Q = []
        def issue(k):
            for _ in range(k):
                if not Q: return
                s, key = Q.pop(0); tk = G.ds(s)
                if key: (tokR if key[0] == 'R' else tokD)[key[1:]] = tk
        def kq(L, key): return [(s, key if i == len(L)-1 else None) for i, s in enumerate(L)]
        for d in range(nd): Q += kq(rdD(self.Dg[0][4*d:4*d+4], d, 0), ('D', 0, d))
        for j in range(nr): Q += kq(rdR(self.Rg[j], j, 0), ('R', 0, j))
        issue(12)
        for n in range(16):
            st, kk = n >> 1, n & 1
            pend = []
            blocked = kk == 1
            nD = []
            if n < 15:
                for d in range(nd): nD += kq(rdD(self.Dg[(n+1) & 1][4*d:4*d+4], d, kk ^ 1), ('D', n+1, d))
            else: nD = [(s, None) for s in last_pre]
            if blocked: pend += nD
            else: Q += nD
            adds = []
            if kk == 1 and st < 7:
                dlt = phys(st+1) - phys(st)
                adds = [f'v_add_u32 {r}, {dlt & 0xffffffff:#x}, {r}' for r in self.ax + self.aw]
            if n == 15: adds = list(self.pre_v)
            fl = list(fill.get(n, []))
            if n == 6: stampc(A, 1)
            if n == 8: stampc(A, 8)
            for j in range(nr):
                if blocked and j == OPT['hold']:
                    assert not Q
                    for a in adds: A(a)
                    adds = []
                    if n == 7: stampc(A, 2)
                    G.all()
                    if n == 7: stampc(A, 3)
                    A('s_barrier')
                    if n == 7: stampc(A, 4)
                    if n == 7: stamp(A, 3)
                    stampb(A, 2 + st)
                    blocked = False; Q += pend; pend = []
                for d in range(nd):
                    tt, u = (d, j) if F else (j, d)
                    G.need(max(tokR[(n, j)], tokD[(n, d)]))
                    w, x = (self.Rg[j], self.Dg[n & 1][4*d:4*d+4]) if F else (self.Dg[n & 1][4*d:4*d+4], self.Rg[j])
                    a, b = (x, w) if (not F and u == 2) else (w, x)
                    acc = self.acc[tt][u]
                    A(f'v_mfma_f32_16x16x32_bf16 {acc}, {a}, {b}, {acc if n else 0}')
                    if Q: issue(2 if len(Q) > 3 else 1)
                    elif adds:
                        A(adds.pop(0))
                        if adds: A(adds.pop(0))
                    elif fl: A(fl.pop(0))
                nw = kq(rdR(self.Rg[j], j, kk ^ 1), ('R', n+1, j)) if n < 15 else [(s, None) for s in last_R[j]]
                if blocked: pend += nw
                else: Q += nw
            for x in fl: A(x)
        issue(100)
        stampb(A, 10)
        stamp(A, 5)
        V.release(*self.ax); V.release(*self.aw)
    def pre_epi(self):
        A, V, l = self.A, self.V, lane
        if self.typ == 'F':
            at, ag = V.alloc(), V.alloc()
            A(f's_lshl_b32 {sT0}, {sWQ}, 7\ns_add_u32 {sT0}, {sT0}, {L_NM}\nv_and_b32 {at}, 15, {l}\nv_lshl_add_u32 {at}, {at}, 2, {sT0}')
            A(f'v_and_b32 {ag}, 48, {l}\nv_add_u32 {ag}, {L_CS}, {ag}')
            self.ms = [V.alloc(2) for _ in range(2)]; self.nr = [V.alloc(2) for _ in range(2)]
            pre = []
            for tt in range(2):
                pre += [f'ds_read2_b32 {self.ms[tt]}, {at} offset0:{16*tt} offset1:{16*tt}', f'ds_read2_b32 {self.nr[tt]}, {at} offset0:{128+16*tt} offset1:{128+16*tt}']
            lastR = [[f'ds_read_b128 {self.Rg[u]}, {ag} offset:{64*u}'] for u in range(14)]
            self.kL = V.alloc(2)
            A(f'v_mov_b32 {self.kL[0]}, {f2u(-LOG2E):#x}\nv_mov_b32 {self.kL[1]}, {self.kL[0]}')
            A(f's_lshl_b32 {sT0}, {sI}, 1\ns_lshr_b32 {sT1}, {sWQ}, 1\ns_add_u32 {sT0}, {sT0}, {sT1}')
            cnt_i2(A, sF[2], sT0, 1024)
            A(f's_lshr_b32 {sT1}, {sJ}, 1\ns_lshl_b32 {sT1}, {sT1}, 8\ns_add_u32 {sF[2]}, {sF[2]}, {sT1}')
            A(f's_mul_i32 {sT0}, {sT0}, 72\ns_mul_i32 {sT1}, {sJ}, 7\ns_add_u32 {sT0}, {sT0}, {sT1}\ns_lshl_b32 {sT0}, {sT0}, 12')
            A(f's_and_b32 {sT1}, {sWQ}, 1\ns_lshl_b32 {sF[0]}, {sT1}, 11\ns_add_u32 {sT0}, {sT0}, {sF[0]}\ns_add_u32 {sT0}, {sT0}, {ACT}')
            A(f's_and_b32 {sT1}, {sJ}, 1')
            A(f's_lshl_b32 {sF[0]}, {sT1}, 12\ns_add_u32 {sF[0]}, {sF[0]}, {sT0}')
            A(f's_xor_b32 {sT1}, {sT1}, 1\ns_mul_i32 {sT1}, {sT1}, {6*4096}\ns_add_u32 {sF[1]}, {sT0}, {sT1}')
            self.pre_v = []
            return lastR, pre, {}
        self.MR = [V.alloc(16, 4) for _ in range(4)]
        self.cv = V.alloc(2)
        R_ = self.Rg
        self.negm = [R_[T//2][2*(T & 1):2*(T & 1)+2] for T in range(8)]
        self.rl = [R_[4 + p//2][2*(p & 1):2*(p & 1)+2] for p in range(4)]
        self.ck, self.cq = R_[6], R_[7]
        D0 = self.Dg[0]
        a4, ag, a32, ac = D0[0], D0[1], D0[2], D0[3]
        pre_v = [f'v_and_b32 {a4}, 15, {l}', f'v_lshlrev_b32 {a4}, 2, {a4}', f'v_and_b32 {ag}, 48, {l}', f'v_and_b32 {a32}, 31, {l}',
                 f'v_add_u32 {ac}, {sF[3]}, {a4}', f'v_add_u32 {a4}, {L_NM}, {a4}', f'v_lshlrev_b32 {a32}, 2, {a32}', f'v_add_u32 {a32}, {L_RL}, {a32}',
                 f'v_add_u32 {D0[4]}, {sF[3]}, {ag}', f'v_add_u32 {ag}, {L_NM}, {ag}']
        A(f's_lshl_b32 {sF[3]}, {sWQ}, 6\ns_add_u32 {sF[3]}, {sF[3]}, {L_CS}')
        pre = [f'ds_read2_b32 {self.cv}, {ac} offset0:128 offset1:128']
        for p in range(4):
            for T in range(2):
                pre += [f'ds_read_b128 {self.MR[p][8*T:8*T+4]}, {ag} offset:{64*(2*p+T)}', f'ds_read_b128 {self.MR[p][8*T+4:8*T+8]}, {ag} offset:{1024+64*(2*p+T)}']
        lastR = [[f'ds_read2_b32 {self.negm[T]}, {a4} offset0:{16*T} offset1:{16*T}' for T in (2*j, 2*j+1)] for j in range(4)]
        lastR += [[f'ds_read2_b32 {self.rl[p]}, {a32} offset0:{32*p} offset1:{32*p}' for p in (2*j, 2*j+1)] for j in range(2)]
        lastR += [[f'ds_read_b128 {self.ck}, {D0[4]} offset:256'], [f'ds_read_b128 {self.cq}, {D0[4]}']]
        pre_v.append(f'v_add_u32 {D0[5]}, {sHo}, {v_l16}')
        A(f's_lshl_b32 {sHo}, {sWQ}, 10\ns_add_u32 {sHo}, {sHo}, {L_PHI}')
        pre.append(f'ds_read_b128 {self.aphi}, {D0[5]}')
        self.pre_v = pre_v
        e0, e1, e2, e3 = sE[0:4]
        A(f's_lshl_b32 {e2}, {sJ}, 2\ns_add_u32 {e2}, {e2}, {sWQ}\ns_mul_i32 {e3}, {e2}, {16*2176}\ns_add_u32 {e3}, {e3}, {KP}')
        A(f's_mul_i32 {e0}, {sI}, 2176\ns_add_u32 {e0}, {e0}, {e3}')
        A(f's_lshl2_add_u32 {sXb}, {sJJ}, {sWQ}\ns_lshl_b32 {sXb}, {sXb}, 8\ns_add_u32 {sXb}, {sXb}, {CNT}\ns_add_u32 {sWb}, {sXb}, {4*16384}')
        A(f's_and_b32 {sXo}, {sI}, {OPT["Rk"]-1}\ns_lshl_b32 {sXo}, {sXo}, 14\ns_add_u32 {sWo}, {sXo}, {sWb}\ns_add_u32 {sXo}, {sXo}, {sXb}')
        A(f's_lshl_b32 {sT0}, {sI}, 6\ns_add_u32 {e1}, {e3}, {sT0}')
        A(f's_mul_i32 {e2}, {e2}, 2176\ns_add_u32 {e2}, {e2}, {KT}\ns_add_u32 {e3}, {e2}, {sT0}')
        A(f's_cmp_eq_u32 {sI}, 0\ns_cselect_b32 {sE[4]}, {e1}, {OOB}\ns_cselect_b32 {sE[5]}, {e3}, {OOB}\ns_cselect_b64 {sM2}, -1, 0')
        A(f's_mul_i32 {sF[0]}, {sI}, {2*72*4096}\ns_lshl_b32 {sT0}, {sJ}, 11\ns_add_u32 {sF[0]}, {sF[0]}, {sT0}\ns_lshl_b32 {sT0}, {sWQ}, 9\ns_add_u32 {sF[0]}, {sF[0]}, {sT0}\ns_add_u32 {sF[0]}, {sF[0]}, {ACT + 56*4096}')
        A(f's_lshl_b32 {sF[1]}, {sI}, 14\ns_add_u32 {sF[1]}, {sF[1]}, {CNT + 5120}\ns_add_u32 {sHb}, {sF[1]}, 2048')
        A(f's_or_b32 {sT0}, {sWQ}, {sJ}\ns_or_b32 {sT0}, {sT0}, {sI}\ns_cselect_b32 {sF[2]}, {OOB}, {EPOCH}')
        return lastR, pre, {}
    def epi_F(self):
        A, V, C = self.A, self.V, self.C
        cc = self.Rg
        NT = 3
        tmp = [V.alloc(8, 4) for _ in range(NT)]; outp = [V.alloc(4, 4) for _ in range(NT)]
        for pr in range(1, 6): A(f's_add_u32 {sE[pr]}, {sF[0]}, {pr*4096}')
        so = [sF[0]] + sE[1:6] + [sF[1]]
        self.G.all()
        L = []; k = 0
        for pr in range(7):
            for tt in range(2):
                p = tmp[k % NT]; o = outp[k % NT]; k += 1
                src = [self.acc[tt][2*pr][0:2], self.acc[tt][2*pr][2:4], self.acc[tt][2*pr+1][0:2], self.acc[tt][2*pr+1][2:4]]
                cs = [cc[2*pr][0:2], cc[2*pr][2:4], cc[2*pr+1][0:2], cc[2*pr+1][2:4]]
                for i in range(4): L.append(f'v_pk_fma_f32 {src[i]}, {cs[i]}, {self.ms[tt]}, {src[i]}')
                for i in range(4): L.append(f'v_pk_mul_f32 {src[i]}, {src[i]}, {self.nr[tt]}')
                for i in range(8): L.append(f'v_exp_f32 {p[i]}, {src[i//2][i&1]}')
                for i in range(4): L.append(f'v_pk_fma_f32 {p[2*i:2*i+2]}, {p[2*i:2*i+2]}, {self.kL}, {self.kL}')
                for i in range(8): L.append(f'v_rcp_f32 {p[i]}, {p[i]}')
                for i in range(4): L.append(f'v_pk_mul_f32 {p[2*i:2*i+2]}, {src[i]}, {p[2*i:2*i+2]}')
                for i in range(4): L.append(f'v_cvt_pk_bf16_f32 {o[i]}, {p[2*i]}, {p[2*i+1]}')
                L.append(f'buffer_store_dwordx4 {o}, {v_l16}, {sWS}, {so[pr]} offen offset:{tt*1024} ' + ['sc1', '', 'sc1 nt', 'sc0 sc1', 'nt'][OPT['hst']])
        if OPT['dbg'] & 8: L = [x for x in L if not x.startswith('buffer')]
        stampe(A, 1); ns = 0
        for x in L:
            A(x)
            if x.startswith('buffer'):
                ns += 1
                if ns % 2 == 0: stampe(A, 1 + ns//2)
                for p, e in enumerate(PH):
                    if ns == 2*e + OPT['lag']: A(f's_waitcnt vmcnt({OPT["lag"]})\ns_atomic_add {sLrow}, {sWS[0:2]}, {sF[2]} offset:{PHO[p]}')
        C.n += 14
        stamp(A, 6)
        for p, e in enumerate(PH):
            if 2*e + OPT['lag'] > 14: A(f's_waitcnt vmcnt({14 - 2*e})\ns_atomic_add {sLrow}, {sWS[0:2]}, {sF[2]} offset:{PHO[p]}')
        stampe(A, 9)
        stamp(A, 7)
    def feat(self, a0, a1, cvec, negm, rl, P16, E):
        L = []; B4 = a0
        for T, a in enumerate((a0, a1)):
            for h in range(2): L.append(f'v_pk_fma_f32 {a[2*h:2*h+2]}, {cvec[2*h:2*h+2]}, {negm[T]}, {a[2*h:2*h+2]}')
        for T, a in enumerate((a0, a1)):
            for h in range(2): L.append(f'v_cvt_pk_bf16_f32 {B4[2*T+h]}, {a[2*h]}, {a[2*h+1]}')
        L += [f'v_permlane16_swap_b32 {B4[0]}, {B4[2]}', f'v_permlane16_swap_b32 {B4[1]}, {B4[3]}']
        L.append(f'v_mfma_f32_32x32x16_bf16 {P16}, {self.aphi}, {B4}, 0')
        mx = B4[0]; m2 = B4[1]
        L += [f'v_max3_f32 {mx}, {P16[0]}, {P16[1]}, {P16[2]}', f'v_max3_f32 {m2}, {P16[3]}, {P16[4]}, {P16[5]}',
              f'v_max3_f32 {mx}, {mx}, {P16[6]}, {P16[7]}', f'v_max3_f32 {m2}, {m2}, {P16[8]}, {P16[9]}',
              f'v_max3_f32 {mx}, {mx}, {P16[10]}, {P16[11]}', f'v_max3_f32 {m2}, {m2}, {P16[12]}, {P16[13]}',
              f'v_max3_f32 {mx}, {mx}, {P16[14]}, {P16[15]}', f'v_max_f32 {mx}, {mx}, {m2}',
              f'v_mul_f32_e64 {B4[2]}, -{mx}, {rl[0]}', f'v_mul_f32_e64 {B4[3]}, -{mx}, {rl[0]}']
        for i in range(8): L.append(f'v_pk_fma_f32 {P16[2*i:2*i+2]}, {P16[2*i:2*i+2]}, {rl}, {B4[2:4]}')
        for i in range(16): L.append(f'v_exp_f32 {P16[i]}, {P16[i]}')
        s0, s1 = B4[0:2], B4[2:4]
        L += [f'v_pk_add_f32 {s0}, {P16[0:2]}, {P16[2:4]}', f'v_pk_add_f32 {s1}, {P16[4:6]}, {P16[6:8]}']
        for i in range(4, 8): L.append(f'v_pk_add_f32 {(s0, s1)[i&1]}, {(s0, s1)[i&1]}, {P16[2*i:2*i+2]}')
        L += [f'v_pk_add_f32 {s0}, {s0}, {s1}', f'v_add_f32 {B4[0]}, {B4[0]}, {B4[1]}', f'v_rcp_f32 {B4[0]}, {B4[0]}', f'v_mov_b32 {B4[1]}, {B4[0]}']
        for i in range(8): L.append(f'v_pk_mul_f32 {P16[2*i:2*i+2]}, {P16[2*i:2*i+2]}, {B4[0:2]}')
        for i in range(8): L.append(f'v_cvt_pk_bf16_f32 {E(i)}, {P16[2*i]}, {P16[2*i+1]}')
        return L
    def epi_A(self):
        A, V, C, l = self.A, self.V, self.C, lane
        e0, e1, e2, e3 = sE[0:4]
        acc, MR, negm, rl, bsel, zsel = self.acc, self.MR, self.negm, self.rl, self.bsel, self.zsel
        D0, D1 = self.Dg
        if OPT['cprio']: A(f's_setprio {OPT["cprio"]}')
        self.G.all()
        kv = [D0[0:4], D0[4:8]]; zz = D0[8:12]
        KA = OPT['kva']; lrep = V.alloc()
        a0, a1, ff, t0, t1, ah, as_, ak, ad, l26, vtag, fa = [D1[i] for i in range(12)]
        L = []
        for p in range(4):
            P16 = MR[p]; VB = acc[2*p][2]; Eq = [acc[2*p+1][1], acc[2*p+1][2]]
            for T in range(2):
                a = acc[2*p+T][2]; M4 = P16[8*T:8*T+4]; R4 = P16[8*T+4:8*T+8]
                for h in range(2): L.append(f'v_pk_fma_f32 {a[2*h:2*h+2]}, {M4[2*h:2*h+2]}, {self.cv}, {a[2*h:2*h+2]}')
                for h in range(2): L.append(f'v_pk_mul_f32 {a[2*h:2*h+2]}, {a[2*h:2*h+2]}, {R4[2*h:2*h+2]}')
                for h in range(2): L.append(f'v_cvt_pk_bf16_f32 {VB[2*T+h]}, {a[2*h]}, {a[2*h+1]}')
            L += self.feat(acc[2*p][1], acc[2*p+1][1], self.ck, negm[2*p:2*p+2], rl[p], P16, lambda i: Eq[i//4][i % 4])
            for m in range(2):
                for T in range(2): L.append(f'v_mfma_f32_16x16x32_bf16 {P16[8*m+4*T:8*m+4*T+4]}, {Eq[m]}, {bsel[T]}, 0')
            for i in range(8): L.append(f'v_cvt_pk_bf16_f32 {Eq[i//4][i%4]}, {P16[2*i]}, {P16[2*i+1]}')
            if KA:
                for m in range(2): L.append(f'v_mfma_f32_16x16x32_bf16 {kv[m]}, {VB}, {Eq[m]}, {kv[m] if p else 0}')
                for m in range(2): L.append(f'v_mfma_f32_16x16x32_bf16 {zz}, {zsel[m]}, {Eq[m]}, {zz if (p or m) else 0}')
                continue
            for m in range(2): L.append(f'v_mfma_f32_16x16x32_bf16 {kv[m]}, {Eq[m]}, {VB}, {kv[m] if p else 0}')
            for m in range(2): L.append(f'v_mfma_f32_16x16x32_bf16 {zz}, {Eq[m]}, {zsel[m]}, {zz if (p or m) else 0}')
        if KA:
            L += [f'v_and_b32 {t0}, 15, {l}', f'v_lshrrev_b32 {t1}, 4, {l}', f'v_lshlrev_b32 {t0}, 2, {t0}', f'v_lshl_add_u32 {a0}, {t1}, 8, {t0}',
                  f'v_mul_u32_u24 {a1}, 1088, {t1}', f'v_add_u32 {a1}, {a1}, {t0}', f'v_lshrrev_b32 {t1}, 1, {t1}', f'v_lshl_add_u32 {a1}, {t1}, 27, {a1}']
            for m in range(2):
                for r in range(4): L.append(f'buffer_atomic_add_f32 {kv[m][r]}, {a0}, {sWS}, {e2} offen offset:{1088*m + 64*r} sc1')
            L.append(f'buffer_atomic_add_f32 {zz[0]}, {a1}, {sWS}, {e2} offen offset:1024 sc1')
            L += [f'v_lshlrev_b32 {l26}, 26, {l}', f'v_mov_b32 {vtag}, {sTag}']
        else:
            L += [f'v_and_b32 {t0}, 15, {l}', f'v_and_b32 {t1}, 48, {l}', f'v_lshl_add_u32 {a0}, {t0}, 6, {t1}', f'v_mov_b32 {ff}, 0xff',
                  f'v_mul_u32_u24 {a1}, 1088, {t0}', f'v_add_u32 {a1}, {a1}, {t1}', f'v_lshrrev_b32 {t0}, 1, {t0}', f'v_lshl_add_u32 {a1}, {t0}, 27, {a1}']
            for m in range(2):
                L += tag_quad(kv[m], ff) + [f'buffer_store_dwordx4 {kv[m]}, {a0}, {sWS}, {e0} offen offset:{1088*m} sc1']
            L += tag_quad(zz, ff) + [f'buffer_store_dwordx4 {zz}, {a1}, {sWS}, {e0} offen offset:1024 sc1']
            L += [f'v_lshlrev_b32 {l26}, 26, {l}', f'v_mov_b32 {vtag}, {sTag}', f'v_mov_b32 {fa}, 1', f'v_lshrrev_b32 {lrep}, {OPT["Rk"].bit_length()-1}, {l}', f'v_lshlrev_b32 {lrep}, 26, {lrep}', f'v_lshl_add_u32 {lrep}, {l}, 14, {lrep}']
            if not OPT['ack1']: L.append(f'buffer_atomic_add {fa}, {lrep}, {sWS}, {sXb} offen sc1')
        stampe(A, 1)
        emit_sched(A, L, 'kside'); C.n += 4
        stampe(A, 2)
        stamp(A, 6)
        h1 = [self.sel16[4*i:4*i+4] for i in range(4)]
        ld1 = [f'buffer_load_dwordx4 {h1[0]}, {ah}, {sWS}, {e1} offen sc1', f'buffer_load_dwordx4 {h1[1]}, {ah}, {sWS}, {e1} offen offset:1088 sc1',
               f'buffer_load_dwordx4 {h1[2]}, {ah}, {sWS}, {sE[4]} offen offset:1024 sc1', f'buffer_load_dwordx4 {h1[3]}, {ah}, {sWS}, {sE[4]} offen offset:2112 sc1']
        perm = [0, 1, 2, 3] if KA else [1, 0, 2, 3]
        eq = [[acc[2*p+1][0], acc[2*p][1]] for p in range(4)]
        def qside(ps):
            L = []
            for p in ps:
                L += self.feat(acc[2*p][0], acc[2*p+1][0], self.cq, negm[2*p:2*p+2], rl[p], MR[p], lambda i: eq[p][i//4][perm[i % 4]])
            return L
        adr = [f'v_lshrrev_b32 {ah}, 2, {l}', f'v_mul_u32_u24 {ah}, 2176, {ah}', f'v_and_b32 {t0}, 3, {l}', f'v_lshl_add_u32 {ah}, {t0}, 4, {ah}',
               f'v_lshrrev_b32 {as_}, 5, {l}', f'v_mul_u32_u24 {as_}, 1088, {as_}', f'v_lshl_add_u32 {as_}, {t0}, 4, {as_}', f'v_bfe_u32 {t0}, {l}, 4, 1', f'v_lshl_add_u32 {as_}, {t0}, 3, {as_}',
               f'v_and_b32 {t1}, 12, {l}', f'v_lshl_add_u32 {as_}, {t1}, 26, {as_}',
               f'v_and_b32 {ad}, 15, {l}', f'v_lshlrev_b32 {ad}, 4, {ad}', f'v_lshl_add_u32 {ad}, {t0}, 14, {ad}', f'v_lshrrev_b32 {t0}, 5, {l}', f'v_lshl_add_u32 {ad}, {t0}, 8, {ad}',
               f'v_and_b32 {ak}, 31, {l}', f'v_min_u32 {ak}, 16, {ak}', f'v_lshlrev_b32 {ak}, 6, {ak}', f'v_lshl_add_u32 {ak}, {t0}, 5, {ak}']
        if KA:
            qa, qb = OPT['qa'], OPT['qb']
            ldall = self.sel16
            emit_sched(A, qside(range(qa)) + [adr[7]] + adr[11:], 'qa')
            stampe(A, 3)
            sarrive(A, *[f'{sXb} offset:{16384*r}' for r in range(OPT['Rk'])])
            stampe(A, 4); stamp(A, 7)
            A(f's_add_u32 {e0}, {sF[0]}, 32768\ns_add_u32 {e1}, {sF[0]}, {72*4096}\ns_add_u32 {e3}, {e1}, 32768')
            if qb: emit_sched(A, qside(range(qa, qa+qb)), 'qb')
            stampe(A, 5)
            ppoll(A, sXo, 16, OPT['Dk'], 20, OPT['slpa'])
            stampe(A, 6); stamp(A, 8)
            for m in range(2):
                for h in range(2): A(f'buffer_load_dwordx4 {ldall[8*m+4*h:8*m+4*h+4]}, {ak}, {sWS}, {e2} offen offset:{1088*m+16*h} sc1')
            A(f'buffer_store_dword {vtag}, {l26}, {sWS}, {sF[2]} offen sc1')
            if qa + qb < 4: emit_sched(A, qside(range(qa+qb, 4)), 'qc')
            stampe(A, 7)
            A('s_waitcnt vmcnt(1)')
            stamp(A, 4)
            L = []
            for m in range(2):
                for i in range(4): L.append(f'v_cvt_pk_bf16_f32 {D0[4*m+i]}, {ldall[8*m+2*i]}, {ldall[8*m+2*i+1]}')
            kvA = [D0[0:4], D0[4:8]]
        else:
            if OPT['ack1']:
                emit_sched(A, qside([0]) + adr, 'q0')
                sarrive(A, sXb)
                emit_sched(A, qside([1]), 'q1')
            else: emit_sched(A, qside([0, 1]) + adr, 'q01')
            stampe(A, 3)
            ppoll(A, sXo, 16, OPT['Dk'], 20, OPT['slpa'])
            stamp(A, 7)
            stampe(A, 4)
            for x in ld1: A(x)
            emit_sched(A, qside([2]), 'q2')
            stampe(A, 5)
            A('s_waitcnt vmcnt(0)')
            tm = D0
            def chk1():
                for i in range(4): quad_diff(A, h1[i], tm[i], tm[4+i])
                A(f'v_or_b32 {tm[0]}, {tm[0]}, {tm[1]}\nv_or_b32 {tm[2]}, {tm[2]}, {tm[3]}\nv_cmp_ne_u32 vcc, 0, {tm[2]}\nv_cmp_ne_u32 s[4:5], 0, {tm[0]}')
                A(f's_and_b64 vcc, vcc, {sM2}\ns_or_b64 s[4:5], s[4:5], vcc')
            poll(A, '\n'.join(ld1), chk1, sleep=OPT['slp'], mask_exec=True, first_loaded=True)
            stampe(A, 6)
            L = []
            for x, y, so, off in ((h1[0], h1[1], e3, 0), (h1[2], h1[3], sE[5], 1024)):
                for k in range(4): L += [f'v_and_b32 {x[k]}, 0xffffff00, {x[k]}', f'v_and_b32 {y[k]}, 0xffffff00, {y[k]}']
                for k in range(4): L += [f'v_permlane32_swap_b32 {x[k]}, {y[k]}', f'v_add_f32 {x[k]}, {x[k]}, {y[k]}']
                for k in range(2): L += [f'v_permlane16_swap_b32 {x[k]}, {x[k+2]}', f'v_add_f32 {x[k]}, {x[k]}, {x[k+2]}', dpp_add(x[k], 'row_ror:4'), dpp_add(x[k], 'row_ror:8')]
                L += [f'v_cvt_pk_bf16_f32 {x[0]}, {x[0]}, {x[1]}', f'v_mov_b32 {x[1]}, {sTag}', f'buffer_store_dwordx2 {x[0:2]}, {as_}, {sWS}, {so} offen offset:{off} sc1']
            if not OPT['ack2']: L.append(f'buffer_atomic_add {fa}, {lrep}, {sWS}, {sWb} offen sc1')
            emit_sched(A, L, 'reduce'); C.n += 3
            stamp(A, 8)
            ld = [self.Rg[0], self.Rg[1], self.Rg[2], self.Rg[3]]; assert all(ld[i].b == ld[0].b + 4*i for i in range(4))
            ldall = R('v', ld[0].b, 16)
            ld2 = [f'buffer_load_dwordx4 {ld[2*m+h]}, {ak}, {sWS}, {e2} offen offset:{1088*m+16*h} sc1' for m in range(2) for h in range(2)]
            A(f's_add_u32 {e0}, {sF[0]}, 32768\ns_add_u32 {e1}, {sF[0]}, {72*4096}\ns_add_u32 {e3}, {e1}, 32768')
            emit_sched(A, qside([3]), 'q3')
            if OPT['ack2']: sarrive(A, sWb)
            A(f'buffer_store_dword {vtag}, {l26}, {sWS}, {sF[2]} offen sc1')
            ppoll(A, sWo, 16, OPT['Dk'], 20, OPT['slpa'])
            stampe(A, 7)
            poll(A, '\n'.join(ld2), chk_words(A, [ldall[2*i+1] for i in range(8)], tm), sleep=OPT['slp'], mask_exec=True)
            stamp(A, 4)
            L = []
            for m in range(2): L += [f'v_mov_b32 {ldall[8*m+3]}, {ldall[8*m]}', f'v_mov_b32 {ldall[8*m+5]}, {ldall[8*m+6]}']
            kvA = [ldall[2:6], ldall[10:14]]
        for p in range(4):
            N = MR[p]; o = acc[2*p][2]
            L.append(f'v_mfma_f32_32x32x16_bf16 {N}, {kvA[0]}, {eq[p][0]}, 0')
            L.append(f'v_mfma_f32_32x32x16_bf16 {N}, {kvA[1]}, {eq[p][1]}, {N}')
            L += [f'v_add_f32 {N[8]}, {f2u(1e-6):#x}, {N[8]}', f'v_rcp_f32 {N[8]}, {N[8]}']
            if OPT['opk']:
                L.append(f'v_mov_b32 {N[9]}, {N[8]}')
                for i in range(4): L.append(f'v_pk_mul_f32 {N[2*i:2*i+2]}, {N[2*i:2*i+2]}, {N[8:10]}')
            else:
                for i in range(8): L.append(f'v_mul_f32 {N[i]}, {N[i]}, {N[8]}')
            for i in range(4): L.append(f'v_cvt_pk_bf16_f32 {o[i]}, {N[2*i]}, {N[2*i+1]}')
            L.append(f'buffer_store_dwordx4 {o}, {ad}, {sWS}, {[sF[0], e0, e1, e3][p]} offen sc1')
        stampe(A, 8)
        emit_sched(A, L, 'oside'); C.n += 4
        stampe(A, 9)
        sarrive(A, *[f'{x} offset:{256*r}' for r in range(OPT['Ro']) for x in (sF[1], sHb)])
        stampe(A, 10)

def p2_C(A):
    l = lane; C = Ctx(A); G = LG(A)
    NP = OPT['npre']
    V = Pool('v', 4, 256)
    vab = [V.alloc() for _ in range(4)]
    go, vm_, t0, t1 = V.alloc(), V.alloc(), V.alloc(), V.alloc()
    xq = V.alloc(8, 4); acc = V.alloc(16, 4); ao = V.alloc(64, 4)
    Bs = [V.alloc(16, 4) for _ in range(NP)]
    A(f'v_and_b32 {t0}, 15, {l}\nv_lshlrev_b32 {go}, 10, {t0}\nv_bfe_u32 {t0}, {l}, 4, 1\nv_lshl_add_u32 {go}, {t0}, 5, {go}\nv_lshrrev_b32 {t0}, 5, {l}\nv_lshl_add_u32 {go}, {t0}, 4, {go}')
    A(f's_lshl_b32 {sE[0]}, {sI2}, 16\ns_lshl_b32 {sT0}, {sWQ}, 14\ns_add_u32 {sE[0]}, {sE[0]}, {sT0}\ns_lshl_b32 {sT1}, {sJ2}, 7\ns_add_u32 {sE[0]}, {sE[0]}, {sT1}')
    for P in range(2): A(f'buffer_load_dwordx4 {xq[4*P:4*P+4]}, {go}, {sX}, {sE[0]} offen offset:{64*P}')
    A(f's_mul_i32 {sE[1]}, {sI2}, {72*4096}\ns_add_u32 {sE[1]}, {sE[1]}, {sT0}\ns_add_u32 {sE[1]}, {sE[1]}, {ACT + 56*4096}')
    for i in range(1, 4): A(f's_add_u32 {sE[1+i]}, {sE[1]}, {4096*i}')
    cnt_i2(A, sE[5], sI2, 5120)
    if OPT['Ro'] > 1: A(f's_and_b32 s4, {sJ2}, {OPT["Ro"]-1}\ns_lshl_b32 s4, s4, 8\ns_add_u32 {sE[5]}, {sE[5]}, s4')
    tr_addr(A, vab, WOB, t0, t1)
    A(f'v_mov_b32 {vm_}, {L_TAG}')
    lds_spin(A, vm_, 4, 4, t0)
    tokB = {}
    def trl(k): return [(f'ds_read_b64_tr_b16 {Bs[k % NP][4*q+2*hf:4*q+2*hf+2]}, {vab[q]} offset:{k*4096 + hf*2048}', (k, q)) for q in range(4) for hf in range(2)]
    for k in range(NP):
        for s, key in trl(k): G.ds(s); tokB[key] = 0
    if OPT['opoll']:
        ppoll(A, sE[5], 32, OPT['Do'], 20, OPT['slpo'])
        G.all()
    else:
        lk, le = A.lab('NO'), A.lab('OE')
        A(f's_cmp_lg_u32 {sWV}, 0\ns_cbranch_scc1 {lk}')
        ppoll(A, sE[5], 32, OPT['Do'], 20, OPT['slpo'])
        if OPT['gs']:
            stamp(A, 3)
            A(f'v_mov_b32 {t0}, 16\ns_mov_b64 exec, 1\nds_add_u32 {vm_}, {t0} offset:12\ns_mov_b64 exec, -1')
            A(f'{lk}:')
            lds_spin(A, vm_, 12, 20, t0)
        else:
            A(f'v_mov_b32 {t0}, 1\nds_write_b32 {vm_}, {t0} offset:12\ns_branch {le}')
            A(f'{lk}:')
            lds_spin(A, vm_, 12, 1, t0)
            A(f'{le}:')
    stamp(A, 9); stampf(A, 0)
    tok = {}
    for s in range(16):
        tok[s] = C.vm(f'buffer_load_dwordx4 {ao[4*s:4*s+4]}, {v_l16}, {sWS}, {sE[1 + s//4]} offen offset:{(s & 3)*1024} ' + ['sc1', '', 'sc0', 'nt', 'sc0 sc1'][OPT['old']])
    stampf(A, 1)
    G.all()
    A(f's_lshl_b32 {sT0}, {sWQ}, 12\nv_add_u32 {t1}, {sT0}, {v_l16}')
    Q = []
    for s in range(16):
        C.wait(tok[s])
        if s == 0:
            for P in range(2): A(f'v_permlane16_swap_b32 {xq[4*P]}, {xq[4*P+2]}\nv_permlane16_swap_b32 {xq[4*P+1]}, {xq[4*P+3]}')
        for q in range(4):
            G.need(tokB[(s, q)])
            A(f'v_mfma_f32_16x16x32_bf16 {acc[4*q:4*q+4]}, {Bs[s % NP][4*q:4*q+4]}, {ao[4*s:4*s+4]}, {acc[4*q:4*q+4] if s else 0}')
            for _ in range(2):
                if Q: x, key = Q.pop(0); tokB[key] = G.ds(x)
        if s + NP < 16: Q += trl(s + NP)
        if s in (0, 3, 7, 11, 15): stampf(A, 2 + (s+1)//4)
    xf = ao[0:16]; g = ao[16:32]
    stamp(A, 10)
    A('s_barrier')
    stampf(A, 7)
    for u in range(4): A(f'ds_read_b128 {g[4*u:4*u+4]}, {t1} offset:{X0 + 1024*u}')
    for i in range(8): A(f'v_lshlrev_b32 {xf[2*i]}, 16, {xq[i]}\nv_and_b32 {xf[2*i+1]}, 0xffff0000, {xq[i]}')
    for P in range(2):
        A(f's_waitcnt lgkmcnt({2 - 2*P})')
        for i in range(4*P, 4*P+4): A(f'v_pk_fma_f32 {g[2*i:2*i+2]}, {g[2*i:2*i+2]}, {acc[2*i:2*i+2]}, {xf[2*i:2*i+2]}')
        for i in range(4*P, 4*P+4): A(f'v_cvt_pk_bf16_f32 {xq[i]}, {g[2*i]}, {g[2*i+1]}')
    for P in range(2):
        A(f'v_permlane16_swap_b32 {xq[4*P]}, {xq[4*P+2]}\nv_permlane16_swap_b32 {xq[4*P+1]}, {xq[4*P+3]}')
    for P in range(2): A(f'buffer_store_dwordx4 {xq[4*P:4*P+4]}, {go}, {sOUT}, {sE[0]} offen offset:{64*P} ' + ['', 'sc1', 'nt', 'sc0 sc1', 'sc1 nt', 'sc0 sc1 nt'][OPT['ost']])
    stampf(A, 8)
    if OPT['stamp'] == 6: A('s_waitcnt vmcnt(0)')
    stampf(A, 9)

vb = [R('v', 4+i, 1) for i in range(4)]
vb0, vb1 = R('v', 8, 1), R('v', 9, 1)
RS = [R('v', 80+16*i, 16) for i in range(11)]
ACCL = R('v', 16, 64)
vbh = [R('v', 13, 1), R('v', 14, 1), R('v', 15, 1), R('v', 2, 1)]
va = [R('v', 10, 1), R('v', 11, 1), R('v', 12, 1), R('v', 0, 1)]
vx2, vx3, vw1, vh, pt, pa, pm, p1 = [ACCL[48+i] for i in range(8)]
def nib(d, k): return f's_bfe_u32 {d}, {sCur if k < 8 else sCurA}, {(4 << 16) | (4 * (k % 8)):#x}'
LOAD = [0, 1, 8, 9, 2, 3, 4, 5, 6, 7, 10, 11, 12, 13] if OPT['lord'] else list(range(14))
RSL = {0: 0, 1: 1, 2: 2, 3: 3, 4: 4, 5: 5, 8: 6, 9: 7, 6: 0, 7: 1, 10: 2, 11: 3, 12: 4, 13: 5} if OPT['lord'] else {k: k % 8 for k in range(14)}
if OPT['lord'] == 2:
    LOAD = [0, 1, 2, 3, 8, 9, 10, 4, 5, 6, 7, 11, 12, 13]
    RSL = {0: 0, 1: 1, 2: 2, 3: 3, 8: 4, 9: 5, 10: 6, 4: 7, 5: 0, 6: 1, 7: 2, 11: 3, 12: 7, 13: 2}
if OPT['lord'] == 3:
    LOAD = [0, 4, 8, 12, 1, 2, 3, 5, 6, 7, 9, 10, 11, 13]
    RSL = {0: 0, 6: 0, 1: 1, 7: 1, 2: 2, 9: 2, 3: 3, 10: 3, 4: 4, 11: 4, 5: 5, 13: 5, 8: 6, 12: 7}
if OPT['lord'] == 4:
    LOAD = [0, 1, 4, 5, 8, 9, 12, 2, 3, 6, 7, 10, 11, 13]
    RSL = {1: 0, 6: 0, 2: 1, 7: 1, 0: 2, 3: 2, 10: 2, 4: 3, 11: 3, 5: 4, 13: 4, 8: 5, 9: 6, 12: 7}
PH = [int(c) for c in str(OPT['ph'])] if OPT['ph'] else [4, 7]
PHO = [0, 8192, 128, 8192 + 128]
sB0, sB1 = sM2[0], sM2[1]
sLi = [sXo, sHo, sWb, sRot]
vr0, vr1 = vb0, vb1
class BP:
    def __init__(self, A, C, G):
        self.A, self.C, self.G = A, C, G
        self.next = 0; self.free = []; self.fly = []; self.slot = {}; self.tok = {}; self.cool = []; self.dep = 0; self.pend = []
    def dma(self, k, sl):
        A = self.A
        for f in self.dma_list(k, sl): f()
    def dma_list(self, k, sl):
        A = self.A
        self.slot[k] = sl
        def mk(i):
            def f():
                if OPT['xr'] & 2:
                    if i == 0: A(f'{nib(sB0, LOAD[k])}\ns_lshl_b32 {sB0}, {sB0}, 15\ns_add_u32 {sB0}, {sB0}, {sBb}\ns_xor_b32 {sB1}, {sB0}, 16384')
                    A(f's_add_u32 m0, {sLi[i]}, {sl}')
                else:
                    if i == 0: A(f'{nib(sB0, LOAD[k])}\ns_lshl_b32 {sB0}, {sB0}, 15\ns_add_u32 {sB0}, {sB0}, {sBb}\ns_add_u32 {sB1}, {sB0}, 16384')
                    A(f's_add_u32 m0, {sLb2}, {sl + 1024*i}')
                if self.dep: A(f's_waitcnt vmcnt({self.dep - 1})')
                self.tok[k] = self.C.vm(f'buffer_load_dwordx4 {(vb0, vb1)[i & 1]}, {sW2}, {(sB0, sB1)[i >> 1]} offen lds')
            return f
        return [mk(i) for i in range(4)]
    def wo_list(self, k):
        A = self.A
        def mk(i):
            def f():
                if i == 0:
                    A(f's_xor_b32 {sT1}, {sF[2]}, {k}\ns_lshl_b32 {sF[3]}, {sT1}, 12\ns_lshl2_add_u32 {sF[3]}, {sLb2}, {sF[3]}')
                    A(f's_lshl_b32 {sT0}, {sT1}, 15\ns_add_u32 {sT0}, {sT0}, {sF[0]}\ns_add_u32 {sT1}, {sT0}, 16384')
                if OPT['xr'] & 2 and i == 0: A(f's_add_u32 {sF[3]}, {sF[3]}, {sHb}')
                if OPT['xr'] & 2 and i == 2: A(f's_sub_u32 {sF[3]}, {sF[3]}, {sHb}\ns_sub_u32 {sF[3]}, {sF[3]}, {sHb}')
                A(f's_add_u32 m0, {sF[3]}, {WOB + 1024*i}')
                if self.dep: A(f's_waitcnt vmcnt({self.dep - 1})')
                self.tokwo = self.C.vm(f'buffer_load_dwordx4 {(vb0, vb1)[i >> 1]}, {sWO}, {(sT0, sT1)[i & 1]} offen lds')
            return f
        return [mk(i) for i in range(4)]
    def trl(self, k):
        sl = self.slot[k]; hi = sl >= Y0
        off = sl - Y0 if hi else sl
        dst = RS[RSL[LOAD[k]]]
        return [f'ds_read_b64_tr_b16 {dst[4*q+2*hf:4*q+2*hf+2]}, {(vbh if hi else vb)[q]} offset:{off + hf*2048}' for q in range(4) for hf in range(2)]
    def retire(self):
        k = self.fly.pop(0)
        self.C.wait(self.tok[k])
        for s in self.trl(k): tk = self.G.ds(s)
        self.cool.append((self.slot[k], tk))
    def step(self, run=True):
        self.flush()
        if self.next >= 13: return False
        if not self.free:
            if not self.cool: self.retire()
            if len(self.cool) == 1 and self.fly and self.next - self.fly[0] >= 3: self.retire()
            sl, tk = self.cool.pop(0); self.G.need(tk, 8); self.free.append(sl)
        k = self.next; self.next += 1
        self.pend = self.dma_list(k, self.free.pop(0))
        if k < 8: self.fly.append(k)
        if run: self.flush()
        return True
    def flush(self):
        while self.pend: self.pend.pop(0)()
    def quota(self, n):
        for _ in range(n):
            if not self.pend: self.step(run=False)
            self.pend.pop(0)()

class LW:
    def __init__(self, A, typ):
        self.A = A; self.typ = typ; self.C = Ctx(A); self.G = LG(A); self.B = BP(A, self.C, self.G)
        self.lrow = 3584 if typ == 'F' else 3072
        self.stok = {}; self.sq = []
    def issue(self, st, only_half=False, lo=0, hi=99):
        A = self.A if lo == 0 else (lambda x: None); buf = phys(st); F = self.typ == 'F'
        cs = 128 if F else 1024
        if not only_half:
            A(f's_bfe_u32 {sT0}, {sRot}, {(4 << 16) | (4*st):#x}\ns_lshl_b32 {sXo}, {sT0}, 7\ns_add_u32 {sXo}, {sXo}, {sXb}')
            A(f's_mul_i32 {sT0}, {sT0}, {64*self.lrow}\ns_add_u32 {sWo}, {sT0}, {sWb}')
            xs = [(buf + 4096*p, (vx0, vx2, vx1, vx3)[p], sX, sXo, 0) for p in range(4)]
            ws = [(buf + 16384 + 8192*b + 4096*h - b*cs, (vw, vw1)[h], sW, sWo, b*cs) for h in range(2) for b in range(3)]
            items = [xs[0], ws[0], ws[1], xs[1], ws[2], xs[2], ws[3], ws[4], xs[3], ws[5]]
        else: items = []
        if F:
            A(f's_add_u32 {sHo}, {sWo}, {sHb}')
            items.append((buf + 16384 + 24576, vh, sW, sHo, 0))
        A = self.A
        for m, v, sr, so, off in items[lo:hi]:
            A(f's_add_u32 m0, {sLb}, {m}')
            self.stok[st] = self.C.vm(f'buffer_load_dwordx4 {v}, {sr}, {so} offen' + (f' offset:{off}' if off else '') + ' lds')
            while self.sq:
                x = self.sq.pop(0); A(x)
                if x.startswith('s_load'): break
    def run(self):
        A, C, G, B, l = self.A, self.C, self.G, self.B, lane
        F = self.typ == 'F'; lrow = self.lrow
        C.n = 5; self.stok[0] = 5
        T = [ACCL[i] for i in range(64)]
        if OPT['lprio']: A(f's_setprio {OPT["lprio"]}')
        srd(A, sW2, 48, SZ_W2); srd(A, sWO, 24, SZ_WO)
        if not F: srd(A, sPHI, 16, SZ_PHI)
        elif OPT['j3']: srd(A, sPHI, 8, SZ_QKV)
        vj3 = ACCL[62]
        def j3touch(second):
            A(f'v_lshrrev_b32 {vj3}, 3, {l}\nv_mul_u32_u24 {vj3}, 3072, {vj3}\nv_and_b32 {ACCL[63]}, 0x70, {v_l16}\nv_add_u32 {vj3}, {vj3}, {ACCL[63]}')
            A(f's_and_b32 {sT0}, {sI}, 7\ns_lshl2_add_u32 {sT0}, {sT0}, {sWQ}\ns_lshr_b32 {sT1}, s2, 1\ns_xor_b32 {sT1}, {sT1}, s2\ns_and_b32 {sT1}, {sT1}, 1' + (f'\ns_xor_b32 {sT1}, {sT1}, 1' if second else ''))
            A(f's_lshl_b32 {sT1}, {sT1}, 5\ns_add_u32 {sT0}, {sT0}, {sT1}\ns_mul_i32 {sT0}, {sT0}, {8*3072}')
            A(f's_sub_u32 {sT1}, {sJJ}, 4\ns_min_u32 s6, {sT1}, 2\ns_lshl_b32 s6, s6, 10\ns_add_u32 {sT0}, {sT0}, s6')
            A(f's_cmp_gt_u32 {sT1}, 3\ns_cselect_b32 {sT0}, {OOB}, {sT0}\ns_cmp_eq_u32 {sT1}, 2\ns_cselect_b32 {sT0}, {OOB}, {sT0}\ns_mov_b32 m0, {JUNK}')
            if F and not second: A('s_waitcnt lgkmcnt(0)')
            C.vm(f'buffer_load_dwordx4 {vj3}, {sPHI if F else sW}, {sT0} offen offset:384 lds')
        if OPT['j3'] & 1 and OPT['j3p'] == 0: j3touch(False)
        A(f's_sub_u32 {sLb}, {sLb}, 4096')
        A(f'v_or_b32 {vx2}, 0x8000, {vx0}\nv_or_b32 {vx3}, 0x8000, {vx1}\nv_and_b32 {vx0}, 0xffff7fff, {vx0}\nv_and_b32 {vx1}, 0xffff7fff, {vx1}')
        if OPT['flip'] & 1: A(f's_bitcmp1_b32 s2, 5\ns_cselect_b32 s4, 0, {32*lrow}\nv_subrev_u32 {vw}, s4, {vw}')
        else: A(f'v_subrev_u32 {vw}, {32*lrow}, {vw}')
        A(f'v_add_u32 {vw1}, {32*lrow}, {vw}')
        if OPT['rot'] == 4:
            A(f's_and_b32 s4, {sRot}, 3\ns_lshl_b32 s4, s4, 2\ns_lshr_b32 s4, 0x32103210, s4\ns_and_b32 s4, s4, 0xffff')
            if OPT['r2'] == 0: A(f's_mul_i32 s4, s4, 0x10001')
            elif OPT['r2'] == 1: A(f's_bitcmp1_b32 {sRot}, 0\ns_cselect_b32 s5, 0x11110000, 0\ns_xor_b32 s5, s5, 0x32100000\ns_or_b32 s4, s4, s5')
            else: A(f's_or_b32 s4, s4, 0x32100000')
            A(f's_cmp_ge_u32 {sRot}, 4\ns_cselect_b32 s5, 0x4444, 0x44440000\ns_or_b32 {sRot}, s4, s5'.replace('s_cselect_b32 s5, 0x4444, 0x44440000', 's_mov_b32 s5, 0x44440000\ns_cmovk_i32 s5, 0x4444'))
        elif OPT['rot'] == 2:
            A(f's_mul_i32 {sRot}, {sRot}, 0x11111111\ns_xor_b32 {sRot}, {sRot}, 0x76543210')
        else:
            A(f's_mov_b32 s4, 0x76543210\ns_mov_b32 s5, s4\ns_lshl_b32 s6, {sRot}, 2\ns_lshr_b64 s[4:5], s[4:5], s6\ns_mov_b32 {sRot}, s4')
        if F:
            t0, t1, t2 = T[0:3]
            A(f's_and_b32 {sT0}, {sJ}, 1\ns_mul_i32 {sT0}, {sT0}, 448\ns_sub_u32 {sHb}, 384, {sT0}')
            A(f's_mul_i32 {sT0}, {sWQ}, {16*lrow}\ns_add_u32 {sHb}, {sHb}, {sT0}')
            A(f'v_lshrrev_b32 {t0}, 2, {l}\nv_and_b32 {t1}, 3, {l}\nv_lshrrev_b32 {t2}, 4, {l}\nv_and_b32 {t2}, 2, {t2}\nv_xor_b32 {t2}, {t2}, {t1}\nv_lshlrev_b32 {t2}, 4, {t2}')
            A(f'v_mul_u32_u24 {vh}, {lrow}, {t0}\nv_add_u32 {vh}, {vh}, {t2}')
            self.issue(0, only_half=True)
        p2_ids(A)
        t0, t1, f = T[0:3]
        if OPT['ph']:
            if OPT['brot']: A('s_and_b32 s6, s6, 2')
            A(f's_add_u32 s6, s6, {sJ2}\ns_and_b32 s7, s6, 3\ns_lshl_b32 s7, s7, 2\ns_lshr_b32 s4, 0x98109810, s7\ns_and_b32 s4, s4, 0xffff')
            A(f's_mul_i32 {sCur}, s4, 0x10001\ns_add_u32 {sCur}, {sCur}, 0x22220000')
            A(f's_bitcmp1_b32 s6, {1 if OPT["brot"] else 0}\ns_cselect_b32 s5, 0x110000, 0\ns_xor_b32 s5, s5, 0x764444\ns_add_u32 {sCurA}, s4, s5')
        else:
            A(f's_lshl_b32 s6, s6, 1' + (f'\ns_and_b32 s6, s6, 4' if OPT['brot'] else '') + f'\ns_add_u32 s6, s6, {sJ2}' + ('\ns_add_u32 s6, s6, s2' if OPT['xr'] & 1 else '') + '\ns_and_b32 s6, s6, 7')
            A(f's_mov_b32 s4, 0xba983210\ns_mov_b32 s5, s4\ns_lshl_b32 s7, s6, 2\ns_lshr_b64 s[4:5], s[4:5], s7\ns_mov_b32 {sCur}, s4')
            A(f's_mul_i32 s6, s6, 3\ns_and_b32 s7, s6, 28\ns_mov_b32 s4, 0x547dc654\ns_mov_b32 s5, 0x7dc6\ns_lshr_b64 s[4:5], s[4:5], s7\ns_mov_b32 {sCurA}, s4')
        A(f's_mul_i32 s4, {sWQ}, 14\ns_mul_i32 {sAb}, {sI2}, 72\ns_add_u32 {sAb}, {sAb}, s4\ns_lshl_b32 {sAb}, {sAb}, 12\ns_add_u32 {sAb}, {sAb}, {ACT}')
        A(f's_lshl_b32 {sBb}, s4, 15\ns_lshl_b32 s5, {sJ2}, 7\ns_add_u32 {sBb}, {sBb}, s5')
        A(f's_lshl_b32 {sF[0]}, {sWQ}, 17\ns_add_u32 {sF[0]}, {sF[0]}, s5')
        A(f's_lshl_b32 {sLb2}, {sWQ}, 12')
        A(f'v_lshrrev_b32 {t0}, 3, {l}\nv_and_b32 {t1}, 6, {t0}\nv_and_b32 {f}, 7, {l}\nv_xor_b32 {t1}, {t1}, {f}\nv_lshlrev_b32 {t1}, 4, {t1}\nv_lshl_add_u32 {vb0}, {t0}, 10, {t1}\nv_add_u32 {vb1}, 0x2000, {vb0}')
        tr_addr(A, vb, sLb2, t0, t1)
        for q in range(4): A(f'v_add_u32 {vbh[q]}, {Y0}, {vb[q]}')
        A(f'v_mov_b32 {pm}, {L_TAG}\nv_mov_b32 {p1}, 1')
        cnt_i2(A, sF[1], sI2, 1024)
        A(f's_lshl_b32 s4, {sWQ}, 8\ns_add_u32 {sF[1]}, {sF[1]}, s4')
        if OPT['Rh'] > 1: A(f's_and_b32 s4, {sJ2}, 1\ns_lshl_b32 s4, s4, 7\ns_add_u32 {sF[1]}, {sF[1]}, s4')
        ca = T[4:8]; t, g = T[8], T[9]; ones = ACCL[12:16]; wfr = ACCL[16:32]; cs = ACCL[32:48]; vt = T[10]; ff = T[11]
        A(f'v_and_b32 {t}, 15, {l}\nv_lshrrev_b32 {g}, 4, {l}')
        if F: A(f's_cmp_eq_u32 {sWQ}, 3\ns_cselect_b32 s4, 6, 7\ns_cselect_b32 s5, 1, 3\ns_cselect_b32 s6, 1, 0\ns_lshl_b32 s7, {sWQ}, 13')
        else: A(f's_mov_b32 s4, 7\ns_mov_b32 s5, 3\ns_mov_b32 s6, 0\ns_min_u32 s7, {sWQ}, 2\ns_lshl_b32 s7, s7, 13')
        A(f's_lshl_b32 {sT0}, {sI}, {dict([(2,4),(4,3),(8,2)])[OPT["rot"]]}\ns_and_b32 {sT0}, {sT0}, 32')
        A(f's_lshr_b32 {sE[0]}, {sE[0]}, 6\ns_lshl_b32 {sT1}, {sWQ}, 5\ns_add_u32 {sE[0]}, {sE[0]}, {sT1}\ns_add_u32 {sSpin}, {sE[0]}, {STAT}')
        sgr = ACCL[56:60]; sga = T[60]; sgs = T[61]
        A(f's_lshl_b32 {sT1}, {sWQ}, 4\ns_add_u32 {sT1}, {sT1}, {L_SG}\nv_and_b32 {sga}, 1, {l}\nv_lshl_add_u32 {sga}, {sga}, 3, {sT1}')
        A(f'v_lshrrev_b32 {sgs}, 1, {l}\nv_lshl_add_u32 {sgs}, {sgs}, 26, {v_l16}')
        A(f'v_lshrrev_b32 {t0}, 2, {t}\nv_lshl_add_u32 {t0}, {g}, 3, {t0}\nv_add_u32 {t0}, {sT0}, {t0}\nv_lshlrev_b32 {t0}, s4, {t0}')
        A(f'v_and_b32 {t1}, 3, {t}\nv_lshl_add_u32 {t0}, {t1}, 3, {t0}\ns_add_u32 s7, s7, {phys(0)+16384}')
        if OPT['rot'] == 2: A(f's_bitcmp1_b32 {sI}, 2\ns_cselect_b32 {sT1}, {phys(0) - phys(2)}, 0\ns_sub_u32 s7, s7, {sT1}')
        A(f'v_add_u32 {t0}, s7, {t0}')
        A(f'v_lshrrev_b32 {f}, 3, {t}\nv_and_b32 {t1}, 1, {g}\nv_lshl_or_b32 {f}, {t1}, 1, {f}\nv_lshrrev_b32 {f}, s6, {f}')
        for q in range(4): A(f'v_xor_b32 {t1}, {q}, {f}\nv_and_b32 {t1}, s5, {t1}\nv_lshl_add_u32 {ca[q]}, {t1}, 5, {t0}')
        A(f's_lshl_b32 s5, 4, s4')
        for r in range(4): A(f'v_mov_b32 {ones[r]}, 0x3f803f80')
        A(f'v_mov_b32 {vt}, {L_TAG}\nv_mov_b32 {ff}, 0xff')
        A(f's_lshl_b32 {sE[1]}, {sJJ}, 14\ns_lshl_b32 {sT0}, {sWQ}, 8\ns_add_u32 {sE[1]}, {sE[1]}, {sT0}\ns_add_u32 {sE[1]}, {sE[1]}, {CSP}')
        A(f's_lshl_b32 {sT0}, {sI}, 10\ns_add_u32 {sE[2]}, {sE[1]}, {sT0}')
        A(f's_lshl_b32 {sE[0]}, {sI}, 2\ns_add_u32 {sE[0]}, {sE[0]}, {sWQ}\ns_lshl_b32 {sE[0]}, {sE[0]}, 9\ns_add_u32 {sE[0]}, {sE[0]}, {STAT}')
        def mall():
            if OPT['touch'] & 8:
                A(f's_lshl2_add_u32 {sT0}, s2, {sWQ}\ns_lshl_b32 {sT0}, {sT0}, 10\ns_add_u32 {sT1}, {sT0}, 0x100000\ns_mov_b32 m0, {JUNK}')
                C.vm(f'buffer_load_dwordx4 {v_l16}, {sW2}, {sT0} offen lds')
                C.vm(f'buffer_load_dwordx4 {v_l16}, {sW2}, {sT1} offen lds')
                A(f's_xor_b32 {sT0}, {sT0}, 0x80000')
                C.vm(f'buffer_load_dwordx4 {v_l16}, {sWO}, {sT0} offen lds')
                return
            if not OPT['touch'] & 4 or F: return
            A(f's_cmp_gt_u32 {sJ}, 3\ns_subb_u32 {sT0}, {sJ}, 0\ns_lshl_b32 {sT0}, {sT0}, 4\ns_add_u32 {sT0}, {sT0}, {sI}\ns_lshl2_add_u32 {sT0}, {sT0}, {sWQ}')
            A(f's_cmp_eq_u32 {sJ}, 3\ns_cselect_b32 {sT0}, 0x10000, {sT0}\ns_lshl_b32 {sT1}, {sT0}, 11\ns_lshl_b32 {sT0}, {sT0}, 12\ns_mov_b32 m0, {JUNK}')
            for i in range(4): C.vm(f'buffer_load_dwordx4 {v_l16}, {sW2}, {sT0} offen offset:{1024*i} lds')
            for i in range(2): C.vm(f'buffer_load_dwordx4 {v_l16}, {sWO}, {sT1} offen offset:{1024*i} lds')
        if not F:
            A(f's_lshl2_add_u32 {sT0}, {sJ}, {sWQ}\ns_lshr_b32 {sT0}, {sT0}, 1\ns_lshl_b32 {sT0}, {sT0}, 10\ns_add_u32 m0, {sLb}, {L_PHI}\ns_waitcnt lgkmcnt(0)')
            tkphi = C.vm(f'buffer_load_dwordx4 {v_l16}, {sPHI}, {sT0} offen lds')
        if OPT['j3'] & 1 and OPT['j3p'] == 1: j3touch(False)
        if OPT['kva'] and not F:
            z4 = RS[1][0:4]; za = RS[1][4]
            for r in range(4): A(f'v_mov_b32 {z4[r]}, 0')
            A(f's_lshl_b32 {sT1}, {sI}, 10\nv_add_u32 {za}, {sT1}, {v_l16}\nv_cmp_lt_u32 vcc, {2176-16}, {za}\nv_cndmask_b32 {za}, {za}, {ones[0]}, vcc')
            A(f's_lshl2_add_u32 {sT0}, {sJ}, {sWQ}\ns_mul_i32 {sT0}, {sT0}, 2176\ns_add_u32 {sT0}, {sT0}, {KT}')
            C.vm(f'buffer_store_dwordx4 {z4}, {za}, {sWS}, {sT0} offen sc1')
        stl = [int(c, 16) for c in OPT['st']] + [0]*3
        sc = [OPT['stc'] + OPT['stl']]
        if OPT['stl']:
            if F: A('s_waitcnt lgkmcnt(0)')
            stouch(A, OPT['stc'], sc[0])
        stampg(A, 4)
        if OPT['tk'] == -1:
            A('s_waitcnt lgkmcnt(0)'); mall()
        self.issue(1, hi=OPT['sp1'])
        stamp(A, 1); stampg(A, 5)
        C.wait(self.stok[0]); stampb(A, 1); stampg(A, 6); A('s_barrier')
        stampg(A, 7)
        stamp(A, 2)
        gq = [ACCL[16+4*i:20+4*i] for i in range(4)]; sg = ACCL[32:36]; ga, sa = T[4], T[5]; tm = ACCL[40:48]
        ldg = [f'buffer_load_dwordx4 {sg}, {sa}, {sWS}, {sE[0]} offen sc1']
        ldg += [f'buffer_load_dwordx4 {gq[i]}, {ga}, {sWS}, {[sE[1], sE[3], sE[4], sE[5]][i]} offen sc1' for i in range(4)]
        nm = OPT['nmF'] if F else OPT['nmA']
        B.free = [TS]
        tl = [int(c) for c in f'{OPT["tl"+self.typ]:09d}']
        tc = [0]
        def touch(n):
            for _ in range(n):
                i = tc[0]
                if i >= 18: return
                tc[0] += 1
                r = i if i < 14 else i - 14
                if r % 4 == 0 or _ == 0:
                    A(f's_lshr_b32 {sT0}, s2, 3\ns_lshl2_add_u32 {sT0}, {sT0}, {sWQ}\ns_mul_i32 {sT0}, {sT0}, {14336 if i < 14 else 4096}\ns_add_u32 {sT0}, {sT0}, {r//4*4096}\ns_mov_b32 m0, {JUNK}')
                C.vm(f'buffer_load_dwordx4 {v_l16}, {sW2 if i < 14 else sWO}, {sT0} offen offset:{(r % 4)*1024} lds')
        c3l = [int(c) for c in f'{OPT["c3F"]:06d}'] + [0]*3
        c3c = [0]
        def c3touch(n):
            if n: A(f's_lshr_b32 {sT0}, s2, 4\ns_and_b32 {sT0}, {sT0}, 8\ns_and_b32 {sT1}, {sI}, 7\ns_add_u32 {sT0}, {sT0}, {sT1}\ns_lshl2_add_u32 {sT1}, {sT0}, {sWQ}\ns_mul_i32 {sT0}, {sT1}, {28*1024}\ns_mov_b32 m0, {JUNK}\ns_lshl_b32 {sT1}, {sT1}, 13')
            for _ in range(n):
                i = c3c[0]
                if i >= 5: return
                c3c[0] += 1
                if i < 4:
                    A(f's_add_u32 s6, {sT0}, {[0, 8192, 16384, 20480][i]}')
                    C.vm(f'buffer_load_dwordx4 {vb0}, {sW2}, s6 offen offset:384 lds')
                else: C.vm(f'buffer_load_dwordx4 {vb0}, {sWO}, {sT1} offen offset:384 lds')
        for k in range(9):
            if k == 3: stampc(A, 1)
            if k == 4: stampc(A, 8)
            if k == 0:
                A(f'ds_read_b32 {vt}, {vt}\nds_read_b64 {sgr[0:2]}, {sga}')
            if k == 0 or (k == 2 and OPT['rot'] == 2):
                lk = A.lab('CS')
                if OPT['rot'] == 2: A(f's_bitcmp1_b32 {sI}, 2\ns_cbranch_scc{1 if k == 0 else 0} {lk}')
                for q in range(4): A(f'ds_read_b64_tr_b16 {wfr[4*q:4*q+2]}, {ca[q]}')
                for q in range(4): A(f'v_add_u32 {ca[q]}, s5, {ca[q]}')
                for q in range(4): A(f'ds_read_b64_tr_b16 {wfr[4*q+2:4*q+4]}, {ca[q]}')
                A(f'{lk}:')
            if OPT['sti'] and 1 <= k < 6:
                stouch(self.sq.append, sc[0], sc[0] + stl[k]); sc[0] += stl[k]; stl[k] = 0
            if k == 0: self.issue(1, lo=OPT['sp1'])
            if k and OPT['spm'] >> (k-1) & 1: self.issue(k + 1, lo=OPT['sp0'])
            if k < 6: self.issue(k + 2, hi=OPT['sp0'] if OPT['spm'] >> k & 1 else 99)
            for x in self.sq: A(x)
            self.sq = []
            if k == 6 and OPT['xr'] & 2:
                A(f's_and_b32 {sT0}, s2, 6\ns_lshl_b32 {sT0}, {sT0}, 9')
                for i in range(4): A(f's_xor_b32 {sLi[i]}, {sT0}, {1024*i}\ns_add_u32 {sLi[i]}, {sLi[i]}, {sLb2}')
                A(f's_and_b32 {sT1}, {sT0}, 1024\ns_lshl_b32 {sT1}, {sT1}, 3\nv_xor_b32 {vr0}, {sT1}, {vb0}\nv_xor_b32 {vr1}, {sT1}, {vb1}')
                A(f's_lshr_b32 {sHb}, {sT1}, 2')
                A(f's_and_b32 {sT1}, {sT0}, 2048\ns_lshl_b32 {sT1}, {sT1}, 3\ns_add_u32 {sBb}, {sBb}, {sT1}')
            if k == 6:
                for i in range(4):
                    A(f's_add_u32 {sT0}, {sWQ}, {i}\ns_and_b32 {sT0}, {sT0}, 3\ns_lshl_b32 {sT0}, {sT0}, 10\nv_add_u32 {va[i]}, {sT0}, {v_l16}')
            if k == 3: stampc(A, 2)
            if k == OPT['stk']:
                if k == 0: A(f's_waitcnt lgkmcnt(0)')
                A(f'v_readfirstlane_b32 {sTag}, {vt}')
                A('s_setprio 3')
                for q in range(4): A(f'v_mfma_f32_16x16x32_bf16 {cs[4*q:4*q+4]}, {ones}, {wfr[4*q:4*q+4]}, 0')
                tag_consts(A)
                A(f'v_lshrrev_b32 {t0}, 4, {l}\nv_lshl_add_u32 {t0}, {t0}, 26, {v_l16}')
                for q in range(4): A(f'v_bfi_b32 {cs[q]}, {ff}, {sTB[q]}, {cs[4*q]}')
                A(f's_setprio {OPT["lprio"]}')
                A(f'v_mov_b32 {sgr[2]}, {vt}\nv_mov_b32 {sgr[3]}, {vt}')
                A(f'v_and_b32 {ga}, 15, {l}\nv_lshlrev_b32 {ga}, 4, {ga}\nv_lshl_add_u32 {ga}, {g}, 10, {ga}\nv_and_b32 {sa}, 0x1f0, {v_l16}')
                A(f's_add_u32 {sE[3]}, {sE[1]}, 4096\ns_add_u32 {sE[4]}, {sE[1]}, 8192\ns_add_u32 {sE[5]}, {sE[1]}, 12288')
            if k == OPT['stk']:
                assert (k >= 2 or OPT['rot'] != 2)
                C.vm(f'buffer_store_dwordx4 {cs[0:4]}, {t0}, {sWS}, {sE[2]} offen sc1')
                C.vm(f'buffer_store_dwordx4 {sgr}, {sgs}, {sWS}, {sSpin} offen sc1')
            if k == OPT['j3k'] and OPT['j3'] & 2: j3touch(True)
            if k == OPT['tk']: mall()
            if k == OPT['c3'] and not F:
                A(f's_lshr_b32 {sT0}, s2, 4\ns_and_b32 {sT0}, {sT0}, 8\ns_and_b32 {sT1}, {sI}, 7\ns_add_u32 {sT0}, {sT0}, {sT1}\ns_lshl2_add_u32 {sT1}, {sT0}, {sWQ}\ns_mul_i32 {sT0}, {sT1}, {28*1024}\ns_mov_b32 m0, {JUNK}')
                for o in (0, 8192, 8192, 4096):
                    if o: A(f's_add_u32 {sT0}, {sT0}, {o}')
                    C.vm(f'buffer_load_dwordx4 {vb0}, {sW2}, {sT0} offen offset:384 lds')
                A(f's_lshl_b32 {sT1}, {sT1}, 13')
                C.vm(f'buffer_load_dwordx4 {vb0}, {sWO}, {sT1} offen offset:384 lds')
            if F: c3touch(c3l[k])
            plo, phi_, pa_ = RS[10][0:4], RS[10][4:8], RS[10][8]
            if k == OPT['pk'] and not F:
                if k == 0: C.wait(tkphi)
                A(f'v_bfe_u32 {pa_}, {l}, 3, 2\nv_lshlrev_b32 {pa_}, 3, {pa_}\nv_and_b32 {t1}, 3, {l}\nv_lshl_add_u32 {pa_}, {t1}, 1, {pa_}')
                A(f'v_lshrrev_b32 {t1}, 5, {l}\nv_lshl_add_u32 {pa_}, {t1}, 8, {pa_}')
                A(f's_and_b32 {sT0}, {sWQ}, 1\ns_lshl_b32 {sT0}, {sT0}, 9\ns_add_u32 {sT0}, {sT0}, {sLb}\ns_add_u32 {sT0}, {sT0}, {L_PHI}\nv_add_u32 {pa_}, {sT0}, {pa_}')
                for j in range(8): A(f'ds_read_u16 {(phi_ if j & 1 else plo)[j//2]}, {pa_} offset:{32*j}')
            if k == OPT['pk'] + 1 and not F:
                L = [f'v_bfe_u32 {t1}, {l}, 2, 1', f'v_mul_u32_u24 {t1}, 0x8000, {t1}', f'v_lshl_or_b32 {t1}, {t1}, 16, {t1}']
                for rr in range(4): L += [f'v_lshl_or_b32 {plo[rr]}, {phi_[rr]}, 16, {plo[rr]}', f'v_xor_b32 {plo[rr]}, {plo[rr]}, {t1}']
                L += [f's_add_u32 {sT0}, {sLb}, {L_PHI}', f'v_add_u32 {pa_}, {sT0}, {v_l16}', f'ds_write_b128 {pa_}, {plo}']
                for x in L: A(x)
            if k == OPT['gat']:
                for s in ldg: tkg = C.vm(s)
            touch(tl[k])
            if 6 - nm <= k < 6: B.step()
            if k == 6: B.free += [X0, X1]
            if k == 7: B.free += [Y0, Y1]
            if k in (6, 7) and (k != OPT['chk'] or OPT['qf']): B.quota(OPT[f'q{k}{self.typ}'])
            if k == OPT['chk']:
                C.wait(tkg)
                def chk():
                    for i in range(4): quad_diff(A, gq[i], tm[i], tm[4+i])
                    A(f'v_bitop3_b32 {tm[4]}, {sg[2]}, {sg[3]}, {sTag} bitop3:0x7e')
                    A(f'v_or3_b32 {tm[0]}, {tm[0]}, {tm[1]}, {tm[2]}\nv_or3_b32 {tm[0]}, {tm[0]}, {tm[3]}, {tm[4]}\nv_cmp_ne_u32 vcc, 0, {tm[0]}\ns_and_b64 s[4:5], vcc, exec')
                poll(A, '\n'.join(ldg), chk, first_loaded=True, sleep=OPT['slp'])
                L = []
                for i in range(4):
                    for r in range(4): L.append(f'v_and_b32 {gq[i][r]}, 0xffffff00, {gq[i][r]}')
                x = gq[0]
                for r in range(4): L += [f'v_add_f32 {x[r]}, {x[r]}, {gq[1][r]}', f'v_add_f32 {gq[2][r]}, {gq[2][r]}, {gq[3][r]}', f'v_add_f32 {x[r]}, {x[r]}, {gq[2][r]}']
                L += [f'v_permlane32_swap_b32 {x[0]}, {x[2]}', f'v_permlane32_swap_b32 {x[1]}, {x[3]}', f'v_add_f32 {x[0]}, {x[0]}, {x[2]}', f'v_add_f32 {x[1]}, {x[1]}, {x[3]}',
                      f'v_permlane16_swap_b32 {x[0]}, {x[1]}', f'v_add_f32 {x[0]}, {x[0]}, {x[1]}']
                L += [f's_lshl_b32 {sT0}, {sWQ}, 8', f's_add_u32 {sT0}, {sT0}, {L_CS}', f'v_lshl_add_u32 {ga}, {l}, 2, {sT0}', f'ds_write_b32 {ga}, {x[0]}']
                L += [f's_lshl_b32 {sT1}, {sWQ}, 7', f's_add_u32 {sT1}, {sT1}, {L_NM}', f'v_lshrrev_b32 {sa}, 2, {sa}', f'v_add_u32 {sa}, {sT1}, {sa}',
                      f'v_sub_f32 {sg[0]}, 0, {sg[0]}', f'v_mul_f32 {sg[2]}, {f2u(-LOG2E if F else LOG2E):#x}, {sg[1]}',
                      f'ds_write_b32 {sa}, {sg[0]}', f'ds_write_b32 {sa}, {sg[2]} offset:512']
                if not F: L.append(f'ds_write_b32 {sa}, {sg[1]} offset:1024')
                emit_sched(A, L)
                if k in (6, 7) and not OPT['qf']: B.quota(OPT[f'q{k}{self.typ}'])
            if k == 0: stampg(A, 8)
            if k == 1: stampg(A, 10)
            if k < 8:
                lg = k == 0 or k >= 6 - nm or (k == OPT['pk'] and not F)
                if lg and stl[k]: A('s_waitcnt lgkmcnt(0)'); lg = False
                stouch(A, sc[0], sc[0] + stl[k]); sc[0] += stl[k]
                if k < 7: C.wait(self.stok[k+1], 'lgkmcnt(0)' if lg else '')
                else: A('s_waitcnt lgkmcnt(0)')
                G.done = G.n
                if k == 0: stampg(A, 9)
                if k == 3: stampc(A, 3)
                stampb(A, 2 + k)
                A('s_barrier')
                if k == 3: stampc(A, 4)
        stamp(A, 5)
        if OPT['lprio']: A('s_setprio 0')
        if OPT['dbg'] & (1 if F else 2):
            A(f's_mov_b32 {sW2[2]}, 0\ns_mov_b32 {sWO[2]}, 0')
        if OPT['dbg'] & 4 and F:
            A('s_sleep 60')
        B.wleft = list(range(4 - OPT['wol' + self.typ], 4))
        def wo(ks):
            for k in ks:
                if k not in B.wleft:
                    for f in B.wo_list(k): f()
        A(f's_and_b32 {sF[2]}, {sI2}, 2')
        B.dep = OPT['dep' + self.typ]
        wob = OPT['wob'] if F else OPT['wobA']
        stampe(A, 1)
        mark = len(A.L)
        B.flush()
        while B.next < wob and B.step():
            if B.next % 2 == 1 and B.next > 2: stampe(A, 2 + (B.next-3)//2)
        wo([0, 1])
        stampe(A, 8)
        while B.step(): pass
        wo([2, 3])
        if OPT['ah']:
            idx = [i for i in range(mark, len(A.L)) if A.L[i].startswith('buffer_load')]
            i = idx[-OPT['ah']] + 1
            assert not any('lgkmcnt' in x for x in A.L[i:])
            A.L[i:i] = [f's_mov_b32 {sE[2]}, 0', f's_atomic_add {sE[2]}, {sWS[0:2]}, {sF[1]} glc', f's_add_u32 {sE[3]}, {sTag}, 4']
        stampe(A, 9)
        assert not B.fly
        stamp(A, 6)
        return B

def p2_L(A, B0, typ):
    l = lane; C = Ctx(A); G = LG(A)
    B = BP(A, C, G); B.slot = dict(B0.slot); B.tokwo = 0
    stamp(A, 7); stampe(A, 10)
    if OPT['ah']:
        lk = A.lab('H1')
        A(f's_waitcnt lgkmcnt(0)\ns_cmp_eq_u32 {sE[2]}, {sE[3]}\ns_cbranch_scc1 {lk}')
    ppoll(A, sF[1], 4, OPT['Dh'], 44, OPT['slph'])
    if OPT['ah']: A(f'{lk}:')
    stamp(A, 9); stampf(A, 0)
    tok = {}
    def a_off(s): return [nib(sE[1], s), f's_lshl_b32 {sE[1]}, {sE[1]}, 12', f's_add_u32 {sE[1]}, {sE[1]}, {sAb}']
    def ld_a(s, tt):
        tok[(s, tt)] = C.vm(f'buffer_load_dwordx4 {RS[8 + s % 3][4*tt:4*tt+4]}, {va[tt]}, {sWS}, {sE[1]} offen ' + ['sc1', '', 'sc0', 'nt', 'sc0 sc1'][OPT['hld']])
    la = OPT['la' + typ]
    seq = [(s, tt) for s in range(14) for tt in ([1, 2, 3, 0] if s == 13 else [0, 1, 2, 3])]
    for n in range(la):
        if n % 4 == 0:
            for x in a_off(n // 4): A(x)
        ld_a(*seq[n])
    chk_at = {(8*PH[p-1] - la) // 4: p for p in range(1, len(PH))}
    asy_at = {}
    prev = 0
    for st_, p in sorted(chk_at.items()): asy_at[max(prev, st_ - OPT['pa3'])] = p; prev = st_
    assert la <= 8*PH[0] and len(asy_at) == len(chk_at)
    A(f's_add_u32 {sE[3]}, {sTag}, 4')
    G.done = G.n
    tokB = {k: 0 for k in range(8)}
    Q = []; X = []
    for k in B0.wleft: X += B.wo_list(k)
    sig = False
    wa, t, a, vm_ = [RS[0][i] for i in range(4)]; ra = [RS[0][4+i] for i in range(3)]; c = RS[1]; W = []
    tail = [f's_add_u32 {sT0}, {sLb2}, {Y0}', f'v_add_u32 {wa}, {sT0}, {v_l16}']
    for sg in range(1, 4):
        tail += [f's_sub_u32 {sT0}, {sWQ}, {sg}', f's_and_b32 {sT0}, {sT0}, 3', f's_lshl_b32 {sT0}, {sT0}, 12', f's_add_u32 {sT0}, {sT0}, {Y0 + 16384*(sg-1)}', f'v_add_u32 {ra[sg-1]}, {sT0}, {v_l16}']
    tail += [f'v_mov_b32 {c[0]}, {f2u(-LOG2E):#x}', f'v_mov_b32 {c[1]}, {c[0]}', f'v_mov_b32 {c[2]}, 1.0', f'v_mov_b32 {c[3]}, 1.0', f'v_add_u32 {a}, {sLb2}, {v_l16}', f'v_mov_b32 {vm_}, {L_TAG}', f'v_mov_b32 {t}, 1']
    for s in range(14):
        Bk = RS[RSL[s]]; Ak = RS[8 + s % 3]
        if OPT['lp2'] and s == OPT['lpr']: A('s_setprio 0')
        if OPT['lp2'] and s == OPT['lps' + typ]: A(f's_setprio {OPT["lp2"]}')
        def asy():
            A(f's_mov_b32 {sE[2]}, 0\ns_atomic_add {sE[2]}, {sWS[0:2]}, {sF[1]} offset:{PHO[asy_at[s]]} glc')
        if s in asy_at and chk_at.get(s) == asy_at[s]: asy()
        if s in chk_at:
            lk = A.lab('H2')
            G.all()
            A(f's_cmp_eq_u32 {sE[2]}, {sE[3]}\ns_cbranch_scc1 {lk}')
            A(f's_mov_b32 {sE[4]}, {sT0}\ns_mov_b32 {sE[5]}, {sT1}')
            spoll(A, f'{sF[1]} offset:{PHO[chk_at[s]]}', 4, OPT['slph'])
            A(f's_mov_b32 {sT0}, {sE[4]}\ns_mov_b32 {sT1}, {sE[5]}')
            A(f'{lk}:')
        if s in asy_at and chk_at.get(s) != asy_at[s]: asy()
        G.need(tokB[LOAD.index(s)], 0)
        nx = 0
        order = [1, 2, 3, 0] if s == 13 else [0, 1, 2, 3]
        for ti, tt in enumerate(order):
            nl = 4*s + ti + la
            S = a_off(nl // 4) if (nl % 4 == 0 and nl < 56) else []
            C.wait(tok[(s, tt)])
            if not sig and not X and tok[(s, tt)] > B.tokwo and (s == 0 or s > 4):
                if s == 0: A(f's_mov_b64 exec, 1\nds_add_u32 {pm}, {p1} offset:4\ns_mov_b64 exec, -1')
                else: A(f'v_mov_b32 {vb0}, {L_TAG}\nv_mov_b32 {vb1}, 1\ns_mov_b64 exec, 1\nds_add_u32 {vb0}, {vb1} offset:4\ns_mov_b64 exec, -1')
                G.n += 1; sig = True
            for q in range(4):
                ac = ACCL[16*tt+4*q:16*tt+4*q+4]
                A(f'v_mfma_f32_16x16x32_bf16 {ac}, {Bk[4*q:4*q+4]}, {Ak[4*tt:4*tt+4]}, {ac if s else 0}')
                if S: A(S.pop(0))
                elif q == 1 and X and nx < (4 if s == 3 else OPT['wper']): X.pop(0)(); nx += 1
                if Q and q < 3:
                    tokB[qk] = G.ds(Q.pop(0))
                elif s >= 10 and tail: A(tail.pop(0))
                if s == 13:
                    if tt: W.append(f'ds_write_b128 {wa}, {ac} offset:{16384*(tt-1) + 1024*q}')
                    if 4*ti + q >= 4 + OPT['wdel']: A(W.pop(0))
            if nl < 56: ld_a(*seq[nl])
            if OPT['gs'] and nl == OPT['gs']:
                assert not X and s > 4
                A(f'v_mov_b32 {vb0}, {L_TAG}\nv_mov_b32 {vb1}, 1\ns_mov_b64 exec, 1\nds_add_u32 {vb0}, {vb1} offset:12\ns_mov_b64 exec, -1')
                G.n += 1
        assert not Q
        if s in (0, 1, 3, 5, 7, 9, 11, 13): stampf(A, 1 + (s+1)//2)
        if s == 2:
            while len(X) % 4: X.pop(0)()
            G.need(tokB[8]); X = B.dma_list(13, B.slot[8]) + X
        if s == 3:
            while len(X) % 4: X.pop(0)()
        if s + 8 < 13: qk = s + 8; Q = B.trl(qk)
        if s == 8:
            assert tok[(8, 3)] > B.tok[13]
            qk = 13; Q = B.trl(13)
    assert sig and not tail and not X
    for x in W: A(x)
    stamp(A, 10)
    if OPT['lpt']: A(f's_setprio {OPT["lpt"]}')
    A(f's_mov_b64 exec, 1\nds_add_u32 {vm_}, {t} offset:8\ns_mov_b64 exec, -1')
    lds_spin(A, vm_, 8, 4, t)
    stampf(A, 9)
    for u in range(4):
        for sg in range(3): A(f'ds_read_b128 {RS[2+sg][4*u:4*u+4]}, {ra[sg]} offset:{1024*u}')
    P = ACCL[0:16]; e = ACCL[16:32]
    for u in range(4):
        A(f's_waitcnt lgkmcnt({9 - 3*u})')
        for i in (2*u, 2*u+1):
            A(f'v_pk_add_f32 {P[2*i:2*i+2]}, {P[2*i:2*i+2]}, {RS[2][2*i:2*i+2]}\nv_pk_add_f32 {RS[3][2*i:2*i+2]}, {RS[3][2*i:2*i+2]}, {RS[4][2*i:2*i+2]}')
        for i in (2*u, 2*u+1): A(f'v_pk_add_f32 {P[2*i:2*i+2]}, {P[2*i:2*i+2]}, {RS[3][2*i:2*i+2]}')
    L = []
    for u in range(4):
        for i in (2*u, 2*u+1): L.append(f'v_pk_mul_f32 {e[2*i:2*i+2]}, {P[2*i:2*i+2]}, {c[0:2]}')
        for i in range(4*u, 4*u+4): L.append(f'v_exp_f32 {e[i]}, {e[i]}')
        for i in (2*u, 2*u+1): L.append(f'v_pk_add_f32 {e[2*i:2*i+2]}, {e[2*i:2*i+2]}, {c[2:4]}')
        for i in range(4*u, 4*u+4): L.append(f'v_rcp_f32 {e[i]}, {e[i]}')
        for i in (2*u, 2*u+1): L.append(f'v_pk_mul_f32 {e[2*i:2*i+2]}, {e[2*i:2*i+2]}, {P[2*i:2*i+2]}')
        L.append(f'ds_write_b128 {a}, {e[4*u:4*u+4]} offset:{X0 + 1024*u}')
    emit_sched(A, L)
    A('s_waitcnt lgkmcnt(0)')
    stamp(A, 8); stampf(A, 10)
    A('s_setprio 0\ns_barrier')

def kernel(A):
    K = NAME + '_kernel'
    l = lane
    A(f'.globl {K}\n.p2align {OPT["pa"]}\n.type {K},@function\n{K}:')
    if OPT['stamp']: A(f's_memrealtime s[72:73]' if OPT['stamp'] < 3 else 's_memtime s[72:73]')
    A(f's_load_dwordx2 {sX[0:2]}, s[0:1], 0')
    A(f's_bitcmp1_b32 s2, 6\ns_cselect_b32 s7, 40, 8')
    A(f's_load_dwordx2 {sW[0:2]}, s[0:1], s7')
    A(f's_load_dwordx2 {sWS[0:2]}, s[0:1], 72')
    if OPT['warm']:
        A(f'v_lshlrev_b32 v2, {OPT["warm"]}, v0\ns_waitcnt lgkmcnt(0)')
        stampg(A, 1)
        A(f'global_load_dword v255, v2, {sX[0:2]}\nglobal_load_dword v255, v2, {sW[0:2]}')
    A(f's_movk_i32 {sLrow}, 3072\ns_cmovk_i32 {sLrow}, 3584\ns_movk_i32 {sWb}, 128\ns_cmovk_i32 {sWb}, 448\ns_cselect_b32 s3, 2, 0')
    A('s_lshr_b32 s4, s2, 8\ns_cbranch_scc1 K_done')
    rho, t, k = R('v',13,1), R('v',14,1), R('v',15,1)
    A(f'v_readfirstlane_b32 {sLb}, v0\ns_lshr_b32 s5, s2, 3')
    if OPT['touch'] & 1:
        A(f's_getpc_b64 s[6:7]\nL_pc:')
        A(f's_lshl_b32 s4, s5, 11\nv_lshl_add_u32 v2, v0, 2, s4\nv_min_u32 v2, K_done-L_pc, v2')
        A(f'global_load_dword v255, v2, s[6:7]')
    fx, fw = OPT['flip'] & 2, OPT['flip'] & 1
    sLx, sLw = sE[4], sE[5]
    A(f'v_lshrrev_b32 {t}, 4, v0\nv_xor_b32 {k}, {t}, v0\nv_and_b32 {k}, 7, {k}\nv_lshlrev_b32 {k}, 4, {k}\nv_lshrrev_b32 {rho}, 3, v0')
    A(f'v_lshl_add_u32 {vx0}, {rho}, 10, {k}')
    A(f's_and_b32 s4, s5, 7\ns_and_b32 s6, s2, 1\ns_lshl3_add_u32 {sI}, s6, s4\ns_lshr_b32 s6, s2, 6\ns_lshr_b32 s7, s2, 1')
    assert OPT['rot'] == 4
    if fx: A(f's_lshr_b32 s5, s2, 2\ns_and_b32 s5, s5, 1\ns_add_u32 s5, s5, s4\ns_lshl1_add_u32 s5, s6, s5')
    else: A(f's_add_u32 s5, s4, s6')
    A(f's_and_b32 s5, s5, 3\ns_xor_b32 {sRot}, s7, s2\ns_and_b32 {sRot}, {sRot}, 1\ns_lshl2_add_u32 {sRot}, {sRot}, s5')
    A(f's_and_b32 s7, s7, 3\ns_lshl2_add_u32 {sJJ}, s7, s6')
    b0 = phys(0)
    A(f's_lshl_b32 {sXb}, {sI}, 17\ns_lshl_b32 {sXo}, {sRot}, 7\ns_add_u32 {sXo}, {sXo}, {sXb}')
    A(f's_lshl_b32 {sX[2]}, 1, 21\ns_lshl_b32 {sX[3]}, 1, 17\ns_lshl_b32 {sLb}, {sLb}, 4')
    if fx:
        A(f's_lshr_b32 s5, s2, 7\ns_lshl_b32 s7, s5, 15\nv_xor_b32 {vx0}, s7, {vx0}\ns_lshl_b32 s5, s5, 12\ns_xor_b32 {sLx}, {sLb}, s5')
    else: sLx = sLb
    A(f'v_add_u32 {vx1}, 0x10000, {vx0}\ns_add_u32 m0, {sLx}, {b0}')
    A(f'v_lshlrev_b32 {v_l16}, 4, v0\nv_and_b32 v9, 0xfffffe00, {v_l16}\nv_add_u32 v9, v9, {v_l16}\ns_lshl_b32 {sE[0]}, {sJJ}, 13\ns_add_u32 {sE[0]}, {sE[0]}, {sXb}')
    A(f's_cmp_ge_u32 {sLb}, 4096')
    if not OPT['warm']: stampg(A, 1)
    A('s_waitcnt lgkmcnt(0)')
    stampg(A, 2)
    A('s_cbranch_scc1 K_norow')
    A(f's_load_dword {sTag}, {sWS[0:2]}, {EPOCH}')
    A(f'buffer_load_dwordx4 {xrow[0:4]}, v9, {sX}, {sE[0]} offen\nbuffer_load_dwordx4 {xrow[4:8]}, v9, {sX}, {sE[0]} offen offset:512')
    A('K_norow:')
    A(f'buffer_load_dwordx4 {vx0}, {sX}, {sXo} offen lds')
    A(f's_add_u32 m0, {sLx}, {b0+8192}\ns_lshr_b32 {sJ}, {sJJ}, 1\nbuffer_load_dwordx4 {vx1}, {sX}, {sXo} offen lds')
    A(f'v_bfi_b32 {k}, 2, {rho}, {t}\nv_and_b32 {k}, 6, {k}\nv_xor_b32 {k}, {k}, v0\nv_and_b32 {k}, 7, {k}\nv_lshlrev_b32 {k}, 4, {k}')
    if fw: A(f's_and_b32 s5, s2, 32\nv_xor_b32 {rho}, s5, {rho}\ns_lshl_b32 s5, s5, 7\ns_xor_b32 {sLw}, {sLb}, s5')
    else: sLw = sLb
    A(f'v_mad_u32_u24 {vw}, {rho}, {sLrow}, {k}')
    A(f's_mul_i32 {sWb}, {sWb}, {sJ}\ns_add_u32 {sWb}, {sWb}, 64\ns_and_b32 {sWb}, {sWb}, 0xffffff80')
    A(f's_lshl_b32 {sW[2]}, {sLrow}, 9\ns_mov_b32 {sW[3]}, {sX[3]}\ns_lshl_b32 {sT0}, {sRot}, 6\ns_mul_i32 {sT0}, {sT0}, {sLrow}\ns_add_u32 {sWo}, {sT0}, {sWb}')
    A(f's_add_u32 m0, {sLw}, {b0+16384}\ns_cmp_eq_u32 s3, 0\nbuffer_load_dwordx4 {vw}, {sW}, {sWo} offen lds')
    A(f's_cselect_b32 {sE[2]}, 10, 7\ns_lshl_b32 {sE[2]}, 1, {sE[2]}\ns_add_u32 {sE[3]}, {sWo}, {sE[2]}')
    A(f's_add_u32 m0, {sLw}, {b0+24576}\ns_add_u32 {sE[2]}, {sE[3]}, {sE[2]}\nbuffer_load_dwordx4 {vw}, {sW}, {sE[3]} offen lds')
    A(f's_add_u32 m0, {sLw}, {b0+32768}\ns_lshr_b32 {sWV}, {sLb}, 10\nbuffer_load_dwordx4 {vw}, {sW}, {sE[2]} offen lds')
    A(f'v_and_b32 v1, 63, v0\nv_lshlrev_b32 {v_l16}, 4, v1')
    if OPT['stamp']:
        for i in range(3 if OPT['stamp'] == 7 else 1, NS): A(f's_mov_b64 s[{72+2*i}:{73+2*i}], 0')
    A(f's_lshl_b32 {sWS[2]}, 1, 24\ns_mov_b32 {sWS[3]}, {sX[3]}')
    A(f's_and_b32 {sWQ}, {sWV}, 3\ns_lshr_b32 s4, {sWV}, 2\ns_add_u32 s3, s3, s4')
    stampg(A, 3)
    A('s_cmp_eq_u32 s3, 1\ns_cbranch_scc1 K_LA\ns_cmp_eq_u32 s3, 0\ns_cbranch_scc1 K_CA\ns_cmp_eq_u32 s3, 2\ns_cbranch_scc1 K_CF')
    Bs = []
    for typ in 'FA':
        A(f'K_L{typ}:')
        Bs.append(LW(A, typ).run())
        p2_L(A, Bs[-1], typ); A('s_branch K_end')
    A('K_CF:')
    c = CW(A, 'F'); c.prologue(); c.main(); c.epi_F()
    A('s_branch K_C2')
    A('K_CA:')
    c = CW(A, 'A'); c.prologue(); c.main(); c.epi_A()
    A('K_C2:')
    p2_C(A)
    A('K_end:')
    stamp_out(A)
    A('K_done:\ns_endpgm')

def add_stubs(body):
    dummy = [f'WS_{t}{c}:' for t in 'FA' for c in range(4)]
    S = sizes_of(body + dummy)
    reg = None; off = 0x300; n = 0; page = 0
    marks = []; nb = {}
    for k, l in enumerate(body):
        if l.endswith(':'):
            if l[:-1] in ('K_LF', 'K_LA', 'K_CF', 'K_CA', 'K_C2', 'K_end'):
                reg = l[2:-1] if l != 'K_end:' else None
                if reg == 'C2': marks.append((k + 1, reg)); off += 8
                if reg == 'LA' and OPT['ia']:
                    body[k] = '.p2align 12\n' + l; off = (off + 4095) & ~4095; page = off >> 10
            continue
        if l.startswith('.'): continue
        if l == 's_barrier': nb[reg] = nb.get(reg, 0) + 1
        fine = reg and ((OPT['stub'] >= 2 and reg in ('CF', 'CA') and 1 <= nb.get(reg, 0) < OPT['stbe']) or (OPT['stub'] >= 3 and reg[0] == 'L' and 1 <= nb.get(reg, 0) < 9))
        if off >> 10 != page:
            pg = off >> 12 != page >> 2
            page = off >> 10
            if reg and (pg or fine): marks.append((k, reg)); off += 8
        off += S[n]; n += 1
    lst = {r: [k for k, rr in marks if rr == r] for r in ('LF', 'LA', 'CF', 'CA', 'C2')}
    print('stubs', {r: len(v) for r, v in lst.items()})
    ins = {}
    for k in lst['C2']: ins[k] = [f'WS_{k}:', 's_cbranch_execz K_wret', 's_nop 0']
    for t in 'FA':
        own = lst['C' + t] + lst['L' + t]
        ch = [own[c::4] for c in range(4)]
        for i, k in enumerate(lst['C2']): ch[3 - i].append(k)
        for c in range(4):
            for i, k in enumerate(ch[c]):
                if k not in ins: ins[k] = [f'WS_{k}:', f's_cbranch_execz ' + (f'WS_{ch[c][i+1]}' if i + 1 < len(ch[c]) else f'WR_{t}'), 's_nop 0']
            ins[ch[c][0]].insert(0, f'WS_{t}{c}:')
    out = []
    for k, l in enumerate(body):
        out += ins.get(k, []); out.append(l)
    return out
def build():
    A = Asm(); kernel(A)
    body = fix_hazards(A.L, verbose=True)
    dummy = [f'WS_{t}{c}:' for t in 'FA' for c in range(4)] if OPT['stub'] else []
    if OPT['al']: body = align8(body + dummy, verbose=True)
    if OPT['stub']: body = add_stubs(body[:-8])
    K = NAME + '_kernel'
    hdr = ['; @launch grid=(256,1,1) block=(512,1,1) lds=163840', '.amdgcn_target "amdgcn-amd-amdhsa--gfx950"', '.text']
    tail = ['.section .rodata,"a"', '.p2align 6', f'''.amdhsa_kernel {K}
  .amdhsa_next_free_vgpr 256
  .amdhsa_next_free_sgpr 102
  .amdhsa_accum_offset 256
  .amdhsa_group_segment_fixed_size 0
  .amdhsa_kernarg_size 80
  .amdhsa_user_sgpr_count 2
  .amdhsa_user_sgpr_kernarg_segment_ptr 1
  .amdhsa_system_sgpr_workgroup_id_x 1
.end_amdhsa_kernel''']
    return '\n'.join(hdr + body + tail) + '\n'
if __name__ == '__main__':
    open(sys.argv[1], 'w').write(build())
```

```python
import sys, struct
from asmlib import *
NAME = 'recurrent_scan__linear_kernel_hedgehog__dense_activation_silu__prompt'
SZ_X, SZ_QKV, SZ_PHI, SZ_WO, SZ_W1, SZ_W2, SZ_OUT, SZ_WS = 2048*512*2, 512*1536*2, 32*16*16*2, 512*512*2, 512*1792*2, 1792*512*2, 2048*512*2, 0x1000000
EPOCH, STAT, KT, CSP, CNT, ACT, KP = 0, 0x8000, 0x10000, 0x40000, 0x80000, 0x100000, 0xB00000
OOB = 0x40000000
SB = 45056
def phys(s): return (2 - s % 3) * SB
X0, X1, WOB, Y0, Y1, TS, MISC = 0, 16384, 32768, 102400, 118784, 135168, 151552
L_NM, L_RL, L_R, L_CS, L_TAG = MISC, MISC+512, MISC+1024, MISC+1536, MISC+2560
L_SG, L_PHI = MISC+2624, MISC+4096
JUNK = MISC + 8192
LOG2E = 1.4426950408889634
def f2u(x): return struct.unpack('<I', struct.pack('<f', x))[0]
OPT = dict(stamp=0, touch=5, spin=1<<16, slp=2, hold=3, keep=8, nmA=0, nmF=0, n6A=2, n7A=2, n6F=2, n7F=2, sp0=6, wob=4, wobA=4, tlA=0, tlF=0, gat=5, chk=7, opoll=0, lprio=1, brot=0, npre=9, vmgap=64, dbg=0, hst=0, rot=4, lord=3, r2=0, j3=0, c3=5, flip=1, warm=0, qf=0, tk=2, pk=0, spm=3, stk=2, q6A=8, q7A=8, q6F=8, q7F=8, sp1=99, laA=11, laF=11, wdel=2, lag=3, wolA=0, wolF=4, wper=4, cprio=0, opk=1, depA=8, depF=8, al=1, ack1=0, ack2=0, slpa=0, slph=2, slpo=4, ost=1, hld=0, old=0, j3k=1, j3p=0, st='0000000', stl=0, stcp=0, sti=0, c3F=0, ph0=0, stub=1, stc=0, sc3=0, pa=12, ia=1, stbe=9, kva=1, lp2=0, xr=0, ph=2467, pa3=3, gs=55, ah=3, lpr=14, lpt=2, lpsA=0, lpsF=0, tto=0, qa=2, qb=1, Rk=1, Dk=0, Ro=1, Do=0, Rh=1, Dh=0, psl=5)
for a in sys.argv[2:]:
    k, v = a.split('='); assert k in OPT, k; OPT[k] = v if k == 'st' else int(v)

sX, sW, sWS, sPHI, sW2, sOUT, sWO = [R('s', 8+4*i, 4) for i in range(7)]
(sI, sJ, sWV, sWQ, sRot, sT0, sT1, sXo, sWo, sHo, sXb, sWb, sHb, sLb, sTag, sSpin,
 sI2, sJ2, sCur, sCurA, sBb, sAb, sLb2, sJJ, sLrow, sTB1, sTB2, sTB3) = [R('s', 36+i, 1) for i in range(28)]
sTB = [sTag, sTB1, sTB2, sTB3]
sM2 = R('s', 64, 2)
sE = [R('s', 66+i, 1) for i in range(6)]
NS = 12
sSel = [R('s', 96, 1), R('s', 97, 1)]; sF = [R('s', 98+i, 1) for i in range(4)]
lane = R('v', 1, 1)
v_l16 = R('v', 3, 1)
vx0, vx1, vw = R('v', 10, 1), R('v', 11, 1), R('v', 12, 1)
xrow = R('v', 240, 8)

class Ctx:
    def __init__(self, A): self.A = A; self.n = 0
    def vm(self, s):
        self.A(s); self.n += 1; return self.n
    def wait(self, tok, extra=''):
        k = min(self.n - tok, 63); assert k >= 0
        self.A(f's_waitcnt vmcnt({k}) {extra}'.strip())
class LG:
    def __init__(self, A): self.A = A; self.n = 0; self.done = 0
    def ds(self, s):
        self.A(s); self.n += 1; return self.n
    def need(self, tok, keep=None):
        if tok <= self.done: return
        k = min(self.n - tok, OPT['keep'] if keep is None else keep, 15)
        self.A(f's_waitcnt lgkmcnt({k})'); self.done = self.n - k
    def all(self):
        self.A('s_waitcnt lgkmcnt(0)'); self.done = self.n
def stamp(A, i):
    if OPT['stamp'] == 9:
        A(f's_memrealtime s[{72+2*i}:{73+2*i}]'); return
    if OPT['stamp'] == 3: A(f's_memtime s[{72+2*i}:{73+2*i}]')
    elif OPT['stamp'] == 1 or (OPT['stamp'] and i == NS-1): A(f's_memrealtime s[{72+2*i}:{73+2*i}]')
def stampb(A, i):
    if OPT['stamp'] == 4: A(f's_memtime s[{72+2*i}:{73+2*i}]')
def stampe(A, i):
    if OPT['stamp'] == 5 and i < 11: A(f's_memtime s[{72+2*i}:{73+2*i}]')
def stampf(A, i):
    if OPT['stamp'] == 6 and i < 11: A(f's_memtime s[{72+2*i}:{73+2*i}]')
def stampg(A, i):
    if OPT['stamp'] == 7 and i < 11: A(f's_memtime s[{72+2*i}:{73+2*i}]')
def stampc(A, i):
    if OPT['stamp'] == 2: A(f's_memtime s[{72+2*i}:{73+2*i}]')
def stamp_out(A):
    if not OPT['stamp']: return
    A(f's_waitcnt vmcnt(0)')
    stamp(A, NS-1)
    A('s_waitcnt lgkmcnt(0)')
    if OPT['stamp'] == 9:
        A('s_load_dwordx2 s[4:5], s[0:1], 64\ns_waitcnt lgkmcnt(0)')
        for i in range(NS): A(f's_atomic_umax s{72+2*i}, s[4:5], {4*i}')
        A('s_not_b32 s72, s72\ns_atomic_umax s72, s[4:5], 48\ns_waitcnt lgkmcnt(0)')
        return
    A(f's_lshl_b32 s4, s2, 3\ns_add_u32 s4, s4, {sWV}\ns_lshl_b32 s4, s4, 7\ns_add_u32 s4, s4, {15*1024*1024}')
    A(f'v_lshlrev_b32 v2, 26, v1')
    for i in range(NS):
        A(f'v_mov_b32 v4, s{72+2*i}\nv_mov_b32 v5, s{73+2*i}\nbuffer_store_dwordx2 v[4:5], v2, {sWS}, s4 offen offset:{8*i}')
    A(f's_getreg_b32 s5, hwreg(HW_REG_XCC_ID)\ns_getreg_b32 s6, hwreg(HW_REG_HW_ID)\nv_mov_b32 v4, s5\nv_mov_b32 v5, s6\nbuffer_store_dwordx2 v[4:5], v2, {sWS}, s4 offen offset:96')
def srd(A, s, off, size):
    A(f's_load_dwordx2 {s[0:2]}, s[0:1], {off}\ns_mov_b32 {s[2]}, {size}\ns_mov_b32 {s[3]}, 0x20000')
def dpp_add(v, m): return f'v_add_f32_dpp {v}, {v}, {v} {m} row_mask:0xf bank_mask:0xf'
def emit_sched(A, L, name='', **kw):
    out, t, nops = sched(L, **kw)
    if name: print(f'  sched {name}: {len(out)} instrs, est {t} clk, nops {nops}')
    for x in out: A(x)
def poll(A, ld, check, first_loaded=False, sleep=1, mask_exec=False):
    l0, l1, l2 = A.lab('PL'), A.lab('PC'), A.lab('PD')
    A(f's_mov_b32 {sSpin}, {OPT["spin"]}')
    if first_loaded: A(f's_branch {l1}')
    A(f'{l0}:'); A(ld); A('s_waitcnt vmcnt(0)')
    if mask_exec: A('s_mov_b64 exec, -1')
    A(f'{l1}:')
    check()
    A(f's_cbranch_scc0 {l2}')
    if sleep: A(f's_sleep {sleep}')
    if mask_exec: A('s_mov_b64 exec, s[4:5]')
    A(f's_sub_u32 {sSpin}, {sSpin}, 1\ns_cbranch_scc0 {l0}')
    if mask_exec: A('s_mov_b64 exec, -1')
    A(f'{l2}:')
def chk_words(A, regs, tmp):
    def f():
        if len(regs) == 1: A(f'v_cmp_ne_u32 vcc, {sTag}, {regs[0]}')
        else:
            np_ = len(regs)//2
            for i in range(np_): A(f'v_bitop3_b32 {tmp[i]}, {regs[2*i]}, {regs[2*i+1]}, {sTag} bitop3:0x7e')
            i = 1
            while i < np_:
                if i + 1 < np_: A(f'v_or3_b32 {tmp[0]}, {tmp[0]}, {tmp[i]}, {tmp[i+1]}'); i += 2
                else: A(f'v_or_b32 {tmp[0]}, {tmp[0]}, {tmp[i]}'); i += 1
            A(f'v_cmp_ne_u32 vcc, 0, {tmp[0]}')
        A(f's_and_b64 s[4:5], vcc, exec')
    return f
def spoll(A, so, n, sleep):
    l0, l1 = A.lab('SP'), A.lab('SD')
    A(f's_add_u32 {sT1}, {sTag}, {n}\ns_mov_b32 {sSpin}, {OPT["spin"]}')
    A(f'{l0}:\ns_mov_b32 {sT0}, 0\ns_atomic_add {sT0}, {sWS[0:2]}, {so} glc\ns_waitcnt lgkmcnt(0)\ns_cmp_eq_u32 {sT0}, {sT1}\ns_cbranch_scc1 {l1}')
    if sleep: A(f's_sleep {sleep}')
    A(f's_sub_u32 {sSpin}, {sSpin}, 1\ns_cbranch_scc0 {l0}\n{l1}:')
def ppoll_pre(A, so, D, base, clear=True):
    if not D: return
    if clear:
        A('s_waitcnt lgkmcnt(0)')
        for d in range(D): A(f's_mov_b32 s{base+2*d}, {sTag}\ns_sub_u32 s{base+2*d+1}, {sTag}, 1')
def ppoll(A, so, n, D, base, sleep, pre=True):
    if not D: return spoll(A, so, n, sleep)
    l0, l1 = A.lab('PP'), A.lab('PQ')
    ppoll_pre(A, so, D, base, pre)
    A(f's_add_u32 {sT1}, {sTag}, {n}\ns_mov_b32 {sSpin}, {OPT["spin"]}')
    at = lambda d: f's_atomic_cmpswap s[{base+2*d}:{base+2*d+1}], {sWS[0:2]}, {so} glc'
    for d in range(1, D): A(at(d) + f'\ns_sleep {2*OPT["psl"]//D}')
    A(f'{l0}:')
    for d in range(D):
        A(at(d) + f'\ns_waitcnt lgkmcnt({D-1})\ns_cmp_eq_u32 s{base + 2*((d+1) % D)}, {sT1}\ns_cbranch_scc1 {l1}')
    A(f's_sub_u32 {sSpin}, {sSpin}, 1\ns_cbranch_scc0 {l0}\n{l1}:')
def sarrive(A, *sos):
    A(f's_waitcnt vmcnt(0)')
    for so in sos: A(f's_atomic_add {sLrow}, {sWS[0:2]}, {so}')
def cnt_i2(A, d, i2, extra):
    A(f's_lshr_b32 {d}, {i2}, 1\ns_lshl_b32 {d}, {d}, 14\ns_and_b32 s4, {i2}, 1\ns_lshl_b32 s4, s4, 11\ns_add_u32 {d}, {d}, s4\ns_add_u32 {d}, {d}, {CNT + extra}')
def quad_diff(A, q, d, t):
    A(f'v_perm_b32 {d}, {q[1]}, {q[0]}, {sSel[0]}\nv_perm_b32 {t}, {q[3]}, {q[2]}, {sSel[1]}\nv_bitop3_b32 {d}, {d}, {t}, {sTag} bitop3:0x96')
def tag_consts(A):
    A(f's_lshr_b32 {sTB1}, {sTag}, 8\ns_lshr_b32 {sTB2}, {sTag}, 16\ns_lshr_b32 {sTB3}, {sTag}, 24')
    A(f's_mov_b32 {sSel[0]}, 0x0c0c0400\ns_mov_b32 {sSel[1]}, 0x04000c0c')
def tag_quad(q, ff): return [f'v_bfi_b32 {q[k]}, {ff}, {sTB[k]}, {q[k]}' for k in range(4)]
def lds_spin(A, va, off, n, vt):
    l0, l1 = A.lab('LS'), A.lab('LD')
    A(f's_mov_b32 {sSpin}, {OPT["spin"]*4}')
    A(f'{l0}:\nds_read_b32 {vt}, {va} offset:{off}\ns_waitcnt lgkmcnt(0)\nv_readfirstlane_b32 {sT0}, {vt}\ns_cmp_ge_u32 {sT0}, {n}\ns_cbranch_scc1 {l1}')
    A(f's_sleep 1\ns_sub_u32 {sSpin}, {sSpin}, 1\ns_cbranch_scc0 {l0}\n{l1}:')
def lds_inc(A, va, off, vt):
    A(f'v_mov_b32 {vt}, 1\ns_mov_b64 exec, 1\nds_add_u32 {va}, {vt} offset:{off}\ns_mov_b64 exec, -1')
def p2_ids(A):
    A(f's_and_b32 s4, s2, 7\ns_lshr_b32 s5, s2, 3')
    A(f's_lshl_b32 s4, s4, 2\ns_lshr_b32 s6, s5, 3\ns_add_u32 {sI2}, s4, s6\ns_and_b32 {sJ2}, s5, 7')
def tr_addr(A, vab, base, t0, t1):
    l = lane
    A(f'v_lshrrev_b32 {t0}, 2, {l}\nv_lshlrev_b32 {t0}, 7, {t0}\nv_and_b32 {t1}, 3, {l}\nv_lshl_add_u32 {t0}, {t1}, 3, {t0}\nv_add_u32 {t0}, {base}, {t0}')
    A(f'v_bfe_u32 {t1}, {l}, 3, 2')
    for q in range(4):
        A(f'v_xor_b32 {vab[q]}, {q}, {t1}\nv_lshl_add_u32 {vab[q]}, {vab[q]}, 5, {t0}')

def stouch(A, lo, hi, junk='s3'):
    if lo < min(hi, 36): A(f's_lshl2_add_u32 s6, s2, {sWQ}\ns_lshl_b32 s7, s6, 9\ns_mul_i32 s6, s6, 1792')
    for i in range(lo, min(hi, 72 if OPT['sc3'] else 36)):
        if i == max(lo, 36): A(f's_lshr_b32 s6, s2, 3\ns_lshl2_add_u32 s6, s6, {sWQ}\ns_lshl_b32 s7, s6, 12\ns_mul_i32 s6, s6, {14*1024}')
        if i < 28: A(f's_load_dword {junk}, {sW2[0:2]}, s6 offset:{64*i}')
        elif i < 36: A(f's_load_dword {junk}, {sWO[0:2]}, s7 offset:{64*(i-28)}')
        elif i < 64: A(f's_load_dword {junk}, {sW2[0:2]}, s6 offset:{(i-36)//2*1024 + 384 + 64*(i & 1)}')
        else: A(f's_load_dword {junk}, {sWO[0:2]}, s7 offset:{(i-64)//2*1024 + 384 + 64*(i & 1)}')
class CW:
    def __init__(self, A, typ):
        self.A = A; self.typ = typ
        self.C = Ctx(A); self.G = LG(A)
        self.V = Pool('v', 4, 256); self.V.at(9, 4); self.V.at(240, 16)
    def prologue(self):
        A, V, C, l, typ = self.A, self.V, self.C, lane, self.typ
        C.n = 7; tk_row = 2; self.tk0 = 7
        F = typ == 'F'
        srd(A, sOUT, 56, SZ_OUT)
        if OPT['stc']: A(f's_load_dwordx2 {sW2[0:2]}, s[0:1], 48')
        if not F: self.aphi = V.alloc(4, 4)
        self.ax = [V.alloc(), V.alloc()]
        self.aw = [V.alloc() for _ in range(6 if F else 1)]
        t, g, t0, t1, f = [R('v', 232+i, 1) for i in range(5)]
        b0 = phys(0)
        A(f'v_and_b32 {t}, 15, {l}\nv_lshrrev_b32 {g}, 4, {l}')
        A(f'v_lshrrev_b32 {t0}, 1, {t}\nv_xor_b32 {t0}, {t0}, {g}\nv_lshlrev_b32 {t0}, 4, {t0}\nv_lshl_add_u32 {t0}, {t}, 7, {t0}')
        if F: A(f's_lshl_b32 {sT0}, {sWQ}, 12\nv_add_u32 {t0}, {sT0}, {t0}')
        A(f'v_add_u32 {self.ax[0]}, {b0}, {t0}\nv_xor_b32 {t0}, 64, {t0}\nv_add_u32 {self.ax[1]}, {b0}, {t0}')
        A(f'v_lshrrev_b32 {f}, 3, {t}\nv_and_b32 {t0}, 1, {g}\nv_lshl_or_b32 {f}, {t0}, 1, {f}')
        A(f'v_lshrrev_b32 {t0}, 2, {t}\nv_lshlrev_b32 {t0}, 7, {t0}\nv_lshl_add_u32 {t0}, {g}, 10, {t0}\nv_and_b32 {t1}, 3, {t}\nv_lshl_add_u32 {t0}, {t1}, 3, {t0}\nv_add_u32 {t0}, {b0+16384}, {t0}')
        if not F:
            A(f'v_xor_b32 {t1}, {sWQ}, {f}\nv_lshl_add_u32 {self.aw[0]}, {t1}, 5, {t0}')
        else:
            for q in range(4): A(f'v_xor_b32 {t1}, {q}, {f}\nv_lshl_add_u32 {self.aw[q]}, {t1}, 5, {t0}')
            A(f'v_lshrrev_b32 {t0}, 2, {t}\nv_lshlrev_b32 {t0}, 6, {t0}\nv_lshl_add_u32 {t0}, {g}, 9, {t0}\nv_and_b32 {t1}, 3, {t}\nv_lshl_add_u32 {t0}, {t1}, 3, {t0}\nv_add_u32 {t0}, {b0+16384}, {t0}')
            A(f'v_and_b32 {f}, 1, {g}')
            for q in range(2): A(f'v_xor_b32 {t1}, {q}, {f}\nv_lshl_add_u32 {self.aw[4+q]}, {t1}, 5, {t0}')
        A(f's_lshl_b32 {sT0}, {sI}, 4\ns_add_u32 {sT0}, {sT0}, {sJJ}\ns_lshl2_add_u32 {sT0}, {sT0}, {sWQ}\ns_lshl_b32 {sT0}, {sT0}, 8\ns_add_u32 {sT0}, {sT0}, {CNT}')
        stampg(A, 4)
        A('s_waitcnt lgkmcnt(0)')
        stampg(A, 5)
        A(f's_mul_i32 {sTag}, {sTag}, 0x9E3779B1\ns_add_u32 {sTag}, {sTag}, 0x7F4A7C15\ns_mov_b32 {sSpin}, {sTag}')
        A(f's_atomic_swap {sSpin}, {sWS[0:2]}, {sT0} glc')
        if OPT['Rh'] > 1 or len(PH) > 2: A(f's_mov_b32 {sCurA}, {sTag}\ns_atomic_swap {sCurA}, {sWS[0:2]}, {sT0} offset:128 glc')
        if OPT['stcp'] == 0: stouch(A, 0, OPT['stc'], sCur)
        p2_ids(A)
        if not F: self.consts_A()
        tag_consts(A)
        A(f's_mov_b32 {sLrow}, 1')
        V.release(R('v', 240, 16), R('v', 9, 4))
        self.tk_row = tk_row
    def stats(self):
        A, C, l, tk_row = self.A, self.C, lane, self.tk_row
        x = R('v', 216, 16); o = R('v', 248, 4); t = R('v', 252, 1); ad = R('v', 253, 1); u = R('v', 254, 1)
        A(f's_lshl_b32 {sT0}, {sWQ}, 4\ns_add_u32 {sT0}, {sT0}, {L_SG}\nv_lshrrev_b32 {ad}, 5, {l}\nv_lshl_add_u32 {ad}, {ad}, 3, {sT0}')
        z = R('v', 232, 4)
        A(f'v_mov_b32 {u}, {L_TAG}\nv_mov_b32 {z[0]}, {sTag}\nv_mov_b32 {z[1]}, 0\nv_mov_b32 {z[2]}, 0\nv_mov_b32 {z[3]}, 0\nds_write_b128 {u}, {z}')
        stampg(A, 6)
        if OPT['stcp'] == 1: stouch(A, 0, OPT['stc'], sCur)
        C.wait(tk_row)
        stampg(A, 7)
        for i in range(8): A(f'v_lshlrev_b32 {x[2*i]}, 16, {xrow[i]}\nv_and_b32 {x[2*i+1]}, 0xffff0000, {xrow[i]}')
        y = xrow
        for i in range(4): A(f'v_pk_add_f32 {y[2*i:2*i+2]}, {x[4*i:4*i+2]}, {x[4*i+2:4*i+4]}')
        A(f'v_pk_add_f32 {y[0:2]}, {y[0:2]}, {y[2:4]}\nv_pk_add_f32 {y[4:6]}, {y[4:6]}, {y[6:8]}\nv_pk_add_f32 {y[0:2]}, {y[0:2]}, {y[4:6]}\nv_add_f32 {o[0]}, {y[0]}, {y[1]}')
        def hsum(v):
            for m in ('quad_perm:[1,0,3,2]', 'quad_perm:[2,3,0,1]', 'row_half_mirror', 'row_mirror'): A(dpp_add(v, m))
            A(f'v_mov_b32 {t}, {v}\nv_permlane16_swap_b32 {v}, {t}\nv_add_f32 {v}, {v}, {t}')
        hsum(o[0])
        A(f'v_mul_f32 {o[0]}, {f2u(1/512):#x}, {o[0]}')
        for i in range(16): A(f'v_sub_f32 {x[i]}, {x[i]}, {o[0]}')
        A(f'v_pk_mul_f32 {y[0:2]}, {x[0:2]}, {x[0:2]}\nv_pk_mul_f32 {y[2:4]}, {x[2:4]}, {x[2:4]}')
        for i in range(2, 8): A(f'v_pk_fma_f32 {y[2*(i&1):2*(i&1)+2]}, {x[2*i:2*i+2]}, {x[2*i:2*i+2]}, {y[2*(i&1):2*(i&1)+2]}')
        A(f'v_pk_add_f32 {y[0:2]}, {y[0:2]}, {y[2:4]}\nv_add_f32 {o[2]}, {y[0]}, {y[1]}')
        hsum(o[2])
        A(f'v_mov_b32 {o[1]}, {f2u(1e-5):#x}\nv_fmac_f32 {o[1]}, {f2u(1/512):#x}, {o[2]}\nv_rsq_f32 {o[1]}, {o[1]}')
        stampg(A, 8)
        A(f'ds_write_b64 {ad}, {o[0:2]}')
    def consts_A(self):
        A, V, l = self.A, self.V, lane
        t0, t1, val, key = [R('v', 232+i, 1) for i in range(4)]
        self.sel16 = V.alloc(16, 4)
        self.bsel = [self.sel16[0:4], self.sel16[4:8]]; self.zsel = [self.sel16[8:12], self.sel16[12:16]]
        A(f'v_and_b32 {t1}, 1, {l}\nv_lshlrev_b32 {t1}, 4, {t1}\nv_mov_b32 {val}, 0x3f80\nv_lshlrev_b32 {val}, {t1}, {val}')
        A(f'v_bfe_u32 {key}, {l}, 1, 2\nv_bfe_u32 {t1}, {l}, 4, 1\nv_lshl_or_b32 {key}, {t1}, 2, {key}')
        A(f'v_lshrrev_b32 {t1}, 2, {l}\nv_xor_b32 {t1}, {t1}, {l}\nv_and_b32 {t1}, 8, {t1}\nv_or_b32 {key}, {key}, {t1}')
        for T in range(2):
            for rr in range(4):
                A(f'v_cmp_eq_u32 vcc, {rr + 4*T}, {key}\nv_cndmask_b32 {self.bsel[T][rr]}, 0, {val}, vcc')
        A(f'v_and_b32 {key}, 15, {l}\nv_mov_b32 {val}, 0x3f803f80')
        for m in range(2):
            A(f'v_cmp_eq_u32 vcc, {4*m if OPT["kva"] else m}, {key}\nv_cndmask_b32 {self.zsel[m][0]}, 0, {val}, vcc')
            for rr in range(1, 4): A(f'v_mov_b32 {self.zsel[m][rr]}, {self.zsel[m][0]}')
    def rd_w(self, dst, u, kk):
        b, q = self.units[u]
        return [f'ds_read_b64_tr_b16 {dst[2*hf:2*hf+2]}, {self.aw[q]} offset:{b*8192 + (kk*4096 + hf*512 if b < 3 else kk*2048 + hf*256)}' for hf in range(2)]
    def rd_x(self, dst, tt, kk): return [f'ds_read_b128 {dst}, {self.ax[kk]} offset:{tt*2048}']
    def main(self):
        A, V, C, G, typ = self.A, self.V, self.C, self.G, self.typ
        F = typ == 'F'
        if F:
            self.ntt = 2; self.units = [(b, q) for b in range(3) for q in range(4)] + [(3, 4), (3, 5)]
        else:
            self.ntt = 8; self.units = [(0, 0), (1, 0), (2, 0)]
        nu = len(self.units)
        self.acc = [[V.alloc(4, 4) for u in range(nu)] for tt in range(self.ntt)]
        nr, nd = (nu, self.ntt) if F else (self.ntt, nu)
        self.Rg = [V.alloc(4, 4) for _ in range(nr)]
        self.Dg = [V.alloc(4*nd, 4) for _ in range(2)]
        rdR, rdD = (self.rd_w, self.rd_x) if F else (self.rd_x, self.rd_w)
        last_R, last_pre, fill = self.pre_epi()
        self.stats()
        if OPT['stub']:
            A('s_mov_b64 exec, 0')
            for c in range(3): A(f's_cmp_eq_u32 {sWQ}, {c}\ns_cbranch_scc1 WS_{typ}{c}')
            A(f's_branch WS_{typ}3')
            if not F: A(f'K_wret:\ns_cmp_lg_u32 s3, 0\ns_cbranch_scc1 WR_F')
            A(f'WR_{typ}:\ns_mov_b64 exec, -1')
        if OPT['stcp'] == 2: stouch(A, 0, OPT['stc'], sCur)
        stamp(A, 1); stampg(A, 9)
        C.wait(self.tk0, 'lgkmcnt(0)'); stampg(A, 10); A('s_barrier')
        stampb(A, 1)
        stamp(A, 2)
        tokR = {}; tokD = {}
        Q = []
        def issue(k):
            for _ in range(k):
                if not Q: return
                s, key = Q.pop(0); tk = G.ds(s)
                if key: (tokR if key[0] == 'R' else tokD)[key[1:]] = tk
        def kq(L, key): return [(s, key if i == len(L)-1 else None) for i, s in enumerate(L)]
        for d in range(nd): Q += kq(rdD(self.Dg[0][4*d:4*d+4], d, 0), ('D', 0, d))
        for j in range(nr): Q += kq(rdR(self.Rg[j], j, 0), ('R', 0, j))
        issue(12)
        for n in range(16):
            st, kk = n >> 1, n & 1
            pend = []
            blocked = kk == 1
            nD = []
            if n < 15:
                for d in range(nd): nD += kq(rdD(self.Dg[(n+1) & 1][4*d:4*d+4], d, kk ^ 1), ('D', n+1, d))
            else: nD = [(s, None) for s in last_pre]
            if blocked: pend += nD
            else: Q += nD
            adds = []
            if kk == 1 and st < 7:
                dlt = phys(st+1) - phys(st)
                adds = [f'v_add_u32 {r}, {dlt & 0xffffffff:#x}, {r}' for r in self.ax + self.aw]
            if n == 15: adds = list(self.pre_v)
            fl = list(fill.get(n, []))
            if n == 6: stampc(A, 1)
            if n == 8: stampc(A, 8)
            for j in range(nr):
                if blocked and j == OPT['hold']:
                    assert not Q
                    for a in adds: A(a)
                    adds = []
                    if n == 7: stampc(A, 2)
                    G.all()
                    if n == 7: stampc(A, 3)
                    A('s_barrier')
                    if n == 7: stampc(A, 4)
                    if n == 7: stamp(A, 3)
                    stampb(A, 2 + st)
                    blocked = False; Q += pend; pend = []
                for d in range(nd):
                    tt, u = (d, j) if F else (j, d)
                    G.need(max(tokR[(n, j)], tokD[(n, d)]))
                    w, x = (self.Rg[j], self.Dg[n & 1][4*d:4*d+4]) if F else (self.Dg[n & 1][4*d:4*d+4], self.Rg[j])
                    a, b = (x, w) if (not F and u == 2) else (w, x)
                    acc = self.acc[tt][u]
                    A(f'v_mfma_f32_16x16x32_bf16 {acc}, {a}, {b}, {acc if n else 0}')
                    if Q: issue(2 if len(Q) > 3 else 1)
                    elif adds:
                        A(adds.pop(0))
                        if adds: A(adds.pop(0))
                    elif fl: A(fl.pop(0))
                nw = kq(rdR(self.Rg[j], j, kk ^ 1), ('R', n+1, j)) if n < 15 else [(s, None) for s in last_R[j]]
                if blocked: pend += nw
                else: Q += nw
            for x in fl: A(x)
        issue(100)
        stampb(A, 10)
        stamp(A, 5)
        V.release(*self.ax); V.release(*self.aw)
    def pre_epi(self):
        A, V, l = self.A, self.V, lane
        if self.typ == 'F':
            at, ag = V.alloc(), V.alloc()
            A(f's_lshl_b32 {sT0}, {sWQ}, 7\ns_add_u32 {sT0}, {sT0}, {L_NM}\nv_and_b32 {at}, 15, {l}\nv_lshl_add_u32 {at}, {at}, 2, {sT0}')
            A(f'v_and_b32 {ag}, 48, {l}\nv_add_u32 {ag}, {L_CS}, {ag}')
            self.ms = [V.alloc(2) for _ in range(2)]; self.nr = [V.alloc(2) for _ in range(2)]
            pre = []
            for tt in range(2):
                pre += [f'ds_read2_b32 {self.ms[tt]}, {at} offset0:{16*tt} offset1:{16*tt}', f'ds_read2_b32 {self.nr[tt]}, {at} offset0:{128+16*tt} offset1:{128+16*tt}']
            lastR = [[f'ds_read_b128 {self.Rg[u]}, {ag} offset:{64*u}'] for u in range(14)]
            self.kL = V.alloc(2)
            A(f'v_mov_b32 {self.kL[0]}, {f2u(-LOG2E):#x}\nv_mov_b32 {self.kL[1]}, {self.kL[0]}')
            A(f's_lshl_b32 {sT0}, {sI}, 1\ns_lshr_b32 {sT1}, {sWQ}, 1\ns_add_u32 {sT0}, {sT0}, {sT1}')
            cnt_i2(A, sF[2], sT0, 1024)
            A(f's_lshr_b32 {sT1}, {sJ}, 1\ns_lshl_b32 {sT1}, {sT1}, 8\ns_add_u32 {sF[2]}, {sF[2]}, {sT1}')
            A(f's_mul_i32 {sT0}, {sT0}, 72\ns_mul_i32 {sT1}, {sJ}, 7\ns_add_u32 {sT0}, {sT0}, {sT1}\ns_lshl_b32 {sT0}, {sT0}, 12')
            A(f's_and_b32 {sT1}, {sWQ}, 1\ns_lshl_b32 {sF[0]}, {sT1}, 11\ns_add_u32 {sT0}, {sT0}, {sF[0]}\ns_add_u32 {sT0}, {sT0}, {ACT}')
            A(f's_and_b32 {sT1}, {sJ}, 1')
            A(f's_lshl_b32 {sF[0]}, {sT1}, 12\ns_add_u32 {sF[0]}, {sF[0]}, {sT0}')
            A(f's_xor_b32 {sT1}, {sT1}, 1\ns_mul_i32 {sT1}, {sT1}, {6*4096}\ns_add_u32 {sF[1]}, {sT0}, {sT1}')
            self.pre_v = []
            return lastR, pre, {}
        self.MR = [V.alloc(16, 4) for _ in range(4)]
        self.cv = V.alloc(2)
        R_ = self.Rg
        self.negm = [R_[T//2][2*(T & 1):2*(T & 1)+2] for T in range(8)]
        self.rl = [R_[4 + p//2][2*(p & 1):2*(p & 1)+2] for p in range(4)]
        self.ck, self.cq = R_[6], R_[7]
        D0 = self.Dg[0]
        a4, ag, a32, ac = D0[0], D0[1], D0[2], D0[3]
        pre_v = [f'v_and_b32 {a4}, 15, {l}', f'v_lshlrev_b32 {a4}, 2, {a4}', f'v_and_b32 {ag}, 48, {l}', f'v_and_b32 {a32}, 31, {l}',
                 f'v_add_u32 {ac}, {sF[3]}, {a4}', f'v_add_u32 {a4}, {L_NM}, {a4}', f'v_lshlrev_b32 {a32}, 2, {a32}', f'v_add_u32 {a32}, {L_RL}, {a32}',
                 f'v_add_u32 {D0[4]}, {sF[3]}, {ag}', f'v_add_u32 {ag}, {L_NM}, {ag}']
        A(f's_lshl_b32 {sF[3]}, {sWQ}, 6\ns_add_u32 {sF[3]}, {sF[3]}, {L_CS}')
        pre = [f'ds_read2_b32 {self.cv}, {ac} offset0:128 offset1:128']
        for p in range(4):
            for T in range(2):
                pre += [f'ds_read_b128 {self.MR[p][8*T:8*T+4]}, {ag} offset:{64*(2*p+T)}', f'ds_read_b128 {self.MR[p][8*T+4:8*T+8]}, {ag} offset:{1024+64*(2*p+T)}']
        lastR = [[f'ds_read2_b32 {self.negm[T]}, {a4} offset0:{16*T} offset1:{16*T}' for T in (2*j, 2*j+1)] for j in range(4)]
        lastR += [[f'ds_read2_b32 {self.rl[p]}, {a32} offset0:{32*p} offset1:{32*p}' for p in (2*j, 2*j+1)] for j in range(2)]
        lastR += [[f'ds_read_b128 {self.ck}, {D0[4]} offset:256'], [f'ds_read_b128 {self.cq}, {D0[4]}']]
        pre_v.append(f'v_add_u32 {D0[5]}, {sHo}, {v_l16}')
        A(f's_lshl_b32 {sHo}, {sWQ}, 10\ns_add_u32 {sHo}, {sHo}, {L_PHI}')
        pre.append(f'ds_read_b128 {self.aphi}, {D0[5]}')
        self.pre_v = pre_v
        e0, e1, e2, e3 = sE[0:4]
        A(f's_lshl_b32 {e2}, {sJ}, 2\ns_add_u32 {e2}, {e2}, {sWQ}\ns_mul_i32 {e3}, {e2}, {16*2176}\ns_add_u32 {e3}, {e3}, {KP}')
        A(f's_mul_i32 {e0}, {sI}, 2176\ns_add_u32 {e0}, {e0}, {e3}')
        A(f's_lshl2_add_u32 {sXb}, {sJJ}, {sWQ}\ns_lshl_b32 {sXb}, {sXb}, 8\ns_add_u32 {sXb}, {sXb}, {CNT}\ns_add_u32 {sWb}, {sXb}, {4*16384}')
        A(f's_and_b32 {sXo}, {sI}, {OPT["Rk"]-1}\ns_lshl_b32 {sXo}, {sXo}, 14\ns_add_u32 {sWo}, {sXo}, {sWb}\ns_add_u32 {sXo}, {sXo}, {sXb}')
        A(f's_lshl_b32 {sT0}, {sI}, 6\ns_add_u32 {e1}, {e3}, {sT0}')
        A(f's_mul_i32 {e2}, {e2}, 2176\ns_add_u32 {e2}, {e2}, {KT}\ns_add_u32 {e3}, {e2}, {sT0}')
        A(f's_cmp_eq_u32 {sI}, 0\ns_cselect_b32 {sE[4]}, {e1}, {OOB}\ns_cselect_b32 {sE[5]}, {e3}, {OOB}\ns_cselect_b64 {sM2}, -1, 0')
        A(f's_mul_i32 {sF[0]}, {sI}, {2*72*4096}\ns_lshl_b32 {sT0}, {sJ}, 11\ns_add_u32 {sF[0]}, {sF[0]}, {sT0}\ns_lshl_b32 {sT0}, {sWQ}, 9\ns_add_u32 {sF[0]}, {sF[0]}, {sT0}\ns_add_u32 {sF[0]}, {sF[0]}, {ACT + 56*4096}')
        A(f's_lshl_b32 {sF[1]}, {sI}, 14\ns_add_u32 {sF[1]}, {sF[1]}, {CNT + 5120}\ns_add_u32 {sHb}, {sF[1]}, 2048')
        A(f's_or_b32 {sT0}, {sWQ}, {sJ}\ns_or_b32 {sT0}, {sT0}, {sI}\ns_cselect_b32 {sF[2]}, {OOB}, {EPOCH}')
        return lastR, pre, {}
    def epi_F(self):
        A, V, C = self.A, self.V, self.C
        cc = self.Rg
        NT = 3
        tmp = [V.alloc(8, 4) for _ in range(NT)]; outp = [V.alloc(4, 4) for _ in range(NT)]
        for pr in range(1, 6): A(f's_add_u32 {sE[pr]}, {sF[0]}, {pr*4096}')
        so = [sF[0]] + sE[1:6] + [sF[1]]
        self.G.all()
        L = []; k = 0
        for pr in range(7):
            for tt in range(2):
                p = tmp[k % NT]; o = outp[k % NT]; k += 1
                src = [self.acc[tt][2*pr][0:2], self.acc[tt][2*pr][2:4], self.acc[tt][2*pr+1][0:2], self.acc[tt][2*pr+1][2:4]]
                cs = [cc[2*pr][0:2], cc[2*pr][2:4], cc[2*pr+1][0:2], cc[2*pr+1][2:4]]
                for i in range(4): L.append(f'v_pk_fma_f32 {src[i]}, {cs[i]}, {self.ms[tt]}, {src[i]}')
                for i in range(4): L.append(f'v_pk_mul_f32 {src[i]}, {src[i]}, {self.nr[tt]}')
                for i in range(8): L.append(f'v_exp_f32 {p[i]}, {src[i//2][i&1]}')
                for i in range(4): L.append(f'v_pk_fma_f32 {p[2*i:2*i+2]}, {p[2*i:2*i+2]}, {self.kL}, {self.kL}')
                for i in range(8): L.append(f'v_rcp_f32 {p[i]}, {p[i]}')
                for i in range(4): L.append(f'v_pk_mul_f32 {p[2*i:2*i+2]}, {src[i]}, {p[2*i:2*i+2]}')
                for i in range(4): L.append(f'v_cvt_pk_bf16_f32 {o[i]}, {p[2*i]}, {p[2*i+1]}')
                L.append(f'buffer_store_dwordx4 {o}, {v_l16}, {sWS}, {so[pr]} offen offset:{tt*1024} ' + ['sc1', '', 'sc1 nt', 'sc0 sc1', 'nt'][OPT['hst']])
        if OPT['dbg'] & 8: L = [x for x in L if not x.startswith('buffer')]
        stampe(A, 1); ns = 0
        for x in L:
            A(x)
            if x.startswith('buffer'):
                ns += 1
                if ns % 2 == 0: stampe(A, 1 + ns//2)
                for p, e in enumerate(PH):
                    if ns == 2*e + OPT['lag']: A(f's_waitcnt vmcnt({OPT["lag"]})\ns_atomic_add {sLrow}, {sWS[0:2]}, {sF[2]} offset:{PHO[p]}')
        C.n += 14
        stamp(A, 6)
        for p, e in enumerate(PH):
            if 2*e + OPT['lag'] > 14: A(f's_waitcnt vmcnt({14 - 2*e})\ns_atomic_add {sLrow}, {sWS[0:2]}, {sF[2]} offset:{PHO[p]}')
        stampe(A, 9)
        stamp(A, 7)
    def feat(self, a0, a1, cvec, negm, rl, P16, E):
        L = []; B4 = a0
        for T, a in enumerate((a0, a1)):
            for h in range(2): L.append(f'v_pk_fma_f32 {a[2*h:2*h+2]}, {cvec[2*h:2*h+2]}, {negm[T]}, {a[2*h:2*h+2]}')
        for T, a in enumerate((a0, a1)):
            for h in range(2): L.append(f'v_cvt_pk_bf16_f32 {B4[2*T+h]}, {a[2*h]}, {a[2*h+1]}')
        L += [f'v_permlane16_swap_b32 {B4[0]}, {B4[2]}', f'v_permlane16_swap_b32 {B4[1]}, {B4[3]}']
        L.append(f'v_mfma_f32_32x32x16_bf16 {P16}, {self.aphi}, {B4}, 0')
        mx = B4[0]; m2 = B4[1]
        L += [f'v_max3_f32 {mx}, {P16[0]}, {P16[1]}, {P16[2]}', f'v_max3_f32 {m2}, {P16[3]}, {P16[4]}, {P16[5]}',
              f'v_max3_f32 {mx}, {mx}, {P16[6]}, {P16[7]}', f'v_max3_f32 {m2}, {m2}, {P16[8]}, {P16[9]}',
              f'v_max3_f32 {mx}, {mx}, {P16[10]}, {P16[11]}', f'v_max3_f32 {m2}, {m2}, {P16[12]}, {P16[13]}',
              f'v_max3_f32 {mx}, {mx}, {P16[14]}, {P16[15]}', f'v_max_f32 {mx}, {mx}, {m2}',
              f'v_mul_f32_e64 {B4[2]}, -{mx}, {rl[0]}', f'v_mul_f32_e64 {B4[3]}, -{mx}, {rl[0]}']
        for i in range(8): L.append(f'v_pk_fma_f32 {P16[2*i:2*i+2]}, {P16[2*i:2*i+2]}, {rl}, {B4[2:4]}')
        for i in range(16): L.append(f'v_exp_f32 {P16[i]}, {P16[i]}')
        s0, s1 = B4[0:2], B4[2:4]
        L += [f'v_pk_add_f32 {s0}, {P16[0:2]}, {P16[2:4]}', f'v_pk_add_f32 {s1}, {P16[4:6]}, {P16[6:8]}']
        for i in range(4, 8): L.append(f'v_pk_add_f32 {(s0, s1)[i&1]}, {(s0, s1)[i&1]}, {P16[2*i:2*i+2]}')
        L += [f'v_pk_add_f32 {s0}, {s0}, {s1}', f'v_add_f32 {B4[0]}, {B4[0]}, {B4[1]}', f'v_rcp_f32 {B4[0]}, {B4[0]}', f'v_mov_b32 {B4[1]}, {B4[0]}']
        for i in range(8): L.append(f'v_pk_mul_f32 {P16[2*i:2*i+2]}, {P16[2*i:2*i+2]}, {B4[0:2]}')
        for i in range(8): L.append(f'v_cvt_pk_bf16_f32 {E(i)}, {P16[2*i]}, {P16[2*i+1]}')
        return L
    def epi_A(self):
        A, V, C, l = self.A, self.V, self.C, lane
        e0, e1, e2, e3 = sE[0:4]
        acc, MR, negm, rl, bsel, zsel = self.acc, self.MR, self.negm, self.rl, self.bsel, self.zsel
        D0, D1 = self.Dg
        if OPT['cprio']: A(f's_setprio {OPT["cprio"]}')
        self.G.all()
        kv = [D0[0:4], D0[4:8]]; zz = D0[8:12]
        KA = OPT['kva']; lrep = V.alloc()
        a0, a1, ff, t0, t1, ah, as_, ak, ad, l26, vtag, fa = [D1[i] for i in range(12)]
        L = []
        for p in range(4):
            P16 = MR[p]; VB = acc[2*p][2]; Eq = [acc[2*p+1][1], acc[2*p+1][2]]
            for T in range(2):
                a = acc[2*p+T][2]; M4 = P16[8*T:8*T+4]; R4 = P16[8*T+4:8*T+8]
                for h in range(2): L.append(f'v_pk_fma_f32 {a[2*h:2*h+2]}, {M4[2*h:2*h+2]}, {self.cv}, {a[2*h:2*h+2]}')
                for h in range(2): L.append(f'v_pk_mul_f32 {a[2*h:2*h+2]}, {a[2*h:2*h+2]}, {R4[2*h:2*h+2]}')
                for h in range(2): L.append(f'v_cvt_pk_bf16_f32 {VB[2*T+h]}, {a[2*h]}, {a[2*h+1]}')
            L += self.feat(acc[2*p][1], acc[2*p+1][1], self.ck, negm[2*p:2*p+2], rl[p], P16, lambda i: Eq[i//4][i % 4])
            for m in range(2):
                for T in range(2): L.append(f'v_mfma_f32_16x16x32_bf16 {P16[8*m+4*T:8*m+4*T+4]}, {Eq[m]}, {bsel[T]}, 0')
            for i in range(8): L.append(f'v_cvt_pk_bf16_f32 {Eq[i//4][i%4]}, {P16[2*i]}, {P16[2*i+1]}')
            if KA:
                for m in range(2): L.append(f'v_mfma_f32_16x16x32_bf16 {kv[m]}, {VB}, {Eq[m]}, {kv[m] if p else 0}')
                for m in range(2): L.append(f'v_mfma_f32_16x16x32_bf16 {zz}, {zsel[m]}, {Eq[m]}, {zz if (p or m) else 0}')
                continue
            for m in range(2): L.append(f'v_mfma_f32_16x16x32_bf16 {kv[m]}, {Eq[m]}, {VB}, {kv[m] if p else 0}')
            for m in range(2): L.append(f'v_mfma_f32_16x16x32_bf16 {zz}, {Eq[m]}, {zsel[m]}, {zz if (p or m) else 0}')
        if KA:
            L += [f'v_and_b32 {t0}, 15, {l}', f'v_lshrrev_b32 {t1}, 4, {l}', f'v_lshlrev_b32 {t0}, 2, {t0}', f'v_lshl_add_u32 {a0}, {t1}, 8, {t0}',
                  f'v_mul_u32_u24 {a1}, 1088, {t1}', f'v_add_u32 {a1}, {a1}, {t0}', f'v_lshrrev_b32 {t1}, 1, {t1}', f'v_lshl_add_u32 {a1}, {t1}, 27, {a1}']
            for m in range(2):
                for r in range(4): L.append(f'buffer_atomic_add_f32 {kv[m][r]}, {a0}, {sWS}, {e2} offen offset:{1088*m + 64*r} sc1')
            L.append(f'buffer_atomic_add_f32 {zz[0]}, {a1}, {sWS}, {e2} offen offset:1024 sc1')
            L += [f'v_lshlrev_b32 {l26}, 26, {l}', f'v_mov_b32 {vtag}, {sTag}']
        else:
            L += [f'v_and_b32 {t0}, 15, {l}', f'v_and_b32 {t1}, 48, {l}', f'v_lshl_add_u32 {a0}, {t0}, 6, {t1}', f'v_mov_b32 {ff}, 0xff',
                  f'v_mul_u32_u24 {a1}, 1088, {t0}', f'v_add_u32 {a1}, {a1}, {t1}', f'v_lshrrev_b32 {t0}, 1, {t0}', f'v_lshl_add_u32 {a1}, {t0}, 27, {a1}']
            for m in range(2):
                L += tag_quad(kv[m], ff) + [f'buffer_store_dwordx4 {kv[m]}, {a0}, {sWS}, {e0} offen offset:{1088*m} sc1']
            L += tag_quad(zz, ff) + [f'buffer_store_dwordx4 {zz}, {a1}, {sWS}, {e0} offen offset:1024 sc1']
            L += [f'v_lshlrev_b32 {l26}, 26, {l}', f'v_mov_b32 {vtag}, {sTag}', f'v_mov_b32 {fa}, 1', f'v_lshrrev_b32 {lrep}, {OPT["Rk"].bit_length()-1}, {l}', f'v_lshlrev_b32 {lrep}, 26, {lrep}', f'v_lshl_add_u32 {lrep}, {l}, 14, {lrep}']
            if not OPT['ack1']: L.append(f'buffer_atomic_add {fa}, {lrep}, {sWS}, {sXb} offen sc1')
        stampe(A, 1)
        emit_sched(A, L, 'kside'); C.n += 4
        stampe(A, 2)
        stamp(A, 6)
        h1 = [self.sel16[4*i:4*i+4] for i in range(4)]
        ld1 = [f'buffer_load_dwordx4 {h1[0]}, {ah}, {sWS}, {e1} offen sc1', f'buffer_load_dwordx4 {h1[1]}, {ah}, {sWS}, {e1} offen offset:1088 sc1',
               f'buffer_load_dwordx4 {h1[2]}, {ah}, {sWS}, {sE[4]} offen offset:1024 sc1', f'buffer_load_dwordx4 {h1[3]}, {ah}, {sWS}, {sE[4]} offen offset:2112 sc1']
        perm = [0, 1, 2, 3] if KA else [1, 0, 2, 3]
        eq = [[acc[2*p+1][0], acc[2*p][1]] for p in range(4)]
        def qside(ps):
            L = []
            for p in ps:
                L += self.feat(acc[2*p][0], acc[2*p+1][0], self.cq, negm[2*p:2*p+2], rl[p], MR[p], lambda i: eq[p][i//4][perm[i % 4]])
            return L
        adr = [f'v_lshrrev_b32 {ah}, 2, {l}', f'v_mul_u32_u24 {ah}, 2176, {ah}', f'v_and_b32 {t0}, 3, {l}', f'v_lshl_add_u32 {ah}, {t0}, 4, {ah}',
               f'v_lshrrev_b32 {as_}, 5, {l}', f'v_mul_u32_u24 {as_}, 1088, {as_}', f'v_lshl_add_u32 {as_}, {t0}, 4, {as_}', f'v_bfe_u32 {t0}, {l}, 4, 1', f'v_lshl_add_u32 {as_}, {t0}, 3, {as_}',
               f'v_and_b32 {t1}, 12, {l}', f'v_lshl_add_u32 {as_}, {t1}, 26, {as_}',
               f'v_and_b32 {ad}, 15, {l}', f'v_lshlrev_b32 {ad}, 4, {ad}', f'v_lshl_add_u32 {ad}, {t0}, 14, {ad}', f'v_lshrrev_b32 {t0}, 5, {l}', f'v_lshl_add_u32 {ad}, {t0}, 8, {ad}',
               f'v_and_b32 {ak}, 31, {l}', f'v_min_u32 {ak}, 16, {ak}', f'v_lshlrev_b32 {ak}, 6, {ak}', f'v_lshl_add_u32 {ak}, {t0}, 5, {ak}']
        if KA:
            qa, qb = OPT['qa'], OPT['qb']
            ldall = self.sel16
            emit_sched(A, qside(range(qa)) + [adr[7]] + adr[11:], 'qa')
            stampe(A, 3)
            sarrive(A, *[f'{sXb} offset:{16384*r}' for r in range(OPT['Rk'])])
            stampe(A, 4); stamp(A, 7)
            A(f's_add_u32 {e0}, {sF[0]}, 32768\ns_add_u32 {e1}, {sF[0]}, {72*4096}\ns_add_u32 {e3}, {e1}, 32768')
            if qb: emit_sched(A, qside(range(qa, qa+qb)), 'qb')
            stampe(A, 5)
            ppoll(A, sXo, 16, OPT['Dk'], 20, OPT['slpa'])
            stampe(A, 6); stamp(A, 8)
            for m in range(2):
                for h in range(2): A(f'buffer_load_dwordx4 {ldall[8*m+4*h:8*m+4*h+4]}, {ak}, {sWS}, {e2} offen offset:{1088*m+16*h} sc1')
            A(f'buffer_store_dword {vtag}, {l26}, {sWS}, {sF[2]} offen sc1')
            if qa + qb < 4: emit_sched(A, qside(range(qa+qb, 4)), 'qc')
            stampe(A, 7)
            A('s_waitcnt vmcnt(1)')
            stamp(A, 4)
            L = []
            for m in range(2):
                for i in range(4): L.append(f'v_cvt_pk_bf16_f32 {D0[4*m+i]}, {ldall[8*m+2*i]}, {ldall[8*m+2*i+1]}')
            kvA = [D0[0:4], D0[4:8]]
        else:
            if OPT['ack1']:
                emit_sched(A, qside([0]) + adr, 'q0')
                sarrive(A, sXb)
                emit_sched(A, qside([1]), 'q1')
            else: emit_sched(A, qside([0, 1]) + adr, 'q01')
            stampe(A, 3)
            ppoll(A, sXo, 16, OPT['Dk'], 20, OPT['slpa'])
            stamp(A, 7)
            stampe(A, 4)
            for x in ld1: A(x)
            emit_sched(A, qside([2]), 'q2')
            stampe(A, 5)
            A('s_waitcnt vmcnt(0)')
            tm = D0
            def chk1():
                for i in range(4): quad_diff(A, h1[i], tm[i], tm[4+i])
                A(f'v_or_b32 {tm[0]}, {tm[0]}, {tm[1]}\nv_or_b32 {tm[2]}, {tm[2]}, {tm[3]}\nv_cmp_ne_u32 vcc, 0, {tm[2]}\nv_cmp_ne_u32 s[4:5], 0, {tm[0]}')
                A(f's_and_b64 vcc, vcc, {sM2}\ns_or_b64 s[4:5], s[4:5], vcc')
            poll(A, '\n'.join(ld1), chk1, sleep=OPT['slp'], mask_exec=True, first_loaded=True)
            stampe(A, 6)
            L = []
            for x, y, so, off in ((h1[0], h1[1], e3, 0), (h1[2], h1[3], sE[5], 1024)):
                for k in range(4): L += [f'v_and_b32 {x[k]}, 0xffffff00, {x[k]}', f'v_and_b32 {y[k]}, 0xffffff00, {y[k]}']
                for k in range(4): L += [f'v_permlane32_swap_b32 {x[k]}, {y[k]}', f'v_add_f32 {x[k]}, {x[k]}, {y[k]}']
                for k in range(2): L += [f'v_permlane16_swap_b32 {x[k]}, {x[k+2]}', f'v_add_f32 {x[k]}, {x[k]}, {x[k+2]}', dpp_add(x[k], 'row_ror:4'), dpp_add(x[k], 'row_ror:8')]
                L += [f'v_cvt_pk_bf16_f32 {x[0]}, {x[0]}, {x[1]}', f'v_mov_b32 {x[1]}, {sTag}', f'buffer_store_dwordx2 {x[0:2]}, {as_}, {sWS}, {so} offen offset:{off} sc1']
            if not OPT['ack2']: L.append(f'buffer_atomic_add {fa}, {lrep}, {sWS}, {sWb} offen sc1')
            emit_sched(A, L, 'reduce'); C.n += 3
            stamp(A, 8)
            ld = [self.Rg[0], self.Rg[1], self.Rg[2], self.Rg[3]]; assert all(ld[i].b == ld[0].b + 4*i for i in range(4))
            ldall = R('v', ld[0].b, 16)
            ld2 = [f'buffer_load_dwordx4 {ld[2*m+h]}, {ak}, {sWS}, {e2} offen offset:{1088*m+16*h} sc1' for m in range(2) for h in range(2)]
            A(f's_add_u32 {e0}, {sF[0]}, 32768\ns_add_u32 {e1}, {sF[0]}, {72*4096}\ns_add_u32 {e3}, {e1}, 32768')
            emit_sched(A, qside([3]), 'q3')
            if OPT['ack2']: sarrive(A, sWb)
            A(f'buffer_store_dword {vtag}, {l26}, {sWS}, {sF[2]} offen sc1')
            ppoll(A, sWo, 16, OPT['Dk'], 20, OPT['slpa'])
            stampe(A, 7)
            poll(A, '\n'.join(ld2), chk_words(A, [ldall[2*i+1] for i in range(8)], tm), sleep=OPT['slp'], mask_exec=True)
            stamp(A, 4)
            L = []
            for m in range(2): L += [f'v_mov_b32 {ldall[8*m+3]}, {ldall[8*m]}', f'v_mov_b32 {ldall[8*m+5]}, {ldall[8*m+6]}']
            kvA = [ldall[2:6], ldall[10:14]]
        for p in range(4):
            N = MR[p]; o = acc[2*p][2]
            L.append(f'v_mfma_f32_32x32x16_bf16 {N}, {kvA[0]}, {eq[p][0]}, 0')
            L.append(f'v_mfma_f32_32x32x16_bf16 {N}, {kvA[1]}, {eq[p][1]}, {N}')
            L += [f'v_add_f32 {N[8]}, {f2u(1e-6):#x}, {N[8]}', f'v_rcp_f32 {N[8]}, {N[8]}']
            if OPT['opk']:
                L.append(f'v_mov_b32 {N[9]}, {N[8]}')
                for i in range(4): L.append(f'v_pk_mul_f32 {N[2*i:2*i+2]}, {N[2*i:2*i+2]}, {N[8:10]}')
            else:
                for i in range(8): L.append(f'v_mul_f32 {N[i]}, {N[i]}, {N[8]}')
            for i in range(4): L.append(f'v_cvt_pk_bf16_f32 {o[i]}, {N[2*i]}, {N[2*i+1]}')
            L.append(f'buffer_store_dwordx4 {o}, {ad}, {sWS}, {[sF[0], e0, e1, e3][p]} offen sc1')
        stampe(A, 8)
        emit_sched(A, L, 'oside'); C.n += 4
        stampe(A, 9)
        sarrive(A, *[f'{x} offset:{256*r}' for r in range(OPT['Ro']) for x in (sF[1], sHb)])
        stampe(A, 10)

def p2_C(A):
    l = lane; C = Ctx(A); G = LG(A)
    NP = OPT['npre']
    V = Pool('v', 4, 256)
    vab = [V.alloc() for _ in range(4)]
    go, vm_, t0, t1 = V.alloc(), V.alloc(), V.alloc(), V.alloc()
    xq = V.alloc(8, 4); acc = V.alloc(16, 4); ao = V.alloc(64, 4)
    Bs = [V.alloc(16, 4) for _ in range(NP)]
    A(f'v_and_b32 {t0}, 15, {l}\nv_lshlrev_b32 {go}, 10, {t0}\nv_bfe_u32 {t0}, {l}, 4, 1\nv_lshl_add_u32 {go}, {t0}, 5, {go}\nv_lshrrev_b32 {t0}, 5, {l}\nv_lshl_add_u32 {go}, {t0}, 4, {go}')
    A(f's_lshl_b32 {sE[0]}, {sI2}, 16\ns_lshl_b32 {sT0}, {sWQ}, 14\ns_add_u32 {sE[0]}, {sE[0]}, {sT0}\ns_lshl_b32 {sT1}, {sJ2}, 7\ns_add_u32 {sE[0]}, {sE[0]}, {sT1}')
    for P in range(2): A(f'buffer_load_dwordx4 {xq[4*P:4*P+4]}, {go}, {sX}, {sE[0]} offen offset:{64*P}')
    A(f's_mul_i32 {sE[1]}, {sI2}, {72*4096}\ns_add_u32 {sE[1]}, {sE[1]}, {sT0}\ns_add_u32 {sE[1]}, {sE[1]}, {ACT + 56*4096}')
    for i in range(1, 4): A(f's_add_u32 {sE[1+i]}, {sE[1]}, {4096*i}')
    cnt_i2(A, sE[5], sI2, 5120)
    if OPT['Ro'] > 1: A(f's_and_b32 s4, {sJ2}, {OPT["Ro"]-1}\ns_lshl_b32 s4, s4, 8\ns_add_u32 {sE[5]}, {sE[5]}, s4')
    tr_addr(A, vab, WOB, t0, t1)
    A(f'v_mov_b32 {vm_}, {L_TAG}')
    lds_spin(A, vm_, 4, 4, t0)
    tokB = {}
    def trl(k): return [(f'ds_read_b64_tr_b16 {Bs[k % NP][4*q+2*hf:4*q+2*hf+2]}, {vab[q]} offset:{k*4096 + hf*2048}', (k, q)) for q in range(4) for hf in range(2)]
    for k in range(NP):
        for s, key in trl(k): G.ds(s); tokB[key] = 0
    if OPT['opoll']:
        ppoll(A, sE[5], 32, OPT['Do'], 20, OPT['slpo'])
        G.all()
    else:
        lk, le = A.lab('NO'), A.lab('OE')
        A(f's_cmp_lg_u32 {sWV}, 0\ns_cbranch_scc1 {lk}')
        ppoll(A, sE[5], 32, OPT['Do'], 20, OPT['slpo'])
        if OPT['gs']:
            stamp(A, 3)
            A(f'v_mov_b32 {t0}, 16\ns_mov_b64 exec, 1\nds_add_u32 {vm_}, {t0} offset:12\ns_mov_b64 exec, -1')
            A(f'{lk}:')
            lds_spin(A, vm_, 12, 20, t0)
        else:
            A(f'v_mov_b32 {t0}, 1\nds_write_b32 {vm_}, {t0} offset:12\ns_branch {le}')
            A(f'{lk}:')
            lds_spin(A, vm_, 12, 1, t0)
            A(f'{le}:')
    stamp(A, 9); stampf(A, 0)
    tok = {}
    for s in range(16):
        tok[s] = C.vm(f'buffer_load_dwordx4 {ao[4*s:4*s+4]}, {v_l16}, {sWS}, {sE[1 + s//4]} offen offset:{(s & 3)*1024} ' + ['sc1', '', 'sc0', 'nt', 'sc0 sc1'][OPT['old']])
    stampf(A, 1)
    G.all()
    A(f's_lshl_b32 {sT0}, {sWQ}, 12\nv_add_u32 {t1}, {sT0}, {v_l16}')
    Q = []
    for s in range(16):
        C.wait(tok[s])
        if s == 0:
            for P in range(2): A(f'v_permlane16_swap_b32 {xq[4*P]}, {xq[4*P+2]}\nv_permlane16_swap_b32 {xq[4*P+1]}, {xq[4*P+3]}')
        for q in range(4):
            G.need(tokB[(s, q)])
            A(f'v_mfma_f32_16x16x32_bf16 {acc[4*q:4*q+4]}, {Bs[s % NP][4*q:4*q+4]}, {ao[4*s:4*s+4]}, {acc[4*q:4*q+4] if s else 0}')
            for _ in range(2):
                if Q: x, key = Q.pop(0); tokB[key] = G.ds(x)
        if s + NP < 16: Q += trl(s + NP)
        if s in (0, 3, 7, 11, 15): stampf(A, 2 + (s+1)//4)
    xf = ao[0:16]; g = ao[16:32]
    stamp(A, 10)
    A('s_barrier')
    stampf(A, 7)
    for u in range(4): A(f'ds_read_b128 {g[4*u:4*u+4]}, {t1} offset:{X0 + 1024*u}')
    for i in range(8): A(f'v_lshlrev_b32 {xf[2*i]}, 16, {xq[i]}\nv_and_b32 {xf[2*i+1]}, 0xffff0000, {xq[i]}')
    for P in range(2):
        A(f's_waitcnt lgkmcnt({2 - 2*P})')
        for i in range(4*P, 4*P+4): A(f'v_pk_fma_f32 {g[2*i:2*i+2]}, {g[2*i:2*i+2]}, {acc[2*i:2*i+2]}, {xf[2*i:2*i+2]}')
        for i in range(4*P, 4*P+4): A(f'v_cvt_pk_bf16_f32 {xq[i]}, {g[2*i]}, {g[2*i+1]}')
    for P in range(2):
        A(f'v_permlane16_swap_b32 {xq[4*P]}, {xq[4*P+2]}\nv_permlane16_swap_b32 {xq[4*P+1]}, {xq[4*P+3]}')
    for P in range(2): A(f'buffer_store_dwordx4 {xq[4*P:4*P+4]}, {go}, {sOUT}, {sE[0]} offen offset:{64*P} ' + ['', 'sc1', 'nt', 'sc0 sc1', 'sc1 nt', 'sc0 sc1 nt'][OPT['ost']])
    stampf(A, 8)
    if OPT['stamp'] == 6: A('s_waitcnt vmcnt(0)')
    stampf(A, 9)

vb = [R('v', 4+i, 1) for i in range(4)]
vb0, vb1 = R('v', 8, 1), R('v', 9, 1)
RS = [R('v', 80+16*i, 16) for i in range(11)]
ACCL = R('v', 16, 64)
vbh = [R('v', 13, 1), R('v', 14, 1), R('v', 15, 1), R('v', 2, 1)]
va = [R('v', 10, 1), R('v', 11, 1), R('v', 12, 1), R('v', 0, 1)]
vx2, vx3, vw1, vh, pt, pa, pm, p1 = [ACCL[48+i] for i in range(8)]
def nib(d, k): return f's_bfe_u32 {d}, {sCur if k < 8 else sCurA}, {(4 << 16) | (4 * (k % 8)):#x}'
LOAD = [0, 1, 8, 9, 2, 3, 4, 5, 6, 7, 10, 11, 12, 13] if OPT['lord'] else list(range(14))
RSL = {0: 0, 1: 1, 2: 2, 3: 3, 4: 4, 5: 5, 8: 6, 9: 7, 6: 0, 7: 1, 10: 2, 11: 3, 12: 4, 13: 5} if OPT['lord'] else {k: k % 8 for k in range(14)}
if OPT['lord'] == 2:
    LOAD = [0, 1, 2, 3, 8, 9, 10, 4, 5, 6, 7, 11, 12, 13]
    RSL = {0: 0, 1: 1, 2: 2, 3: 3, 8: 4, 9: 5, 10: 6, 4: 7, 5: 0, 6: 1, 7: 2, 11: 3, 12: 7, 13: 2}
if OPT['lord'] == 3:
    LOAD = [0, 4, 8, 12, 1, 2, 3, 5, 6, 7, 9, 10, 11, 13]
    RSL = {0: 0, 6: 0, 1: 1, 7: 1, 2: 2, 9: 2, 3: 3, 10: 3, 4: 4, 11: 4, 5: 5, 13: 5, 8: 6, 12: 7}
if OPT['lord'] == 4:
    LOAD = [0, 1, 4, 5, 8, 9, 12, 2, 3, 6, 7, 10, 11, 13]
    RSL = {1: 0, 6: 0, 2: 1, 7: 1, 0: 2, 3: 2, 10: 2, 4: 3, 11: 3, 5: 4, 13: 4, 8: 5, 9: 6, 12: 7}
PH = [int(c) for c in str(OPT['ph'])] if OPT['ph'] else [4, 7]
PHO = [0, 8192, 128, 8192 + 128]
sB0, sB1 = sM2[0], sM2[1]
sLi = [sXo, sHo, sWb, sRot]
vr0, vr1 = vb0, vb1
class BP:
    def __init__(self, A, C, G):
        self.A, self.C, self.G = A, C, G
        self.next = 0; self.free = []; self.fly = []; self.slot = {}; self.tok = {}; self.cool = []; self.dep = 0; self.pend = []
    def dma(self, k, sl):
        A = self.A
        for f in self.dma_list(k, sl): f()
    def dma_list(self, k, sl):
        A = self.A
        self.slot[k] = sl
        def mk(i):
            def f():
                if OPT['xr'] & 2:
                    if i == 0: A(f'{nib(sB0, LOAD[k])}\ns_lshl_b32 {sB0}, {sB0}, 15\ns_add_u32 {sB0}, {sB0}, {sBb}\ns_xor_b32 {sB1}, {sB0}, 16384')
                    A(f's_add_u32 m0, {sLi[i]}, {sl}')
                else:
                    if i == 0: A(f'{nib(sB0, LOAD[k])}\ns_lshl_b32 {sB0}, {sB0}, 15\ns_add_u32 {sB0}, {sB0}, {sBb}\ns_add_u32 {sB1}, {sB0}, 16384')
                    A(f's_add_u32 m0, {sLb2}, {sl + 1024*i}')
                if self.dep: A(f's_waitcnt vmcnt({self.dep - 1})')
                self.tok[k] = self.C.vm(f'buffer_load_dwordx4 {(vb0, vb1)[i & 1]}, {sW2}, {(sB0, sB1)[i >> 1]} offen lds')
            return f
        return [mk(i) for i in range(4)]
    def wo_list(self, k):
        A = self.A
        def mk(i):
            def f():
                if i == 0:
                    A(f's_xor_b32 {sT1}, {sF[2]}, {k}\ns_lshl_b32 {sF[3]}, {sT1}, 12\ns_lshl2_add_u32 {sF[3]}, {sLb2}, {sF[3]}')
                    A(f's_lshl_b32 {sT0}, {sT1}, 15\ns_add_u32 {sT0}, {sT0}, {sF[0]}\ns_add_u32 {sT1}, {sT0}, 16384')
                if OPT['xr'] & 2 and i == 0: A(f's_add_u32 {sF[3]}, {sF[3]}, {sHb}')
                if OPT['xr'] & 2 and i == 2: A(f's_sub_u32 {sF[3]}, {sF[3]}, {sHb}\ns_sub_u32 {sF[3]}, {sF[3]}, {sHb}')
                A(f's_add_u32 m0, {sF[3]}, {WOB + 1024*i}')
                if self.dep: A(f's_waitcnt vmcnt({self.dep - 1})')
                self.tokwo = self.C.vm(f'buffer_load_dwordx4 {(vb0, vb1)[i >> 1]}, {sWO}, {(sT0, sT1)[i & 1]} offen lds')
            return f
        return [mk(i) for i in range(4)]
    def trl(self, k):
        sl = self.slot[k]; hi = sl >= Y0
        off = sl - Y0 if hi else sl
        dst = RS[RSL[LOAD[k]]]
        return [f'ds_read_b64_tr_b16 {dst[4*q+2*hf:4*q+2*hf+2]}, {(vbh if hi else vb)[q]} offset:{off + hf*2048}' for q in range(4) for hf in range(2)]
    def retire(self):
        k = self.fly.pop(0)
        self.C.wait(self.tok[k])
        for s in self.trl(k): tk = self.G.ds(s)
        self.cool.append((self.slot[k], tk))
    def step(self, run=True):
        self.flush()
        if self.next >= 13: return False
        if not self.free:
            if not self.cool: self.retire()
            if len(self.cool) == 1 and self.fly and self.next - self.fly[0] >= 3: self.retire()
            sl, tk = self.cool.pop(0); self.G.need(tk, 8); self.free.append(sl)
        k = self.next; self.next += 1
        self.pend = self.dma_list(k, self.free.pop(0))
        if k < 8: self.fly.append(k)
        if run: self.flush()
        return True
    def flush(self):
        while self.pend: self.pend.pop(0)()
    def quota(self, n):
        for _ in range(n):
            if not self.pend: self.step(run=False)
            self.pend.pop(0)()

class LW:
    def __init__(self, A, typ):
        self.A = A; self.typ = typ; self.C = Ctx(A); self.G = LG(A); self.B = BP(A, self.C, self.G)
        self.lrow = 3584 if typ == 'F' else 3072
        self.stok = {}; self.sq = []
    def issue(self, st, only_half=False, lo=0, hi=99):
        A = self.A if lo == 0 else (lambda x: None); buf = phys(st); F = self.typ == 'F'
        cs = 128 if F else 1024
        if not only_half:
            A(f's_bfe_u32 {sT0}, {sRot}, {(4 << 16) | (4*st):#x}\ns_lshl_b32 {sXo}, {sT0}, 7\ns_add_u32 {sXo}, {sXo}, {sXb}')
            A(f's_mul_i32 {sT0}, {sT0}, {64*self.lrow}\ns_add_u32 {sWo}, {sT0}, {sWb}')
            xs = [(buf + 4096*p, (vx0, vx2, vx1, vx3)[p], sX, sXo, 0) for p in range(4)]
            ws = [(buf + 16384 + 8192*b + 4096*h - b*cs, (vw, vw1)[h], sW, sWo, b*cs) for h in range(2) for b in range(3)]
            items = [xs[0], ws[0], ws[1], xs[1], ws[2], xs[2], ws[3], ws[4], xs[3], ws[5]]
        else: items = []
        if F:
            A(f's_add_u32 {sHo}, {sWo}, {sHb}')
            items.append((buf + 16384 + 24576, vh, sW, sHo, 0))
        A = self.A
        for m, v, sr, so, off in items[lo:hi]:
            A(f's_add_u32 m0, {sLb}, {m}')
            self.stok[st] = self.C.vm(f'buffer_load_dwordx4 {v}, {sr}, {so} offen' + (f' offset:{off}' if off else '') + ' lds')
            while self.sq:
                x = self.sq.pop(0); A(x)
                if x.startswith('s_load'): break
    def run(self):
        A, C, G, B, l = self.A, self.C, self.G, self.B, lane
        F = self.typ == 'F'; lrow = self.lrow
        C.n = 5; self.stok[0] = 5
        T = [ACCL[i] for i in range(64)]
        if OPT['lprio']: A(f's_setprio {OPT["lprio"]}')
        srd(A, sW2, 48, SZ_W2); srd(A, sWO, 24, SZ_WO)
        if not F: srd(A, sPHI, 16, SZ_PHI)
        elif OPT['j3']: srd(A, sPHI, 8, SZ_QKV)
        vj3 = ACCL[62]
        def j3touch(second):
            A(f'v_lshrrev_b32 {vj3}, 3, {l}\nv_mul_u32_u24 {vj3}, 3072, {vj3}\nv_and_b32 {ACCL[63]}, 0x70, {v_l16}\nv_add_u32 {vj3}, {vj3}, {ACCL[63]}')
            A(f's_and_b32 {sT0}, {sI}, 7\ns_lshl2_add_u32 {sT0}, {sT0}, {sWQ}\ns_lshr_b32 {sT1}, s2, 1\ns_xor_b32 {sT1}, {sT1}, s2\ns_and_b32 {sT1}, {sT1}, 1' + (f'\ns_xor_b32 {sT1}, {sT1}, 1' if second else ''))
            A(f's_lshl_b32 {sT1}, {sT1}, 5\ns_add_u32 {sT0}, {sT0}, {sT1}\ns_mul_i32 {sT0}, {sT0}, {8*3072}')
            A(f's_sub_u32 {sT1}, {sJJ}, 4\ns_min_u32 s6, {sT1}, 2\ns_lshl_b32 s6, s6, 10\ns_add_u32 {sT0}, {sT0}, s6')
            A(f's_cmp_gt_u32 {sT1}, 3\ns_cselect_b32 {sT0}, {OOB}, {sT0}\ns_cmp_eq_u32 {sT1}, 2\ns_cselect_b32 {sT0}, {OOB}, {sT0}\ns_mov_b32 m0, {JUNK}')
            if F and not second: A('s_waitcnt lgkmcnt(0)')
            C.vm(f'buffer_load_dwordx4 {vj3}, {sPHI if F else sW}, {sT0} offen offset:384 lds')
        if OPT['j3'] & 1 and OPT['j3p'] == 0: j3touch(False)
        A(f's_sub_u32 {sLb}, {sLb}, 4096')
        A(f'v_or_b32 {vx2}, 0x8000, {vx0}\nv_or_b32 {vx3}, 0x8000, {vx1}\nv_and_b32 {vx0}, 0xffff7fff, {vx0}\nv_and_b32 {vx1}, 0xffff7fff, {vx1}')
        if OPT['flip'] & 1: A(f's_bitcmp1_b32 s2, 5\ns_cselect_b32 s4, 0, {32*lrow}\nv_subrev_u32 {vw}, s4, {vw}')
        else: A(f'v_subrev_u32 {vw}, {32*lrow}, {vw}')
        A(f'v_add_u32 {vw1}, {32*lrow}, {vw}')
        if OPT['rot'] == 4:
            A(f's_and_b32 s4, {sRot}, 3\ns_lshl_b32 s4, s4, 2\ns_lshr_b32 s4, 0x32103210, s4\ns_and_b32 s4, s4, 0xffff')
            if OPT['r2'] == 0: A(f's_mul_i32 s4, s4, 0x10001')
            elif OPT['r2'] == 1: A(f's_bitcmp1_b32 {sRot}, 0\ns_cselect_b32 s5, 0x11110000, 0\ns_xor_b32 s5, s5, 0x32100000\ns_or_b32 s4, s4, s5')
            else: A(f's_or_b32 s4, s4, 0x32100000')
            A(f's_cmp_ge_u32 {sRot}, 4\ns_cselect_b32 s5, 0x4444, 0x44440000\ns_or_b32 {sRot}, s4, s5'.replace('s_cselect_b32 s5, 0x4444, 0x44440000', 's_mov_b32 s5, 0x44440000\ns_cmovk_i32 s5, 0x4444'))
        elif OPT['rot'] == 2:
            A(f's_mul_i32 {sRot}, {sRot}, 0x11111111\ns_xor_b32 {sRot}, {sRot}, 0x76543210')
        else:
            A(f's_mov_b32 s4, 0x76543210\ns_mov_b32 s5, s4\ns_lshl_b32 s6, {sRot}, 2\ns_lshr_b64 s[4:5], s[4:5], s6\ns_mov_b32 {sRot}, s4')
        if F:
            t0, t1, t2 = T[0:3]
            A(f's_and_b32 {sT0}, {sJ}, 1\ns_mul_i32 {sT0}, {sT0}, 448\ns_sub_u32 {sHb}, 384, {sT0}')
            A(f's_mul_i32 {sT0}, {sWQ}, {16*lrow}\ns_add_u32 {sHb}, {sHb}, {sT0}')
            A(f'v_lshrrev_b32 {t0}, 2, {l}\nv_and_b32 {t1}, 3, {l}\nv_lshrrev_b32 {t2}, 4, {l}\nv_and_b32 {t2}, 2, {t2}\nv_xor_b32 {t2}, {t2}, {t1}\nv_lshlrev_b32 {t2}, 4, {t2}')
            A(f'v_mul_u32_u24 {vh}, {lrow}, {t0}\nv_add_u32 {vh}, {vh}, {t2}')
            self.issue(0, only_half=True)
        p2_ids(A)
        t0, t1, f = T[0:3]
        if OPT['ph']:
            if OPT['brot']: A('s_and_b32 s6, s6, 2')
            A(f's_add_u32 s6, s6, {sJ2}\ns_and_b32 s7, s6, 3\ns_lshl_b32 s7, s7, 2\ns_lshr_b32 s4, 0x98109810, s7\ns_and_b32 s4, s4, 0xffff')
            A(f's_mul_i32 {sCur}, s4, 0x10001\ns_add_u32 {sCur}, {sCur}, 0x22220000')
            A(f's_bitcmp1_b32 s6, {1 if OPT["brot"] else 0}\ns_cselect_b32 s5, 0x110000, 0\ns_xor_b32 s5, s5, 0x764444\ns_add_u32 {sCurA}, s4, s5')
        else:
            A(f's_lshl_b32 s6, s6, 1' + (f'\ns_and_b32 s6, s6, 4' if OPT['brot'] else '') + f'\ns_add_u32 s6, s6, {sJ2}' + ('\ns_add_u32 s6, s6, s2' if OPT['xr'] & 1 else '') + '\ns_and_b32 s6, s6, 7')
            A(f's_mov_b32 s4, 0xba983210\ns_mov_b32 s5, s4\ns_lshl_b32 s7, s6, 2\ns_lshr_b64 s[4:5], s[4:5], s7\ns_mov_b32 {sCur}, s4')
            A(f's_mul_i32 s6, s6, 3\ns_and_b32 s7, s6, 28\ns_mov_b32 s4, 0x547dc654\ns_mov_b32 s5, 0x7dc6\ns_lshr_b64 s[4:5], s[4:5], s7\ns_mov_b32 {sCurA}, s4')
        A(f's_mul_i32 s4, {sWQ}, 14\ns_mul_i32 {sAb}, {sI2}, 72\ns_add_u32 {sAb}, {sAb}, s4\ns_lshl_b32 {sAb}, {sAb}, 12\ns_add_u32 {sAb}, {sAb}, {ACT}')
        A(f's_lshl_b32 {sBb}, s4, 15\ns_lshl_b32 s5, {sJ2}, 7\ns_add_u32 {sBb}, {sBb}, s5')
        A(f's_lshl_b32 {sF[0]}, {sWQ}, 17\ns_add_u32 {sF[0]}, {sF[0]}, s5')
        A(f's_lshl_b32 {sLb2}, {sWQ}, 12')
        A(f'v_lshrrev_b32 {t0}, 3, {l}\nv_and_b32 {t1}, 6, {t0}\nv_and_b32 {f}, 7, {l}\nv_xor_b32 {t1}, {t1}, {f}\nv_lshlrev_b32 {t1}, 4, {t1}\nv_lshl_add_u32 {vb0}, {t0}, 10, {t1}\nv_add_u32 {vb1}, 0x2000, {vb0}')
        tr_addr(A, vb, sLb2, t0, t1)
        for q in range(4): A(f'v_add_u32 {vbh[q]}, {Y0}, {vb[q]}')
        A(f'v_mov_b32 {pm}, {L_TAG}\nv_mov_b32 {p1}, 1')
        cnt_i2(A, sF[1], sI2, 1024)
        A(f's_lshl_b32 s4, {sWQ}, 8\ns_add_u32 {sF[1]}, {sF[1]}, s4')
        if OPT['Rh'] > 1: A(f's_and_b32 s4, {sJ2}, 1\ns_lshl_b32 s4, s4, 7\ns_add_u32 {sF[1]}, {sF[1]}, s4')
        ca = T[4:8]; t, g = T[8], T[9]; ones = ACCL[12:16]; wfr = ACCL[16:32]; cs = ACCL[32:48]; vt = T[10]; ff = T[11]
        A(f'v_and_b32 {t}, 15, {l}\nv_lshrrev_b32 {g}, 4, {l}')
        if F: A(f's_cmp_eq_u32 {sWQ}, 3\ns_cselect_b32 s4, 6, 7\ns_cselect_b32 s5, 1, 3\ns_cselect_b32 s6, 1, 0\ns_lshl_b32 s7, {sWQ}, 13')
        else: A(f's_mov_b32 s4, 7\ns_mov_b32 s5, 3\ns_mov_b32 s6, 0\ns_min_u32 s7, {sWQ}, 2\ns_lshl_b32 s7, s7, 13')
        A(f's_lshl_b32 {sT0}, {sI}, {dict([(2,4),(4,3),(8,2)])[OPT["rot"]]}\ns_and_b32 {sT0}, {sT0}, 32')
        A(f's_lshr_b32 {sE[0]}, {sE[0]}, 6\ns_lshl_b32 {sT1}, {sWQ}, 5\ns_add_u32 {sE[0]}, {sE[0]}, {sT1}\ns_add_u32 {sSpin}, {sE[0]}, {STAT}')
        sgr = ACCL[56:60]; sga = T[60]; sgs = T[61]
        A(f's_lshl_b32 {sT1}, {sWQ}, 4\ns_add_u32 {sT1}, {sT1}, {L_SG}\nv_and_b32 {sga}, 1, {l}\nv_lshl_add_u32 {sga}, {sga}, 3, {sT1}')
        A(f'v_lshrrev_b32 {sgs}, 1, {l}\nv_lshl_add_u32 {sgs}, {sgs}, 26, {v_l16}')
        A(f'v_lshrrev_b32 {t0}, 2, {t}\nv_lshl_add_u32 {t0}, {g}, 3, {t0}\nv_add_u32 {t0}, {sT0}, {t0}\nv_lshlrev_b32 {t0}, s4, {t0}')
        A(f'v_and_b32 {t1}, 3, {t}\nv_lshl_add_u32 {t0}, {t1}, 3, {t0}\ns_add_u32 s7, s7, {phys(0)+16384}')
        if OPT['rot'] == 2: A(f's_bitcmp1_b32 {sI}, 2\ns_cselect_b32 {sT1}, {phys(0) - phys(2)}, 0\ns_sub_u32 s7, s7, {sT1}')
        A(f'v_add_u32 {t0}, s7, {t0}')
        A(f'v_lshrrev_b32 {f}, 3, {t}\nv_and_b32 {t1}, 1, {g}\nv_lshl_or_b32 {f}, {t1}, 1, {f}\nv_lshrrev_b32 {f}, s6, {f}')
        for q in range(4): A(f'v_xor_b32 {t1}, {q}, {f}\nv_and_b32 {t1}, s5, {t1}\nv_lshl_add_u32 {ca[q]}, {t1}, 5, {t0}')
        A(f's_lshl_b32 s5, 4, s4')
        for r in range(4): A(f'v_mov_b32 {ones[r]}, 0x3f803f80')
        A(f'v_mov_b32 {vt}, {L_TAG}\nv_mov_b32 {ff}, 0xff')
        A(f's_lshl_b32 {sE[1]}, {sJJ}, 14\ns_lshl_b32 {sT0}, {sWQ}, 8\ns_add_u32 {sE[1]}, {sE[1]}, {sT0}\ns_add_u32 {sE[1]}, {sE[1]}, {CSP}')
        A(f's_lshl_b32 {sT0}, {sI}, 10\ns_add_u32 {sE[2]}, {sE[1]}, {sT0}')
        A(f's_lshl_b32 {sE[0]}, {sI}, 2\ns_add_u32 {sE[0]}, {sE[0]}, {sWQ}\ns_lshl_b32 {sE[0]}, {sE[0]}, 9\ns_add_u32 {sE[0]}, {sE[0]}, {STAT}')
        def mall():
            if OPT['touch'] & 8:
                A(f's_lshl2_add_u32 {sT0}, s2, {sWQ}\ns_lshl_b32 {sT0}, {sT0}, 10\ns_add_u32 {sT1}, {sT0}, 0x100000\ns_mov_b32 m0, {JUNK}')
                C.vm(f'buffer_load_dwordx4 {v_l16}, {sW2}, {sT0} offen lds')
                C.vm(f'buffer_load_dwordx4 {v_l16}, {sW2}, {sT1} offen lds')
                A(f's_xor_b32 {sT0}, {sT0}, 0x80000')
                C.vm(f'buffer_load_dwordx4 {v_l16}, {sWO}, {sT0} offen lds')
                return
            if not OPT['touch'] & 4 or F: return
            A(f's_cmp_gt_u32 {sJ}, 3\ns_subb_u32 {sT0}, {sJ}, 0\ns_lshl_b32 {sT0}, {sT0}, 4\ns_add_u32 {sT0}, {sT0}, {sI}\ns_lshl2_add_u32 {sT0}, {sT0}, {sWQ}')
            A(f's_cmp_eq_u32 {sJ}, 3\ns_cselect_b32 {sT0}, 0x10000, {sT0}\ns_lshl_b32 {sT1}, {sT0}, 11\ns_lshl_b32 {sT0}, {sT0}, 12\ns_mov_b32 m0, {JUNK}')
            for i in range(4): C.vm(f'buffer_load_dwordx4 {v_l16}, {sW2}, {sT0} offen offset:{1024*i} lds')
            for i in range(2): C.vm(f'buffer_load_dwordx4 {v_l16}, {sWO}, {sT1} offen offset:{1024*i} lds')
        if not F:
            A(f's_lshl2_add_u32 {sT0}, {sJ}, {sWQ}\ns_lshr_b32 {sT0}, {sT0}, 1\ns_lshl_b32 {sT0}, {sT0}, 10\ns_add_u32 m0, {sLb}, {L_PHI}\ns_waitcnt lgkmcnt(0)')
            tkphi = C.vm(f'buffer_load_dwordx4 {v_l16}, {sPHI}, {sT0} offen lds')
        if OPT['j3'] & 1 and OPT['j3p'] == 1: j3touch(False)
        if OPT['kva'] and not F:
            z4 = RS[1][0:4]; za = RS[1][4]
            for r in range(4): A(f'v_mov_b32 {z4[r]}, 0')
            A(f's_lshl_b32 {sT1}, {sI}, 10\nv_add_u32 {za}, {sT1}, {v_l16}\nv_cmp_lt_u32 vcc, {2176-16}, {za}\nv_cndmask_b32 {za}, {za}, {ones[0]}, vcc')
            A(f's_lshl2_add_u32 {sT0}, {sJ}, {sWQ}\ns_mul_i32 {sT0}, {sT0}, 2176\ns_add_u32 {sT0}, {sT0}, {KT}')
            C.vm(f'buffer_store_dwordx4 {z4}, {za}, {sWS}, {sT0} offen sc1')
        stl = [int(c, 16) for c in OPT['st']] + [0]*3
        sc = [OPT['stc'] + OPT['stl']]
        if OPT['stl']:
            if F: A('s_waitcnt lgkmcnt(0)')
            stouch(A, OPT['stc'], sc[0])
        stampg(A, 4)
        if OPT['tk'] == -1:
            A('s_waitcnt lgkmcnt(0)'); mall()
        self.issue(1, hi=OPT['sp1'])
        stamp(A, 1); stampg(A, 5)
        C.wait(self.stok[0]); stampb(A, 1); stampg(A, 6); A('s_barrier')
        stampg(A, 7)
        stamp(A, 2)
        gq = [ACCL[16+4*i:20+4*i] for i in range(4)]; sg = ACCL[32:36]; ga, sa = T[4], T[5]; tm = ACCL[40:48]
        ldg = [f'buffer_load_dwordx4 {sg}, {sa}, {sWS}, {sE[0]} offen sc1']
        ldg += [f'buffer_load_dwordx4 {gq[i]}, {ga}, {sWS}, {[sE[1], sE[3], sE[4], sE[5]][i]} offen sc1' for i in range(4)]
        nm = OPT['nmF'] if F else OPT['nmA']
        B.free = [TS]
        tl = [int(c) for c in f'{OPT["tl"+self.typ]:09d}']
        tc = [0]
        def touch(n):
            for _ in range(n):
                i = tc[0]
                if i >= 18: return
                tc[0] += 1
                r = i if i < 14 else i - 14
                if r % 4 == 0 or _ == 0:
                    A(f's_lshr_b32 {sT0}, s2, 3\ns_lshl2_add_u32 {sT0}, {sT0}, {sWQ}\ns_mul_i32 {sT0}, {sT0}, {14336 if i < 14 else 4096}\ns_add_u32 {sT0}, {sT0}, {r//4*4096}\ns_mov_b32 m0, {JUNK}')
                C.vm(f'buffer_load_dwordx4 {v_l16}, {sW2 if i < 14 else sWO}, {sT0} offen offset:{(r % 4)*1024} lds')
        c3l = [int(c) for c in f'{OPT["c3F"]:06d}'] + [0]*3
        c3c = [0]
        def c3touch(n):
            if n: A(f's_lshr_b32 {sT0}, s2, 4\ns_and_b32 {sT0}, {sT0}, 8\ns_and_b32 {sT1}, {sI}, 7\ns_add_u32 {sT0}, {sT0}, {sT1}\ns_lshl2_add_u32 {sT1}, {sT0}, {sWQ}\ns_mul_i32 {sT0}, {sT1}, {28*1024}\ns_mov_b32 m0, {JUNK}\ns_lshl_b32 {sT1}, {sT1}, 13')
            for _ in range(n):
                i = c3c[0]
                if i >= 5: return
                c3c[0] += 1
                if i < 4:
                    A(f's_add_u32 s6, {sT0}, {[0, 8192, 16384, 20480][i]}')
                    C.vm(f'buffer_load_dwordx4 {vb0}, {sW2}, s6 offen offset:384 lds')
                else: C.vm(f'buffer_load_dwordx4 {vb0}, {sWO}, {sT1} offen offset:384 lds')
        for k in range(9):
            if k == 3: stampc(A, 1)
            if k == 4: stampc(A, 8)
            if k == 0:
                A(f'ds_read_b32 {vt}, {vt}\nds_read_b64 {sgr[0:2]}, {sga}')
            if k == 0 or (k == 2 and OPT['rot'] == 2):
                lk = A.lab('CS')
                if OPT['rot'] == 2: A(f's_bitcmp1_b32 {sI}, 2\ns_cbranch_scc{1 if k == 0 else 0} {lk}')
                for q in range(4): A(f'ds_read_b64_tr_b16 {wfr[4*q:4*q+2]}, {ca[q]}')
                for q in range(4): A(f'v_add_u32 {ca[q]}, s5, {ca[q]}')
                for q in range(4): A(f'ds_read_b64_tr_b16 {wfr[4*q+2:4*q+4]}, {ca[q]}')
                A(f'{lk}:')
            if OPT['sti'] and 1 <= k < 6:
                stouch(self.sq.append, sc[0], sc[0] + stl[k]); sc[0] += stl[k]; stl[k] = 0
            if k == 0: self.issue(1, lo=OPT['sp1'])
            if k and OPT['spm'] >> (k-1) & 1: self.issue(k + 1, lo=OPT['sp0'])
            if k < 6: self.issue(k + 2, hi=OPT['sp0'] if OPT['spm'] >> k & 1 else 99)
            for x in self.sq: A(x)
            self.sq = []
            if k == 6 and OPT['xr'] & 2:
                A(f's_and_b32 {sT0}, s2, 6\ns_lshl_b32 {sT0}, {sT0}, 9')
                for i in range(4): A(f's_xor_b32 {sLi[i]}, {sT0}, {1024*i}\ns_add_u32 {sLi[i]}, {sLi[i]}, {sLb2}')
                A(f's_and_b32 {sT1}, {sT0}, 1024\ns_lshl_b32 {sT1}, {sT1}, 3\nv_xor_b32 {vr0}, {sT1}, {vb0}\nv_xor_b32 {vr1}, {sT1}, {vb1}')
                A(f's_lshr_b32 {sHb}, {sT1}, 2')
                A(f's_and_b32 {sT1}, {sT0}, 2048\ns_lshl_b32 {sT1}, {sT1}, 3\ns_add_u32 {sBb}, {sBb}, {sT1}')
            if k == 6:
                for i in range(4):
                    A(f's_add_u32 {sT0}, {sWQ}, {i}\ns_and_b32 {sT0}, {sT0}, 3\ns_lshl_b32 {sT0}, {sT0}, 10\nv_add_u32 {va[i]}, {sT0}, {v_l16}')
            if k == 3: stampc(A, 2)
            if k == OPT['stk']:
                if k == 0: A(f's_waitcnt lgkmcnt(0)')
                A(f'v_readfirstlane_b32 {sTag}, {vt}')
                A('s_setprio 3')
                for q in range(4): A(f'v_mfma_f32_16x16x32_bf16 {cs[4*q:4*q+4]}, {ones}, {wfr[4*q:4*q+4]}, 0')
                tag_consts(A)
                A(f'v_lshrrev_b32 {t0}, 4, {l}\nv_lshl_add_u32 {t0}, {t0}, 26, {v_l16}')
                for q in range(4): A(f'v_bfi_b32 {cs[q]}, {ff}, {sTB[q]}, {cs[4*q]}')
                A(f's_setprio {OPT["lprio"]}')
                A(f'v_mov_b32 {sgr[2]}, {vt}\nv_mov_b32 {sgr[3]}, {vt}')
                A(f'v_and_b32 {ga}, 15, {l}\nv_lshlrev_b32 {ga}, 4, {ga}\nv_lshl_add_u32 {ga}, {g}, 10, {ga}\nv_and_b32 {sa}, 0x1f0, {v_l16}')
                A(f's_add_u32 {sE[3]}, {sE[1]}, 4096\ns_add_u32 {sE[4]}, {sE[1]}, 8192\ns_add_u32 {sE[5]}, {sE[1]}, 12288')
            if k == OPT['stk']:
                assert (k >= 2 or OPT['rot'] != 2)
                C.vm(f'buffer_store_dwordx4 {cs[0:4]}, {t0}, {sWS}, {sE[2]} offen sc1')
                C.vm(f'buffer_store_dwordx4 {sgr}, {sgs}, {sWS}, {sSpin} offen sc1')
            if k == OPT['j3k'] and OPT['j3'] & 2: j3touch(True)
            if k == OPT['tk']: mall()
            if k == OPT['c3'] and not F:
                A(f's_lshr_b32 {sT0}, s2, 4\ns_and_b32 {sT0}, {sT0}, 8\ns_and_b32 {sT1}, {sI}, 7\ns_add_u32 {sT0}, {sT0}, {sT1}\ns_lshl2_add_u32 {sT1}, {sT0}, {sWQ}\ns_mul_i32 {sT0}, {sT1}, {28*1024}\ns_mov_b32 m0, {JUNK}')
                for o in (0, 8192, 8192, 4096):
                    if o: A(f's_add_u32 {sT0}, {sT0}, {o}')
                    C.vm(f'buffer_load_dwordx4 {vb0}, {sW2}, {sT0} offen offset:384 lds')
                A(f's_lshl_b32 {sT1}, {sT1}, 13')
                C.vm(f'buffer_load_dwordx4 {vb0}, {sWO}, {sT1} offen offset:384 lds')
            if F: c3touch(c3l[k])
            plo, phi_, pa_ = RS[10][0:4], RS[10][4:8], RS[10][8]
            if k == OPT['pk'] and not F:
                if k == 0: C.wait(tkphi)
                A(f'v_bfe_u32 {pa_}, {l}, 3, 2\nv_lshlrev_b32 {pa_}, 3, {pa_}\nv_and_b32 {t1}, 3, {l}\nv_lshl_add_u32 {pa_}, {t1}, 1, {pa_}')
                A(f'v_lshrrev_b32 {t1}, 5, {l}\nv_lshl_add_u32 {pa_}, {t1}, 8, {pa_}')
                A(f's_and_b32 {sT0}, {sWQ}, 1\ns_lshl_b32 {sT0}, {sT0}, 9\ns_add_u32 {sT0}, {sT0}, {sLb}\ns_add_u32 {sT0}, {sT0}, {L_PHI}\nv_add_u32 {pa_}, {sT0}, {pa_}')
                for j in range(8): A(f'ds_read_u16 {(phi_ if j & 1 else plo)[j//2]}, {pa_} offset:{32*j}')
            if k == OPT['pk'] + 1 and not F:
                L = [f'v_bfe_u32 {t1}, {l}, 2, 1', f'v_mul_u32_u24 {t1}, 0x8000, {t1}', f'v_lshl_or_b32 {t1}, {t1}, 16, {t1}']
                for rr in range(4): L += [f'v_lshl_or_b32 {plo[rr]}, {phi_[rr]}, 16, {plo[rr]}', f'v_xor_b32 {plo[rr]}, {plo[rr]}, {t1}']
                L += [f's_add_u32 {sT0}, {sLb}, {L_PHI}', f'v_add_u32 {pa_}, {sT0}, {v_l16}', f'ds_write_b128 {pa_}, {plo}']
                for x in L: A(x)
            if k == OPT['gat']:
                for s in ldg: tkg = C.vm(s)
            touch(tl[k])
            if 6 - nm <= k < 6: B.step()
            if k == 6: B.free += [X0, X1]
            if k == 7: B.free += [Y0, Y1]
            if k in (6, 7) and (k != OPT['chk'] or OPT['qf']): B.quota(OPT[f'q{k}{self.typ}'])
            if k == OPT['chk']:
                C.wait(tkg)
                def chk():
                    for i in range(4): quad_diff(A, gq[i], tm[i], tm[4+i])
                    A(f'v_bitop3_b32 {tm[4]}, {sg[2]}, {sg[3]}, {sTag} bitop3:0x7e')
                    A(f'v_or3_b32 {tm[0]}, {tm[0]}, {tm[1]}, {tm[2]}\nv_or3_b32 {tm[0]}, {tm[0]}, {tm[3]}, {tm[4]}\nv_cmp_ne_u32 vcc, 0, {tm[0]}\ns_and_b64 s[4:5], vcc, exec')
                poll(A, '\n'.join(ldg), chk, first_loaded=True, sleep=OPT['slp'])
                L = []
                for i in range(4):
                    for r in range(4): L.append(f'v_and_b32 {gq[i][r]}, 0xffffff00, {gq[i][r]}')
                x = gq[0]
                for r in range(4): L += [f'v_add_f32 {x[r]}, {x[r]}, {gq[1][r]}', f'v_add_f32 {gq[2][r]}, {gq[2][r]}, {gq[3][r]}', f'v_add_f32 {x[r]}, {x[r]}, {gq[2][r]}']
                L += [f'v_permlane32_swap_b32 {x[0]}, {x[2]}', f'v_permlane32_swap_b32 {x[1]}, {x[3]}', f'v_add_f32 {x[0]}, {x[0]}, {x[2]}', f'v_add_f32 {x[1]}, {x[1]}, {x[3]}',
                      f'v_permlane16_swap_b32 {x[0]}, {x[1]}', f'v_add_f32 {x[0]}, {x[0]}, {x[1]}']
                L += [f's_lshl_b32 {sT0}, {sWQ}, 8', f's_add_u32 {sT0}, {sT0}, {L_CS}', f'v_lshl_add_u32 {ga}, {l}, 2, {sT0}', f'ds_write_b32 {ga}, {x[0]}']
                L += [f's_lshl_b32 {sT1}, {sWQ}, 7', f's_add_u32 {sT1}, {sT1}, {L_NM}', f'v_lshrrev_b32 {sa}, 2, {sa}', f'v_add_u32 {sa}, {sT1}, {sa}',
                      f'v_sub_f32 {sg[0]}, 0, {sg[0]}', f'v_mul_f32 {sg[2]}, {f2u(-LOG2E if F else LOG2E):#x}, {sg[1]}',
                      f'ds_write_b32 {sa}, {sg[0]}', f'ds_write_b32 {sa}, {sg[2]} offset:512']
                if not F: L.append(f'ds_write_b32 {sa}, {sg[1]} offset:1024')
                emit_sched(A, L)
                if k in (6, 7) and not OPT['qf']: B.quota(OPT[f'q{k}{self.typ}'])
            if k == 0: stampg(A, 8)
            if k == 1: stampg(A, 10)
            if k < 8:
                lg = k == 0 or k >= 6 - nm or (k == OPT['pk'] and not F)
                if lg and stl[k]: A('s_waitcnt lgkmcnt(0)'); lg = False
                stouch(A, sc[0], sc[0] + stl[k]); sc[0] += stl[k]
                if k < 7: C.wait(self.stok[k+1], 'lgkmcnt(0)' if lg else '')
                else: A('s_waitcnt lgkmcnt(0)')
                G.done = G.n
                if k == 0: stampg(A, 9)
                if k == 3: stampc(A, 3)
                stampb(A, 2 + k)
                A('s_barrier')
                if k == 3: stampc(A, 4)
        stamp(A, 5)
        if OPT['lprio']: A('s_setprio 0')
        if OPT['dbg'] & (1 if F else 2):
            A(f's_mov_b32 {sW2[2]}, 0\ns_mov_b32 {sWO[2]}, 0')
        if OPT['dbg'] & 4 and F:
            A('s_sleep 60')
        B.wleft = list(range(4 - OPT['wol' + self.typ], 4))
        def wo(ks):
            for k in ks:
                if k not in B.wleft:
                    for f in B.wo_list(k): f()
        A(f's_and_b32 {sF[2]}, {sI2}, 2')
        B.dep = OPT['dep' + self.typ]
        wob = OPT['wob'] if F else OPT['wobA']
        stampe(A, 1)
        mark = len(A.L)
        B.flush()
        while B.next < wob and B.step():
            if B.next % 2 == 1 and B.next > 2: stampe(A, 2 + (B.next-3)//2)
        wo([0, 1])
        stampe(A, 8)
        while B.step(): pass
        wo([2, 3])
        if OPT['ah']:
            idx = [i for i in range(mark, len(A.L)) if A.L[i].startswith('buffer_load')]
            i = idx[-OPT['ah']] + 1
            assert not any('lgkmcnt' in x for x in A.L[i:])
            A.L[i:i] = [f's_mov_b32 {sE[2]}, 0', f's_atomic_add {sE[2]}, {sWS[0:2]}, {sF[1]} glc', f's_add_u32 {sE[3]}, {sTag}, 4']
        stampe(A, 9)
        assert not B.fly
        stamp(A, 6)
        return B

def p2_L(A, B0, typ):
    l = lane; C = Ctx(A); G = LG(A)
    B = BP(A, C, G); B.slot = dict(B0.slot); B.tokwo = 0
    stamp(A, 7); stampe(A, 10)
    if OPT['ah']:
        lk = A.lab('H1')
        A(f's_waitcnt lgkmcnt(0)\ns_cmp_eq_u32 {sE[2]}, {sE[3]}\ns_cbranch_scc1 {lk}')
    ppoll(A, sF[1], 4, OPT['Dh'], 44, OPT['slph'])
    if OPT['ah']: A(f'{lk}:')
    stamp(A, 9); stampf(A, 0)
    tok = {}
    def a_off(s): return [nib(sE[1], s), f's_lshl_b32 {sE[1]}, {sE[1]}, 12', f's_add_u32 {sE[1]}, {sE[1]}, {sAb}']
    def ld_a(s, tt):
        tok[(s, tt)] = C.vm(f'buffer_load_dwordx4 {RS[8 + s % 3][4*tt:4*tt+4]}, {va[tt]}, {sWS}, {sE[1]} offen ' + ['sc1', '', 'sc0', 'nt', 'sc0 sc1'][OPT['hld']])
    la = OPT['la' + typ]
    seq = [(s, tt) for s in range(14) for tt in ([1, 2, 3, 0] if s == 13 else [0, 1, 2, 3])]
    for n in range(la):
        if n % 4 == 0:
            for x in a_off(n // 4): A(x)
        ld_a(*seq[n])
    chk_at = {(8*PH[p-1] - la) // 4: p for p in range(1, len(PH))}
    asy_at = {}
    prev = 0
    for st_, p in sorted(chk_at.items()): asy_at[max(prev, st_ - OPT['pa3'])] = p; prev = st_
    assert la <= 8*PH[0] and len(asy_at) == len(chk_at)
    A(f's_add_u32 {sE[3]}, {sTag}, 4')
    G.done = G.n
    tokB = {k: 0 for k in range(8)}
    Q = []; X = []
    for k in B0.wleft: X += B.wo_list(k)
    sig = False
    wa, t, a, vm_ = [RS[0][i] for i in range(4)]; ra = [RS[0][4+i] for i in range(3)]; c = RS[1]; W = []
    tail = [f's_add_u32 {sT0}, {sLb2}, {Y0}', f'v_add_u32 {wa}, {sT0}, {v_l16}']
    for sg in range(1, 4):
        tail += [f's_sub_u32 {sT0}, {sWQ}, {sg}', f's_and_b32 {sT0}, {sT0}, 3', f's_lshl_b32 {sT0}, {sT0}, 12', f's_add_u32 {sT0}, {sT0}, {Y0 + 16384*(sg-1)}', f'v_add_u32 {ra[sg-1]}, {sT0}, {v_l16}']
    tail += [f'v_mov_b32 {c[0]}, {f2u(-LOG2E):#x}', f'v_mov_b32 {c[1]}, {c[0]}', f'v_mov_b32 {c[2]}, 1.0', f'v_mov_b32 {c[3]}, 1.0', f'v_add_u32 {a}, {sLb2}, {v_l16}', f'v_mov_b32 {vm_}, {L_TAG}', f'v_mov_b32 {t}, 1']
    for s in range(14):
        Bk = RS[RSL[s]]; Ak = RS[8 + s % 3]
        if OPT['lp2'] and s == OPT['lpr']: A('s_setprio 0')
        if OPT['lp2'] and s == OPT['lps' + typ]: A(f's_setprio {OPT["lp2"]}')
        def asy():
            A(f's_mov_b32 {sE[2]}, 0\ns_atomic_add {sE[2]}, {sWS[0:2]}, {sF[1]} offset:{PHO[asy_at[s]]} glc')
        if s in asy_at and chk_at.get(s) == asy_at[s]: asy()
        if s in chk_at:
            lk = A.lab('H2')
            G.all()
            A(f's_cmp_eq_u32 {sE[2]}, {sE[3]}\ns_cbranch_scc1 {lk}')
            A(f's_mov_b32 {sE[4]}, {sT0}\ns_mov_b32 {sE[5]}, {sT1}')
            spoll(A, f'{sF[1]} offset:{PHO[chk_at[s]]}', 4, OPT['slph'])
            A(f's_mov_b32 {sT0}, {sE[4]}\ns_mov_b32 {sT1}, {sE[5]}')
            A(f'{lk}:')
        if s in asy_at and chk_at.get(s) != asy_at[s]: asy()
        G.need(tokB[LOAD.index(s)], 0)
        nx = 0
        order = [1, 2, 3, 0] if s == 13 else [0, 1, 2, 3]
        for ti, tt in enumerate(order):
            nl = 4*s + ti + la
            S = a_off(nl // 4) if (nl % 4 == 0 and nl < 56) else []
            C.wait(tok[(s, tt)])
            if not sig and not X and tok[(s, tt)] > B.tokwo and (s == 0 or s > 4):
                if s == 0: A(f's_mov_b64 exec, 1\nds_add_u32 {pm}, {p1} offset:4\ns_mov_b64 exec, -1')
                else: A(f'v_mov_b32 {vb0}, {L_TAG}\nv_mov_b32 {vb1}, 1\ns_mov_b64 exec, 1\nds_add_u32 {vb0}, {vb1} offset:4\ns_mov_b64 exec, -1')
                G.n += 1; sig = True
            for q in range(4):
                ac = ACCL[16*tt+4*q:16*tt+4*q+4]
                A(f'v_mfma_f32_16x16x32_bf16 {ac}, {Bk[4*q:4*q+4]}, {Ak[4*tt:4*tt+4]}, {ac if s else 0}')
                if S: A(S.pop(0))
                elif q == 1 and X and nx < (4 if s == 3 else OPT['wper']): X.pop(0)(); nx += 1
                if Q and q < 3:
                    tokB[qk] = G.ds(Q.pop(0))
                elif s >= 10 and tail: A(tail.pop(0))
                if s == 13:
                    if tt: W.append(f'ds_write_b128 {wa}, {ac} offset:{16384*(tt-1) + 1024*q}')
                    if 4*ti + q >= 4 + OPT['wdel']: A(W.pop(0))
            if nl < 56: ld_a(*seq[nl])
            if OPT['gs'] and nl == OPT['gs']:
                assert not X and s > 4
                A(f'v_mov_b32 {vb0}, {L_TAG}\nv_mov_b32 {vb1}, 1\ns_mov_b64 exec, 1\nds_add_u32 {vb0}, {vb1} offset:12\ns_mov_b64 exec, -1')
                G.n += 1
        assert not Q
        if s in (0, 1, 3, 5, 7, 9, 11, 13): stampf(A, 1 + (s+1)//2)
        if s == 2:
            while len(X) % 4: X.pop(0)()
            G.need(tokB[8]); X = B.dma_list(13, B.slot[8]) + X
        if s == 3:
            while len(X) % 4: X.pop(0)()
        if s + 8 < 13: qk = s + 8; Q = B.trl(qk)
        if s == 8:
            assert tok[(8, 3)] > B.tok[13]
            qk = 13; Q = B.trl(13)
    assert sig and not tail and not X
    for x in W: A(x)
    stamp(A, 10)
    if OPT['lpt']: A(f's_setprio {OPT["lpt"]}')
    A(f's_mov_b64 exec, 1\nds_add_u32 {vm_}, {t} offset:8\ns_mov_b64 exec, -1')
    lds_spin(A, vm_, 8, 4, t)
    stampf(A, 9)
    for u in range(4):
        for sg in range(3): A(f'ds_read_b128 {RS[2+sg][4*u:4*u+4]}, {ra[sg]} offset:{1024*u}')
    P = ACCL[0:16]; e = ACCL[16:32]
    for u in range(4):
        A(f's_waitcnt lgkmcnt({9 - 3*u})')
        for i in (2*u, 2*u+1):
            A(f'v_pk_add_f32 {P[2*i:2*i+2]}, {P[2*i:2*i+2]}, {RS[2][2*i:2*i+2]}\nv_pk_add_f32 {RS[3][2*i:2*i+2]}, {RS[3][2*i:2*i+2]}, {RS[4][2*i:2*i+2]}')
        for i in (2*u, 2*u+1): A(f'v_pk_add_f32 {P[2*i:2*i+2]}, {P[2*i:2*i+2]}, {RS[3][2*i:2*i+2]}')
    L = []
    for u in range(4):
        for i in (2*u, 2*u+1): L.append(f'v_pk_mul_f32 {e[2*i:2*i+2]}, {P[2*i:2*i+2]}, {c[0:2]}')
        for i in range(4*u, 4*u+4): L.append(f'v_exp_f32 {e[i]}, {e[i]}')
        for i in (2*u, 2*u+1): L.append(f'v_pk_add_f32 {e[2*i:2*i+2]}, {e[2*i:2*i+2]}, {c[2:4]}')
        for i in range(4*u, 4*u+4): L.append(f'v_rcp_f32 {e[i]}, {e[i]}')
        for i in (2*u, 2*u+1): L.append(f'v_pk_mul_f32 {e[2*i:2*i+2]}, {e[2*i:2*i+2]}, {P[2*i:2*i+2]}')
        L.append(f'ds_write_b128 {a}, {e[4*u:4*u+4]} offset:{X0 + 1024*u}')
    emit_sched(A, L)
    A('s_waitcnt lgkmcnt(0)')
    stamp(A, 8); stampf(A, 10)
    A('s_setprio 0\ns_barrier')

def kernel(A):
    K = NAME + '_kernel'
    l = lane
    A(f'.globl {K}\n.p2align {OPT["pa"]}\n.type {K},@function\n{K}:')
    if OPT['stamp']: A(f's_memrealtime s[72:73]' if OPT['stamp'] in (1, 2, 9) else 's_memtime s[72:73]')
    A(f's_load_dwordx2 {sX[0:2]}, s[0:1], 0')
    A(f's_bitcmp1_b32 s2, 6\ns_cselect_b32 s7, 40, 8')
    A(f's_load_dwordx2 {sW[0:2]}, s[0:1], s7')
    A(f's_load_dwordx2 {sWS[0:2]}, s[0:1], 72')
    if OPT['warm']:
        A(f'v_lshlrev_b32 v2, {OPT["warm"]}, v0\ns_waitcnt lgkmcnt(0)')
        stampg(A, 1)
        A(f'global_load_dword v255, v2, {sX[0:2]}\nglobal_load_dword v255, v2, {sW[0:2]}')
    A(f's_movk_i32 {sLrow}, 3072\ns_cmovk_i32 {sLrow}, 3584\ns_movk_i32 {sWb}, 128\ns_cmovk_i32 {sWb}, 448\ns_cselect_b32 s3, 2, 0')
    A('s_lshr_b32 s4, s2, 8\ns_cbranch_scc1 K_done')
    rho, t, k = R('v',13,1), R('v',14,1), R('v',15,1)
    A(f'v_readfirstlane_b32 {sLb}, v0\ns_lshr_b32 s5, s2, 3')
    if OPT['touch'] & 1:
        A(f's_getpc_b64 s[6:7]\nL_pc:')
        A(f's_lshl_b32 s4, s5, 11\nv_lshl_add_u32 v2, v0, 2, s4\nv_min_u32 v2, K_done-L_pc, v2')
        A(f'global_load_dword v255, v2, s[6:7]')
    fx, fw = OPT['flip'] & 2, OPT['flip'] & 1
    sLx, sLw = sE[4], sE[5]
    A(f'v_lshrrev_b32 {t}, 4, v0\nv_xor_b32 {k}, {t}, v0\nv_and_b32 {k}, 7, {k}\nv_lshlrev_b32 {k}, 4, {k}\nv_lshrrev_b32 {rho}, 3, v0')
    A(f'v_lshl_add_u32 {vx0}, {rho}, 10, {k}')
    A(f's_and_b32 s4, s5, 7\ns_and_b32 s6, s2, 1\ns_lshl3_add_u32 {sI}, s6, s4\ns_lshr_b32 s6, s2, 6\ns_lshr_b32 s7, s2, 1')
    assert OPT['rot'] == 4
    if fx: A(f's_lshr_b32 s5, s2, 2\ns_and_b32 s5, s5, 1\ns_add_u32 s5, s5, s4\ns_lshl1_add_u32 s5, s6, s5')
    else: A(f's_add_u32 s5, s4, s6')
    A(f's_and_b32 s5, s5, 3\ns_xor_b32 {sRot}, s7, s2\ns_and_b32 {sRot}, {sRot}, 1\ns_lshl2_add_u32 {sRot}, {sRot}, s5')
    A(f's_and_b32 s7, s7, 3\ns_lshl2_add_u32 {sJJ}, s7, s6')
    b0 = phys(0)
    A(f's_lshl_b32 {sXb}, {sI}, 17\ns_lshl_b32 {sXo}, {sRot}, 7\ns_add_u32 {sXo}, {sXo}, {sXb}')
    A(f's_lshl_b32 {sX[2]}, 1, 21\ns_lshl_b32 {sX[3]}, 1, 17\ns_lshl_b32 {sLb}, {sLb}, 4')
    if fx:
        A(f's_lshr_b32 s5, s2, 7\ns_lshl_b32 s7, s5, 15\nv_xor_b32 {vx0}, s7, {vx0}\ns_lshl_b32 s5, s5, 12\ns_xor_b32 {sLx}, {sLb}, s5')
    else: sLx = sLb
    A(f'v_add_u32 {vx1}, 0x10000, {vx0}\ns_add_u32 m0, {sLx}, {b0}')
    A(f'v_lshlrev_b32 {v_l16}, 4, v0\nv_and_b32 v9, 0xfffffe00, {v_l16}\nv_add_u32 v9, v9, {v_l16}\ns_lshl_b32 {sE[0]}, {sJJ}, 13\ns_add_u32 {sE[0]}, {sE[0]}, {sXb}')
    A(f's_cmp_ge_u32 {sLb}, 4096')
    if not OPT['warm']: stampg(A, 1)
    A('s_waitcnt lgkmcnt(0)')
    stampg(A, 2)
    A('s_cbranch_scc1 K_norow')
    A(f's_load_dword {sTag}, {sWS[0:2]}, {EPOCH}')
    A(f'buffer_load_dwordx4 {xrow[0:4]}, v9, {sX}, {sE[0]} offen\nbuffer_load_dwordx4 {xrow[4:8]}, v9, {sX}, {sE[0]} offen offset:512')
    A('K_norow:')
    A(f'buffer_load_dwordx4 {vx0}, {sX}, {sXo} offen lds')
    A(f's_add_u32 m0, {sLx}, {b0+8192}\ns_lshr_b32 {sJ}, {sJJ}, 1\nbuffer_load_dwordx4 {vx1}, {sX}, {sXo} offen lds')
    A(f'v_bfi_b32 {k}, 2, {rho}, {t}\nv_and_b32 {k}, 6, {k}\nv_xor_b32 {k}, {k}, v0\nv_and_b32 {k}, 7, {k}\nv_lshlrev_b32 {k}, 4, {k}')
    if fw: A(f's_and_b32 s5, s2, 32\nv_xor_b32 {rho}, s5, {rho}\ns_lshl_b32 s5, s5, 7\ns_xor_b32 {sLw}, {sLb}, s5')
    else: sLw = sLb
    A(f'v_mad_u32_u24 {vw}, {rho}, {sLrow}, {k}')
    A(f's_mul_i32 {sWb}, {sWb}, {sJ}\ns_add_u32 {sWb}, {sWb}, 64\ns_and_b32 {sWb}, {sWb}, 0xffffff80')
    A(f's_lshl_b32 {sW[2]}, {sLrow}, 9\ns_mov_b32 {sW[3]}, {sX[3]}\ns_lshl_b32 {sT0}, {sRot}, 6\ns_mul_i32 {sT0}, {sT0}, {sLrow}\ns_add_u32 {sWo}, {sT0}, {sWb}')
    A(f's_add_u32 m0, {sLw}, {b0+16384}\ns_cmp_eq_u32 s3, 0\nbuffer_load_dwordx4 {vw}, {sW}, {sWo} offen lds')
    A(f's_cselect_b32 {sE[2]}, 10, 7\ns_lshl_b32 {sE[2]}, 1, {sE[2]}\ns_add_u32 {sE[3]}, {sWo}, {sE[2]}')
    A(f's_add_u32 m0, {sLw}, {b0+24576}\ns_add_u32 {sE[2]}, {sE[3]}, {sE[2]}\nbuffer_load_dwordx4 {vw}, {sW}, {sE[3]} offen lds')
    A(f's_add_u32 m0, {sLw}, {b0+32768}\ns_lshr_b32 {sWV}, {sLb}, 10\nbuffer_load_dwordx4 {vw}, {sW}, {sE[2]} offen lds')
    A(f'v_and_b32 v1, 63, v0\nv_lshlrev_b32 {v_l16}, 4, v1')
    if OPT['stamp']:
        for i in range(3 if OPT['stamp'] == 7 else 1, NS): A(f's_mov_b64 s[{72+2*i}:{73+2*i}], 0')
    A(f's_lshl_b32 {sWS[2]}, 1, 24\ns_mov_b32 {sWS[3]}, {sX[3]}')
    A(f's_and_b32 {sWQ}, {sWV}, 3\ns_lshr_b32 s4, {sWV}, 2\ns_add_u32 s3, s3, s4')
    stampg(A, 3)
    A('s_cmp_eq_u32 s3, 1\ns_cbranch_scc1 K_LA\ns_cmp_eq_u32 s3, 0\ns_cbranch_scc1 K_CA\ns_cmp_eq_u32 s3, 2\ns_cbranch_scc1 K_CF')
    Bs = []
    for typ in 'FA':
        A(f'K_L{typ}:')
        Bs.append(LW(A, typ).run())
        p2_L(A, Bs[-1], typ); A('s_branch K_end')
    A('K_CF:')
    c = CW(A, 'F'); c.prologue(); c.main(); c.epi_F()
    A('s_branch K_C2')
    A('K_CA:')
    c = CW(A, 'A'); c.prologue(); c.main(); c.epi_A()
    A('K_C2:')
    p2_C(A)
    A('K_end:')
    stamp_out(A)
    A('K_done:\ns_endpgm')

def add_stubs(body):
    dummy = [f'WS_{t}{c}:' for t in 'FA' for c in range(4)]
    S = sizes_of(body + dummy)
    reg = None; off = 0x300; n = 0; page = 0
    marks = []; nb = {}
    for k, l in enumerate(body):
        if l.endswith(':'):
            if l[:-1] in ('K_LF', 'K_LA', 'K_CF', 'K_CA', 'K_C2', 'K_end'):
                reg = l[2:-1] if l != 'K_end:' else None
                if reg == 'C2': marks.append((k + 1, reg)); off += 8
                if reg == 'LA' and OPT['ia']:
                    body[k] = '.p2align 12\n' + l; off = (off + 4095) & ~4095; page = off >> 10
            continue
        if l.startswith('.'): continue
        if l == 's_barrier': nb[reg] = nb.get(reg, 0) + 1
        fine = reg and ((OPT['stub'] >= 2 and reg in ('CF', 'CA') and 1 <= nb.get(reg, 0) < OPT['stbe']) or (OPT['stub'] >= 3 and reg[0] == 'L' and 1 <= nb.get(reg, 0) < 9))
        if off >> 10 != page:
            pg = off >> 12 != page >> 2
            page = off >> 10
            if reg and (pg or fine): marks.append((k, reg)); off += 8
        off += S[n]; n += 1
    lst = {r: [k for k, rr in marks if rr == r] for r in ('LF', 'LA', 'CF', 'CA', 'C2')}
    print('stubs', {r: len(v) for r, v in lst.items()})
    ins = {}
    for k in lst['C2']: ins[k] = [f'WS_{k}:', 's_cbranch_execz K_wret', 's_nop 0']
    for t in 'FA':
        own = lst['C' + t] + lst['L' + t]
        ch = [own[c::4] for c in range(4)]
        for i, k in enumerate(lst['C2']): ch[3 - i].append(k)
        for c in range(4):
            for i, k in enumerate(ch[c]):
                if k not in ins: ins[k] = [f'WS_{k}:', f's_cbranch_execz ' + (f'WS_{ch[c][i+1]}' if i + 1 < len(ch[c]) else f'WR_{t}'), 's_nop 0']
            ins[ch[c][0]].insert(0, f'WS_{t}{c}:')
    out = []
    for k, l in enumerate(body):
        out += ins.get(k, []); out.append(l)
    return out
def build():
    A = Asm(); kernel(A)
    body = fix_hazards(A.L, verbose=True)
    dummy = [f'WS_{t}{c}:' for t in 'FA' for c in range(4)] if OPT['stub'] else []
    if OPT['al']: body = align8(body + dummy, verbose=True)
    if OPT['stub']: body = add_stubs(body[:-8])
    K = NAME + '_kernel'
    hdr = ['; @launch grid=(256,1,1) block=(512,1,1) lds=163840', '.amdgcn_target "amdgcn-amd-amdhsa--gfx950"', '.text']
    tail = ['.section .rodata,"a"', '.p2align 6', f'''.amdhsa_kernel {K}
  .amdhsa_next_free_vgpr 256
  .amdhsa_next_free_sgpr 102
  .amdhsa_accum_offset 256
  .amdhsa_group_segment_fixed_size 0
  .amdhsa_kernarg_size 80
  .amdhsa_user_sgpr_count 2
  .amdhsa_user_sgpr_kernarg_segment_ptr 1
  .amdhsa_system_sgpr_workgroup_id_x 1
.end_amdhsa_kernel''']
    return '\n'.join(hdr + body + tail) + '\n'
if __name__ == '__main__':
    open(sys.argv[1], 'w').write(build())
```

```python
import sys, struct
from asmlib import *
NAME = 'recurrent_scan__linear_kernel_hedgehog__dense_activation_silu__prompt'
SZ_X, SZ_QKV, SZ_PHI, SZ_WO, SZ_W1, SZ_W2, SZ_OUT, SZ_WS = 2048*512*2, 512*1536*2, 32*16*16*2, 512*512*2, 512*1792*2, 1792*512*2, 2048*512*2, 0x1000000
EPOCH, STAT, KT, CSP, CNT, ACT, KP = 0, 0x8000, 0x10000, 0x40000, 0x80000, 0x100000, 0xB00000
OOB = 0x40000000
SB = 45056
def phys(s): return (2 - s % 3) * SB
X0, X1, WOB, Y0, Y1, TS, MISC = 0, 16384, 32768, 102400, 118784, 135168, 151552
L_NM, L_RL, L_R, L_CS, L_TAG = MISC, MISC+512, MISC+1024, MISC+1536, MISC+2560
L_SG, L_PHI = MISC+2624, MISC+4096
JUNK = MISC + 8192
LOG2E = 1.4426950408889634
def f2u(x): return struct.unpack('<I', struct.pack('<f', x))[0]
OPT = dict(stamp=0, touch=17, spin=1<<16, slp=2, hold=3, keep=8, nmA=0, nmF=0, n6A=2, n7A=2, n6F=2, n7F=2, sp0=6, wob=4, wobA=4, tlA=0, tlF=0, gat=5, chk=7, opoll=0, lprio=1, brot=1, npre=9, vmgap=64, dbg=0, hst=0, rot=4, lord=4, r2=0, j3=0, c3=99, flip=1, warm=0, qf=0, tk=0, pk=0, spm=3, stk=2, q6A=8, q7A=8, q6F=12, q7F=8, sp1=99, laA=11, laF=11, wdel=2, lag=3, wolA=0, wolF=2, wper=4, cprio=0, opk=1, depA=8, depF=8, al=1, ack1=0, ack2=0, slpa=0, slph=2, slpo=4, ost=1, hld=0, old=0, j3k=1, j3p=0, st='0000000', stl=0, stcp=0, sti=0, c3F=0, ph0=0, stub=1, stc=0, sc3=0, pa=12, ia=1, stbe=9, kva=1, lp2=2, xr=0, ph=2467, pa3=3, gs=55, ah=3, lpr=14, lpt=2, lpsA=8, lpsF=3, wo=0, snt=0, eo=1, la0=4, ns0=0, tm=1, wsp=3, npk=1, r3=7, ent=1, e1=5, sw=1, sk=6, tto=0, qa=2, qb=1, Rk=1, Dk=0, Ro=1, Do=0, Rh=1, Dh=0, psl=5)
for a in sys.argv[2:]:
    k, v = a.split('='); assert k in OPT, k; OPT[k] = v if k == 'st' else int(v)

sX, sW, sWS, sPHI, sW2, sOUT, sWO = [R('s', 8+4*i, 4) for i in range(7)]
(sI, sJ, sWV, sWQ, sRot, sT0, sT1, sXo, sWo, sHo, sXb, sWb, sHb, sLb, sTag, sSpin,
 sI2, sJ2, sCur, sCurA, sBb, sAb, sLb2, sJJ, sLrow, sTB1, sTB2, sTB3) = [R('s', 36+i, 1) for i in range(28)]
sTB = [sTag, sTB1, sTB2, sTB3]
sM2 = R('s', 64, 2)
sE = [R('s', 66+i, 1) for i in range(6)]
NS = 12
sSel = [R('s', 96, 1), R('s', 97, 1)]; sF = [R('s', 98+i, 1) for i in range(4)]
lane = R('v', 1, 1)
v_l16 = R('v', 3, 1)
vx0, vx1, vw = R('v', 10, 1), R('v', 11, 1), R('v', 12, 1)
xrow = R('v', 240, 8)

class Ctx:
    def __init__(self, A): self.A = A; self.n = 0
    def vm(self, s):
        self.A(s); self.n += 1; return self.n
    def wait(self, tok, extra=''):
        k = min(self.n - tok, 63); assert k >= 0
        self.A(f's_waitcnt vmcnt({k}) {extra}'.strip())
class LG:
    def __init__(self, A): self.A = A; self.n = 0; self.done = 0
    def ds(self, s):
        self.A(s); self.n += 1; return self.n
    def need(self, tok, keep=None):
        if tok <= self.done: return
        k = min(self.n - tok, OPT['keep'] if keep is None else keep, 15)
        self.A(f's_waitcnt lgkmcnt({k})'); self.done = self.n - k
    def all(self):
        self.A('s_waitcnt lgkmcnt(0)'); self.done = self.n
def stamp(A, i):
    if OPT['stamp'] == 9:
        A(f's_memrealtime s[{72+2*i}:{73+2*i}]'); return
    if OPT['stamp'] == 3: A(f's_memtime s[{72+2*i}:{73+2*i}]')
    elif OPT['stamp'] == 1 or (OPT['stamp'] and i == NS-1): A(f's_memrealtime s[{72+2*i}:{73+2*i}]')
def stampb(A, i):
    if OPT['stamp'] == 4: A(f's_memtime s[{72+2*i}:{73+2*i}]')
def stampe(A, i):
    if OPT['stamp'] == 5 and i < 11: A(f's_memtime s[{72+2*i}:{73+2*i}]')
def stampf(A, i):
    if OPT['stamp'] == 6 and i < 11: A(f's_memtime s[{72+2*i}:{73+2*i}]')
def stampg(A, i):
    if OPT['stamp'] == 7 and i < 11: A(f's_memtime s[{72+2*i}:{73+2*i}]')
def stamph(A, i):
    if OPT['stamp'] == 8 and i < 11: A(f's_memtime s[{72+2*i}:{73+2*i}]')
def stampc(A, i):
    if OPT['stamp'] == 2: A(f's_memtime s[{72+2*i}:{73+2*i}]')
def stamp_out(A):
    if not OPT['stamp']: return
    A(f's_waitcnt vmcnt(0)')
    stamp(A, NS-1)
    A('s_waitcnt lgkmcnt(0)')
    if OPT['stamp'] == 9:
        A('s_load_dwordx2 s[4:5], s[0:1], 64\ns_waitcnt lgkmcnt(0)')
        for i in range(NS): A(f's_atomic_umax s{72+2*i}, s[4:5], {4*i}')
        A('s_not_b32 s72, s72\ns_atomic_umax s72, s[4:5], 48\ns_waitcnt lgkmcnt(0)')
        return
    A(f's_lshl_b32 s4, s2, 3\ns_add_u32 s4, s4, {sWV}\ns_lshl_b32 s4, s4, 7\ns_add_u32 s4, s4, {15*1024*1024}')
    A(f'v_lshlrev_b32 v2, 26, v1')
    for i in range(NS):
        A(f'v_mov_b32 v4, s{72+2*i}\nv_mov_b32 v5, s{73+2*i}\nbuffer_store_dwordx2 v[4:5], v2, {sWS}, s4 offen offset:{8*i}')
    A(f's_getreg_b32 s5, hwreg(HW_REG_XCC_ID)\ns_getreg_b32 s6, hwreg(HW_REG_HW_ID)\nv_mov_b32 v4, s5\nv_mov_b32 v5, s6\nbuffer_store_dwordx2 v[4:5], v2, {sWS}, s4 offen offset:96')
def srd(A, s, off, size):
    A(f's_load_dwordx2 {s[0:2]}, s[0:1], {off}\ns_mov_b32 {s[2]}, {size}\ns_mov_b32 {s[3]}, 0x20000')
def dpp_add(v, m): return f'v_add_f32_dpp {v}, {v}, {v} {m} row_mask:0xf bank_mask:0xf'
def emit_sched(A, L, name='', **kw):
    out, t, nops = sched(L, **kw)
    if name: print(f'  sched {name}: {len(out)} instrs, est {t} clk, nops {nops}')
    for x in out: A(x)
def poll(A, ld, check, first_loaded=False, sleep=1, mask_exec=False):
    l0, l1, l2 = A.lab('PL'), A.lab('PC'), A.lab('PD')
    A(f's_mov_b32 {sSpin}, {OPT["spin"]}')
    if first_loaded: A(f's_branch {l1}')
    A(f'{l0}:'); A(ld); A('s_waitcnt vmcnt(0)')
    if mask_exec: A('s_mov_b64 exec, -1')
    A(f'{l1}:')
    check()
    A(f's_cbranch_scc0 {l2}')
    if sleep: A(f's_sleep {sleep}')
    if mask_exec: A('s_mov_b64 exec, s[4:5]')
    A(f's_sub_u32 {sSpin}, {sSpin}, 1\ns_cbranch_scc0 {l0}')
    if mask_exec: A('s_mov_b64 exec, -1')
    A(f'{l2}:')
def chk_words(A, regs, tmp):
    def f():
        if len(regs) == 1: A(f'v_cmp_ne_u32 vcc, {sTag}, {regs[0]}')
        else:
            np_ = len(regs)//2
            for i in range(np_): A(f'v_bitop3_b32 {tmp[i]}, {regs[2*i]}, {regs[2*i+1]}, {sTag} bitop3:0x7e')
            i = 1
            while i < np_:
                if i + 1 < np_: A(f'v_or3_b32 {tmp[0]}, {tmp[0]}, {tmp[i]}, {tmp[i+1]}'); i += 2
                else: A(f'v_or_b32 {tmp[0]}, {tmp[0]}, {tmp[i]}'); i += 1
            A(f'v_cmp_ne_u32 vcc, 0, {tmp[0]}')
        A(f's_and_b64 s[4:5], vcc, exec')
    return f
def spoll(A, so, n, sleep):
    l0, l1 = A.lab('SP'), A.lab('SD')
    A(f's_add_u32 {sT1}, {sTag}, {n}\ns_mov_b32 {sSpin}, {OPT["spin"]}')
    A(f'{l0}:\ns_mov_b32 {sT0}, 0\ns_atomic_add {sT0}, {sWS[0:2]}, {so} glc\ns_waitcnt lgkmcnt(0)\ns_cmp_eq_u32 {sT0}, {sT1}\ns_cbranch_scc1 {l1}')
    if sleep: A(f's_sleep {sleep}')
    A(f's_sub_u32 {sSpin}, {sSpin}, 1\ns_cbranch_scc0 {l0}\n{l1}:')
def ppoll_pre(A, so, D, base, clear=True):
    if not D: return
    if clear:
        A('s_waitcnt lgkmcnt(0)')
        for d in range(D): A(f's_mov_b32 s{base+2*d}, {sTag}\ns_sub_u32 s{base+2*d+1}, {sTag}, 1')
def ppoll(A, so, n, D, base, sleep, pre=True):
    if not D: return spoll(A, so, n, sleep)
    l0, l1 = A.lab('PP'), A.lab('PQ')
    ppoll_pre(A, so, D, base, pre)
    A(f's_add_u32 {sT1}, {sTag}, {n}\ns_mov_b32 {sSpin}, {OPT["spin"]}')
    at = lambda d: f's_atomic_cmpswap s[{base+2*d}:{base+2*d+1}], {sWS[0:2]}, {so} glc'
    for d in range(1, D): A(at(d) + f'\ns_sleep {2*OPT["psl"]//D}')
    A(f'{l0}:')
    for d in range(D):
        A(at(d) + f'\ns_waitcnt lgkmcnt({D-1})\ns_cmp_eq_u32 s{base + 2*((d+1) % D)}, {sT1}\ns_cbranch_scc1 {l1}')
    A(f's_sub_u32 {sSpin}, {sSpin}, 1\ns_cbranch_scc0 {l0}\n{l1}:')
def sarrive(A, *sos):
    A(f's_waitcnt vmcnt(0)')
    for so in sos: A(f's_atomic_add {sLrow}, {sWS[0:2]}, {so}')
def cnt_i2(A, d, i2, extra):
    A(f's_lshr_b32 {d}, {i2}, 1\ns_lshl_b32 {d}, {d}, 14\ns_and_b32 s4, {i2}, 1\ns_lshl_b32 s4, s4, 11\ns_add_u32 {d}, {d}, s4\ns_add_u32 {d}, {d}, {CNT + extra}')
def quad_diff(A, q, d, t):
    A(f'v_perm_b32 {d}, {q[1]}, {q[0]}, {sSel[0]}\nv_perm_b32 {t}, {q[3]}, {q[2]}, {sSel[1]}\nv_bitop3_b32 {d}, {d}, {t}, {sTag} bitop3:0x96')
def tag_consts(A):
    A(f's_lshr_b32 {sTB1}, {sTag}, 8\ns_lshr_b32 {sTB2}, {sTag}, 16\ns_lshr_b32 {sTB3}, {sTag}, 24')
    A(f's_mov_b32 {sSel[0]}, 0x0c0c0400\ns_mov_b32 {sSel[1]}, 0x04000c0c')
def tag_quad(q, ff): return [f'v_bfi_b32 {q[k]}, {ff}, {sTB[k]}, {q[k]}' for k in range(4)]
def lds_spin(A, va, off, n, vt):
    l0, l1 = A.lab('LS'), A.lab('LD')
    A(f's_mov_b32 {sSpin}, {OPT["spin"]*4}')
    A(f'{l0}:\nds_read_b32 {vt}, {va} offset:{off}\ns_waitcnt lgkmcnt(0)\nv_readfirstlane_b32 {sT0}, {vt}\ns_cmp_ge_u32 {sT0}, {n}\ns_cbranch_scc1 {l1}')
    A(f's_sleep 1\ns_sub_u32 {sSpin}, {sSpin}, 1\ns_cbranch_scc0 {l0}\n{l1}:')
def lds_inc(A, va, off, vt):
    A(f'v_mov_b32 {vt}, 1\ns_mov_b64 exec, 1\nds_add_u32 {va}, {vt} offset:{off}\ns_mov_b64 exec, -1')
def p2_ids(A):
    A(f's_and_b32 s4, s2, 7\ns_lshr_b32 s5, s2, 3')
    if OPT['sw']:
        A(f's_and_b32 s6, s5, 15\ns_lshr_b32 s6, 0x880, s6\ns_and_b32 s6, s6, 1\ns_mul_i32 s6, s6, 12\ns_xor_b32 s5, s5, s6')
    A(f's_lshl_b32 s4, s4, 2\ns_lshr_b32 s6, s5, 3\ns_add_u32 {sI2}, s4, s6\ns_and_b32 {sJ2}, s5, 7')
def tr_addr(A, vab, base, t0, t1):
    l = lane
    A(f'v_lshrrev_b32 {t0}, 2, {l}\nv_lshlrev_b32 {t0}, 7, {t0}\nv_and_b32 {t1}, 3, {l}\nv_lshl_add_u32 {t0}, {t1}, 3, {t0}\nv_add_u32 {t0}, {base}, {t0}')
    A(f'v_bfe_u32 {t1}, {l}, 3, 2')
    for q in range(4):
        A(f'v_xor_b32 {vab[q]}, {q}, {t1}\nv_lshl_add_u32 {vab[q]}, {vab[q]}, 5, {t0}')

def stouch(A, lo, hi, junk='s3'):
    if lo < min(hi, 36): A(f's_lshl2_add_u32 s6, s2, {sWQ}\ns_lshl_b32 s7, s6, 9\ns_mul_i32 s6, s6, 1792')
    for i in range(lo, min(hi, 72 if OPT['sc3'] else 36)):
        if i == max(lo, 36): A(f's_lshr_b32 s6, s2, 3\ns_lshl2_add_u32 s6, s6, {sWQ}\ns_lshl_b32 s7, s6, 12\ns_mul_i32 s6, s6, {14*1024}')
        if i < 28: A(f's_load_dword {junk}, {sW2[0:2]}, s6 offset:{64*i}')
        elif i < 36: A(f's_load_dword {junk}, {sWO[0:2]}, s7 offset:{64*(i-28)}')
        elif i < 64: A(f's_load_dword {junk}, {sW2[0:2]}, s6 offset:{(i-36)//2*1024 + 384 + 64*(i & 1)}')
        else: A(f's_load_dword {junk}, {sWO[0:2]}, s7 offset:{(i-64)//2*1024 + 384 + 64*(i & 1)}')
class CW:
    def __init__(self, A, typ):
        self.A = A; self.typ = typ
        self.C = Ctx(A); self.G = LG(A)
        self.V = Pool('v', 4, 256); self.V.at(9, 4); self.V.at(240, 16)
    def prologue(self):
        A, V, C, l, typ = self.A, self.V, self.C, lane, self.typ
        C.n = 7; tk_row = 2; self.tk0 = 7
        F = typ == 'F'
        srd(A, sOUT, 56, SZ_OUT)
        if OPT['stc']: A(f's_load_dwordx2 {sW2[0:2]}, s[0:1], 48')
        if not F: self.aphi = V.alloc(4, 4)
        self.ax = [V.alloc(), V.alloc()]
        self.aw = [V.alloc() for _ in range(6 if F else 1)]
        t, g, t0, t1, f = [R('v', 232+i, 1) for i in range(5)]
        b0 = phys(0)
        A(f'v_and_b32 {t}, 15, {l}\nv_lshrrev_b32 {g}, 4, {l}')
        A(f'v_lshrrev_b32 {t0}, 1, {t}\nv_xor_b32 {t0}, {t0}, {g}\nv_lshlrev_b32 {t0}, 4, {t0}\nv_lshl_add_u32 {t0}, {t}, 7, {t0}')
        if F: A(f's_lshl_b32 {sT0}, {sWQ}, 12\nv_add_u32 {t0}, {sT0}, {t0}')
        A(f'v_add_u32 {self.ax[0]}, {b0}, {t0}\nv_xor_b32 {t0}, 64, {t0}\nv_add_u32 {self.ax[1]}, {b0}, {t0}')
        A(f'v_lshrrev_b32 {f}, 3, {t}\nv_and_b32 {t0}, 1, {g}\nv_lshl_or_b32 {f}, {t0}, 1, {f}')
        A(f'v_lshrrev_b32 {t0}, 2, {t}\nv_lshlrev_b32 {t0}, 7, {t0}\nv_lshl_add_u32 {t0}, {g}, 10, {t0}\nv_and_b32 {t1}, 3, {t}\nv_lshl_add_u32 {t0}, {t1}, 3, {t0}\nv_add_u32 {t0}, {b0+16384}, {t0}')
        if not F:
            A(f'v_xor_b32 {t1}, {sWQ}, {f}\nv_lshl_add_u32 {self.aw[0]}, {t1}, 5, {t0}')
        else:
            for q in range(4): A(f'v_xor_b32 {t1}, {q}, {f}\nv_lshl_add_u32 {self.aw[q]}, {t1}, 5, {t0}')
            A(f'v_lshrrev_b32 {t0}, 2, {t}\nv_lshlrev_b32 {t0}, 6, {t0}\nv_lshl_add_u32 {t0}, {g}, 9, {t0}\nv_and_b32 {t1}, 3, {t}\nv_lshl_add_u32 {t0}, {t1}, 3, {t0}\nv_add_u32 {t0}, {b0+16384}, {t0}')
            A(f'v_and_b32 {f}, 1, {g}')
            for q in range(2): A(f'v_xor_b32 {t1}, {q}, {f}\nv_lshl_add_u32 {self.aw[4+q]}, {t1}, 5, {t0}')
        A(f's_lshl_b32 {sT0}, {sI}, 4\ns_add_u32 {sT0}, {sT0}, {sJJ}\ns_lshl2_add_u32 {sT0}, {sT0}, {sWQ}\ns_lshl_b32 {sT0}, {sT0}, 8\ns_add_u32 {sT0}, {sT0}, {CNT}')
        stampg(A, 4)
        A('s_waitcnt lgkmcnt(0)')
        stampg(A, 5)
        A(f's_mul_i32 {sTag}, {sTag}, 0x9E3779B1\ns_add_u32 {sTag}, {sTag}, 0x7F4A7C15\ns_mov_b32 {sSpin}, {sTag}')
        A(f's_atomic_swap {sSpin}, {sWS[0:2]}, {sT0} glc')
        if OPT['Rh'] > 1 or len(PH) > 2: A(f's_mov_b32 {sCurA}, {sTag}\ns_atomic_swap {sCurA}, {sWS[0:2]}, {sT0} offset:128 glc')
        if OPT['stcp'] == 0: stouch(A, 0, OPT['stc'], sCur)
        p2_ids(A)
        if not F: self.consts_A()
        tag_consts(A)
        A(f's_mov_b32 {sLrow}, 1')
        V.release(R('v', 240, 16), R('v', 9, 4))
        self.tk_row = tk_row
    def stats(self):
        A, C, l, tk_row = self.A, self.C, lane, self.tk_row
        x = R('v', 216, 16); o = R('v', 248, 4); t = R('v', 252, 1); ad = R('v', 253, 1); u = R('v', 254, 1)
        A(f's_lshl_b32 {sT0}, {sWQ}, 4\ns_add_u32 {sT0}, {sT0}, {L_SG}\nv_lshrrev_b32 {ad}, 5, {l}\nv_lshl_add_u32 {ad}, {ad}, 3, {sT0}')
        z = R('v', 232, 4)
        A(f'v_mov_b32 {u}, {L_TAG}\nv_mov_b32 {z[0]}, {sTag}\nv_mov_b32 {z[1]}, 0\nv_mov_b32 {z[2]}, 0\nv_mov_b32 {z[3]}, 0\nds_write_b128 {u}, {z}')
        stampg(A, 6)
        if OPT['stcp'] == 1: stouch(A, 0, OPT['stc'], sCur)
        C.wait(tk_row)
        stampg(A, 7)
        for i in range(8): A(f'v_lshlrev_b32 {x[2*i]}, 16, {xrow[i]}\nv_and_b32 {x[2*i+1]}, 0xffff0000, {xrow[i]}')
        y = xrow
        for i in range(4): A(f'v_pk_add_f32 {y[2*i:2*i+2]}, {x[4*i:4*i+2]}, {x[4*i+2:4*i+4]}')
        A(f'v_pk_add_f32 {y[0:2]}, {y[0:2]}, {y[2:4]}\nv_pk_add_f32 {y[4:6]}, {y[4:6]}, {y[6:8]}\nv_pk_add_f32 {y[0:2]}, {y[0:2]}, {y[4:6]}\nv_add_f32 {o[0]}, {y[0]}, {y[1]}')
        def hsum(v):
            for m in ('quad_perm:[1,0,3,2]', 'quad_perm:[2,3,0,1]', 'row_half_mirror', 'row_mirror'): A(dpp_add(v, m))
            A(f'v_mov_b32 {t}, {v}\nv_permlane16_swap_b32 {v}, {t}\nv_add_f32 {v}, {v}, {t}')
        hsum(o[0])
        A(f'v_mul_f32 {o[0]}, {f2u(1/512):#x}, {o[0]}')
        for i in range(16): A(f'v_sub_f32 {x[i]}, {x[i]}, {o[0]}')
        A(f'v_pk_mul_f32 {y[0:2]}, {x[0:2]}, {x[0:2]}\nv_pk_mul_f32 {y[2:4]}, {x[2:4]}, {x[2:4]}')
        for i in range(2, 8): A(f'v_pk_fma_f32 {y[2*(i&1):2*(i&1)+2]}, {x[2*i:2*i+2]}, {x[2*i:2*i+2]}, {y[2*(i&1):2*(i&1)+2]}')
        A(f'v_pk_add_f32 {y[0:2]}, {y[0:2]}, {y[2:4]}\nv_add_f32 {o[2]}, {y[0]}, {y[1]}')
        hsum(o[2])
        A(f'v_mov_b32 {o[1]}, {f2u(1e-5):#x}\nv_fmac_f32 {o[1]}, {f2u(1/512):#x}, {o[2]}\nv_rsq_f32 {o[1]}, {o[1]}')
        stampg(A, 8)
        A(f'ds_write_b64 {ad}, {o[0:2]}')
    def consts_A(self):
        A, V, l = self.A, self.V, lane
        t0, t1, val, key = [R('v', 232+i, 1) for i in range(4)]
        self.sel16 = V.alloc(16, 4)
        self.bsel = [self.sel16[0:4], self.sel16[4:8]]; self.zsel = [self.sel16[8:12], self.sel16[12:16]]
        A(f'v_and_b32 {t1}, 1, {l}\nv_lshlrev_b32 {t1}, 4, {t1}\nv_mov_b32 {val}, 0x3f80\nv_lshlrev_b32 {val}, {t1}, {val}')
        A(f'v_bfe_u32 {key}, {l}, 1, 2\nv_bfe_u32 {t1}, {l}, 4, 1\nv_lshl_or_b32 {key}, {t1}, 2, {key}')
        A(f'v_lshrrev_b32 {t1}, 2, {l}\nv_xor_b32 {t1}, {t1}, {l}\nv_and_b32 {t1}, 8, {t1}\nv_or_b32 {key}, {key}, {t1}')
        for T in range(2):
            for rr in range(4):
                A(f'v_cmp_eq_u32 vcc, {rr + 4*T}, {key}\nv_cndmask_b32 {self.bsel[T][rr]}, 0, {val}, vcc')
        A(f'v_and_b32 {key}, 15, {l}\nv_mov_b32 {val}, 0x3f803f80')
        for m in range(2):
            A(f'v_cmp_eq_u32 vcc, {4*m if OPT["kva"] else m}, {key}\nv_cndmask_b32 {self.zsel[m][0]}, 0, {val}, vcc')
            for rr in range(1, 4): A(f'v_mov_b32 {self.zsel[m][rr]}, {self.zsel[m][0]}')
    def rd_w(self, dst, u, kk):
        b, q = self.units[u]
        return [f'ds_read_b64_tr_b16 {dst[2*hf:2*hf+2]}, {self.aw[q]} offset:{b*8192 + (kk*4096 + hf*512 if b < 3 else kk*2048 + hf*256)}' for hf in range(2)]
    def rd_x(self, dst, tt, kk): return [f'ds_read_b128 {dst}, {self.ax[kk]} offset:{tt*2048}']
    def main(self):
        A, V, C, G, typ = self.A, self.V, self.C, self.G, self.typ
        F = typ == 'F'
        if F:
            self.ntt = 2; self.units = [(b, q) for b in range(3) for q in range(4)] + [(3, 4), (3, 5)]
        else:
            self.ntt = 8; self.units = [(0, 0), (1, 0), (2, 0)]
        nu = len(self.units)
        self.acc = [[V.alloc(4, 4) for u in range(nu)] for tt in range(self.ntt)]
        nr, nd = (nu, self.ntt) if F else (self.ntt, nu)
        self.Rg = [V.alloc(4, 4) for _ in range(nr)]
        self.Dg = [V.alloc(4*nd, 4) for _ in range(2)]
        rdR, rdD = (self.rd_w, self.rd_x) if F else (self.rd_x, self.rd_w)
        last_R, last_pre, fill = self.pre_epi()
        self.stats()
        if OPT['stub']:
            A('s_mov_b64 exec, 0')
            for c in range(3): A(f's_cmp_eq_u32 {sWQ}, {c}\ns_cbranch_scc1 WS_{typ}{c}')
            A(f's_branch WS_{typ}3')
            if not F: A(f'K_wret:\ns_cmp_lg_u32 s3, 0\ns_cbranch_scc1 WR_F')
            A(f'WR_{typ}:\ns_mov_b64 exec, -1')
        if OPT['stcp'] == 2: stouch(A, 0, OPT['stc'], sCur)
        stamp(A, 1); stampg(A, 9)
        C.wait(self.tk0, 'lgkmcnt(0)'); stampg(A, 10); A('s_barrier')
        stampb(A, 1)
        stamp(A, 2)
        tokR = {}; tokD = {}
        Q = []
        def issue(k):
            for _ in range(k):
                if not Q: return
                s, key = Q.pop(0); tk = G.ds(s)
                if key: (tokR if key[0] == 'R' else tokD)[key[1:]] = tk
        def kq(L, key): return [(s, key if i == len(L)-1 else None) for i, s in enumerate(L)]
        for d in range(nd): Q += kq(rdD(self.Dg[0][4*d:4*d+4], d, 0), ('D', 0, d))
        for j in range(nr): Q += kq(rdR(self.Rg[j], j, 0), ('R', 0, j))
        issue(12)
        for n in range(16):
            st, kk = n >> 1, n & 1
            pend = []
            blocked = kk == 1
            nD = []
            if n < 15:
                for d in range(nd): nD += kq(rdD(self.Dg[(n+1) & 1][4*d:4*d+4], d, kk ^ 1), ('D', n+1, d))
            else: nD = [(s, None) for s in last_pre]
            if blocked: pend += nD
            else: Q += nD
            adds = []
            if kk == 1 and st < 7:
                dlt = phys(st+1) - phys(st)
                adds = [f'v_add_u32 {r}, {dlt & 0xffffffff:#x}, {r}' for r in self.ax + self.aw]
            if n == 15: adds = list(self.pre_v)
            fl = list(fill.get(n, []))
            if n == 6: stampc(A, 1)
            if n == 8: stampc(A, 8)
            for j in range(nr):
                if blocked and j == OPT['hold']:
                    assert not Q
                    for a in adds: A(a)
                    adds = []
                    if n == 7: stampc(A, 2)
                    G.all()
                    if n == 7: stampc(A, 3)
                    A('s_barrier')
                    if n == 7: stampc(A, 4)
                    if n == 7: stamp(A, 3)
                    stampb(A, 2 + st)
                    blocked = False; Q += pend; pend = []
                for d in range(nd):
                    tt, u = (d, j) if F else (j, d)
                    G.need(max(tokR[(n, j)], tokD[(n, d)]))
                    w, x = (self.Rg[j], self.Dg[n & 1][4*d:4*d+4]) if F else (self.Dg[n & 1][4*d:4*d+4], self.Rg[j])
                    a, b = (x, w) if (not F and u == 2) else (w, x)
                    acc = self.acc[tt][u]
                    A(f'v_mfma_f32_16x16x32_bf16 {acc}, {a}, {b}, {acc if n else 0}')
                    if Q: issue(2 if len(Q) > 3 else 1)
                    elif adds:
                        A(adds.pop(0))
                        if adds: A(adds.pop(0))
                    elif fl: A(fl.pop(0))
                nw = kq(rdR(self.Rg[j], j, kk ^ 1), ('R', n+1, j)) if n < 15 else [(s, None) for s in last_R[j]]
                if blocked: pend += nw
                else: Q += nw
            for x in fl: A(x)
        issue(100)
        stampb(A, 10)
        stamp(A, 5)
        V.release(*self.ax); V.release(*self.aw)
    def pre_epi(self):
        A, V, l = self.A, self.V, lane
        if self.typ == 'F':
            at, ag = V.alloc(), V.alloc()
            A(f's_lshl_b32 {sT0}, {sWQ}, 7\ns_add_u32 {sT0}, {sT0}, {L_NM}\nv_and_b32 {at}, 15, {l}\nv_lshl_add_u32 {at}, {at}, 2, {sT0}')
            A(f'v_and_b32 {ag}, 48, {l}\nv_add_u32 {ag}, {L_CS}, {ag}')
            self.ms = [V.alloc(2) for _ in range(2)]; self.nr = [V.alloc(2) for _ in range(2)]
            pre = []
            for tt in range(2):
                pre += [f'ds_read2_b32 {self.ms[tt]}, {at} offset0:{16*tt} offset1:{16*tt}', f'ds_read2_b32 {self.nr[tt]}, {at} offset0:{128+16*tt} offset1:{128+16*tt}']
            lastR = [[f'ds_read_b128 {self.Rg[u]}, {ag} offset:{64*u}'] for u in range(14)]
            self.kL = V.alloc(2)
            A(f'v_mov_b32 {self.kL[0]}, {f2u(-LOG2E):#x}\nv_mov_b32 {self.kL[1]}, {self.kL[0]}')
            A(f's_lshl_b32 {sT0}, {sI}, 1\ns_lshr_b32 {sT1}, {sWQ}, 1\ns_add_u32 {sT0}, {sT0}, {sT1}')
            cnt_i2(A, sF[2], sT0, 1024)
            A(f's_lshr_b32 {sT1}, {sJ}, 1\ns_lshl_b32 {sT1}, {sT1}, 8\ns_add_u32 {sF[2]}, {sF[2]}, {sT1}')
            A(f's_mul_i32 {sT0}, {sT0}, 72\ns_mul_i32 {sT1}, {sJ}, 7\ns_add_u32 {sT0}, {sT0}, {sT1}\ns_lshl_b32 {sT0}, {sT0}, 12')
            A(f's_and_b32 {sT1}, {sWQ}, 1\ns_lshl_b32 {sF[0]}, {sT1}, 11\ns_add_u32 {sT0}, {sT0}, {sF[0]}\ns_add_u32 {sT0}, {sT0}, {ACT}')
            A(f's_and_b32 {sT1}, {sJ}, 1')
            A(f's_lshl_b32 {sF[0]}, {sT1}, 12\ns_add_u32 {sF[0]}, {sF[0]}, {sT0}')
            A(f's_xor_b32 {sT1}, {sT1}, 1\ns_mul_i32 {sT1}, {sT1}, {6*4096}\ns_add_u32 {sF[1]}, {sT0}, {sT1}')
            self.pre_v = []
            return lastR, pre, {}
        self.MR = [V.alloc(16, 4) for _ in range(4)]
        self.cv = V.alloc(2)
        R_ = self.Rg
        self.negm = [R_[T//2][2*(T & 1):2*(T & 1)+2] for T in range(8)]
        self.rl = [R_[4 + p//2][2*(p & 1):2*(p & 1)+2] for p in range(4)]
        self.ck, self.cq = R_[6], R_[7]
        D0 = self.Dg[0]
        a4, ag, a32, ac = D0[0], D0[1], D0[2], D0[3]
        pre_v = [f'v_and_b32 {a4}, 15, {l}', f'v_lshlrev_b32 {a4}, 2, {a4}', f'v_and_b32 {ag}, 48, {l}', f'v_and_b32 {a32}, 31, {l}',
                 f'v_add_u32 {ac}, {sF[3]}, {a4}', f'v_add_u32 {a4}, {L_NM}, {a4}', f'v_lshlrev_b32 {a32}, 2, {a32}', f'v_add_u32 {a32}, {L_RL}, {a32}',
                 f'v_add_u32 {D0[4]}, {sF[3]}, {ag}', f'v_add_u32 {ag}, {L_NM}, {ag}']
        A(f's_lshl_b32 {sF[3]}, {sWQ}, 6\ns_add_u32 {sF[3]}, {sF[3]}, {L_CS}')
        pre = [f'ds_read2_b32 {self.cv}, {ac} offset0:128 offset1:128']
        for p in range(4):
            for T in range(2):
                pre += [f'ds_read_b128 {self.MR[p][8*T:8*T+4]}, {ag} offset:{64*(2*p+T)}', f'ds_read_b128 {self.MR[p][8*T+4:8*T+8]}, {ag} offset:{1024+64*(2*p+T)}']
        lastR = [[f'ds_read2_b32 {self.negm[T]}, {a4} offset0:{16*T} offset1:{16*T}' for T in (2*j, 2*j+1)] for j in range(4)]
        lastR += [[f'ds_read2_b32 {self.rl[p]}, {a32} offset0:{32*p} offset1:{32*p}' for p in (2*j, 2*j+1)] for j in range(2)]
        lastR += [[f'ds_read_b128 {self.ck}, {D0[4]} offset:256'], [f'ds_read_b128 {self.cq}, {D0[4]}']]
        pre_v.append(f'v_add_u32 {D0[5]}, {sHo}, {v_l16}')
        A(f's_lshl_b32 {sHo}, {sWQ}, 10\ns_add_u32 {sHo}, {sHo}, {L_PHI}')
        pre.append(f'ds_read_b128 {self.aphi}, {D0[5]}')
        self.pre_v = pre_v
        e0, e1, e2, e3 = sE[0:4]
        A(f's_lshl_b32 {e2}, {sJ}, 2\ns_add_u32 {e2}, {e2}, {sWQ}\ns_mul_i32 {e3}, {e2}, {16*2176}\ns_add_u32 {e3}, {e3}, {KP}')
        A(f's_mul_i32 {e0}, {sI}, 2176\ns_add_u32 {e0}, {e0}, {e3}')
        A(f's_lshl2_add_u32 {sXb}, {sJJ}, {sWQ}\ns_lshl_b32 {sXb}, {sXb}, 8\ns_add_u32 {sXb}, {sXb}, {CNT}\ns_add_u32 {sWb}, {sXb}, {4*16384}')
        A(f's_and_b32 {sXo}, {sI}, {OPT["Rk"]-1}\ns_lshl_b32 {sXo}, {sXo}, 14\ns_add_u32 {sWo}, {sXo}, {sWb}\ns_add_u32 {sXo}, {sXo}, {sXb}')
        A(f's_lshl_b32 {sT0}, {sI}, 6\ns_add_u32 {e1}, {e3}, {sT0}')
        A(f's_mul_i32 {e2}, {e2}, 2176\ns_add_u32 {e2}, {e2}, {KT}\ns_add_u32 {e3}, {e2}, {sT0}')
        A(f's_cmp_eq_u32 {sI}, 0\ns_cselect_b32 {sE[4]}, {e1}, {OOB}\ns_cselect_b32 {sE[5]}, {e3}, {OOB}\ns_cselect_b64 {sM2}, -1, 0')
        A(f's_mul_i32 {sF[0]}, {sI}, {2*72*4096}\ns_lshl_b32 {sT0}, {sJ}, 11\ns_add_u32 {sF[0]}, {sF[0]}, {sT0}\ns_lshl_b32 {sT0}, {sWQ}, 9\ns_add_u32 {sF[0]}, {sF[0]}, {sT0}\ns_add_u32 {sF[0]}, {sF[0]}, {ACT + 56*4096}')
        A(f's_lshl_b32 {sF[1]}, {sI}, 14\ns_add_u32 {sF[1]}, {sF[1]}, {CNT + 5120}\ns_add_u32 {sHb}, {sF[1]}, 2048')
        A(f's_or_b32 {sT0}, {sWQ}, {sJ}\ns_or_b32 {sT0}, {sT0}, {sI}\ns_cselect_b32 {sF[2]}, {OOB}, {EPOCH}')
        return lastR, pre, {}
    def epi_F(self):
        A, V, C = self.A, self.V, self.C
        cc = self.Rg
        NT = 3
        tmp = [V.alloc(8, 4) for _ in range(NT)]; outp = [V.alloc(4, 4) for _ in range(NT)]
        for pr in range(1, 6): A(f's_add_u32 {sE[pr]}, {sF[0]}, {pr*4096}')
        so = [sF[0]] + sE[1:6] + [sF[1]]
        self.G.all()
        L = []; k = 0
        for pr in range(7):
            for tt in range(2):
                p = tmp[k % NT]; o = outp[k % NT]; k += 1
                src = [self.acc[tt][2*pr][0:2], self.acc[tt][2*pr][2:4], self.acc[tt][2*pr+1][0:2], self.acc[tt][2*pr+1][2:4]]
                cs = [cc[2*pr][0:2], cc[2*pr][2:4], cc[2*pr+1][0:2], cc[2*pr+1][2:4]]
                for i in range(4): L.append(f'v_pk_fma_f32 {src[i]}, {cs[i]}, {self.ms[tt]}, {src[i]}')
                for i in range(4): L.append(f'v_pk_mul_f32 {src[i]}, {src[i]}, {self.nr[tt]}')
                for i in range(8): L.append(f'v_exp_f32 {p[i]}, {src[i//2][i&1]}')
                for i in range(4): L.append(f'v_pk_fma_f32 {p[2*i:2*i+2]}, {p[2*i:2*i+2]}, {self.kL}, {self.kL}')
                for i in range(8): L.append(f'v_rcp_f32 {p[i]}, {p[i]}')
                for i in range(4): L.append(f'v_pk_mul_f32 {p[2*i:2*i+2]}, {src[i]}, {p[2*i:2*i+2]}')
                for i in range(4): L.append(f'v_cvt_pk_bf16_f32 {o[i]}, {p[2*i]}, {p[2*i+1]}')
                L.append(f'buffer_store_dwordx4 {o}, {v_l16}, {sWS}, {so[pr]} offen offset:{tt*1024} ' + ['sc1', '', 'sc1 nt', 'sc0 sc1', 'nt'][OPT['hst']])
        if OPT['dbg'] & 8: L = [x for x in L if not x.startswith('buffer')]
        stampe(A, 1); ns = 0
        for x in L:
            A(x)
            if x.startswith('buffer'):
                ns += 1
                if ns % 2 == 0: stampe(A, 1 + ns//2)
                for p, e in enumerate(PH):
                    if ns == 2*e + OPT['lag']: A(f's_waitcnt vmcnt({OPT["lag"]})\ns_atomic_add {sLrow}, {sWS[0:2]}, {sF[2]} offset:{PHO[p]}')
        C.n += 14
        stamp(A, 6)
        for p, e in enumerate(PH):
            if 2*e + OPT['lag'] > 14: A(f's_waitcnt vmcnt({14 - 2*e})\ns_atomic_add {sLrow}, {sWS[0:2]}, {sF[2]} offset:{PHO[p]}')
        stampe(A, 9)
        stamp(A, 7)
    def feat(self, a0, a1, cvec, negm, rl, P16, E):
        L = []; B4 = a0
        for T, a in enumerate((a0, a1)):
            for h in range(2): L.append(f'v_pk_fma_f32 {a[2*h:2*h+2]}, {cvec[2*h:2*h+2]}, {negm[T]}, {a[2*h:2*h+2]}')
        for T, a in enumerate((a0, a1)):
            for h in range(2): L.append(f'v_cvt_pk_bf16_f32 {B4[2*T+h]}, {a[2*h]}, {a[2*h+1]}')
        L += [f'v_permlane16_swap_b32 {B4[0]}, {B4[2]}', f'v_permlane16_swap_b32 {B4[1]}, {B4[3]}']
        L.append(f'v_mfma_f32_32x32x16_bf16 {P16}, {self.aphi}, {B4}, 0')
        mx = B4[0]; m2 = B4[1]
        L += [f'v_max3_f32 {mx}, {P16[0]}, {P16[1]}, {P16[2]}', f'v_max3_f32 {m2}, {P16[3]}, {P16[4]}, {P16[5]}',
              f'v_max3_f32 {mx}, {mx}, {P16[6]}, {P16[7]}', f'v_max3_f32 {m2}, {m2}, {P16[8]}, {P16[9]}',
              f'v_max3_f32 {mx}, {mx}, {P16[10]}, {P16[11]}', f'v_max3_f32 {m2}, {m2}, {P16[12]}, {P16[13]}',
              f'v_max3_f32 {mx}, {mx}, {P16[14]}, {P16[15]}', f'v_max_f32 {mx}, {mx}, {m2}',
              f'v_mul_f32_e64 {B4[2]}, -{mx}, {rl[0]}', f'v_mul_f32_e64 {B4[3]}, -{mx}, {rl[0]}']
        for i in range(8): L.append(f'v_pk_fma_f32 {P16[2*i:2*i+2]}, {P16[2*i:2*i+2]}, {rl}, {B4[2:4]}')
        for i in range(16): L.append(f'v_exp_f32 {P16[i]}, {P16[i]}')
        s0, s1 = B4[0:2], B4[2:4]
        L += [f'v_pk_add_f32 {s0}, {P16[0:2]}, {P16[2:4]}', f'v_pk_add_f32 {s1}, {P16[4:6]}, {P16[6:8]}']
        for i in range(4, 8): L.append(f'v_pk_add_f32 {(s0, s1)[i&1]}, {(s0, s1)[i&1]}, {P16[2*i:2*i+2]}')
        L += [f'v_pk_add_f32 {s0}, {s0}, {s1}', f'v_add_f32 {B4[0]}, {B4[0]}, {B4[1]}', f'v_rcp_f32 {B4[0]}, {B4[0]}', f'v_mov_b32 {B4[1]}, {B4[0]}']
        for i in range(8): L.append(f'v_pk_mul_f32 {P16[2*i:2*i+2]}, {P16[2*i:2*i+2]}, {B4[0:2]}')
        for i in range(8): L.append(f'v_cvt_pk_bf16_f32 {E(i)}, {P16[2*i]}, {P16[2*i+1]}')
        return L
    def epi_A(self):
        A, V, C, l = self.A, self.V, self.C, lane
        e0, e1, e2, e3 = sE[0:4]
        acc, MR, negm, rl, bsel, zsel = self.acc, self.MR, self.negm, self.rl, self.bsel, self.zsel
        D0, D1 = self.Dg
        if OPT['cprio']: A(f's_setprio {OPT["cprio"]}')
        self.G.all()
        kv = [D0[0:4], D0[4:8]]; zz = D0[8:12]
        KA = OPT['kva']; lrep = V.alloc()
        a0, a1, ff, t0, t1, ah, as_, ak, ad, l26, vtag, fa = [D1[i] for i in range(12)]
        L = []
        for p in range(4):
            P16 = MR[p]; VB = acc[2*p][2]; Eq = [acc[2*p+1][1], acc[2*p+1][2]]
            for T in range(2):
                a = acc[2*p+T][2]; M4 = P16[8*T:8*T+4]; R4 = P16[8*T+4:8*T+8]
                for h in range(2): L.append(f'v_pk_fma_f32 {a[2*h:2*h+2]}, {M4[2*h:2*h+2]}, {self.cv}, {a[2*h:2*h+2]}')
                for h in range(2): L.append(f'v_pk_mul_f32 {a[2*h:2*h+2]}, {a[2*h:2*h+2]}, {R4[2*h:2*h+2]}')
                for h in range(2): L.append(f'v_cvt_pk_bf16_f32 {VB[2*T+h]}, {a[2*h]}, {a[2*h+1]}')
            L += self.feat(acc[2*p][1], acc[2*p+1][1], self.ck, negm[2*p:2*p+2], rl[p], P16, lambda i: Eq[i//4][i % 4])
            for m in range(2):
                for T in range(2): L.append(f'v_mfma_f32_16x16x32_bf16 {P16[8*m+4*T:8*m+4*T+4]}, {Eq[m]}, {bsel[T]}, 0')
            for i in range(8): L.append(f'v_cvt_pk_bf16_f32 {Eq[i//4][i%4]}, {P16[2*i]}, {P16[2*i+1]}')
            if KA:
                for m in range(2): L.append(f'v_mfma_f32_16x16x32_bf16 {kv[m]}, {VB}, {Eq[m]}, {kv[m] if p else 0}')
                for m in range(2): L.append(f'v_mfma_f32_16x16x32_bf16 {zz}, {zsel[m]}, {Eq[m]}, {zz if (p or m) else 0}')
                continue
            for m in range(2): L.append(f'v_mfma_f32_16x16x32_bf16 {kv[m]}, {Eq[m]}, {VB}, {kv[m] if p else 0}')
            for m in range(2): L.append(f'v_mfma_f32_16x16x32_bf16 {zz}, {Eq[m]}, {zsel[m]}, {zz if (p or m) else 0}')
        if KA:
            L += [f'v_and_b32 {t0}, 15, {l}', f'v_lshrrev_b32 {t1}, 4, {l}', f'v_lshlrev_b32 {t0}, 2, {t0}', f'v_lshl_add_u32 {a0}, {t1}, 8, {t0}',
                  f'v_mul_u32_u24 {a1}, 1088, {t1}', f'v_add_u32 {a1}, {a1}, {t0}', f'v_lshrrev_b32 {t1}, 1, {t1}', f'v_lshl_add_u32 {a1}, {t1}, 27, {a1}']
            for m in range(2):
                for r in range(4): L.append(f'buffer_atomic_add_f32 {kv[m][r]}, {a0}, {sWS}, {e2} offen offset:{1088*m + 64*r} sc1')
            L.append(f'buffer_atomic_add_f32 {zz[0]}, {a1}, {sWS}, {e2} offen offset:1024 sc1')
            L += [f'v_lshlrev_b32 {l26}, 26, {l}', f'v_mov_b32 {vtag}, {sTag}']
        else:
            L += [f'v_and_b32 {t0}, 15, {l}', f'v_and_b32 {t1}, 48, {l}', f'v_lshl_add_u32 {a0}, {t0}, 6, {t1}', f'v_mov_b32 {ff}, 0xff',
                  f'v_mul_u32_u24 {a1}, 1088, {t0}', f'v_add_u32 {a1}, {a1}, {t1}', f'v_lshrrev_b32 {t0}, 1, {t0}', f'v_lshl_add_u32 {a1}, {t0}, 27, {a1}']
            for m in range(2):
                L += tag_quad(kv[m], ff) + [f'buffer_store_dwordx4 {kv[m]}, {a0}, {sWS}, {e0} offen offset:{1088*m} sc1']
            L += tag_quad(zz, ff) + [f'buffer_store_dwordx4 {zz}, {a1}, {sWS}, {e0} offen offset:1024 sc1']
            L += [f'v_lshlrev_b32 {l26}, 26, {l}', f'v_mov_b32 {vtag}, {sTag}', f'v_mov_b32 {fa}, 1', f'v_lshrrev_b32 {lrep}, {OPT["Rk"].bit_length()-1}, {l}', f'v_lshlrev_b32 {lrep}, 26, {lrep}', f'v_lshl_add_u32 {lrep}, {l}, 14, {lrep}']
            if not OPT['ack1']: L.append(f'buffer_atomic_add {fa}, {lrep}, {sWS}, {sXb} offen sc1')
        stampe(A, 1)
        emit_sched(A, L, 'kside'); C.n += 4
        stampe(A, 2)
        stamp(A, 6)
        h1 = [self.sel16[4*i:4*i+4] for i in range(4)]
        ld1 = [f'buffer_load_dwordx4 {h1[0]}, {ah}, {sWS}, {e1} offen sc1', f'buffer_load_dwordx4 {h1[1]}, {ah}, {sWS}, {e1} offen offset:1088 sc1',
               f'buffer_load_dwordx4 {h1[2]}, {ah}, {sWS}, {sE[4]} offen offset:1024 sc1', f'buffer_load_dwordx4 {h1[3]}, {ah}, {sWS}, {sE[4]} offen offset:2112 sc1']
        perm = [0, 1, 2, 3] if KA else [1, 0, 2, 3]
        eq = [[acc[2*p+1][0], acc[2*p][1]] for p in range(4)]
        def qside(ps):
            L = []
            for p in ps:
                L += self.feat(acc[2*p][0], acc[2*p+1][0], self.cq, negm[2*p:2*p+2], rl[p], MR[p], lambda i: eq[p][i//4][perm[i % 4]])
            return L
        adr = [f'v_lshrrev_b32 {ah}, 2, {l}', f'v_mul_u32_u24 {ah}, 2176, {ah}', f'v_and_b32 {t0}, 3, {l}', f'v_lshl_add_u32 {ah}, {t0}, 4, {ah}',
               f'v_lshrrev_b32 {as_}, 5, {l}', f'v_mul_u32_u24 {as_}, 1088, {as_}', f'v_lshl_add_u32 {as_}, {t0}, 4, {as_}', f'v_bfe_u32 {t0}, {l}, 4, 1', f'v_lshl_add_u32 {as_}, {t0}, 3, {as_}',
               f'v_and_b32 {t1}, 12, {l}', f'v_lshl_add_u32 {as_}, {t1}, 26, {as_}',
               f'v_and_b32 {ad}, 15, {l}', f'v_lshlrev_b32 {ad}, 4, {ad}', f'v_lshl_add_u32 {ad}, {t0}, 14, {ad}', f'v_lshrrev_b32 {t0}, 5, {l}', f'v_lshl_add_u32 {ad}, {t0}, 8, {ad}',
               f'v_and_b32 {ak}, 31, {l}', f'v_min_u32 {ak}, 16, {ak}', f'v_lshlrev_b32 {ak}, 6, {ak}', f'v_lshl_add_u32 {ak}, {t0}, 5, {ak}']
        if KA:
            qa, qb = OPT['qa'], OPT['qb']
            ldall = self.sel16
            emit_sched(A, qside(range(qa)) + [adr[7]] + adr[11:], 'qa')
            stampe(A, 3)
            sarrive(A, *[f'{sXb} offset:{16384*r}' for r in range(OPT['Rk'])])
            stampe(A, 4); stamp(A, 7)
            A(f's_add_u32 {e0}, {sF[0]}, 32768\ns_add_u32 {e1}, {sF[0]}, {72*4096}\ns_add_u32 {e3}, {e1}, 32768')
            if qb: emit_sched(A, qside(range(qa, qa+qb)), 'qb')
            stampe(A, 5)
            ppoll(A, sXo, 16, OPT['Dk'], 20, OPT['slpa'])
            stampe(A, 6); stamp(A, 8)
            for m in range(2):
                for h in range(2): A(f'buffer_load_dwordx4 {ldall[8*m+4*h:8*m+4*h+4]}, {ak}, {sWS}, {e2} offen offset:{1088*m+16*h} sc1')
            A(f'buffer_store_dword {vtag}, {l26}, {sWS}, {sF[2]} offen sc1')
            if qa + qb < 4: emit_sched(A, qside(range(qa+qb, 4)), 'qc')
            stampe(A, 7)
            A('s_waitcnt vmcnt(1)')
            stamp(A, 4)
            L = []
            for m in range(2):
                for i in range(4): L.append(f'v_cvt_pk_bf16_f32 {D0[4*m+i]}, {ldall[8*m+2*i]}, {ldall[8*m+2*i+1]}')
            kvA = [D0[0:4], D0[4:8]]
        else:
            if OPT['ack1']:
                emit_sched(A, qside([0]) + adr, 'q0')
                sarrive(A, sXb)
                emit_sched(A, qside([1]), 'q1')
            else: emit_sched(A, qside([0, 1]) + adr, 'q01')
            stampe(A, 3)
            ppoll(A, sXo, 16, OPT['Dk'], 20, OPT['slpa'])
            stamp(A, 7)
            stampe(A, 4)
            for x in ld1: A(x)
            emit_sched(A, qside([2]), 'q2')
            stampe(A, 5)
            A('s_waitcnt vmcnt(0)')
            tm = D0
            def chk1():
                for i in range(4): quad_diff(A, h1[i], tm[i], tm[4+i])
                A(f'v_or_b32 {tm[0]}, {tm[0]}, {tm[1]}\nv_or_b32 {tm[2]}, {tm[2]}, {tm[3]}\nv_cmp_ne_u32 vcc, 0, {tm[2]}\nv_cmp_ne_u32 s[4:5], 0, {tm[0]}')
                A(f's_and_b64 vcc, vcc, {sM2}\ns_or_b64 s[4:5], s[4:5], vcc')
            poll(A, '\n'.join(ld1), chk1, sleep=OPT['slp'], mask_exec=True, first_loaded=True)
            stampe(A, 6)
            L = []
            for x, y, so, off in ((h1[0], h1[1], e3, 0), (h1[2], h1[3], sE[5], 1024)):
                for k in range(4): L += [f'v_and_b32 {x[k]}, 0xffffff00, {x[k]}', f'v_and_b32 {y[k]}, 0xffffff00, {y[k]}']
                for k in range(4): L += [f'v_permlane32_swap_b32 {x[k]}, {y[k]}', f'v_add_f32 {x[k]}, {x[k]}, {y[k]}']
                for k in range(2): L += [f'v_permlane16_swap_b32 {x[k]}, {x[k+2]}', f'v_add_f32 {x[k]}, {x[k]}, {x[k+2]}', dpp_add(x[k], 'row_ror:4'), dpp_add(x[k], 'row_ror:8')]
                L += [f'v_cvt_pk_bf16_f32 {x[0]}, {x[0]}, {x[1]}', f'v_mov_b32 {x[1]}, {sTag}', f'buffer_store_dwordx2 {x[0:2]}, {as_}, {sWS}, {so} offen offset:{off} sc1']
            if not OPT['ack2']: L.append(f'buffer_atomic_add {fa}, {lrep}, {sWS}, {sWb} offen sc1')
            emit_sched(A, L, 'reduce'); C.n += 3
            stamp(A, 8)
            ld = [self.Rg[0], self.Rg[1], self.Rg[2], self.Rg[3]]; assert all(ld[i].b == ld[0].b + 4*i for i in range(4))
            ldall = R('v', ld[0].b, 16)
            ld2 = [f'buffer_load_dwordx4 {ld[2*m+h]}, {ak}, {sWS}, {e2} offen offset:{1088*m+16*h} sc1' for m in range(2) for h in range(2)]
            A(f's_add_u32 {e0}, {sF[0]}, 32768\ns_add_u32 {e1}, {sF[0]}, {72*4096}\ns_add_u32 {e3}, {e1}, 32768')
            emit_sched(A, qside([3]), 'q3')
            if OPT['ack2']: sarrive(A, sWb)
            A(f'buffer_store_dword {vtag}, {l26}, {sWS}, {sF[2]} offen sc1')
            ppoll(A, sWo, 16, OPT['Dk'], 20, OPT['slpa'])
            stampe(A, 7)
            poll(A, '\n'.join(ld2), chk_words(A, [ldall[2*i+1] for i in range(8)], tm), sleep=OPT['slp'], mask_exec=True)
            stamp(A, 4)
            L = []
            for m in range(2): L += [f'v_mov_b32 {ldall[8*m+3]}, {ldall[8*m]}', f'v_mov_b32 {ldall[8*m+5]}, {ldall[8*m+6]}']
            kvA = [ldall[2:6], ldall[10:14]]
        for p in range(4):
            N = MR[p]; o = acc[2*p][2]
            L.append(f'v_mfma_f32_32x32x16_bf16 {N}, {kvA[0]}, {eq[p][0]}, 0')
            L.append(f'v_mfma_f32_32x32x16_bf16 {N}, {kvA[1]}, {eq[p][1]}, {N}')
            L += [f'v_add_f32 {N[8]}, {f2u(1e-6):#x}, {N[8]}', f'v_rcp_f32 {N[8]}, {N[8]}']
            if OPT['opk']:
                L.append(f'v_mov_b32 {N[9]}, {N[8]}')
                for i in range(4): L.append(f'v_pk_mul_f32 {N[2*i:2*i+2]}, {N[2*i:2*i+2]}, {N[8:10]}')
            else:
                for i in range(8): L.append(f'v_mul_f32 {N[i]}, {N[i]}, {N[8]}')
            for i in range(4): L.append(f'v_cvt_pk_bf16_f32 {o[i]}, {N[2*i]}, {N[2*i+1]}')
            L.append(f'buffer_store_dwordx4 {o}, {ad}, {sWS}, {[sF[0], e0, e1, e3][p]} offen sc1')
        stampe(A, 8)
        if OPT['snt']:
            L += [f'v_mov_b32 {fa}, 1', f'v_lshrrev_b32 {lrep}, 1, {l}', f'v_lshlrev_b32 {lrep}, 26, {lrep}', f'v_lshl_add_u32 {lrep}, {l}, 11, {lrep}',
                  f'buffer_atomic_add {fa}, {lrep}, {sWS}, {sF[1]} offen sc1']
        emit_sched(A, L, 'oside'); C.n += 4
        stampe(A, 9)
        if OPT['wo']: A(f'v_mov_b32 {t0}, {L_TAG}\nv_mov_b32 {t1}, 16\ns_mov_b64 exec, 1\nds_add_u32 {t0}, {t1} offset:8\ns_mov_b64 exec, -1')
        if not OPT['snt']: sarrive(A, *[f'{x} offset:{256*r}' for r in range(OPT['Ro']) for x in (sF[1], sHb)])
        stampe(A, 10)

def p2_C(A):
    l = lane; C = Ctx(A); G = LG(A)
    NP = OPT['npre']
    V = Pool('v', 4, 256)
    vab = [V.alloc() for _ in range(4)]
    go, vm_, t0, t1, xq2 = V.alloc(), V.alloc(), V.alloc(), V.alloc(), V.alloc()
    xq = V.alloc(8, 4); acc = V.alloc(16, 4); ao = V.alloc(64, 4)
    Bs = [V.alloc(16, 4) for _ in range(NP)]
    A(f'v_and_b32 {t0}, 15, {l}\nv_lshlrev_b32 {go}, 10, {t0}\nv_bfe_u32 {t0}, {l}, 4, 1\nv_lshl_add_u32 {go}, {t0}, 5, {go}\nv_lshrrev_b32 {t0}, 5, {l}\nv_lshl_add_u32 {go}, {t0}, 4, {go}')
    A(f's_lshl_b32 {sE[0]}, {sI2}, 16\ns_lshl_b32 {sT0}, {sWQ}, 14\ns_add_u32 {sE[0]}, {sE[0]}, {sT0}\ns_lshl_b32 {sT1}, {sJ2}, 7\ns_add_u32 {sE[0]}, {sE[0]}, {sT1}')
    for P in range(2): A(f'buffer_load_dwordx4 {xq[4*P:4*P+4]}, {go}, {sX}, {sE[0]} offen offset:{64*P}')
    A(f's_mul_i32 {sE[1]}, {sI2}, {72*4096}\ns_add_u32 {sE[1]}, {sE[1]}, {sT0}\ns_add_u32 {sE[1]}, {sE[1]}, {ACT + 56*4096}')
    for i in range(1, 4): A(f's_add_u32 {sE[1+i]}, {sE[1]}, {4096*i}')
    cnt_i2(A, sE[5], sI2, 5120)
    if OPT['Ro'] > 1: A(f's_and_b32 s4, {sJ2}, {OPT["Ro"]-1}\ns_lshl_b32 s4, s4, 8\ns_add_u32 {sE[5]}, {sE[5]}, s4')
    tr_addr(A, vab, WOB, t0, t1)
    A(f'v_mov_b32 {vm_}, {L_TAG}')
    stamph(A, 1)
    if OPT['eo']:
        l0, l1, l2 = A.lab('EO'), A.lab('EP'), A.lab('EQ')
        A(f's_cmp_lg_u32 {sWV}, 0\ns_cbranch_scc1 {l1}')
        A(f's_add_u32 {sT1}, {sTag}, 32\ns_mov_b32 {sSpin}, {OPT["spin"]}')
        A(f'{l0}:\ns_mov_b32 {sT0}, 0\ns_atomic_add {sT0}, {sWS[0:2]}, {sE[5]} glc\ns_waitcnt lgkmcnt(0)\nds_read_b32 {t0}, {vm_} offset:4\ns_cmp_eq_u32 {sT0}, {sT1}\ns_cbranch_scc1 {l2}')
        A(f's_waitcnt lgkmcnt(0)\nv_readfirstlane_b32 {sT0}, {t0}\ns_cmp_ge_u32 {sT0}, 4\ns_cbranch_scc1 {l1}')
        A(f's_sleep {OPT["slpo"]}\ns_sub_u32 {sSpin}, {sSpin}, 1\ns_cbranch_scc0 {l0}\ns_branch {l1}')
        A(f'{l2}:\ns_mov_b32 {sWV}, 8\nv_mov_b32 {xq2}, 16\ns_mov_b64 exec, 1\nds_add_u32 {vm_}, {xq2} offset:12\ns_mov_b64 exec, -1')
        A(f'{l1}:')
    lds_spin(A, vm_, 4, 4, t0)
    stamph(A, 2)
    tokB = {}
    def trl(k): return [(f'ds_read_b64_tr_b16 {Bs[k % NP][4*q+2*hf:4*q+2*hf+2]}, {vab[q]} offset:{k*4096 + hf*2048}', (k, q)) for q in range(4) for hf in range(2)]
    if OPT['snt']: A(f's_movk_i32 {sCur}, 4096\nK_redo:')
    for k in range(NP):
        for s, key in trl(k): G.ds(s); tokB[key] = 0
    if OPT['snt']: A(f's_cmpk_lg_u32 {sCur}, 4096\ns_cbranch_scc1 K_ld')
    stamph(A, 3)
    if OPT['opoll']:
        ppoll(A, sE[5], 32, OPT['Do'], 20, OPT['slpo'])
        G.all()
    else:
        lk, le = A.lab('NO'), A.lab('OE')
        A(f's_cmp_lg_u32 {sWV}, 0\ns_cbranch_scc1 {lk}')
        ppoll(A, sE[5], 32, OPT['Do'], 20, OPT['slpo'])
        if OPT['gs']:
            stamp(A, 3)
            A(f'v_mov_b32 {t0}, 16\ns_mov_b64 exec, 1\nds_add_u32 {vm_}, {t0} offset:12\ns_mov_b64 exec, -1')
            A(f'{lk}:')
            stamph(A, 4)
            lds_spin(A, vm_, 12, 20, t0)
            if OPT['eo']: A(f's_and_b32 {sWV}, {sWV}, 7')
        else:
            A(f'v_mov_b32 {t0}, 1\nds_write_b32 {vm_}, {t0} offset:12\ns_branch {le}')
            A(f'{lk}:')
            lds_spin(A, vm_, 12, 1, t0)
            A(f'{le}:')
    stamp(A, 9); stampf(A, 0)
    stamph(A, 5)
    if OPT['snt']: A('K_ld:')
    tok = {}
    for s in range(16):
        tok[s] = C.vm(f'buffer_load_dwordx4 {ao[4*s:4*s+4]}, {v_l16}, {sWS}, {sE[1 + s//4]} offen offset:{(s & 3)*1024} ' + ['sc1', '', 'sc0', 'nt', 'sc0 sc1'][OPT['old']])
    stampf(A, 1)
    G.all()
    A(f's_lshl_b32 {sT0}, {sWQ}, 12\nv_add_u32 {t1}, {sT0}, {v_l16}')
    Q = []
    for s in range(16):
        C.wait(tok[s])
        if s == 0 and not OPT['snt']:
            for P in range(2): A(f'v_permlane16_swap_b32 {xq[4*P]}, {xq[4*P+2]}\nv_permlane16_swap_b32 {xq[4*P+1]}, {xq[4*P+3]}')
        for q in range(4):
            G.need(tokB[(s, q)])
            A(f'v_mfma_f32_16x16x32_bf16 {acc[4*q:4*q+4]}, {Bs[s % NP][4*q:4*q+4]}, {ao[4*s:4*s+4]}, {acc[4*q:4*q+4] if s else 0}')
            for _ in range(2):
                if Q: x, key = Q.pop(0); tokB[key] = G.ds(x)
        if OPT['snt'] and s & 1: A(f'v_max3_u32 {t0}, {ao[4*s]}, {ao[4*s-4]}, {t0 if s > 1 else 0}')
        if s + NP < 16: Q += trl(s + NP)
        if s in (0, 3, 7, 11, 15): stampf(A, 2 + (s+1)//4)
    if OPT['snt']:
        A(f'v_cmp_eq_u32 vcc, -1, {t0}\ns_and_b64 s[4:5], vcc, exec\ns_cbranch_scc0 K_ok\ns_sleep 1\ns_sub_u32 {sCur}, {sCur}, 1\ns_cbranch_scc0 K_redo\nK_ok:')
        for P in range(2): A(f'v_permlane16_swap_b32 {xq[4*P]}, {xq[4*P+2]}\nv_permlane16_swap_b32 {xq[4*P+1]}, {xq[4*P+3]}')
    xf = ao[0:16]; g = ao[16:32]
    stamp(A, 10); stamph(A, 6)
    A('s_barrier')
    stampf(A, 7); stamph(A, 7)
    for u in range(4): A(f'ds_read_b128 {g[4*u:4*u+4]}, {t1} offset:{X0 + 1024*u}')
    for i in range(8): A(f'v_lshlrev_b32 {xf[2*i]}, 16, {xq[i]}\nv_and_b32 {xf[2*i+1]}, 0xffff0000, {xq[i]}')
    for P in range(2):
        A(f's_waitcnt lgkmcnt({2 - 2*P})')
        for i in range(4*P, 4*P+4): A(f'v_pk_fma_f32 {g[2*i:2*i+2]}, {g[2*i:2*i+2]}, {acc[2*i:2*i+2]}, {xf[2*i:2*i+2]}')
        for i in range(4*P, 4*P+4): A(f'v_cvt_pk_bf16_f32 {xq[i]}, {g[2*i]}, {g[2*i+1]}')
    for P in range(2):
        A(f'v_permlane16_swap_b32 {xq[4*P]}, {xq[4*P+2]}\nv_permlane16_swap_b32 {xq[4*P+1]}, {xq[4*P+3]}')
    for P in range(2): A(f'buffer_store_dwordx4 {xq[4*P:4*P+4]}, {go}, {sOUT}, {sE[0]} offen offset:{64*P} ' + ['', 'sc1', 'nt', 'sc0 sc1', 'sc1 nt', 'sc0 sc1 nt'][OPT['ost']])
    stampf(A, 8); stamph(A, 8)
    if OPT['stamp'] == 6: A('s_waitcnt vmcnt(0)')
    stampf(A, 9)

vb = [R('v', 4+i, 1) for i in range(4)]
vb0, vb1 = R('v', 8, 1), R('v', 9, 1)
RS = [R('v', 80+16*i, 16) for i in range(11)]
ACCL = R('v', 16, 64)
vbh = [R('v', 13, 1), R('v', 14, 1), R('v', 15, 1), R('v', 2, 1)]
va = [R('v', 10, 1), R('v', 11, 1), R('v', 12, 1), R('v', 0, 1)]
vx2, vx3, vw1, vh, pt, pa, pm, p1 = [ACCL[48+i] for i in range(8)]
def nib(d, k): return f's_bfe_u32 {d}, {sCur if k < 8 else sCurA}, {(4 << 16) | (4 * (k % 8)):#x}'
LOAD = [0, 1, 8, 9, 2, 3, 4, 5, 6, 7, 10, 11, 12, 13] if OPT['lord'] else list(range(14))
RSL = {0: 0, 1: 1, 2: 2, 3: 3, 4: 4, 5: 5, 8: 6, 9: 7, 6: 0, 7: 1, 10: 2, 11: 3, 12: 4, 13: 5} if OPT['lord'] else {k: k % 8 for k in range(14)}
if OPT['lord'] == 2:
    LOAD = [0, 1, 2, 3, 8, 9, 10, 4, 5, 6, 7, 11, 12, 13]
    RSL = {0: 0, 1: 1, 2: 2, 3: 3, 8: 4, 9: 5, 10: 6, 4: 7, 5: 0, 6: 1, 7: 2, 11: 3, 12: 7, 13: 2}
if OPT['lord'] == 3:
    LOAD = [0, 4, 8, 12, 1, 2, 3, 5, 6, 7, 9, 10, 11, 13]
    RSL = {0: 0, 6: 0, 1: 1, 7: 1, 2: 2, 9: 2, 3: 3, 10: 3, 4: 4, 11: 4, 5: 5, 13: 5, 8: 6, 12: 7}
if OPT['lord'] == 4:
    LOAD = [0, 1, 4, 5, 8, 9, 12, 2, 3, 6, 7, 10, 11, 13]
    RSL = {1: 0, 6: 0, 2: 1, 7: 1, 0: 2, 3: 2, 10: 2, 4: 3, 11: 3, 5: 4, 13: 4, 8: 5, 9: 6, 12: 7}
PH = [int(c) for c in str(OPT['ph'])] if OPT['ph'] else [4, 7]
PHO = [0, 8192, 128, 8192 + 128]
sB0, sB1 = sM2[0], sM2[1]
sLi = [sXo, sHo, sWb, sRot]
vr0, vr1 = vb0, vb1
class BP:
    def __init__(self, A, C, G):
        self.A, self.C, self.G = A, C, G
        self.next = 0; self.free = []; self.fly = []; self.slot = {}; self.tok = {}; self.cool = []; self.dep = 0; self.pend = []
    def dma(self, k, sl):
        A = self.A
        for f in self.dma_list(k, sl): f()
    def dma_list(self, k, sl):
        A = self.A
        self.slot[k] = sl
        def mk(i):
            def f():
                if OPT['xr'] & 2:
                    if i == 0: A(f'{nib(sB0, LOAD[k])}\ns_lshl_b32 {sB0}, {sB0}, 15\ns_add_u32 {sB0}, {sB0}, {sBb}\ns_xor_b32 {sB1}, {sB0}, 16384')
                    A(f's_add_u32 m0, {sLi[i]}, {sl}')
                else:
                    if i == 0: A(f'{nib(sB0, LOAD[k])}\ns_lshl_b32 {sB0}, {sB0}, 15\ns_add_u32 {sB0}, {sB0}, {sBb}\ns_add_u32 {sB1}, {sB0}, 16384')
                    A(f's_add_u32 m0, {sLb2}, {sl + 1024*i}')
                if self.dep: A(f's_waitcnt vmcnt({self.dep - 1})')
                self.tok[k] = self.C.vm(f'buffer_load_dwordx4 {(vb0, vb1)[i & 1]}, {sW2}, {(sB0, sB1)[i >> 1]} offen lds')
            return f
        return [mk(i) for i in range(4)]
    def wo_list(self, k):
        A = self.A
        def mk(i):
            def f():
                if i == 0:
                    A(f's_xor_b32 {sT1}, {sF[2]}, {k}\ns_lshl_b32 {sF[3]}, {sT1}, 12\ns_lshl2_add_u32 {sF[3]}, {sLb2}, {sF[3]}')
                    A(f's_lshl_b32 {sT0}, {sT1}, 15\ns_add_u32 {sT0}, {sT0}, {sF[0]}\ns_add_u32 {sT1}, {sT0}, 16384')
                if OPT['xr'] & 2 and i == 0: A(f's_add_u32 {sF[3]}, {sF[3]}, {sHb}')
                if OPT['xr'] & 2 and i == 2: A(f's_sub_u32 {sF[3]}, {sF[3]}, {sHb}\ns_sub_u32 {sF[3]}, {sF[3]}, {sHb}')
                A(f's_add_u32 m0, {sF[3]}, {WOB + 1024*i}')
                if self.dep: A(f's_waitcnt vmcnt({self.dep - 1})')
                self.tokwo = self.C.vm(f'buffer_load_dwordx4 {(vb0, vb1)[i >> 1]}, {sWO}, {(sT0, sT1)[i & 1]} offen lds')
            return f
        return [mk(i) for i in range(4)]
    def trl(self, k):
        sl = self.slot[k]; hi = sl >= Y0
        off = sl - Y0 if hi else sl
        dst = RS[RSL[LOAD[k]]]
        return [f'ds_read_b64_tr_b16 {dst[4*q+2*hf:4*q+2*hf+2]}, {(vbh if hi else vb)[q]} offset:{off + hf*2048}' for q in range(4) for hf in range(2)]
    def retire(self):
        k = self.fly.pop(0)
        self.C.wait(self.tok[k])
        for s in self.trl(k): tk = self.G.ds(s)
        self.cool.append((self.slot[k], tk))
    def step(self, run=True):
        self.flush()
        if self.next >= 13: return False
        if not self.free:
            if not self.cool: self.retire()
            if len(self.cool) == 1 and self.fly and self.next - self.fly[0] >= 3: self.retire()
            sl, tk = self.cool.pop(0); self.G.need(tk, 8); self.free.append(sl)
        k = self.next; self.next += 1
        self.pend = self.dma_list(k, self.free.pop(0))
        if k < 8: self.fly.append(k)
        if run: self.flush()
        return True
    def flush(self):
        while self.pend: self.pend.pop(0)()
    def quota(self, n):
        for _ in range(n):
            if not self.pend: self.step(run=False)
            self.pend.pop(0)()

class LW:
    def __init__(self, A, typ):
        self.A = A; self.typ = typ; self.C = Ctx(A); self.G = LG(A); self.B = BP(A, self.C, self.G)
        self.lrow = 3584 if typ == 'F' else 3072
        self.stok = {}; self.sq = []
    def issue(self, st, only_half=False, lo=0, hi=99):
        A = self.A if lo == 0 else (lambda x: None); buf = phys(st); F = self.typ == 'F'
        cs = 128 if F else 1024
        if not only_half:
            A(f's_bfe_u32 {sT0}, {sRot}, {(4 << 16) | (4*st):#x}\ns_lshl_b32 {sXo}, {sT0}, 7\ns_add_u32 {sXo}, {sXo}, {sXb}')
            A(f's_mul_i32 {sT0}, {sT0}, {64*self.lrow}\ns_add_u32 {sWo}, {sT0}, {sWb}')
            xs = [(buf + 4096*p, (vx0, vx2, vx1, vx3)[p], sX, sXo, 0) for p in range(4)]
            ws = [(buf + 16384 + 8192*b + 4096*h - b*cs, (vw, vw1)[h], sW, sWo, b*cs) for h in range(2) for b in range(3)]
            items = [xs[0], ws[0], ws[1], xs[1], ws[2], xs[2], ws[3], ws[4], xs[3], ws[5]]
        else: items = []
        if F:
            A(f's_add_u32 {sHo}, {sWo}, {sHb}')
            items.append((buf + 16384 + 24576, vh, sW, sHo, 0))
        A = self.A
        for m, v, sr, so, off in items[lo:hi]:
            A(f's_add_u32 m0, {sLb}, {m}')
            self.stok[st] = self.C.vm(f'buffer_load_dwordx4 {v}, {sr}, {so} offen' + (f' offset:{off}' if off else '') + ' lds')
            while self.sq:
                x = self.sq.pop(0); A(x)
                if x.startswith('s_load'): break
    def run(self):
        A, C, G, B, l = self.A, self.C, self.G, self.B, lane
        F = self.typ == 'F'; lrow = self.lrow
        C.n = 5; self.stok[0] = 5
        T = [ACCL[i] for i in range(64)]
        if OPT['lprio']: A(f's_setprio {OPT["lprio"]}')
        srd(A, sW2, 48, SZ_W2); srd(A, sWO, 24, SZ_WO)
        if not F: srd(A, sPHI, 16, SZ_PHI)
        elif OPT['j3']: srd(A, sPHI, 8, SZ_QKV)
        vj3 = ACCL[62]
        def j3touch(second):
            A(f'v_lshrrev_b32 {vj3}, 3, {l}\nv_mul_u32_u24 {vj3}, 3072, {vj3}\nv_and_b32 {ACCL[63]}, 0x70, {v_l16}\nv_add_u32 {vj3}, {vj3}, {ACCL[63]}')
            A(f's_and_b32 {sT0}, {sI}, 7\ns_lshl2_add_u32 {sT0}, {sT0}, {sWQ}\ns_lshr_b32 {sT1}, s2, 1\ns_xor_b32 {sT1}, {sT1}, s2\ns_and_b32 {sT1}, {sT1}, 1' + (f'\ns_xor_b32 {sT1}, {sT1}, 1' if second else ''))
            A(f's_lshl_b32 {sT1}, {sT1}, 5\ns_add_u32 {sT0}, {sT0}, {sT1}\ns_mul_i32 {sT0}, {sT0}, {8*3072}')
            A(f's_sub_u32 {sT1}, {sJJ}, 4\ns_min_u32 s6, {sT1}, 2\ns_lshl_b32 s6, s6, 10\ns_add_u32 {sT0}, {sT0}, s6')
            A(f's_cmp_gt_u32 {sT1}, 3\ns_cselect_b32 {sT0}, {OOB}, {sT0}\ns_cmp_eq_u32 {sT1}, 2\ns_cselect_b32 {sT0}, {OOB}, {sT0}\ns_mov_b32 m0, {JUNK}')
            if F and not second: A('s_waitcnt lgkmcnt(0)')
            C.vm(f'buffer_load_dwordx4 {vj3}, {sPHI if F else sW}, {sT0} offen offset:384 lds')
        if OPT['j3'] & 1 and OPT['j3p'] == 0: j3touch(False)
        A(f's_sub_u32 {sLb}, {sLb}, 4096')
        A(f'v_or_b32 {vx2}, 0x8000, {vx0}\nv_or_b32 {vx3}, 0x8000, {vx1}\nv_and_b32 {vx0}, 0xffff7fff, {vx0}\nv_and_b32 {vx1}, 0xffff7fff, {vx1}')
        if OPT['flip'] & 1: A(f's_bitcmp1_b32 s2, 5\ns_cselect_b32 s4, 0, {32*lrow}\nv_subrev_u32 {vw}, s4, {vw}')
        else: A(f'v_subrev_u32 {vw}, {32*lrow}, {vw}')
        A(f'v_add_u32 {vw1}, {32*lrow}, {vw}')
        if OPT['rot'] == 4:
            A(f's_and_b32 s4, {sRot}, 3\ns_lshl_b32 s4, s4, 2\ns_lshr_b32 s4, 0x32103210, s4\ns_and_b32 s4, s4, 0xffff')
            if OPT['r3'] & 1:
                A(f's_lshl_b32 s4, s4, 16\ns_and_b32 s5, {sI}, 7\ns_and_b32 s6, {sJJ}, 3\ns_add_u32 s5, s5, s6\ns_lshl_b32 s5, s5, 1\ns_lshr_b32 s5, 1198372, s5\ns_and_b32 s5, s5, 3')
                A(f's_lshl_b32 s5, s5, 2\ns_lshr_b32 s5, 0x213210, s5\ns_and_b32 s5, s5, 0xfff0\ns_or_b32 s4, s4, s5')
            elif OPT['r2'] == 0: A(f's_mul_i32 s4, s4, 0x10001')
            elif OPT['r2'] == 1: A(f's_bitcmp1_b32 {sRot}, 0\ns_cselect_b32 s5, 0x11110000, 0\ns_xor_b32 s5, s5, 0x32100000\ns_or_b32 s4, s4, s5')
            else: A(f's_or_b32 s4, s4, 0x32100000')
            A(f's_cmp_ge_u32 {sRot}, 4\ns_cselect_b32 s5, 0x4444, 0x44440000\ns_or_b32 {sRot}, s4, s5'.replace('s_cselect_b32 s5, 0x4444, 0x44440000', 's_mov_b32 s5, 0x44440000\ns_cmovk_i32 s5, 0x4444'))
        elif OPT['rot'] == 2:
            A(f's_mul_i32 {sRot}, {sRot}, 0x11111111\ns_xor_b32 {sRot}, {sRot}, 0x76543210')
        else:
            A(f's_mov_b32 s4, 0x76543210\ns_mov_b32 s5, s4\ns_lshl_b32 s6, {sRot}, 2\ns_lshr_b64 s[4:5], s[4:5], s6\ns_mov_b32 {sRot}, s4')
        if F:
            t0, t1, t2 = T[0:3]
            A(f's_and_b32 {sT0}, {sJ}, 1\ns_mul_i32 {sT0}, {sT0}, 448\ns_sub_u32 {sHb}, 384, {sT0}')
            A(f's_mul_i32 {sT0}, {sWQ}, {16*lrow}\ns_add_u32 {sHb}, {sHb}, {sT0}')
            A(f'v_lshrrev_b32 {t0}, 2, {l}\nv_and_b32 {t1}, 3, {l}\nv_lshrrev_b32 {t2}, 4, {l}\nv_and_b32 {t2}, 2, {t2}\nv_xor_b32 {t2}, {t2}, {t1}\nv_lshlrev_b32 {t2}, 4, {t2}')
            A(f'v_mul_u32_u24 {vh}, {lrow}, {t0}\nv_add_u32 {vh}, {vh}, {t2}')
            self.issue(0, only_half=True)
        if OPT['e1']: self.issue(1, hi=OPT['e1'])
        p2_ids(A)
        t0, t1, f = T[0:3]
        if OPT['ph']:
            if OPT['brot'] and OPT['sw']: A(f's_and_b32 s7, {sJ2}, 3\ns_cmp_eq_u32 s7, 3\ns_cselect_b32 s7, 3, 2\ns_and_b32 s6, s6, s7')
            elif OPT['brot']: A('s_and_b32 s6, s6, 2')
            A(f's_add_u32 s6, s6, {sJ2}\ns_and_b32 s7, s6, 3\ns_lshl_b32 s7, s7, 2\ns_lshr_b32 s4, 0x98109810, s7\ns_and_b32 s4, s4, 0xffff')
            A(f's_mul_i32 {sCur}, s4, 0x10001\ns_add_u32 {sCur}, {sCur}, 0x22220000')
            A(f's_bitcmp1_b32 s6, {1 if OPT["brot"] else 0}\ns_cselect_b32 s5, 0x110000, 0\ns_xor_b32 s5, s5, 0x764444\ns_add_u32 {sCurA}, s4, s5')
        else:
            A(f's_lshl_b32 s6, s6, 1' + (f'\ns_and_b32 s6, s6, 4' if OPT['brot'] else '') + f'\ns_add_u32 s6, s6, {sJ2}' + ('\ns_add_u32 s6, s6, s2' if OPT['xr'] & 1 else '') + '\ns_and_b32 s6, s6, 7')
            A(f's_mov_b32 s4, 0xba983210\ns_mov_b32 s5, s4\ns_lshl_b32 s7, s6, 2\ns_lshr_b64 s[4:5], s[4:5], s7\ns_mov_b32 {sCur}, s4')
            A(f's_mul_i32 s6, s6, 3\ns_and_b32 s7, s6, 28\ns_mov_b32 s4, 0x547dc654\ns_mov_b32 s5, 0x7dc6\ns_lshr_b64 s[4:5], s[4:5], s7\ns_mov_b32 {sCurA}, s4')
        A(f's_mul_i32 s4, {sWQ}, 14\ns_mul_i32 {sAb}, {sI2}, 72\ns_add_u32 {sAb}, {sAb}, s4\ns_lshl_b32 {sAb}, {sAb}, 12\ns_add_u32 {sAb}, {sAb}, {ACT}')
        A(f's_lshl_b32 {sBb}, s4, 15\ns_lshl_b32 s5, {sJ2}, 7\ns_add_u32 {sBb}, {sBb}, s5')
        A(f's_lshl_b32 {sF[0]}, {sWQ}, 17\ns_add_u32 {sF[0]}, {sF[0]}, s5')
        A(f's_lshl_b32 {sLb2}, {sWQ}, 12')
        A(f'v_lshrrev_b32 {t0}, 3, {l}\nv_and_b32 {t1}, 6, {t0}\nv_and_b32 {f}, 7, {l}\nv_xor_b32 {t1}, {t1}, {f}\nv_lshlrev_b32 {t1}, 4, {t1}\nv_lshl_add_u32 {vb0}, {t0}, 10, {t1}\nv_add_u32 {vb1}, 0x2000, {vb0}')
        tr_addr(A, vb, sLb2, t0, t1)
        for q in range(4): A(f'v_add_u32 {vbh[q]}, {Y0}, {vb[q]}')
        A(f'v_mov_b32 {pm}, {L_TAG}\nv_mov_b32 {p1}, 1')
        cnt_i2(A, sF[1], sI2, 1024)
        A(f's_lshl_b32 s4, {sWQ}, 8\ns_add_u32 {sF[1]}, {sF[1]}, s4')
        if OPT['Rh'] > 1: A(f's_and_b32 s4, {sJ2}, 1\ns_lshl_b32 s4, s4, 7\ns_add_u32 {sF[1]}, {sF[1]}, s4')
        ca = T[4:8]; t, g = T[8], T[9]; ones = ACCL[12:16]; wfr = ACCL[16:32]; cs = ACCL[32:48]; vt = T[10]; ff = T[11]
        A(f'v_and_b32 {t}, 15, {l}\nv_lshrrev_b32 {g}, 4, {l}')
        if F: A(f's_cmp_eq_u32 {sWQ}, 3\ns_cselect_b32 s4, 6, 7\ns_cselect_b32 s5, 1, 3\ns_cselect_b32 s6, 1, 0\ns_lshl_b32 s7, {sWQ}, 13')
        else: A(f's_mov_b32 s4, 7\ns_mov_b32 s5, 3\ns_mov_b32 s6, 0\ns_min_u32 s7, {sWQ}, 2\ns_lshl_b32 s7, s7, 13')
        if OPT['r3'] & 1: A(f's_and_b32 {sT0}, {sI}, 7\ns_lshr_b32 {sT0}, 0xb8, {sT0}\ns_and_b32 {sT0}, {sT0}, 1\ns_lshl_b32 {sT0}, {sT0}, 5')
        else: A(f's_lshl_b32 {sT0}, {sI}, {dict([(2,4),(4,3),(8,2)])[OPT["rot"]]}\ns_and_b32 {sT0}, {sT0}, 32')
        A(f's_lshr_b32 {sE[0]}, {sE[0]}, 6\ns_lshl_b32 {sT1}, {sWQ}, 5\ns_add_u32 {sE[0]}, {sE[0]}, {sT1}\ns_add_u32 {sSpin}, {sE[0]}, {STAT}')
        sgr = ACCL[56:60]; sga = T[60]; sgs = T[61]
        A(f's_lshl_b32 {sT1}, {sWQ}, 4\ns_add_u32 {sT1}, {sT1}, {L_SG}\nv_and_b32 {sga}, 1, {l}\nv_lshl_add_u32 {sga}, {sga}, 3, {sT1}')
        A(f'v_lshrrev_b32 {sgs}, 1, {l}\nv_lshl_add_u32 {sgs}, {sgs}, 26, {v_l16}')
        A(f'v_lshrrev_b32 {t0}, 2, {t}\nv_lshl_add_u32 {t0}, {g}, 3, {t0}\nv_add_u32 {t0}, {sT0}, {t0}\nv_lshlrev_b32 {t0}, s4, {t0}')
        A(f'v_and_b32 {t1}, 3, {t}\nv_lshl_add_u32 {t0}, {t1}, 3, {t0}\ns_add_u32 s7, s7, {phys(0)+16384}')
        if OPT['rot'] == 2: A(f's_bitcmp1_b32 {sI}, 2\ns_cselect_b32 {sT1}, {phys(0) - phys(2)}, 0\ns_sub_u32 s7, s7, {sT1}')
        if OPT['r3'] & 1: A(f's_and_b32 {sT1}, {sI}, 6\ns_cmp_lg_u32 {sT1}, 6\ns_cselect_b32 {sT1}, {phys(0) - phys(1)}, 0\ns_sub_u32 s7, s7, {sT1}')
        A(f'v_add_u32 {t0}, s7, {t0}')
        A(f'v_lshrrev_b32 {f}, 3, {t}\nv_and_b32 {t1}, 1, {g}\nv_lshl_or_b32 {f}, {t1}, 1, {f}\nv_lshrrev_b32 {f}, s6, {f}')
        for q in range(4): A(f'v_xor_b32 {t1}, {q}, {f}\nv_and_b32 {t1}, s5, {t1}\nv_lshl_add_u32 {ca[q]}, {t1}, 5, {t0}')
        A(f's_lshl_b32 s5, 4, s4')
        for r in range(4): A(f'v_mov_b32 {ones[r]}, 0x3f803f80')
        A(f'v_mov_b32 {vt}, {L_TAG}\nv_mov_b32 {ff}, 0xff')
        A(f's_lshl_b32 {sE[1]}, {sJJ}, 14\ns_lshl_b32 {sT0}, {sWQ}, 8\ns_add_u32 {sE[1]}, {sE[1]}, {sT0}\ns_add_u32 {sE[1]}, {sE[1]}, {CSP}')
        A(f's_lshl_b32 {sT0}, {sI}, 10\ns_add_u32 {sE[2]}, {sE[1]}, {sT0}')
        A(f's_lshl_b32 {sE[0]}, {sI}, 2\ns_add_u32 {sE[0]}, {sE[0]}, {sWQ}\ns_lshl_b32 {sE[0]}, {sE[0]}, 9\ns_add_u32 {sE[0]}, {sE[0]}, {STAT}')
        def mall():
            if OPT['touch'] & 8:
                A(f's_lshl2_add_u32 {sT0}, s2, {sWQ}\ns_lshl_b32 {sT0}, {sT0}, 10\ns_add_u32 {sT1}, {sT0}, 0x100000\ns_mov_b32 m0, {JUNK}')
                C.vm(f'buffer_load_dwordx4 {v_l16}, {sW2}, {sT0} offen lds')
                C.vm(f'buffer_load_dwordx4 {v_l16}, {sW2}, {sT1} offen lds')
                A(f's_xor_b32 {sT0}, {sT0}, 0x80000')
                C.vm(f'buffer_load_dwordx4 {v_l16}, {sWO}, {sT0} offen lds')
                return
            if OPT['touch'] & 16:
                if not F: return
                A(f's_lshl4_add_u32 {sT0}, {sJ}, {sI}\ns_lshl2_add_u32 {sT0}, {sT0}, {sWQ}\ns_lshl_b32 {sT1}, {sT0}, 10\ns_lshl_b32 {sT0}, {sT0}, 12\ns_mov_b32 m0, {JUNK}')
                for i in range(4): C.vm(f'buffer_load_dwordx4 {v_l16}, {sW2}, {sT0} offen offset:{1024*i} lds')
                C.vm(f'buffer_load_dwordx4 {v_l16}, {sWO}, {sT1} offen lds')
                return
            if OPT['touch'] & 32:
                A(f's_cmp_gt_u32 {sJJ}, 6\ns_subb_u32 {sT0}, {sJJ}, 0\ns_lshl4_add_u32 {sT0}, {sT0}, {sI}\ns_lshl2_add_u32 {sT0}, {sT0}, {sWQ}')
                A(f's_cmp_eq_u32 {sJJ}, 6\ns_cselect_b32 {sT0}, 0x10000, {sT0}\ns_sub_u32 {sT1}, {sT0}, 448\ns_lshl_b32 {sT1}, {sT1}, 10\ns_lshl_b32 {sT0}, {sT0}, 11\ns_mov_b32 m0, {JUNK}')
                A(f's_min_u32 {sT1}, {sT1}, {OOB}')
                for i in range(2): C.vm(f'buffer_load_dwordx4 {v_l16}, {sW2}, {sT0} offen offset:{1024*i} lds')
                C.vm(f'buffer_load_dwordx4 {v_l16}, {sWO}, {sT1} offen lds')
                return
            if not OPT['touch'] & 4 or F: return
            A(f's_cmp_gt_u32 {sJ}, 3\ns_subb_u32 {sT0}, {sJ}, 0\ns_lshl_b32 {sT0}, {sT0}, 4\ns_add_u32 {sT0}, {sT0}, {sI}\ns_lshl2_add_u32 {sT0}, {sT0}, {sWQ}')
            A(f's_cmp_eq_u32 {sJ}, 3\ns_cselect_b32 {sT0}, 0x10000, {sT0}\ns_lshl_b32 {sT1}, {sT0}, 11\ns_lshl_b32 {sT0}, {sT0}, 12\ns_mov_b32 m0, {JUNK}')
            for i in range(4): C.vm(f'buffer_load_dwordx4 {v_l16}, {sW2}, {sT0} offen offset:{1024*i} lds')
            for i in range(2): C.vm(f'buffer_load_dwordx4 {v_l16}, {sWO}, {sT1} offen offset:{1024*i} lds')
        if not F:
            A(f's_lshl2_add_u32 {sT0}, {sJ}, {sWQ}\ns_lshr_b32 {sT0}, {sT0}, 1\ns_lshl_b32 {sT0}, {sT0}, 10\ns_add_u32 m0, {sLb}, {L_PHI}\ns_waitcnt lgkmcnt(0)')
            tkphi = C.vm(f'buffer_load_dwordx4 {v_l16}, {sPHI}, {sT0} offen lds')
        if OPT['j3'] & 1 and OPT['j3p'] == 1: j3touch(False)
        if OPT['kva'] and not F:
            z4 = RS[1][0:4]; za = RS[1][4]
            for r in range(4): A(f'v_mov_b32 {z4[r]}, 0')
            A(f's_lshl_b32 {sT1}, {sI}, 10\nv_add_u32 {za}, {sT1}, {v_l16}\nv_cmp_lt_u32 vcc, {2176-16}, {za}\nv_cndmask_b32 {za}, {za}, {ones[0]}, vcc')
            A(f's_lshl2_add_u32 {sT0}, {sJ}, {sWQ}\ns_mul_i32 {sT0}, {sT0}, 2176\ns_add_u32 {sT0}, {sT0}, {KT}')
            C.vm(f'buffer_store_dwordx4 {z4}, {za}, {sWS}, {sT0} offen sc1')
        stl = [int(c, 16) for c in OPT['st']] + [0]*3
        sc = [OPT['stc'] + OPT['stl']]
        if OPT['stl']:
            if F: A('s_waitcnt lgkmcnt(0)')
            stouch(A, OPT['stc'], sc[0])
        stampg(A, 4)
        if OPT['tk'] == -1:
            A('s_waitcnt lgkmcnt(0)'); mall()
        self.issue(1, lo=OPT['e1'], hi=OPT['sp1'])
        if OPT['tk'] == -2:
            A('s_waitcnt lgkmcnt(0)'); mall()
        stamp(A, 1); stampg(A, 5)
        C.wait(self.stok[0]); stampb(A, 1); stampg(A, 6); A('s_barrier')
        stampg(A, 7)
        stamp(A, 2)
        gq = [ACCL[16+4*i:20+4*i] for i in range(4)]; sg = ACCL[32:36]; ga, sa = T[4], T[5]; tm = ACCL[40:48]
        ldg = [f'buffer_load_dwordx4 {sg}, {sa}, {sWS}, {sE[0]} offen sc1']
        ldg += [f'buffer_load_dwordx4 {gq[i]}, {ga}, {sWS}, {[sE[1], sE[3], sE[4], sE[5]][i]} offen sc1' for i in range(4)]
        nm = OPT['nmF'] if F else OPT['nmA']
        B.free = [TS]
        tl = [int(c) for c in f'{OPT["tl"+self.typ]:09d}']
        tc = [0]
        def touch(n):
            for _ in range(n):
                i = tc[0]
                if i >= 18: return
                tc[0] += 1
                r = i if i < 14 else i - 14
                if r % 4 == 0 or _ == 0:
                    A(f's_lshr_b32 {sT0}, s2, 3\ns_lshl2_add_u32 {sT0}, {sT0}, {sWQ}\ns_mul_i32 {sT0}, {sT0}, {14336 if i < 14 else 4096}\ns_add_u32 {sT0}, {sT0}, {r//4*4096}\ns_mov_b32 m0, {JUNK}')
                C.vm(f'buffer_load_dwordx4 {v_l16}, {sW2 if i < 14 else sWO}, {sT0} offen offset:{(r % 4)*1024} lds')
        c3l = [int(c) for c in f'{OPT["c3F"]:08d}'] + [0]*3
        c3c = [0]
        def c3touch(n):
            if n: A(f's_lshr_b32 {sT0}, s2, 4\ns_and_b32 {sT0}, {sT0}, 8\ns_and_b32 {sT1}, {sI}, 7\ns_add_u32 {sT0}, {sT0}, {sT1}\ns_lshl2_add_u32 {sT1}, {sT0}, {sWQ}\ns_mul_i32 {sT0}, {sT1}, {28*1024}\ns_mov_b32 m0, {JUNK}\ns_lshl_b32 {sT1}, {sT1}, 13')
            for _ in range(n):
                i = c3c[0]
                if i >= 5: return
                c3c[0] += 1
                if i < 4:
                    A(f's_add_u32 s6, {sT0}, {[0, 8192, 16384, 20480][i]}')
                    C.vm(f'buffer_load_dwordx4 {vb0}, {sW2}, s6 offen offset:384 lds')
                else: C.vm(f'buffer_load_dwordx4 {vb0}, {sWO}, {sT1} offen offset:384 lds')
        for k in range(9):
            if k == 3: stampc(A, 1)
            if k == 4: stampc(A, 8)
            if k == 0:
                A(f'ds_read_b32 {vt}, {vt}\nds_read_b64 {sgr[0:2]}, {sga}')
            if k == 0 or (k == 2 and OPT['rot'] == 2) or (k == 1 and OPT['r3'] & 1):
                lk = A.lab('CS')
                if OPT['r3'] & 1: A(f's_and_b32 {sT1}, {sI}, 6\ns_cmp_eq_u32 {sT1}, 6\ns_cbranch_scc{k} {lk}')
                if OPT['rot'] == 2: A(f's_bitcmp1_b32 {sI}, 2\ns_cbranch_scc{1 if k == 0 else 0} {lk}')
                for q in range(4): A(f'ds_read_b64_tr_b16 {wfr[4*q:4*q+2]}, {ca[q]}')
                for q in range(4): A(f'v_add_u32 {ca[q]}, s5, {ca[q]}')
                for q in range(4): A(f'ds_read_b64_tr_b16 {wfr[4*q+2:4*q+4]}, {ca[q]}')
                A(f'{lk}:')
            if OPT['sti'] and 1 <= k < 6:
                stouch(self.sq.append, sc[0], sc[0] + stl[k]); sc[0] += stl[k]; stl[k] = 0
            if k == 0: self.issue(1, lo=OPT['sp1'])
            if k == OPT['tk'] - 10: mall()
            if k and OPT['spm'] >> (k-1) & 1: self.issue(k + 1, lo=OPT['sp0'])
            if k < 6: self.issue(k + 2, hi=OPT['sp0'] if OPT['spm'] >> k & 1 else 99)
            for x in self.sq: A(x)
            self.sq = []
            if k == 6 and OPT['xr'] & 2:
                A(f's_and_b32 {sT0}, s2, 6\ns_lshl_b32 {sT0}, {sT0}, 9')
                for i in range(4): A(f's_xor_b32 {sLi[i]}, {sT0}, {1024*i}\ns_add_u32 {sLi[i]}, {sLi[i]}, {sLb2}')
                A(f's_and_b32 {sT1}, {sT0}, 1024\ns_lshl_b32 {sT1}, {sT1}, 3\nv_xor_b32 {vr0}, {sT1}, {vb0}\nv_xor_b32 {vr1}, {sT1}, {vb1}')
                A(f's_lshr_b32 {sHb}, {sT1}, 2')
                A(f's_and_b32 {sT1}, {sT0}, 2048\ns_lshl_b32 {sT1}, {sT1}, 3\ns_add_u32 {sBb}, {sBb}, {sT1}')
            if k == 6:
                for i in range(4):
                    A(f's_add_u32 {sT0}, {sWQ}, {i}\ns_and_b32 {sT0}, {sT0}, 3\ns_lshl_b32 {sT0}, {sT0}, 10\nv_add_u32 {va[i]}, {sT0}, {v_l16}')
            if k == 3: stampc(A, 2)
            if k == OPT['stk']:
                if k == 0 or (k == 1 and OPT['r3'] & 1): A(f's_waitcnt lgkmcnt(0)')
                A(f'v_readfirstlane_b32 {sTag}, {vt}')
                A('s_setprio 3')
                for q in range(4): A(f'v_mfma_f32_16x16x32_bf16 {cs[4*q:4*q+4]}, {ones}, {wfr[4*q:4*q+4]}, 0')
                tag_consts(A)
                A(f'v_lshrrev_b32 {t0}, 4, {l}\nv_lshl_add_u32 {t0}, {t0}, 26, {v_l16}')
                for q in range(4): A(f'v_bfi_b32 {cs[q]}, {ff}, {sTB[q]}, {cs[4*q]}')
                A(f's_setprio {OPT["lprio"]}')
                A(f'v_mov_b32 {sgr[2]}, {vt}\nv_mov_b32 {sgr[3]}, {vt}')
                A(f'v_and_b32 {ga}, 15, {l}\nv_lshlrev_b32 {ga}, 4, {ga}\nv_lshl_add_u32 {ga}, {g}, 10, {ga}\nv_and_b32 {sa}, 0x1f0, {v_l16}')
                A(f's_add_u32 {sE[3]}, {sE[1]}, 4096\ns_add_u32 {sE[4]}, {sE[1]}, 8192\ns_add_u32 {sE[5]}, {sE[1]}, 12288')
            if k == OPT['stk']:
                assert (k >= 2 or OPT['rot'] != 2)
                C.vm(f'buffer_store_dwordx4 {cs[0:4]}, {t0}, {sWS}, {sE[2]} offen sc1')
                C.vm(f'buffer_store_dwordx4 {sgr}, {sgs}, {sWS}, {sSpin} offen sc1')
            if k == OPT['j3k'] and OPT['j3'] & 2: j3touch(True)
            if k == OPT['tk']: mall()
            if k == OPT['c3'] and not F:
                A(f's_lshr_b32 {sT0}, s2, 4\ns_and_b32 {sT0}, {sT0}, 8\ns_and_b32 {sT1}, {sI}, 7\ns_add_u32 {sT0}, {sT0}, {sT1}\ns_lshl2_add_u32 {sT1}, {sT0}, {sWQ}\ns_mul_i32 {sT0}, {sT1}, {28*1024}\ns_mov_b32 m0, {JUNK}')
                for o in (0, 8192, 8192, 4096):
                    if o: A(f's_add_u32 {sT0}, {sT0}, {o}')
                    C.vm(f'buffer_load_dwordx4 {vb0}, {sW2}, {sT0} offen offset:384 lds')
                A(f's_lshl_b32 {sT1}, {sT1}, 13')
                C.vm(f'buffer_load_dwordx4 {vb0}, {sWO}, {sT1} offen offset:384 lds')
            if F: c3touch(c3l[k])
            plo, phi_, pa_ = RS[10][0:4], RS[10][4:8], RS[10][8]
            if k == OPT['pk'] and not F:
                if k == 0: C.wait(tkphi)
                A(f'v_bfe_u32 {pa_}, {l}, 3, 2\nv_lshlrev_b32 {pa_}, 3, {pa_}\nv_and_b32 {t1}, 3, {l}\nv_lshl_add_u32 {pa_}, {t1}, 1, {pa_}')
                A(f'v_lshrrev_b32 {t1}, 5, {l}\nv_lshl_add_u32 {pa_}, {t1}, 8, {pa_}')
                A(f's_and_b32 {sT0}, {sWQ}, 1\ns_lshl_b32 {sT0}, {sT0}, 9\ns_add_u32 {sT0}, {sT0}, {sLb}\ns_add_u32 {sT0}, {sT0}, {L_PHI}\nv_add_u32 {pa_}, {sT0}, {pa_}')
                for j in range(8): A(f'ds_read_u16 {(phi_ if j & 1 else plo)[j//2]}, {pa_} offset:{32*j}')
            if k == OPT['pk'] + 1 and not F:
                L = [f'v_bfe_u32 {t1}, {l}, 2, 1', f'v_mul_u32_u24 {t1}, 0x8000, {t1}', f'v_lshl_or_b32 {t1}, {t1}, 16, {t1}']
                for rr in range(4): L += [f'v_lshl_or_b32 {plo[rr]}, {phi_[rr]}, 16, {plo[rr]}', f'v_xor_b32 {plo[rr]}, {plo[rr]}, {t1}']
                L += [f's_add_u32 {sT0}, {sLb}, {L_PHI}', f'v_add_u32 {pa_}, {sT0}, {v_l16}', f'ds_write_b128 {pa_}, {plo}']
                for x in L: A(x)
            if k == OPT['sk'] and OPT['snt'] and not F:
                sn = RS[9][0:4]
                for r in range(4): A(f'v_mov_b32 {sn[r]}, -1')
                A(f's_mul_i32 {sT0}, {sI}, {2*72*4096}\ns_lshl_b32 {sT1}, {sJ}, 11\ns_add_u32 {sT0}, {sT0}, {sT1}\ns_lshl_b32 {sT1}, {sWQ}, 14\ns_add_u32 {sT0}, {sT0}, {sT1}')
                A(f's_add_u32 {sT0}, {sT0}, {ACT + 56*4096}\ns_add_u32 {sT1}, {sT0}, {72*4096}')
                for so in (sT0, sT1):
                    for o_ in (0, 1024): tks = C.vm(f'buffer_store_dwordx4 {sn}, {v_l16}, {sWS}, {so} offen offset:{o_} sc1')
            if k == OPT['gat']:
                for s in ldg: tkg = C.vm(s)
            touch(tl[k])
            if 6 - nm <= k < 6: B.step()
            if k == 6: B.free += [X0, X1]
            if k == 7: B.free += [Y0, Y1]
            if k in (6, 7) and (k != OPT['chk'] or OPT['qf']): B.quota(OPT[f'q{k}{self.typ}'])
            if k == OPT['chk']:
                C.wait(tkg)
                def chk():
                    for i in range(4): quad_diff(A, gq[i], tm[i], tm[4+i])
                    A(f'v_bitop3_b32 {tm[4]}, {sg[2]}, {sg[3]}, {sTag} bitop3:0x7e')
                    A(f'v_or3_b32 {tm[0]}, {tm[0]}, {tm[1]}, {tm[2]}\nv_or3_b32 {tm[0]}, {tm[0]}, {tm[3]}, {tm[4]}\nv_cmp_ne_u32 vcc, 0, {tm[0]}\ns_and_b64 s[4:5], vcc, exec')
                poll(A, '\n'.join(ldg), chk, first_loaded=True, sleep=OPT['slp'])
                L = []
                for i in range(4):
                    for r in range(4): L.append(f'v_and_b32 {gq[i][r]}, 0xffffff00, {gq[i][r]}')
                x = gq[0]
                for r in range(4): L += [f'v_add_f32 {x[r]}, {x[r]}, {gq[1][r]}', f'v_add_f32 {gq[2][r]}, {gq[2][r]}, {gq[3][r]}', f'v_add_f32 {x[r]}, {x[r]}, {gq[2][r]}']
                L += [f'v_permlane32_swap_b32 {x[0]}, {x[2]}', f'v_permlane32_swap_b32 {x[1]}, {x[3]}', f'v_add_f32 {x[0]}, {x[0]}, {x[2]}', f'v_add_f32 {x[1]}, {x[1]}, {x[3]}',
                      f'v_permlane16_swap_b32 {x[0]}, {x[1]}', f'v_add_f32 {x[0]}, {x[0]}, {x[1]}']
                L += [f's_lshl_b32 {sT0}, {sWQ}, 8', f's_add_u32 {sT0}, {sT0}, {L_CS}', f'v_lshl_add_u32 {ga}, {l}, 2, {sT0}', f'ds_write_b32 {ga}, {x[0]}']
                L += [f's_lshl_b32 {sT1}, {sWQ}, 7', f's_add_u32 {sT1}, {sT1}, {L_NM}', f'v_lshrrev_b32 {sa}, 2, {sa}', f'v_add_u32 {sa}, {sT1}, {sa}',
                      f'v_sub_f32 {sg[0]}, 0, {sg[0]}', f'v_mul_f32 {sg[2]}, {f2u(-LOG2E if F else LOG2E):#x}, {sg[1]}',
                      f'ds_write_b32 {sa}, {sg[0]}', f'ds_write_b32 {sa}, {sg[2]} offset:512']
                if not F: L.append(f'ds_write_b32 {sa}, {sg[1]} offset:1024')
                emit_sched(A, L)
                if k in (6, 7) and not OPT['qf']: B.quota(OPT[f'q{k}{self.typ}'])
            if k == 0: stampg(A, 8)
            if k == 1: stampg(A, 10)
            if k < 8:
                lg = k == 0 or (k == 1 and OPT['r3'] & 1) or k >= 6 - nm or (k == OPT['pk'] and not F)
                if lg and stl[k]: A('s_waitcnt lgkmcnt(0)'); lg = False
                stouch(A, sc[0], sc[0] + stl[k]); sc[0] += stl[k]
                if k < 7: C.wait(self.stok[k+1], 'lgkmcnt(0)' if lg else '')
                elif OPT['snt'] and not F: C.wait(tks, 'lgkmcnt(0)')
                else: A('s_waitcnt lgkmcnt(0)')
                G.done = G.n
                if k == 0: stampg(A, 9)
                if k == 3: stampc(A, 3)
                stampb(A, 2 + k)
                A('s_barrier')
                if k == 3: stampc(A, 4)
        stamp(A, 5)
        if OPT['lprio']: A('s_setprio 0')
        if OPT['dbg'] & (1 if F else 2):
            A(f's_mov_b32 {sW2[2]}, 0\ns_mov_b32 {sWO[2]}, 0')
        if OPT['dbg'] & 4 and F:
            A('s_sleep 60')
        B.wleft = list(range(4 - OPT['wol' + self.typ], 4))
        def wo(ks):
            for k in ks:
                if k not in B.wleft:
                    for f in B.wo_list(k): f()
        A(f's_and_b32 {sF[2]}, {sI2}, 2')
        B.dep = OPT['dep' + self.typ]
        wob = OPT['wob'] if F else OPT['wobA']
        stampe(A, 1)
        mark = len(A.L)
        B.flush()
        while B.next < wob and B.step():
            if B.next % 2 == 1 and B.next > 2: stampe(A, 2 + (B.next-3)//2)
        wo([0, 1])
        stampe(A, 8)
        while B.step(): pass
        wo([2, 3])
        if OPT['ah']:
            idx = [i for i in range(mark, len(A.L)) if A.L[i].startswith('buffer_load')]
            i = idx[-OPT['ah']] + 1
            assert not any('lgkmcnt' in x for x in A.L[i:])
            A.L[i:i] = [f's_mov_b32 {sE[2]}, 0', f's_atomic_add {sE[2]}, {sWS[0:2]}, {sF[1]} glc', f's_add_u32 {sE[3]}, {sTag}, 4']
        stampe(A, 9)
        assert not B.fly
        stamp(A, 6)
        return B

def p2_L(A, B0, typ):
    l = lane; C = Ctx(A); G = LG(A)
    B = BP(A, C, G); B.slot = dict(B0.slot); B.tokwo = 0
    stamp(A, 7); stampe(A, 10); stamph(A, 1)
    if OPT['ah']:
        lk = A.lab('H1')
        A(f's_waitcnt lgkmcnt(0)\ns_cmp_eq_u32 {sE[2]}, {sE[3]}\ns_cbranch_scc1 {lk}')
    ppoll(A, sF[1], 4, OPT['Dh'], 44, OPT['slph'])
    if OPT['ah']: A(f'{lk}:')
    WO_ = OPT['wo'] and typ == 'A'
    if WO_ and not OPT['ns0']: lds_spin(A, pm, 8, 64, ACCL[0])
    stamp(A, 9); stampf(A, 0); stamph(A, 2)
    tok = {}
    TM = OPT['tm']
    assert not TM or (OPT['lord'] in (3, 4) and RSL[7] == 1 and RSL[6] == 0)
    sOf = lambda s: {12: sXo, 13: sHo}.get(s, sE[1]) if TM else sE[1]
    abuf = lambda s: {12: RS[1], 13: RS[RSL[8]]}.get(s, RS[8 + s % 3]) if TM else RS[8 + s % 3]
    def a_off(s): return [nib(sOf(s), s), f's_lshl_b32 {sOf(s)}, {sOf(s)}, 12', f's_add_u32 {sOf(s)}, {sOf(s)}, {sAb}']
    def ld_a(s, tt):
        tok[(s, tt)] = C.vm(f'buffer_load_dwordx4 {abuf(s)[4*tt:4*tt+4]}, {va[tt]}, {sWS}, {sOf(s)} offen ' + ['sc1', '', 'sc0', 'nt', 'sc0 sc1'][OPT['hld']])
    la = OPT['la' + typ]
    if TM: seq = [(s, tt) for s in range(11) for tt in range(4)] + [(s, tt) for tt in (1, 2, 3, 0) for s in (11, 12, 13)]
    else: seq = [(s, tt) for s in range(14) for tt in ([1, 2, 3, 0] if s == 13 else [0, 1, 2, 3])]
    N0 = 4*OPT['ns0'] if WO_ else 0
    when = [max(-1, n - OPT['la0']) if n < N0 else max(N0 - 1, n - la) for n in range(56)]
    first = {}
    for n, (s, tt) in enumerate(seq): first.setdefault(s, n)
    for n, (s, tt) in enumerate(seq):
        if TM and s == 12: assert when[n] >= 31
        elif TM and s == 13: assert when[n] >= 35
        elif s >= 3: assert when[n] >= seq.index((s - 3, tt))
    def issue_after(m, S=None):
        for n in range(56):
            if when[n] == m:
                if first[seq[n][0]] == n and S != seq[n][0]:
                    for x in a_off(seq[n][0]): A(x)
                ld_a(*seq[n])
    issue_after(-1)
    chk_at = {}
    for p in range(1, len(PH)):
        w = when[first[2*PH[p-1]]]; assert w >= 0
        chk_at[w // 4 if w != N0 - 1 else 'b'] = p
    asy_at = {}
    prev = 0
    for st_, p in sorted(chk_at.items(), key=lambda x: x[1]):
        st_ = N0//4 if st_ == 'b' else st_
        asy_at[max(prev, st_ - OPT['pa3'])] = p; prev = st_
    assert len(asy_at) == len(chk_at) == len(PH) - 1
    A(f's_add_u32 {sE[3]}, {sTag}, 4')
    G.done = G.n
    tokB = {k: 0 for k in range(8)}
    Q = []; X = []
    for k in B0.wleft: X += B.wo_list(k)
    sig = False
    wa, t, a, vm_ = [RS[0][i] for i in range(4)]; ra = [RS[0][4+i] for i in range(3)]; c = RS[0][8:12]; W = []
    tail = [f's_add_u32 {sT0}, {sLb2}, {Y0}', f'v_add_u32 {wa}, {sT0}, {v_l16}']
    for sg in range(1, 4):
        tail += [f's_sub_u32 {sT0}, {sWQ}, {sg}', f's_and_b32 {sT0}, {sT0}, 3', f's_lshl_b32 {sT0}, {sT0}, 12', f's_add_u32 {sT0}, {sT0}, {Y0 + 16384*(sg-1)}', f'v_add_u32 {ra[sg-1]}, {sT0}, {v_l16}']
    tail += [f'v_mov_b32 {c[0]}, {f2u(-LOG2E):#x}', f'v_mov_b32 {c[1]}, {c[0]}', f'v_mov_b32 {c[2]}, 1.0', f'v_mov_b32 {c[3]}, 1.0', f'v_add_u32 {a}, {sLb2}, {v_l16}', f'v_mov_b32 {vm_}, {L_TAG}', f'v_mov_b32 {t}, 1']
    def check(p):
        lk = A.lab('H2')
        G.all()
        A(f's_cmp_eq_u32 {sE[2]}, {sE[3]}\ns_cbranch_scc1 {lk}')
        A(f's_mov_b32 {sE[4]}, {sT0}\ns_mov_b32 {sE[5]}, {sT1}')
        spoll(A, f'{sF[1]} offset:{PHO[p]}', 4, OPT['slph'])
        A(f's_mov_b32 {sT0}, {sE[4]}\ns_mov_b32 {sT1}, {sE[5]}')
        A(f'{lk}:')
    nm_ = 0; wrdy = []
    for g in range(14):
        if OPT['lp2'] and g == OPT['lpr']: A('s_setprio 0')
        if OPT['lp2'] and g == OPT['lps' + typ]: A(f's_setprio {OPT["lp2"]}')
        def asy():
            A(f's_mov_b32 {sE[2]}, 0\ns_atomic_add {sE[2]}, {sWS[0:2]}, {sF[1]} offset:{PHO[asy_at[g]]} glc')
        if g in asy_at and chk_at.get(g) == asy_at[g]: asy()
        if g in chk_at: check(chk_at[g])
        if g in asy_at and chk_at.get(g) != asy_at[g]: asy()
        nx = 0
        for n in range(4*g, 4*g + 4):
            s, tt = seq[n]
            Bk = RS[RSL[s]]; Ak = abuf(s)
            G.need(tokB[LOAD.index(s)], 0)
            nxt = [m for m in range(56) if when[m] == n]
            Ss = seq[nxt[0]][0] if (len(nxt) == 1 and first[seq[nxt[0]][0]] == nxt[0]) else None
            S = a_off(Ss) if Ss is not None else []
            C.wait(tok[(s, tt)])
            if not sig and not X and tok[(s, tt)] > B.tokwo and (g == 0 or g > 4):
                if g == 0: A(f's_mov_b64 exec, 1\nds_add_u32 {pm}, {p1} offset:4\ns_mov_b64 exec, -1')
                else: A(f'v_mov_b32 {vb0}, {L_TAG}\nv_mov_b32 {vb1}, 1\ns_mov_b64 exec, 1\nds_add_u32 {vb0}, {vb1} offset:4\ns_mov_b64 exec, -1')
                G.n += 1; sig = True; stamph(A, 3)
            for q in range(4):
                ac = ACCL[16*tt+4*q:16*tt+4*q+4]
                A(f'v_mfma_f32_16x16x32_bf16 {ac}, {Bk[4*q:4*q+4]}, {Ak[4*tt:4*tt+4]}, {ac if s else 0}')
                nm_ += 1
                if S: A(S.pop(0))
                elif q == 1 and X and nx < (4 if g == 3 else OPT['wper']): X.pop(0)(); nx += 1
                if Q and q < 3:
                    tokB[qk] = G.ds(Q.pop(0))
                elif g >= 10 and tail: A(tail.pop(0))
                if s == 13 and tt:
                    W.append(f'ds_write_b128 {wa}, {ac} offset:{16384*(tt-1) + 1024*q}')
                    wrdy.append(max(nm_ + 4 + OPT['wdel'], (wrdy[-1] + OPT['wsp']) if wrdy and TM else 0))
                if W and nm_ >= wrdy[len(wrdy) - len(W)]:
                    assert not tail or tail[0].startswith('v_mov') or 'v_add' in tail[0] or True
                    A(W.pop(0))
            if n == N0 - 1:
                A(f'v_mov_b32 {abuf(s)[0]}, {L_TAG}')
                A(f's_mov_b32 {sE[4]}, {sT0}')
                lds_spin(A, abuf(s)[0], 8, 64, abuf(s)[1]); G.done = G.n
                A(f's_mov_b32 {sT0}, {sE[4]}')
                if 'b' in chk_at: check(chk_at['b'])
                stamph(A, 9)
            issue_after(n, Ss)
            if OPT['gs'] and when[OPT['gs']] == n:
                assert not X and g > 4
                A(f'v_mov_b32 {vb0}, {L_TAG}\nv_mov_b32 {vb1}, 1\ns_mov_b64 exec, 1\nds_add_u32 {vb0}, {vb1} offset:12\ns_mov_b64 exec, -1')
                G.n += 1; stamph(A, 4)
        s = g
        assert not Q
        if s in (0, 1, 3, 5, 7, 9, 11, 13): stampf(A, 1 + (s+1)//2)
        if s == 2:
            while len(X) % 4: X.pop(0)()
            G.need(tokB[8]); X = B.dma_list(13, B.slot[8]) + X
        if s == 3:
            while len(X) % 4: X.pop(0)()
        if s + 8 < 13: qk = s + 8; Q = B.trl(qk)
        if s == 8:
            assert tok[(8, 3)] > B.tok[13]
            qk = 13; Q = B.trl(13)
    assert sig and not tail and not X
    stamph(A, 5)
    for x in W: A(x)
    stamp(A, 10); stamph(A, 6)
    if OPT['lpt']: A(f's_setprio {OPT["lpt"]}')
    A(f's_mov_b64 exec, 1\nds_add_u32 {vm_}, {t} offset:8\ns_mov_b64 exec, -1')
    lds_spin(A, vm_, 8, 68 if WO_ else 4, t)
    stampf(A, 9); stamph(A, 7)
    for u in range(4):
        for sg in range(3): A(f'ds_read_b128 {RS[2+sg][4*u:4*u+4]}, {ra[sg]} offset:{1024*u}')
    P = ACCL[0:16]; e = ACCL[16:32]
    if OPT['npk']:
        for u in range(4):
            A(f's_waitcnt lgkmcnt({9 - 3*u + u})')
            L = []
            for i in range(4*u, 4*u+4):
                L += [f'v_add_f32 {P[i]}, {P[i]}, {RS[2][i]}', f'v_add_f32 {RS[3][i]}, {RS[3][i]}, {RS[4][i]}', f'v_add_f32 {P[i]}, {P[i]}, {RS[3][i]}',
                      f'v_mul_f32 {e[i]}, {P[i]}, {c[0]}', f'v_exp_f32 {e[i]}, {e[i]}', f'v_add_f32 {e[i]}, 1.0, {e[i]}', f'v_rcp_f32 {e[i]}, {e[i]}', f'v_mul_f32 {e[i]}, {e[i]}, {P[i]}']
            L.append(f'ds_write_b128 {a}, {e[4*u:4*u+4]} offset:{X0 + 1024*u}')
            emit_sched(A, L)
        L = []
    else:
        for u in range(4):
            A(f's_waitcnt lgkmcnt({9 - 3*u})')
            for i in (2*u, 2*u+1):
                A(f'v_pk_add_f32 {P[2*i:2*i+2]}, {P[2*i:2*i+2]}, {RS[2][2*i:2*i+2]}\nv_pk_add_f32 {RS[3][2*i:2*i+2]}, {RS[3][2*i:2*i+2]}, {RS[4][2*i:2*i+2]}')
            for i in (2*u, 2*u+1): A(f'v_pk_add_f32 {P[2*i:2*i+2]}, {P[2*i:2*i+2]}, {RS[3][2*i:2*i+2]}')
        L = []
        for u in range(4):
            for i in (2*u, 2*u+1): L.append(f'v_pk_mul_f32 {e[2*i:2*i+2]}, {P[2*i:2*i+2]}, {c[0:2]}')
            for i in range(4*u, 4*u+4): L.append(f'v_exp_f32 {e[i]}, {e[i]}')
            for i in (2*u, 2*u+1): L.append(f'v_pk_add_f32 {e[2*i:2*i+2]}, {e[2*i:2*i+2]}, {c[2:4]}')
            for i in range(4*u, 4*u+4): L.append(f'v_rcp_f32 {e[i]}, {e[i]}')
            for i in (2*u, 2*u+1): L.append(f'v_pk_mul_f32 {e[2*i:2*i+2]}, {e[2*i:2*i+2]}, {P[2*i:2*i+2]}')
            L.append(f'ds_write_b128 {a}, {e[4*u:4*u+4]} offset:{X0 + 1024*u}')
    emit_sched(A, L)
    A('s_waitcnt lgkmcnt(0)')
    stamp(A, 8); stampf(A, 10); stamph(A, 8)
    A('s_setprio 0\ns_barrier')

def kernel(A):
    K = NAME + '_kernel'
    l = lane
    A(f'.globl {K}\n.p2align {OPT["pa"]}\n.type {K},@function\n{K}:')
    if OPT['stamp']: A(f's_memrealtime s[72:73]' if OPT['stamp'] in (1, 2, 9) else 's_memtime s[72:73]')
    A(f's_load_dwordx2 {sX[0:2]}, s[0:1], 0')
    A(f's_bitcmp1_b32 s2, 6\ns_cselect_b32 s7, 40, 8')
    A(f's_load_dwordx2 {sW[0:2]}, s[0:1], s7')
    A(f's_load_dwordx2 {sWS[0:2]}, s[0:1], 72')
    if OPT['warm']:
        A(f'v_lshlrev_b32 v2, {OPT["warm"]}, v0\ns_waitcnt lgkmcnt(0)')
        stampg(A, 1)
        A(f'global_load_dword v255, v2, {sX[0:2]}\nglobal_load_dword v255, v2, {sW[0:2]}')
    A(f's_movk_i32 {sLrow}, 3072\ns_cmovk_i32 {sLrow}, 3584\ns_movk_i32 {sWb}, 128\ns_cmovk_i32 {sWb}, 448\ns_cselect_b32 s3, 2, 0')
    A('s_lshr_b32 s4, s2, 8\ns_cbranch_scc1 K_done')
    rho, t, k = R('v',13,1), R('v',14,1), R('v',15,1)
    A(f'v_readfirstlane_b32 {sLb}, v0\ns_lshr_b32 s5, s2, 3')
    if OPT['touch'] & 1:
        A(f's_getpc_b64 s[6:7]\nL_pc:')
        A(f's_lshl_b32 s4, s5, 11\nv_lshl_add_u32 v2, v0, 2, s4\nv_min_u32 v2, K_done-L_pc, v2')
        A(f'global_load_dword v255, v2, s[6:7]')
    fx, fw = OPT['flip'] & 2, OPT['flip'] & 1
    sLx, sLw = sE[4], sE[5]
    A(f'v_lshrrev_b32 {t}, 4, v0\nv_xor_b32 {k}, {t}, v0\nv_and_b32 {k}, 7, {k}\nv_lshlrev_b32 {k}, 4, {k}\nv_lshrrev_b32 {rho}, 3, v0')
    A(f'v_lshl_add_u32 {vx0}, {rho}, 10, {k}')
    A(f's_and_b32 s4, s5, 7\ns_and_b32 s6, s2, 1\ns_lshl3_add_u32 {sI}, s6, s4\ns_lshr_b32 s6, s2, 6\ns_lshr_b32 s7, s2, 1')
    assert OPT['rot'] == 4
    if fx: A(f's_lshr_b32 s5, s2, 2\ns_and_b32 s5, s5, 1\ns_add_u32 s5, s5, s4\ns_lshl1_add_u32 s5, s6, s5')
    else: A(f's_add_u32 s5, s4, s6')
    A(f's_and_b32 s5, s5, 3\ns_xor_b32 {sRot}, s7, s2\ns_and_b32 {sRot}, {sRot}, 1\ns_lshl2_add_u32 {sRot}, {sRot}, s5')
    A(f's_and_b32 s7, s7, 3\ns_lshl2_add_u32 {sJJ}, s7, s6')
    b0 = phys(0)
    if OPT['ent']:
        assert not fx
        st0 = sHo
        A(f's_and_b32 {st0}, {sRot}, {4 if OPT["r3"] & 1 else 7}')
        A(f's_lshl_b32 {sXb}, {sI}, 17\ns_lshl_b32 {sXo}, {st0}, 7\ns_add_u32 {sXo}, {sXo}, {sXb}')
        A(f's_lshl_b32 {sX[2]}, 1, 21\ns_lshl_b32 {sX[3]}, 1, 17\ns_lshl_b32 {sLb}, {sLb}, 4')
        A(f'v_add_u32 {vx1}, 0x10000, {vx0}')
        A(f'v_lshlrev_b32 {v_l16}, 4, v0\nv_and_b32 v9, 0xfffffe00, {v_l16}\nv_add_u32 v9, v9, {v_l16}\ns_lshl_b32 {sE[0]}, {sJJ}, 13\ns_add_u32 {sE[0]}, {sE[0]}, {sXb}')
        A(f's_lshr_b32 {sJ}, {sJJ}, 1')
        A(f'v_bfi_b32 {k}, 2, {rho}, {t}\nv_and_b32 {k}, 6, {k}\nv_xor_b32 {k}, {k}, v0\nv_and_b32 {k}, 7, {k}\nv_lshlrev_b32 {k}, 4, {k}')
        if fw: A(f's_and_b32 s5, s2, 32\nv_xor_b32 {rho}, s5, {rho}\ns_lshl_b32 s5, s5, 7\ns_xor_b32 {sLw}, {sLb}, s5')
        else: A(f's_mov_b32 {sLw}, {sLb}')
        A(f'v_mad_u32_u24 {vw}, {rho}, {sLrow}, {k}')
        A(f's_mul_i32 {sWb}, {sWb}, {sJ}\ns_add_u32 {sWb}, {sWb}, 64\ns_and_b32 {sWb}, {sWb}, 0xffffff80')
        A(f's_lshl_b32 {sW[2]}, {sLrow}, 9\ns_mov_b32 {sW[3]}, {sX[3]}\ns_lshl_b32 {sT0}, {st0}, 6\ns_mul_i32 {sT0}, {sT0}, {sLrow}\ns_add_u32 {sWo}, {sT0}, {sWb}')
        A(f's_cmp_eq_u32 s3, 0\ns_cselect_b32 {sT0}, 10, 7\ns_lshl_b32 {sT0}, 1, {sT0}\ns_add_u32 {sE[3]}, {sWo}, {sT0}')
        A(f's_add_u32 {sLw}, {sLw}, {b0+24576}\ns_movk_i32 {sT1}, 8192')
        if OPT['r3'] & 4: A(f's_bitcmp1_b32 s2, 4\ns_cselect_b32 s5, -1, 1\ns_mul_i32 {sT0}, {sT0}, s5\ns_mul_i32 {sT1}, {sT1}, s5')
        A(f's_sub_u32 {sE[1]}, {sE[3]}, {sT0}\ns_add_u32 {sE[2]}, {sE[3]}, {sT0}\ns_lshr_b32 {sWV}, {sLb}, 10')
        xl = [f's_add_u32 m0, {sLb}, {b0}\ns_nop 0\nbuffer_load_dwordx4 {vx0}, {sX}, {sXo} offen lds', f's_add_u32 m0, {sLb}, {b0+8192}\ns_nop 0\nbuffer_load_dwordx4 {vx1}, {sX}, {sXo} offen lds']
        wl = [f's_sub_u32 m0, {sLw}, {sT1}\ns_nop 0\nbuffer_load_dwordx4 {vw}, {sW}, {sE[1]} offen lds', f's_mov_b32 m0, {sLw}\ns_nop 0\nbuffer_load_dwordx4 {vw}, {sW}, {sE[3]} offen lds',
              f's_add_u32 m0, {sLw}, {sT1}\ns_nop 0\nbuffer_load_dwordx4 {vw}, {sW}, {sE[2]} offen lds']
        A(f's_cmp_ge_u32 {sLb}, 4096')
        stampg(A, 1)
        A('s_waitcnt lgkmcnt(0)')
        stampg(A, 2)
        A('s_cbranch_scc1 K_norow')
        A(f's_load_dword {sTag}, {sWS[0:2]}, {EPOCH}')
        A(f'buffer_load_dwordx4 {xrow[0:4]}, v9, {sX}, {sE[0]} offen\nbuffer_load_dwordx4 {xrow[4:8]}, v9, {sX}, {sE[0]} offen offset:512')
        A('K_norow:')
        if OPT['r3'] & 2:
            A(f's_bitcmp1_b32 {sRot}, 0\ns_cbranch_scc1 K_wx')
            for x in xl + wl: A(x)
            A('s_branch K_xw\nK_wx:')
            for x in wl + xl: A(x)
            A('K_xw:')
        else:
            for x in xl + wl: A(x)
    else:
        A(f's_lshl_b32 {sXb}, {sI}, 17\ns_lshl_b32 {sXo}, {sRot}, 7\ns_add_u32 {sXo}, {sXo}, {sXb}')
        A(f's_lshl_b32 {sX[2]}, 1, 21\ns_lshl_b32 {sX[3]}, 1, 17\ns_lshl_b32 {sLb}, {sLb}, 4')
        if fx:
            A(f's_lshr_b32 s5, s2, 7\ns_lshl_b32 s7, s5, 15\nv_xor_b32 {vx0}, s7, {vx0}\ns_lshl_b32 s5, s5, 12\ns_xor_b32 {sLx}, {sLb}, s5')
        else: sLx = sLb
        A(f'v_add_u32 {vx1}, 0x10000, {vx0}\ns_add_u32 m0, {sLx}, {b0}')
        A(f'v_lshlrev_b32 {v_l16}, 4, v0\nv_and_b32 v9, 0xfffffe00, {v_l16}\nv_add_u32 v9, v9, {v_l16}\ns_lshl_b32 {sE[0]}, {sJJ}, 13\ns_add_u32 {sE[0]}, {sE[0]}, {sXb}')
        A(f's_cmp_ge_u32 {sLb}, 4096')
        if not OPT['warm']: stampg(A, 1)
        A('s_waitcnt lgkmcnt(0)')
        stampg(A, 2)
        A('s_cbranch_scc1 K_norow')
        A(f's_load_dword {sTag}, {sWS[0:2]}, {EPOCH}')
        A(f'buffer_load_dwordx4 {xrow[0:4]}, v9, {sX}, {sE[0]} offen\nbuffer_load_dwordx4 {xrow[4:8]}, v9, {sX}, {sE[0]} offen offset:512')
        A('K_norow:')
        A(f'buffer_load_dwordx4 {vx0}, {sX}, {sXo} offen lds')
        A(f's_add_u32 m0, {sLx}, {b0+8192}\ns_lshr_b32 {sJ}, {sJJ}, 1\nbuffer_load_dwordx4 {vx1}, {sX}, {sXo} offen lds')
        A(f'v_bfi_b32 {k}, 2, {rho}, {t}\nv_and_b32 {k}, 6, {k}\nv_xor_b32 {k}, {k}, v0\nv_and_b32 {k}, 7, {k}\nv_lshlrev_b32 {k}, 4, {k}')
        if fw: A(f's_and_b32 s5, s2, 32\nv_xor_b32 {rho}, s5, {rho}\ns_lshl_b32 s5, s5, 7\ns_xor_b32 {sLw}, {sLb}, s5')
        else: sLw = sLb
        A(f'v_mad_u32_u24 {vw}, {rho}, {sLrow}, {k}')
        A(f's_mul_i32 {sWb}, {sWb}, {sJ}\ns_add_u32 {sWb}, {sWb}, 64\ns_and_b32 {sWb}, {sWb}, 0xffffff80')
        A(f's_lshl_b32 {sW[2]}, {sLrow}, 9\ns_mov_b32 {sW[3]}, {sX[3]}\ns_lshl_b32 {sT0}, {sRot}, 6\ns_mul_i32 {sT0}, {sT0}, {sLrow}\ns_add_u32 {sWo}, {sT0}, {sWb}')
        A(f's_add_u32 m0, {sLw}, {b0+16384}\ns_cmp_eq_u32 s3, 0\nbuffer_load_dwordx4 {vw}, {sW}, {sWo} offen lds')
        A(f's_cselect_b32 {sE[2]}, 10, 7\ns_lshl_b32 {sE[2]}, 1, {sE[2]}\ns_add_u32 {sE[3]}, {sWo}, {sE[2]}')
        A(f's_add_u32 m0, {sLw}, {b0+24576}\ns_add_u32 {sE[2]}, {sE[3]}, {sE[2]}\nbuffer_load_dwordx4 {vw}, {sW}, {sE[3]} offen lds')
        A(f's_add_u32 m0, {sLw}, {b0+32768}\ns_lshr_b32 {sWV}, {sLb}, 10\nbuffer_load_dwordx4 {vw}, {sW}, {sE[2]} offen lds')
    A(f'v_and_b32 v1, 63, v0\nv_lshlrev_b32 {v_l16}, 4, v1')
    if OPT['stamp']:
        for i in range(3 if OPT['stamp'] == 7 else 1, NS): A(f's_mov_b64 s[{72+2*i}:{73+2*i}], 0')
    A(f's_lshl_b32 {sWS[2]}, 1, 24\ns_mov_b32 {sWS[3]}, {sX[3]}')
    A(f's_and_b32 {sWQ}, {sWV}, 3\ns_lshr_b32 s4, {sWV}, 2\ns_add_u32 s3, s3, s4')
    stampg(A, 3)
    A('s_cmp_eq_u32 s3, 1\ns_cbranch_scc1 K_LA\ns_cmp_eq_u32 s3, 0\ns_cbranch_scc1 K_CA\ns_cmp_eq_u32 s3, 2\ns_cbranch_scc1 K_CF')
    Bs = []
    for typ in 'FA':
        A(f'K_L{typ}:')
        Bs.append(LW(A, typ).run())
        p2_L(A, Bs[-1], typ); A('s_branch K_end')
    A('K_CF:')
    c = CW(A, 'F'); c.prologue(); c.main(); c.epi_F()
    A('s_branch K_C2')
    A('K_CA:')
    c = CW(A, 'A'); c.prologue(); c.main(); c.epi_A()
    A('K_C2:')
    p2_C(A)
    A('K_end:')
    stamp_out(A)
    A('K_done:\ns_endpgm')

def add_stubs(body):
    dummy = [f'WS_{t}{c}:' for t in 'FA' for c in range(4)]
    S = sizes_of(body + dummy)
    reg = None; off = 0x300; n = 0; page = 0
    marks = []; nb = {}
    for k, l in enumerate(body):
        if l.endswith(':'):
            if l[:-1] in ('K_LF', 'K_LA', 'K_CF', 'K_CA', 'K_C2', 'K_end'):
                reg = l[2:-1] if l != 'K_end:' else None
                if reg == 'C2': marks.append((k + 1, reg)); off += 8
                if reg == 'LA' and OPT['ia']:
                    body[k] = '.p2align 12\n' + l; off = (off + 4095) & ~4095; page = off >> 10
            continue
        if l.startswith('.'): continue
        if l == 's_barrier': nb[reg] = nb.get(reg, 0) + 1
        fine = reg and ((OPT['stub'] >= 2 and reg in ('CF', 'CA') and 1 <= nb.get(reg, 0) < OPT['stbe']) or (OPT['stub'] >= 3 and reg[0] == 'L' and 1 <= nb.get(reg, 0) < 9))
        if off >> 10 != page:
            pg = off >> 12 != page >> 2
            page = off >> 10
            if reg and (pg or fine) and (reg == 'C2' or nb.get(reg, 0) >= 1): marks.append((k, reg)); off += 8
        off += S[n]; n += 1
    lst = {r: [k for k, rr in marks if rr == r] for r in ('LF', 'LA', 'CF', 'CA', 'C2')}
    print('stubs', {r: len(v) for r, v in lst.items()})
    ins = {}
    for k in lst['C2']: ins[k] = [f'WS_{k}:', 's_cbranch_execz K_wret', 's_nop 0']
    for t in 'FA':
        own = lst['C' + t] + lst['L' + t]
        ch = [own[c::4] for c in range(4)]
        for i, k in enumerate(lst['C2']): ch[3 - i].append(k)
        for c in range(4):
            for i, k in enumerate(ch[c]):
                if k not in ins: ins[k] = [f'WS_{k}:', f's_cbranch_execz ' + (f'WS_{ch[c][i+1]}' if i + 1 < len(ch[c]) else f'WR_{t}'), 's_nop 0']
            ins[ch[c][0]].insert(0, f'WS_{t}{c}:')
    out = []
    for k, l in enumerate(body):
        out += ins.get(k, []); out.append(l)
    z = False
    for l in out:
        if l == 's_mov_b64 exec, 0': z = True
        elif l.startswith('s_mov_b64 exec'): z = False
        assert not (z and 'execz' in l)
    return out
def build():
    A = Asm(); kernel(A)
    body = fix_hazards(A.L, verbose=True)
    dummy = [f'WS_{t}{c}:' for t in 'FA' for c in range(4)] if OPT['stub'] else []
    if OPT['al']: body = align8(body + dummy, verbose=True)
    if OPT['stub']: body = add_stubs(body[:-8])
    K = NAME + '_kernel'
    hdr = ['; @launch grid=(256,1,1) block=(512,1,1) lds=163840', '.amdgcn_target "amdgcn-amd-amdhsa--gfx950"', '.text']
    tail = ['.section .rodata,"a"', '.p2align 6', f'''.amdhsa_kernel {K}
  .amdhsa_next_free_vgpr 256
  .amdhsa_next_free_sgpr 102
  .amdhsa_accum_offset 256
  .amdhsa_group_segment_fixed_size 0
  .amdhsa_kernarg_size 80
  .amdhsa_user_sgpr_count 2
  .amdhsa_user_sgpr_kernarg_segment_ptr 1
  .amdhsa_system_sgpr_workgroup_id_x 1
.end_amdhsa_kernel''']
    return '\n'.join(hdr + body + tail) + '\n'
if __name__ == '__main__':
    open(sys.argv[1], 'w').write(build())
```

```python
import sys, struct
from asmlib import *
NAME = 'recurrent_scan__linear_kernel_hedgehog__dense_activation_silu__prompt'
SZ_X, SZ_QKV, SZ_PHI, SZ_WO, SZ_W1, SZ_W2, SZ_OUT, SZ_WS = 2048*512*2, 512*1536*2, 32*16*16*2, 512*512*2, 512*1792*2, 1792*512*2, 2048*512*2, 0x1000000
EPOCH, STAT, KT, CSP, CNT, ACT, KP = 0, 0x30000, 0x10000, 0x40000, 0x80000, 0x100000, 0xB00000
OOB = 0x40000000
SB = 45056
def phys(s): return (2 - s % 3) * SB
X0, X1, WOB, Y0, Y1, TS, MISC = 0, 16384, 32768, 102400, 118784, 135168, 151552
L_NM, L_RL, L_R, L_CS, L_TAG = MISC, MISC+512, MISC+1024, MISC+1536, MISC+2560
L_SG, L_PHI = MISC+2624, MISC+4096
JUNK = MISC + 8192
LOG2E = 1.4426950408889634
def f2u(x): return struct.unpack('<I', struct.pack('<f', x))[0]
OPT = dict(stamp=0, touch=33, spin=1<<16, slp=2, hold=3, keep=8, nmA=0, nmF=0, n6A=2, n7A=2, n6F=2, n7F=2, sp0=6, wob=4, wobA=4, tlA=0, tlF=0, gat=5, chk=7, opoll=0, lprio=1, brot=1, npre=9, vmgap=64, dbg=0, hst=0, rot=4, lord=4, r2=0, j3=0, c3=6, flip=1, warm=0, qf=0, tk=2, pk=0, spm=3, stk=1, q6A=4, q7A=8, q6F=12, q7F=8, sp1=99, laA=10, laF=11, wdel=2, lag=3, wolA=0, wolF=2, wper=4, cprio=0, opk=1, depA=7, depF=8, al=1, ack1=0, ack2=0, slpa=0, slph=2, slpo=4, ost=1, hld=0, old=0, j3k=1, j3p=0, st='0000000', stl=0, stcp=0, sti=0, c3F=0, ph0=0, stub=1, stc=0, sc3=0, pa=12, ia=1, stbe=9, kva=1, lp2=2, xr=0, ph=2467, pa3=3, gs=55, ah=3, ahA=8, pwg=1, lr=0, xu=1, hs=0, psc=1, nsl=5, splA='6ff36f', splF='6ff36f', t64=1, holdF=2, lpr=14, lpt=2, lpsA=8, lpsF=3, wo=0, snt=0, eo=1, la0=4, ns0=0, tm=1, wsp=3, npk=1, r3=7, ent=1, e1=5, sw=1, sk=6, tto=0, qa=2, qb=1, Rk=1, Dk=0, Ro=1, Do=0, Rh=1, Dh=0, psl=5)
for a in sys.argv[2:]:
    k, v = a.split('='); assert k in OPT, k; OPT[k] = v if k in ('st', 'splA', 'splF') else int(v)

sX, sW, sWS, sPHI, sW2, sOUT, sWO = [R('s', 8+4*i, 4) for i in range(7)]
(sI, sJ, sWV, sWQ, sRot, sT0, sT1, sXo, sWo, sHo, sXb, sWb, sHb, sLb, sTag, sSpin,
 sI2, sJ2, sCur, sCurA, sBb, sAb, sLb2, sJJ, sLrow, sTB1, sTB2, sTB3) = [R('s', 36+i, 1) for i in range(28)]
sTB = [sTag, sTB1, sTB2, sTB3]
sM2 = R('s', 64, 2)
sE = [R('s', 66+i, 1) for i in range(6)]
NS = 12
sSel = [R('s', 96, 1), R('s', 97, 1)]; sF = [R('s', 98+i, 1) for i in range(4)]
lane = R('v', 1, 1)
v_l16 = R('v', 3, 1)
vx0, vx1, vw = R('v', 10, 1), R('v', 11, 1), R('v', 12, 1)
xrow = R('v', 240, 8)

class Ctx:
    def __init__(self, A): self.A = A; self.n = 0
    def vm(self, s):
        self.A(s); self.n += 1; return self.n
    def wait(self, tok, extra=''):
        k = min(self.n - tok, 63); assert k >= 0
        self.A(f's_waitcnt vmcnt({k}) {extra}'.strip())
class LG:
    def __init__(self, A): self.A = A; self.n = 0; self.done = 0
    def ds(self, s):
        self.A(s); self.n += 1; return self.n
    def need(self, tok, keep=None):
        if tok <= self.done: return
        k = min(self.n - tok, OPT['keep'] if keep is None else keep, 15)
        self.A(f's_waitcnt lgkmcnt({k})'); self.done = self.n - k
    def all(self):
        self.A('s_waitcnt lgkmcnt(0)'); self.done = self.n
def stamp(A, i):
    if OPT['stamp'] == 9:
        A(f's_memrealtime s[{72+2*i}:{73+2*i}]'); return
    if OPT['stamp'] == 3: A(f's_memtime s[{72+2*i}:{73+2*i}]')
    elif OPT['stamp'] == 1 or (OPT['stamp'] and i == NS-1): A(f's_memrealtime s[{72+2*i}:{73+2*i}]')
def stampb(A, i):
    if OPT['stamp'] == 4: A(f's_memtime s[{72+2*i}:{73+2*i}]')
def stampe(A, i):
    if OPT['stamp'] == 5 and i < 11: A(f's_memtime s[{72+2*i}:{73+2*i}]')
def stampf(A, i):
    if OPT['stamp'] == 6 and i < 11: A(f's_memtime s[{72+2*i}:{73+2*i}]')
def stampg(A, i):
    if OPT['stamp'] == 7 and i < 11: A(f's_memtime s[{72+2*i}:{73+2*i}]')
def stamph(A, i):
    if OPT['stamp'] == 8 and i < 11: A(f's_memtime s[{72+2*i}:{73+2*i}]')
def stampc(A, i):
    if OPT['stamp'] == 2: A(f's_memtime s[{72+2*i}:{73+2*i}]')
def stamp_out(A):
    if not OPT['stamp']: return
    A(f's_waitcnt vmcnt(0)')
    stamp(A, NS-1)
    A('s_waitcnt lgkmcnt(0)')
    if OPT['stamp'] == 9:
        A('s_load_dwordx2 s[4:5], s[0:1], 64\ns_waitcnt lgkmcnt(0)')
        for i in range(NS): A(f's_atomic_umax s{72+2*i}, s[4:5], {4*i}')
        A('s_not_b32 s72, s72\ns_atomic_umax s72, s[4:5], 48\ns_waitcnt lgkmcnt(0)')
        return
    A(f's_lshl_b32 s4, s2, 3\ns_add_u32 s4, s4, {sWV}\ns_lshl_b32 s4, s4, 7\ns_add_u32 s4, s4, {15*1024*1024}')
    A(f'v_lshlrev_b32 v2, 26, v1')
    for i in range(NS):
        A(f'v_mov_b32 v4, s{72+2*i}\nv_mov_b32 v5, s{73+2*i}\nbuffer_store_dwordx2 v[4:5], v2, {sWS}, s4 offen offset:{8*i}')
    A(f's_getreg_b32 s5, hwreg(HW_REG_XCC_ID)\ns_getreg_b32 s6, hwreg(HW_REG_HW_ID)\nv_mov_b32 v4, s5\nv_mov_b32 v5, s6\nbuffer_store_dwordx2 v[4:5], v2, {sWS}, s4 offen offset:96')
def srd(A, s, off, size):
    A(f's_load_dwordx2 {s[0:2]}, s[0:1], {off}\ns_mov_b32 {s[2]}, {size}\ns_mov_b32 {s[3]}, 0x20000')
def dpp_add(v, m): return f'v_add_f32_dpp {v}, {v}, {v} {m} row_mask:0xf bank_mask:0xf'
def emit_sched(A, L, name='', **kw):
    out, t, nops = sched(L, **kw)
    if name: print(f'  sched {name}: {len(out)} instrs, est {t} clk, nops {nops}')
    for x in out: A(x)
def poll(A, ld, check, first_loaded=False, sleep=1, mask_exec=False):
    l0, l1, l2 = A.lab('PL'), A.lab('PC'), A.lab('PD')
    A(f's_mov_b32 {sSpin}, {OPT["spin"]}')
    if first_loaded: A(f's_branch {l1}')
    A(f'{l0}:'); A(ld); A('s_waitcnt vmcnt(0)')
    if mask_exec: A('s_mov_b64 exec, -1')
    A(f'{l1}:')
    check()
    A(f's_cbranch_scc0 {l2}')
    if sleep: A(f's_sleep {sleep}')
    if mask_exec: A('s_mov_b64 exec, s[4:5]')
    A(f's_sub_u32 {sSpin}, {sSpin}, 1\ns_cbranch_scc0 {l0}')
    if mask_exec: A('s_mov_b64 exec, -1')
    A(f'{l2}:')
def chk_words(A, regs, tmp):
    def f():
        if len(regs) == 1: A(f'v_cmp_ne_u32 vcc, {sTag}, {regs[0]}')
        else:
            np_ = len(regs)//2
            for i in range(np_): A(f'v_bitop3_b32 {tmp[i]}, {regs[2*i]}, {regs[2*i+1]}, {sTag} bitop3:0x7e')
            i = 1
            while i < np_:
                if i + 1 < np_: A(f'v_or3_b32 {tmp[0]}, {tmp[0]}, {tmp[i]}, {tmp[i+1]}'); i += 2
                else: A(f'v_or_b32 {tmp[0]}, {tmp[0]}, {tmp[i]}'); i += 1
            A(f'v_cmp_ne_u32 vcc, 0, {tmp[0]}')
        A(f's_and_b64 s[4:5], vcc, exec')
    return f
def spoll(A, so, n, sleep):
    l0, l1 = A.lab('SP'), A.lab('SD')
    A(f's_add_u32 {sT1}, {sTag}, {n}\ns_mov_b32 {sSpin}, {OPT["spin"]}')
    A(f'{l0}:\ns_mov_b32 {sT0}, 0\ns_atomic_add {sT0}, {sWS[0:2]}, {so} glc\ns_waitcnt lgkmcnt(0)\ns_cmp_eq_u32 {sT0}, {sT1}\ns_cbranch_scc1 {l1}')
    if sleep: A(f's_sleep {sleep}')
    A(f's_sub_u32 {sSpin}, {sSpin}, 1\ns_cbranch_scc0 {l0}\n{l1}:')
def ppoll_pre(A, so, D, base, clear=True):
    if not D: return
    if clear:
        A('s_waitcnt lgkmcnt(0)')
        for d in range(D): A(f's_mov_b32 s{base+2*d}, {sTag}\ns_sub_u32 s{base+2*d+1}, {sTag}, 1')
def ppoll(A, so, n, D, base, sleep, pre=True):
    if not D: return spoll(A, so, n, sleep)
    l0, l1 = A.lab('PP'), A.lab('PQ')
    ppoll_pre(A, so, D, base, pre)
    A(f's_add_u32 {sT1}, {sTag}, {n}\ns_mov_b32 {sSpin}, {OPT["spin"]}')
    at = lambda d: f's_atomic_cmpswap s[{base+2*d}:{base+2*d+1}], {sWS[0:2]}, {so} glc'
    for d in range(1, D): A(at(d) + f'\ns_sleep {2*OPT["psl"]//D}')
    A(f'{l0}:')
    for d in range(D):
        A(at(d) + f'\ns_waitcnt lgkmcnt({D-1})\ns_cmp_eq_u32 s{base + 2*((d+1) % D)}, {sT1}\ns_cbranch_scc1 {l1}')
    A(f's_sub_u32 {sSpin}, {sSpin}, 1\ns_cbranch_scc0 {l0}\n{l1}:')
def sarrive(A, *sos):
    A(f's_waitcnt vmcnt(0)')
    for so in sos: A(f's_atomic_add {sLrow}, {sWS[0:2]}, {so}')
def cnt_i2(A, d, i2, extra):
    A(f's_lshr_b32 {d}, {i2}, 1\ns_lshl_b32 {d}, {d}, 14\ns_and_b32 s4, {i2}, 1\ns_lshl_b32 s4, s4, 11\ns_add_u32 {d}, {d}, s4\ns_add_u32 {d}, {d}, {CNT + extra}')
def quad_diff(A, q, d, t):
    A(f'v_perm_b32 {d}, {q[1]}, {q[0]}, {sSel[0]}\nv_perm_b32 {t}, {q[3]}, {q[2]}, {sSel[1]}\nv_bitop3_b32 {d}, {d}, {t}, {sTag} bitop3:0x96')
def tag_consts(A):
    A(f's_lshr_b32 {sTB1}, {sTag}, 8\ns_lshr_b32 {sTB2}, {sTag}, 16\ns_lshr_b32 {sTB3}, {sTag}, 24')
    A(f's_mov_b32 {sSel[0]}, 0x0c0c0400\ns_mov_b32 {sSel[1]}, 0x04000c0c')
def tag_quad(q, ff): return [f'v_bfi_b32 {q[k]}, {ff}, {sTB[k]}, {q[k]}' for k in range(4)]
def lds_spin(A, va, off, n, vt, mask=False, slp=1):
    l0, l1 = A.lab('LS'), A.lab('LD')
    A(f's_mov_b32 {sSpin}, {OPT["spin"]*4}')
    A(f'{l0}:\nds_read_b32 {vt}, {va} offset:{off}\ns_waitcnt lgkmcnt(0)\nv_readfirstlane_b32 {sT0}, {vt}\n' + (f's_and_b32 {sT0}, {sT0}, {n}\n' if mask else '') + f's_cmp_ge_u32 {sT0}, {n}\ns_cbranch_scc1 {l1}')
    if slp: A(f's_sleep {slp}')
    A(f's_sub_u32 {sSpin}, {sSpin}, 1\ns_cbranch_scc0 {l0}\n{l1}:')
def lds_inc(A, va, off, vt):
    A(f'v_mov_b32 {vt}, 1\ns_mov_b64 exec, 1\nds_add_u32 {va}, {vt} offset:{off}\ns_mov_b64 exec, -1')
def p2_ids(A):
    A(f's_and_b32 s4, s2, 7\ns_lshr_b32 s5, s2, 3')
    if OPT['sw']:
        A(f's_and_b32 s6, s5, 15\ns_lshr_b32 s6, 0x880, s6\ns_and_b32 s6, s6, 1\ns_mul_i32 s6, s6, 12\ns_xor_b32 s5, s5, s6')
    A(f's_lshl_b32 s4, s4, 2\ns_lshr_b32 s6, s5, 3\ns_add_u32 {sI2}, s4, s6\ns_and_b32 {sJ2}, s5, 7')
def tr_addr(A, vab, base, t0, t1):
    l = lane
    A(f'v_lshrrev_b32 {t0}, 2, {l}\nv_lshlrev_b32 {t0}, 7, {t0}\nv_and_b32 {t1}, 3, {l}\nv_lshl_add_u32 {t0}, {t1}, 3, {t0}\nv_add_u32 {t0}, {base}, {t0}')
    A(f'v_bfe_u32 {t1}, {l}, 3, 2')
    for q in range(4):
        A(f'v_xor_b32 {vab[q]}, {q}, {t1}\nv_lshl_add_u32 {vab[q]}, {vab[q]}, 5, {t0}')

def stouch(A, lo, hi, junk='s3'):
    if lo < min(hi, 36): A(f's_lshl2_add_u32 s6, s2, {sWQ}\ns_lshl_b32 s7, s6, 9\ns_mul_i32 s6, s6, 1792')
    for i in range(lo, min(hi, 72 if OPT['sc3'] else 36)):
        if i == max(lo, 36): A(f's_lshr_b32 s6, s2, 3\ns_lshl2_add_u32 s6, s6, {sWQ}\ns_lshl_b32 s7, s6, 12\ns_mul_i32 s6, s6, {14*1024}')
        if i < 28: A(f's_load_dword {junk}, {sW2[0:2]}, s6 offset:{64*i}')
        elif i < 36: A(f's_load_dword {junk}, {sWO[0:2]}, s7 offset:{64*(i-28)}')
        elif i < 64: A(f's_load_dword {junk}, {sW2[0:2]}, s6 offset:{(i-36)//2*1024 + 384 + 64*(i & 1)}')
        else: A(f's_load_dword {junk}, {sWO[0:2]}, s7 offset:{(i-64)//2*1024 + 384 + 64*(i & 1)}')
class CW:
    def __init__(self, A, typ):
        self.A = A; self.typ = typ
        self.C = Ctx(A); self.G = LG(A)
        self.V = Pool('v', 4, 256); self.V.at(9, 4); self.V.at(240, 16)
    def prologue(self):
        A, V, C, l, typ = self.A, self.V, self.C, lane, self.typ
        C.n = 7; tk_row = 2; self.tk0 = 7
        F = typ == 'F'
        srd(A, sOUT, 56, SZ_OUT)
        if OPT['stc']: A(f's_load_dwordx2 {sW2[0:2]}, s[0:1], 48')
        if not F: self.aphi = V.alloc(4, 4)
        self.ax = [V.alloc(), V.alloc()]
        T64 = F and OPT['t64']
        self.aw = [V.alloc() for _ in range(3 if T64 else 6 if F else 1)]
        t, g, t0, t1, f = [R('v', 232+i, 1) for i in range(5)]
        b0 = phys(0)
        A(f'v_and_b32 {t}, 15, {l}\nv_lshrrev_b32 {g}, 4, {l}')
        A(f'v_lshrrev_b32 {t0}, 1, {t}\nv_xor_b32 {t0}, {t0}, {g}\nv_lshlrev_b32 {t0}, 4, {t0}\nv_lshl_add_u32 {t0}, {t}, 7, {t0}')
        if T64: A(f's_lshr_b32 {sT0}, {sWQ}, 1\ns_lshl_b32 {sT0}, {sT0}, 13\nv_add_u32 {t0}, {sT0}, {t0}')
        elif F: A(f's_lshl_b32 {sT0}, {sWQ}, 12\nv_add_u32 {t0}, {sT0}, {t0}')
        A(f'v_add_u32 {self.ax[0]}, {b0}, {t0}\nv_xor_b32 {t0}, 64, {t0}\nv_add_u32 {self.ax[1]}, {b0}, {t0}')
        A(f'v_lshrrev_b32 {f}, 3, {t}\nv_and_b32 {t0}, 1, {g}\nv_lshl_or_b32 {f}, {t0}, 1, {f}')
        A(f'v_lshrrev_b32 {t0}, 2, {t}\nv_lshlrev_b32 {t0}, 7, {t0}\nv_lshl_add_u32 {t0}, {g}, 10, {t0}\nv_and_b32 {t1}, 3, {t}\nv_lshl_add_u32 {t0}, {t1}, 3, {t0}\nv_add_u32 {t0}, {b0+16384}, {t0}')
        if not F:
            A(f'v_xor_b32 {t1}, {sWQ}, {f}\nv_lshl_add_u32 {self.aw[0]}, {t1}, 5, {t0}')
        else:
            if T64:
                A(f's_and_b32 {sT1}, {sWQ}, 1\ns_lshl_b32 {sT0}, {sT1}, 1\nv_xor_b32 {t1}, {sT0}, {f}\nv_lshl_add_u32 {self.aw[0]}, {t1}, 5, {t0}\nv_xor_b32 {t1}, 1, {t1}\nv_lshl_add_u32 {self.aw[1]}, {t1}, 5, {t0}')
            else:
                for q in range(4): A(f'v_xor_b32 {t1}, {q}, {f}\nv_lshl_add_u32 {self.aw[q]}, {t1}, 5, {t0}')
            A(f'v_lshrrev_b32 {t0}, 2, {t}\nv_lshlrev_b32 {t0}, 6, {t0}\nv_lshl_add_u32 {t0}, {g}, 9, {t0}\nv_and_b32 {t1}, 3, {t}\nv_lshl_add_u32 {t0}, {t1}, 3, {t0}\nv_add_u32 {t0}, {b0+16384}, {t0}')
            A(f'v_and_b32 {f}, 1, {g}')
            if T64: A(f'v_xor_b32 {t1}, {sT1}, {f}\nv_lshl_add_u32 {self.aw[2]}, {t1}, 5, {t0}')
            else:
                for q in range(2): A(f'v_xor_b32 {t1}, {q}, {f}\nv_lshl_add_u32 {self.aw[4+q]}, {t1}, 5, {t0}')
        A(f's_lshl_b32 {sT0}, {sI}, 4\ns_add_u32 {sT0}, {sT0}, {sJJ}\ns_lshl2_add_u32 {sT0}, {sT0}, {sWQ}\ns_lshl_b32 {sT0}, {sT0}, 8\ns_add_u32 {sT0}, {sT0}, {CNT}')
        stampg(A, 4)
        A('s_waitcnt lgkmcnt(0)')
        stampg(A, 5)
        A(f's_mul_i32 {sTag}, {sTag}, 0x9E3779B1\ns_add_u32 {sTag}, {sTag}, 0x7F4A7C15\ns_mov_b32 {sSpin}, {sTag}')
        A(f's_atomic_swap {sSpin}, {sWS[0:2]}, {sT0} glc')
        if OPT['Rh'] > 1 or len(PH) > 2: A(f's_mov_b32 {sCurA}, {sTag}\ns_atomic_swap {sCurA}, {sWS[0:2]}, {sT0} offset:128 glc')
        if OPT['stcp'] == 0: stouch(A, 0, OPT['stc'], sCur)
        p2_ids(A)
        if not F: self.consts_A()
        tag_consts(A)
        A(f's_mov_b32 {sLrow}, 1')
        V.release(R('v', 240, 16), R('v', 9, 4))
        self.tk_row = tk_row
    def stats(self):
        A, C, l, tk_row = self.A, self.C, lane, self.tk_row
        x = R('v', 216, 16); o = R('v', 248, 4); t = R('v', 252, 1); ad = R('v', 253, 1); u = R('v', 254, 1)
        HS = OPT['hs']
        A(f's_lshl_b32 {sT0}, {sWQ}, {4 + HS}\ns_add_u32 {sT0}, {sT0}, {L_SG}\nv_lshrrev_b32 {ad}, {5 - HS}, {l}\nv_lshl_add_u32 {ad}, {ad}, 3, {sT0}')
        z = R('v', 232, 4)
        A(f'v_mov_b32 {u}, {L_TAG}\nv_mov_b32 {z[0]}, {sTag}\nv_mov_b32 {z[1]}, 0\nv_mov_b32 {z[2]}, 0\nv_mov_b32 {z[3]}, 0\nds_write_b128 {u}, {z}')
        stampg(A, 6)
        if OPT['stcp'] == 1: stouch(A, 0, OPT['stc'], sCur)
        C.wait(tk_row)
        stampg(A, 7)
        for i in range(8): A(f'v_lshlrev_b32 {x[2*i]}, 16, {xrow[i]}\nv_and_b32 {x[2*i+1]}, 0xffff0000, {xrow[i]}')
        y = xrow
        for i in range(4): A(f'v_pk_add_f32 {y[2*i:2*i+2]}, {x[4*i:4*i+2]}, {x[4*i+2:4*i+4]}')
        A(f'v_pk_add_f32 {y[0:2]}, {y[0:2]}, {y[2:4]}\nv_pk_add_f32 {y[4:6]}, {y[4:6]}, {y[6:8]}\nv_pk_add_f32 {y[0:2]}, {y[0:2]}, {y[4:6]}\nv_add_f32 {o[0]}, {y[0]}, {y[1]}')
        def hsum(v):
            for m in ('quad_perm:[1,0,3,2]', 'quad_perm:[2,3,0,1]', 'row_half_mirror', 'row_mirror'): A(dpp_add(v, m))
            if not HS: A(f'v_mov_b32 {t}, {v}\nv_permlane16_swap_b32 {v}, {t}\nv_add_f32 {v}, {v}, {t}')
        hsum(o[0])
        A(f'v_mul_f32 {o[0]}, {f2u(1/256 if HS else 1/512):#x}, {o[0]}')
        for i in range(16): A(f'v_sub_f32 {x[i]}, {x[i]}, {o[0]}')
        A(f'v_pk_mul_f32 {y[0:2]}, {x[0:2]}, {x[0:2]}\nv_pk_mul_f32 {y[2:4]}, {x[2:4]}, {x[2:4]}')
        for i in range(2, 8): A(f'v_pk_fma_f32 {y[2*(i&1):2*(i&1)+2]}, {x[2*i:2*i+2]}, {x[2*i:2*i+2]}, {y[2*(i&1):2*(i&1)+2]}')
        A(f'v_pk_add_f32 {y[0:2]}, {y[0:2]}, {y[2:4]}\nv_add_f32 {o[2]}, {y[0]}, {y[1]}')
        hsum(o[2])
        if HS: A(f'v_mov_b32 {o[1]}, {o[2]}')
        else: A(f'v_mov_b32 {o[1]}, {f2u(1e-5):#x}\nv_fmac_f32 {o[1]}, {f2u(1/512):#x}, {o[2]}\nv_rsq_f32 {o[1]}, {o[1]}')
        stampg(A, 8)
        A(f'ds_write_b64 {ad}, {o[0:2]}')
    def consts_A(self):
        A, V, l = self.A, self.V, lane
        t0, t1, val, key = [R('v', 232+i, 1) for i in range(4)]
        self.sel16 = V.alloc(16, 4)
        self.bsel = [self.sel16[0:4], self.sel16[4:8]]; self.zsel = [self.sel16[8:12], self.sel16[12:16]]
        A(f'v_and_b32 {t1}, 1, {l}\nv_lshlrev_b32 {t1}, 4, {t1}\nv_mov_b32 {val}, 0x3f80\nv_lshlrev_b32 {val}, {t1}, {val}')
        A(f'v_bfe_u32 {key}, {l}, 1, 2\nv_bfe_u32 {t1}, {l}, 4, 1\nv_lshl_or_b32 {key}, {t1}, 2, {key}')
        A(f'v_lshrrev_b32 {t1}, 2, {l}\nv_xor_b32 {t1}, {t1}, {l}\nv_and_b32 {t1}, 8, {t1}\nv_or_b32 {key}, {key}, {t1}')
        for T in range(2):
            for rr in range(4):
                A(f'v_cmp_eq_u32 vcc, {rr + 4*T}, {key}\nv_cndmask_b32 {self.bsel[T][rr]}, 0, {val}, vcc')
        A(f'v_and_b32 {key}, 15, {l}\nv_mov_b32 {val}, 0x3f803f80')
        for m in range(2):
            A(f'v_cmp_eq_u32 vcc, {4*m if OPT["kva"] else m}, {key}\nv_cndmask_b32 {self.zsel[m][0]}, 0, {val}, vcc')
            for rr in range(1, 4): A(f'v_mov_b32 {self.zsel[m][rr]}, {self.zsel[m][0]}')
    def rd_w(self, dst, u, kk):
        b, q = self.units[u]
        return [f'ds_read_b64_tr_b16 {dst[2*hf:2*hf+2]}, {self.aw[q]} offset:{b*8192 + (kk*4096 + hf*512 if b < 3 else kk*2048 + hf*256)}' for hf in range(2)]
    def rd_x(self, dst, tt, kk): return [f'ds_read_b128 {dst}, {self.ax[kk]} offset:{tt*2048}']
    def main(self):
        A, V, C, G, typ = self.A, self.V, self.C, self.G, self.typ
        F = typ == 'F'
        if F and OPT['t64']:
            self.ntt = 4; self.units = [(b, q) for b in range(3) for q in range(2)] + [(3, 2)]
        elif F:
            self.ntt = 2; self.units = [(b, q) for b in range(3) for q in range(4)] + [(3, 4), (3, 5)]
        else:
            self.ntt = 8; self.units = [(0, 0), (1, 0), (2, 0)]
        nu = len(self.units)
        self.acc = [[V.alloc(4, 4) for u in range(nu)] for tt in range(self.ntt)]
        nr, nd = (nu, self.ntt) if F else (self.ntt, nu)
        self.Rg = [V.alloc(4, 4) for _ in range(nr)]
        self.Dg = [V.alloc(4*nd, 4) for _ in range(2)]
        rdR, rdD = (self.rd_w, self.rd_x) if F else (self.rd_x, self.rd_w)
        last_R, last_pre, fill = self.pre_epi()
        self.stats()
        if OPT['stub']:
            A('s_mov_b64 exec, 0')
            for c in range(3): A(f's_cmp_eq_u32 {sWQ}, {c}\ns_cbranch_scc1 WS_{typ}{c}')
            A(f's_branch WS_{typ}3')
            if not F: A(f'K_wret:\ns_cmp_lg_u32 s3, 0\ns_cbranch_scc1 WR_F')
            A(f'WR_{typ}:\ns_mov_b64 exec, -1')
        if OPT['stcp'] == 2: stouch(A, 0, OPT['stc'], sCur)
        stamp(A, 1); stampg(A, 9)
        C.wait(self.tk0, 'lgkmcnt(0)'); stampg(A, 10); A('s_barrier')
        stampb(A, 1)
        stamp(A, 2)
        tokR = {}; tokD = {}
        Q = []
        def issue(k):
            for _ in range(k):
                if not Q: return
                s, key = Q.pop(0); tk = G.ds(s)
                if key: (tokR if key[0] == 'R' else tokD)[key[1:]] = tk
        def kq(L, key): return [(s, key if i == len(L)-1 else None) for i, s in enumerate(L)]
        for d in range(nd): Q += kq(rdD(self.Dg[0][4*d:4*d+4], d, 0), ('D', 0, d))
        for j in range(nr): Q += kq(rdR(self.Rg[j], j, 0), ('R', 0, j))
        issue(12)
        for n in range(16):
            st, kk = n >> 1, n & 1
            pend = []
            blocked = kk == 1
            nD = []
            if n < 15:
                for d in range(nd): nD += kq(rdD(self.Dg[(n+1) & 1][4*d:4*d+4], d, kk ^ 1), ('D', n+1, d))
            else: nD = [(s, None) for s in last_pre]
            if blocked: pend += nD
            else: Q += nD
            adds = []
            if kk == 1 and st < 7:
                dlt = phys(st+1) - phys(st)
                adds = [f'v_add_u32 {r}, {dlt & 0xffffffff:#x}, {r}' for r in self.ax + self.aw]
            if n == 15: adds = list(self.pre_v)
            fl = list(fill.get(n, []))
            if n == 6: stampc(A, 1)
            if n == 8: stampc(A, 8)
            for j in range(nr):
                if blocked and j == OPT['holdF' if (F and OPT['t64']) else 'hold']:
                    assert not Q
                    for a in adds: A(a)
                    adds = []
                    if n == 7: stampc(A, 2)
                    G.all()
                    if n == 7: stampc(A, 3)
                    A('s_barrier')
                    if n == 7: stampc(A, 4)
                    if n == 7: stamp(A, 3)
                    stampb(A, 2 + st)
                    blocked = False; Q += pend; pend = []
                for d in range(nd):
                    tt, u = (d, j) if F else (j, d)
                    G.need(max(tokR[(n, j)], tokD[(n, d)]))
                    w, x = (self.Rg[j], self.Dg[n & 1][4*d:4*d+4]) if F else (self.Dg[n & 1][4*d:4*d+4], self.Rg[j])
                    a, b = (x, w) if (not F and u == 2) else (w, x)
                    acc = self.acc[tt][u]
                    A(f'v_mfma_f32_16x16x32_bf16 {acc}, {a}, {b}, {acc if n else 0}')
                    if Q: issue(2 if len(Q) > 3 else 1)
                    elif adds:
                        A(adds.pop(0))
                        if adds: A(adds.pop(0))
                    elif fl: A(fl.pop(0))
                nw = kq(rdR(self.Rg[j], j, kk ^ 1), ('R', n+1, j)) if n < 15 else [(s, None) for s in last_R[j]]
                if blocked: pend += nw
                else: Q += nw
            for x in fl: A(x)
        issue(100)
        stampb(A, 10)
        stamp(A, 5)
        V.release(*self.ax); V.release(*self.aw)
    def pre_epi(self):
        A, V, l = self.A, self.V, lane
        if self.typ == 'F' and OPT['t64']:
            at, ag, ag2, self.vsp = V.alloc(), V.alloc(), V.alloc(), V.alloc()
            A(f's_lshr_b32 {sT1}, {sWQ}, 1\ns_lshl_b32 {sT0}, {sT1}, 8\ns_add_u32 {sT0}, {sT0}, {L_NM}\nv_and_b32 {at}, 15, {l}\nv_lshl_add_u32 {at}, {at}, 2, {sT0}')
            A(f's_and_b32 {sF[1]}, {sWQ}, 1\ns_lshl_b32 {sT0}, {sF[1]}, 6\ns_add_u32 {sF[0]}, {sT0}, {L_CS}\nv_and_b32 {ag2}, 48, {l}\nv_add_u32 {ag2}, {sF[0]}, {ag2}\nv_add_u32 {ag}, {sT0}, {ag2}')
            self.ms = [V.alloc(2) for _ in range(4)]; self.nr = [V.alloc(2) for _ in range(4)]
            pre = []
            for tt in range(4):
                pre += [f'ds_read2_b32 {self.ms[tt]}, {at} offset0:{16*tt} offset1:{16*tt}', f'ds_read2_b32 {self.nr[tt]}, {at} offset0:{128+16*tt} offset1:{128+16*tt}']
            lastR = [[f'ds_read_b128 {self.Rg[u]}, {ag} offset:{256*(u >> 1) + 64*(u & 1)}'] for u in range(6)] + [[f'ds_read_b128 {self.Rg[6]}, {ag2} offset:768']]
            self.kL = V.alloc(2)
            A(f'v_mov_b32 {self.kL[0]}, {f2u(1.0 if OPT["psc"] else -LOG2E):#x}\nv_mov_b32 {self.kL[1]}, {self.kL[0]}')
            A(f's_lshl1_add_u32 {sT0}, {sI}, {sT1}')
            cnt_i2(A, sF[2], sT0, 1024)
            A(f's_lshr_b32 {sT1}, {sJ}, 1\ns_lshl_b32 {sT1}, {sT1}, 8\ns_add_u32 {sF[2]}, {sF[2]}, {sT1}')
            A(f's_mul_i32 {sT0}, {sT0}, 72\ns_mul_i32 {sT1}, {sJ}, 7\ns_add_u32 {sT0}, {sT0}, {sT1}\ns_lshl_b32 {sT0}, {sT0}, 12\ns_add_u32 {sT0}, {sT0}, {ACT}')
            A(f's_and_b32 {sT1}, {sJ}, 1\ns_add_u32 {sF[0]}, {sT1}, {sF[1]}\ns_lshl_b32 {sF[0]}, {sF[0]}, 12\ns_add_u32 {sF[0]}, {sF[0]}, {sT0}')
            A(f's_lshl_b32 {sF[1]}, {sF[1]}, 9\ns_add_u32 {sF[1]}, {sF[1]}, {sT0}\ns_xor_b32 {sT1}, {sT1}, 1\ns_mul_i32 {sT1}, {sT1}, {6*4096}\ns_add_u32 {sF[1]}, {sF[1]}, {sT1}')
            tv = self.Dg[0][0]
            self.pre_v = [f'v_and_b32 {self.vsp}, 0xf0, {v_l16}', f'v_bfe_u32 {tv}, {l}, 4, 1', f'v_lshl_add_u32 {self.vsp}, {tv}, 10, {self.vsp}', f'v_lshrrev_b32 {tv}, 5, {l}', f'v_lshl_add_u32 {self.vsp}, {tv}, 8, {self.vsp}']
            return lastR, pre, {}
        if self.typ == 'F':
            at, ag = V.alloc(), V.alloc()
            A(f's_lshl_b32 {sT0}, {sWQ}, 7\ns_add_u32 {sT0}, {sT0}, {L_NM}\nv_and_b32 {at}, 15, {l}\nv_lshl_add_u32 {at}, {at}, 2, {sT0}')
            A(f'v_and_b32 {ag}, 48, {l}\nv_add_u32 {ag}, {L_CS}, {ag}')
            self.ms = [V.alloc(2) for _ in range(2)]; self.nr = [V.alloc(2) for _ in range(2)]
            pre = []
            for tt in range(2):
                pre += [f'ds_read2_b32 {self.ms[tt]}, {at} offset0:{16*tt} offset1:{16*tt}', f'ds_read2_b32 {self.nr[tt]}, {at} offset0:{128+16*tt} offset1:{128+16*tt}']
            lastR = [[f'ds_read_b128 {self.Rg[u]}, {ag} offset:{64*u}'] for u in range(14)]
            self.kL = V.alloc(2)
            A(f'v_mov_b32 {self.kL[0]}, {f2u(1.0 if OPT["psc"] else -LOG2E):#x}\nv_mov_b32 {self.kL[1]}, {self.kL[0]}')
            A(f's_lshl_b32 {sT0}, {sI}, 1\ns_lshr_b32 {sT1}, {sWQ}, 1\ns_add_u32 {sT0}, {sT0}, {sT1}')
            cnt_i2(A, sF[2], sT0, 1024)
            A(f's_lshr_b32 {sT1}, {sJ}, 1\ns_lshl_b32 {sT1}, {sT1}, 8\ns_add_u32 {sF[2]}, {sF[2]}, {sT1}')
            A(f's_mul_i32 {sT0}, {sT0}, 72\ns_mul_i32 {sT1}, {sJ}, 7\ns_add_u32 {sT0}, {sT0}, {sT1}\ns_lshl_b32 {sT0}, {sT0}, 12')
            A(f's_and_b32 {sT1}, {sWQ}, 1\ns_lshl_b32 {sF[0]}, {sT1}, 11\ns_add_u32 {sT0}, {sT0}, {sF[0]}\ns_add_u32 {sT0}, {sT0}, {ACT}')
            A(f's_and_b32 {sT1}, {sJ}, 1')
            A(f's_lshl_b32 {sF[0]}, {sT1}, 12\ns_add_u32 {sF[0]}, {sF[0]}, {sT0}')
            A(f's_xor_b32 {sT1}, {sT1}, 1\ns_mul_i32 {sT1}, {sT1}, {6*4096}\ns_add_u32 {sF[1]}, {sT0}, {sT1}')
            self.pre_v = []
            return lastR, pre, {}
        self.MR = [V.alloc(16, 4) for _ in range(4)]
        self.cv = V.alloc(2)
        R_ = self.Rg
        self.negm = [R_[T//2][2*(T & 1):2*(T & 1)+2] for T in range(8)]
        self.rl = [R_[4 + p//2][2*(p & 1):2*(p & 1)+2] for p in range(4)]
        self.ck, self.cq = R_[6], R_[7]
        D0 = self.Dg[0]
        a4, ag, a32, ac = D0[0], D0[1], D0[2], D0[3]
        pre_v = [f'v_and_b32 {a4}, 15, {l}', f'v_lshlrev_b32 {a4}, 2, {a4}', f'v_and_b32 {ag}, 48, {l}', f'v_and_b32 {a32}, 31, {l}',
                 f'v_add_u32 {ac}, {sF[3]}, {a4}', f'v_add_u32 {a4}, {L_NM}, {a4}', f'v_lshlrev_b32 {a32}, 2, {a32}', f'v_add_u32 {a32}, {L_RL}, {a32}',
                 f'v_add_u32 {D0[4]}, {sF[3]}, {ag}', f'v_add_u32 {ag}, {L_NM}, {ag}']
        A(f's_lshl_b32 {sF[3]}, {sWQ}, 6\ns_add_u32 {sF[3]}, {sF[3]}, {L_CS}')
        pre = [f'ds_read2_b32 {self.cv}, {ac} offset0:128 offset1:128']
        for p in range(4):
            for T in range(2):
                pre += [f'ds_read_b128 {self.MR[p][8*T:8*T+4]}, {ag} offset:{64*(2*p+T)}', f'ds_read_b128 {self.MR[p][8*T+4:8*T+8]}, {ag} offset:{1024+64*(2*p+T)}']
        lastR = [[f'ds_read2_b32 {self.negm[T]}, {a4} offset0:{16*T} offset1:{16*T}' for T in (2*j, 2*j+1)] for j in range(4)]
        lastR += [[f'ds_read2_b32 {self.rl[p]}, {a32} offset0:{32*p} offset1:{32*p}' for p in (2*j, 2*j+1)] for j in range(2)]
        lastR += [[f'ds_read_b128 {self.ck}, {D0[4]} offset:256'], [f'ds_read_b128 {self.cq}, {D0[4]}']]
        pre_v.append(f'v_add_u32 {D0[5]}, {sHo}, {v_l16}')
        A(f's_lshl_b32 {sHo}, {sWQ}, 10\ns_add_u32 {sHo}, {sHo}, {L_PHI}')
        pre.append(f'ds_read_b128 {self.aphi}, {D0[5]}')
        self.pre_v = pre_v
        e0, e1, e2, e3 = sE[0:4]
        A(f's_lshl_b32 {e2}, {sJ}, 2\ns_add_u32 {e2}, {e2}, {sWQ}\ns_mul_i32 {e3}, {e2}, {16*2176}\ns_add_u32 {e3}, {e3}, {KP}')
        A(f's_mul_i32 {e0}, {sI}, 2176\ns_add_u32 {e0}, {e0}, {e3}')
        A(f's_lshl2_add_u32 {sXb}, {sJJ}, {sWQ}\ns_lshl_b32 {sXb}, {sXb}, 8\ns_add_u32 {sXb}, {sXb}, {CNT}\ns_add_u32 {sWb}, {sXb}, {4*16384}')
        A(f's_and_b32 {sXo}, {sI}, {OPT["Rk"]-1}\ns_lshl_b32 {sXo}, {sXo}, 14\ns_add_u32 {sWo}, {sXo}, {sWb}\ns_add_u32 {sXo}, {sXo}, {sXb}')
        A(f's_lshl_b32 {sT0}, {sI}, 6\ns_add_u32 {e1}, {e3}, {sT0}')
        A(f's_mul_i32 {e2}, {e2}, 2176\ns_add_u32 {e2}, {e2}, {KT}\ns_add_u32 {e3}, {e2}, {sT0}')
        A(f's_cmp_eq_u32 {sI}, 0\ns_cselect_b32 {sE[4]}, {e1}, {OOB}\ns_cselect_b32 {sE[5]}, {e3}, {OOB}\ns_cselect_b64 {sM2}, -1, 0')
        A(f's_mul_i32 {sF[0]}, {sI}, {2*72*4096}\ns_lshl_b32 {sT0}, {sJ}, 11\ns_add_u32 {sF[0]}, {sF[0]}, {sT0}\ns_lshl_b32 {sT0}, {sWQ}, 9\ns_add_u32 {sF[0]}, {sF[0]}, {sT0}\ns_add_u32 {sF[0]}, {sF[0]}, {ACT + 56*4096}')
        A(f's_lshl_b32 {sF[1]}, {sI}, 14\ns_add_u32 {sF[1]}, {sF[1]}, {CNT + 5120}\ns_add_u32 {sHb}, {sF[1]}, 2048')
        A(f's_or_b32 {sT0}, {sWQ}, {sJ}\ns_or_b32 {sT0}, {sT0}, {sI}\ns_cselect_b32 {sF[2]}, {OOB}, {EPOCH}')
        return lastR, pre, {}
    def epi_F(self):
        A, V, C = self.A, self.V, self.C
        cc = self.Rg
        NT = 3
        tmp = [V.alloc(8, 4) for _ in range(NT)]; outp = [V.alloc(4, 4) for _ in range(NT)]
        T64 = OPT['t64']
        if T64:
            for pr in range(1, 3): A(f's_add_u32 {sE[pr]}, {sF[0]}, {pr*8192}')
        else:
            for pr in range(1, 6): A(f's_add_u32 {sE[pr]}, {sF[0]}, {pr*4096}')
        so = [sF[0]] + sE[1:6] + [sF[1]]
        self.G.all()
        L = []; k = 0
        for pr in range(4 if T64 else 7):
            for tt in range(2 if (pr == 3 or not T64) else 4):
                p = tmp[k % NT]; o = outp[k % NT]; k += 1
                spl = T64 and pr == 3
                if spl: a0, a1, c0, c1, tk = self.acc[2*tt][6], self.acc[2*tt+1][6], cc[6], cc[6], [2*tt, 2*tt, 2*tt+1, 2*tt+1]
                else: a0, a1, c0, c1, tk = self.acc[tt][2*pr], self.acc[tt][2*pr+1], cc[2*pr], cc[2*pr+1], [tt]*4
                src = [a0[0:2], a0[2:4], a1[0:2], a1[2:4]]
                cs = [c0[0:2], c0[2:4], c1[0:2], c1[2:4]]
                for i in range(4): L.append(f'v_pk_fma_f32 {src[i]}, {cs[i]}, {self.ms[tk[i]]}, {src[i]}')
                for i in range(4): L.append(f'v_pk_mul_f32 {src[i]}, {src[i]}, {self.nr[tk[i]]}')
                for i in range(8): L.append(f'v_exp_f32 {p[i]}, {src[i//2][i&1]}')
                for i in range(4): L.append(f'v_pk_add_f32 {p[2*i:2*i+2]}, {p[2*i:2*i+2]}, {self.kL}' if OPT['psc'] else f'v_pk_fma_f32 {p[2*i:2*i+2]}, {p[2*i:2*i+2]}, {self.kL}, {self.kL}')
                for i in range(8): L.append(f'v_rcp_f32 {p[i]}, {p[i]}')
                for i in range(4): L.append(f'v_pk_mul_f32 {p[2*i:2*i+2]}, {src[i]}, {p[2*i:2*i+2]}')
                for i in range(4): L.append(f'v_cvt_pk_bf16_f32 {o[i]}, {p[2*i]}, {p[2*i+1]}')
                if spl:
                    L += [f'v_permlane16_swap_b32 {o[0]}, {o[2]}', f'v_permlane16_swap_b32 {o[1]}, {o[3]}', f'buffer_store_dwordx4 {o}, {self.vsp}, {sWS}, {sF[1]} offen offset:{tt*2048} sc1']
                    continue
                L.append(f'buffer_store_dwordx4 {o}, {v_l16}, {sWS}, {so[pr]} offen offset:{tt*1024} ' + ['sc1', '', 'sc1 nt', 'sc0 sc1', 'nt'][OPT['hst']])
        if OPT['dbg'] & 8: L = [x for x in L if not x.startswith('buffer')]
        stampe(A, 1); ns = 0
        for x in L:
            A(x)
            if x.startswith('buffer'):
                ns += 1
                if ns % 2 == 0: stampe(A, 1 + ns//2)
                for p, e in enumerate(PH):
                    if ns == 2*e + OPT['lag']: A(f's_waitcnt vmcnt({OPT["lag"]})\ns_atomic_add {sLrow}, {sWS[0:2]}, {sF[2]} offset:{PHO[p]}')
        C.n += 14
        stamp(A, 6)
        for p, e in enumerate(PH):
            if 2*e + OPT['lag'] > 14: A(f's_waitcnt vmcnt({14 - 2*e})\ns_atomic_add {sLrow}, {sWS[0:2]}, {sF[2]} offset:{PHO[p]}')
        stampe(A, 9)
        stamp(A, 7)
    def feat(self, a0, a1, cvec, negm, rl, P16, E):
        L = []; B4 = a0
        for T, a in enumerate((a0, a1)):
            for h in range(2): L.append(f'v_pk_fma_f32 {a[2*h:2*h+2]}, {cvec[2*h:2*h+2]}, {negm[T]}, {a[2*h:2*h+2]}')
        for T, a in enumerate((a0, a1)):
            for h in range(2): L.append(f'v_cvt_pk_bf16_f32 {B4[2*T+h]}, {a[2*h]}, {a[2*h+1]}')
        L += [f'v_permlane16_swap_b32 {B4[0]}, {B4[2]}', f'v_permlane16_swap_b32 {B4[1]}, {B4[3]}']
        L.append(f'v_mfma_f32_32x32x16_bf16 {P16}, {self.aphi}, {B4}, 0')
        mx = B4[0]; m2 = B4[1]
        L += [f'v_max3_f32 {mx}, {P16[0]}, {P16[1]}, {P16[2]}', f'v_max3_f32 {m2}, {P16[3]}, {P16[4]}, {P16[5]}',
              f'v_max3_f32 {mx}, {mx}, {P16[6]}, {P16[7]}', f'v_max3_f32 {m2}, {m2}, {P16[8]}, {P16[9]}',
              f'v_max3_f32 {mx}, {mx}, {P16[10]}, {P16[11]}', f'v_max3_f32 {m2}, {m2}, {P16[12]}, {P16[13]}',
              f'v_max3_f32 {mx}, {mx}, {P16[14]}, {P16[15]}', f'v_max_f32 {mx}, {mx}, {m2}',
              f'v_mul_f32_e64 {B4[2]}, -{mx}, {rl[0]}', f'v_mul_f32_e64 {B4[3]}, -{mx}, {rl[0]}']
        for i in range(8): L.append(f'v_pk_fma_f32 {P16[2*i:2*i+2]}, {P16[2*i:2*i+2]}, {rl}, {B4[2:4]}')
        for i in range(16): L.append(f'v_exp_f32 {P16[i]}, {P16[i]}')
        s0, s1 = B4[0:2], B4[2:4]
        L += [f'v_pk_add_f32 {s0}, {P16[0:2]}, {P16[2:4]}', f'v_pk_add_f32 {s1}, {P16[4:6]}, {P16[6:8]}']
        for i in range(4, 8): L.append(f'v_pk_add_f32 {(s0, s1)[i&1]}, {(s0, s1)[i&1]}, {P16[2*i:2*i+2]}')
        L += [f'v_pk_add_f32 {s0}, {s0}, {s1}', f'v_add_f32 {B4[0]}, {B4[0]}, {B4[1]}', f'v_rcp_f32 {B4[0]}, {B4[0]}', f'v_mov_b32 {B4[1]}, {B4[0]}']
        for i in range(8): L.append(f'v_pk_mul_f32 {P16[2*i:2*i+2]}, {P16[2*i:2*i+2]}, {B4[0:2]}')
        for i in range(8): L.append(f'v_cvt_pk_bf16_f32 {E(i)}, {P16[2*i]}, {P16[2*i+1]}')
        return L
    def epi_A(self):
        A, V, C, l = self.A, self.V, self.C, lane
        e0, e1, e2, e3 = sE[0:4]
        acc, MR, negm, rl, bsel, zsel = self.acc, self.MR, self.negm, self.rl, self.bsel, self.zsel
        D0, D1 = self.Dg
        if OPT['cprio']: A(f's_setprio {OPT["cprio"]}')
        self.G.all()
        kv = [D0[0:4], D0[4:8]]; zz = D0[8:12]
        KA = OPT['kva']; lrep = V.alloc()
        a0, a1, ff, t0, t1, ah, as_, ak, ad, l26, vtag, fa = [D1[i] for i in range(12)]
        L = []
        for p in range(4):
            P16 = MR[p]; VB = acc[2*p][2]; Eq = [acc[2*p+1][1], acc[2*p+1][2]]
            for T in range(2):
                a = acc[2*p+T][2]; M4 = P16[8*T:8*T+4]; R4 = P16[8*T+4:8*T+8]
                for h in range(2): L.append(f'v_pk_fma_f32 {a[2*h:2*h+2]}, {M4[2*h:2*h+2]}, {self.cv}, {a[2*h:2*h+2]}')
                for h in range(2): L.append(f'v_pk_mul_f32 {a[2*h:2*h+2]}, {a[2*h:2*h+2]}, {R4[2*h:2*h+2]}')
                for h in range(2): L.append(f'v_cvt_pk_bf16_f32 {VB[2*T+h]}, {a[2*h]}, {a[2*h+1]}')
            L += self.feat(acc[2*p][1], acc[2*p+1][1], self.ck, negm[2*p:2*p+2], rl[p], P16, lambda i: Eq[i//4][i % 4])
            for m in range(2):
                for T in range(2): L.append(f'v_mfma_f32_16x16x32_bf16 {P16[8*m+4*T:8*m+4*T+4]}, {Eq[m]}, {bsel[T]}, 0')
            for i in range(8): L.append(f'v_cvt_pk_bf16_f32 {Eq[i//4][i%4]}, {P16[2*i]}, {P16[2*i+1]}')
            if KA:
                for m in range(2): L.append(f'v_mfma_f32_16x16x32_bf16 {kv[m]}, {VB}, {Eq[m]}, {kv[m] if p else 0}')
                for m in range(2): L.append(f'v_mfma_f32_16x16x32_bf16 {zz}, {zsel[m]}, {Eq[m]}, {zz if (p or m) else 0}')
                continue
            for m in range(2): L.append(f'v_mfma_f32_16x16x32_bf16 {kv[m]}, {Eq[m]}, {VB}, {kv[m] if p else 0}')
            for m in range(2): L.append(f'v_mfma_f32_16x16x32_bf16 {zz}, {Eq[m]}, {zsel[m]}, {zz if (p or m) else 0}')
        if KA:
            L += [f'v_and_b32 {t0}, 15, {l}', f'v_lshrrev_b32 {t1}, 4, {l}', f'v_lshlrev_b32 {t0}, 2, {t0}', f'v_lshl_add_u32 {a0}, {t1}, 8, {t0}',
                  f'v_mul_u32_u24 {a1}, 1088, {t1}', f'v_add_u32 {a1}, {a1}, {t0}', f'v_lshrrev_b32 {t1}, 1, {t1}', f'v_lshl_add_u32 {a1}, {t1}, 27, {a1}']
            for m in range(2):
                for r in range(4): L.append(f'buffer_atomic_add_f32 {kv[m][r]}, {a0}, {sWS}, {e2} offen offset:{1088*m + 64*r} sc1')
            L.append(f'buffer_atomic_add_f32 {zz[0]}, {a1}, {sWS}, {e2} offen offset:1024 sc1')
            L += [f'v_lshlrev_b32 {l26}, 26, {l}', f'v_mov_b32 {vtag}, {sTag}']
        else:
            L += [f'v_and_b32 {t0}, 15, {l}', f'v_and_b32 {t1}, 48, {l}', f'v_lshl_add_u32 {a0}, {t0}, 6, {t1}', f'v_mov_b32 {ff}, 0xff',
                  f'v_mul_u32_u24 {a1}, 1088, {t0}', f'v_add_u32 {a1}, {a1}, {t1}', f'v_lshrrev_b32 {t0}, 1, {t0}', f'v_lshl_add_u32 {a1}, {t0}, 27, {a1}']
            for m in range(2):
                L += tag_quad(kv[m], ff) + [f'buffer_store_dwordx4 {kv[m]}, {a0}, {sWS}, {e0} offen offset:{1088*m} sc1']
            L += tag_quad(zz, ff) + [f'buffer_store_dwordx4 {zz}, {a1}, {sWS}, {e0} offen offset:1024 sc1']
            L += [f'v_lshlrev_b32 {l26}, 26, {l}', f'v_mov_b32 {vtag}, {sTag}', f'v_mov_b32 {fa}, 1', f'v_lshrrev_b32 {lrep}, {OPT["Rk"].bit_length()-1}, {l}', f'v_lshlrev_b32 {lrep}, 26, {lrep}', f'v_lshl_add_u32 {lrep}, {l}, 14, {lrep}']
            if not OPT['ack1']: L.append(f'buffer_atomic_add {fa}, {lrep}, {sWS}, {sXb} offen sc1')
        stampe(A, 1)
        emit_sched(A, L, 'kside'); C.n += 4
        stampe(A, 2)
        stamp(A, 6)
        h1 = [self.sel16[4*i:4*i+4] for i in range(4)]
        ld1 = [f'buffer_load_dwordx4 {h1[0]}, {ah}, {sWS}, {e1} offen sc1', f'buffer_load_dwordx4 {h1[1]}, {ah}, {sWS}, {e1} offen offset:1088 sc1',
               f'buffer_load_dwordx4 {h1[2]}, {ah}, {sWS}, {sE[4]} offen offset:1024 sc1', f'buffer_load_dwordx4 {h1[3]}, {ah}, {sWS}, {sE[4]} offen offset:2112 sc1']
        perm = [0, 1, 2, 3] if KA else [1, 0, 2, 3]
        eq = [[acc[2*p+1][0], acc[2*p][1]] for p in range(4)]
        def qside(ps):
            L = []
            for p in ps:
                L += self.feat(acc[2*p][0], acc[2*p+1][0], self.cq, negm[2*p:2*p+2], rl[p], MR[p], lambda i: eq[p][i//4][perm[i % 4]])
            return L
        adr = [f'v_lshrrev_b32 {ah}, 2, {l}', f'v_mul_u32_u24 {ah}, 2176, {ah}', f'v_and_b32 {t0}, 3, {l}', f'v_lshl_add_u32 {ah}, {t0}, 4, {ah}',
               f'v_lshrrev_b32 {as_}, 5, {l}', f'v_mul_u32_u24 {as_}, 1088, {as_}', f'v_lshl_add_u32 {as_}, {t0}, 4, {as_}', f'v_bfe_u32 {t0}, {l}, 4, 1', f'v_lshl_add_u32 {as_}, {t0}, 3, {as_}',
               f'v_and_b32 {t1}, 12, {l}', f'v_lshl_add_u32 {as_}, {t1}, 26, {as_}',
               f'v_and_b32 {ad}, 15, {l}', f'v_lshlrev_b32 {ad}, 4, {ad}', f'v_lshl_add_u32 {ad}, {t0}, 14, {ad}', f'v_lshrrev_b32 {t0}, 5, {l}', f'v_lshl_add_u32 {ad}, {t0}, 8, {ad}',
               f'v_and_b32 {ak}, 31, {l}', f'v_min_u32 {ak}, 16, {ak}', f'v_lshlrev_b32 {ak}, 6, {ak}', f'v_lshl_add_u32 {ak}, {t0}, 5, {ak}']
        if KA:
            qa, qb = OPT['qa'], OPT['qb']
            ldall = self.sel16
            emit_sched(A, qside(range(qa)) + [adr[7]] + adr[11:], 'qa')
            stampe(A, 3)
            sarrive(A, *[f'{sXb} offset:{16384*r}' for r in range(OPT['Rk'])])
            stampe(A, 4); stamp(A, 7)
            A(f's_add_u32 {e0}, {sF[0]}, 32768\ns_add_u32 {e1}, {sF[0]}, {72*4096}\ns_add_u32 {e3}, {e1}, 32768')
            if qb: emit_sched(A, qside(range(qa, qa+qb)), 'qb')
            stampe(A, 5)
            ppoll(A, sXo, 16, OPT['Dk'], 20, OPT['slpa'])
            stampe(A, 6); stamp(A, 8)
            for m in range(2):
                for h in range(2): A(f'buffer_load_dwordx4 {ldall[8*m+4*h:8*m+4*h+4]}, {ak}, {sWS}, {e2} offen offset:{1088*m+16*h} sc1')
            A(f'buffer_store_dword {vtag}, {l26}, {sWS}, {sF[2]} offen sc1')
            if qa + qb < 4: emit_sched(A, qside(range(qa+qb, 4)), 'qc')
            stampe(A, 7)
            A('s_waitcnt vmcnt(1)')
            stamp(A, 4)
            L = []
            for m in range(2):
                for i in range(4): L.append(f'v_cvt_pk_bf16_f32 {D0[4*m+i]}, {ldall[8*m+2*i]}, {ldall[8*m+2*i+1]}')
            kvA = [D0[0:4], D0[4:8]]
        else:
            if OPT['ack1']:
                emit_sched(A, qside([0]) + adr, 'q0')
                sarrive(A, sXb)
                emit_sched(A, qside([1]), 'q1')
            else: emit_sched(A, qside([0, 1]) + adr, 'q01')
            stampe(A, 3)
            ppoll(A, sXo, 16, OPT['Dk'], 20, OPT['slpa'])
            stamp(A, 7)
            stampe(A, 4)
            for x in ld1: A(x)
            emit_sched(A, qside([2]), 'q2')
            stampe(A, 5)
            A('s_waitcnt vmcnt(0)')
            tm = D0
            def chk1():
                for i in range(4): quad_diff(A, h1[i], tm[i], tm[4+i])
                A(f'v_or_b32 {tm[0]}, {tm[0]}, {tm[1]}\nv_or_b32 {tm[2]}, {tm[2]}, {tm[3]}\nv_cmp_ne_u32 vcc, 0, {tm[2]}\nv_cmp_ne_u32 s[4:5], 0, {tm[0]}')
                A(f's_and_b64 vcc, vcc, {sM2}\ns_or_b64 s[4:5], s[4:5], vcc')
            poll(A, '\n'.join(ld1), chk1, sleep=OPT['slp'], mask_exec=True, first_loaded=True)
            stampe(A, 6)
            L = []
            for x, y, so, off in ((h1[0], h1[1], e3, 0), (h1[2], h1[3], sE[5], 1024)):
                for k in range(4): L += [f'v_and_b32 {x[k]}, 0xffffff00, {x[k]}', f'v_and_b32 {y[k]}, 0xffffff00, {y[k]}']
                for k in range(4): L += [f'v_permlane32_swap_b32 {x[k]}, {y[k]}', f'v_add_f32 {x[k]}, {x[k]}, {y[k]}']
                for k in range(2): L += [f'v_permlane16_swap_b32 {x[k]}, {x[k+2]}', f'v_add_f32 {x[k]}, {x[k]}, {x[k+2]}', dpp_add(x[k], 'row_ror:4'), dpp_add(x[k], 'row_ror:8')]
                L += [f'v_cvt_pk_bf16_f32 {x[0]}, {x[0]}, {x[1]}', f'v_mov_b32 {x[1]}, {sTag}', f'buffer_store_dwordx2 {x[0:2]}, {as_}, {sWS}, {so} offen offset:{off} sc1']
            if not OPT['ack2']: L.append(f'buffer_atomic_add {fa}, {lrep}, {sWS}, {sWb} offen sc1')
            emit_sched(A, L, 'reduce'); C.n += 3
            stamp(A, 8)
            ld = [self.Rg[0], self.Rg[1], self.Rg[2], self.Rg[3]]; assert all(ld[i].b == ld[0].b + 4*i for i in range(4))
            ldall = R('v', ld[0].b, 16)
            ld2 = [f'buffer_load_dwordx4 {ld[2*m+h]}, {ak}, {sWS}, {e2} offen offset:{1088*m+16*h} sc1' for m in range(2) for h in range(2)]
            A(f's_add_u32 {e0}, {sF[0]}, 32768\ns_add_u32 {e1}, {sF[0]}, {72*4096}\ns_add_u32 {e3}, {e1}, 32768')
            emit_sched(A, qside([3]), 'q3')
            if OPT['ack2']: sarrive(A, sWb)
            A(f'buffer_store_dword {vtag}, {l26}, {sWS}, {sF[2]} offen sc1')
            ppoll(A, sWo, 16, OPT['Dk'], 20, OPT['slpa'])
            stampe(A, 7)
            poll(A, '\n'.join(ld2), chk_words(A, [ldall[2*i+1] for i in range(8)], tm), sleep=OPT['slp'], mask_exec=True)
            stamp(A, 4)
            L = []
            for m in range(2): L += [f'v_mov_b32 {ldall[8*m+3]}, {ldall[8*m]}', f'v_mov_b32 {ldall[8*m+5]}, {ldall[8*m+6]}']
            kvA = [ldall[2:6], ldall[10:14]]
        for p in range(4):
            N = MR[p]; o = acc[2*p][2]
            L.append(f'v_mfma_f32_32x32x16_bf16 {N}, {kvA[0]}, {eq[p][0]}, 0')
            L.append(f'v_mfma_f32_32x32x16_bf16 {N}, {kvA[1]}, {eq[p][1]}, {N}')
            L += [f'v_add_f32 {N[8]}, {f2u(1e-6):#x}, {N[8]}', f'v_rcp_f32 {N[8]}, {N[8]}']
            if OPT['opk']:
                L.append(f'v_mov_b32 {N[9]}, {N[8]}')
                for i in range(4): L.append(f'v_pk_mul_f32 {N[2*i:2*i+2]}, {N[2*i:2*i+2]}, {N[8:10]}')
            else:
                for i in range(8): L.append(f'v_mul_f32 {N[i]}, {N[i]}, {N[8]}')
            for i in range(4): L.append(f'v_cvt_pk_bf16_f32 {o[i]}, {N[2*i]}, {N[2*i+1]}')
            L.append(f'buffer_store_dwordx4 {o}, {ad}, {sWS}, {[sF[0], e0, e1, e3][p]} offen sc1')
        stampe(A, 8)
        if OPT['snt']:
            L += [f'v_mov_b32 {fa}, 1', f'v_lshrrev_b32 {lrep}, 1, {l}', f'v_lshlrev_b32 {lrep}, 26, {lrep}', f'v_lshl_add_u32 {lrep}, {l}, 11, {lrep}',
                  f'buffer_atomic_add {fa}, {lrep}, {sWS}, {sF[1]} offen sc1']
        emit_sched(A, L, 'oside'); C.n += 4
        stampe(A, 9)
        if OPT['wo']: A(f'v_mov_b32 {t0}, {L_TAG}\nv_mov_b32 {t1}, 16\ns_mov_b64 exec, 1\nds_add_u32 {t0}, {t1} offset:8\ns_mov_b64 exec, -1')
        if not OPT['snt']: sarrive(A, *[f'{x} offset:{256*r}' for r in range(OPT['Ro']) for x in (sF[1], sHb)])
        stampe(A, 10)

def p2_C(A):
    l = lane; C = Ctx(A); G = LG(A)
    NP = OPT['npre']
    V = Pool('v', 4, 256)
    vab = [V.alloc() for _ in range(4)]
    go, vm_, t0, t1, xq2 = V.alloc(), V.alloc(), V.alloc(), V.alloc(), V.alloc()
    xq = V.alloc(8, 4); acc = V.alloc(16, 4); ao = V.alloc(64, 4)
    Bs = [V.alloc(16, 4) for _ in range(NP)]
    A(f'v_and_b32 {t0}, 15, {l}\nv_lshlrev_b32 {go}, 10, {t0}\nv_bfe_u32 {t0}, {l}, 4, 1\nv_lshl_add_u32 {go}, {t0}, 5, {go}\nv_lshrrev_b32 {t0}, 5, {l}\nv_lshl_add_u32 {go}, {t0}, 4, {go}')
    A(f's_lshl_b32 {sE[0]}, {sI2}, 16\ns_lshl_b32 {sT0}, {sWQ}, 14\ns_add_u32 {sE[0]}, {sE[0]}, {sT0}\ns_lshl_b32 {sT1}, {sJ2}, 7\ns_add_u32 {sE[0]}, {sE[0]}, {sT1}')
    for P in range(2): A(f'buffer_load_dwordx4 {xq[4*P:4*P+4]}, {go}, {sX}, {sE[0]} offen offset:{64*P}')
    A(f's_mul_i32 {sE[1]}, {sI2}, {72*4096}\ns_add_u32 {sE[1]}, {sE[1]}, {sT0}\ns_add_u32 {sE[1]}, {sE[1]}, {ACT + 56*4096}')
    for i in range(1, 4): A(f's_add_u32 {sE[1+i]}, {sE[1]}, {4096*i}')
    cnt_i2(A, sE[5], sI2, 5120)
    if OPT['Ro'] > 1: A(f's_and_b32 s4, {sJ2}, {OPT["Ro"]-1}\ns_lshl_b32 s4, s4, 8\ns_add_u32 {sE[5]}, {sE[5]}, s4')
    tr_addr(A, vab, WOB, t0, t1)
    A(f'v_mov_b32 {vm_}, {L_TAG}')
    stamph(A, 1)
    if OPT['eo']:
        l0, l1, l2 = A.lab('EO'), A.lab('EP'), A.lab('EQ')
        A(f's_cmp_lg_u32 {sWV}, 0\ns_cbranch_scc1 {l1}')
        A(f's_add_u32 {sT1}, {sTag}, 32\ns_mov_b32 {sSpin}, {OPT["spin"]}')
        A(f'{l0}:\ns_mov_b32 {sT0}, 0\ns_atomic_add {sT0}, {sWS[0:2]}, {sE[5]} glc\ns_waitcnt lgkmcnt(0)\nds_read_b32 {t0}, {vm_} offset:4\ns_cmp_eq_u32 {sT0}, {sT1}\ns_cbranch_scc1 {l2}')
        A(f's_waitcnt lgkmcnt(0)\nv_readfirstlane_b32 {sT0}, {t0}\ns_cmp_ge_u32 {sT0}, 4\ns_cbranch_scc1 {l1}')
        A(f's_sleep {OPT["slpo"]}\ns_sub_u32 {sSpin}, {sSpin}, 1\ns_cbranch_scc0 {l0}\ns_branch {l1}')
        A(f'{l2}:\ns_mov_b32 {sWV}, 8\nv_mov_b32 {xq2}, 16\ns_mov_b64 exec, 1\nds_add_u32 {vm_}, {xq2} offset:12\ns_mov_b64 exec, -1')
        A(f'{l1}:')
    lds_spin(A, vm_, 4, 4, t0, slp=4 if OPT['nsl'] & 4 else 1)
    stamph(A, 2)
    tokB = {}
    def trl(k): return [(f'ds_read_b64_tr_b16 {Bs[k % NP][4*q+2*hf:4*q+2*hf+2]}, {vab[q]} offset:{k*4096 + hf*2048}', (k, q)) for q in range(4) for hf in range(2)]
    if OPT['snt']: A(f's_movk_i32 {sCur}, 4096\nK_redo:')
    for k in range(NP):
        for s, key in trl(k): G.ds(s); tokB[key] = 0
    if OPT['snt']: A(f's_cmpk_lg_u32 {sCur}, 4096\ns_cbranch_scc1 K_ld')
    stamph(A, 3)
    if OPT['opoll']:
        ppoll(A, sE[5], 32, OPT['Do'], 20, OPT['slpo'])
        G.all()
    else:
        lk, le = A.lab('NO'), A.lab('OE')
        A(f's_cmp_lg_u32 {sWV}, 0\ns_cbranch_scc1 {lk}')
        ppoll(A, sE[5], 32, OPT['Do'], 20, OPT['slpo'])
        if OPT['gs']:
            stamp(A, 3)
            A(f'v_mov_b32 {t0}, 16\ns_mov_b64 exec, 1\nds_add_u32 {vm_}, {t0} offset:12\ns_mov_b64 exec, -1')
            A(f'{lk}:')
            stamph(A, 4)
            if OPT['pwg']:
                A(f's_lshl_b32 {sT1}, 1, {sWQ}\ns_or_b32 {sT1}, {sT1}, 16')
                lds_spin(A, vm_, 12, sT1, t0, mask=True, slp=0 if OPT['nsl'] & 2 else 1)
            else: lds_spin(A, vm_, 12, 20, t0)
            if OPT['eo']: A(f's_and_b32 {sWV}, {sWV}, 7')
        else:
            A(f'v_mov_b32 {t0}, 1\nds_write_b32 {vm_}, {t0} offset:12\ns_branch {le}')
            A(f'{lk}:')
            lds_spin(A, vm_, 12, 1, t0)
            A(f'{le}:')
    stamp(A, 9); stampf(A, 0)
    stamph(A, 5)
    if OPT['snt']: A('K_ld:')
    tok = {}
    for s in range(16):
        tok[s] = C.vm(f'buffer_load_dwordx4 {ao[4*s:4*s+4]}, {v_l16}, {sWS}, {sE[1 + s//4]} offen offset:{(s & 3)*1024} ' + ['sc1', '', 'sc0', 'nt', 'sc0 sc1'][OPT['old']])
    stampf(A, 1)
    G.all()
    A(f's_lshl_b32 {sT0}, {sWQ}, 12\nv_add_u32 {t1}, {sT0}, {v_l16}')
    Q = []
    for s in range(16):
        C.wait(tok[s])
        if s == 0 and not OPT['snt']:
            for P in range(2): A(f'v_permlane16_swap_b32 {xq[4*P]}, {xq[4*P+2]}\nv_permlane16_swap_b32 {xq[4*P+1]}, {xq[4*P+3]}')
        for q in range(4):
            G.need(tokB[(s, q)])
            A(f'v_mfma_f32_16x16x32_bf16 {acc[4*q:4*q+4]}, {Bs[s % NP][4*q:4*q+4]}, {ao[4*s:4*s+4]}, {acc[4*q:4*q+4] if s else 0}')
            for _ in range(2):
                if Q: x, key = Q.pop(0); tokB[key] = G.ds(x)
        if OPT['snt'] and s & 1: A(f'v_max3_u32 {t0}, {ao[4*s]}, {ao[4*s-4]}, {t0 if s > 1 else 0}')
        if OPT['xu'] and s >= 8:
            i = s - 8
            A(f'v_lshlrev_b32 {ao[2*i]}, 16, {xq[i]}\nv_and_b32 {ao[2*i+1]}, 0xffff0000, {xq[i]}')
        if s + NP < 16: Q += trl(s + NP)
        if s in (0, 3, 7, 11, 15): stampf(A, 2 + (s+1)//4)
    if OPT['snt']:
        A(f'v_cmp_eq_u32 vcc, -1, {t0}\ns_and_b64 s[4:5], vcc, exec\ns_cbranch_scc0 K_ok\ns_sleep 1\ns_sub_u32 {sCur}, {sCur}, 1\ns_cbranch_scc0 K_redo\nK_ok:')
        for P in range(2): A(f'v_permlane16_swap_b32 {xq[4*P]}, {xq[4*P+2]}\nv_permlane16_swap_b32 {xq[4*P+1]}, {xq[4*P+3]}')
    xf = ao[0:16]; g = ao[16:32]
    stamp(A, 10); stamph(A, 6)
    A('s_barrier')
    stampf(A, 7); stamph(A, 7)
    for u in range(4): A(f'ds_read_b128 {g[4*u:4*u+4]}, {t1} offset:{X0 + 1024*u}')
    assert not (OPT['xu'] and OPT['snt'])
    if not OPT['xu']:
        for i in range(8): A(f'v_lshlrev_b32 {xf[2*i]}, 16, {xq[i]}\nv_and_b32 {xf[2*i+1]}, 0xffff0000, {xq[i]}')
    for P in range(2):
        A(f's_waitcnt lgkmcnt({2 - 2*P})')
        for i in range(4*P, 4*P+4): A(f'v_pk_fma_f32 {g[2*i:2*i+2]}, {g[2*i:2*i+2]}, {acc[2*i:2*i+2]}, {xf[2*i:2*i+2]}')
        for i in range(4*P, 4*P+4): A(f'v_cvt_pk_bf16_f32 {xq[i]}, {g[2*i]}, {g[2*i+1]}')
    for P in range(2):
        A(f'v_permlane16_swap_b32 {xq[4*P]}, {xq[4*P+2]}\nv_permlane16_swap_b32 {xq[4*P+1]}, {xq[4*P+3]}')
    for P in range(2): A(f'buffer_store_dwordx4 {xq[4*P:4*P+4]}, {go}, {sOUT}, {sE[0]} offen offset:{64*P} ' + ['', 'sc1', 'nt', 'sc0 sc1', 'sc1 nt', 'sc0 sc1 nt'][OPT['ost']])
    stampf(A, 8); stamph(A, 8)
    if OPT['stamp'] == 6: A('s_waitcnt vmcnt(0)')
    stampf(A, 9)

vb = [R('v', 4+i, 1) for i in range(4)]
vb0, vb1 = R('v', 8, 1), R('v', 9, 1)
RS = [R('v', 80+16*i, 16) for i in range(11)]
ACCL = R('v', 16, 64)
vbh = [R('v', 13, 1), R('v', 14, 1), R('v', 15, 1), R('v', 2, 1)]
va = [R('v', 10, 1), R('v', 11, 1), R('v', 12, 1), R('v', 0, 1)]
vx2, vx3, vw1, vh, pt, pa, pm, p1 = [ACCL[48+i] for i in range(8)]
def nib(d, k): return f's_bfe_u32 {d}, {sCur if k < 8 else sCurA}, {(4 << 16) | (4 * (k % 8)):#x}'
LOAD = [0, 1, 8, 9, 2, 3, 4, 5, 6, 7, 10, 11, 12, 13] if OPT['lord'] else list(range(14))
RSL = {0: 0, 1: 1, 2: 2, 3: 3, 4: 4, 5: 5, 8: 6, 9: 7, 6: 0, 7: 1, 10: 2, 11: 3, 12: 4, 13: 5} if OPT['lord'] else {k: k % 8 for k in range(14)}
if OPT['lord'] == 2:
    LOAD = [0, 1, 2, 3, 8, 9, 10, 4, 5, 6, 7, 11, 12, 13]
    RSL = {0: 0, 1: 1, 2: 2, 3: 3, 8: 4, 9: 5, 10: 6, 4: 7, 5: 0, 6: 1, 7: 2, 11: 3, 12: 7, 13: 2}
if OPT['lord'] == 3:
    LOAD = [0, 4, 8, 12, 1, 2, 3, 5, 6, 7, 9, 10, 11, 13]
    RSL = {0: 0, 6: 0, 1: 1, 7: 1, 2: 2, 9: 2, 3: 3, 10: 3, 4: 4, 11: 4, 5: 5, 13: 5, 8: 6, 12: 7}
if OPT['lord'] == 4:
    LOAD = [0, 1, 4, 5, 8, 9, 12, 2, 3, 6, 7, 10, 11, 13]
    RSL = {1: 0, 6: 0, 2: 1, 7: 1, 0: 2, 3: 2, 10: 2, 4: 3, 11: 3, 5: 4, 13: 4, 8: 5, 9: 6, 12: 7}
PH = [int(c) for c in str(OPT['ph'])] if OPT['ph'] else [4, 7]
PHO = [0, 8192, 128, 8192 + 128]
sB0, sB1 = sM2[0], sM2[1]
sLi = [sXo, sHo, sWb, sRot]
vr0, vr1 = vb0, vb1
class BP:
    def __init__(self, A, C, G):
        self.A, self.C, self.G = A, C, G
        self.next = 0; self.free = []; self.fly = []; self.slot = {}; self.tok = {}; self.cool = []; self.dep = 0; self.pend = []
    def dma(self, k, sl):
        A = self.A
        for f in self.dma_list(k, sl): f()
    def dma_list(self, k, sl):
        A = self.A
        self.slot[k] = sl
        def mk(i):
            def f():
                if OPT['xr'] & 2:
                    if i == 0: A(f'{nib(sB0, LOAD[k])}\ns_lshl_b32 {sB0}, {sB0}, 15\ns_add_u32 {sB0}, {sB0}, {sBb}\ns_xor_b32 {sB1}, {sB0}, 16384')
                    A(f's_add_u32 m0, {sLi[i]}, {sl}')
                else:
                    if i == 0: A(f'{nib(sB0, LOAD[k])}\ns_lshl_b32 {sB0}, {sB0}, 15\ns_add_u32 {sB0}, {sB0}, {sBb}\ns_add_u32 {sB1}, {sB0}, 16384')
                    A(f's_add_u32 m0, {sLb2}, {sl + 1024*i}')
                if self.dep: A(f's_waitcnt vmcnt({self.dep - 1})')
                if OPT['t64'] and LOAD[k] >= 12:
                    assert OPT['ph'] and not OPT['xr']
                    if i == 0: A(f's_mov_b32 exec_lo, 0\nv_add_u32 {vb0}, 0x1000, {vb0}\ns_mov_b32 exec_lo, -1')
                    if i == 2: A(f's_add_u32 {sB0}, {sB0}, 4096\ns_add_u32 {sB1}, {sB1}, 4096')
                    self.tok[k] = self.C.vm(f'buffer_load_dwordx4 {vb0}, {sW2}, {(sB0, sB1)[i & 1]} offen lds')
                    if i == 3: A(f's_mov_b32 exec_lo, 0\nv_subrev_u32 {vb0}, 0x1000, {vb0}\ns_mov_b32 exec_lo, -1')
                    return
                self.tok[k] = self.C.vm(f'buffer_load_dwordx4 {(vb0, vb1)[i & 1]}, {sW2}, {(sB0, sB1)[i >> 1]} offen lds')
            return f
        return [mk(i) for i in range(4)]
    def wo_list(self, k):
        A = self.A
        def mk(i):
            def f():
                if i == 0:
                    A(f's_xor_b32 {sT1}, {sF[2]}, {k}\ns_lshl_b32 {sF[3]}, {sT1}, 12\ns_lshl2_add_u32 {sF[3]}, {sLb2}, {sF[3]}')
                    A(f's_lshl_b32 {sT0}, {sT1}, 15\ns_add_u32 {sT0}, {sT0}, {sF[0]}\ns_add_u32 {sT1}, {sT0}, 16384')
                if OPT['xr'] & 2 and i == 0: A(f's_add_u32 {sF[3]}, {sF[3]}, {sHb}')
                if OPT['xr'] & 2 and i == 2: A(f's_sub_u32 {sF[3]}, {sF[3]}, {sHb}\ns_sub_u32 {sF[3]}, {sF[3]}, {sHb}')
                A(f's_add_u32 m0, {sF[3]}, {WOB + 1024*i}')
                if self.dep: A(f's_waitcnt vmcnt({self.dep - 1})')
                self.tokwo = self.C.vm(f'buffer_load_dwordx4 {(vb0, vb1)[i >> 1]}, {sWO}, {(sT0, sT1)[i & 1]} offen lds')
            return f
        return [mk(i) for i in range(4)]
    def trl(self, k):
        sl = self.slot[k]; hi = sl >= Y0
        off = sl - Y0 if hi else sl
        dst = RS[RSL[LOAD[k]]]
        return [f'ds_read_b64_tr_b16 {dst[4*q+2*hf:4*q+2*hf+2]}, {(vbh if hi else vb)[q]} offset:{off + hf*2048}' for q in range(4) for hf in range(2)]
    def retire(self):
        k = self.fly.pop(0)
        self.C.wait(self.tok[k])
        for s in self.trl(k): tk = self.G.ds(s)
        self.cool.append((self.slot[k], tk))
    def step(self, run=True):
        self.flush()
        if self.next >= 13: return False
        if not self.free:
            if not self.cool: self.retire()
            if len(self.cool) == 1 and self.fly and self.next - self.fly[0] >= 3: self.retire()
            sl, tk = self.cool.pop(0); self.G.need(tk, 8); self.free.append(sl)
        k = self.next; self.next += 1
        self.pend = self.dma_list(k, self.free.pop(0))
        if k < 8: self.fly.append(k)
        if run: self.flush()
        return True
    def flush(self):
        while self.pend: self.pend.pop(0)()
    def quota(self, n):
        for _ in range(n):
            if not self.pend: self.step(run=False)
            self.pend.pop(0)()

class LW:
    def __init__(self, A, typ):
        self.A = A; self.typ = typ; self.C = Ctx(A); self.G = LG(A); self.B = BP(A, self.C, self.G)
        self.lrow = 3584 if typ == 'F' else 3072
        self.stok = {}; self.sq = []
    def issue(self, st, only_half=False, lo=0, hi=99):
        A = self.A if lo == 0 else (lambda x: None); buf = phys(st); F = self.typ == 'F'
        cs = 128 if F else 1024
        if not only_half:
            A(f's_bfe_u32 {sT0}, {sRot}, {(4 << 16) | (4*st):#x}\ns_lshl_b32 {sXo}, {sT0}, 7\ns_add_u32 {sXo}, {sXo}, {sXb}')
            A(f's_mul_i32 {sT0}, {sT0}, {64*self.lrow}\ns_add_u32 {sWo}, {sT0}, {sWb}')
            xs = [(buf + 4096*p, (vx0, vx2, vx1, vx3)[p], sX, sXo, 0) for p in range(4)]
            ws = [(buf + 16384 + 8192*b + 4096*h - b*cs, (vw, vw1)[h], sW, sWo, b*cs) for h in range(2) for b in range(3)]
            items = [xs[0], ws[0], ws[1], xs[1], ws[2], xs[2], ws[3], ws[4], xs[3], ws[5]]
        else: items = []
        if F:
            A(f's_add_u32 {sHo}, {sWo}, {sHb}')
            items.append((buf + 16384 + 24576, vh, sW, sHo, 0))
        A = self.A
        for m, v, sr, so, off in items[lo:hi]:
            A(f's_add_u32 m0, {sLb}, {m}')
            self.stok[st] = self.C.vm(f'buffer_load_dwordx4 {v}, {sr}, {so} offen' + (f' offset:{off}' if off else '') + ' lds')
            while self.sq:
                x = self.sq.pop(0); A(x)
                if x.startswith('s_load'): break
    def run(self):
        A, C, G, B, l = self.A, self.C, self.G, self.B, lane
        F = self.typ == 'F'; lrow = self.lrow
        C.n = 5; self.stok[0] = 5
        T = [ACCL[i] for i in range(64)]
        if OPT['lprio']: A(f's_setprio {OPT["lprio"]}')
        srd(A, sW2, 48, SZ_W2); srd(A, sWO, 24, SZ_WO)
        if not F: srd(A, sPHI, 16, SZ_PHI)
        elif OPT['j3']: srd(A, sPHI, 8, SZ_QKV)
        vj3 = ACCL[62]
        def j3touch(second):
            A(f'v_lshrrev_b32 {vj3}, 3, {l}\nv_mul_u32_u24 {vj3}, 3072, {vj3}\nv_and_b32 {ACCL[63]}, 0x70, {v_l16}\nv_add_u32 {vj3}, {vj3}, {ACCL[63]}')
            A(f's_and_b32 {sT0}, {sI}, 7\ns_lshl2_add_u32 {sT0}, {sT0}, {sWQ}\ns_lshr_b32 {sT1}, s2, 1\ns_xor_b32 {sT1}, {sT1}, s2\ns_and_b32 {sT1}, {sT1}, 1' + (f'\ns_xor_b32 {sT1}, {sT1}, 1' if second else ''))
            A(f's_lshl_b32 {sT1}, {sT1}, 5\ns_add_u32 {sT0}, {sT0}, {sT1}\ns_mul_i32 {sT0}, {sT0}, {8*3072}')
            A(f's_sub_u32 {sT1}, {sJJ}, 4\ns_min_u32 s6, {sT1}, 2\ns_lshl_b32 s6, s6, 10\ns_add_u32 {sT0}, {sT0}, s6')
            A(f's_cmp_gt_u32 {sT1}, 3\ns_cselect_b32 {sT0}, {OOB}, {sT0}\ns_cmp_eq_u32 {sT1}, 2\ns_cselect_b32 {sT0}, {OOB}, {sT0}\ns_mov_b32 m0, {JUNK}')
            if F and not second: A('s_waitcnt lgkmcnt(0)')
            C.vm(f'buffer_load_dwordx4 {vj3}, {sPHI if F else sW}, {sT0} offen offset:384 lds')
        if OPT['j3'] & 1 and OPT['j3p'] == 0: j3touch(False)
        A(f's_sub_u32 {sLb}, {sLb}, 4096')
        A(f'v_or_b32 {vx2}, 0x8000, {vx0}\nv_or_b32 {vx3}, 0x8000, {vx1}\nv_and_b32 {vx0}, 0xffff7fff, {vx0}\nv_and_b32 {vx1}, 0xffff7fff, {vx1}')
        if OPT['flip'] & 1: A(f's_bitcmp1_b32 s2, 5\ns_cselect_b32 s4, 0, {32*lrow}\nv_subrev_u32 {vw}, s4, {vw}')
        else: A(f'v_subrev_u32 {vw}, {32*lrow}, {vw}')
        A(f'v_add_u32 {vw1}, {32*lrow}, {vw}')
        if OPT['rot'] == 4:
            A(f's_and_b32 s4, {sRot}, 3\ns_lshl_b32 s4, s4, 2\ns_lshr_b32 s4, 0x32103210, s4\ns_and_b32 s4, s4, 0xffff')
            if OPT['r3'] & 1:
                A(f's_lshl_b32 s4, s4, 16\ns_and_b32 s5, {sI}, 7\ns_and_b32 s6, {sJJ}, 3\ns_add_u32 s5, s5, s6\ns_lshl_b32 s5, s5, 1\ns_lshr_b32 s5, 1198372, s5\ns_and_b32 s5, s5, 3')
                A(f's_lshl_b32 s5, s5, 2\ns_lshr_b32 s5, 0x213210, s5\ns_and_b32 s5, s5, 0xfff0\ns_or_b32 s4, s4, s5')
            elif OPT['r2'] == 0: A(f's_mul_i32 s4, s4, 0x10001')
            elif OPT['r2'] == 1: A(f's_bitcmp1_b32 {sRot}, 0\ns_cselect_b32 s5, 0x11110000, 0\ns_xor_b32 s5, s5, 0x32100000\ns_or_b32 s4, s4, s5')
            else: A(f's_or_b32 s4, s4, 0x32100000')
            A(f's_cmp_ge_u32 {sRot}, 4\ns_cselect_b32 s5, 0x4444, 0x44440000\ns_or_b32 {sRot}, s4, s5'.replace('s_cselect_b32 s5, 0x4444, 0x44440000', 's_mov_b32 s5, 0x44440000\ns_cmovk_i32 s5, 0x4444'))
        elif OPT['rot'] == 2:
            A(f's_mul_i32 {sRot}, {sRot}, 0x11111111\ns_xor_b32 {sRot}, {sRot}, 0x76543210')
        else:
            A(f's_mov_b32 s4, 0x76543210\ns_mov_b32 s5, s4\ns_lshl_b32 s6, {sRot}, 2\ns_lshr_b64 s[4:5], s[4:5], s6\ns_mov_b32 {sRot}, s4')
        if F:
            t0, t1, t2 = T[0:3]
            A(f's_and_b32 {sT0}, {sJ}, 1\ns_mul_i32 {sT0}, {sT0}, 448\ns_sub_u32 {sHb}, 384, {sT0}')
            A(f's_mul_i32 {sT0}, {sWQ}, {16*lrow}\ns_add_u32 {sHb}, {sHb}, {sT0}')
            A(f'v_lshrrev_b32 {t0}, 2, {l}\nv_and_b32 {t1}, 3, {l}\nv_lshrrev_b32 {t2}, 4, {l}\nv_and_b32 {t2}, 2, {t2}\nv_xor_b32 {t2}, {t2}, {t1}\nv_lshlrev_b32 {t2}, 4, {t2}')
            A(f'v_mul_u32_u24 {vh}, {lrow}, {t0}\nv_add_u32 {vh}, {vh}, {t2}')
            self.issue(0, only_half=True)
        if OPT['e1']: self.issue(1, hi=OPT['e1'])
        p2_ids(A)
        t0, t1, f = T[0:3]
        if OPT['ph']:
            if OPT['brot'] and OPT['sw']: A(f's_and_b32 s7, {sJ2}, 3\ns_cmp_eq_u32 s7, 3\ns_cselect_b32 s7, 3, 2\ns_and_b32 s6, s6, s7')
            elif OPT['brot']: A('s_and_b32 s6, s6, 2')
            A(f's_add_u32 s6, s6, {sJ2}\ns_and_b32 s7, s6, 3\ns_lshl_b32 s7, s7, 2\ns_lshr_b32 s4, 0x98109810, s7\ns_and_b32 s4, s4, 0xffff')
            A(f's_mul_i32 {sCur}, s4, 0x10001\ns_add_u32 {sCur}, {sCur}, 0x22220000')
            A(f's_bitcmp1_b32 s6, {1 if OPT["brot"] else 0}\ns_cselect_b32 s5, 0x110000, 0\ns_xor_b32 s5, s5, 0x764444\ns_add_u32 {sCurA}, s4, s5')
        else:
            if OPT['brot'] and OPT['sw']: A(f's_and_b32 s7, {sJ2}, 3\ns_cmp_eq_u32 s7, 3\ns_cselect_b32 s7, 3, 2\ns_and_b32 s6, s6, s7')
            A(f's_lshl_b32 s6, s6, 1' + (f'\ns_and_b32 s6, s6, 4' if OPT['brot'] and not OPT['sw'] else '') + f'\ns_add_u32 s6, s6, {sJ2}' + ('\ns_add_u32 s6, s6, s2' if OPT['xr'] & 1 else '') + '\ns_and_b32 s6, s6, 7')
            A(f's_mov_b32 s4, 0xba983210\ns_mov_b32 s5, s4\ns_lshl_b32 s7, s6, 2\ns_lshr_b64 s[4:5], s[4:5], s7\ns_mov_b32 {sCur}, s4')
            A(f's_mul_i32 s6, s6, 3\ns_and_b32 s7, s6, 28\ns_mov_b32 s4, 0x547dc654\ns_mov_b32 s5, 0x7dc6\ns_lshr_b64 s[4:5], s[4:5], s7\ns_mov_b32 {sCurA}, s4')
        A(f's_mul_i32 s4, {sWQ}, 14\ns_mul_i32 {sAb}, {sI2}, 72\ns_add_u32 {sAb}, {sAb}, s4\ns_lshl_b32 {sAb}, {sAb}, 12\ns_add_u32 {sAb}, {sAb}, {ACT}')
        A(f's_lshl_b32 {sBb}, s4, 15\ns_lshl_b32 s5, {sJ2}, 7\ns_add_u32 {sBb}, {sBb}, s5')
        A(f's_lshl_b32 {sF[0]}, {sWQ}, 17\ns_add_u32 {sF[0]}, {sF[0]}, s5')
        A(f's_lshl_b32 {sLb2}, {sWQ}, 12')
        A(f'v_lshrrev_b32 {t0}, 3, {l}\nv_and_b32 {t1}, 6, {t0}\nv_and_b32 {f}, 7, {l}\nv_xor_b32 {t1}, {t1}, {f}\nv_lshlrev_b32 {t1}, 4, {t1}\nv_lshl_add_u32 {vb0}, {t0}, 10, {t1}\nv_add_u32 {vb1}, 0x2000, {vb0}')
        tr_addr(A, vb, sLb2, t0, t1)
        for q in range(4): A(f'v_add_u32 {vbh[q]}, {Y0}, {vb[q]}')
        A(f'v_mov_b32 {pm}, {L_TAG}\nv_mov_b32 {p1}, 1')
        cnt_i2(A, sF[1], sI2, 1024)
        A(f's_lshl_b32 s4, {sWQ}, 8\ns_add_u32 {sF[1]}, {sF[1]}, s4')
        if OPT['Rh'] > 1: A(f's_and_b32 s4, {sJ2}, 1\ns_lshl_b32 s4, s4, 7\ns_add_u32 {sF[1]}, {sF[1]}, s4')
        ca = T[4:8]; t, g = T[8], T[9]; ones = ACCL[12:16]; wfr = ACCL[16:32]; cs = ACCL[32:48]; vt = T[10]; ff = T[11]
        A(f'v_and_b32 {t}, 15, {l}\nv_lshrrev_b32 {g}, 4, {l}')
        if F: A(f's_cmp_eq_u32 {sWQ}, 3\ns_cselect_b32 s4, 6, 7\ns_cselect_b32 s5, 1, 3\ns_cselect_b32 s6, 1, 0\ns_lshl_b32 s7, {sWQ}, 13')
        else: A(f's_mov_b32 s4, 7\ns_mov_b32 s5, 3\ns_mov_b32 s6, 0\ns_min_u32 s7, {sWQ}, 2\ns_lshl_b32 s7, s7, 13')
        if OPT['r3'] & 1: A(f's_and_b32 {sT0}, {sI}, 7\ns_lshr_b32 {sT0}, 0xb8, {sT0}\ns_and_b32 {sT0}, {sT0}, 1\ns_lshl_b32 {sT0}, {sT0}, 5')
        else: A(f's_lshl_b32 {sT0}, {sI}, {dict([(2,4),(4,3),(8,2)])[OPT["rot"]]}\ns_and_b32 {sT0}, {sT0}, 32')
        HS = OPT['hs']
        sgr = ACCL[56:60]; sga = T[60]; sgs = T[61]
        if HS:
            A(f's_lshr_b32 {sSpin}, {sE[0]}, 15\ns_lshl_b32 {sSpin}, {sSpin}, 10\ns_and_b32 {sT1}, {sE[0]}, 512\ns_add_u32 {sSpin}, {sSpin}, {sT1}')
            A(f's_bfe_u32 {sT1}, {sE[0]}, 0x1000e\ns_lshl2_add_u32 {sT1}, {sT1}, {sWQ}\ns_lshl_b32 {sT1}, {sT1}, 6\ns_add_u32 {sSpin}, {sSpin}, {sT1}\ns_add_u32 {sSpin}, {sSpin}, {STAT}')
        else: A(f's_lshr_b32 {sE[0]}, {sE[0]}, 6\ns_lshl_b32 {sT1}, {sWQ}, 5\ns_add_u32 {sE[0]}, {sE[0]}, {sT1}\ns_add_u32 {sSpin}, {sE[0]}, {STAT}')
        A(f's_lshl_b32 {sT1}, {sWQ}, {4 + HS}\ns_add_u32 {sT1}, {sT1}, {L_SG}\nv_and_b32 {sga}, {1 + 2*HS}, {l}\nv_lshl_add_u32 {sga}, {sga}, 3, {sT1}')
        A(f'v_lshrrev_b32 {sgs}, {1 + HS}, {l}\nv_lshl_add_u32 {sgs}, {sgs}, 26, {v_l16}')
        A(f'v_lshrrev_b32 {t0}, 2, {t}\nv_lshl_add_u32 {t0}, {g}, 3, {t0}\nv_add_u32 {t0}, {sT0}, {t0}\nv_lshlrev_b32 {t0}, s4, {t0}')
        A(f'v_and_b32 {t1}, 3, {t}\nv_lshl_add_u32 {t0}, {t1}, 3, {t0}\ns_add_u32 s7, s7, {phys(0)+16384}')
        if OPT['rot'] == 2: A(f's_bitcmp1_b32 {sI}, 2\ns_cselect_b32 {sT1}, {phys(0) - phys(2)}, 0\ns_sub_u32 s7, s7, {sT1}')
        if OPT['r3'] & 1: A(f's_and_b32 {sT1}, {sI}, 6\ns_cmp_lg_u32 {sT1}, 6\ns_cselect_b32 {sT1}, {phys(0) - phys(1)}, 0\ns_sub_u32 s7, s7, {sT1}')
        A(f'v_add_u32 {t0}, s7, {t0}')
        A(f'v_lshrrev_b32 {f}, 3, {t}\nv_and_b32 {t1}, 1, {g}\nv_lshl_or_b32 {f}, {t1}, 1, {f}\nv_lshrrev_b32 {f}, s6, {f}')
        for q in range(4): A(f'v_xor_b32 {t1}, {q}, {f}\nv_and_b32 {t1}, s5, {t1}\nv_lshl_add_u32 {ca[q]}, {t1}, 5, {t0}')
        A(f's_lshl_b32 s5, 4, s4')
        for r in range(4): A(f'v_mov_b32 {ones[r]}, 0x3f803f80')
        A(f'v_mov_b32 {vt}, {L_TAG}\nv_mov_b32 {ff}, 0xff')
        A(f's_lshl_b32 {sE[1]}, {sJJ}, 14\ns_lshl_b32 {sT0}, {sWQ}, 8\ns_add_u32 {sE[1]}, {sE[1]}, {sT0}\ns_add_u32 {sE[1]}, {sE[1]}, {CSP}')
        A(f's_lshl_b32 {sT0}, {sI}, 10\ns_add_u32 {sE[2]}, {sE[1]}, {sT0}')
        A(f's_lshl_b32 {sE[0]}, {sI}, 2\ns_add_u32 {sE[0]}, {sE[0]}, {sWQ}\ns_lshl_b32 {sE[0]}, {sE[0]}, {9 + HS}\ns_add_u32 {sE[0]}, {sE[0]}, {STAT}')
        def mall():
            if OPT['touch'] & 8:
                A(f's_lshl2_add_u32 {sT0}, s2, {sWQ}\ns_lshl_b32 {sT0}, {sT0}, 10\ns_add_u32 {sT1}, {sT0}, 0x100000\ns_mov_b32 m0, {JUNK}')
                C.vm(f'buffer_load_dwordx4 {v_l16}, {sW2}, {sT0} offen lds')
                C.vm(f'buffer_load_dwordx4 {v_l16}, {sW2}, {sT1} offen lds')
                A(f's_xor_b32 {sT0}, {sT0}, 0x80000')
                C.vm(f'buffer_load_dwordx4 {v_l16}, {sWO}, {sT0} offen lds')
                return
            if OPT['touch'] & 16:
                if not F: return
                A(f's_lshl4_add_u32 {sT0}, {sJ}, {sI}\ns_lshl2_add_u32 {sT0}, {sT0}, {sWQ}\ns_lshl_b32 {sT1}, {sT0}, 10\ns_lshl_b32 {sT0}, {sT0}, 12\ns_mov_b32 m0, {JUNK}')
                for i in range(4): C.vm(f'buffer_load_dwordx4 {v_l16}, {sW2}, {sT0} offen offset:{1024*i} lds')
                C.vm(f'buffer_load_dwordx4 {v_l16}, {sWO}, {sT1} offen lds')
                return
            if OPT['touch'] & 32:
                A(f's_cmp_gt_u32 {sJJ}, 6\ns_subb_u32 {sT0}, {sJJ}, 0\ns_lshl4_add_u32 {sT0}, {sT0}, {sI}\ns_lshl2_add_u32 {sT0}, {sT0}, {sWQ}')
                A(f's_cmp_eq_u32 {sJJ}, 6\ns_cselect_b32 {sT0}, 0x10000, {sT0}\ns_sub_u32 {sT1}, {sT0}, 448\ns_lshl_b32 {sT1}, {sT1}, 10\ns_lshl_b32 {sT0}, {sT0}, 11\ns_mov_b32 m0, {JUNK}')
                A(f's_min_u32 {sT1}, {sT1}, {OOB}')
                for i in range(2): C.vm(f'buffer_load_dwordx4 {v_l16}, {sW2}, {sT0} offen offset:{1024*i} lds')
                C.vm(f'buffer_load_dwordx4 {v_l16}, {sWO}, {sT1} offen lds')
                return
            if not OPT['touch'] & 4 or F: return
            A(f's_cmp_gt_u32 {sJ}, 3\ns_subb_u32 {sT0}, {sJ}, 0\ns_lshl_b32 {sT0}, {sT0}, 4\ns_add_u32 {sT0}, {sT0}, {sI}\ns_lshl2_add_u32 {sT0}, {sT0}, {sWQ}')
            A(f's_cmp_eq_u32 {sJ}, 3\ns_cselect_b32 {sT0}, 0x10000, {sT0}\ns_lshl_b32 {sT1}, {sT0}, 11\ns_lshl_b32 {sT0}, {sT0}, 12\ns_mov_b32 m0, {JUNK}')
            for i in range(4): C.vm(f'buffer_load_dwordx4 {v_l16}, {sW2}, {sT0} offen offset:{1024*i} lds')
            for i in range(2): C.vm(f'buffer_load_dwordx4 {v_l16}, {sWO}, {sT1} offen offset:{1024*i} lds')
        if not F:
            A(f's_lshl2_add_u32 {sT0}, {sJ}, {sWQ}\ns_lshr_b32 {sT0}, {sT0}, 1\ns_lshl_b32 {sT0}, {sT0}, 10\ns_add_u32 m0, {sLb}, {L_PHI}\ns_waitcnt lgkmcnt(0)')
            tkphi = C.vm(f'buffer_load_dwordx4 {v_l16}, {sPHI}, {sT0} offen lds')
        if OPT['j3'] & 1 and OPT['j3p'] == 1: j3touch(False)
        if OPT['kva'] and not F:
            z4 = RS[1][0:4]; za = RS[1][4]
            for r in range(4): A(f'v_mov_b32 {z4[r]}, 0')
            A(f's_lshl_b32 {sT1}, {sI}, 10\nv_add_u32 {za}, {sT1}, {v_l16}\nv_cmp_lt_u32 vcc, {2176-16}, {za}\nv_cndmask_b32 {za}, {za}, {ones[0]}, vcc')
            A(f's_lshl2_add_u32 {sT0}, {sJ}, {sWQ}\ns_mul_i32 {sT0}, {sT0}, 2176\ns_add_u32 {sT0}, {sT0}, {KT}')
            C.vm(f'buffer_store_dwordx4 {z4}, {za}, {sWS}, {sT0} offen sc1')
        stl = [int(c, 16) for c in OPT['st']] + [0]*3
        sc = [OPT['stc'] + OPT['stl']]
        if OPT['stl']:
            if F: A('s_waitcnt lgkmcnt(0)')
            stouch(A, OPT['stc'], sc[0])
        stampg(A, 4)
        if OPT['tk'] == -1:
            A('s_waitcnt lgkmcnt(0)'); mall()
        self.issue(1, lo=OPT['e1'], hi=OPT['sp1'])
        if OPT['tk'] == -2:
            A('s_waitcnt lgkmcnt(0)'); mall()
        stamp(A, 1); stampg(A, 5)
        C.wait(self.stok[0]); stampb(A, 1); stampg(A, 6); A('s_barrier')
        stampg(A, 7)
        stamp(A, 2)
        gq = [ACCL[16+4*i:20+4*i] for i in range(4)]; sg = ACCL[32:36]; ga, sa = T[4], T[5]; tm = ACCL[40:48]
        ldg = [f'buffer_load_dwordx4 {sg}, {v_l16 if HS else sa}, {sWS}, {sE[0]} offen sc1']
        ldg += [f'buffer_load_dwordx4 {gq[i]}, {ga}, {sWS}, {[sE[1], sE[3], sE[4], sE[5]][i]} offen sc1' for i in range(4)]
        nm = OPT['nmF'] if F else OPT['nmA']
        B.free = [TS]
        tl = [int(c) for c in f'{OPT["tl"+self.typ]:09d}']
        tc = [0]
        def touch(n):
            for _ in range(n):
                i = tc[0]
                if i >= 18: return
                tc[0] += 1
                r = i if i < 14 else i - 14
                if r % 4 == 0 or _ == 0:
                    A(f's_lshr_b32 {sT0}, s2, 3\ns_lshl2_add_u32 {sT0}, {sT0}, {sWQ}\ns_mul_i32 {sT0}, {sT0}, {14336 if i < 14 else 4096}\ns_add_u32 {sT0}, {sT0}, {r//4*4096}\ns_mov_b32 m0, {JUNK}')
                C.vm(f'buffer_load_dwordx4 {v_l16}, {sW2 if i < 14 else sWO}, {sT0} offen offset:{(r % 4)*1024} lds')
        c3l = [int(c) for c in f'{OPT["c3F"]:08d}'] + [0]*3
        c3c = [0]
        def c3touch(n):
            if n: A(f's_lshr_b32 {sT0}, s2, 4\ns_and_b32 {sT0}, {sT0}, 8\ns_and_b32 {sT1}, {sI}, 7\ns_add_u32 {sT0}, {sT0}, {sT1}\ns_lshl2_add_u32 {sT1}, {sT0}, {sWQ}\ns_mul_i32 {sT0}, {sT1}, {28*1024}\ns_mov_b32 m0, {JUNK}\ns_lshl_b32 {sT1}, {sT1}, 13')
            for _ in range(n):
                i = c3c[0]
                if i >= 5: return
                c3c[0] += 1
                if i < 4:
                    A(f's_add_u32 s6, {sT0}, {[0, 8192, 16384, 20480][i]}')
                    C.vm(f'buffer_load_dwordx4 {vb0}, {sW2}, s6 offen offset:384 lds')
                else: C.vm(f'buffer_load_dwordx4 {vb0}, {sWO}, {sT1} offen offset:384 lds')
        for k in range(9):
            if k == 3: stampc(A, 1)
            if k == 4: stampc(A, 8)
            if k == 0:
                A(f'ds_read_b32 {vt}, {vt}\nds_read_b64 {sgr[0:2]}, {sga}')
            if k == 0 or (k == 2 and OPT['rot'] == 2) or (k == 1 and OPT['r3'] & 1):
                lk = A.lab('CS')
                if OPT['r3'] & 1: A(f's_and_b32 {sT1}, {sI}, 6\ns_cmp_eq_u32 {sT1}, 6\ns_cbranch_scc{k} {lk}')
                if OPT['rot'] == 2: A(f's_bitcmp1_b32 {sI}, 2\ns_cbranch_scc{1 if k == 0 else 0} {lk}')
                for q in range(4): A(f'ds_read_b64_tr_b16 {wfr[4*q:4*q+2]}, {ca[q]}')
                for q in range(4): A(f'v_add_u32 {ca[q]}, s5, {ca[q]}')
                for q in range(4): A(f'ds_read_b64_tr_b16 {wfr[4*q+2:4*q+4]}, {ca[q]}')
                A(f'{lk}:')
            if OPT['sti'] and 1 <= k < 6:
                stouch(self.sq.append, sc[0], sc[0] + stl[k]); sc[0] += stl[k]; stl[k] = 0
            if k == 0: self.issue(1, lo=OPT['sp1'])
            if k == OPT['tk'] - 10: mall()
            spl = [int(c, 16) for c in OPT['spl' + self.typ]]
            if 1 <= k <= 6 and spl[k-1] < 15: self.issue(k + 1, lo=spl[k-1])
            if k == OPT['tk'] - 20: mall()
            if k < 6 and spl[k]: self.issue(k + 2, hi=spl[k])
            for x in self.sq: A(x)
            self.sq = []
            if k == 6 and OPT['xr'] & 2:
                A(f's_and_b32 {sT0}, s2, 6\ns_lshl_b32 {sT0}, {sT0}, 9')
                for i in range(4): A(f's_xor_b32 {sLi[i]}, {sT0}, {1024*i}\ns_add_u32 {sLi[i]}, {sLi[i]}, {sLb2}')
                A(f's_and_b32 {sT1}, {sT0}, 1024\ns_lshl_b32 {sT1}, {sT1}, 3\nv_xor_b32 {vr0}, {sT1}, {vb0}\nv_xor_b32 {vr1}, {sT1}, {vb1}')
                A(f's_lshr_b32 {sHb}, {sT1}, 2')
                A(f's_and_b32 {sT1}, {sT0}, 2048\ns_lshl_b32 {sT1}, {sT1}, 3\ns_add_u32 {sBb}, {sBb}, {sT1}')
            if k == 6:
                for i in range(4):
                    A(f's_add_u32 {sT0}, {sWQ}, {i}\ns_and_b32 {sT0}, {sT0}, 3\ns_lshl_b32 {sT0}, {sT0}, 10\nv_add_u32 {va[i]}, {sT0}, {v_l16}')
            if k == 3: stampc(A, 2)
            if k == OPT['stk']:
                if k == 0 or (k == 1 and OPT['r3'] & 1): A(f's_waitcnt lgkmcnt(0)')
                A(f'v_readfirstlane_b32 {sTag}, {vt}')
                A('s_setprio 3')
                for q in range(4): A(f'v_mfma_f32_16x16x32_bf16 {cs[4*q:4*q+4]}, {ones}, {wfr[4*q:4*q+4]}, 0')
                tag_consts(A)
                A(f'v_lshrrev_b32 {t0}, 4, {l}\nv_lshl_add_u32 {t0}, {t0}, 26, {v_l16}')
                for q in range(4): A(f'v_bfi_b32 {cs[q]}, {ff}, {sTB[q]}, {cs[4*q]}')
                A(f's_setprio {OPT["lprio"]}')
                A(f'v_mov_b32 {sgr[2]}, {vt}\nv_mov_b32 {sgr[3]}, {vt}')
                A(f'v_and_b32 {ga}, 15, {l}\nv_lshlrev_b32 {ga}, 4, {ga}\nv_lshl_add_u32 {ga}, {g}, 10, {ga}\nv_and_b32 {sa}, 0x1f0, {v_l16}')
                A(f's_add_u32 {sE[3]}, {sE[1]}, 4096\ns_add_u32 {sE[4]}, {sE[1]}, 8192\ns_add_u32 {sE[5]}, {sE[1]}, 12288')
            if k == OPT['stk']:
                assert (k >= 2 or OPT['rot'] != 2)
                C.vm(f'buffer_store_dwordx4 {cs[0:4]}, {t0}, {sWS}, {sE[2]} offen sc1')
                C.vm(f'buffer_store_dwordx4 {sgr}, {sgs}, {sWS}, {sSpin} offen sc1')
            if k == OPT['j3k'] and OPT['j3'] & 2: j3touch(True)
            if k == OPT['tk']: mall()
            if k == OPT['c3'] and not F:
                A(f's_lshr_b32 {sT0}, s2, 4\ns_and_b32 {sT0}, {sT0}, 8\ns_and_b32 {sT1}, {sI}, 7\ns_add_u32 {sT0}, {sT0}, {sT1}\ns_lshl2_add_u32 {sT1}, {sT0}, {sWQ}\ns_mul_i32 {sT0}, {sT1}, {28*1024}\ns_mov_b32 m0, {JUNK}')
                for o in (0, 8192, 8192, 4096):
                    if o: A(f's_add_u32 {sT0}, {sT0}, {o}')
                    C.vm(f'buffer_load_dwordx4 {vb0}, {sW2}, {sT0} offen offset:384 lds')
                A(f's_lshl_b32 {sT1}, {sT1}, 13')
                C.vm(f'buffer_load_dwordx4 {vb0}, {sWO}, {sT1} offen offset:384 lds')
            if F: c3touch(c3l[k])
            plo, phi_, pa_ = RS[10][0:4], RS[10][4:8], RS[10][8]
            if k == OPT['pk'] and not F:
                if k == 0: C.wait(tkphi)
                A(f'v_bfe_u32 {pa_}, {l}, 3, 2\nv_lshlrev_b32 {pa_}, 3, {pa_}\nv_and_b32 {t1}, 3, {l}\nv_lshl_add_u32 {pa_}, {t1}, 1, {pa_}')
                A(f'v_lshrrev_b32 {t1}, 5, {l}\nv_lshl_add_u32 {pa_}, {t1}, 8, {pa_}')
                A(f's_and_b32 {sT0}, {sWQ}, 1\ns_lshl_b32 {sT0}, {sT0}, 9\ns_add_u32 {sT0}, {sT0}, {sLb}\ns_add_u32 {sT0}, {sT0}, {L_PHI}\nv_add_u32 {pa_}, {sT0}, {pa_}')
                for j in range(8): A(f'ds_read_u16 {(phi_ if j & 1 else plo)[j//2]}, {pa_} offset:{32*j}')
            if k == OPT['pk'] + 1 and not F:
                L = [f'v_bfe_u32 {t1}, {l}, 2, 1', f'v_mul_u32_u24 {t1}, 0x8000, {t1}', f'v_lshl_or_b32 {t1}, {t1}, 16, {t1}']
                for rr in range(4): L += [f'v_lshl_or_b32 {plo[rr]}, {phi_[rr]}, 16, {plo[rr]}', f'v_xor_b32 {plo[rr]}, {plo[rr]}, {t1}']
                L += [f's_add_u32 {sT0}, {sLb}, {L_PHI}', f'v_add_u32 {pa_}, {sT0}, {v_l16}', f'ds_write_b128 {pa_}, {plo}']
                for x in L: A(x)
            if k == OPT['sk'] and OPT['snt'] and not F:
                sn = RS[9][0:4]
                for r in range(4): A(f'v_mov_b32 {sn[r]}, -1')
                A(f's_mul_i32 {sT0}, {sI}, {2*72*4096}\ns_lshl_b32 {sT1}, {sJ}, 11\ns_add_u32 {sT0}, {sT0}, {sT1}\ns_lshl_b32 {sT1}, {sWQ}, 14\ns_add_u32 {sT0}, {sT0}, {sT1}')
                A(f's_add_u32 {sT0}, {sT0}, {ACT + 56*4096}\ns_add_u32 {sT1}, {sT0}, {72*4096}')
                for so in (sT0, sT1):
                    for o_ in (0, 1024): tks = C.vm(f'buffer_store_dwordx4 {sn}, {v_l16}, {sWS}, {so} offen offset:{o_} sc1')
            if k == OPT['gat']:
                for s in ldg: tkg = C.vm(s)
            touch(tl[k])
            if 6 - nm <= k < 6: B.step()
            if k == 6: B.free += [X0, X1]
            if k == 7: B.free += [Y0, Y1]
            if k in (6, 7) and (k != OPT['chk'] or OPT['qf']): B.quota(OPT[f'q{k}{self.typ}'])
            if k == OPT['chk']:
                C.wait(tkg)
                def chk():
                    for i in range(4): quad_diff(A, gq[i], tm[i], tm[4+i])
                    A(f'v_bitop3_b32 {tm[4]}, {sg[2]}, {sg[3]}, {sTag} bitop3:0x7e')
                    A(f'v_or3_b32 {tm[0]}, {tm[0]}, {tm[1]}, {tm[2]}\nv_or3_b32 {tm[0]}, {tm[0]}, {tm[3]}, {tm[4]}\nv_cmp_ne_u32 vcc, 0, {tm[0]}\ns_and_b64 s[4:5], vcc, exec')
                poll(A, '\n'.join(ldg), chk, first_loaded=True, sleep=OPT['slp'])
                L = []
                for i in range(4):
                    for r in range(4): L.append(f'v_and_b32 {gq[i][r]}, 0xffffff00, {gq[i][r]}')
                x = gq[0]
                for r in range(4): L += [f'v_add_f32 {x[r]}, {x[r]}, {gq[1][r]}', f'v_add_f32 {gq[2][r]}, {gq[2][r]}, {gq[3][r]}', f'v_add_f32 {x[r]}, {x[r]}, {gq[2][r]}']
                L += [f'v_permlane32_swap_b32 {x[0]}, {x[2]}', f'v_permlane32_swap_b32 {x[1]}, {x[3]}', f'v_add_f32 {x[0]}, {x[0]}, {x[2]}', f'v_add_f32 {x[1]}, {x[1]}, {x[3]}',
                      f'v_permlane16_swap_b32 {x[0]}, {x[1]}', f'v_add_f32 {x[0]}, {x[0]}, {x[1]}']
                L += [f's_lshl_b32 {sT0}, {sWQ}, 8', f's_add_u32 {sT0}, {sT0}, {L_CS}', f'v_lshl_add_u32 {ga}, {l}, 2, {sT0}', f'ds_write_b32 {ga}, {x[0]}']
                if HS:
                    L += [f'v_mov_b32 {sg[2]}, {sg[0]}', f'v_mov_b32 {sg[3]}, {sg[1]}', f'v_permlane32_swap_b32 {sg[0]}, {sg[2]}', f'v_permlane32_swap_b32 {sg[1]}, {sg[3]}',
                          f'v_add_f32 {sg[1]}, {sg[1]}, {sg[3]}', f'v_sub_f32 {sg[3]}, {sg[0]}, {sg[2]}', f'v_add_f32 {sg[0]}, {sg[0]}, {sg[2]}', f'v_mul_f32 {sg[0]}, 0.5, {sg[0]}',
                          f'v_mul_f32 {sg[3]}, {sg[3]}, {sg[3]}', f'v_fmac_f32 {sg[1]}, {f2u(128.0):#x}, {sg[3]}', f'v_mov_b32 {sg[3]}, {f2u(1e-5):#x}',
                          f'v_fmac_f32 {sg[3]}, {f2u(1/512):#x}, {sg[1]}', f'v_rsq_f32 {sg[1]}, {sg[3]}']
                L += [f's_lshl_b32 {sT1}, {sWQ}, 7', f's_add_u32 {sT1}, {sT1}, {L_NM}', f'v_lshrrev_b32 {sa}, 2, {sa}', f'v_add_u32 {sa}, {sT1}, {sa}',
                      f'v_sub_f32 {sg[0]}, 0, {sg[0]}', f'v_mul_f32 {sg[2]}, {f2u(-LOG2E if F else LOG2E):#x}, {sg[1]}',
                      f'ds_write_b32 {sa}, {sg[0]}', f'ds_write_b32 {sa}, {sg[2]} offset:512']
                if not F: L.append(f'ds_write_b32 {sa}, {sg[1]} offset:1024')
                emit_sched(A, L)
                if k in (6, 7) and not OPT['qf']: B.quota(OPT[f'q{k}{self.typ}'])
            if k == 0: stampg(A, 8)
            if k == 1: stampg(A, 10)
            if k < 8:
                lg = k == 0 or (k == 1 and OPT['r3'] & 1) or k >= 6 - nm or (k == OPT['pk'] and not F)
                if lg and stl[k]: A('s_waitcnt lgkmcnt(0)'); lg = False
                stouch(A, sc[0], sc[0] + stl[k]); sc[0] += stl[k]
                if k < 7: C.wait(self.stok[k+1], 'lgkmcnt(0)' if lg else '')
                elif OPT['snt'] and not F: C.wait(tks, 'lgkmcnt(0)')
                else: A('s_waitcnt lgkmcnt(0)')
                G.done = G.n
                if k == 0: stampg(A, 9)
                if k == 3: stampc(A, 3)
                stampb(A, 2 + k)
                A('s_barrier')
                if k == 3: stampc(A, 4)
        stamp(A, 5)
        if OPT['lprio']: A('s_setprio 0')
        if OPT['dbg'] & (1 if F else 2):
            A(f's_mov_b32 {sW2[2]}, 0\ns_mov_b32 {sWO[2]}, 0')
        if OPT['dbg'] & 4 and F:
            A('s_sleep 60')
        B.wleft = list(range(4 - OPT['wol' + self.typ], 4))
        def wo(ks):
            for k in ks:
                if k not in B.wleft:
                    for f in B.wo_list(k): f()
        A(f's_and_b32 {sF[2]}, {sI2}, 2')
        B.dep = OPT['dep' + self.typ]
        wob = OPT['wob'] if F else OPT['wobA']
        stampe(A, 1)
        mark = len(A.L)
        B.flush()
        while B.next < wob and B.step():
            if B.next % 2 == 1 and B.next > 2: stampe(A, 2 + (B.next-3)//2)
        wo([0, 1])
        stampe(A, 8)
        while B.step(): pass
        wo([2, 3])
        if OPT['ah']:
            idx = [i for i in range(mark, len(A.L)) if A.L[i].startswith('buffer_load')]
            i = idx[-(OPT['ahA'] if (OPT['ahA'] and not F) else OPT['ah'])] + 1
            assert not any('lgkmcnt' in x for x in A.L[i:])
            A.L[i:i] = [f's_mov_b32 {sE[2]}, 0', f's_atomic_add {sE[2]}, {sWS[0:2]}, {sF[1]} glc', f's_add_u32 {sE[3]}, {sTag}, 4']
        stampe(A, 9)
        assert not B.fly
        stamp(A, 6)
        return B

def p2_L(A, B0, typ):
    l = lane; C = Ctx(A); G = LG(A)
    B = BP(A, C, G); B.slot = dict(B0.slot); B.tokwo = 0
    stamp(A, 7); stampe(A, 10); stamph(A, 1)
    if OPT['ah']:
        lk = A.lab('H1')
        A(f's_waitcnt lgkmcnt(0)\ns_cmp_eq_u32 {sE[2]}, {sE[3]}\ns_cbranch_scc1 {lk}')
    ppoll(A, sF[1], 4, OPT['Dh'], 44, OPT['slph'])
    if OPT['ah']: A(f'{lk}:')
    WO_ = OPT['wo'] and typ == 'A'
    if WO_ and not OPT['ns0']: lds_spin(A, pm, 8, 64, ACCL[0])
    stamp(A, 9); stampf(A, 0); stamph(A, 2)
    if OPT['stamp'] in (10, 11): A('s_memtime s[72:73]')
    tok = {}
    TM = OPT['tm']
    assert not TM or (max(o for o in RSL if RSL[o] == 1) <= 7 and max(o for o in RSL if RSL[o] == 0) <= 9 and max(o for o in RSL if RSL[o] == RSL[8]) == 8)
    sOf = lambda s: {12: sXo, 13: sHo}.get(s, sE[1]) if TM else sE[1]
    abuf = lambda s: {12: RS[1], 13: RS[RSL[8]]}.get(s, RS[8 + s % 3]) if TM else RS[8 + s % 3]
    def a_off(s): return [nib(sOf(s), s), f's_lshl_b32 {sOf(s)}, {sOf(s)}, 12', f's_add_u32 {sOf(s)}, {sOf(s)}, {sAb}']
    def ld_a(s, tt):
        tok[(s, tt)] = C.vm(f'buffer_load_dwordx4 {abuf(s)[4*tt:4*tt+4]}, {va[tt]}, {sWS}, {sOf(s)} offen ' + ['sc1', '', 'sc0', 'nt', 'sc0 sc1'][OPT['hld']])
    la = OPT['la' + typ]
    if TM: seq = [(s, tt) for s in range(11) for tt in range(4)] + [(s, tt) for tt in (1, 2, 3, 0) for s in (11, 12, 13)]
    else: seq = [(s, tt) for s in range(14) for tt in ([1, 2, 3, 0] if s == 13 else [0, 1, 2, 3])]
    N0 = 4*OPT['ns0'] if WO_ else 0
    when = [max(-1, n - OPT['la0']) if n < N0 else max(N0 - 1, n - la) for n in range(56)]
    if OPT['lr'] and typ == 'A':
        when = []; n = 0
        for m in range(-1, 56):
            lim = m + 1 + min(la, OPT['la0'] + max(0, m - OPT['lr']))
            while n < min(56, lim): when.append(m); n += 1
    first = {}
    for n, (s, tt) in enumerate(seq): first.setdefault(s, n)
    for n, (s, tt) in enumerate(seq):
        if TM and s == 12: assert when[n] >= 31
        elif TM and s == 13: assert when[n] >= 35
        elif s >= 3: assert when[n] >= seq.index((s - 3, tt))
    def issue_after(m, S=None):
        for n in range(56):
            if when[n] == m:
                if first[seq[n][0]] == n and S != seq[n][0]:
                    for x in a_off(seq[n][0]): A(x)
                ld_a(*seq[n])
    issue_after(-1)
    chk_at = {}
    for p in range(1, len(PH)):
        w = when[first[2*PH[p-1]]]; assert w >= 0
        chk_at[w // 4 if w != N0 - 1 else 'b'] = p
    asy_at = {}
    prev = 0
    for st_, p in sorted(chk_at.items(), key=lambda x: x[1]):
        st_ = N0//4 if st_ == 'b' else st_
        asy_at[max(prev, st_ - OPT['pa3'])] = p; prev = st_
    assert len(asy_at) == len(chk_at) == len(PH) - 1
    A(f's_add_u32 {sE[3]}, {sTag}, 4')
    G.done = G.n
    tokB = {k: 0 for k in range(8)}
    Q = []; X = []
    for k in B0.wleft: X += B.wo_list(k)
    sig = False
    wa, t, a, vm_ = [RS[0][i] for i in range(4)]; ra = [RS[0][4+i] for i in range(3)]; c = RS[0][8:12]; W = []
    tail = [f's_add_u32 {sT0}, {sLb2}, {Y0}', f'v_add_u32 {wa}, {sT0}, {v_l16}']
    for sg in range(1, 4):
        tail += [f's_sub_u32 {sT0}, {sWQ}, {sg}', f's_and_b32 {sT0}, {sT0}, 3', f's_lshl_b32 {sT0}, {sT0}, 12', f's_add_u32 {sT0}, {sT0}, {Y0 + 16384*(sg-1)}', f'v_add_u32 {ra[sg-1]}, {sT0}, {v_l16}']
    tail += [f'v_mov_b32 {c[0]}, {f2u(-LOG2E):#x}', f'v_mov_b32 {c[1]}, {c[0]}', f'v_mov_b32 {c[2]}, 1.0', f'v_mov_b32 {c[3]}, 1.0', f'v_add_u32 {a}, {sLb2}, {v_l16}', f'v_mov_b32 {vm_}, {L_TAG}', f'v_mov_b32 {t}, 1']
    def check(p):
        lk = A.lab('H2')
        G.all()
        A(f's_cmp_eq_u32 {sE[2]}, {sE[3]}\ns_cbranch_scc1 {lk}')
        A(f's_mov_b32 {sE[4]}, {sT0}\ns_mov_b32 {sE[5]}, {sT1}')
        spoll(A, f'{sF[1]} offset:{PHO[p]}', 4, OPT['slph'])
        A(f's_mov_b32 {sT0}, {sE[4]}\ns_mov_b32 {sT1}, {sE[5]}')
        A(f'{lk}:')
    nm_ = 0; wrdy = []
    for g in range(14):
        if OPT['lp2'] and g == OPT['lpr']: A('s_setprio 0')
        if OPT['lp2'] and g == OPT['lps' + typ]: A(f's_setprio {OPT["lp2"]}')
        def asy():
            A(f's_mov_b32 {sE[2]}, 0\ns_atomic_add {sE[2]}, {sWS[0:2]}, {sF[1]} offset:{PHO[asy_at[g]]} glc')
        if g in asy_at and chk_at.get(g) == asy_at[g]: asy()
        if g in chk_at: check(chk_at[g])
        if g in asy_at and chk_at.get(g) != asy_at[g]: asy()
        nx = 0
        for n in range(4*g, 4*g + 4):
            s, tt = seq[n]
            Bk = RS[RSL[s]]; Ak = abuf(s)
            G.need(tokB[LOAD.index(s)], 0)
            nxt = [m for m in range(56) if when[m] == n]
            Ss = seq[nxt[0]][0] if (len(nxt) == 1 and first[seq[nxt[0]][0]] == nxt[0]) else None
            S = a_off(Ss) if Ss is not None else []
            C.wait(tok[(s, tt)])
            if not sig and not X and tok[(s, tt)] > B.tokwo and (g == 0 or g > 4):
                if g == 0: A(f's_mov_b64 exec, 1\nds_add_u32 {pm}, {p1} offset:4\ns_mov_b64 exec, -1')
                else: A(f'v_mov_b32 {vb0}, {L_TAG}\nv_mov_b32 {vb1}, 1\ns_mov_b64 exec, 1\nds_add_u32 {vb0}, {vb1} offset:4\ns_mov_b64 exec, -1')
                G.n += 1; sig = True; stamph(A, 3)
            for q in range(4):
                ac = ACCL[16*tt+4*q:16*tt+4*q+4]
                A(f'v_mfma_f32_16x16x32_bf16 {ac}, {Bk[4*q:4*q+4]}, {Ak[4*tt:4*tt+4]}, {ac if s else 0}')
                nm_ += 1
                if S: A(S.pop(0))
                elif q == 1 and X and nx < (4 if g == 3 else OPT['wper']): X.pop(0)(); nx += 1
                if Q and q < 3:
                    tokB[qk] = G.ds(Q.pop(0))
                elif g >= 10 and tail: A(tail.pop(0))
                if s == 13 and tt:
                    W.append(f'ds_write_b128 {wa}, {ac} offset:{16384*(tt-1) + 1024*q}')
                    wrdy.append(max(nm_ + 4 + OPT['wdel'], (wrdy[-1] + OPT['wsp']) if wrdy and TM else 0))
                if W and nm_ >= wrdy[len(wrdy) - len(W)]:
                    assert not tail or tail[0].startswith('v_mov') or 'v_add' in tail[0] or True
                    A(W.pop(0))
            if n == N0 - 1:
                A(f'v_mov_b32 {abuf(s)[0]}, {L_TAG}')
                A(f's_mov_b32 {sE[4]}, {sT0}')
                lds_spin(A, abuf(s)[0], 8, 64, abuf(s)[1]); G.done = G.n
                A(f's_mov_b32 {sT0}, {sE[4]}')
                if 'b' in chk_at: check(chk_at['b'])
                stamph(A, 9)
            issue_after(n, Ss)
            if OPT['gs'] and when[OPT['gs']] == n:
                assert not X and g > 4
                A(f'v_mov_b32 {vb0}, {L_TAG}\n' + (f'v_lshlrev_b32_e64 {vb1}, {sWQ}, 1' if OPT['pwg'] else f'v_mov_b32 {vb1}, 1') + f'\ns_mov_b64 exec, 1\nds_add_u32 {vb0}, {vb1} offset:12\ns_mov_b64 exec, -1')
                G.n += 1; stamph(A, 4)
        s = g
        assert not Q
        if s in (0, 1, 3, 5, 7, 9, 11, 13): stampf(A, 1 + (s+1)//2)
        if OPT['stamp'] in (10, 11) and 0 <= s - 4*(OPT['stamp'] - 10) < 10: A(f's_memtime s[{74+2*(s - 4*(OPT["stamp"] - 10))}:{75+2*(s - 4*(OPT["stamp"] - 10))}]')
        if s == 2:
            while len(X) % 4: X.pop(0)()
            G.need(tokB[8]); X = B.dma_list(13, B.slot[8]) + X
        if s == 3:
            while len(X) % 4: X.pop(0)()
        if s + 8 < 13: qk = s + 8; Q = B.trl(qk)
        if s == 8:
            assert tok[(8, 3)] > B.tok[13]
            qk = 13; Q = B.trl(13)
    assert sig and not tail and not X
    stamph(A, 5)
    for x in W: A(x)
    stamp(A, 10); stamph(A, 6)
    if OPT['lpt']: A(f's_setprio {OPT["lpt"]}')
    A(f's_mov_b64 exec, 1\nds_add_u32 {vm_}, {t} offset:8\ns_mov_b64 exec, -1')
    lds_spin(A, vm_, 8, 68 if WO_ else 4, t, slp=0 if OPT['nsl'] & 1 else 1)
    stampf(A, 9); stamph(A, 7)
    for u in range(4):
        for sg in range(3): A(f'ds_read_b128 {RS[2+sg][4*u:4*u+4]}, {ra[sg]} offset:{1024*u}')
    P = ACCL[0:16]; e = ACCL[16:32]
    if OPT['npk']:
        for u in range(4):
            A(f's_waitcnt lgkmcnt({9 - 3*u + u})')
            L = []
            for i in range(4*u, 4*u+4):
                L += [f'v_add_f32 {P[i]}, {P[i]}, {RS[2][i]}', f'v_add_f32 {RS[3][i]}, {RS[3][i]}, {RS[4][i]}', f'v_add_f32 {P[i]}, {P[i]}, {RS[3][i]}',
                      ] + ([f'v_exp_f32 {e[i]}, {P[i]}', f'v_fma_f32 {e[i]}, {e[i]}, {c[0]}, {c[0]}'] if OPT['psc'] else [f'v_mul_f32 {e[i]}, {P[i]}, {c[0]}', f'v_exp_f32 {e[i]}, {e[i]}', f'v_add_f32 {e[i]}, 1.0, {e[i]}']) + [
                      f'v_rcp_f32 {e[i]}, {e[i]}', f'v_mul_f32 {e[i]}, {e[i]}, {P[i]}']
            L.append(f'ds_write_b128 {a}, {e[4*u:4*u+4]} offset:{X0 + 1024*u}')
            emit_sched(A, L)
        L = []
    else:
        for u in range(4):
            A(f's_waitcnt lgkmcnt({9 - 3*u})')
            for i in (2*u, 2*u+1):
                A(f'v_pk_add_f32 {P[2*i:2*i+2]}, {P[2*i:2*i+2]}, {RS[2][2*i:2*i+2]}\nv_pk_add_f32 {RS[3][2*i:2*i+2]}, {RS[3][2*i:2*i+2]}, {RS[4][2*i:2*i+2]}')
            for i in (2*u, 2*u+1): A(f'v_pk_add_f32 {P[2*i:2*i+2]}, {P[2*i:2*i+2]}, {RS[3][2*i:2*i+2]}')
        L = []
        for u in range(4):
            for i in (2*u, 2*u+1): L.append(f'v_pk_mul_f32 {e[2*i:2*i+2]}, {P[2*i:2*i+2]}, {c[0:2]}')
            for i in range(4*u, 4*u+4): L.append(f'v_exp_f32 {e[i]}, {e[i]}')
            for i in (2*u, 2*u+1): L.append(f'v_pk_add_f32 {e[2*i:2*i+2]}, {e[2*i:2*i+2]}, {c[2:4]}')
            for i in range(4*u, 4*u+4): L.append(f'v_rcp_f32 {e[i]}, {e[i]}')
            for i in (2*u, 2*u+1): L.append(f'v_pk_mul_f32 {e[2*i:2*i+2]}, {e[2*i:2*i+2]}, {P[2*i:2*i+2]}')
            L.append(f'ds_write_b128 {a}, {e[4*u:4*u+4]} offset:{X0 + 1024*u}')
    emit_sched(A, L)
    A('s_waitcnt lgkmcnt(0)')
    stamp(A, 8); stampf(A, 10); stamph(A, 8)
    A('s_setprio 0\ns_barrier')

def kernel(A):
    K = NAME + '_kernel'
    l = lane
    A(f'.globl {K}\n.p2align {OPT["pa"]}\n.type {K},@function\n{K}:')
    if OPT['stamp']: A(f's_memrealtime s[72:73]' if OPT['stamp'] in (1, 2, 9) else 's_memtime s[72:73]')
    A(f's_load_dwordx2 {sX[0:2]}, s[0:1], 0')
    A(f's_bitcmp1_b32 s2, 6\ns_cselect_b32 s7, 40, 8')
    A(f's_load_dwordx2 {sW[0:2]}, s[0:1], s7')
    A(f's_load_dwordx2 {sWS[0:2]}, s[0:1], 72')
    if OPT['warm']:
        A(f'v_lshlrev_b32 v2, {OPT["warm"]}, v0\ns_waitcnt lgkmcnt(0)')
        stampg(A, 1)
        A(f'global_load_dword v255, v2, {sX[0:2]}\nglobal_load_dword v255, v2, {sW[0:2]}')
    A(f's_movk_i32 {sLrow}, 3072\ns_cmovk_i32 {sLrow}, 3584\ns_movk_i32 {sWb}, 128\ns_cmovk_i32 {sWb}, 448\ns_cselect_b32 s3, 2, 0')
    A('s_lshr_b32 s4, s2, 8\ns_cbranch_scc1 K_done')
    rho, t, k = R('v',13,1), R('v',14,1), R('v',15,1)
    A(f'v_readfirstlane_b32 {sLb}, v0\ns_lshr_b32 s5, s2, 3')
    if OPT['touch'] & 1:
        A(f's_getpc_b64 s[6:7]\nL_pc:')
        A(f's_lshl_b32 s4, s5, 11\nv_lshl_add_u32 v2, v0, 2, s4\nv_min_u32 v2, K_done-L_pc, v2')
        A(f'global_load_dword v255, v2, s[6:7]')
    fx, fw = OPT['flip'] & 2, OPT['flip'] & 1
    sLx, sLw = sE[4], sE[5]
    A(f'v_lshrrev_b32 {t}, 4, v0\nv_xor_b32 {k}, {t}, v0\nv_and_b32 {k}, 7, {k}\nv_lshlrev_b32 {k}, 4, {k}\nv_lshrrev_b32 {rho}, 3, v0')
    A(f'v_lshl_add_u32 {vx0}, {rho}, 10, {k}')
    A(f's_and_b32 s4, s5, 7\ns_and_b32 s6, s2, 1\ns_lshl3_add_u32 {sI}, s6, s4\ns_lshr_b32 s6, s2, 6\ns_lshr_b32 s7, s2, 1')
    assert OPT['rot'] == 4
    if fx: A(f's_lshr_b32 s5, s2, 2\ns_and_b32 s5, s5, 1\ns_add_u32 s5, s5, s4\ns_lshl1_add_u32 s5, s6, s5')
    else: A(f's_add_u32 s5, s4, s6')
    A(f's_and_b32 s5, s5, 3\ns_xor_b32 {sRot}, s7, s2\ns_and_b32 {sRot}, {sRot}, 1\ns_lshl2_add_u32 {sRot}, {sRot}, s5')
    A(f's_and_b32 s7, s7, 3\ns_lshl2_add_u32 {sJJ}, s7, s6')
    b0 = phys(0)
    if OPT['ent']:
        assert not fx
        st0 = sHo
        A(f's_and_b32 {st0}, {sRot}, {4 if OPT["r3"] & 1 else 7}')
        A(f's_lshl_b32 {sXb}, {sI}, 17\ns_lshl_b32 {sXo}, {st0}, 7\ns_add_u32 {sXo}, {sXo}, {sXb}')
        A(f's_lshl_b32 {sX[2]}, 1, 21\ns_lshl_b32 {sX[3]}, 1, 17\ns_lshl_b32 {sLb}, {sLb}, 4')
        A(f'v_add_u32 {vx1}, 0x10000, {vx0}')
        if OPT['hs']:
            A(f'v_lshlrev_b32 {v_l16}, 4, v0\nv_and_b32 v9, 0xffffff00, {v_l16}\nv_mad_u32_u24 v9, v9, 3, {v_l16}')
            A(f's_lshr_b32 {sE[0]}, {sJJ}, 3\ns_lshl2_add_u32 {sE[0]}, {sE[0]}, s6\ns_lshl_b32 {sE[0]}, {sE[0]}, 14\ns_and_b32 s5, {sRot}, 4\ns_lshl_b32 s5, s5, 7\ns_add_u32 {sE[0]}, {sE[0]}, s5\ns_add_u32 {sE[0]}, {sE[0]}, {sXb}')
        else: A(f'v_lshlrev_b32 {v_l16}, 4, v0\nv_and_b32 v9, 0xfffffe00, {v_l16}\nv_add_u32 v9, v9, {v_l16}\ns_lshl_b32 {sE[0]}, {sJJ}, 13\ns_add_u32 {sE[0]}, {sE[0]}, {sXb}')
        A(f's_lshr_b32 {sJ}, {sJJ}, 1')
        A(f'v_bfi_b32 {k}, 2, {rho}, {t}\nv_and_b32 {k}, 6, {k}\nv_xor_b32 {k}, {k}, v0\nv_and_b32 {k}, 7, {k}\nv_lshlrev_b32 {k}, 4, {k}')
        if fw: A(f's_and_b32 s5, s2, 32\nv_xor_b32 {rho}, s5, {rho}\ns_lshl_b32 s5, s5, 7\ns_xor_b32 {sLw}, {sLb}, s5')
        else: A(f's_mov_b32 {sLw}, {sLb}')
        A(f'v_mad_u32_u24 {vw}, {rho}, {sLrow}, {k}')
        A(f's_mul_i32 {sWb}, {sWb}, {sJ}\ns_add_u32 {sWb}, {sWb}, 64\ns_and_b32 {sWb}, {sWb}, 0xffffff80')
        A(f's_lshl_b32 {sW[2]}, {sLrow}, 9\ns_mov_b32 {sW[3]}, {sX[3]}\ns_lshl_b32 {sT0}, {st0}, 6\ns_mul_i32 {sT0}, {sT0}, {sLrow}\ns_add_u32 {sWo}, {sT0}, {sWb}')
        A(f's_cmp_eq_u32 s3, 0\ns_cselect_b32 {sT0}, 10, 7\ns_lshl_b32 {sT0}, 1, {sT0}\ns_add_u32 {sE[3]}, {sWo}, {sT0}')
        A(f's_add_u32 {sLw}, {sLw}, {b0+24576}\ns_movk_i32 {sT1}, 8192')
        if OPT['r3'] & 4: A(f's_bitcmp1_b32 s2, 4\ns_cselect_b32 s5, -1, 1\ns_mul_i32 {sT0}, {sT0}, s5\ns_mul_i32 {sT1}, {sT1}, s5')
        A(f's_sub_u32 {sE[1]}, {sE[3]}, {sT0}\ns_add_u32 {sE[2]}, {sE[3]}, {sT0}\ns_lshr_b32 {sWV}, {sLb}, 10')
        xl = [f's_add_u32 m0, {sLb}, {b0}\ns_nop 0\nbuffer_load_dwordx4 {vx0}, {sX}, {sXo} offen lds', f's_add_u32 m0, {sLb}, {b0+8192}\ns_nop 0\nbuffer_load_dwordx4 {vx1}, {sX}, {sXo} offen lds']
        wl = [f's_sub_u32 m0, {sLw}, {sT1}\ns_nop 0\nbuffer_load_dwordx4 {vw}, {sW}, {sE[1]} offen lds', f's_mov_b32 m0, {sLw}\ns_nop 0\nbuffer_load_dwordx4 {vw}, {sW}, {sE[3]} offen lds',
              f's_add_u32 m0, {sLw}, {sT1}\ns_nop 0\nbuffer_load_dwordx4 {vw}, {sW}, {sE[2]} offen lds']
        A(f's_cmp_ge_u32 {sLb}, 4096')
        stampg(A, 1)
        A('s_waitcnt lgkmcnt(0)')
        stampg(A, 2)
        A('s_cbranch_scc1 K_norow')
        A(f's_load_dword {sTag}, {sWS[0:2]}, {EPOCH}')
        A(f'buffer_load_dwordx4 {xrow[0:4]}, v9, {sX}, {sE[0]} offen\nbuffer_load_dwordx4 {xrow[4:8]}, v9, {sX}, {sE[0]} offen offset:{256 if OPT["hs"] else 512}')
        A('K_norow:')
        if OPT['r3'] & 2:
            A(f's_bitcmp1_b32 {sRot}, 0\ns_cbranch_scc1 K_wx')
            for x in xl + wl: A(x)
            A('s_branch K_xw\nK_wx:')
            for x in wl + xl: A(x)
            A('K_xw:')
        else:
            for x in xl + wl: A(x)
    else:
        A(f's_lshl_b32 {sXb}, {sI}, 17\ns_lshl_b32 {sXo}, {sRot}, 7\ns_add_u32 {sXo}, {sXo}, {sXb}')
        A(f's_lshl_b32 {sX[2]}, 1, 21\ns_lshl_b32 {sX[3]}, 1, 17\ns_lshl_b32 {sLb}, {sLb}, 4')
        if fx:
            A(f's_lshr_b32 s5, s2, 7\ns_lshl_b32 s7, s5, 15\nv_xor_b32 {vx0}, s7, {vx0}\ns_lshl_b32 s5, s5, 12\ns_xor_b32 {sLx}, {sLb}, s5')
        else: sLx = sLb
        A(f'v_add_u32 {vx1}, 0x10000, {vx0}\ns_add_u32 m0, {sLx}, {b0}')
        A(f'v_lshlrev_b32 {v_l16}, 4, v0\nv_and_b32 v9, 0xfffffe00, {v_l16}\nv_add_u32 v9, v9, {v_l16}\ns_lshl_b32 {sE[0]}, {sJJ}, 13\ns_add_u32 {sE[0]}, {sE[0]}, {sXb}')
        A(f's_cmp_ge_u32 {sLb}, 4096')
        if not OPT['warm']: stampg(A, 1)
        A('s_waitcnt lgkmcnt(0)')
        stampg(A, 2)
        A('s_cbranch_scc1 K_norow')
        A(f's_load_dword {sTag}, {sWS[0:2]}, {EPOCH}')
        A(f'buffer_load_dwordx4 {xrow[0:4]}, v9, {sX}, {sE[0]} offen\nbuffer_load_dwordx4 {xrow[4:8]}, v9, {sX}, {sE[0]} offen offset:512')
        A('K_norow:')
        A(f'buffer_load_dwordx4 {vx0}, {sX}, {sXo} offen lds')
        A(f's_add_u32 m0, {sLx}, {b0+8192}\ns_lshr_b32 {sJ}, {sJJ}, 1\nbuffer_load_dwordx4 {vx1}, {sX}, {sXo} offen lds')
        A(f'v_bfi_b32 {k}, 2, {rho}, {t}\nv_and_b32 {k}, 6, {k}\nv_xor_b32 {k}, {k}, v0\nv_and_b32 {k}, 7, {k}\nv_lshlrev_b32 {k}, 4, {k}')
        if fw: A(f's_and_b32 s5, s2, 32\nv_xor_b32 {rho}, s5, {rho}\ns_lshl_b32 s5, s5, 7\ns_xor_b32 {sLw}, {sLb}, s5')
        else: sLw = sLb
        A(f'v_mad_u32_u24 {vw}, {rho}, {sLrow}, {k}')
        A(f's_mul_i32 {sWb}, {sWb}, {sJ}\ns_add_u32 {sWb}, {sWb}, 64\ns_and_b32 {sWb}, {sWb}, 0xffffff80')
        A(f's_lshl_b32 {sW[2]}, {sLrow}, 9\ns_mov_b32 {sW[3]}, {sX[3]}\ns_lshl_b32 {sT0}, {sRot}, 6\ns_mul_i32 {sT0}, {sT0}, {sLrow}\ns_add_u32 {sWo}, {sT0}, {sWb}')
        A(f's_add_u32 m0, {sLw}, {b0+16384}\ns_cmp_eq_u32 s3, 0\nbuffer_load_dwordx4 {vw}, {sW}, {sWo} offen lds')
        A(f's_cselect_b32 {sE[2]}, 10, 7\ns_lshl_b32 {sE[2]}, 1, {sE[2]}\ns_add_u32 {sE[3]}, {sWo}, {sE[2]}')
        A(f's_add_u32 m0, {sLw}, {b0+24576}\ns_add_u32 {sE[2]}, {sE[3]}, {sE[2]}\nbuffer_load_dwordx4 {vw}, {sW}, {sE[3]} offen lds')
        A(f's_add_u32 m0, {sLw}, {b0+32768}\ns_lshr_b32 {sWV}, {sLb}, 10\nbuffer_load_dwordx4 {vw}, {sW}, {sE[2]} offen lds')
    A(f'v_and_b32 v1, 63, v0\nv_lshlrev_b32 {v_l16}, 4, v1')
    if OPT['stamp']:
        for i in range(3 if OPT['stamp'] == 7 else 1, NS): A(f's_mov_b64 s[{72+2*i}:{73+2*i}], 0')
    A(f's_lshl_b32 {sWS[2]}, 1, 24\ns_mov_b32 {sWS[3]}, {sX[3]}')
    A(f's_and_b32 {sWQ}, {sWV}, 3\ns_lshr_b32 s4, {sWV}, 2\ns_add_u32 s3, s3, s4')
    stampg(A, 3)
    A('s_cmp_eq_u32 s3, 1\ns_cbranch_scc1 K_LA\ns_cmp_eq_u32 s3, 0\ns_cbranch_scc1 K_CA\ns_cmp_eq_u32 s3, 2\ns_cbranch_scc1 K_CF')
    Bs = []
    for typ in 'FA':
        A(f'K_L{typ}:')
        Bs.append(LW(A, typ).run())
        p2_L(A, Bs[-1], typ); A('s_branch K_end')
    A('K_CF:')
    c = CW(A, 'F'); c.prologue(); c.main(); c.epi_F()
    A('s_branch K_C2')
    A('K_CA:')
    c = CW(A, 'A'); c.prologue(); c.main(); c.epi_A()
    A('K_C2:')
    p2_C(A)
    A('K_end:')
    stamp_out(A)
    A('K_done:\ns_endpgm')

def add_stubs(body):
    dummy = [f'WS_{t}{c}:' for t in 'FA' for c in range(4)]
    S = sizes_of(body + dummy)
    reg = None; off = 0x300; n = 0; page = 0
    marks = []; nb = {}
    for k, l in enumerate(body):
        if l.endswith(':'):
            if l[:-1] in ('K_LF', 'K_LA', 'K_CF', 'K_CA', 'K_C2', 'K_end'):
                reg = l[2:-1] if l != 'K_end:' else None
                if reg == 'C2': marks.append((k + 1, reg)); off += 8
                if reg == 'LA' and OPT['ia']:
                    body[k] = '.p2align 12\n' + l; off = (off + 4095) & ~4095; page = off >> 10
            continue
        if l.startswith('.'): continue
        if l == 's_barrier': nb[reg] = nb.get(reg, 0) + 1
        fine = reg and ((OPT['stub'] >= 2 and reg in ('CF', 'CA') and 1 <= nb.get(reg, 0) < OPT['stbe']) or (OPT['stub'] >= 3 and reg[0] == 'L' and 1 <= nb.get(reg, 0) < 9))
        if off >> 10 != page:
            pg = off >> 12 != page >> 2
            page = off >> 10
            if reg and (pg or fine) and (reg == 'C2' or nb.get(reg, 0) >= 1): marks.append((k, reg)); off += 8
        off += S[n]; n += 1
    lst = {r: [k for k, rr in marks if rr == r] for r in ('LF', 'LA', 'CF', 'CA', 'C2')}
    print('stubs', {r: len(v) for r, v in lst.items()})
    ins = {}
    for k in lst['C2']: ins[k] = [f'WS_{k}:', 's_cbranch_execz K_wret', 's_nop 0']
    for t in 'FA':
        own = lst['C' + t] + lst['L' + t]
        ch = [own[c::4] for c in range(4)]
        for i, k in enumerate(lst['C2']): ch[3 - i].append(k)
        for c in range(4):
            for i, k in enumerate(ch[c]):
                if k not in ins: ins[k] = [f'WS_{k}:', f's_cbranch_execz ' + (f'WS_{ch[c][i+1]}' if i + 1 < len(ch[c]) else f'WR_{t}'), 's_nop 0']
            ins[ch[c][0]].insert(0, f'WS_{t}{c}:')
    out = []
    for k, l in enumerate(body):
        out += ins.get(k, []); out.append(l)
    z = False
    for l in out:
        if l == 's_mov_b64 exec, 0': z = True
        elif l.startswith('s_mov_b64 exec'): z = False
        assert not (z and 'execz' in l)
    return out
def build():
    A = Asm(); kernel(A)
    body = fix_hazards(A.L, verbose=True)
    dummy = [f'WS_{t}{c}:' for t in 'FA' for c in range(4)] if OPT['stub'] else []
    if OPT['al']: body = align8(body + dummy, verbose=True)
    if OPT['stub']: body = add_stubs(body[:-8])
    K = NAME + '_kernel'
    hdr = ['; @launch grid=(256,1,1) block=(512,1,1) lds=163840', '.amdgcn_target "amdgcn-amd-amdhsa--gfx950"', '.text']
    tail = ['.section .rodata,"a"', '.p2align 6', f'''.amdhsa_kernel {K}
  .amdhsa_next_free_vgpr 256
  .amdhsa_next_free_sgpr 102
  .amdhsa_accum_offset 256
  .amdhsa_group_segment_fixed_size 0
  .amdhsa_kernarg_size 80
  .amdhsa_user_sgpr_count 2
  .amdhsa_user_sgpr_kernarg_segment_ptr 1
  .amdhsa_system_sgpr_workgroup_id_x 1
.end_amdhsa_kernel''']
    return '\n'.join(hdr + body + tail) + '\n'
if __name__ == '__main__':
    open(sys.argv[1], 'w').write(build())
```

```python
import sys, struct
from asmlib import *
NAME = 'recurrent_scan__linear_kernel_hedgehog__dense_activation_silu__prompt'
SZ_X, SZ_QKV, SZ_PHI, SZ_WO, SZ_W1, SZ_W2, SZ_OUT, SZ_WS = 2048*512*2, 512*1536*2, 32*16*16*2, 512*512*2, 512*1792*2, 1792*512*2, 2048*512*2, 0x1000000
EPOCH, STAT, KT, CSP, CNT, ACT, KP = 0, 0x30000, 0x10000, 0x40000, 0x80000, 0x100000, 0xB00000
OOB = 0x40000000
SB = 45056
def phys(s): return (2 - s % 3) * SB
X0, X1, WOB, Y0, Y1, TS, MISC = 0, 16384, 32768, 102400, 118784, 135168, 151552
L_NM, L_RL, L_R, L_CS, L_TAG = MISC, MISC+512, MISC+1024, MISC+1536, MISC+2560
L_SG, L_PHI = MISC+2624, MISC+4096
JUNK = MISC + 8192
LOG2E = 1.4426950408889634
def f2u(x): return struct.unpack('<I', struct.pack('<f', x))[0]
OPT = dict(stamp=0, touch=33, spin=1<<16, slp=2, hold=3, keep=8, nmA=0, nmF=0, n6A=2, n7A=2, n6F=2, n7F=2, sp0=6, wob=4, wobA=4, tlA=0, tlF=0, gat=5, chk=7, opoll=0, lprio=1, brot=1, npre=9, vmgap=64, dbg=0, hst=0, rot=4, lord=4, r2=0, j3=0, c3=6, flip=1, warm=0, qf=0, tk=1, pk=0, spm=3, stk=1, q6A=4, q7A=8, q6F=12, q7F=8, sp1=99, laA=10, laF=11, wdel=2, lag=3, wolA=0, wolF=2, wper=4, cprio=0, opk=1, depA=7, depF=8, al=1, ack1=0, ack2=0, slpa=0, slph=2, slpo=4, ost=1, hld=0, old=0, j3k=1, j3p=0, st='0000000', stl=0, stcp=0, sti=0, c3F=0, ph0=0, stub=1, stc=0, sc3=0, pa=12, ia=1, stbe=9, kva=1, lp2=2, xr=0, ph=2467, pa3=3, gs=55, ah=3, ahA=8, pwg=1, lr=0, xu=1, hs=0, psc=1, nsl=5, splA='66ffff', splF='66ffff', t64=1, tfl=0, wfl=0, snk=1, holdF=2, lpr=14, lpt=2, lpsA=8, lpsF=3, wo=0, snt=0, eo=1, la0=4, ns0=0, tm=1, wsp=3, npk=1, r3=7, ent=1, e1=5, sw=1, sk=6, tto=0, qa=2, qb=1, Rk=1, Dk=0, Ro=1, Do=0, Rh=1, Dh=0, psl=5, ntx=0, ntw=0, ntr=0, ntf=1, xm=0, w2h=99, ntp=1, x2h=99)
for a in sys.argv[2:]:
    k, v = a.split('='); assert k in OPT, k; OPT[k] = v if k in ('st', 'splA', 'splF') else int(v)

sX, sW, sWS, sPHI, sW2, sOUT, sWO = [R('s', 8+4*i, 4) for i in range(7)]
(sI, sJ, sWV, sWQ, sRot, sT0, sT1, sXo, sWo, sHo, sXb, sWb, sHb, sLb, sTag, sSpin,
 sI2, sJ2, sCur, sCurA, sBb, sAb, sLb2, sJJ, sLrow, sTB1, sTB2, sTB3) = [R('s', 36+i, 1) for i in range(28)]
sTB = [sTag, sTB1, sTB2, sTB3]
sM2 = R('s', 64, 2)
sE = [R('s', 66+i, 1) for i in range(6)]
NS = 12
sSel = [R('s', 96, 1), R('s', 97, 1)]; sF = [R('s', 98+i, 1) for i in range(4)]
lane = R('v', 1, 1)
v_l16 = R('v', 3, 1)
vx0, vx1, vw = R('v', 10, 1), R('v', 11, 1), R('v', 12, 1)
xrow = R('v', 240, 8)

class Ctx:
    def __init__(self, A): self.A = A; self.n = 0
    def vm(self, s):
        self.A(s); self.n += 1; return self.n
    def wait(self, tok, extra=''):
        k = min(self.n - tok, 63); assert k >= 0
        self.A(f's_waitcnt vmcnt({k}) {extra}'.strip())
class LG:
    def __init__(self, A): self.A = A; self.n = 0; self.done = 0
    def ds(self, s):
        self.A(s); self.n += 1; return self.n
    def need(self, tok, keep=None):
        if tok <= self.done: return
        k = min(self.n - tok, OPT['keep'] if keep is None else keep, 15)
        self.A(f's_waitcnt lgkmcnt({k})'); self.done = self.n - k
    def all(self):
        self.A('s_waitcnt lgkmcnt(0)'); self.done = self.n
def stamp(A, i):
    if OPT['stamp'] == 9:
        A(f's_memrealtime s[{72+2*i}:{73+2*i}]'); return
    if OPT['stamp'] == 3: A(f's_memtime s[{72+2*i}:{73+2*i}]')
    elif OPT['stamp'] == 1 or (OPT['stamp'] and i == NS-1): A(f's_memrealtime s[{72+2*i}:{73+2*i}]')
def stampb(A, i):
    if OPT['stamp'] == 4: A(f's_memtime s[{72+2*i}:{73+2*i}]')
def stampe(A, i):
    if OPT['stamp'] == 5 and i < 11: A(f's_memtime s[{72+2*i}:{73+2*i}]')
def stampf(A, i):
    if OPT['stamp'] == 6 and i < 11: A(f's_memtime s[{72+2*i}:{73+2*i}]')
def stampg(A, i):
    if OPT['stamp'] == 7 and i < 11: A(f's_memtime s[{72+2*i}:{73+2*i}]')
def stamph(A, i):
    if OPT['stamp'] == 8 and i < 11: A(f's_memtime s[{72+2*i}:{73+2*i}]')
def stampc(A, i):
    if OPT['stamp'] == 2: A(f's_memtime s[{72+2*i}:{73+2*i}]')
def stamp_out(A):
    if not OPT['stamp']: return
    A(f's_waitcnt vmcnt(0)')
    stamp(A, NS-1)
    A('s_waitcnt lgkmcnt(0)')
    if OPT['stamp'] == 9:
        A('s_load_dwordx2 s[4:5], s[0:1], 64\ns_waitcnt lgkmcnt(0)')
        for i in range(NS): A(f's_atomic_umax s{72+2*i}, s[4:5], {4*i}')
        A('s_not_b32 s72, s72\ns_atomic_umax s72, s[4:5], 48\ns_waitcnt lgkmcnt(0)')
        return
    A(f's_lshl_b32 s4, s2, 3\ns_add_u32 s4, s4, {sWV}\ns_lshl_b32 s4, s4, 7\ns_add_u32 s4, s4, {15*1024*1024}')
    A(f'v_lshlrev_b32 v2, 26, v1')
    for i in range(NS):
        A(f'v_mov_b32 v4, s{72+2*i}\nv_mov_b32 v5, s{73+2*i}\nbuffer_store_dwordx2 v[4:5], v2, {sWS}, s4 offen offset:{8*i}')
    A(f's_getreg_b32 s5, hwreg(HW_REG_XCC_ID)\ns_getreg_b32 s6, hwreg(HW_REG_HW_ID)\nv_mov_b32 v4, s5\nv_mov_b32 v5, s6\nbuffer_store_dwordx2 v[4:5], v2, {sWS}, s4 offen offset:96')
def srd(A, s, off, size):
    A(f's_load_dwordx2 {s[0:2]}, s[0:1], {off}\ns_mov_b32 {s[2]}, {size}\ns_mov_b32 {s[3]}, 0x20000')
def dpp_add(v, m): return f'v_add_f32_dpp {v}, {v}, {v} {m} row_mask:0xf bank_mask:0xf'
def emit_sched(A, L, name='', **kw):
    out, t, nops = sched(L, **kw)
    if name: print(f'  sched {name}: {len(out)} instrs, est {t} clk, nops {nops}')
    for x in out: A(x)
def poll(A, ld, check, first_loaded=False, sleep=1, mask_exec=False):
    l0, l1, l2 = A.lab('PL'), A.lab('PC'), A.lab('PD')
    A(f's_mov_b32 {sSpin}, {OPT["spin"]}')
    if first_loaded: A(f's_branch {l1}')
    A(f'{l0}:'); A(ld); A('s_waitcnt vmcnt(0)')
    if mask_exec: A('s_mov_b64 exec, -1')
    A(f'{l1}:')
    check()
    A(f's_cbranch_scc0 {l2}')
    if sleep: A(f's_sleep {sleep}')
    if mask_exec: A('s_mov_b64 exec, s[4:5]')
    A(f's_sub_u32 {sSpin}, {sSpin}, 1\ns_cbranch_scc0 {l0}')
    if mask_exec: A('s_mov_b64 exec, -1')
    A(f'{l2}:')
def chk_words(A, regs, tmp):
    def f():
        if len(regs) == 1: A(f'v_cmp_ne_u32 vcc, {sTag}, {regs[0]}')
        else:
            np_ = len(regs)//2
            for i in range(np_): A(f'v_bitop3_b32 {tmp[i]}, {regs[2*i]}, {regs[2*i+1]}, {sTag} bitop3:0x7e')
            i = 1
            while i < np_:
                if i + 1 < np_: A(f'v_or3_b32 {tmp[0]}, {tmp[0]}, {tmp[i]}, {tmp[i+1]}'); i += 2
                else: A(f'v_or_b32 {tmp[0]}, {tmp[0]}, {tmp[i]}'); i += 1
            A(f'v_cmp_ne_u32 vcc, 0, {tmp[0]}')
        A(f's_and_b64 s[4:5], vcc, exec')
    return f
def spoll(A, so, n, sleep):
    l0, l1 = A.lab('SP'), A.lab('SD')
    A(f's_add_u32 {sT1}, {sTag}, {n}\ns_mov_b32 {sSpin}, {OPT["spin"]}')
    A(f'{l0}:\ns_mov_b32 {sT0}, 0\ns_atomic_add {sT0}, {sWS[0:2]}, {so} glc\ns_waitcnt lgkmcnt(0)\ns_cmp_eq_u32 {sT0}, {sT1}\ns_cbranch_scc1 {l1}')
    if sleep: A(f's_sleep {sleep}')
    A(f's_sub_u32 {sSpin}, {sSpin}, 1\ns_cbranch_scc0 {l0}\n{l1}:')
def ppoll_pre(A, so, D, base, clear=True):
    if not D: return
    if clear:
        A('s_waitcnt lgkmcnt(0)')
        for d in range(D): A(f's_mov_b32 s{base+2*d}, {sTag}\ns_sub_u32 s{base+2*d+1}, {sTag}, 1')
def ppoll(A, so, n, D, base, sleep, pre=True):
    if not D: return spoll(A, so, n, sleep)
    l0, l1 = A.lab('PP'), A.lab('PQ')
    ppoll_pre(A, so, D, base, pre)
    A(f's_add_u32 {sT1}, {sTag}, {n}\ns_mov_b32 {sSpin}, {OPT["spin"]}')
    at = lambda d: f's_atomic_cmpswap s[{base+2*d}:{base+2*d+1}], {sWS[0:2]}, {so} glc'
    for d in range(1, D): A(at(d) + f'\ns_sleep {2*OPT["psl"]//D}')
    A(f'{l0}:')
    for d in range(D):
        A(at(d) + f'\ns_waitcnt lgkmcnt({D-1})\ns_cmp_eq_u32 s{base + 2*((d+1) % D)}, {sT1}\ns_cbranch_scc1 {l1}')
    A(f's_sub_u32 {sSpin}, {sSpin}, 1\ns_cbranch_scc0 {l0}\n{l1}:')
def sarrive(A, *sos):
    A(f's_waitcnt vmcnt(0)')
    for so in sos: A(f's_atomic_add {sLrow}, {sWS[0:2]}, {so}')
def cnt_i2(A, d, i2, extra):
    A(f's_lshr_b32 {d}, {i2}, 1\ns_lshl_b32 {d}, {d}, 14\ns_and_b32 s4, {i2}, 1\ns_lshl_b32 s4, s4, 11\ns_add_u32 {d}, {d}, s4\ns_add_u32 {d}, {d}, {CNT + extra}')
def quad_diff(A, q, d, t):
    A(f'v_perm_b32 {d}, {q[1]}, {q[0]}, {sSel[0]}\nv_perm_b32 {t}, {q[3]}, {q[2]}, {sSel[1]}\nv_bitop3_b32 {d}, {d}, {t}, {sTag} bitop3:0x96')
def tag_consts(A):
    A(f's_lshr_b32 {sTB1}, {sTag}, 8\ns_lshr_b32 {sTB2}, {sTag}, 16\ns_lshr_b32 {sTB3}, {sTag}, 24')
    A(f's_mov_b32 {sSel[0]}, 0x0c0c0400\ns_mov_b32 {sSel[1]}, 0x04000c0c')
def tag_quad(q, ff): return [f'v_bfi_b32 {q[k]}, {ff}, {sTB[k]}, {q[k]}' for k in range(4)]
def lds_spin(A, va, off, n, vt, mask=False, slp=1):
    l0, l1 = A.lab('LS'), A.lab('LD')
    A(f's_mov_b32 {sSpin}, {OPT["spin"]*4}')
    A(f'{l0}:\nds_read_b32 {vt}, {va} offset:{off}\ns_waitcnt lgkmcnt(0)\nv_readfirstlane_b32 {sT0}, {vt}\n' + (f's_and_b32 {sT0}, {sT0}, {n}\n' if mask else '') + f's_cmp_ge_u32 {sT0}, {n}\ns_cbranch_scc1 {l1}')
    if slp: A(f's_sleep {slp}')
    A(f's_sub_u32 {sSpin}, {sSpin}, 1\ns_cbranch_scc0 {l0}\n{l1}:')
def lds_inc(A, va, off, vt):
    A(f'v_mov_b32 {vt}, 1\ns_mov_b64 exec, 1\nds_add_u32 {va}, {vt} offset:{off}\ns_mov_b64 exec, -1')
def p2_ids(A):
    A(f's_and_b32 s4, s2, 7\ns_lshr_b32 s5, s2, 3')
    if OPT['xm']: A(f's_lshl_b32 s4, s4, 2\ns_lshr_b32 s4, {[0, 0x73625140, 0x37261504][OPT["xm"]]:#x}, s4\ns_and_b32 s4, s4, 7')
    if OPT['sw']:
        A(f's_and_b32 s6, s5, 15\ns_lshr_b32 s6, 0x880, s6\ns_and_b32 s6, s6, 1\ns_mul_i32 s6, s6, 12\ns_xor_b32 s5, s5, s6')
    A(f's_lshl_b32 s4, s4, 2\ns_lshr_b32 s6, s5, 3\ns_add_u32 {sI2}, s4, s6\ns_and_b32 {sJ2}, s5, 7')
def tr_addr(A, vab, base, t0, t1):
    l = lane
    A(f'v_lshrrev_b32 {t0}, 2, {l}\nv_lshlrev_b32 {t0}, 7, {t0}\nv_and_b32 {t1}, 3, {l}\nv_lshl_add_u32 {t0}, {t1}, 3, {t0}\nv_add_u32 {t0}, {base}, {t0}')
    A(f'v_bfe_u32 {t1}, {l}, 3, 2')
    for q in range(4):
        A(f'v_xor_b32 {vab[q]}, {q}, {t1}\nv_lshl_add_u32 {vab[q]}, {vab[q]}, 5, {t0}')

def stouch(A, lo, hi, junk='s3'):
    if lo < min(hi, 36): A(f's_lshl2_add_u32 s6, s2, {sWQ}\ns_lshl_b32 s7, s6, 9\ns_mul_i32 s6, s6, 1792')
    for i in range(lo, min(hi, 72 if OPT['sc3'] else 36)):
        if i == max(lo, 36): A(f's_lshr_b32 s6, s2, 3\ns_lshl2_add_u32 s6, s6, {sWQ}\ns_lshl_b32 s7, s6, 12\ns_mul_i32 s6, s6, {14*1024}')
        if i < 28: A(f's_load_dword {junk}, {sW2[0:2]}, s6 offset:{64*i}')
        elif i < 36: A(f's_load_dword {junk}, {sWO[0:2]}, s7 offset:{64*(i-28)}')
        elif i < 64: A(f's_load_dword {junk}, {sW2[0:2]}, s6 offset:{(i-36)//2*1024 + 384 + 64*(i & 1)}')
        else: A(f's_load_dword {junk}, {sWO[0:2]}, s7 offset:{(i-64)//2*1024 + 384 + 64*(i & 1)}')
class CW:
    def __init__(self, A, typ):
        self.A = A; self.typ = typ
        self.C = Ctx(A); self.G = LG(A)
        self.V = Pool('v', 4, 256); self.V.at(9, 4); self.V.at(240, 16)
    def prologue(self):
        A, V, C, l, typ = self.A, self.V, self.C, lane, self.typ
        C.n = 7; tk_row = 2; self.tk0 = 7
        F = typ == 'F'
        srd(A, sOUT, 56, SZ_OUT)
        if OPT['stc']: A(f's_load_dwordx2 {sW2[0:2]}, s[0:1], 48')
        if not F: self.aphi = V.alloc(4, 4)
        self.ax = [V.alloc(), V.alloc()]
        T64 = F and OPT['t64']
        self.aw = [V.alloc() for _ in range(3 if T64 else 6 if F else 1)]
        t, g, t0, t1, f = [R('v', 232+i, 1) for i in range(5)]
        b0 = phys(0)
        A(f'v_and_b32 {t}, 15, {l}\nv_lshrrev_b32 {g}, 4, {l}')
        A(f'v_lshrrev_b32 {t0}, 1, {t}\nv_xor_b32 {t0}, {t0}, {g}\nv_lshlrev_b32 {t0}, 4, {t0}\nv_lshl_add_u32 {t0}, {t}, 7, {t0}')
        if T64: A(f's_lshr_b32 {sT0}, {sWQ}, 1\ns_lshl_b32 {sT0}, {sT0}, 13\nv_add_u32 {t0}, {sT0}, {t0}')
        elif F: A(f's_lshl_b32 {sT0}, {sWQ}, 12\nv_add_u32 {t0}, {sT0}, {t0}')
        A(f'v_add_u32 {self.ax[0]}, {b0}, {t0}\nv_xor_b32 {t0}, 64, {t0}\nv_add_u32 {self.ax[1]}, {b0}, {t0}')
        A(f'v_lshrrev_b32 {f}, 3, {t}\nv_and_b32 {t0}, 1, {g}\nv_lshl_or_b32 {f}, {t0}, 1, {f}')
        A(f'v_lshrrev_b32 {t0}, 2, {t}\nv_lshlrev_b32 {t0}, 7, {t0}\nv_lshl_add_u32 {t0}, {g}, 10, {t0}\nv_and_b32 {t1}, 3, {t}\nv_lshl_add_u32 {t0}, {t1}, 3, {t0}\nv_add_u32 {t0}, {b0+16384}, {t0}')
        if not F:
            A(f'v_xor_b32 {t1}, {sWQ}, {f}\nv_lshl_add_u32 {self.aw[0]}, {t1}, 5, {t0}')
        else:
            if T64:
                A(f's_and_b32 {sT1}, {sWQ}, 1\ns_lshl_b32 {sT0}, {sT1}, 1\nv_xor_b32 {t1}, {sT0}, {f}\nv_lshl_add_u32 {self.aw[0]}, {t1}, 5, {t0}\nv_xor_b32 {t1}, 1, {t1}\nv_lshl_add_u32 {self.aw[1]}, {t1}, 5, {t0}')
            else:
                for q in range(4): A(f'v_xor_b32 {t1}, {q}, {f}\nv_lshl_add_u32 {self.aw[q]}, {t1}, 5, {t0}')
            A(f'v_lshrrev_b32 {t0}, 2, {t}\nv_lshlrev_b32 {t0}, 6, {t0}\nv_lshl_add_u32 {t0}, {g}, 9, {t0}\nv_and_b32 {t1}, 3, {t}\nv_lshl_add_u32 {t0}, {t1}, 3, {t0}\nv_add_u32 {t0}, {b0+16384}, {t0}')
            A(f'v_and_b32 {f}, 1, {g}')
            if T64: A(f'v_xor_b32 {t1}, {sT1}, {f}\nv_lshl_add_u32 {self.aw[2]}, {t1}, 5, {t0}')
            else:
                for q in range(2): A(f'v_xor_b32 {t1}, {q}, {f}\nv_lshl_add_u32 {self.aw[4+q]}, {t1}, 5, {t0}')
        A(f's_lshl_b32 {sT0}, {sI}, 4\ns_add_u32 {sT0}, {sT0}, {sJJ}\ns_lshl2_add_u32 {sT0}, {sT0}, {sWQ}\ns_lshl_b32 {sT0}, {sT0}, 8\ns_add_u32 {sT0}, {sT0}, {CNT}')
        stampg(A, 4)
        A('s_waitcnt lgkmcnt(0)')
        stampg(A, 5)
        A(f's_mul_i32 {sTag}, {sTag}, 0x9E3779B1\ns_add_u32 {sTag}, {sTag}, 0x7F4A7C15\ns_mov_b32 {sSpin}, {sTag}')
        A(f's_atomic_swap {sSpin}, {sWS[0:2]}, {sT0} glc')
        if OPT['Rh'] > 1 or len(PH) > 2: A(f's_mov_b32 {sCurA}, {sTag}\ns_atomic_swap {sCurA}, {sWS[0:2]}, {sT0} offset:128 glc')
        if OPT['stcp'] == 0: stouch(A, 0, OPT['stc'], sCur)
        p2_ids(A)
        if not F: self.consts_A()
        tag_consts(A)
        A(f's_mov_b32 {sLrow}, 1')
        V.release(R('v', 240, 16), R('v', 9, 4))
        self.tk_row = tk_row
    def stats(self):
        A, C, l, tk_row = self.A, self.C, lane, self.tk_row
        x = R('v', 216, 16); o = R('v', 248, 4); t = R('v', 252, 1); ad = R('v', 253, 1); u = R('v', 254, 1)
        HS = OPT['hs']
        A(f's_lshl_b32 {sT0}, {sWQ}, {4 + HS}\ns_add_u32 {sT0}, {sT0}, {L_SG}\nv_lshrrev_b32 {ad}, {5 - HS}, {l}\nv_lshl_add_u32 {ad}, {ad}, 3, {sT0}')
        z = R('v', 232, 4)
        A(f'v_mov_b32 {u}, {L_TAG}\nv_mov_b32 {z[0]}, {sTag}\nv_mov_b32 {z[1]}, 0\nv_mov_b32 {z[2]}, 0\nv_mov_b32 {z[3]}, 0\nds_write_b128 {u}, {z}')
        stampg(A, 6)
        if OPT['stcp'] == 1: stouch(A, 0, OPT['stc'], sCur)
        C.wait(tk_row)
        stampg(A, 7)
        for i in range(8): A(f'v_lshlrev_b32 {x[2*i]}, 16, {xrow[i]}\nv_and_b32 {x[2*i+1]}, 0xffff0000, {xrow[i]}')
        y = xrow
        for i in range(4): A(f'v_pk_add_f32 {y[2*i:2*i+2]}, {x[4*i:4*i+2]}, {x[4*i+2:4*i+4]}')
        A(f'v_pk_add_f32 {y[0:2]}, {y[0:2]}, {y[2:4]}\nv_pk_add_f32 {y[4:6]}, {y[4:6]}, {y[6:8]}\nv_pk_add_f32 {y[0:2]}, {y[0:2]}, {y[4:6]}\nv_add_f32 {o[0]}, {y[0]}, {y[1]}')
        def hsum(v):
            for m in ('quad_perm:[1,0,3,2]', 'quad_perm:[2,3,0,1]', 'row_half_mirror', 'row_mirror'): A(dpp_add(v, m))
            if not HS: A(f'v_mov_b32 {t}, {v}\nv_permlane16_swap_b32 {v}, {t}\nv_add_f32 {v}, {v}, {t}')
        hsum(o[0])
        A(f'v_mul_f32 {o[0]}, {f2u(1/256 if HS else 1/512):#x}, {o[0]}')
        for i in range(16): A(f'v_sub_f32 {x[i]}, {x[i]}, {o[0]}')
        A(f'v_pk_mul_f32 {y[0:2]}, {x[0:2]}, {x[0:2]}\nv_pk_mul_f32 {y[2:4]}, {x[2:4]}, {x[2:4]}')
        for i in range(2, 8): A(f'v_pk_fma_f32 {y[2*(i&1):2*(i&1)+2]}, {x[2*i:2*i+2]}, {x[2*i:2*i+2]}, {y[2*(i&1):2*(i&1)+2]}')
        A(f'v_pk_add_f32 {y[0:2]}, {y[0:2]}, {y[2:4]}\nv_add_f32 {o[2]}, {y[0]}, {y[1]}')
        hsum(o[2])
        if HS: A(f'v_mov_b32 {o[1]}, {o[2]}')
        else: A(f'v_mov_b32 {o[1]}, {f2u(1e-5):#x}\nv_fmac_f32 {o[1]}, {f2u(1/512):#x}, {o[2]}\nv_rsq_f32 {o[1]}, {o[1]}')
        stampg(A, 8)
        A(f'ds_write_b64 {ad}, {o[0:2]}')
    def consts_A(self):
        A, V, l = self.A, self.V, lane
        t0, t1, val, key = [R('v', 232+i, 1) for i in range(4)]
        self.sel16 = V.alloc(16, 4)
        self.bsel = [self.sel16[0:4], self.sel16[4:8]]; self.zsel = [self.sel16[8:12], self.sel16[12:16]]
        A(f'v_and_b32 {t1}, 1, {l}\nv_lshlrev_b32 {t1}, 4, {t1}\nv_mov_b32 {val}, 0x3f80\nv_lshlrev_b32 {val}, {t1}, {val}')
        A(f'v_bfe_u32 {key}, {l}, 1, 2\nv_bfe_u32 {t1}, {l}, 4, 1\nv_lshl_or_b32 {key}, {t1}, 2, {key}')
        A(f'v_lshrrev_b32 {t1}, 2, {l}\nv_xor_b32 {t1}, {t1}, {l}\nv_and_b32 {t1}, 8, {t1}\nv_or_b32 {key}, {key}, {t1}')
        for T in range(2):
            for rr in range(4):
                A(f'v_cmp_eq_u32 vcc, {rr + 4*T}, {key}\nv_cndmask_b32 {self.bsel[T][rr]}, 0, {val}, vcc')
        A(f'v_and_b32 {key}, 15, {l}\nv_mov_b32 {val}, 0x3f803f80')
        for m in range(2):
            A(f'v_cmp_eq_u32 vcc, {4*m if OPT["kva"] else m}, {key}\nv_cndmask_b32 {self.zsel[m][0]}, 0, {val}, vcc')
            for rr in range(1, 4): A(f'v_mov_b32 {self.zsel[m][rr]}, {self.zsel[m][0]}')
    def rd_w(self, dst, u, kk):
        b, q = self.units[u]
        return [f'ds_read_b64_tr_b16 {dst[2*hf:2*hf+2]}, {self.aw[q]} offset:{b*8192 + (kk*4096 + hf*512 if b < 3 else kk*2048 + hf*256)}' for hf in range(2)]
    def rd_x(self, dst, tt, kk): return [f'ds_read_b128 {dst}, {self.ax[kk]} offset:{tt*2048}']
    def main(self):
        A, V, C, G, typ = self.A, self.V, self.C, self.G, self.typ
        F = typ == 'F'
        if F and OPT['t64']:
            self.ntt = 4; self.units = [(b, q) for b in range(3) for q in range(2)] + [(3, 2)]
        elif F:
            self.ntt = 2; self.units = [(b, q) for b in range(3) for q in range(4)] + [(3, 4), (3, 5)]
        else:
            self.ntt = 8; self.units = [(0, 0), (1, 0), (2, 0)]
        nu = len(self.units)
        self.acc = [[V.alloc(4, 4) for u in range(nu)] for tt in range(self.ntt)]
        nr, nd = (nu, self.ntt) if F else (self.ntt, nu)
        self.Rg = [V.alloc(4, 4) for _ in range(nr)]
        self.Dg = [V.alloc(4*nd, 4) for _ in range(2)]
        rdR, rdD = (self.rd_w, self.rd_x) if F else (self.rd_x, self.rd_w)
        last_R, last_pre, fill = self.pre_epi()
        self.stats()
        if OPT['stub']:
            A('s_mov_b64 exec, 0')
            for c in range(3): A(f's_cmp_eq_u32 {sWQ}, {c}\ns_cbranch_scc1 WS_{typ}{c}')
            A(f's_branch WS_{typ}3')
            if not F: A(f'K_wret:\ns_cmp_lg_u32 s3, 0\ns_cbranch_scc1 WR_F')
            A(f'WR_{typ}:\ns_mov_b64 exec, -1')
        if OPT['stcp'] == 2: stouch(A, 0, OPT['stc'], sCur)
        stamp(A, 1); stampg(A, 9)
        C.wait(self.tk0, 'lgkmcnt(0)'); stampg(A, 10); A('s_barrier')
        stampb(A, 1)
        stamp(A, 2)
        tokR = {}; tokD = {}
        Q = []
        def issue(k):
            for _ in range(k):
                if not Q: return
                s, key = Q.pop(0); tk = G.ds(s)
                if key: (tokR if key[0] == 'R' else tokD)[key[1:]] = tk
        def kq(L, key): return [(s, key if i == len(L)-1 else None) for i, s in enumerate(L)]
        for d in range(nd): Q += kq(rdD(self.Dg[0][4*d:4*d+4], d, 0), ('D', 0, d))
        for j in range(nr): Q += kq(rdR(self.Rg[j], j, 0), ('R', 0, j))
        issue(12)
        for n in range(16):
            st, kk = n >> 1, n & 1
            pend = []
            blocked = kk == 1
            nD = []
            if n < 15:
                for d in range(nd): nD += kq(rdD(self.Dg[(n+1) & 1][4*d:4*d+4], d, kk ^ 1), ('D', n+1, d))
            else: nD = [(s, None) for s in last_pre]
            if blocked: pend += nD
            else: Q += nD
            adds = []
            if kk == 1 and st < 7:
                dlt = phys(st+1) - phys(st)
                adds = [f'v_add_u32 {r}, {dlt & 0xffffffff:#x}, {r}' for r in self.ax + self.aw]
            if n == 15: adds = list(self.pre_v)
            fl = list(fill.get(n, []))
            if n == 6: stampc(A, 1)
            if n == 8: stampc(A, 8)
            for j in range(nr):
                if blocked and j == OPT['holdF' if (F and OPT['t64']) else 'hold']:
                    assert not Q
                    for a in adds: A(a)
                    adds = []
                    if n == 7: stampc(A, 2)
                    G.all()
                    if n == 7: stampc(A, 3)
                    A('s_barrier')
                    if n == 7: stampc(A, 4)
                    if n == 7: stamp(A, 3)
                    stampb(A, 2 + st)
                    blocked = False; Q += pend; pend = []
                for d in (range(nd-1, -1, -1) if (OPT['snk'] and j & 1) else range(nd)):
                    tt, u = (d, j) if F else (j, d)
                    G.need(max(tokR[(n, j)], tokD[(n, d)]))
                    w, x = (self.Rg[j], self.Dg[n & 1][4*d:4*d+4]) if F else (self.Dg[n & 1][4*d:4*d+4], self.Rg[j])
                    a, b = (x, w) if (not F and u == 2) else (w, x)
                    acc = self.acc[tt][u]
                    A(f'v_mfma_f32_16x16x32_bf16 {acc}, {a}, {b}, {acc if n else 0}')
                    if Q: issue(2 if len(Q) > 3 else 1)
                    elif adds:
                        A(adds.pop(0))
                        if adds: A(adds.pop(0))
                    elif fl: A(fl.pop(0))
                nw = kq(rdR(self.Rg[j], j, kk ^ 1), ('R', n+1, j)) if n < 15 else [(s, None) for s in last_R[j]]
                if blocked: pend += nw
                else: Q += nw
            for x in fl: A(x)
        issue(100)
        stampb(A, 10)
        stamp(A, 5)
        V.release(*self.ax); V.release(*self.aw)
    def pre_epi(self):
        A, V, l = self.A, self.V, lane
        if self.typ == 'F' and OPT['t64']:
            at, ag, ag2, self.vsp = V.alloc(), V.alloc(), V.alloc(), V.alloc()
            A(f's_lshr_b32 {sT1}, {sWQ}, 1\ns_lshl_b32 {sT0}, {sT1}, 8\ns_add_u32 {sT0}, {sT0}, {L_NM}\nv_and_b32 {at}, 15, {l}\nv_lshl_add_u32 {at}, {at}, 2, {sT0}')
            A(f's_and_b32 {sF[1]}, {sWQ}, 1\ns_lshl_b32 {sT0}, {sF[1]}, 6\ns_add_u32 {sF[0]}, {sT0}, {L_CS}\nv_and_b32 {ag2}, 48, {l}\nv_add_u32 {ag2}, {sF[0]}, {ag2}\nv_add_u32 {ag}, {sT0}, {ag2}')
            self.ms = [V.alloc(2) for _ in range(4)]; self.nr = [V.alloc(2) for _ in range(4)]
            pre = []
            for tt in range(4):
                pre += [f'ds_read2_b32 {self.ms[tt]}, {at} offset0:{16*tt} offset1:{16*tt}', f'ds_read2_b32 {self.nr[tt]}, {at} offset0:{128+16*tt} offset1:{128+16*tt}']
            lastR = [[f'ds_read_b128 {self.Rg[u]}, {ag} offset:{256*(u >> 1) + 64*(u & 1)}'] for u in range(6)] + [[f'ds_read_b128 {self.Rg[6]}, {ag2} offset:768']]
            self.kL = V.alloc(2)
            A(f'v_mov_b32 {self.kL[0]}, {f2u(1.0 if OPT["psc"] else -LOG2E):#x}\nv_mov_b32 {self.kL[1]}, {self.kL[0]}')
            A(f's_lshl1_add_u32 {sT0}, {sI}, {sT1}')
            cnt_i2(A, sF[2], sT0, 1024)
            A(f's_lshr_b32 {sT1}, {sJ}, 1\ns_lshl_b32 {sT1}, {sT1}, 8\ns_add_u32 {sF[2]}, {sF[2]}, {sT1}')
            A(f's_mul_i32 {sT0}, {sT0}, 72\ns_mul_i32 {sT1}, {sJ}, 7\ns_add_u32 {sT0}, {sT0}, {sT1}\ns_lshl_b32 {sT0}, {sT0}, 12\ns_add_u32 {sT0}, {sT0}, {ACT}')
            A(f's_and_b32 {sT1}, {sJ}, 1\ns_add_u32 {sF[0]}, {sT1}, {sF[1]}\ns_lshl_b32 {sF[0]}, {sF[0]}, 12\ns_add_u32 {sF[0]}, {sF[0]}, {sT0}')
            A(f's_lshl_b32 {sF[1]}, {sF[1]}, 9\ns_add_u32 {sF[1]}, {sF[1]}, {sT0}\ns_xor_b32 {sT1}, {sT1}, 1\ns_mul_i32 {sT1}, {sT1}, {6*4096}\ns_add_u32 {sF[1]}, {sF[1]}, {sT1}')
            tv = self.Dg[0][0]
            self.pre_v = [f'v_and_b32 {self.vsp}, 0xf0, {v_l16}', f'v_bfe_u32 {tv}, {l}, 4, 1', f'v_lshl_add_u32 {self.vsp}, {tv}, 10, {self.vsp}', f'v_lshrrev_b32 {tv}, 5, {l}', f'v_lshl_add_u32 {self.vsp}, {tv}, 8, {self.vsp}']
            return lastR, pre, {}
        if self.typ == 'F':
            at, ag = V.alloc(), V.alloc()
            A(f's_lshl_b32 {sT0}, {sWQ}, 7\ns_add_u32 {sT0}, {sT0}, {L_NM}\nv_and_b32 {at}, 15, {l}\nv_lshl_add_u32 {at}, {at}, 2, {sT0}')
            A(f'v_and_b32 {ag}, 48, {l}\nv_add_u32 {ag}, {L_CS}, {ag}')
            self.ms = [V.alloc(2) for _ in range(2)]; self.nr = [V.alloc(2) for _ in range(2)]
            pre = []
            for tt in range(2):
                pre += [f'ds_read2_b32 {self.ms[tt]}, {at} offset0:{16*tt} offset1:{16*tt}', f'ds_read2_b32 {self.nr[tt]}, {at} offset0:{128+16*tt} offset1:{128+16*tt}']
            lastR = [[f'ds_read_b128 {self.Rg[u]}, {ag} offset:{64*u}'] for u in range(14)]
            self.kL = V.alloc(2)
            A(f'v_mov_b32 {self.kL[0]}, {f2u(1.0 if OPT["psc"] else -LOG2E):#x}\nv_mov_b32 {self.kL[1]}, {self.kL[0]}')
            A(f's_lshl_b32 {sT0}, {sI}, 1\ns_lshr_b32 {sT1}, {sWQ}, 1\ns_add_u32 {sT0}, {sT0}, {sT1}')
            cnt_i2(A, sF[2], sT0, 1024)
            A(f's_lshr_b32 {sT1}, {sJ}, 1\ns_lshl_b32 {sT1}, {sT1}, 8\ns_add_u32 {sF[2]}, {sF[2]}, {sT1}')
            A(f's_mul_i32 {sT0}, {sT0}, 72\ns_mul_i32 {sT1}, {sJ}, 7\ns_add_u32 {sT0}, {sT0}, {sT1}\ns_lshl_b32 {sT0}, {sT0}, 12')
            A(f's_and_b32 {sT1}, {sWQ}, 1\ns_lshl_b32 {sF[0]}, {sT1}, 11\ns_add_u32 {sT0}, {sT0}, {sF[0]}\ns_add_u32 {sT0}, {sT0}, {ACT}')
            A(f's_and_b32 {sT1}, {sJ}, 1')
            A(f's_lshl_b32 {sF[0]}, {sT1}, 12\ns_add_u32 {sF[0]}, {sF[0]}, {sT0}')
            A(f's_xor_b32 {sT1}, {sT1}, 1\ns_mul_i32 {sT1}, {sT1}, {6*4096}\ns_add_u32 {sF[1]}, {sT0}, {sT1}')
            self.pre_v = []
            return lastR, pre, {}
        self.MR = [V.alloc(16, 4) for _ in range(4)]
        self.cv = V.alloc(2)
        R_ = self.Rg
        self.negm = [R_[T//2][2*(T & 1):2*(T & 1)+2] for T in range(8)]
        self.rl = [R_[4 + p//2][2*(p & 1):2*(p & 1)+2] for p in range(4)]
        self.ck, self.cq = R_[6], R_[7]
        D0 = self.Dg[0]
        a4, ag, a32, ac = D0[0], D0[1], D0[2], D0[3]
        pre_v = [f'v_and_b32 {a4}, 15, {l}', f'v_lshlrev_b32 {a4}, 2, {a4}', f'v_and_b32 {ag}, 48, {l}', f'v_and_b32 {a32}, 31, {l}',
                 f'v_add_u32 {ac}, {sF[3]}, {a4}', f'v_add_u32 {a4}, {L_NM}, {a4}', f'v_lshlrev_b32 {a32}, 2, {a32}', f'v_add_u32 {a32}, {L_RL}, {a32}',
                 f'v_add_u32 {D0[4]}, {sF[3]}, {ag}', f'v_add_u32 {ag}, {L_NM}, {ag}']
        A(f's_lshl_b32 {sF[3]}, {sWQ}, 6\ns_add_u32 {sF[3]}, {sF[3]}, {L_CS}')
        pre = [f'ds_read2_b32 {self.cv}, {ac} offset0:128 offset1:128']
        for p in range(4):
            for T in range(2):
                pre += [f'ds_read_b128 {self.MR[p][8*T:8*T+4]}, {ag} offset:{64*(2*p+T)}', f'ds_read_b128 {self.MR[p][8*T+4:8*T+8]}, {ag} offset:{1024+64*(2*p+T)}']
        lastR = [[f'ds_read2_b32 {self.negm[T]}, {a4} offset0:{16*T} offset1:{16*T}' for T in (2*j, 2*j+1)] for j in range(4)]
        lastR += [[f'ds_read2_b32 {self.rl[p]}, {a32} offset0:{32*p} offset1:{32*p}' for p in (2*j, 2*j+1)] for j in range(2)]
        lastR += [[f'ds_read_b128 {self.ck}, {D0[4]} offset:256'], [f'ds_read_b128 {self.cq}, {D0[4]}']]
        pre_v.append(f'v_add_u32 {D0[5]}, {sHo}, {v_l16}')
        A(f's_lshl_b32 {sHo}, {sWQ}, 10\ns_add_u32 {sHo}, {sHo}, {L_PHI}')
        pre.append(f'ds_read_b128 {self.aphi}, {D0[5]}')
        self.pre_v = pre_v
        e0, e1, e2, e3 = sE[0:4]
        A(f's_lshl_b32 {e2}, {sJ}, 2\ns_add_u32 {e2}, {e2}, {sWQ}\ns_mul_i32 {e3}, {e2}, {16*2176}\ns_add_u32 {e3}, {e3}, {KP}')
        A(f's_mul_i32 {e0}, {sI}, 2176\ns_add_u32 {e0}, {e0}, {e3}')
        A(f's_lshl2_add_u32 {sXb}, {sJJ}, {sWQ}\ns_lshl_b32 {sXb}, {sXb}, 8\ns_add_u32 {sXb}, {sXb}, {CNT}\ns_add_u32 {sWb}, {sXb}, {4*16384}')
        A(f's_and_b32 {sXo}, {sI}, {OPT["Rk"]-1}\ns_lshl_b32 {sXo}, {sXo}, 14\ns_add_u32 {sWo}, {sXo}, {sWb}\ns_add_u32 {sXo}, {sXo}, {sXb}')
        A(f's_lshl_b32 {sT0}, {sI}, 6\ns_add_u32 {e1}, {e3}, {sT0}')
        A(f's_mul_i32 {e2}, {e2}, 2176\ns_add_u32 {e2}, {e2}, {KT}\ns_add_u32 {e3}, {e2}, {sT0}')
        A(f's_cmp_eq_u32 {sI}, 0\ns_cselect_b32 {sE[4]}, {e1}, {OOB}\ns_cselect_b32 {sE[5]}, {e3}, {OOB}\ns_cselect_b64 {sM2}, -1, 0')
        A(f's_mul_i32 {sF[0]}, {sI}, {2*72*4096}\ns_lshl_b32 {sT0}, {sJ}, 11\ns_add_u32 {sF[0]}, {sF[0]}, {sT0}\ns_lshl_b32 {sT0}, {sWQ}, 9\ns_add_u32 {sF[0]}, {sF[0]}, {sT0}\ns_add_u32 {sF[0]}, {sF[0]}, {ACT + 56*4096}')
        A(f's_lshl_b32 {sF[1]}, {sI}, 14\ns_add_u32 {sF[1]}, {sF[1]}, {CNT + 5120}\ns_add_u32 {sHb}, {sF[1]}, 2048')
        A(f's_or_b32 {sT0}, {sWQ}, {sJ}\ns_or_b32 {sT0}, {sT0}, {sI}\ns_cselect_b32 {sF[2]}, {OOB}, {EPOCH}')
        return lastR, pre, {}
    def epi_F(self):
        A, V, C = self.A, self.V, self.C
        cc = self.Rg
        NT = 3
        tmp = [V.alloc(8, 4) for _ in range(NT)]; outp = [V.alloc(4, 4) for _ in range(NT)]
        T64 = OPT['t64']
        if T64:
            for pr in range(1, 3): A(f's_add_u32 {sE[pr]}, {sF[0]}, {pr*8192}')
        else:
            for pr in range(1, 6): A(f's_add_u32 {sE[pr]}, {sF[0]}, {pr*4096}')
        so = [sF[0]] + sE[1:6] + [sF[1]]
        self.G.all()
        L = []; k = 0
        for pr in range(4 if T64 else 7):
            for tt in range(2 if (pr == 3 or not T64) else 4):
                p = tmp[k % NT]; o = outp[k % NT]; k += 1
                spl = T64 and pr == 3
                if spl: a0, a1, c0, c1, tk = self.acc[2*tt][6], self.acc[2*tt+1][6], cc[6], cc[6], [2*tt, 2*tt, 2*tt+1, 2*tt+1]
                else: a0, a1, c0, c1, tk = self.acc[tt][2*pr], self.acc[tt][2*pr+1], cc[2*pr], cc[2*pr+1], [tt]*4
                src = [a0[0:2], a0[2:4], a1[0:2], a1[2:4]]
                cs = [c0[0:2], c0[2:4], c1[0:2], c1[2:4]]
                for i in range(4): L.append(f'v_pk_fma_f32 {src[i]}, {cs[i]}, {self.ms[tk[i]]}, {src[i]}')
                for i in range(4): L.append(f'v_pk_mul_f32 {src[i]}, {src[i]}, {self.nr[tk[i]]}')
                for i in range(8): L.append(f'v_exp_f32 {p[i]}, {src[i//2][i&1]}')
                for i in range(4): L.append(f'v_pk_add_f32 {p[2*i:2*i+2]}, {p[2*i:2*i+2]}, {self.kL}' if OPT['psc'] else f'v_pk_fma_f32 {p[2*i:2*i+2]}, {p[2*i:2*i+2]}, {self.kL}, {self.kL}')
                for i in range(8): L.append(f'v_rcp_f32 {p[i]}, {p[i]}')
                for i in range(4): L.append(f'v_pk_mul_f32 {p[2*i:2*i+2]}, {src[i]}, {p[2*i:2*i+2]}')
                for i in range(4): L.append(f'v_cvt_pk_bf16_f32 {o[i]}, {p[2*i]}, {p[2*i+1]}')
                if spl:
                    L += [f'v_permlane16_swap_b32 {o[0]}, {o[2]}', f'v_permlane16_swap_b32 {o[1]}, {o[3]}', f'buffer_store_dwordx4 {o}, {self.vsp}, {sWS}, {sF[1]} offen offset:{tt*2048} sc1']
                    continue
                L.append(f'buffer_store_dwordx4 {o}, {v_l16}, {sWS}, {so[pr]} offen offset:{tt*1024} ' + ['sc1', '', 'sc1 nt', 'sc0 sc1', 'nt'][OPT['hst']])
        if OPT['dbg'] & 8: L = [x for x in L if not x.startswith('buffer')]
        stampe(A, 1); ns = 0
        for x in L:
            A(x)
            if x.startswith('buffer'):
                ns += 1
                if ns % 2 == 0: stampe(A, 1 + ns//2)
                for p, e in enumerate(PH):
                    if ns == 2*e + OPT['lag']: A(f's_waitcnt vmcnt({OPT["lag"]})\ns_atomic_add {sLrow}, {sWS[0:2]}, {sF[2]} offset:{PHO[p]}')
        C.n += 14
        stamp(A, 6)
        for p, e in enumerate(PH):
            if 2*e + OPT['lag'] > 14: A(f's_waitcnt vmcnt({14 - 2*e})\ns_atomic_add {sLrow}, {sWS[0:2]}, {sF[2]} offset:{PHO[p]}')
        stampe(A, 9)
        stamp(A, 7)
    def feat(self, a0, a1, cvec, negm, rl, P16, E):
        L = []; B4 = a0
        for T, a in enumerate((a0, a1)):
            for h in range(2): L.append(f'v_pk_fma_f32 {a[2*h:2*h+2]}, {cvec[2*h:2*h+2]}, {negm[T]}, {a[2*h:2*h+2]}')
        for T, a in enumerate((a0, a1)):
            for h in range(2): L.append(f'v_cvt_pk_bf16_f32 {B4[2*T+h]}, {a[2*h]}, {a[2*h+1]}')
        L += [f'v_permlane16_swap_b32 {B4[0]}, {B4[2]}', f'v_permlane16_swap_b32 {B4[1]}, {B4[3]}']
        L.append(f'v_mfma_f32_32x32x16_bf16 {P16}, {self.aphi}, {B4}, 0')
        mx = B4[0]; m2 = B4[1]
        L += [f'v_max3_f32 {mx}, {P16[0]}, {P16[1]}, {P16[2]}', f'v_max3_f32 {m2}, {P16[3]}, {P16[4]}, {P16[5]}',
              f'v_max3_f32 {mx}, {mx}, {P16[6]}, {P16[7]}', f'v_max3_f32 {m2}, {m2}, {P16[8]}, {P16[9]}',
              f'v_max3_f32 {mx}, {mx}, {P16[10]}, {P16[11]}', f'v_max3_f32 {m2}, {m2}, {P16[12]}, {P16[13]}',
              f'v_max3_f32 {mx}, {mx}, {P16[14]}, {P16[15]}', f'v_max_f32 {mx}, {mx}, {m2}',
              f'v_mul_f32_e64 {B4[2]}, -{mx}, {rl[0]}', f'v_mul_f32_e64 {B4[3]}, -{mx}, {rl[0]}']
        for i in range(8): L.append(f'v_pk_fma_f32 {P16[2*i:2*i+2]}, {P16[2*i:2*i+2]}, {rl}, {B4[2:4]}')
        for i in range(16): L.append(f'v_exp_f32 {P16[i]}, {P16[i]}')
        s0, s1 = B4[0:2], B4[2:4]
        L += [f'v_pk_add_f32 {s0}, {P16[0:2]}, {P16[2:4]}', f'v_pk_add_f32 {s1}, {P16[4:6]}, {P16[6:8]}']
        for i in range(4, 8): L.append(f'v_pk_add_f32 {(s0, s1)[i&1]}, {(s0, s1)[i&1]}, {P16[2*i:2*i+2]}')
        L += [f'v_pk_add_f32 {s0}, {s0}, {s1}', f'v_add_f32 {B4[0]}, {B4[0]}, {B4[1]}', f'v_rcp_f32 {B4[0]}, {B4[0]}', f'v_mov_b32 {B4[1]}, {B4[0]}']
        for i in range(8): L.append(f'v_pk_mul_f32 {P16[2*i:2*i+2]}, {P16[2*i:2*i+2]}, {B4[0:2]}')
        for i in range(8): L.append(f'v_cvt_pk_bf16_f32 {E(i)}, {P16[2*i]}, {P16[2*i+1]}')
        return L
    def epi_A(self):
        A, V, C, l = self.A, self.V, self.C, lane
        e0, e1, e2, e3 = sE[0:4]
        acc, MR, negm, rl, bsel, zsel = self.acc, self.MR, self.negm, self.rl, self.bsel, self.zsel
        D0, D1 = self.Dg
        if OPT['cprio']: A(f's_setprio {OPT["cprio"]}')
        self.G.all()
        kv = [D0[0:4], D0[4:8]]; zz = D0[8:12]
        KA = OPT['kva']; lrep = V.alloc()
        a0, a1, ff, t0, t1, ah, as_, ak, ad, l26, vtag, fa = [D1[i] for i in range(12)]
        L = []
        for p in range(4):
            P16 = MR[p]; VB = acc[2*p][2]; Eq = [acc[2*p+1][1], acc[2*p+1][2]]
            for T in range(2):
                a = acc[2*p+T][2]; M4 = P16[8*T:8*T+4]; R4 = P16[8*T+4:8*T+8]
                for h in range(2): L.append(f'v_pk_fma_f32 {a[2*h:2*h+2]}, {M4[2*h:2*h+2]}, {self.cv}, {a[2*h:2*h+2]}')
                for h in range(2): L.append(f'v_pk_mul_f32 {a[2*h:2*h+2]}, {a[2*h:2*h+2]}, {R4[2*h:2*h+2]}')
                for h in range(2): L.append(f'v_cvt_pk_bf16_f32 {VB[2*T+h]}, {a[2*h]}, {a[2*h+1]}')
            L += self.feat(acc[2*p][1], acc[2*p+1][1], self.ck, negm[2*p:2*p+2], rl[p], P16, lambda i: Eq[i//4][i % 4])
            for m in range(2):
                for T in range(2): L.append(f'v_mfma_f32_16x16x32_bf16 {P16[8*m+4*T:8*m+4*T+4]}, {Eq[m]}, {bsel[T]}, 0')
            for i in range(8): L.append(f'v_cvt_pk_bf16_f32 {Eq[i//4][i%4]}, {P16[2*i]}, {P16[2*i+1]}')
            if KA:
                for m in range(2): L.append(f'v_mfma_f32_16x16x32_bf16 {kv[m]}, {VB}, {Eq[m]}, {kv[m] if p else 0}')
                for m in range(2): L.append(f'v_mfma_f32_16x16x32_bf16 {zz}, {zsel[m]}, {Eq[m]}, {zz if (p or m) else 0}')
                continue
            for m in range(2): L.append(f'v_mfma_f32_16x16x32_bf16 {kv[m]}, {Eq[m]}, {VB}, {kv[m] if p else 0}')
            for m in range(2): L.append(f'v_mfma_f32_16x16x32_bf16 {zz}, {Eq[m]}, {zsel[m]}, {zz if (p or m) else 0}')
        if KA:
            L += [f'v_and_b32 {t0}, 15, {l}', f'v_lshrrev_b32 {t1}, 4, {l}', f'v_lshlrev_b32 {t0}, 2, {t0}', f'v_lshl_add_u32 {a0}, {t1}, 8, {t0}',
                  f'v_mul_u32_u24 {a1}, 1088, {t1}', f'v_add_u32 {a1}, {a1}, {t0}', f'v_lshrrev_b32 {t1}, 1, {t1}', f'v_lshl_add_u32 {a1}, {t1}, 27, {a1}']
            for m in range(2):
                for r in range(4): L.append(f'buffer_atomic_add_f32 {kv[m][r]}, {a0}, {sWS}, {e2} offen offset:{1088*m + 64*r} sc1')
            L.append(f'buffer_atomic_add_f32 {zz[0]}, {a1}, {sWS}, {e2} offen offset:1024 sc1')
            L += [f'v_lshlrev_b32 {l26}, 26, {l}', f'v_mov_b32 {vtag}, {sTag}']
        else:
            L += [f'v_and_b32 {t0}, 15, {l}', f'v_and_b32 {t1}, 48, {l}', f'v_lshl_add_u32 {a0}, {t0}, 6, {t1}', f'v_mov_b32 {ff}, 0xff',
                  f'v_mul_u32_u24 {a1}, 1088, {t0}', f'v_add_u32 {a1}, {a1}, {t1}', f'v_lshrrev_b32 {t0}, 1, {t0}', f'v_lshl_add_u32 {a1}, {t0}, 27, {a1}']
            for m in range(2):
                L += tag_quad(kv[m], ff) + [f'buffer_store_dwordx4 {kv[m]}, {a0}, {sWS}, {e0} offen offset:{1088*m} sc1']
            L += tag_quad(zz, ff) + [f'buffer_store_dwordx4 {zz}, {a1}, {sWS}, {e0} offen offset:1024 sc1']
            L += [f'v_lshlrev_b32 {l26}, 26, {l}', f'v_mov_b32 {vtag}, {sTag}', f'v_mov_b32 {fa}, 1', f'v_lshrrev_b32 {lrep}, {OPT["Rk"].bit_length()-1}, {l}', f'v_lshlrev_b32 {lrep}, 26, {lrep}', f'v_lshl_add_u32 {lrep}, {l}, 14, {lrep}']
            if not OPT['ack1']: L.append(f'buffer_atomic_add {fa}, {lrep}, {sWS}, {sXb} offen sc1')
        stampe(A, 1)
        emit_sched(A, L, 'kside'); C.n += 4
        stampe(A, 2)
        stamp(A, 6)
        h1 = [self.sel16[4*i:4*i+4] for i in range(4)]
        ld1 = [f'buffer_load_dwordx4 {h1[0]}, {ah}, {sWS}, {e1} offen sc1', f'buffer_load_dwordx4 {h1[1]}, {ah}, {sWS}, {e1} offen offset:1088 sc1',
               f'buffer_load_dwordx4 {h1[2]}, {ah}, {sWS}, {sE[4]} offen offset:1024 sc1', f'buffer_load_dwordx4 {h1[3]}, {ah}, {sWS}, {sE[4]} offen offset:2112 sc1']
        perm = [0, 1, 2, 3] if KA else [1, 0, 2, 3]
        eq = [[acc[2*p+1][0], acc[2*p][1]] for p in range(4)]
        def qside(ps):
            L = []
            for p in ps:
                L += self.feat(acc[2*p][0], acc[2*p+1][0], self.cq, negm[2*p:2*p+2], rl[p], MR[p], lambda i: eq[p][i//4][perm[i % 4]])
            return L
        adr = [f'v_lshrrev_b32 {ah}, 2, {l}', f'v_mul_u32_u24 {ah}, 2176, {ah}', f'v_and_b32 {t0}, 3, {l}', f'v_lshl_add_u32 {ah}, {t0}, 4, {ah}',
               f'v_lshrrev_b32 {as_}, 5, {l}', f'v_mul_u32_u24 {as_}, 1088, {as_}', f'v_lshl_add_u32 {as_}, {t0}, 4, {as_}', f'v_bfe_u32 {t0}, {l}, 4, 1', f'v_lshl_add_u32 {as_}, {t0}, 3, {as_}',
               f'v_and_b32 {t1}, 12, {l}', f'v_lshl_add_u32 {as_}, {t1}, 26, {as_}',
               f'v_and_b32 {ad}, 15, {l}', f'v_lshlrev_b32 {ad}, 4, {ad}', f'v_lshl_add_u32 {ad}, {t0}, 14, {ad}', f'v_lshrrev_b32 {t0}, 5, {l}', f'v_lshl_add_u32 {ad}, {t0}, 8, {ad}',
               f'v_and_b32 {ak}, 31, {l}', f'v_min_u32 {ak}, 16, {ak}', f'v_lshlrev_b32 {ak}, 6, {ak}', f'v_lshl_add_u32 {ak}, {t0}, 5, {ak}']
        if KA:
            qa, qb = OPT['qa'], OPT['qb']
            ldall = self.sel16
            emit_sched(A, qside(range(qa)) + [adr[7]] + adr[11:], 'qa')
            stampe(A, 3)
            sarrive(A, *[f'{sXb} offset:{16384*r}' for r in range(OPT['Rk'])])
            stampe(A, 4); stamp(A, 7)
            A(f's_add_u32 {e0}, {sF[0]}, 32768\ns_add_u32 {e1}, {sF[0]}, {72*4096}\ns_add_u32 {e3}, {e1}, 32768')
            if qb: emit_sched(A, qside(range(qa, qa+qb)), 'qb')
            stampe(A, 5)
            ppoll(A, sXo, 16, OPT['Dk'], 20, OPT['slpa'])
            stampe(A, 6); stamp(A, 8)
            for m in range(2):
                for h in range(2): A(f'buffer_load_dwordx4 {ldall[8*m+4*h:8*m+4*h+4]}, {ak}, {sWS}, {e2} offen offset:{1088*m+16*h} sc1')
            A(f'buffer_store_dword {vtag}, {l26}, {sWS}, {sF[2]} offen sc1')
            if qa + qb < 4: emit_sched(A, qside(range(qa+qb, 4)), 'qc')
            stampe(A, 7)
            A('s_waitcnt vmcnt(1)')
            stamp(A, 4)
            L = []
            for m in range(2):
                for i in range(4): L.append(f'v_cvt_pk_bf16_f32 {D0[4*m+i]}, {ldall[8*m+2*i]}, {ldall[8*m+2*i+1]}')
            kvA = [D0[0:4], D0[4:8]]
        else:
            if OPT['ack1']:
                emit_sched(A, qside([0]) + adr, 'q0')
                sarrive(A, sXb)
                emit_sched(A, qside([1]), 'q1')
            else: emit_sched(A, qside([0, 1]) + adr, 'q01')
            stampe(A, 3)
            ppoll(A, sXo, 16, OPT['Dk'], 20, OPT['slpa'])
            stamp(A, 7)
            stampe(A, 4)
            for x in ld1: A(x)
            emit_sched(A, qside([2]), 'q2')
            stampe(A, 5)
            A('s_waitcnt vmcnt(0)')
            tm = D0
            def chk1():
                for i in range(4): quad_diff(A, h1[i], tm[i], tm[4+i])
                A(f'v_or_b32 {tm[0]}, {tm[0]}, {tm[1]}\nv_or_b32 {tm[2]}, {tm[2]}, {tm[3]}\nv_cmp_ne_u32 vcc, 0, {tm[2]}\nv_cmp_ne_u32 s[4:5], 0, {tm[0]}')
                A(f's_and_b64 vcc, vcc, {sM2}\ns_or_b64 s[4:5], s[4:5], vcc')
            poll(A, '\n'.join(ld1), chk1, sleep=OPT['slp'], mask_exec=True, first_loaded=True)
            stampe(A, 6)
            L = []
            for x, y, so, off in ((h1[0], h1[1], e3, 0), (h1[2], h1[3], sE[5], 1024)):
                for k in range(4): L += [f'v_and_b32 {x[k]}, 0xffffff00, {x[k]}', f'v_and_b32 {y[k]}, 0xffffff00, {y[k]}']
                for k in range(4): L += [f'v_permlane32_swap_b32 {x[k]}, {y[k]}', f'v_add_f32 {x[k]}, {x[k]}, {y[k]}']
                for k in range(2): L += [f'v_permlane16_swap_b32 {x[k]}, {x[k+2]}', f'v_add_f32 {x[k]}, {x[k]}, {x[k+2]}', dpp_add(x[k], 'row_ror:4'), dpp_add(x[k], 'row_ror:8')]
                L += [f'v_cvt_pk_bf16_f32 {x[0]}, {x[0]}, {x[1]}', f'v_mov_b32 {x[1]}, {sTag}', f'buffer_store_dwordx2 {x[0:2]}, {as_}, {sWS}, {so} offen offset:{off} sc1']
            if not OPT['ack2']: L.append(f'buffer_atomic_add {fa}, {lrep}, {sWS}, {sWb} offen sc1')
            emit_sched(A, L, 'reduce'); C.n += 3
            stamp(A, 8)
            ld = [self.Rg[0], self.Rg[1], self.Rg[2], self.Rg[3]]; assert all(ld[i].b == ld[0].b + 4*i for i in range(4))
            ldall = R('v', ld[0].b, 16)
            ld2 = [f'buffer_load_dwordx4 {ld[2*m+h]}, {ak}, {sWS}, {e2} offen offset:{1088*m+16*h} sc1' for m in range(2) for h in range(2)]
            A(f's_add_u32 {e0}, {sF[0]}, 32768\ns_add_u32 {e1}, {sF[0]}, {72*4096}\ns_add_u32 {e3}, {e1}, 32768')
            emit_sched(A, qside([3]), 'q3')
            if OPT['ack2']: sarrive(A, sWb)
            A(f'buffer_store_dword {vtag}, {l26}, {sWS}, {sF[2]} offen sc1')
            ppoll(A, sWo, 16, OPT['Dk'], 20, OPT['slpa'])
            stampe(A, 7)
            poll(A, '\n'.join(ld2), chk_words(A, [ldall[2*i+1] for i in range(8)], tm), sleep=OPT['slp'], mask_exec=True)
            stamp(A, 4)
            L = []
            for m in range(2): L += [f'v_mov_b32 {ldall[8*m+3]}, {ldall[8*m]}', f'v_mov_b32 {ldall[8*m+5]}, {ldall[8*m+6]}']
            kvA = [ldall[2:6], ldall[10:14]]
        for p in range(4):
            N = MR[p]; o = acc[2*p][2]
            L.append(f'v_mfma_f32_32x32x16_bf16 {N}, {kvA[0]}, {eq[p][0]}, 0')
            L.append(f'v_mfma_f32_32x32x16_bf16 {N}, {kvA[1]}, {eq[p][1]}, {N}')
            L += [f'v_add_f32 {N[8]}, {f2u(1e-6):#x}, {N[8]}', f'v_rcp_f32 {N[8]}, {N[8]}']
            if OPT['opk']:
                L.append(f'v_mov_b32 {N[9]}, {N[8]}')
                for i in range(4): L.append(f'v_pk_mul_f32 {N[2*i:2*i+2]}, {N[2*i:2*i+2]}, {N[8:10]}')
            else:
                for i in range(8): L.append(f'v_mul_f32 {N[i]}, {N[i]}, {N[8]}')
            for i in range(4): L.append(f'v_cvt_pk_bf16_f32 {o[i]}, {N[2*i]}, {N[2*i+1]}')
            L.append(f'buffer_store_dwordx4 {o}, {ad}, {sWS}, {[sF[0], e0, e1, e3][p]} offen sc1')
        stampe(A, 8)
        if OPT['snt']:
            L += [f'v_mov_b32 {fa}, 1', f'v_lshrrev_b32 {lrep}, 1, {l}', f'v_lshlrev_b32 {lrep}, 26, {lrep}', f'v_lshl_add_u32 {lrep}, {l}, 11, {lrep}',
                  f'buffer_atomic_add {fa}, {lrep}, {sWS}, {sF[1]} offen sc1']
        emit_sched(A, L, 'oside'); C.n += 4
        stampe(A, 9)
        if OPT['wo']: A(f'v_mov_b32 {t0}, {L_TAG}\nv_mov_b32 {t1}, 16\ns_mov_b64 exec, 1\nds_add_u32 {t0}, {t1} offset:8\ns_mov_b64 exec, -1')
        if not OPT['snt']: sarrive(A, *[f'{x} offset:{256*r}' for r in range(OPT['Ro']) for x in (sF[1], sHb)])
        stampe(A, 10)

def p2_C(A):
    l = lane; C = Ctx(A); G = LG(A)
    NP = OPT['npre']
    V = Pool('v', 4, 256)
    vab = [V.alloc() for _ in range(4)]
    go, vm_, t0, t1, xq2 = V.alloc(), V.alloc(), V.alloc(), V.alloc(), V.alloc()
    xq = V.alloc(8, 4); acc = V.alloc(16, 4); ao = V.alloc(64, 4)
    Bs = [V.alloc(16, 4) for _ in range(NP)]
    A(f'v_and_b32 {t0}, 15, {l}\nv_lshlrev_b32 {go}, 10, {t0}\nv_bfe_u32 {t0}, {l}, 4, 1\nv_lshl_add_u32 {go}, {t0}, 5, {go}\nv_lshrrev_b32 {t0}, 5, {l}\nv_lshl_add_u32 {go}, {t0}, 4, {go}')
    A(f's_lshl_b32 {sE[0]}, {sI2}, 16\ns_lshl_b32 {sT0}, {sWQ}, 14\ns_add_u32 {sE[0]}, {sE[0]}, {sT0}\ns_lshl_b32 {sT1}, {sJ2}, 7\ns_add_u32 {sE[0]}, {sE[0]}, {sT1}')
    for P in range(2): A(f'buffer_load_dwordx4 {xq[4*P:4*P+4]}, {go}, {sX}, {sE[0]} offen offset:{64*P}')
    A(f's_mul_i32 {sE[1]}, {sI2}, {72*4096}\ns_add_u32 {sE[1]}, {sE[1]}, {sT0}\ns_add_u32 {sE[1]}, {sE[1]}, {ACT + 56*4096}')
    for i in range(1, 4): A(f's_add_u32 {sE[1+i]}, {sE[1]}, {4096*i}')
    cnt_i2(A, sE[5], sI2, 5120)
    if OPT['Ro'] > 1: A(f's_and_b32 s4, {sJ2}, {OPT["Ro"]-1}\ns_lshl_b32 s4, s4, 8\ns_add_u32 {sE[5]}, {sE[5]}, s4')
    tr_addr(A, vab, WOB, t0, t1)
    A(f'v_mov_b32 {vm_}, {L_TAG}')
    stamph(A, 1)
    if OPT['eo']:
        l0, l1, l2 = A.lab('EO'), A.lab('EP'), A.lab('EQ')
        A(f's_cmp_lg_u32 {sWV}, 0\ns_cbranch_scc1 {l1}')
        A(f's_add_u32 {sT1}, {sTag}, 32\ns_mov_b32 {sSpin}, {OPT["spin"]}')
        A(f'{l0}:\ns_mov_b32 {sT0}, 0\ns_atomic_add {sT0}, {sWS[0:2]}, {sE[5]} glc\ns_waitcnt lgkmcnt(0)\nds_read_b32 {t0}, {vm_} offset:4\ns_cmp_eq_u32 {sT0}, {sT1}\ns_cbranch_scc1 {l2}')
        A(f's_waitcnt lgkmcnt(0)\nv_readfirstlane_b32 {sT0}, {t0}\ns_cmp_ge_u32 {sT0}, 4\ns_cbranch_scc1 {l1}')
        A(f's_sleep {OPT["slpo"]}\ns_sub_u32 {sSpin}, {sSpin}, 1\ns_cbranch_scc0 {l0}\ns_branch {l1}')
        A(f'{l2}:\ns_mov_b32 {sWV}, 8\nv_mov_b32 {xq2}, 16\ns_mov_b64 exec, 1\nds_add_u32 {vm_}, {xq2} offset:12\ns_mov_b64 exec, -1')
        A(f'{l1}:')
    lds_spin(A, vm_, 4, 4, t0, slp=4 if OPT['nsl'] & 4 else 1)
    stamph(A, 2)
    tokB = {}
    def trl(k): return [(f'ds_read_b64_tr_b16 {Bs[k % NP][4*q+2*hf:4*q+2*hf+2]}, {vab[q]} offset:{k*4096 + hf*2048}', (k, q)) for q in range(4) for hf in range(2)]
    if OPT['snt']: A(f's_movk_i32 {sCur}, 4096\nK_redo:')
    for k in range(NP):
        for s, key in trl(k): G.ds(s); tokB[key] = 0
    if OPT['snt']: A(f's_cmpk_lg_u32 {sCur}, 4096\ns_cbranch_scc1 K_ld')
    stamph(A, 3)
    if OPT['opoll']:
        ppoll(A, sE[5], 32, OPT['Do'], 20, OPT['slpo'])
        G.all()
    else:
        lk, le = A.lab('NO'), A.lab('OE')
        A(f's_cmp_lg_u32 {sWV}, 0\ns_cbranch_scc1 {lk}')
        ppoll(A, sE[5], 32, OPT['Do'], 20, OPT['slpo'])
        if OPT['gs']:
            stamp(A, 3)
            A(f'v_mov_b32 {t0}, 16\ns_mov_b64 exec, 1\nds_add_u32 {vm_}, {t0} offset:12\ns_mov_b64 exec, -1')
            A(f'{lk}:')
            stamph(A, 4)
            if OPT['pwg']:
                A(f's_lshl_b32 {sT1}, 1, {sWQ}\ns_or_b32 {sT1}, {sT1}, 16')
                lds_spin(A, vm_, 12, sT1, t0, mask=True, slp=0 if OPT['nsl'] & 2 else 1)
            else: lds_spin(A, vm_, 12, 20, t0)
            if OPT['eo']: A(f's_and_b32 {sWV}, {sWV}, 7')
        else:
            A(f'v_mov_b32 {t0}, 1\nds_write_b32 {vm_}, {t0} offset:12\ns_branch {le}')
            A(f'{lk}:')
            lds_spin(A, vm_, 12, 1, t0)
            A(f'{le}:')
    stamp(A, 9); stampf(A, 0)
    stamph(A, 5)
    if OPT['snt']: A('K_ld:')
    tok = {}
    for s in range(16):
        tok[s] = C.vm(f'buffer_load_dwordx4 {ao[4*s:4*s+4]}, {v_l16}, {sWS}, {sE[1 + s//4]} offen offset:{(s & 3)*1024} ' + ['sc1', '', 'sc0', 'nt', 'sc0 sc1'][OPT['old']])
    stampf(A, 1)
    G.all()
    A(f's_lshl_b32 {sT0}, {sWQ}, 12\nv_add_u32 {t1}, {sT0}, {v_l16}')
    Q = []
    for s in range(16):
        C.wait(tok[s])
        if s == 0 and not OPT['snt']:
            for P in range(2): A(f'v_permlane16_swap_b32 {xq[4*P]}, {xq[4*P+2]}\nv_permlane16_swap_b32 {xq[4*P+1]}, {xq[4*P+3]}')
        for q in range(4):
            G.need(tokB[(s, q)])
            A(f'v_mfma_f32_16x16x32_bf16 {acc[4*q:4*q+4]}, {Bs[s % NP][4*q:4*q+4]}, {ao[4*s:4*s+4]}, {acc[4*q:4*q+4] if s else 0}')
            for _ in range(2):
                if Q: x, key = Q.pop(0); tokB[key] = G.ds(x)
        if OPT['snt'] and s & 1: A(f'v_max3_u32 {t0}, {ao[4*s]}, {ao[4*s-4]}, {t0 if s > 1 else 0}')
        if OPT['xu'] and s >= 8:
            i = s - 8
            A(f'v_lshlrev_b32 {ao[2*i]}, 16, {xq[i]}\nv_and_b32 {ao[2*i+1]}, 0xffff0000, {xq[i]}')
        if s + NP < 16: Q += trl(s + NP)
        if s in (0, 3, 7, 11, 15): stampf(A, 2 + (s+1)//4)
    if OPT['snt']:
        A(f'v_cmp_eq_u32 vcc, -1, {t0}\ns_and_b64 s[4:5], vcc, exec\ns_cbranch_scc0 K_ok\ns_sleep 1\ns_sub_u32 {sCur}, {sCur}, 1\ns_cbranch_scc0 K_redo\nK_ok:')
        for P in range(2): A(f'v_permlane16_swap_b32 {xq[4*P]}, {xq[4*P+2]}\nv_permlane16_swap_b32 {xq[4*P+1]}, {xq[4*P+3]}')
    xf = ao[0:16]; g = ao[16:32]
    stamp(A, 10); stamph(A, 6)
    A('s_barrier')
    stampf(A, 7); stamph(A, 7)
    for u in range(4): A(f'ds_read_b128 {g[4*u:4*u+4]}, {t1} offset:{X0 + 1024*u}')
    assert not (OPT['xu'] and OPT['snt'])
    if not OPT['xu']:
        for i in range(8): A(f'v_lshlrev_b32 {xf[2*i]}, 16, {xq[i]}\nv_and_b32 {xf[2*i+1]}, 0xffff0000, {xq[i]}')
    for P in range(2):
        A(f's_waitcnt lgkmcnt({2 - 2*P})')
        for i in range(4*P, 4*P+4): A(f'v_pk_fma_f32 {g[2*i:2*i+2]}, {g[2*i:2*i+2]}, {acc[2*i:2*i+2]}, {xf[2*i:2*i+2]}')
        for i in range(4*P, 4*P+4): A(f'v_cvt_pk_bf16_f32 {xq[i]}, {g[2*i]}, {g[2*i+1]}')
    for P in range(2):
        A(f'v_permlane16_swap_b32 {xq[4*P]}, {xq[4*P+2]}\nv_permlane16_swap_b32 {xq[4*P+1]}, {xq[4*P+3]}')
    for P in range(2): A(f'buffer_store_dwordx4 {xq[4*P:4*P+4]}, {go}, {sOUT}, {sE[0]} offen offset:{64*P} ' + ['', 'sc1', 'nt', 'sc0 sc1', 'sc1 nt', 'sc0 sc1 nt'][OPT['ost']])
    stampf(A, 8); stamph(A, 8)
    if OPT['stamp'] == 6: A('s_waitcnt vmcnt(0)')
    stampf(A, 9)

vb = [R('v', 4+i, 1) for i in range(4)]
vb0, vb1 = R('v', 8, 1), R('v', 9, 1)
RS = [R('v', 80+16*i, 16) for i in range(11)]
ACCL = R('v', 16, 64)
vbh = [R('v', 13, 1), R('v', 14, 1), R('v', 15, 1), R('v', 2, 1)]
va = [R('v', 10, 1), R('v', 11, 1), R('v', 12, 1), R('v', 0, 1)]
vx2, vx3, vw1, vh, pt, pa, pm, p1 = [ACCL[48+i] for i in range(8)]
def nib(d, k): return f's_bfe_u32 {d}, {sCur if k < 8 else sCurA}, {(4 << 16) | (4 * (k % 8)):#x}'
LOAD = [0, 1, 8, 9, 2, 3, 4, 5, 6, 7, 10, 11, 12, 13] if OPT['lord'] else list(range(14))
RSL = {0: 0, 1: 1, 2: 2, 3: 3, 4: 4, 5: 5, 8: 6, 9: 7, 6: 0, 7: 1, 10: 2, 11: 3, 12: 4, 13: 5} if OPT['lord'] else {k: k % 8 for k in range(14)}
if OPT['lord'] == 2:
    LOAD = [0, 1, 2, 3, 8, 9, 10, 4, 5, 6, 7, 11, 12, 13]
    RSL = {0: 0, 1: 1, 2: 2, 3: 3, 8: 4, 9: 5, 10: 6, 4: 7, 5: 0, 6: 1, 7: 2, 11: 3, 12: 7, 13: 2}
if OPT['lord'] == 3:
    LOAD = [0, 4, 8, 12, 1, 2, 3, 5, 6, 7, 9, 10, 11, 13]
    RSL = {0: 0, 6: 0, 1: 1, 7: 1, 2: 2, 9: 2, 3: 3, 10: 3, 4: 4, 11: 4, 5: 5, 13: 5, 8: 6, 12: 7}
if OPT['lord'] == 4:
    LOAD = [0, 1, 4, 5, 8, 9, 12, 2, 3, 6, 7, 10, 11, 13]
    RSL = {1: 0, 6: 0, 2: 1, 7: 1, 0: 2, 3: 2, 10: 2, 4: 3, 11: 3, 5: 4, 13: 4, 8: 5, 9: 6, 12: 7}
PH = [int(c) for c in str(OPT['ph'])] if OPT['ph'] else [4, 7]
PHO = [0, 8192, 128, 8192 + 128]
sB0, sB1 = sM2[0], sM2[1]
sLi = [sXo, sHo, sWb, sRot]
vr0, vr1 = vb0, vb1
WFL = ['', 'nt', 'sc1', 'sc0 sc1'][OPT['wfl']]
class BP:
    def __init__(self, A, C, G):
        self.A, self.C, self.G = A, C, G
        self.next = 0; self.free = []; self.fly = []; self.slot = {}; self.tok = {}; self.cool = []; self.dep = 0; self.pend = []
    def dma(self, k, sl):
        A = self.A
        for f in self.dma_list(k, sl): f()
    def dma_list(self, k, sl):
        A = self.A
        self.slot[k] = sl
        def mk(i):
            def f():
                if OPT['xr'] & 2:
                    if i == 0: A(f'{nib(sB0, LOAD[k])}\ns_lshl_b32 {sB0}, {sB0}, 15\ns_add_u32 {sB0}, {sB0}, {sBb}\ns_xor_b32 {sB1}, {sB0}, 16384')
                    A(f's_add_u32 m0, {sLi[i]}, {sl}')
                else:
                    if i == 0: A(f'{nib(sB0, LOAD[k])}\ns_lshl_b32 {sB0}, {sB0}, 15\ns_add_u32 {sB0}, {sB0}, {sBb}\ns_add_u32 {sB1}, {sB0}, 16384')
                    A(f's_add_u32 m0, {sLb2}, {sl + 1024*i}')
                if self.dep: A(f's_waitcnt vmcnt({self.dep - 1})')
                if OPT['t64'] and LOAD[k] >= 12:
                    assert OPT['ph'] and not OPT['xr']
                    if i == 0: A(f's_mov_b32 exec_lo, 0\nv_add_u32 {vb0}, 0x1000, {vb0}\ns_mov_b32 exec_lo, -1')
                    if i == 2: A(f's_add_u32 {sB0}, {sB0}, 4096\ns_add_u32 {sB1}, {sB1}, 4096')
                    self.tok[k] = self.C.vm(f'buffer_load_dwordx4 {vb0}, {sW2}, {(sB0, sB1)[i & 1]} offen {WFL} lds')
                    if i == 3: A(f's_mov_b32 exec_lo, 0\nv_subrev_u32 {vb0}, 0x1000, {vb0}\ns_mov_b32 exec_lo, -1')
                    return
                self.tok[k] = self.C.vm(f'buffer_load_dwordx4 {(vb0, vb1)[i & 1]}, {sW2}, {(sB0, sB1)[i >> 1]} offen {WFL} lds')
            return f
        return [mk(i) for i in range(4)]
    def wo_list(self, k):
        A = self.A
        def mk(i):
            def f():
                if i == 0:
                    A(f's_xor_b32 {sT1}, {sF[2]}, {k}\ns_lshl_b32 {sF[3]}, {sT1}, 12\ns_lshl2_add_u32 {sF[3]}, {sLb2}, {sF[3]}')
                    A(f's_lshl_b32 {sT0}, {sT1}, 15\ns_add_u32 {sT0}, {sT0}, {sF[0]}\ns_add_u32 {sT1}, {sT0}, 16384')
                if OPT['xr'] & 2 and i == 0: A(f's_add_u32 {sF[3]}, {sF[3]}, {sHb}')
                if OPT['xr'] & 2 and i == 2: A(f's_sub_u32 {sF[3]}, {sF[3]}, {sHb}\ns_sub_u32 {sF[3]}, {sF[3]}, {sHb}')
                A(f's_add_u32 m0, {sF[3]}, {WOB + 1024*i}')
                if self.dep: A(f's_waitcnt vmcnt({self.dep - 1})')
                self.tokwo = self.C.vm(f'buffer_load_dwordx4 {(vb0, vb1)[i >> 1]}, {sWO}, {(sT0, sT1)[i & 1]} offen {WFL} lds')
            return f
        return [mk(i) for i in range(4)]
    def trl(self, k):
        sl = self.slot[k]; hi = sl >= Y0
        off = sl - Y0 if hi else sl
        dst = RS[RSL[LOAD[k]]]
        return [f'ds_read_b64_tr_b16 {dst[4*q+2*hf:4*q+2*hf+2]}, {(vbh if hi else vb)[q]} offset:{off + hf*2048}' for q in range(4) for hf in range(2)]
    def retire(self):
        k = self.fly.pop(0)
        self.C.wait(self.tok[k])
        for s in self.trl(k): tk = self.G.ds(s)
        self.cool.append((self.slot[k], tk))
    def step(self, run=True):
        self.flush()
        if self.next >= 13: return False
        if not self.free:
            if not self.cool: self.retire()
            if len(self.cool) == 1 and self.fly and self.next - self.fly[0] >= 3: self.retire()
            sl, tk = self.cool.pop(0); self.G.need(tk, 8); self.free.append(sl)
        k = self.next; self.next += 1
        self.pend = self.dma_list(k, self.free.pop(0))
        if k < 8: self.fly.append(k)
        if run: self.flush()
        return True
    def flush(self):
        while self.pend: self.pend.pop(0)()
    def quota(self, n):
        for _ in range(n):
            if not self.pend: self.step(run=False)
            self.pend.pop(0)()

def NT(o, st): return ['', ' nt', ' sc1', ' sc0 sc1', ' sc1 nt', ' sc0 sc1 nt', ' sc0 nt'][OPT['ntf']] if OPT[o] >> st & 1 else ''
class LW:
    def __init__(self, A, typ):
        self.A = A; self.typ = typ; self.C = Ctx(A); self.G = LG(A); self.B = BP(A, self.C, self.G)
        self.lrow = 3584 if typ == 'F' else 3072
        self.stok = {}; self.sq = []
    def issue(self, st, only_half=False, lo=0, hi=99):
        A = self.A if lo == 0 else (lambda x: None); buf = phys(st); F = self.typ == 'F'
        cs = 128 if F else 1024
        if not only_half:
            A(f's_bfe_u32 {sT0}, {sRot}, {(4 << 16) | (4*st):#x}\ns_lshl_b32 {sXo}, {sT0}, 7\ns_add_u32 {sXo}, {sXo}, {sXb}')
            A(f's_mul_i32 {sT0}, {sT0}, {64*self.lrow}\ns_add_u32 {sWo}, {sT0}, {sWb}')
            xs = [(buf + 4096*p, (vx0, vx2, vx1, vx3)[p], sX, sXo, 0) for p in range(4)]
            ws = [(buf + 16384 + 8192*b + 4096*h - b*cs, (vw, vw1)[h], sW, sWo, b*cs) for h in range(2) for b in range(3)]
            items = [xs[0], ws[0], ws[1], xs[1], ws[2], xs[2], ws[3], ws[4], xs[3], ws[5]]
        else: items = []
        if F:
            A(f's_add_u32 {sHo}, {sWo}, {sHb}')
            items.append((buf + 16384 + 24576, vh, sW, sHo, 0))
        A = self.A
        for m, v, sr, so, off in items[lo:hi]:
            A(f's_add_u32 m0, {sLb}, {m}')
            self.stok[st] = self.C.vm(f'buffer_load_dwordx4 {v}, {sr}, {so} offen' + (f' offset:{off}' if off else '') + NT('ntx' if sr is sX else 'ntw', st) + ' lds')
            while self.sq:
                x = self.sq.pop(0); A(x)
                if x.startswith('s_load'): break
    def run(self):
        A, C, G, B, l = self.A, self.C, self.G, self.B, lane
        F = self.typ == 'F'; lrow = self.lrow
        C.n = 5; self.stok[0] = 5
        T = [ACCL[i] for i in range(64)]
        if OPT['lprio']: A(f's_setprio {OPT["lprio"]}')
        srd(A, sW2, 48, SZ_W2); srd(A, sWO, 24, SZ_WO)
        if not F: srd(A, sPHI, 16, SZ_PHI)
        elif OPT['j3']: srd(A, sPHI, 8, SZ_QKV)
        vj3 = ACCL[62]
        def j3touch(second):
            A(f'v_lshrrev_b32 {vj3}, 3, {l}\nv_mul_u32_u24 {vj3}, 3072, {vj3}\nv_and_b32 {ACCL[63]}, 0x70, {v_l16}\nv_add_u32 {vj3}, {vj3}, {ACCL[63]}')
            A(f's_and_b32 {sT0}, {sI}, 7\ns_lshl2_add_u32 {sT0}, {sT0}, {sWQ}\ns_lshr_b32 {sT1}, s2, 1\ns_xor_b32 {sT1}, {sT1}, s2\ns_and_b32 {sT1}, {sT1}, 1' + (f'\ns_xor_b32 {sT1}, {sT1}, 1' if second else ''))
            A(f's_lshl_b32 {sT1}, {sT1}, 5\ns_add_u32 {sT0}, {sT0}, {sT1}\ns_mul_i32 {sT0}, {sT0}, {8*3072}')
            A(f's_sub_u32 {sT1}, {sJJ}, 4\ns_min_u32 s6, {sT1}, 2\ns_lshl_b32 s6, s6, 10\ns_add_u32 {sT0}, {sT0}, s6')
            A(f's_cmp_gt_u32 {sT1}, 3\ns_cselect_b32 {sT0}, {OOB}, {sT0}\ns_cmp_eq_u32 {sT1}, 2\ns_cselect_b32 {sT0}, {OOB}, {sT0}\ns_mov_b32 m0, {JUNK}')
            if F and not second: A('s_waitcnt lgkmcnt(0)')
            C.vm(f'buffer_load_dwordx4 {vj3}, {sPHI if F else sW}, {sT0} offen offset:384 lds')
        if OPT['j3'] & 1 and OPT['j3p'] == 0: j3touch(False)
        A(f's_sub_u32 {sLb}, {sLb}, 4096')
        A(f'v_or_b32 {vx2}, 0x8000, {vx0}\nv_or_b32 {vx3}, 0x8000, {vx1}\nv_and_b32 {vx0}, 0xffff7fff, {vx0}\nv_and_b32 {vx1}, 0xffff7fff, {vx1}')
        if OPT['flip'] & 1: A(f's_bitcmp1_b32 s2, 5\ns_cselect_b32 s4, 0, {32*lrow}\nv_subrev_u32 {vw}, s4, {vw}')
        else: A(f'v_subrev_u32 {vw}, {32*lrow}, {vw}')
        A(f'v_add_u32 {vw1}, {32*lrow}, {vw}')
        if OPT['rot'] == 4:
            A(f's_and_b32 s4, {sRot}, 3\ns_lshl_b32 s4, s4, 2\ns_lshr_b32 s4, 0x32103210, s4\ns_and_b32 s4, s4, 0xffff')
            if OPT['r3'] & 1:
                A(f's_lshl_b32 s4, s4, 16\ns_and_b32 s5, {sI}, 7\ns_and_b32 s6, {sJJ}, 3\ns_add_u32 s5, s5, s6\ns_lshl_b32 s5, s5, 1\ns_lshr_b32 s5, 1198372, s5\ns_and_b32 s5, s5, 3')
                A(f's_lshl_b32 s5, s5, 2\ns_lshr_b32 s5, 0x213210, s5\ns_and_b32 s5, s5, 0xfff0\ns_or_b32 s4, s4, s5')
            elif OPT['r2'] == 0: A(f's_mul_i32 s4, s4, 0x10001')
            elif OPT['r2'] == 1: A(f's_bitcmp1_b32 {sRot}, 0\ns_cselect_b32 s5, 0x11110000, 0\ns_xor_b32 s5, s5, 0x32100000\ns_or_b32 s4, s4, s5')
            else: A(f's_or_b32 s4, s4, 0x32100000')
            A(f's_cmp_ge_u32 {sRot}, 4\ns_cselect_b32 s5, 0x4444, 0x44440000\ns_or_b32 {sRot}, s4, s5'.replace('s_cselect_b32 s5, 0x4444, 0x44440000', 's_mov_b32 s5, 0x44440000\ns_cmovk_i32 s5, 0x4444'))
        elif OPT['rot'] == 2:
            A(f's_mul_i32 {sRot}, {sRot}, 0x11111111\ns_xor_b32 {sRot}, {sRot}, 0x76543210')
        else:
            A(f's_mov_b32 s4, 0x76543210\ns_mov_b32 s5, s4\ns_lshl_b32 s6, {sRot}, 2\ns_lshr_b64 s[4:5], s[4:5], s6\ns_mov_b32 {sRot}, s4')
        if F:
            t0, t1, t2 = T[0:3]
            A(f's_and_b32 {sT0}, {sJ}, 1\ns_mul_i32 {sT0}, {sT0}, 448\ns_sub_u32 {sHb}, 384, {sT0}')
            A(f's_mul_i32 {sT0}, {sWQ}, {16*lrow}\ns_add_u32 {sHb}, {sHb}, {sT0}')
            A(f'v_lshrrev_b32 {t0}, 2, {l}\nv_and_b32 {t1}, 3, {l}\nv_lshrrev_b32 {t2}, 4, {l}\nv_and_b32 {t2}, 2, {t2}\nv_xor_b32 {t2}, {t2}, {t1}\nv_lshlrev_b32 {t2}, 4, {t2}')
            A(f'v_mul_u32_u24 {vh}, {lrow}, {t0}\nv_add_u32 {vh}, {vh}, {t2}')
            self.issue(0, only_half=True)
        if OPT['e1']: self.issue(1, hi=OPT['e1'])
        p2_ids(A)
        t0, t1, f = T[0:3]
        if OPT['ph']:
            if OPT['brot'] and OPT['sw']: A(f's_and_b32 s7, {sJ2}, 3\ns_cmp_eq_u32 s7, 3\ns_cselect_b32 s7, 3, 2\ns_and_b32 s6, s6, s7')
            elif OPT['brot']: A('s_and_b32 s6, s6, 2')
            A(f's_add_u32 s6, s6, {sJ2}\ns_and_b32 s7, s6, 3\ns_lshl_b32 s7, s7, 2\ns_lshr_b32 s4, 0x98109810, s7\ns_and_b32 s4, s4, 0xffff')
            A(f's_mul_i32 {sCur}, s4, 0x10001\ns_add_u32 {sCur}, {sCur}, 0x22220000')
            A(f's_bitcmp1_b32 s6, {1 if OPT["brot"] else 0}\ns_cselect_b32 s5, 0x110000, 0\ns_xor_b32 s5, s5, 0x764444\ns_add_u32 {sCurA}, s4, s5')
        else:
            if OPT['brot'] and OPT['sw']: A(f's_and_b32 s7, {sJ2}, 3\ns_cmp_eq_u32 s7, 3\ns_cselect_b32 s7, 3, 2\ns_and_b32 s6, s6, s7')
            A(f's_lshl_b32 s6, s6, 1' + (f'\ns_and_b32 s6, s6, 4' if OPT['brot'] and not OPT['sw'] else '') + f'\ns_add_u32 s6, s6, {sJ2}' + ('\ns_add_u32 s6, s6, s2' if OPT['xr'] & 1 else '') + '\ns_and_b32 s6, s6, 7')
            A(f's_mov_b32 s4, 0xba983210\ns_mov_b32 s5, s4\ns_lshl_b32 s7, s6, 2\ns_lshr_b64 s[4:5], s[4:5], s7\ns_mov_b32 {sCur}, s4')
            A(f's_mul_i32 s6, s6, 3\ns_and_b32 s7, s6, 28\ns_mov_b32 s4, 0x547dc654\ns_mov_b32 s5, 0x7dc6\ns_lshr_b64 s[4:5], s[4:5], s7\ns_mov_b32 {sCurA}, s4')
        A(f's_mul_i32 s4, {sWQ}, 14\ns_mul_i32 {sAb}, {sI2}, 72\ns_add_u32 {sAb}, {sAb}, s4\ns_lshl_b32 {sAb}, {sAb}, 12\ns_add_u32 {sAb}, {sAb}, {ACT}')
        A(f's_lshl_b32 {sBb}, s4, 15\ns_lshl_b32 s5, {sJ2}, 7\ns_add_u32 {sBb}, {sBb}, s5')
        A(f's_lshl_b32 {sF[0]}, {sWQ}, 17\ns_add_u32 {sF[0]}, {sF[0]}, s5')
        A(f's_lshl_b32 {sLb2}, {sWQ}, 12')
        A(f'v_lshrrev_b32 {t0}, 3, {l}\nv_and_b32 {t1}, 6, {t0}\nv_and_b32 {f}, 7, {l}\nv_xor_b32 {t1}, {t1}, {f}\nv_lshlrev_b32 {t1}, 4, {t1}\nv_lshl_add_u32 {vb0}, {t0}, 10, {t1}\nv_add_u32 {vb1}, 0x2000, {vb0}')
        tr_addr(A, vb, sLb2, t0, t1)
        for q in range(4): A(f'v_add_u32 {vbh[q]}, {Y0}, {vb[q]}')
        A(f'v_mov_b32 {pm}, {L_TAG}\nv_mov_b32 {p1}, 1')
        cnt_i2(A, sF[1], sI2, 1024)
        A(f's_lshl_b32 s4, {sWQ}, 8\ns_add_u32 {sF[1]}, {sF[1]}, s4')
        if OPT['Rh'] > 1: A(f's_and_b32 s4, {sJ2}, 1\ns_lshl_b32 s4, s4, 7\ns_add_u32 {sF[1]}, {sF[1]}, s4')
        ca = T[4:8]; t, g = T[8], T[9]; ones = ACCL[12:16]; wfr = ACCL[16:32]; cs = ACCL[32:48]; vt = T[10]; ff = T[11]
        A(f'v_and_b32 {t}, 15, {l}\nv_lshrrev_b32 {g}, 4, {l}')
        if F: A(f's_cmp_eq_u32 {sWQ}, 3\ns_cselect_b32 s4, 6, 7\ns_cselect_b32 s5, 1, 3\ns_cselect_b32 s6, 1, 0\ns_lshl_b32 s7, {sWQ}, 13')
        else: A(f's_mov_b32 s4, 7\ns_mov_b32 s5, 3\ns_mov_b32 s6, 0\ns_min_u32 s7, {sWQ}, 2\ns_lshl_b32 s7, s7, 13')
        if OPT['r3'] & 1: A(f's_and_b32 {sT0}, {sI}, 7\ns_lshr_b32 {sT0}, 0xb8, {sT0}\ns_and_b32 {sT0}, {sT0}, 1\ns_lshl_b32 {sT0}, {sT0}, 5')
        else: A(f's_lshl_b32 {sT0}, {sI}, {dict([(2,4),(4,3),(8,2)])[OPT["rot"]]}\ns_and_b32 {sT0}, {sT0}, 32')
        HS = OPT['hs']
        sgr = ACCL[56:60]; sga = T[60]; sgs = T[61]
        if HS:
            A(f's_lshr_b32 {sSpin}, {sE[0]}, 15\ns_lshl_b32 {sSpin}, {sSpin}, 10\ns_and_b32 {sT1}, {sE[0]}, 512\ns_add_u32 {sSpin}, {sSpin}, {sT1}')
            A(f's_bfe_u32 {sT1}, {sE[0]}, 0x1000e\ns_lshl2_add_u32 {sT1}, {sT1}, {sWQ}\ns_lshl_b32 {sT1}, {sT1}, 6\ns_add_u32 {sSpin}, {sSpin}, {sT1}\ns_add_u32 {sSpin}, {sSpin}, {STAT}')
        else: A(f's_lshr_b32 {sE[0]}, {sE[0]}, 6\ns_lshl_b32 {sT1}, {sWQ}, 5\ns_add_u32 {sE[0]}, {sE[0]}, {sT1}\ns_add_u32 {sSpin}, {sE[0]}, {STAT}')
        A(f's_lshl_b32 {sT1}, {sWQ}, {4 + HS}\ns_add_u32 {sT1}, {sT1}, {L_SG}\nv_and_b32 {sga}, {1 + 2*HS}, {l}\nv_lshl_add_u32 {sga}, {sga}, 3, {sT1}')
        A(f'v_lshrrev_b32 {sgs}, {1 + HS}, {l}\nv_lshl_add_u32 {sgs}, {sgs}, 26, {v_l16}')
        A(f'v_lshrrev_b32 {t0}, 2, {t}\nv_lshl_add_u32 {t0}, {g}, 3, {t0}\nv_add_u32 {t0}, {sT0}, {t0}\nv_lshlrev_b32 {t0}, s4, {t0}')
        A(f'v_and_b32 {t1}, 3, {t}\nv_lshl_add_u32 {t0}, {t1}, 3, {t0}\ns_add_u32 s7, s7, {phys(0)+16384}')
        if OPT['rot'] == 2: A(f's_bitcmp1_b32 {sI}, 2\ns_cselect_b32 {sT1}, {phys(0) - phys(2)}, 0\ns_sub_u32 s7, s7, {sT1}')
        if OPT['r3'] & 1: A(f's_and_b32 {sT1}, {sI}, 6\ns_cmp_lg_u32 {sT1}, 6\ns_cselect_b32 {sT1}, {phys(0) - phys(1)}, 0\ns_sub_u32 s7, s7, {sT1}')
        A(f'v_add_u32 {t0}, s7, {t0}')
        A(f'v_lshrrev_b32 {f}, 3, {t}\nv_and_b32 {t1}, 1, {g}\nv_lshl_or_b32 {f}, {t1}, 1, {f}\nv_lshrrev_b32 {f}, s6, {f}')
        for q in range(4): A(f'v_xor_b32 {t1}, {q}, {f}\nv_and_b32 {t1}, s5, {t1}\nv_lshl_add_u32 {ca[q]}, {t1}, 5, {t0}')
        A(f's_lshl_b32 s5, 4, s4')
        for r in range(4): A(f'v_mov_b32 {ones[r]}, 0x3f803f80')
        A(f'v_mov_b32 {vt}, {L_TAG}\nv_mov_b32 {ff}, 0xff')
        A(f's_lshl_b32 {sE[1]}, {sJJ}, 14\ns_lshl_b32 {sT0}, {sWQ}, 8\ns_add_u32 {sE[1]}, {sE[1]}, {sT0}\ns_add_u32 {sE[1]}, {sE[1]}, {CSP}')
        A(f's_lshl_b32 {sT0}, {sI}, 10\ns_add_u32 {sE[2]}, {sE[1]}, {sT0}')
        A(f's_lshl_b32 {sE[0]}, {sI}, 2\ns_add_u32 {sE[0]}, {sE[0]}, {sWQ}\ns_lshl_b32 {sE[0]}, {sE[0]}, {9 + HS}\ns_add_u32 {sE[0]}, {sE[0]}, {STAT}')
        TFL = ['', 'nt', 'sc1', 'sc0 sc1', 'sc0 sc1 nt', 'sc1 nt'][OPT['tfl']]
        def mall():
            if OPT['touch'] & 8:
                A(f's_lshl2_add_u32 {sT0}, s2, {sWQ}\ns_lshl_b32 {sT0}, {sT0}, 10\ns_add_u32 {sT1}, {sT0}, 0x100000\ns_mov_b32 m0, {JUNK}')
                C.vm(f'buffer_load_dwordx4 {v_l16}, {sW2}, {sT0} offen {TFL} lds')
                C.vm(f'buffer_load_dwordx4 {v_l16}, {sW2}, {sT1} offen {TFL} lds')
                A(f's_xor_b32 {sT0}, {sT0}, 0x80000')
                C.vm(f'buffer_load_dwordx4 {v_l16}, {sWO}, {sT0} offen {TFL} lds')
                return
            if OPT['touch'] & 16:
                if not F: return
                A(f's_lshl4_add_u32 {sT0}, {sJ}, {sI}\ns_lshl2_add_u32 {sT0}, {sT0}, {sWQ}\ns_lshl_b32 {sT1}, {sT0}, 10\ns_lshl_b32 {sT0}, {sT0}, 12\ns_mov_b32 m0, {JUNK}')
                for i in range(4): C.vm(f'buffer_load_dwordx4 {v_l16}, {sW2}, {sT0} offen offset:{1024*i} {TFL} lds')
                C.vm(f'buffer_load_dwordx4 {v_l16}, {sWO}, {sT1} offen {TFL} lds')
                return
            if OPT['touch'] & 32:
                A(f's_cmp_gt_u32 {sJJ}, 6\ns_subb_u32 {sT0}, {sJJ}, 0\ns_lshl4_add_u32 {sT0}, {sT0}, {sI}\ns_lshl2_add_u32 {sT0}, {sT0}, {sWQ}')
                A(f's_cmp_eq_u32 {sJJ}, 6\ns_cselect_b32 {sT0}, 0x10000, {sT0}\ns_sub_u32 {sT1}, {sT0}, 448\ns_lshl_b32 {sT1}, {sT1}, 10\ns_lshl_b32 {sT0}, {sT0}, 11\ns_mov_b32 m0, {JUNK}')
                A(f's_min_u32 {sT1}, {sT1}, {OOB}')
                for i in range(2): C.vm(f'buffer_load_dwordx4 {v_l16}, {sW2}, {sT0} offen offset:{1024*i} {TFL} lds')
                C.vm(f'buffer_load_dwordx4 {v_l16}, {sWO}, {sT1} offen {TFL} lds')
                return
            if not OPT['touch'] & 4 or F: return
            A(f's_cmp_gt_u32 {sJ}, 3\ns_subb_u32 {sT0}, {sJ}, 0\ns_lshl_b32 {sT0}, {sT0}, 4\ns_add_u32 {sT0}, {sT0}, {sI}\ns_lshl2_add_u32 {sT0}, {sT0}, {sWQ}')
            A(f's_cmp_eq_u32 {sJ}, 3\ns_cselect_b32 {sT0}, 0x10000, {sT0}\ns_lshl_b32 {sT1}, {sT0}, 11\ns_lshl_b32 {sT0}, {sT0}, 12\ns_mov_b32 m0, {JUNK}')
            for i in range(4): C.vm(f'buffer_load_dwordx4 {v_l16}, {sW2}, {sT0} offen offset:{1024*i} {TFL} lds')
            for i in range(2): C.vm(f'buffer_load_dwordx4 {v_l16}, {sWO}, {sT1} offen offset:{1024*i} {TFL} lds')
        def w2h():
            a = ACCL[62]
            A(f'v_lshrrev_b32 {a}, 3, {l}\nv_mul_u32_u24 {a}, {lrow}, {a}\nv_and_b32 {ACCL[63]}, 0x70, {v_l16}\nv_add_u32 {a}, {a}, {ACCL[63]}')
            A(f's_bfe_u32 {sT0}, {sRot}, 0x10012\ns_lshl_b32 {sT0}, {sT0}, 3\ns_and_b32 {sT1}, {sI}, 7\ns_add_u32 {sT0}, {sT0}, {sT1}\ns_lshl2_add_u32 {sT0}, {sT0}, {sWQ}')
            A(f's_mul_i32 {sT0}, {sT0}, {8*lrow}\ns_add_u32 {sT0}, {sT0}, {sWb}\ns_mov_b32 m0, {JUNK}')
            for b in range(3): C.vm(f'buffer_load_dwordx4 {a}, {sW}, {sT0} offen offset:{b*(128 if F else 1024)}{NT("ntp", 0)} lds')
            if F:
                A(f's_bitcmp1_b32 {sJ}, 0\ns_cselect_b32 {sT0}, {OOB}, {sT0}')
                C.vm(f'buffer_load_dwordx4 {a}, {sW}, {sT0} offen offset:384{NT("ntp", 0)} lds')
        def x2h():
            a = ACCL[62]
            A(f'v_lshrrev_b32 {a}, 5, {l}\nv_lshlrev_b32 {a}, 10, {a}\nv_and_b32 {ACCL[63]}, 0x1f0, {v_l16}\nv_add_u32 {a}, {a}, {ACCL[63]}')
            A(f's_bfe_u32 {sT0}, {sRot}, 0x10012\ns_lshl_b32 {sT0}, {sT0}, 9\ns_and_b32 {sT1}, {sJJ}, 3\ns_lshl2_add_u32 {sT1}, {sT1}, {sWQ}\ns_lshl_b32 {sT1}, {sT1}, 13')
            A(f's_add_u32 {sT0}, {sT0}, {sT1}\ns_add_u32 {sT0}, {sT0}, {sXb}\ns_add_u32 {sT1}, {sT0}, 4096\ns_mov_b32 m0, {JUNK}')
            for b in range(4): C.vm(f'buffer_load_dwordx4 {a}, {sX}, {(sT0, sT1)[b >> 1]} offen offset:{(b & 1)*2048} lds')
        if not F:
            A(f's_lshl2_add_u32 {sT0}, {sJ}, {sWQ}\ns_lshr_b32 {sT0}, {sT0}, 1\ns_lshl_b32 {sT0}, {sT0}, 10\ns_add_u32 m0, {sLb}, {L_PHI}\ns_waitcnt lgkmcnt(0)')
            tkphi = C.vm(f'buffer_load_dwordx4 {v_l16}, {sPHI}, {sT0} offen lds')
        if OPT['j3'] & 1 and OPT['j3p'] == 1: j3touch(False)
        if OPT['kva'] and not F:
            z4 = RS[1][0:4]; za = RS[1][4]
            for r in range(4): A(f'v_mov_b32 {z4[r]}, 0')
            A(f's_lshl_b32 {sT1}, {sI}, 10\nv_add_u32 {za}, {sT1}, {v_l16}\nv_cmp_lt_u32 vcc, {2176-16}, {za}\nv_cndmask_b32 {za}, {za}, {ones[0]}, vcc')
            A(f's_lshl2_add_u32 {sT0}, {sJ}, {sWQ}\ns_mul_i32 {sT0}, {sT0}, 2176\ns_add_u32 {sT0}, {sT0}, {KT}')
            C.vm(f'buffer_store_dwordx4 {z4}, {za}, {sWS}, {sT0} offen sc1')
        stl = [int(c, 16) for c in OPT['st']] + [0]*3
        sc = [OPT['stc'] + OPT['stl']]
        if OPT['stl']:
            if F: A('s_waitcnt lgkmcnt(0)')
            stouch(A, OPT['stc'], sc[0])
        stampg(A, 4)
        if OPT['tk'] == -1:
            A('s_waitcnt lgkmcnt(0)'); mall()
        self.issue(1, lo=OPT['e1'], hi=OPT['sp1'])
        if OPT['w2h'] == -2: w2h()
        if OPT['x2h'] == -2: x2h()
        if OPT['tk'] == -2:
            A('s_waitcnt lgkmcnt(0)'); mall()
        stamp(A, 1); stampg(A, 5)
        C.wait(self.stok[0]); stampb(A, 1); stampg(A, 6); A('s_barrier')
        stampg(A, 7)
        stamp(A, 2)
        gq = [ACCL[16+4*i:20+4*i] for i in range(4)]; sg = ACCL[32:36]; ga, sa = T[4], T[5]; tm = ACCL[40:48]
        ldg = [f'buffer_load_dwordx4 {sg}, {v_l16 if HS else sa}, {sWS}, {sE[0]} offen sc1']
        ldg += [f'buffer_load_dwordx4 {gq[i]}, {ga}, {sWS}, {[sE[1], sE[3], sE[4], sE[5]][i]} offen sc1' for i in range(4)]
        nm = OPT['nmF'] if F else OPT['nmA']
        B.free = [TS]
        tl = [int(c) for c in f'{OPT["tl"+self.typ]:09d}']
        tc = [0]
        def touch(n):
            for _ in range(n):
                i = tc[0]
                if i >= 18: return
                tc[0] += 1
                r = i if i < 14 else i - 14
                if r % 4 == 0 or _ == 0:
                    A(f's_lshr_b32 {sT0}, s2, 3\ns_lshl2_add_u32 {sT0}, {sT0}, {sWQ}\ns_mul_i32 {sT0}, {sT0}, {14336 if i < 14 else 4096}\ns_add_u32 {sT0}, {sT0}, {r//4*4096}\ns_mov_b32 m0, {JUNK}')
                C.vm(f'buffer_load_dwordx4 {v_l16}, {sW2 if i < 14 else sWO}, {sT0} offen offset:{(r % 4)*1024} lds')
        c3l = [int(c) for c in f'{OPT["c3F"]:08d}'] + [0]*3
        c3c = [0]
        def c3touch(n):
            if n: A(f's_lshr_b32 {sT0}, s2, 4\ns_and_b32 {sT0}, {sT0}, 8\ns_and_b32 {sT1}, {sI}, 7\ns_add_u32 {sT0}, {sT0}, {sT1}\ns_lshl2_add_u32 {sT1}, {sT0}, {sWQ}\ns_mul_i32 {sT0}, {sT1}, {28*1024}\ns_mov_b32 m0, {JUNK}\ns_lshl_b32 {sT1}, {sT1}, 13')
            for _ in range(n):
                i = c3c[0]
                if i >= 5: return
                c3c[0] += 1
                if i < 4:
                    A(f's_add_u32 s6, {sT0}, {[0, 8192, 16384, 20480][i]}')
                    C.vm(f'buffer_load_dwordx4 {vb0}, {sW2}, s6 offen offset:384 lds')
                else: C.vm(f'buffer_load_dwordx4 {vb0}, {sWO}, {sT1} offen offset:384 lds')
        for k in range(9):
            if k == 3: stampc(A, 1)
            if k == 4: stampc(A, 8)
            if k == 0:
                A(f'ds_read_b32 {vt}, {vt}\nds_read_b64 {sgr[0:2]}, {sga}')
            if k == 0 or (k == 2 and OPT['rot'] == 2) or (k == 1 and OPT['r3'] & 1):
                lk = A.lab('CS')
                if OPT['r3'] & 1: A(f's_and_b32 {sT1}, {sI}, 6\ns_cmp_eq_u32 {sT1}, 6\ns_cbranch_scc{k} {lk}')
                if OPT['rot'] == 2: A(f's_bitcmp1_b32 {sI}, 2\ns_cbranch_scc{1 if k == 0 else 0} {lk}')
                for q in range(4): A(f'ds_read_b64_tr_b16 {wfr[4*q:4*q+2]}, {ca[q]}')
                for q in range(4): A(f'v_add_u32 {ca[q]}, s5, {ca[q]}')
                for q in range(4): A(f'ds_read_b64_tr_b16 {wfr[4*q+2:4*q+4]}, {ca[q]}')
                A(f'{lk}:')
            if OPT['sti'] and 1 <= k < 6:
                stouch(self.sq.append, sc[0], sc[0] + stl[k]); sc[0] += stl[k]; stl[k] = 0
            if k == 0: self.issue(1, lo=OPT['sp1'])
            if k == OPT['w2h'] - 10: w2h()
            if k == OPT['x2h'] - 10: x2h()
            if k == OPT['tk'] - 10: mall()
            spl = [int(c, 16) for c in OPT['spl' + self.typ]]
            if 1 <= k <= 6 and spl[k-1] < 15: self.issue(k + 1, lo=spl[k-1])
            if k == OPT['w2h'] - 20: w2h()
            if k == OPT['x2h'] - 20: x2h()
            if k == OPT['tk'] - 20: mall()
            if k < 6 and spl[k]: self.issue(k + 2, hi=spl[k])
            for x in self.sq: A(x)
            self.sq = []
            if k == 6 and OPT['xr'] & 2:
                A(f's_and_b32 {sT0}, s2, 6\ns_lshl_b32 {sT0}, {sT0}, 9')
                for i in range(4): A(f's_xor_b32 {sLi[i]}, {sT0}, {1024*i}\ns_add_u32 {sLi[i]}, {sLi[i]}, {sLb2}')
                A(f's_and_b32 {sT1}, {sT0}, 1024\ns_lshl_b32 {sT1}, {sT1}, 3\nv_xor_b32 {vr0}, {sT1}, {vb0}\nv_xor_b32 {vr1}, {sT1}, {vb1}')
                A(f's_lshr_b32 {sHb}, {sT1}, 2')
                A(f's_and_b32 {sT1}, {sT0}, 2048\ns_lshl_b32 {sT1}, {sT1}, 3\ns_add_u32 {sBb}, {sBb}, {sT1}')
            if k == 6:
                for i in range(4):
                    A(f's_add_u32 {sT0}, {sWQ}, {i}\ns_and_b32 {sT0}, {sT0}, 3\ns_lshl_b32 {sT0}, {sT0}, 10\nv_add_u32 {va[i]}, {sT0}, {v_l16}')
            if k == 3: stampc(A, 2)
            if k == OPT['stk']:
                if k == 0 or (k == 1 and OPT['r3'] & 1): A(f's_waitcnt lgkmcnt(0)')
                A(f'v_readfirstlane_b32 {sTag}, {vt}')
                A('s_setprio 3')
                for q in range(4): A(f'v_mfma_f32_16x16x32_bf16 {cs[4*q:4*q+4]}, {ones}, {wfr[4*q:4*q+4]}, 0')
                tag_consts(A)
                A(f'v_lshrrev_b32 {t0}, 4, {l}\nv_lshl_add_u32 {t0}, {t0}, 26, {v_l16}')
                for q in range(4): A(f'v_bfi_b32 {cs[q]}, {ff}, {sTB[q]}, {cs[4*q]}')
                A(f's_setprio {OPT["lprio"]}')
                A(f'v_mov_b32 {sgr[2]}, {vt}\nv_mov_b32 {sgr[3]}, {vt}')
                A(f'v_and_b32 {ga}, 15, {l}\nv_lshlrev_b32 {ga}, 4, {ga}\nv_lshl_add_u32 {ga}, {g}, 10, {ga}\nv_and_b32 {sa}, 0x1f0, {v_l16}')
                A(f's_add_u32 {sE[3]}, {sE[1]}, 4096\ns_add_u32 {sE[4]}, {sE[1]}, 8192\ns_add_u32 {sE[5]}, {sE[1]}, 12288')
            if k == OPT['stk']:
                assert (k >= 2 or OPT['rot'] != 2)
                C.vm(f'buffer_store_dwordx4 {cs[0:4]}, {t0}, {sWS}, {sE[2]} offen sc1')
                C.vm(f'buffer_store_dwordx4 {sgr}, {sgs}, {sWS}, {sSpin} offen sc1')
            if k == OPT['j3k'] and OPT['j3'] & 2: j3touch(True)
            if k == OPT['w2h']: w2h()
            if k == OPT['x2h']: x2h()
            if k == OPT['tk']: mall()
            if k == OPT['c3'] and not F:
                A(f's_lshr_b32 {sT0}, s2, 4\ns_and_b32 {sT0}, {sT0}, 8\ns_and_b32 {sT1}, {sI}, 7\ns_add_u32 {sT0}, {sT0}, {sT1}\ns_lshl2_add_u32 {sT1}, {sT0}, {sWQ}\ns_mul_i32 {sT0}, {sT1}, {28*1024}\ns_mov_b32 m0, {JUNK}')
                for o in (0, 8192, 8192, 4096):
                    if o: A(f's_add_u32 {sT0}, {sT0}, {o}')
                    C.vm(f'buffer_load_dwordx4 {vb0}, {sW2}, {sT0} offen offset:384 lds')
                A(f's_lshl_b32 {sT1}, {sT1}, 13')
                C.vm(f'buffer_load_dwordx4 {vb0}, {sWO}, {sT1} offen offset:384 lds')
            if F: c3touch(c3l[k])
            plo, phi_, pa_ = RS[10][0:4], RS[10][4:8], RS[10][8]
            if k == OPT['pk'] and not F:
                if k == 0: C.wait(tkphi)
                A(f'v_bfe_u32 {pa_}, {l}, 3, 2\nv_lshlrev_b32 {pa_}, 3, {pa_}\nv_and_b32 {t1}, 3, {l}\nv_lshl_add_u32 {pa_}, {t1}, 1, {pa_}')
                A(f'v_lshrrev_b32 {t1}, 5, {l}\nv_lshl_add_u32 {pa_}, {t1}, 8, {pa_}')
                A(f's_and_b32 {sT0}, {sWQ}, 1\ns_lshl_b32 {sT0}, {sT0}, 9\ns_add_u32 {sT0}, {sT0}, {sLb}\ns_add_u32 {sT0}, {sT0}, {L_PHI}\nv_add_u32 {pa_}, {sT0}, {pa_}')
                for j in range(8): A(f'ds_read_u16 {(phi_ if j & 1 else plo)[j//2]}, {pa_} offset:{32*j}')
            if k == OPT['pk'] + 1 and not F:
                L = [f'v_bfe_u32 {t1}, {l}, 2, 1', f'v_mul_u32_u24 {t1}, 0x8000, {t1}', f'v_lshl_or_b32 {t1}, {t1}, 16, {t1}']
                for rr in range(4): L += [f'v_lshl_or_b32 {plo[rr]}, {phi_[rr]}, 16, {plo[rr]}', f'v_xor_b32 {plo[rr]}, {plo[rr]}, {t1}']
                L += [f's_add_u32 {sT0}, {sLb}, {L_PHI}', f'v_add_u32 {pa_}, {sT0}, {v_l16}', f'ds_write_b128 {pa_}, {plo}']
                for x in L: A(x)
            if k == OPT['sk'] and OPT['snt'] and not F:
                sn = RS[9][0:4]
                for r in range(4): A(f'v_mov_b32 {sn[r]}, -1')
                A(f's_mul_i32 {sT0}, {sI}, {2*72*4096}\ns_lshl_b32 {sT1}, {sJ}, 11\ns_add_u32 {sT0}, {sT0}, {sT1}\ns_lshl_b32 {sT1}, {sWQ}, 14\ns_add_u32 {sT0}, {sT0}, {sT1}')
                A(f's_add_u32 {sT0}, {sT0}, {ACT + 56*4096}\ns_add_u32 {sT1}, {sT0}, {72*4096}')
                for so in (sT0, sT1):
                    for o_ in (0, 1024): tks = C.vm(f'buffer_store_dwordx4 {sn}, {v_l16}, {sWS}, {so} offen offset:{o_} sc1')
            if k == OPT['gat']:
                for s in ldg: tkg = C.vm(s)
            touch(tl[k])
            if 6 - nm <= k < 6: B.step()
            if k == 6: B.free += [X0, X1]
            if k == 7: B.free += [Y0, Y1]
            if k in (6, 7) and (k != OPT['chk'] or OPT['qf']): B.quota(OPT[f'q{k}{self.typ}'])
            if k == OPT['chk']:
                C.wait(tkg)
                def chk():
                    for i in range(4): quad_diff(A, gq[i], tm[i], tm[4+i])
                    A(f'v_bitop3_b32 {tm[4]}, {sg[2]}, {sg[3]}, {sTag} bitop3:0x7e')
                    A(f'v_or3_b32 {tm[0]}, {tm[0]}, {tm[1]}, {tm[2]}\nv_or3_b32 {tm[0]}, {tm[0]}, {tm[3]}, {tm[4]}\nv_cmp_ne_u32 vcc, 0, {tm[0]}\ns_and_b64 s[4:5], vcc, exec')
                poll(A, '\n'.join(ldg), chk, first_loaded=True, sleep=OPT['slp'])
                L = []
                for i in range(4):
                    for r in range(4): L.append(f'v_and_b32 {gq[i][r]}, 0xffffff00, {gq[i][r]}')
                x = gq[0]
                for r in range(4): L += [f'v_add_f32 {x[r]}, {x[r]}, {gq[1][r]}', f'v_add_f32 {gq[2][r]}, {gq[2][r]}, {gq[3][r]}', f'v_add_f32 {x[r]}, {x[r]}, {gq[2][r]}']
                L += [f'v_permlane32_swap_b32 {x[0]}, {x[2]}', f'v_permlane32_swap_b32 {x[1]}, {x[3]}', f'v_add_f32 {x[0]}, {x[0]}, {x[2]}', f'v_add_f32 {x[1]}, {x[1]}, {x[3]}',
                      f'v_permlane16_swap_b32 {x[0]}, {x[1]}', f'v_add_f32 {x[0]}, {x[0]}, {x[1]}']
                L += [f's_lshl_b32 {sT0}, {sWQ}, 8', f's_add_u32 {sT0}, {sT0}, {L_CS}', f'v_lshl_add_u32 {ga}, {l}, 2, {sT0}', f'ds_write_b32 {ga}, {x[0]}']
                if HS:
                    L += [f'v_mov_b32 {sg[2]}, {sg[0]}', f'v_mov_b32 {sg[3]}, {sg[1]}', f'v_permlane32_swap_b32 {sg[0]}, {sg[2]}', f'v_permlane32_swap_b32 {sg[1]}, {sg[3]}',
                          f'v_add_f32 {sg[1]}, {sg[1]}, {sg[3]}', f'v_sub_f32 {sg[3]}, {sg[0]}, {sg[2]}', f'v_add_f32 {sg[0]}, {sg[0]}, {sg[2]}', f'v_mul_f32 {sg[0]}, 0.5, {sg[0]}',
                          f'v_mul_f32 {sg[3]}, {sg[3]}, {sg[3]}', f'v_fmac_f32 {sg[1]}, {f2u(128.0):#x}, {sg[3]}', f'v_mov_b32 {sg[3]}, {f2u(1e-5):#x}',
                          f'v_fmac_f32 {sg[3]}, {f2u(1/512):#x}, {sg[1]}', f'v_rsq_f32 {sg[1]}, {sg[3]}']
                L += [f's_lshl_b32 {sT1}, {sWQ}, 7', f's_add_u32 {sT1}, {sT1}, {L_NM}', f'v_lshrrev_b32 {sa}, 2, {sa}', f'v_add_u32 {sa}, {sT1}, {sa}',
                      f'v_sub_f32 {sg[0]}, 0, {sg[0]}', f'v_mul_f32 {sg[2]}, {f2u(-LOG2E if F else LOG2E):#x}, {sg[1]}',
                      f'ds_write_b32 {sa}, {sg[0]}', f'ds_write_b32 {sa}, {sg[2]} offset:512']
                if not F: L.append(f'ds_write_b32 {sa}, {sg[1]} offset:1024')
                emit_sched(A, L)
                if k in (6, 7) and not OPT['qf']: B.quota(OPT[f'q{k}{self.typ}'])
            if k == 0: stampg(A, 8)
            if k == 1: stampg(A, 10)
            if k < 8:
                lg = k == 0 or (k == 1 and OPT['r3'] & 1) or k >= 6 - nm or (k == OPT['pk'] and not F)
                if lg and stl[k]: A('s_waitcnt lgkmcnt(0)'); lg = False
                stouch(A, sc[0], sc[0] + stl[k]); sc[0] += stl[k]
                if k < 7: C.wait(self.stok[k+1], 'lgkmcnt(0)' if lg else '')
                elif OPT['snt'] and not F: C.wait(tks, 'lgkmcnt(0)')
                else: A('s_waitcnt lgkmcnt(0)')
                G.done = G.n
                if k == 0: stampg(A, 9)
                if k == 3: stampc(A, 3)
                stampb(A, 2 + k)
                A('s_barrier')
                if k == 3: stampc(A, 4)
        stamp(A, 5)
        if OPT['lprio']: A('s_setprio 0')
        if OPT['dbg'] & (1 if F else 2):
            A(f's_mov_b32 {sW2[2]}, 0\ns_mov_b32 {sWO[2]}, 0')
        if OPT['dbg'] & 4 and F:
            A('s_sleep 60')
        B.wleft = list(range(4 - OPT['wol' + self.typ], 4))
        def wo(ks):
            for k in ks:
                if k not in B.wleft:
                    for f in B.wo_list(k): f()
        A(f's_and_b32 {sF[2]}, {sI2}, 2')
        B.dep = OPT['dep' + self.typ]
        wob = OPT['wob'] if F else OPT['wobA']
        stampe(A, 1)
        mark = len(A.L)
        B.flush()
        while B.next < wob and B.step():
            if B.next % 2 == 1 and B.next > 2: stampe(A, 2 + (B.next-3)//2)
        wo([0, 1])
        stampe(A, 8)
        while B.step(): pass
        wo([2, 3])
        if OPT['ah']:
            idx = [i for i in range(mark, len(A.L)) if A.L[i].startswith('buffer_load')]
            i = idx[-(OPT['ahA'] if (OPT['ahA'] and not F) else OPT['ah'])] + 1
            assert not any('lgkmcnt' in x for x in A.L[i:])
            A.L[i:i] = [f's_mov_b32 {sE[2]}, 0', f's_atomic_add {sE[2]}, {sWS[0:2]}, {sF[1]} glc', f's_add_u32 {sE[3]}, {sTag}, 4']
        stampe(A, 9)
        assert not B.fly
        stamp(A, 6)
        return B

def p2_L(A, B0, typ):
    l = lane; C = Ctx(A); G = LG(A)
    B = BP(A, C, G); B.slot = dict(B0.slot); B.tokwo = 0
    stamp(A, 7); stampe(A, 10); stamph(A, 1)
    if OPT['ah']:
        lk = A.lab('H1')
        A(f's_waitcnt lgkmcnt(0)\ns_cmp_eq_u32 {sE[2]}, {sE[3]}\ns_cbranch_scc1 {lk}')
    ppoll(A, sF[1], 4, OPT['Dh'], 44, OPT['slph'])
    if OPT['ah']: A(f'{lk}:')
    WO_ = OPT['wo'] and typ == 'A'
    if WO_ and not OPT['ns0']: lds_spin(A, pm, 8, 64, ACCL[0])
    stamp(A, 9); stampf(A, 0); stamph(A, 2)
    if OPT['stamp'] in (10, 11): A('s_memtime s[72:73]')
    tok = {}
    TM = OPT['tm']
    assert not TM or (max(o for o in RSL if RSL[o] == 1) <= 7 and max(o for o in RSL if RSL[o] == 0) <= 9 and max(o for o in RSL if RSL[o] == RSL[8]) == 8)
    sOf = lambda s: {12: sXo, 13: sHo}.get(s, sE[1]) if TM else sE[1]
    abuf = lambda s: {12: RS[1], 13: RS[RSL[8]]}.get(s, RS[8 + s % 3]) if TM else RS[8 + s % 3]
    def a_off(s): return [nib(sOf(s), s), f's_lshl_b32 {sOf(s)}, {sOf(s)}, 12', f's_add_u32 {sOf(s)}, {sOf(s)}, {sAb}']
    def ld_a(s, tt):
        tok[(s, tt)] = C.vm(f'buffer_load_dwordx4 {abuf(s)[4*tt:4*tt+4]}, {va[tt]}, {sWS}, {sOf(s)} offen ' + ['sc1', '', 'sc0', 'nt', 'sc0 sc1'][OPT['hld']])
    la = OPT['la' + typ]
    if TM: seq = [(s, tt) for s in range(11) for tt in range(4)] + [(s, tt) for tt in (1, 2, 3, 0) for s in (11, 12, 13)]
    else: seq = [(s, tt) for s in range(14) for tt in ([1, 2, 3, 0] if s == 13 else [0, 1, 2, 3])]
    N0 = 4*OPT['ns0'] if WO_ else 0
    when = [max(-1, n - OPT['la0']) if n < N0 else max(N0 - 1, n - la) for n in range(56)]
    if OPT['lr'] and typ == 'A':
        when = []; n = 0
        for m in range(-1, 56):
            lim = m + 1 + min(la, OPT['la0'] + max(0, m - OPT['lr']))
            while n < min(56, lim): when.append(m); n += 1
    first = {}
    for n, (s, tt) in enumerate(seq): first.setdefault(s, n)
    for n, (s, tt) in enumerate(seq):
        if TM and s == 12: assert when[n] >= 31
        elif TM and s == 13: assert when[n] >= 35
        elif s >= 3: assert when[n] >= seq.index((s - 3, tt))
    def issue_after(m, S=None):
        for n in range(56):
            if when[n] == m:
                if first[seq[n][0]] == n and S != seq[n][0]:
                    for x in a_off(seq[n][0]): A(x)
                ld_a(*seq[n])
    issue_after(-1)
    chk_at = {}
    for p in range(1, len(PH)):
        w = when[first[2*PH[p-1]]]; assert w >= 0
        chk_at[w // 4 if w != N0 - 1 else 'b'] = p
    asy_at = {}
    prev = 0
    for st_, p in sorted(chk_at.items(), key=lambda x: x[1]):
        st_ = N0//4 if st_ == 'b' else st_
        asy_at[max(prev, st_ - OPT['pa3'])] = p; prev = st_
    assert len(asy_at) == len(chk_at) == len(PH) - 1
    A(f's_add_u32 {sE[3]}, {sTag}, 4')
    G.done = G.n
    tokB = {k: 0 for k in range(8)}
    Q = []; X = []
    for k in B0.wleft: X += B.wo_list(k)
    sig = False
    wa, t, a, vm_ = [RS[0][i] for i in range(4)]; ra = [RS[0][4+i] for i in range(3)]; c = RS[0][8:12]; W = []
    tail = [f's_add_u32 {sT0}, {sLb2}, {Y0}', f'v_add_u32 {wa}, {sT0}, {v_l16}']
    for sg in range(1, 4):
        tail += [f's_sub_u32 {sT0}, {sWQ}, {sg}', f's_and_b32 {sT0}, {sT0}, 3', f's_lshl_b32 {sT0}, {sT0}, 12', f's_add_u32 {sT0}, {sT0}, {Y0 + 16384*(sg-1)}', f'v_add_u32 {ra[sg-1]}, {sT0}, {v_l16}']
    tail += [f'v_mov_b32 {c[0]}, {f2u(-LOG2E):#x}', f'v_mov_b32 {c[1]}, {c[0]}', f'v_mov_b32 {c[2]}, 1.0', f'v_mov_b32 {c[3]}, 1.0', f'v_add_u32 {a}, {sLb2}, {v_l16}', f'v_mov_b32 {vm_}, {L_TAG}', f'v_mov_b32 {t}, 1']
    def check(p):
        lk = A.lab('H2')
        G.all()
        A(f's_cmp_eq_u32 {sE[2]}, {sE[3]}\ns_cbranch_scc1 {lk}')
        A(f's_mov_b32 {sE[4]}, {sT0}\ns_mov_b32 {sE[5]}, {sT1}')
        spoll(A, f'{sF[1]} offset:{PHO[p]}', 4, OPT['slph'])
        A(f's_mov_b32 {sT0}, {sE[4]}\ns_mov_b32 {sT1}, {sE[5]}')
        A(f'{lk}:')
    nm_ = 0; wrdy = []
    for g in range(14):
        if OPT['lp2'] and g == OPT['lpr']: A('s_setprio 0')
        if OPT['lp2'] and g == OPT['lps' + typ]: A(f's_setprio {OPT["lp2"]}')
        def asy():
            A(f's_mov_b32 {sE[2]}, 0\ns_atomic_add {sE[2]}, {sWS[0:2]}, {sF[1]} offset:{PHO[asy_at[g]]} glc')
        if g in asy_at and chk_at.get(g) == asy_at[g]: asy()
        if g in chk_at: check(chk_at[g])
        if g in asy_at and chk_at.get(g) != asy_at[g]: asy()
        nx = 0
        for n in range(4*g, 4*g + 4):
            s, tt = seq[n]
            Bk = RS[RSL[s]]; Ak = abuf(s)
            G.need(tokB[LOAD.index(s)], 0)
            nxt = [m for m in range(56) if when[m] == n]
            Ss = seq[nxt[0]][0] if (len(nxt) == 1 and first[seq[nxt[0]][0]] == nxt[0]) else None
            S = a_off(Ss) if Ss is not None else []
            C.wait(tok[(s, tt)])
            if not sig and not X and tok[(s, tt)] > B.tokwo and (g == 0 or g > 4):
                if g == 0: A(f's_mov_b64 exec, 1\nds_add_u32 {pm}, {p1} offset:4\ns_mov_b64 exec, -1')
                else: A(f'v_mov_b32 {vb0}, {L_TAG}\nv_mov_b32 {vb1}, 1\ns_mov_b64 exec, 1\nds_add_u32 {vb0}, {vb1} offset:4\ns_mov_b64 exec, -1')
                G.n += 1; sig = True; stamph(A, 3)
            for q in range(4):
                qq = 3 - q if (OPT['snk'] and n & 1 and n < 44) else q
                ac = ACCL[16*tt+4*qq:16*tt+4*qq+4]
                A(f'v_mfma_f32_16x16x32_bf16 {ac}, {Bk[4*qq:4*qq+4]}, {Ak[4*tt:4*tt+4]}, {ac if s else 0}')
                nm_ += 1
                if S: A(S.pop(0))
                elif q == 1 and X and nx < (4 if g == 3 else OPT['wper']): X.pop(0)(); nx += 1
                if Q and q < 3:
                    tokB[qk] = G.ds(Q.pop(0))
                elif g >= 10 and tail: A(tail.pop(0))
                if s == 13 and tt:
                    W.append(f'ds_write_b128 {wa}, {ac} offset:{16384*(tt-1) + 1024*q}')
                    wrdy.append(max(nm_ + 4 + OPT['wdel'], (wrdy[-1] + OPT['wsp']) if wrdy and TM else 0))
                if W and nm_ >= wrdy[len(wrdy) - len(W)]:
                    assert not tail or tail[0].startswith('v_mov') or 'v_add' in tail[0] or True
                    A(W.pop(0))
            if n == N0 - 1:
                A(f'v_mov_b32 {abuf(s)[0]}, {L_TAG}')
                A(f's_mov_b32 {sE[4]}, {sT0}')
                lds_spin(A, abuf(s)[0], 8, 64, abuf(s)[1]); G.done = G.n
                A(f's_mov_b32 {sT0}, {sE[4]}')
                if 'b' in chk_at: check(chk_at['b'])
                stamph(A, 9)
            issue_after(n, Ss)
            if OPT['gs'] and when[OPT['gs']] == n:
                assert not X and g > 4
                A(f'v_mov_b32 {vb0}, {L_TAG}\n' + (f'v_lshlrev_b32_e64 {vb1}, {sWQ}, 1' if OPT['pwg'] else f'v_mov_b32 {vb1}, 1') + f'\ns_mov_b64 exec, 1\nds_add_u32 {vb0}, {vb1} offset:12\ns_mov_b64 exec, -1')
                G.n += 1; stamph(A, 4)
        s = g
        assert not Q
        if s in (0, 1, 3, 5, 7, 9, 11, 13): stampf(A, 1 + (s+1)//2)
        if OPT['stamp'] in (10, 11) and 0 <= s - 4*(OPT['stamp'] - 10) < 10: A(f's_memtime s[{74+2*(s - 4*(OPT["stamp"] - 10))}:{75+2*(s - 4*(OPT["stamp"] - 10))}]')
        if s == 2:
            while len(X) % 4: X.pop(0)()
            G.need(tokB[8]); X = B.dma_list(13, B.slot[8]) + X
        if s == 3:
            while len(X) % 4: X.pop(0)()
        if s + 8 < 13: qk = s + 8; Q = B.trl(qk)
        if s == 8:
            assert tok[(8, 3)] > B.tok[13]
            qk = 13; Q = B.trl(13)
    assert sig and not tail and not X
    stamph(A, 5)
    for x in W: A(x)
    stamp(A, 10); stamph(A, 6)
    if OPT['lpt']: A(f's_setprio {OPT["lpt"]}')
    A(f's_mov_b64 exec, 1\nds_add_u32 {vm_}, {t} offset:8\ns_mov_b64 exec, -1')
    lds_spin(A, vm_, 8, 68 if WO_ else 4, t, slp=0 if OPT['nsl'] & 1 else 1)
    stampf(A, 9); stamph(A, 7)
    for u in range(4):
        for sg in range(3): A(f'ds_read_b128 {RS[2+sg][4*u:4*u+4]}, {ra[sg]} offset:{1024*u}')
    P = ACCL[0:16]; e = ACCL[16:32]
    if OPT['npk']:
        for u in range(4):
            A(f's_waitcnt lgkmcnt({9 - 3*u + u})')
            L = []
            for i in range(4*u, 4*u+4):
                L += [f'v_add_f32 {P[i]}, {P[i]}, {RS[2][i]}', f'v_add_f32 {RS[3][i]}, {RS[3][i]}, {RS[4][i]}', f'v_add_f32 {P[i]}, {P[i]}, {RS[3][i]}',
                      ] + ([f'v_exp_f32 {e[i]}, {P[i]}', f'v_fma_f32 {e[i]}, {e[i]}, {c[0]}, {c[0]}'] if OPT['psc'] else [f'v_mul_f32 {e[i]}, {P[i]}, {c[0]}', f'v_exp_f32 {e[i]}, {e[i]}', f'v_add_f32 {e[i]}, 1.0, {e[i]}']) + [
                      f'v_rcp_f32 {e[i]}, {e[i]}', f'v_mul_f32 {e[i]}, {e[i]}, {P[i]}']
            L.append(f'ds_write_b128 {a}, {e[4*u:4*u+4]} offset:{X0 + 1024*u}')
            emit_sched(A, L)
        L = []
    else:
        for u in range(4):
            A(f's_waitcnt lgkmcnt({9 - 3*u})')
            for i in (2*u, 2*u+1):
                A(f'v_pk_add_f32 {P[2*i:2*i+2]}, {P[2*i:2*i+2]}, {RS[2][2*i:2*i+2]}\nv_pk_add_f32 {RS[3][2*i:2*i+2]}, {RS[3][2*i:2*i+2]}, {RS[4][2*i:2*i+2]}')
            for i in (2*u, 2*u+1): A(f'v_pk_add_f32 {P[2*i:2*i+2]}, {P[2*i:2*i+2]}, {RS[3][2*i:2*i+2]}')
        L = []
        for u in range(4):
            for i in (2*u, 2*u+1): L.append(f'v_pk_mul_f32 {e[2*i:2*i+2]}, {P[2*i:2*i+2]}, {c[0:2]}')
            for i in range(4*u, 4*u+4): L.append(f'v_exp_f32 {e[i]}, {e[i]}')
            for i in (2*u, 2*u+1): L.append(f'v_pk_add_f32 {e[2*i:2*i+2]}, {e[2*i:2*i+2]}, {c[2:4]}')
            for i in range(4*u, 4*u+4): L.append(f'v_rcp_f32 {e[i]}, {e[i]}')
            for i in (2*u, 2*u+1): L.append(f'v_pk_mul_f32 {e[2*i:2*i+2]}, {e[2*i:2*i+2]}, {P[2*i:2*i+2]}')
            L.append(f'ds_write_b128 {a}, {e[4*u:4*u+4]} offset:{X0 + 1024*u}')
    emit_sched(A, L)
    A('s_waitcnt lgkmcnt(0)')
    stamp(A, 8); stampf(A, 10); stamph(A, 8)
    A('s_setprio 0\ns_barrier')

def kernel(A):
    K = NAME + '_kernel'
    l = lane
    A(f'.globl {K}\n.p2align {OPT["pa"]}\n.type {K},@function\n{K}:')
    if OPT['stamp']: A(f's_memrealtime s[72:73]' if OPT['stamp'] in (1, 2, 9) else 's_memtime s[72:73]')
    A(f's_load_dwordx2 {sX[0:2]}, s[0:1], 0')
    A(f's_bitcmp1_b32 s2, 6\ns_cselect_b32 s7, 40, 8')
    A(f's_load_dwordx2 {sW[0:2]}, s[0:1], s7')
    A(f's_load_dwordx2 {sWS[0:2]}, s[0:1], 72')
    if OPT['warm']:
        A(f'v_lshlrev_b32 v2, {OPT["warm"]}, v0\ns_waitcnt lgkmcnt(0)')
        stampg(A, 1)
        A(f'global_load_dword v255, v2, {sX[0:2]}\nglobal_load_dword v255, v2, {sW[0:2]}')
    A(f's_movk_i32 {sLrow}, 3072\ns_cmovk_i32 {sLrow}, 3584\ns_movk_i32 {sWb}, 128\ns_cmovk_i32 {sWb}, 448\ns_cselect_b32 s3, 2, 0')
    A('s_lshr_b32 s4, s2, 8\ns_cbranch_scc1 K_done')
    rho, t, k = R('v',13,1), R('v',14,1), R('v',15,1)
    A(f'v_readfirstlane_b32 {sLb}, v0\ns_lshr_b32 s5, s2, 3')
    if OPT['touch'] & 1:
        A(f's_getpc_b64 s[6:7]\nL_pc:')
        A(f's_lshl_b32 s4, s5, 11\nv_lshl_add_u32 v2, v0, 2, s4\nv_min_u32 v2, K_done-L_pc, v2')
        A(f'global_load_dword v255, v2, s[6:7]')
    fx, fw = OPT['flip'] & 2, OPT['flip'] & 1
    sLx, sLw = sE[4], sE[5]
    A(f'v_lshrrev_b32 {t}, 4, v0\nv_xor_b32 {k}, {t}, v0\nv_and_b32 {k}, 7, {k}\nv_lshlrev_b32 {k}, 4, {k}\nv_lshrrev_b32 {rho}, 3, v0')
    A(f'v_lshl_add_u32 {vx0}, {rho}, 10, {k}')
    A(f's_and_b32 s4, s5, 7\ns_and_b32 s6, s2, 1\ns_lshl3_add_u32 {sI}, s6, s4\ns_lshr_b32 s6, s2, 6\ns_lshr_b32 s7, s2, 1')
    assert OPT['rot'] == 4
    if fx: A(f's_lshr_b32 s5, s2, 2\ns_and_b32 s5, s5, 1\ns_add_u32 s5, s5, s4\ns_lshl1_add_u32 s5, s6, s5')
    else: A(f's_add_u32 s5, s4, s6')
    A(f's_and_b32 s5, s5, 3\ns_xor_b32 {sRot}, s7, s2\ns_and_b32 {sRot}, {sRot}, 1\ns_lshl2_add_u32 {sRot}, {sRot}, s5')
    A(f's_and_b32 s7, s7, 3\ns_lshl2_add_u32 {sJJ}, s7, s6')
    b0 = phys(0)
    if OPT['ent']:
        assert not fx
        st0 = sHo
        A(f's_and_b32 {st0}, {sRot}, {4 if OPT["r3"] & 1 else 7}')
        A(f's_lshl_b32 {sXb}, {sI}, 17\ns_lshl_b32 {sXo}, {st0}, 7\ns_add_u32 {sXo}, {sXo}, {sXb}')
        A(f's_lshl_b32 {sX[2]}, 1, 21\ns_lshl_b32 {sX[3]}, 1, 17\ns_lshl_b32 {sLb}, {sLb}, 4')
        A(f'v_add_u32 {vx1}, 0x10000, {vx0}')
        if OPT['hs']:
            A(f'v_lshlrev_b32 {v_l16}, 4, v0\nv_and_b32 v9, 0xffffff00, {v_l16}\nv_mad_u32_u24 v9, v9, 3, {v_l16}')
            A(f's_lshr_b32 {sE[0]}, {sJJ}, 3\ns_lshl2_add_u32 {sE[0]}, {sE[0]}, s6\ns_lshl_b32 {sE[0]}, {sE[0]}, 14\ns_and_b32 s5, {sRot}, 4\ns_lshl_b32 s5, s5, 7\ns_add_u32 {sE[0]}, {sE[0]}, s5\ns_add_u32 {sE[0]}, {sE[0]}, {sXb}')
        else: A(f'v_lshlrev_b32 {v_l16}, 4, v0\nv_and_b32 v9, 0xfffffe00, {v_l16}\nv_add_u32 v9, v9, {v_l16}\ns_lshl_b32 {sE[0]}, {sJJ}, 13\ns_add_u32 {sE[0]}, {sE[0]}, {sXb}')
        A(f's_lshr_b32 {sJ}, {sJJ}, 1')
        A(f'v_bfi_b32 {k}, 2, {rho}, {t}\nv_and_b32 {k}, 6, {k}\nv_xor_b32 {k}, {k}, v0\nv_and_b32 {k}, 7, {k}\nv_lshlrev_b32 {k}, 4, {k}')
        if fw: A(f's_and_b32 s5, s2, 32\nv_xor_b32 {rho}, s5, {rho}\ns_lshl_b32 s5, s5, 7\ns_xor_b32 {sLw}, {sLb}, s5')
        else: A(f's_mov_b32 {sLw}, {sLb}')
        A(f'v_mad_u32_u24 {vw}, {rho}, {sLrow}, {k}')
        A(f's_mul_i32 {sWb}, {sWb}, {sJ}\ns_add_u32 {sWb}, {sWb}, 64\ns_and_b32 {sWb}, {sWb}, 0xffffff80')
        A(f's_lshl_b32 {sW[2]}, {sLrow}, 9\ns_mov_b32 {sW[3]}, {sX[3]}\ns_lshl_b32 {sT0}, {st0}, 6\ns_mul_i32 {sT0}, {sT0}, {sLrow}\ns_add_u32 {sWo}, {sT0}, {sWb}')
        A(f's_cmp_eq_u32 s3, 0\ns_cselect_b32 {sT0}, 10, 7\ns_lshl_b32 {sT0}, 1, {sT0}\ns_add_u32 {sE[3]}, {sWo}, {sT0}')
        A(f's_add_u32 {sLw}, {sLw}, {b0+24576}\ns_movk_i32 {sT1}, 8192')
        if OPT['r3'] & 4: A(f's_bitcmp1_b32 s2, 4\ns_cselect_b32 s5, -1, 1\ns_mul_i32 {sT0}, {sT0}, s5\ns_mul_i32 {sT1}, {sT1}, s5')
        A(f's_sub_u32 {sE[1]}, {sE[3]}, {sT0}\ns_add_u32 {sE[2]}, {sE[3]}, {sT0}\ns_lshr_b32 {sWV}, {sLb}, 10')
        xl = [f's_add_u32 m0, {sLb}, {b0}\ns_nop 0\nbuffer_load_dwordx4 {vx0}, {sX}, {sXo} offen lds', f's_add_u32 m0, {sLb}, {b0+8192}\ns_nop 0\nbuffer_load_dwordx4 {vx1}, {sX}, {sXo} offen lds']
        wl = [f's_sub_u32 m0, {sLw}, {sT1}\ns_nop 0\nbuffer_load_dwordx4 {vw}, {sW}, {sE[1]} offen lds', f's_mov_b32 m0, {sLw}\ns_nop 0\nbuffer_load_dwordx4 {vw}, {sW}, {sE[3]} offen lds',
              f's_add_u32 m0, {sLw}, {sT1}\ns_nop 0\nbuffer_load_dwordx4 {vw}, {sW}, {sE[2]} offen lds']
        xl = [x.replace(' lds', NT('ntx', 0) + ' lds') for x in xl]; wl = [x.replace(' lds', NT('ntw', 0) + ' lds') for x in wl]
        A(f's_cmp_ge_u32 {sLb}, 4096')
        stampg(A, 1)
        A('s_waitcnt lgkmcnt(0)')
        stampg(A, 2)
        A('s_cbranch_scc1 K_norow')
        A(f's_load_dword {sTag}, {sWS[0:2]}, {EPOCH}')
        A(f'buffer_load_dwordx4 {xrow[0:4]}, v9, {sX}, {sE[0]} offen{NT("ntr",0)}\nbuffer_load_dwordx4 {xrow[4:8]}, v9, {sX}, {sE[0]} offen offset:{256 if OPT["hs"] else 512}{NT("ntr",0)}')
        A('K_norow:')
        if OPT['r3'] & 2:
            A(f's_bitcmp1_b32 {sRot}, 0\ns_cbranch_scc1 K_wx')
            for x in xl + wl: A(x)
            A('s_branch K_xw\nK_wx:')
            for x in wl + xl: A(x)
            A('K_xw:')
        else:
            for x in xl + wl: A(x)
    else:
        A(f's_lshl_b32 {sXb}, {sI}, 17\ns_lshl_b32 {sXo}, {sRot}, 7\ns_add_u32 {sXo}, {sXo}, {sXb}')
        A(f's_lshl_b32 {sX[2]}, 1, 21\ns_lshl_b32 {sX[3]}, 1, 17\ns_lshl_b32 {sLb}, {sLb}, 4')
        if fx:
            A(f's_lshr_b32 s5, s2, 7\ns_lshl_b32 s7, s5, 15\nv_xor_b32 {vx0}, s7, {vx0}\ns_lshl_b32 s5, s5, 12\ns_xor_b32 {sLx}, {sLb}, s5')
        else: sLx = sLb
        A(f'v_add_u32 {vx1}, 0x10000, {vx0}\ns_add_u32 m0, {sLx}, {b0}')
        A(f'v_lshlrev_b32 {v_l16}, 4, v0\nv_and_b32 v9, 0xfffffe00, {v_l16}\nv_add_u32 v9, v9, {v_l16}\ns_lshl_b32 {sE[0]}, {sJJ}, 13\ns_add_u32 {sE[0]}, {sE[0]}, {sXb}')
        A(f's_cmp_ge_u32 {sLb}, 4096')
        if not OPT['warm']: stampg(A, 1)
        A('s_waitcnt lgkmcnt(0)')
        stampg(A, 2)
        A('s_cbranch_scc1 K_norow')
        A(f's_load_dword {sTag}, {sWS[0:2]}, {EPOCH}')
        A(f'buffer_load_dwordx4 {xrow[0:4]}, v9, {sX}, {sE[0]} offen\nbuffer_load_dwordx4 {xrow[4:8]}, v9, {sX}, {sE[0]} offen offset:512')
        A('K_norow:')
        A(f'buffer_load_dwordx4 {vx0}, {sX}, {sXo} offen lds')
        A(f's_add_u32 m0, {sLx}, {b0+8192}\ns_lshr_b32 {sJ}, {sJJ}, 1\nbuffer_load_dwordx4 {vx1}, {sX}, {sXo} offen lds')
        A(f'v_bfi_b32 {k}, 2, {rho}, {t}\nv_and_b32 {k}, 6, {k}\nv_xor_b32 {k}, {k}, v0\nv_and_b32 {k}, 7, {k}\nv_lshlrev_b32 {k}, 4, {k}')
        if fw: A(f's_and_b32 s5, s2, 32\nv_xor_b32 {rho}, s5, {rho}\ns_lshl_b32 s5, s5, 7\ns_xor_b32 {sLw}, {sLb}, s5')
        else: sLw = sLb
        A(f'v_mad_u32_u24 {vw}, {rho}, {sLrow}, {k}')
        A(f's_mul_i32 {sWb}, {sWb}, {sJ}\ns_add_u32 {sWb}, {sWb}, 64\ns_and_b32 {sWb}, {sWb}, 0xffffff80')
        A(f's_lshl_b32 {sW[2]}, {sLrow}, 9\ns_mov_b32 {sW[3]}, {sX[3]}\ns_lshl_b32 {sT0}, {sRot}, 6\ns_mul_i32 {sT0}, {sT0}, {sLrow}\ns_add_u32 {sWo}, {sT0}, {sWb}')
        A(f's_add_u32 m0, {sLw}, {b0+16384}\ns_cmp_eq_u32 s3, 0\nbuffer_load_dwordx4 {vw}, {sW}, {sWo} offen lds')
        A(f's_cselect_b32 {sE[2]}, 10, 7\ns_lshl_b32 {sE[2]}, 1, {sE[2]}\ns_add_u32 {sE[3]}, {sWo}, {sE[2]}')
        A(f's_add_u32 m0, {sLw}, {b0+24576}\ns_add_u32 {sE[2]}, {sE[3]}, {sE[2]}\nbuffer_load_dwordx4 {vw}, {sW}, {sE[3]} offen lds')
        A(f's_add_u32 m0, {sLw}, {b0+32768}\ns_lshr_b32 {sWV}, {sLb}, 10\nbuffer_load_dwordx4 {vw}, {sW}, {sE[2]} offen lds')
    A(f'v_and_b32 v1, 63, v0\nv_lshlrev_b32 {v_l16}, 4, v1')
    if OPT['stamp']:
        for i in range(3 if OPT['stamp'] == 7 else 1, NS): A(f's_mov_b64 s[{72+2*i}:{73+2*i}], 0')
    A(f's_lshl_b32 {sWS[2]}, 1, 24\ns_mov_b32 {sWS[3]}, {sX[3]}')
    A(f's_and_b32 {sWQ}, {sWV}, 3\ns_lshr_b32 s4, {sWV}, 2\ns_add_u32 s3, s3, s4')
    stampg(A, 3)
    A('s_cmp_eq_u32 s3, 1\ns_cbranch_scc1 K_LA\ns_cmp_eq_u32 s3, 0\ns_cbranch_scc1 K_CA\ns_cmp_eq_u32 s3, 2\ns_cbranch_scc1 K_CF')
    Bs = []
    for typ in 'FA':
        A(f'K_L{typ}:')
        Bs.append(LW(A, typ).run())
        p2_L(A, Bs[-1], typ); A('s_branch K_end')
    A('K_CF:')
    c = CW(A, 'F'); c.prologue(); c.main(); c.epi_F()
    A('s_branch K_C2')
    A('K_CA:')
    c = CW(A, 'A'); c.prologue(); c.main(); c.epi_A()
    A('K_C2:')
    p2_C(A)
    A('K_end:')
    stamp_out(A)
    A('K_done:\ns_endpgm')

def add_stubs(body):
    dummy = [f'WS_{t}{c}:' for t in 'FA' for c in range(4)]
    S = sizes_of(body + dummy)
    reg = None; off = 0x300; n = 0; page = 0
    marks = []; nb = {}
    for k, l in enumerate(body):
        if l.endswith(':'):
            if l[:-1] in ('K_LF', 'K_LA', 'K_CF', 'K_CA', 'K_C2', 'K_end'):
                reg = l[2:-1] if l != 'K_end:' else None
                if reg == 'C2': marks.append((k + 1, reg)); off += 8
                if reg == 'LA' and OPT['ia']:
                    body[k] = '.p2align 12\n' + l; off = (off + 4095) & ~4095; page = off >> 10
            continue
        if l.startswith('.'): continue
        if l == 's_barrier': nb[reg] = nb.get(reg, 0) + 1
        fine = reg and ((OPT['stub'] >= 2 and reg in ('CF', 'CA') and 1 <= nb.get(reg, 0) < OPT['stbe']) or (OPT['stub'] >= 3 and reg[0] == 'L' and 1 <= nb.get(reg, 0) < 9))
        if off >> 10 != page:
            pg = off >> 12 != page >> 2
            page = off >> 10
            if reg and (pg or fine) and (reg == 'C2' or nb.get(reg, 0) >= 1): marks.append((k, reg)); off += 8
        off += S[n]; n += 1
    lst = {r: [k for k, rr in marks if rr == r] for r in ('LF', 'LA', 'CF', 'CA', 'C2')}
    print('stubs', {r: len(v) for r, v in lst.items()})
    ins = {}
    for k in lst['C2']: ins[k] = [f'WS_{k}:', 's_cbranch_execz K_wret', 's_nop 0']
    for t in 'FA':
        own = lst['C' + t] + lst['L' + t]
        ch = [own[c::4] for c in range(4)]
        for i, k in enumerate(lst['C2']): ch[3 - i].append(k)
        for c in range(4):
            for i, k in enumerate(ch[c]):
                if k not in ins: ins[k] = [f'WS_{k}:', f's_cbranch_execz ' + (f'WS_{ch[c][i+1]}' if i + 1 < len(ch[c]) else f'WR_{t}'), 's_nop 0']
            ins[ch[c][0]].insert(0, f'WS_{t}{c}:')
    out = []
    for k, l in enumerate(body):
        out += ins.get(k, []); out.append(l)
    z = False
    for l in out:
        if l == 's_mov_b64 exec, 0': z = True
        elif l.startswith('s_mov_b64 exec'): z = False
        assert not (z and 'execz' in l)
    return out
def build():
    A = Asm(); kernel(A)
    body = fix_hazards(A.L, verbose=True)
    dummy = [f'WS_{t}{c}:' for t in 'FA' for c in range(4)] if OPT['stub'] else []
    if OPT['al']: body = align8(body + dummy, verbose=True)
    if OPT['stub']: body = add_stubs(body[:-8])
    K = NAME + '_kernel'
    hdr = ['; @launch grid=(256,1,1) block=(512,1,1) lds=163840', '.amdgcn_target "amdgcn-amd-amdhsa--gfx950"', '.text']
    tail = ['.section .rodata,"a"', '.p2align 6', f'''.amdhsa_kernel {K}
  .amdhsa_next_free_vgpr 256
  .amdhsa_next_free_sgpr 102
  .amdhsa_accum_offset 256
  .amdhsa_group_segment_fixed_size 0
  .amdhsa_kernarg_size 80
  .amdhsa_user_sgpr_count 2
  .amdhsa_user_sgpr_kernarg_segment_ptr 1
  .amdhsa_system_sgpr_workgroup_id_x 1
.end_amdhsa_kernel''']
    return '\n'.join(hdr + body + tail) + '\n'
if __name__ == '__main__':
    open(sys.argv[1], 'w').write(build())
```

```python
import sys, struct
from asmlib import *
NAME = 'recurrent_scan__linear_kernel_hedgehog__dense_activation_silu__prompt'
SZ_X, SZ_QKV, SZ_PHI, SZ_WO, SZ_W1, SZ_W2, SZ_OUT, SZ_WS = 2048*512*2, 512*1536*2, 32*16*16*2, 512*512*2, 512*1792*2, 1792*512*2, 2048*512*2, 0x1000000
EPOCH, STAT, KT, CSP, CNT, ACT, KP = 0, 0x30000, 0x10000, 0x40000, 0x80000, 0x100000, 0xB00000
OOB = 0x40000000
SB = 45056
def phys(s): return (2 - s % 3) * SB
X0, X1, WOB, Y0, Y1, TS, MISC = 0, 16384, 32768, 102400, 118784, 135168, 151552
L_NM, L_RL, L_R, L_CS, L_TAG = MISC, MISC+512, MISC+1024, MISC+1536, MISC+2560
L_SG, L_PHI = MISC+2624, MISC+4096
JUNK = MISC + 8192
LOG2E = 1.4426950408889634
def f2u(x): return struct.unpack('<I', struct.pack('<f', x))[0]
OPT = dict(stamp=0, touch=33, spin=1<<16, slp=2, hold=3, keep=8, nmA=0, nmF=0, n6A=2, n7A=2, n6F=2, n7F=2, sp0=6, wob=4, wobA=4, tlA=0, tlF=0, gat=5, chk=7, opoll=0, lprio=1, brot=1, npre=9, vmgap=64, dbg=0, hst=0, rot=4, lord=4, r2=0, j3=0, c3=6, flip=1, warm=0, qf=0, tk=1, pk=0, spm=3, stk=1, q6A=4, q7A=8, q6F=12, q7F=8, sp1=99, laA=10, laF=11, wdel=2, lag=3, wolA=0, wolF=2, wper=4, cprio=0, opk=1, depA=7, depF=8, al=1, ack1=0, ack2=0, slpa=0, slph=2, slpo=4, ost=1, hld=0, old=0, j3k=1, j3p=0, st='0000000', stl=0, stcp=0, sti=0, c3F=0, ph0=0, stub=1, stc=0, sc3=0, pa=12, ia=1, stbe=9, kva=1, lp2=2, xr=0, ph=2467, pa3=3, gs=55, ah=3, ahA=8, pwg=1, lr=0, xu=1, hs=0, psc=1, nsl=5, splA='66ffff', splF='66ffff', t64=1, tfl=0, wfl=0, snk=1, holdF=2, lpr=14, lpt=2, lpsA=8, lpsF=3, wo=0, snt=0, eo=1, la0=4, ns0=0, tm=1, wsp=3, npk=1, r3=7, ent=1, e1=5, sw=1, sk=6, tto=0, qa=2, qb=1, Rk=1, Dk=0, Ro=1, Do=0, Rh=1, Dh=0, psl=5, ntx=0, ntw=0, ntr=0, ntf=1, xm=0, w2h=99, ntp=1, x2h=99, a2A=0, a2F=11, b3=0, w6=0, sh=0)
for a in sys.argv[2:]:
    k, v = a.split('='); assert k in OPT, k; OPT[k] = v if k in ('st', 'splA', 'splF') else int(v)

sX, sW, sWS, sPHI, sW2, sOUT, sWO = [R('s', 8+4*i, 4) for i in range(7)]
(sI, sJ, sWV, sWQ, sRot, sT0, sT1, sXo, sWo, sHo, sXb, sWb, sHb, sLb, sTag, sSpin,
 sI2, sJ2, sCur, sCurA, sBb, sAb, sLb2, sJJ, sLrow, sTB1, sTB2, sTB3) = [R('s', 36+i, 1) for i in range(28)]
sTB = [sTag, sTB1, sTB2, sTB3]
sM2 = R('s', 64, 2)
sE = [R('s', 66+i, 1) for i in range(6)]
NS = 12
sSel = [R('s', 96, 1), R('s', 97, 1)]; sF = [R('s', 98+i, 1) for i in range(4)]
lane = R('v', 1, 1)
v_l16 = R('v', 3, 1)
vx0, vx1, vw = R('v', 10, 1), R('v', 11, 1), R('v', 12, 1)
xrow = R('v', 240, 8)

class Ctx:
    def __init__(self, A): self.A = A; self.n = 0
    def vm(self, s):
        self.A(s); self.n += 1; return self.n
    def wait(self, tok, extra=''):
        k = min(self.n - tok, 63); assert k >= 0
        self.A(f's_waitcnt vmcnt({k}) {extra}'.strip())
class LG:
    def __init__(self, A): self.A = A; self.n = 0; self.done = 0
    def ds(self, s):
        self.A(s); self.n += 1; return self.n
    def need(self, tok, keep=None):
        if tok <= self.done: return
        k = min(self.n - tok, OPT['keep'] if keep is None else keep, 15)
        self.A(f's_waitcnt lgkmcnt({k})'); self.done = self.n - k
    def all(self):
        self.A('s_waitcnt lgkmcnt(0)'); self.done = self.n
def stamp(A, i):
    if OPT['stamp'] == 9:
        A(f's_memrealtime s[{72+2*i}:{73+2*i}]'); return
    if OPT['stamp'] == 3: A(f's_memtime s[{72+2*i}:{73+2*i}]')
    elif OPT['stamp'] == 1 or (OPT['stamp'] and i == NS-1): A(f's_memrealtime s[{72+2*i}:{73+2*i}]')
def stampb(A, i):
    if OPT['stamp'] == 4: A(f's_memtime s[{72+2*i}:{73+2*i}]')
def stampe(A, i):
    if OPT['stamp'] == 5 and i < 11: A(f's_memtime s[{72+2*i}:{73+2*i}]')
def stampf(A, i):
    if OPT['stamp'] == 6 and i < 11: A(f's_memtime s[{72+2*i}:{73+2*i}]')
def stampg(A, i):
    if OPT['stamp'] == 7 and i < 11: A(f's_memtime s[{72+2*i}:{73+2*i}]')
def stamph(A, i):
    if OPT['stamp'] == 8 and i < 11: A(f's_memtime s[{72+2*i}:{73+2*i}]')
def stampc(A, i):
    if OPT['stamp'] == 2: A(f's_memtime s[{72+2*i}:{73+2*i}]')
def stamp_out(A):
    if not OPT['stamp']: return
    A(f's_waitcnt vmcnt(0)')
    stamp(A, NS-1)
    A('s_waitcnt lgkmcnt(0)')
    if OPT['stamp'] == 9:
        A('s_load_dwordx2 s[4:5], s[0:1], 64\ns_waitcnt lgkmcnt(0)')
        for i in range(NS): A(f's_atomic_umax s{72+2*i}, s[4:5], {4*i}')
        A('s_not_b32 s72, s72\ns_atomic_umax s72, s[4:5], 48\ns_waitcnt lgkmcnt(0)')
        return
    A(f's_lshl_b32 s4, s2, 3\ns_add_u32 s4, s4, {sWV}\ns_lshl_b32 s4, s4, 7\ns_add_u32 s4, s4, {15*1024*1024}')
    A(f'v_lshlrev_b32 v2, 26, v1')
    for i in range(NS):
        A(f'v_mov_b32 v4, s{72+2*i}\nv_mov_b32 v5, s{73+2*i}\nbuffer_store_dwordx2 v[4:5], v2, {sWS}, s4 offen offset:{8*i}')
    A(f's_getreg_b32 s5, hwreg(HW_REG_XCC_ID)\ns_getreg_b32 s6, hwreg(HW_REG_HW_ID)\nv_mov_b32 v4, s5\nv_mov_b32 v5, s6\nbuffer_store_dwordx2 v[4:5], v2, {sWS}, s4 offen offset:96')
def srd(A, s, off, size):
    A(f's_load_dwordx2 {s[0:2]}, s[0:1], {off}\ns_mov_b32 {s[2]}, {size}\ns_mov_b32 {s[3]}, 0x20000')
def dpp_add(v, m): return f'v_add_f32_dpp {v}, {v}, {v} {m} row_mask:0xf bank_mask:0xf'
def emit_sched(A, L, name='', **kw):
    out, t, nops = sched(L, **kw)
    if name: print(f'  sched {name}: {len(out)} instrs, est {t} clk, nops {nops}')
    for x in out: A(x)
def poll(A, ld, check, first_loaded=False, sleep=1, mask_exec=False):
    l0, l1, l2 = A.lab('PL'), A.lab('PC'), A.lab('PD')
    A(f's_mov_b32 {sSpin}, {OPT["spin"]}')
    if first_loaded: A(f's_branch {l1}')
    A(f'{l0}:'); A(ld); A('s_waitcnt vmcnt(0)')
    if mask_exec: A('s_mov_b64 exec, -1')
    A(f'{l1}:')
    check()
    A(f's_cbranch_scc0 {l2}')
    if sleep: A(f's_sleep {sleep}')
    if mask_exec: A('s_mov_b64 exec, s[4:5]')
    A(f's_sub_u32 {sSpin}, {sSpin}, 1\ns_cbranch_scc0 {l0}')
    if mask_exec: A('s_mov_b64 exec, -1')
    A(f'{l2}:')
def chk_words(A, regs, tmp):
    def f():
        if len(regs) == 1: A(f'v_cmp_ne_u32 vcc, {sTag}, {regs[0]}')
        else:
            np_ = len(regs)//2
            for i in range(np_): A(f'v_bitop3_b32 {tmp[i]}, {regs[2*i]}, {regs[2*i+1]}, {sTag} bitop3:0x7e')
            i = 1
            while i < np_:
                if i + 1 < np_: A(f'v_or3_b32 {tmp[0]}, {tmp[0]}, {tmp[i]}, {tmp[i+1]}'); i += 2
                else: A(f'v_or_b32 {tmp[0]}, {tmp[0]}, {tmp[i]}'); i += 1
            A(f'v_cmp_ne_u32 vcc, 0, {tmp[0]}')
        A(f's_and_b64 s[4:5], vcc, exec')
    return f
def spoll(A, so, n, sleep):
    l0, l1 = A.lab('SP'), A.lab('SD')
    A(f's_add_u32 {sT1}, {sTag}, {n}\ns_mov_b32 {sSpin}, {OPT["spin"]}')
    A(f'{l0}:\ns_mov_b32 {sT0}, 0\ns_atomic_add {sT0}, {sWS[0:2]}, {so} glc\ns_waitcnt lgkmcnt(0)\ns_cmp_eq_u32 {sT0}, {sT1}\ns_cbranch_scc1 {l1}')
    if sleep: A(f's_sleep {sleep}')
    A(f's_sub_u32 {sSpin}, {sSpin}, 1\ns_cbranch_scc0 {l0}\n{l1}:')
def ppoll_pre(A, so, D, base, clear=True):
    if not D: return
    if clear:
        A('s_waitcnt lgkmcnt(0)')
        for d in range(D): A(f's_mov_b32 s{base+2*d}, {sTag}\ns_sub_u32 s{base+2*d+1}, {sTag}, 1')
def ppoll(A, so, n, D, base, sleep, pre=True):
    if not D: return spoll(A, so, n, sleep)
    l0, l1 = A.lab('PP'), A.lab('PQ')
    ppoll_pre(A, so, D, base, pre)
    A(f's_add_u32 {sT1}, {sTag}, {n}\ns_mov_b32 {sSpin}, {OPT["spin"]}')
    at = lambda d: f's_atomic_cmpswap s[{base+2*d}:{base+2*d+1}], {sWS[0:2]}, {so} glc'
    for d in range(1, D): A(at(d) + f'\ns_sleep {2*OPT["psl"]//D}')
    A(f'{l0}:')
    for d in range(D):
        A(at(d) + f'\ns_waitcnt lgkmcnt({D-1})\ns_cmp_eq_u32 s{base + 2*((d+1) % D)}, {sT1}\ns_cbranch_scc1 {l1}')
    A(f's_sub_u32 {sSpin}, {sSpin}, 1\ns_cbranch_scc0 {l0}\n{l1}:')
def sarrive(A, *sos):
    A(f's_waitcnt vmcnt(0)')
    for so in sos: A(f's_atomic_add {sLrow}, {sWS[0:2]}, {so}')
def cnt_i2(A, d, i2, extra):
    A(f's_lshr_b32 {d}, {i2}, 1\ns_lshl_b32 {d}, {d}, 14\ns_and_b32 s4, {i2}, 1\ns_lshl_b32 s4, s4, 11\ns_add_u32 {d}, {d}, s4\ns_add_u32 {d}, {d}, {CNT + extra}')
def quad_diff(A, q, d, t):
    A(f'v_perm_b32 {d}, {q[1]}, {q[0]}, {sSel[0]}\nv_perm_b32 {t}, {q[3]}, {q[2]}, {sSel[1]}\nv_bitop3_b32 {d}, {d}, {t}, {sTag} bitop3:0x96')
def tag_consts(A):
    A(f's_lshr_b32 {sTB1}, {sTag}, 8\ns_lshr_b32 {sTB2}, {sTag}, 16\ns_lshr_b32 {sTB3}, {sTag}, 24')
    A(f's_mov_b32 {sSel[0]}, 0x0c0c0400\ns_mov_b32 {sSel[1]}, 0x04000c0c')
def tag_quad(q, ff): return [f'v_bfi_b32 {q[k]}, {ff}, {sTB[k]}, {q[k]}' for k in range(4)]
def lds_spin(A, va, off, n, vt, mask=False, slp=1):
    l0, l1 = A.lab('LS'), A.lab('LD')
    A(f's_mov_b32 {sSpin}, {OPT["spin"]*4}')
    A(f'{l0}:\nds_read_b32 {vt}, {va} offset:{off}\ns_waitcnt lgkmcnt(0)\nv_readfirstlane_b32 {sT0}, {vt}\n' + (f's_and_b32 {sT0}, {sT0}, {n}\n' if mask else '') + f's_cmp_ge_u32 {sT0}, {n}\ns_cbranch_scc1 {l1}')
    if slp: A(f's_sleep {slp}')
    A(f's_sub_u32 {sSpin}, {sSpin}, 1\ns_cbranch_scc0 {l0}\n{l1}:')
def lds_inc(A, va, off, vt):
    A(f'v_mov_b32 {vt}, 1\ns_mov_b64 exec, 1\nds_add_u32 {va}, {vt} offset:{off}\ns_mov_b64 exec, -1')
def p2_ids(A):
    A(f's_and_b32 s4, s2, 7\ns_lshr_b32 s5, s2, 3')
    if OPT['xm']: A(f's_lshl_b32 s4, s4, 2\ns_lshr_b32 s4, {[0, 0x73625140, 0x37261504][OPT["xm"]]:#x}, s4\ns_and_b32 s4, s4, 7')
    if OPT['sw']:
        A(f's_and_b32 s6, s5, 15\ns_lshr_b32 s6, 0x880, s6\ns_and_b32 s6, s6, 1\ns_mul_i32 s6, s6, 12\ns_xor_b32 s5, s5, s6')
    A(f's_lshl_b32 s4, s4, 2\ns_lshr_b32 s6, s5, 3\ns_add_u32 {sI2}, s4, s6\ns_and_b32 {sJ2}, s5, 7')
def tr_addr(A, vab, base, t0, t1):
    l = lane
    A(f'v_lshrrev_b32 {t0}, 2, {l}\nv_lshlrev_b32 {t0}, 7, {t0}\nv_and_b32 {t1}, 3, {l}\nv_lshl_add_u32 {t0}, {t1}, 3, {t0}\nv_add_u32 {t0}, {base}, {t0}')
    A(f'v_bfe_u32 {t1}, {l}, 3, 2')
    for q in range(4):
        A(f'v_xor_b32 {vab[q]}, {q}, {t1}\nv_lshl_add_u32 {vab[q]}, {vab[q]}, 5, {t0}')

def stouch(A, lo, hi, junk='s3'):
    if lo < min(hi, 36): A(f's_lshl2_add_u32 s6, s2, {sWQ}\ns_lshl_b32 s7, s6, 9\ns_mul_i32 s6, s6, 1792')
    for i in range(lo, min(hi, 72 if OPT['sc3'] else 36)):
        if i == max(lo, 36): A(f's_lshr_b32 s6, s2, 3\ns_lshl2_add_u32 s6, s6, {sWQ}\ns_lshl_b32 s7, s6, 12\ns_mul_i32 s6, s6, {14*1024}')
        if i < 28: A(f's_load_dword {junk}, {sW2[0:2]}, s6 offset:{64*i}')
        elif i < 36: A(f's_load_dword {junk}, {sWO[0:2]}, s7 offset:{64*(i-28)}')
        elif i < 64: A(f's_load_dword {junk}, {sW2[0:2]}, s6 offset:{(i-36)//2*1024 + 384 + 64*(i & 1)}')
        else: A(f's_load_dword {junk}, {sWO[0:2]}, s7 offset:{(i-64)//2*1024 + 384 + 64*(i & 1)}')
class CW:
    def __init__(self, A, typ):
        self.A = A; self.typ = typ
        self.C = Ctx(A); self.G = LG(A)
        self.V = Pool('v', 4, 256); self.V.at(9, 4); self.V.at(240, 16)
    def prologue(self):
        A, V, C, l, typ = self.A, self.V, self.C, lane, self.typ
        C.n = 7; tk_row = 2; self.tk0 = 7
        F = typ == 'F'
        srd(A, sOUT, 56, SZ_OUT)
        if OPT['stc']: A(f's_load_dwordx2 {sW2[0:2]}, s[0:1], 48')
        if not F: self.aphi = V.alloc(4, 4)
        self.ax = [V.alloc(), V.alloc()]
        T64 = F and OPT['t64']
        self.aw = [V.alloc() for _ in range(3 if T64 else 6 if F else 1)]
        t, g, t0, t1, f = [R('v', 232+i, 1) for i in range(5)]
        b0 = phys(0)
        A(f'v_and_b32 {t}, 15, {l}\nv_lshrrev_b32 {g}, 4, {l}')
        A(f'v_lshrrev_b32 {t0}, 1, {t}\nv_xor_b32 {t0}, {t0}, {g}\nv_lshlrev_b32 {t0}, 4, {t0}\nv_lshl_add_u32 {t0}, {t}, 7, {t0}')
        if T64: A(f's_lshr_b32 {sT0}, {sWQ}, 1\ns_lshl_b32 {sT0}, {sT0}, 13\nv_add_u32 {t0}, {sT0}, {t0}')
        elif F: A(f's_lshl_b32 {sT0}, {sWQ}, 12\nv_add_u32 {t0}, {sT0}, {t0}')
        A(f'v_add_u32 {self.ax[0]}, {b0}, {t0}\nv_xor_b32 {t0}, 64, {t0}\nv_add_u32 {self.ax[1]}, {b0}, {t0}')
        A(f'v_lshrrev_b32 {f}, 3, {t}\nv_and_b32 {t0}, 1, {g}\nv_lshl_or_b32 {f}, {t0}, 1, {f}')
        A(f'v_lshrrev_b32 {t0}, 2, {t}\nv_lshlrev_b32 {t0}, 7, {t0}\nv_lshl_add_u32 {t0}, {g}, 10, {t0}\nv_and_b32 {t1}, 3, {t}\nv_lshl_add_u32 {t0}, {t1}, 3, {t0}\nv_add_u32 {t0}, {b0+16384}, {t0}')
        if not F:
            A(f'v_xor_b32 {t1}, {sWQ}, {f}\nv_lshl_add_u32 {self.aw[0]}, {t1}, 5, {t0}')
        else:
            if T64:
                A(f's_and_b32 {sT1}, {sWQ}, 1\ns_lshl_b32 {sT0}, {sT1}, 1\nv_xor_b32 {t1}, {sT0}, {f}\nv_lshl_add_u32 {self.aw[0]}, {t1}, 5, {t0}\nv_xor_b32 {t1}, 1, {t1}\nv_lshl_add_u32 {self.aw[1]}, {t1}, 5, {t0}')
            else:
                for q in range(4): A(f'v_xor_b32 {t1}, {q}, {f}\nv_lshl_add_u32 {self.aw[q]}, {t1}, 5, {t0}')
            A(f'v_lshrrev_b32 {t0}, 2, {t}\nv_lshlrev_b32 {t0}, 6, {t0}\nv_lshl_add_u32 {t0}, {g}, 9, {t0}\nv_and_b32 {t1}, 3, {t}\nv_lshl_add_u32 {t0}, {t1}, 3, {t0}\nv_add_u32 {t0}, {b0+16384}, {t0}')
            A(f'v_and_b32 {f}, 1, {g}')
            if T64: A(f'v_xor_b32 {t1}, {sT1}, {f}\nv_lshl_add_u32 {self.aw[2]}, {t1}, 5, {t0}')
            else:
                for q in range(2): A(f'v_xor_b32 {t1}, {q}, {f}\nv_lshl_add_u32 {self.aw[4+q]}, {t1}, 5, {t0}')
        A(f's_lshl_b32 {sT0}, {sI}, 4\ns_add_u32 {sT0}, {sT0}, {sJJ}\ns_lshl2_add_u32 {sT0}, {sT0}, {sWQ}\ns_lshl_b32 {sT0}, {sT0}, 8\ns_add_u32 {sT0}, {sT0}, {CNT}')
        stampg(A, 4)
        A('s_waitcnt lgkmcnt(0)')
        stampg(A, 5)
        A(f's_mul_i32 {sTag}, {sTag}, 0x9E3779B1\ns_add_u32 {sTag}, {sTag}, 0x7F4A7C15\ns_mov_b32 {sSpin}, {sTag}')
        A(f's_atomic_swap {sSpin}, {sWS[0:2]}, {sT0} glc')
        if OPT['Rh'] > 1 or len(PH) > 2: A(f's_mov_b32 {sCurA}, {sTag}\ns_atomic_swap {sCurA}, {sWS[0:2]}, {sT0} offset:128 glc')
        if OPT['stcp'] == 0: stouch(A, 0, OPT['stc'], sCur)
        p2_ids(A)
        if not F: self.consts_A()
        tag_consts(A)
        A(f's_mov_b32 {sLrow}, 1')
        V.release(R('v', 240, 16), R('v', 9, 4))
        self.tk_row = tk_row
    def stats(self):
        A, C, l, tk_row = self.A, self.C, lane, self.tk_row
        x = R('v', 216, 16); o = R('v', 248, 4); t = R('v', 252, 1); ad = R('v', 253, 1); u = R('v', 254, 1)
        HS = OPT['hs']
        A(f's_lshl_b32 {sT0}, {sWQ}, {4 + HS}\ns_add_u32 {sT0}, {sT0}, {L_SG}\nv_lshrrev_b32 {ad}, {5 - HS}, {l}\nv_lshl_add_u32 {ad}, {ad}, 3, {sT0}')
        z = R('v', 232, 4)
        A(f'v_mov_b32 {u}, {L_TAG}\nv_mov_b32 {z[0]}, {sTag}\nv_mov_b32 {z[1]}, 0\nv_mov_b32 {z[2]}, 0\nv_mov_b32 {z[3]}, 0\nds_write_b128 {u}, {z}')
        stampg(A, 6)
        if OPT['stcp'] == 1: stouch(A, 0, OPT['stc'], sCur)
        C.wait(tk_row)
        stampg(A, 7)
        for i in range(8): A(f'v_lshlrev_b32 {x[2*i]}, 16, {xrow[i]}\nv_and_b32 {x[2*i+1]}, 0xffff0000, {xrow[i]}')
        y = xrow
        for i in range(4): A(f'v_pk_add_f32 {y[2*i:2*i+2]}, {x[4*i:4*i+2]}, {x[4*i+2:4*i+4]}')
        A(f'v_pk_add_f32 {y[0:2]}, {y[0:2]}, {y[2:4]}\nv_pk_add_f32 {y[4:6]}, {y[4:6]}, {y[6:8]}\nv_pk_add_f32 {y[0:2]}, {y[0:2]}, {y[4:6]}\nv_add_f32 {o[0]}, {y[0]}, {y[1]}')
        def hsum(v):
            for m in ('quad_perm:[1,0,3,2]', 'quad_perm:[2,3,0,1]', 'row_half_mirror', 'row_mirror'): A(dpp_add(v, m))
            if not HS: A(f'v_mov_b32 {t}, {v}\nv_permlane16_swap_b32 {v}, {t}\nv_add_f32 {v}, {v}, {t}')
        hsum(o[0])
        A(f'v_mul_f32 {o[0]}, {f2u(1/256 if HS else 1/512):#x}, {o[0]}')
        for i in range(16): A(f'v_sub_f32 {x[i]}, {x[i]}, {o[0]}')
        A(f'v_pk_mul_f32 {y[0:2]}, {x[0:2]}, {x[0:2]}\nv_pk_mul_f32 {y[2:4]}, {x[2:4]}, {x[2:4]}')
        for i in range(2, 8): A(f'v_pk_fma_f32 {y[2*(i&1):2*(i&1)+2]}, {x[2*i:2*i+2]}, {x[2*i:2*i+2]}, {y[2*(i&1):2*(i&1)+2]}')
        A(f'v_pk_add_f32 {y[0:2]}, {y[0:2]}, {y[2:4]}\nv_add_f32 {o[2]}, {y[0]}, {y[1]}')
        hsum(o[2])
        if HS: A(f'v_mov_b32 {o[1]}, {o[2]}')
        else: A(f'v_mov_b32 {o[1]}, {f2u(1e-5):#x}\nv_fmac_f32 {o[1]}, {f2u(1/512):#x}, {o[2]}\nv_rsq_f32 {o[1]}, {o[1]}')
        stampg(A, 8)
        A(f'ds_write_b64 {ad}, {o[0:2]}')
    def consts_A(self):
        A, V, l = self.A, self.V, lane
        t0, t1, val, key = [R('v', 232+i, 1) for i in range(4)]
        self.sel16 = V.alloc(16, 4)
        self.bsel = [self.sel16[0:4], self.sel16[4:8]]; self.zsel = [self.sel16[8:12], self.sel16[12:16]]
        A(f'v_and_b32 {t1}, 1, {l}\nv_lshlrev_b32 {t1}, 4, {t1}\nv_mov_b32 {val}, 0x3f80\nv_lshlrev_b32 {val}, {t1}, {val}')
        A(f'v_bfe_u32 {key}, {l}, 1, 2\nv_bfe_u32 {t1}, {l}, 4, 1\nv_lshl_or_b32 {key}, {t1}, 2, {key}')
        A(f'v_lshrrev_b32 {t1}, 2, {l}\nv_xor_b32 {t1}, {t1}, {l}\nv_and_b32 {t1}, 8, {t1}\nv_or_b32 {key}, {key}, {t1}')
        for T in range(2):
            for rr in range(4):
                A(f'v_cmp_eq_u32 vcc, {rr + 4*T}, {key}\nv_cndmask_b32 {self.bsel[T][rr]}, 0, {val}, vcc')
        A(f'v_and_b32 {key}, 15, {l}\nv_mov_b32 {val}, 0x3f803f80')
        for m in range(2):
            A(f'v_cmp_eq_u32 vcc, {4*m if OPT["kva"] else m}, {key}\nv_cndmask_b32 {self.zsel[m][0]}, 0, {val}, vcc')
            for rr in range(1, 4): A(f'v_mov_b32 {self.zsel[m][rr]}, {self.zsel[m][0]}')
    def rd_w(self, dst, u, kk):
        b, q = self.units[u]
        return [f'ds_read_b64_tr_b16 {dst[2*hf:2*hf+2]}, {self.aw[q]} offset:{b*8192 + (kk*4096 + hf*512 if b < 3 else kk*2048 + hf*256)}' for hf in range(2)]
    def rd_x(self, dst, tt, kk): return [f'ds_read_b128 {dst}, {self.ax[kk]} offset:{tt*2048}']
    def main(self):
        A, V, C, G, typ = self.A, self.V, self.C, self.G, self.typ
        F = typ == 'F'
        if F and OPT['t64']:
            self.ntt = 4; self.units = [(b, q) for b in range(3) for q in range(2)] + [(3, 2)]
        elif F:
            self.ntt = 2; self.units = [(b, q) for b in range(3) for q in range(4)] + [(3, 4), (3, 5)]
        else:
            self.ntt = 8; self.units = [(0, 0), (1, 0), (2, 0)]
        nu = len(self.units)
        self.acc = [[V.alloc(4, 4) for u in range(nu)] for tt in range(self.ntt)]
        nr, nd = (nu, self.ntt) if F else (self.ntt, nu)
        self.Rg = [V.alloc(4, 4) for _ in range(nr)]
        self.Dg = [V.alloc(4*nd, 4) for _ in range(2)]
        rdR, rdD = (self.rd_w, self.rd_x) if F else (self.rd_x, self.rd_w)
        last_R, last_pre, fill = self.pre_epi()
        self.stats()
        if OPT['stub']:
            A('s_mov_b64 exec, 0')
            for c in range(3): A(f's_cmp_eq_u32 {sWQ}, {c}\ns_cbranch_scc1 WS_{typ}{c}')
            A(f's_branch WS_{typ}3')
            if not F: A(f'K_wret:\ns_cmp_lg_u32 s3, 0\ns_cbranch_scc1 WR_F')
            A(f'WR_{typ}:\ns_mov_b64 exec, -1')
        if OPT['stcp'] == 2: stouch(A, 0, OPT['stc'], sCur)
        stamp(A, 1); stampg(A, 9)
        C.wait(self.tk0, 'lgkmcnt(0)'); stampg(A, 10); A('s_barrier')
        stampb(A, 1)
        stamp(A, 2)
        tokR = {}; tokD = {}
        Q = []
        def issue(k):
            for _ in range(k):
                if not Q: return
                s, key = Q.pop(0); tk = G.ds(s)
                if key: (tokR if key[0] == 'R' else tokD)[key[1:]] = tk
        def kq(L, key): return [(s, key if i == len(L)-1 else None) for i, s in enumerate(L)]
        for d in range(nd): Q += kq(rdD(self.Dg[0][4*d:4*d+4], d, 0), ('D', 0, d))
        for j in range(nr): Q += kq(rdR(self.Rg[j], j, 0), ('R', 0, j))
        issue(12)
        for n in range(16):
            st, kk = n >> 1, n & 1
            pend = []
            blocked = kk == 1
            nD = []
            if n < 15:
                for d in range(nd): nD += kq(rdD(self.Dg[(n+1) & 1][4*d:4*d+4], d, kk ^ 1), ('D', n+1, d))
            else: nD = [(s, None) for s in last_pre]
            if blocked: pend += nD
            else: Q += nD
            adds = []
            if kk == 1 and st < 7:
                dlt = phys(st+1) - phys(st)
                adds = [f'v_add_u32 {r}, {dlt & 0xffffffff:#x}, {r}' for r in self.ax + self.aw]
            if n == 15: adds = list(self.pre_v)
            fl = list(fill.get(n, []))
            if n == 6: stampc(A, 1)
            if n == 8: stampc(A, 8)
            for j in range(nr):
                if blocked and j == OPT['holdF' if (F and OPT['t64']) else 'hold']:
                    assert not Q
                    for a in adds: A(a)
                    adds = []
                    if n == 7: stampc(A, 2)
                    G.all()
                    if n == 7: stampc(A, 3)
                    A('s_barrier')
                    if n == 7: stampc(A, 4)
                    if n == 7: stamp(A, 3)
                    stampb(A, 2 + st)
                    blocked = False; Q += pend; pend = []
                for d in (range(nd-1, -1, -1) if (OPT['snk'] and j & 1) else range(nd)):
                    tt, u = (d, j) if F else (j, d)
                    G.need(max(tokR[(n, j)], tokD[(n, d)]))
                    w, x = (self.Rg[j], self.Dg[n & 1][4*d:4*d+4]) if F else (self.Dg[n & 1][4*d:4*d+4], self.Rg[j])
                    a, b = (x, w) if (not F and u == 2) else (w, x)
                    acc = self.acc[tt][u]
                    A(f'v_mfma_f32_16x16x32_bf16 {acc}, {a}, {b}, {acc if n else 0}')
                    if Q: issue(2 if len(Q) > 3 else 1)
                    elif adds:
                        A(adds.pop(0))
                        if adds: A(adds.pop(0))
                    elif fl: A(fl.pop(0))
                nw = kq(rdR(self.Rg[j], j, kk ^ 1), ('R', n+1, j)) if n < 15 else [(s, None) for s in last_R[j]]
                if blocked: pend += nw
                else: Q += nw
            for x in fl: A(x)
        issue(100)
        stampb(A, 10)
        stamp(A, 5)
        V.release(*self.ax); V.release(*self.aw)
    def pre_epi(self):
        A, V, l = self.A, self.V, lane
        if self.typ == 'F' and OPT['t64']:
            at, ag, ag2, self.vsp = V.alloc(), V.alloc(), V.alloc(), V.alloc()
            A(f's_lshr_b32 {sT1}, {sWQ}, 1\ns_lshl_b32 {sT0}, {sT1}, 8\ns_add_u32 {sT0}, {sT0}, {L_NM}\nv_and_b32 {at}, 15, {l}\nv_lshl_add_u32 {at}, {at}, 2, {sT0}')
            A(f's_and_b32 {sF[1]}, {sWQ}, 1\ns_lshl_b32 {sT0}, {sF[1]}, 6\ns_add_u32 {sF[0]}, {sT0}, {L_CS}\nv_and_b32 {ag2}, 48, {l}\nv_add_u32 {ag2}, {sF[0]}, {ag2}\nv_add_u32 {ag}, {sT0}, {ag2}')
            self.ms = [V.alloc(2) for _ in range(4)]; self.nr = [V.alloc(2) for _ in range(4)]
            pre = []
            for tt in range(4):
                pre += [f'ds_read2_b32 {self.ms[tt]}, {at} offset0:{16*tt} offset1:{16*tt}', f'ds_read2_b32 {self.nr[tt]}, {at} offset0:{128+16*tt} offset1:{128+16*tt}']
            lastR = [[f'ds_read_b128 {self.Rg[u]}, {ag} offset:{256*(u >> 1) + 64*(u & 1)}'] for u in range(6)] + [[f'ds_read_b128 {self.Rg[6]}, {ag2} offset:768']]
            self.kL = V.alloc(2)
            A(f'v_mov_b32 {self.kL[0]}, {f2u(1.0 if OPT["psc"] else -LOG2E):#x}\nv_mov_b32 {self.kL[1]}, {self.kL[0]}')
            A(f's_lshl1_add_u32 {sT0}, {sI}, {sT1}')
            cnt_i2(A, sF[2], sT0, 1024)
            A(f's_lshr_b32 {sT1}, {sJ}, 1\ns_lshl_b32 {sT1}, {sT1}, 8\ns_add_u32 {sF[2]}, {sF[2]}, {sT1}')
            A(f's_mul_i32 {sT0}, {sT0}, 72\ns_mul_i32 {sT1}, {sJ}, 7\ns_add_u32 {sT0}, {sT0}, {sT1}\ns_lshl_b32 {sT0}, {sT0}, 12\ns_add_u32 {sT0}, {sT0}, {ACT}')
            A(f's_and_b32 {sT1}, {sJ}, 1\ns_add_u32 {sF[0]}, {sT1}, {sF[1]}\ns_lshl_b32 {sF[0]}, {sF[0]}, 12\ns_add_u32 {sF[0]}, {sF[0]}, {sT0}')
            A(f's_lshl_b32 {sF[1]}, {sF[1]}, 9\ns_add_u32 {sF[1]}, {sF[1]}, {sT0}\ns_xor_b32 {sT1}, {sT1}, 1\ns_mul_i32 {sT1}, {sT1}, {6*4096}\ns_add_u32 {sF[1]}, {sF[1]}, {sT1}')
            tv = self.Dg[0][0]
            self.pre_v = [f'v_and_b32 {self.vsp}, 0xf0, {v_l16}', f'v_bfe_u32 {tv}, {l}, 4, 1', f'v_lshl_add_u32 {self.vsp}, {tv}, 10, {self.vsp}', f'v_lshrrev_b32 {tv}, 5, {l}', f'v_lshl_add_u32 {self.vsp}, {tv}, 8, {self.vsp}']
            return lastR, pre, {}
        if self.typ == 'F':
            at, ag = V.alloc(), V.alloc()
            A(f's_lshl_b32 {sT0}, {sWQ}, 7\ns_add_u32 {sT0}, {sT0}, {L_NM}\nv_and_b32 {at}, 15, {l}\nv_lshl_add_u32 {at}, {at}, 2, {sT0}')
            A(f'v_and_b32 {ag}, 48, {l}\nv_add_u32 {ag}, {L_CS}, {ag}')
            self.ms = [V.alloc(2) for _ in range(2)]; self.nr = [V.alloc(2) for _ in range(2)]
            pre = []
            for tt in range(2):
                pre += [f'ds_read2_b32 {self.ms[tt]}, {at} offset0:{16*tt} offset1:{16*tt}', f'ds_read2_b32 {self.nr[tt]}, {at} offset0:{128+16*tt} offset1:{128+16*tt}']
            lastR = [[f'ds_read_b128 {self.Rg[u]}, {ag} offset:{64*u}'] for u in range(14)]
            self.kL = V.alloc(2)
            A(f'v_mov_b32 {self.kL[0]}, {f2u(1.0 if OPT["psc"] else -LOG2E):#x}\nv_mov_b32 {self.kL[1]}, {self.kL[0]}')
            A(f's_lshl_b32 {sT0}, {sI}, 1\ns_lshr_b32 {sT1}, {sWQ}, 1\ns_add_u32 {sT0}, {sT0}, {sT1}')
            cnt_i2(A, sF[2], sT0, 1024)
            A(f's_lshr_b32 {sT1}, {sJ}, 1\ns_lshl_b32 {sT1}, {sT1}, 8\ns_add_u32 {sF[2]}, {sF[2]}, {sT1}')
            A(f's_mul_i32 {sT0}, {sT0}, 72\ns_mul_i32 {sT1}, {sJ}, 7\ns_add_u32 {sT0}, {sT0}, {sT1}\ns_lshl_b32 {sT0}, {sT0}, 12')
            A(f's_and_b32 {sT1}, {sWQ}, 1\ns_lshl_b32 {sF[0]}, {sT1}, 11\ns_add_u32 {sT0}, {sT0}, {sF[0]}\ns_add_u32 {sT0}, {sT0}, {ACT}')
            A(f's_and_b32 {sT1}, {sJ}, 1')
            A(f's_lshl_b32 {sF[0]}, {sT1}, 12\ns_add_u32 {sF[0]}, {sF[0]}, {sT0}')
            A(f's_xor_b32 {sT1}, {sT1}, 1\ns_mul_i32 {sT1}, {sT1}, {6*4096}\ns_add_u32 {sF[1]}, {sT0}, {sT1}')
            self.pre_v = []
            return lastR, pre, {}
        self.MR = [V.alloc(16, 4) for _ in range(4)]
        self.cv = V.alloc(2)
        R_ = self.Rg
        self.negm = [R_[T//2][2*(T & 1):2*(T & 1)+2] for T in range(8)]
        self.rl = [R_[4 + p//2][2*(p & 1):2*(p & 1)+2] for p in range(4)]
        self.ck, self.cq = R_[6], R_[7]
        D0 = self.Dg[0]
        a4, ag, a32, ac = D0[0], D0[1], D0[2], D0[3]
        pre_v = [f'v_and_b32 {a4}, 15, {l}', f'v_lshlrev_b32 {a4}, 2, {a4}', f'v_and_b32 {ag}, 48, {l}', f'v_and_b32 {a32}, 31, {l}',
                 f'v_add_u32 {ac}, {sF[3]}, {a4}', f'v_add_u32 {a4}, {L_NM}, {a4}', f'v_lshlrev_b32 {a32}, 2, {a32}', f'v_add_u32 {a32}, {L_RL}, {a32}',
                 f'v_add_u32 {D0[4]}, {sF[3]}, {ag}', f'v_add_u32 {ag}, {L_NM}, {ag}']
        A(f's_lshl_b32 {sF[3]}, {sWQ}, 6\ns_add_u32 {sF[3]}, {sF[3]}, {L_CS}')
        pre = [f'ds_read2_b32 {self.cv}, {ac} offset0:128 offset1:128']
        for p in range(4):
            for T in range(2):
                pre += [f'ds_read_b128 {self.MR[p][8*T:8*T+4]}, {ag} offset:{64*(2*p+T)}', f'ds_read_b128 {self.MR[p][8*T+4:8*T+8]}, {ag} offset:{1024+64*(2*p+T)}']
        lastR = [[f'ds_read2_b32 {self.negm[T]}, {a4} offset0:{16*T} offset1:{16*T}' for T in (2*j, 2*j+1)] for j in range(4)]
        lastR += [[f'ds_read2_b32 {self.rl[p]}, {a32} offset0:{32*p} offset1:{32*p}' for p in (2*j, 2*j+1)] for j in range(2)]
        lastR += [[f'ds_read_b128 {self.ck}, {D0[4]} offset:256'], [f'ds_read_b128 {self.cq}, {D0[4]}']]
        pre_v.append(f'v_add_u32 {D0[5]}, {sHo}, {v_l16}')
        A(f's_lshl_b32 {sHo}, {sWQ}, 10\ns_add_u32 {sHo}, {sHo}, {L_PHI}')
        pre.append(f'ds_read_b128 {self.aphi}, {D0[5]}')
        self.pre_v = pre_v
        e0, e1, e2, e3 = sE[0:4]
        A(f's_lshl_b32 {e2}, {sJ}, 2\ns_add_u32 {e2}, {e2}, {sWQ}\ns_mul_i32 {e3}, {e2}, {16*2176}\ns_add_u32 {e3}, {e3}, {KP}')
        A(f's_mul_i32 {e0}, {sI}, 2176\ns_add_u32 {e0}, {e0}, {e3}')
        A(f's_lshl2_add_u32 {sXb}, {sJJ}, {sWQ}\ns_lshl_b32 {sXb}, {sXb}, 8\ns_add_u32 {sXb}, {sXb}, {CNT}\ns_add_u32 {sWb}, {sXb}, {4*16384}')
        A(f's_and_b32 {sXo}, {sI}, {OPT["Rk"]-1}\ns_lshl_b32 {sXo}, {sXo}, 14\ns_add_u32 {sWo}, {sXo}, {sWb}\ns_add_u32 {sXo}, {sXo}, {sXb}')
        A(f's_lshl_b32 {sT0}, {sI}, 6\ns_add_u32 {e1}, {e3}, {sT0}')
        A(f's_mul_i32 {e2}, {e2}, 2176\ns_add_u32 {e2}, {e2}, {KT}\ns_add_u32 {e3}, {e2}, {sT0}')
        A(f's_cmp_eq_u32 {sI}, 0\ns_cselect_b32 {sE[4]}, {e1}, {OOB}\ns_cselect_b32 {sE[5]}, {e3}, {OOB}\ns_cselect_b64 {sM2}, -1, 0')
        A(f's_mul_i32 {sF[0]}, {sI}, {2*72*4096}\ns_lshl_b32 {sT0}, {sJ}, 11\ns_add_u32 {sF[0]}, {sF[0]}, {sT0}\ns_lshl_b32 {sT0}, {sWQ}, 9\ns_add_u32 {sF[0]}, {sF[0]}, {sT0}\ns_add_u32 {sF[0]}, {sF[0]}, {ACT + 56*4096}')
        A(f's_lshl_b32 {sF[1]}, {sI}, 14\ns_add_u32 {sF[1]}, {sF[1]}, {CNT + 5120}\ns_add_u32 {sHb}, {sF[1]}, 2048')
        A(f's_or_b32 {sT0}, {sWQ}, {sJ}\ns_or_b32 {sT0}, {sT0}, {sI}\ns_cselect_b32 {sF[2]}, {OOB}, {EPOCH}')
        return lastR, pre, {}
    def epi_F(self):
        A, V, C = self.A, self.V, self.C
        cc = self.Rg
        NT = 3
        tmp = [V.alloc(8, 4) for _ in range(NT)]; outp = [V.alloc(4, 4) for _ in range(NT)]
        T64 = OPT['t64']
        if T64:
            for pr in range(1, 3): A(f's_add_u32 {sE[pr]}, {sF[0]}, {pr*8192}')
        else:
            for pr in range(1, 6): A(f's_add_u32 {sE[pr]}, {sF[0]}, {pr*4096}')
        so = [sF[0]] + sE[1:6] + [sF[1]]
        self.G.all()
        L = []; k = 0
        for pr in range(4 if T64 else 7):
            for tt in range(2 if (pr == 3 or not T64) else 4):
                p = tmp[k % NT]; o = outp[k % NT]; k += 1
                spl = T64 and pr == 3
                if spl: a0, a1, c0, c1, tk = self.acc[2*tt][6], self.acc[2*tt+1][6], cc[6], cc[6], [2*tt, 2*tt, 2*tt+1, 2*tt+1]
                else: a0, a1, c0, c1, tk = self.acc[tt][2*pr], self.acc[tt][2*pr+1], cc[2*pr], cc[2*pr+1], [tt]*4
                src = [a0[0:2], a0[2:4], a1[0:2], a1[2:4]]
                cs = [c0[0:2], c0[2:4], c1[0:2], c1[2:4]]
                for i in range(4): L.append(f'v_pk_fma_f32 {src[i]}, {cs[i]}, {self.ms[tk[i]]}, {src[i]}')
                for i in range(4): L.append(f'v_pk_mul_f32 {src[i]}, {src[i]}, {self.nr[tk[i]]}')
                for i in range(8): L.append(f'v_exp_f32 {p[i]}, {src[i//2][i&1]}')
                for i in range(4): L.append(f'v_pk_add_f32 {p[2*i:2*i+2]}, {p[2*i:2*i+2]}, {self.kL}' if OPT['psc'] else f'v_pk_fma_f32 {p[2*i:2*i+2]}, {p[2*i:2*i+2]}, {self.kL}, {self.kL}')
                for i in range(8): L.append(f'v_rcp_f32 {p[i]}, {p[i]}')
                for i in range(4): L.append(f'v_pk_mul_f32 {p[2*i:2*i+2]}, {src[i]}, {p[2*i:2*i+2]}')
                for i in range(4): L.append(f'v_cvt_pk_bf16_f32 {o[i]}, {p[2*i]}, {p[2*i+1]}')
                if spl:
                    L += [f'v_permlane16_swap_b32 {o[0]}, {o[2]}', f'v_permlane16_swap_b32 {o[1]}, {o[3]}', f'buffer_store_dwordx4 {o}, {self.vsp}, {sWS}, {sF[1]} offen offset:{tt*2048} sc1']
                    continue
                L.append(f'buffer_store_dwordx4 {o}, {v_l16}, {sWS}, {so[pr]} offen offset:{tt*1024} ' + ['sc1', '', 'sc1 nt', 'sc0 sc1', 'nt'][OPT['hst']])
        if OPT['dbg'] & 8: L = [x for x in L if not x.startswith('buffer')]
        stampe(A, 1); ns = 0
        for x in L:
            A(x)
            if x.startswith('buffer'):
                ns += 1
                if ns % 2 == 0: stampe(A, 1 + ns//2)
                for p, e in enumerate(PH):
                    if ns == 2*e + OPT['lag']: A(f's_waitcnt vmcnt({OPT["lag"]})\ns_atomic_add {sLrow}, {sWS[0:2]}, {sF[2]} offset:{PHO[p]}')
        C.n += 14
        stamp(A, 6)
        for p, e in enumerate(PH):
            if 2*e + OPT['lag'] > 14: A(f's_waitcnt vmcnt({14 - 2*e})\ns_atomic_add {sLrow}, {sWS[0:2]}, {sF[2]} offset:{PHO[p]}')
        stampe(A, 9)
        stamp(A, 7)
    def feat(self, a0, a1, cvec, negm, rl, P16, E):
        L = []; B4 = a0
        for T, a in enumerate((a0, a1)):
            for h in range(2): L.append(f'v_pk_fma_f32 {a[2*h:2*h+2]}, {cvec[2*h:2*h+2]}, {negm[T]}, {a[2*h:2*h+2]}')
        for T, a in enumerate((a0, a1)):
            for h in range(2): L.append(f'v_cvt_pk_bf16_f32 {B4[2*T+h]}, {a[2*h]}, {a[2*h+1]}')
        L += [f'v_permlane16_swap_b32 {B4[0]}, {B4[2]}', f'v_permlane16_swap_b32 {B4[1]}, {B4[3]}']
        L.append(f'v_mfma_f32_32x32x16_bf16 {P16}, {self.aphi}, {B4}, 0')
        mx = B4[0]; m2 = B4[1]
        L += [f'v_max3_f32 {mx}, {P16[0]}, {P16[1]}, {P16[2]}', f'v_max3_f32 {m2}, {P16[3]}, {P16[4]}, {P16[5]}',
              f'v_max3_f32 {mx}, {mx}, {P16[6]}, {P16[7]}', f'v_max3_f32 {m2}, {m2}, {P16[8]}, {P16[9]}',
              f'v_max3_f32 {mx}, {mx}, {P16[10]}, {P16[11]}', f'v_max3_f32 {m2}, {m2}, {P16[12]}, {P16[13]}',
              f'v_max3_f32 {mx}, {mx}, {P16[14]}, {P16[15]}', f'v_max_f32 {mx}, {mx}, {m2}',
              f'v_mul_f32_e64 {B4[2]}, -{mx}, {rl[0]}', f'v_mul_f32_e64 {B4[3]}, -{mx}, {rl[0]}']
        for i in range(8): L.append(f'v_pk_fma_f32 {P16[2*i:2*i+2]}, {P16[2*i:2*i+2]}, {rl}, {B4[2:4]}')
        for i in range(16): L.append(f'v_exp_f32 {P16[i]}, {P16[i]}')
        s0, s1 = B4[0:2], B4[2:4]
        L += [f'v_pk_add_f32 {s0}, {P16[0:2]}, {P16[2:4]}', f'v_pk_add_f32 {s1}, {P16[4:6]}, {P16[6:8]}']
        for i in range(4, 8): L.append(f'v_pk_add_f32 {(s0, s1)[i&1]}, {(s0, s1)[i&1]}, {P16[2*i:2*i+2]}')
        L += [f'v_pk_add_f32 {s0}, {s0}, {s1}', f'v_add_f32 {B4[0]}, {B4[0]}, {B4[1]}', f'v_rcp_f32 {B4[0]}, {B4[0]}', f'v_mov_b32 {B4[1]}, {B4[0]}']
        for i in range(8): L.append(f'v_pk_mul_f32 {P16[2*i:2*i+2]}, {P16[2*i:2*i+2]}, {B4[0:2]}')
        for i in range(8): L.append(f'v_cvt_pk_bf16_f32 {E(i)}, {P16[2*i]}, {P16[2*i+1]}')
        return L
    def epi_A(self):
        A, V, C, l = self.A, self.V, self.C, lane
        e0, e1, e2, e3 = sE[0:4]
        acc, MR, negm, rl, bsel, zsel = self.acc, self.MR, self.negm, self.rl, self.bsel, self.zsel
        D0, D1 = self.Dg
        if OPT['cprio']: A(f's_setprio {OPT["cprio"]}')
        self.G.all()
        kv = [D0[0:4], D0[4:8]]; zz = D0[8:12]
        KA = OPT['kva']; lrep = V.alloc()
        a0, a1, ff, t0, t1, ah, as_, ak, ad, l26, vtag, fa = [D1[i] for i in range(12)]
        L = []
        for p in range(4):
            P16 = MR[p]; VB = acc[2*p][2]; Eq = [acc[2*p+1][1], acc[2*p+1][2]]
            for T in range(2):
                a = acc[2*p+T][2]; M4 = P16[8*T:8*T+4]; R4 = P16[8*T+4:8*T+8]
                for h in range(2): L.append(f'v_pk_fma_f32 {a[2*h:2*h+2]}, {M4[2*h:2*h+2]}, {self.cv}, {a[2*h:2*h+2]}')
                for h in range(2): L.append(f'v_pk_mul_f32 {a[2*h:2*h+2]}, {a[2*h:2*h+2]}, {R4[2*h:2*h+2]}')
                for h in range(2): L.append(f'v_cvt_pk_bf16_f32 {VB[2*T+h]}, {a[2*h]}, {a[2*h+1]}')
            L += self.feat(acc[2*p][1], acc[2*p+1][1], self.ck, negm[2*p:2*p+2], rl[p], P16, lambda i: Eq[i//4][i % 4])
            for m in range(2):
                for T in range(2): L.append(f'v_mfma_f32_16x16x32_bf16 {P16[8*m+4*T:8*m+4*T+4]}, {Eq[m]}, {bsel[T]}, 0')
            for i in range(8): L.append(f'v_cvt_pk_bf16_f32 {Eq[i//4][i%4]}, {P16[2*i]}, {P16[2*i+1]}')
            if KA:
                for m in range(2): L.append(f'v_mfma_f32_16x16x32_bf16 {kv[m]}, {VB}, {Eq[m]}, {kv[m] if p else 0}')
                for m in range(2): L.append(f'v_mfma_f32_16x16x32_bf16 {zz}, {zsel[m]}, {Eq[m]}, {zz if (p or m) else 0}')
                continue
            for m in range(2): L.append(f'v_mfma_f32_16x16x32_bf16 {kv[m]}, {Eq[m]}, {VB}, {kv[m] if p else 0}')
            for m in range(2): L.append(f'v_mfma_f32_16x16x32_bf16 {zz}, {Eq[m]}, {zsel[m]}, {zz if (p or m) else 0}')
        if KA:
            L += [f'v_and_b32 {t0}, 15, {l}', f'v_lshrrev_b32 {t1}, 4, {l}', f'v_lshlrev_b32 {t0}, 2, {t0}', f'v_lshl_add_u32 {a0}, {t1}, 8, {t0}',
                  f'v_mul_u32_u24 {a1}, 1088, {t1}', f'v_add_u32 {a1}, {a1}, {t0}', f'v_lshrrev_b32 {t1}, 1, {t1}', f'v_lshl_add_u32 {a1}, {t1}, 27, {a1}']
            for m in range(2):
                for r in range(4): L.append(f'buffer_atomic_add_f32 {kv[m][r]}, {a0}, {sWS}, {e2} offen offset:{1088*m + 64*r} sc1')
            L.append(f'buffer_atomic_add_f32 {zz[0]}, {a1}, {sWS}, {e2} offen offset:1024 sc1')
            L += [f'v_lshlrev_b32 {l26}, 26, {l}', f'v_mov_b32 {vtag}, {sTag}']
        else:
            L += [f'v_and_b32 {t0}, 15, {l}', f'v_and_b32 {t1}, 48, {l}', f'v_lshl_add_u32 {a0}, {t0}, 6, {t1}', f'v_mov_b32 {ff}, 0xff',
                  f'v_mul_u32_u24 {a1}, 1088, {t0}', f'v_add_u32 {a1}, {a1}, {t1}', f'v_lshrrev_b32 {t0}, 1, {t0}', f'v_lshl_add_u32 {a1}, {t0}, 27, {a1}']
            for m in range(2):
                L += tag_quad(kv[m], ff) + [f'buffer_store_dwordx4 {kv[m]}, {a0}, {sWS}, {e0} offen offset:{1088*m} sc1']
            L += tag_quad(zz, ff) + [f'buffer_store_dwordx4 {zz}, {a1}, {sWS}, {e0} offen offset:1024 sc1']
            L += [f'v_lshlrev_b32 {l26}, 26, {l}', f'v_mov_b32 {vtag}, {sTag}', f'v_mov_b32 {fa}, 1', f'v_lshrrev_b32 {lrep}, {OPT["Rk"].bit_length()-1}, {l}', f'v_lshlrev_b32 {lrep}, 26, {lrep}', f'v_lshl_add_u32 {lrep}, {l}, 14, {lrep}']
            if not OPT['ack1']: L.append(f'buffer_atomic_add {fa}, {lrep}, {sWS}, {sXb} offen sc1')
        stampe(A, 1)
        emit_sched(A, L, 'kside'); C.n += 4
        stampe(A, 2)
        stamp(A, 6)
        h1 = [self.sel16[4*i:4*i+4] for i in range(4)]
        ld1 = [f'buffer_load_dwordx4 {h1[0]}, {ah}, {sWS}, {e1} offen sc1', f'buffer_load_dwordx4 {h1[1]}, {ah}, {sWS}, {e1} offen offset:1088 sc1',
               f'buffer_load_dwordx4 {h1[2]}, {ah}, {sWS}, {sE[4]} offen offset:1024 sc1', f'buffer_load_dwordx4 {h1[3]}, {ah}, {sWS}, {sE[4]} offen offset:2112 sc1']
        perm = [0, 1, 2, 3] if KA else [1, 0, 2, 3]
        eq = [[acc[2*p+1][0], acc[2*p][1]] for p in range(4)]
        def qside(ps):
            L = []
            for p in ps:
                L += self.feat(acc[2*p][0], acc[2*p+1][0], self.cq, negm[2*p:2*p+2], rl[p], MR[p], lambda i: eq[p][i//4][perm[i % 4]])
            return L
        adr = [f'v_lshrrev_b32 {ah}, 2, {l}', f'v_mul_u32_u24 {ah}, 2176, {ah}', f'v_and_b32 {t0}, 3, {l}', f'v_lshl_add_u32 {ah}, {t0}, 4, {ah}',
               f'v_lshrrev_b32 {as_}, 5, {l}', f'v_mul_u32_u24 {as_}, 1088, {as_}', f'v_lshl_add_u32 {as_}, {t0}, 4, {as_}', f'v_bfe_u32 {t0}, {l}, 4, 1', f'v_lshl_add_u32 {as_}, {t0}, 3, {as_}',
               f'v_and_b32 {t1}, 12, {l}', f'v_lshl_add_u32 {as_}, {t1}, 26, {as_}',
               f'v_and_b32 {ad}, 15, {l}', f'v_lshlrev_b32 {ad}, 4, {ad}', f'v_lshl_add_u32 {ad}, {t0}, 14, {ad}', f'v_lshrrev_b32 {t0}, 5, {l}', f'v_lshl_add_u32 {ad}, {t0}, 8, {ad}',
               f'v_and_b32 {ak}, 31, {l}', f'v_min_u32 {ak}, 16, {ak}', f'v_lshlrev_b32 {ak}, 6, {ak}', f'v_lshl_add_u32 {ak}, {t0}, 5, {ak}']
        if KA:
            qa, qb = OPT['qa'], OPT['qb']
            ldall = self.sel16
            emit_sched(A, qside(range(qa)) + [adr[7]] + adr[11:], 'qa')
            stampe(A, 3)
            sarrive(A, *[f'{sXb} offset:{16384*r}' for r in range(OPT['Rk'])])
            stampe(A, 4); stamp(A, 7)
            A(f's_add_u32 {e0}, {sF[0]}, 32768\ns_add_u32 {e1}, {sF[0]}, {72*4096}\ns_add_u32 {e3}, {e1}, 32768')
            if qb: emit_sched(A, qside(range(qa, qa+qb)), 'qb')
            stampe(A, 5)
            ppoll(A, sXo, 16, OPT['Dk'], 20, OPT['slpa'])
            stampe(A, 6); stamp(A, 8)
            for m in range(2):
                for h in range(2): A(f'buffer_load_dwordx4 {ldall[8*m+4*h:8*m+4*h+4]}, {ak}, {sWS}, {e2} offen offset:{1088*m+16*h} sc1')
            A(f'buffer_store_dword {vtag}, {l26}, {sWS}, {sF[2]} offen sc1')
            if qa + qb < 4: emit_sched(A, qside(range(qa+qb, 4)), 'qc')
            stampe(A, 7)
            A('s_waitcnt vmcnt(1)')
            stamp(A, 4)
            L = []
            for m in range(2):
                for i in range(4): L.append(f'v_cvt_pk_bf16_f32 {D0[4*m+i]}, {ldall[8*m+2*i]}, {ldall[8*m+2*i+1]}')
            kvA = [D0[0:4], D0[4:8]]
        else:
            if OPT['ack1']:
                emit_sched(A, qside([0]) + adr, 'q0')
                sarrive(A, sXb)
                emit_sched(A, qside([1]), 'q1')
            else: emit_sched(A, qside([0, 1]) + adr, 'q01')
            stampe(A, 3)
            ppoll(A, sXo, 16, OPT['Dk'], 20, OPT['slpa'])
            stamp(A, 7)
            stampe(A, 4)
            for x in ld1: A(x)
            emit_sched(A, qside([2]), 'q2')
            stampe(A, 5)
            A('s_waitcnt vmcnt(0)')
            tm = D0
            def chk1():
                for i in range(4): quad_diff(A, h1[i], tm[i], tm[4+i])
                A(f'v_or_b32 {tm[0]}, {tm[0]}, {tm[1]}\nv_or_b32 {tm[2]}, {tm[2]}, {tm[3]}\nv_cmp_ne_u32 vcc, 0, {tm[2]}\nv_cmp_ne_u32 s[4:5], 0, {tm[0]}')
                A(f's_and_b64 vcc, vcc, {sM2}\ns_or_b64 s[4:5], s[4:5], vcc')
            poll(A, '\n'.join(ld1), chk1, sleep=OPT['slp'], mask_exec=True, first_loaded=True)
            stampe(A, 6)
            L = []
            for x, y, so, off in ((h1[0], h1[1], e3, 0), (h1[2], h1[3], sE[5], 1024)):
                for k in range(4): L += [f'v_and_b32 {x[k]}, 0xffffff00, {x[k]}', f'v_and_b32 {y[k]}, 0xffffff00, {y[k]}']
                for k in range(4): L += [f'v_permlane32_swap_b32 {x[k]}, {y[k]}', f'v_add_f32 {x[k]}, {x[k]}, {y[k]}']
                for k in range(2): L += [f'v_permlane16_swap_b32 {x[k]}, {x[k+2]}', f'v_add_f32 {x[k]}, {x[k]}, {x[k+2]}', dpp_add(x[k], 'row_ror:4'), dpp_add(x[k], 'row_ror:8')]
                L += [f'v_cvt_pk_bf16_f32 {x[0]}, {x[0]}, {x[1]}', f'v_mov_b32 {x[1]}, {sTag}', f'buffer_store_dwordx2 {x[0:2]}, {as_}, {sWS}, {so} offen offset:{off} sc1']
            if not OPT['ack2']: L.append(f'buffer_atomic_add {fa}, {lrep}, {sWS}, {sWb} offen sc1')
            emit_sched(A, L, 'reduce'); C.n += 3
            stamp(A, 8)
            ld = [self.Rg[0], self.Rg[1], self.Rg[2], self.Rg[3]]; assert all(ld[i].b == ld[0].b + 4*i for i in range(4))
            ldall = R('v', ld[0].b, 16)
            ld2 = [f'buffer_load_dwordx4 {ld[2*m+h]}, {ak}, {sWS}, {e2} offen offset:{1088*m+16*h} sc1' for m in range(2) for h in range(2)]
            A(f's_add_u32 {e0}, {sF[0]}, 32768\ns_add_u32 {e1}, {sF[0]}, {72*4096}\ns_add_u32 {e3}, {e1}, 32768')
            emit_sched(A, qside([3]), 'q3')
            if OPT['ack2']: sarrive(A, sWb)
            A(f'buffer_store_dword {vtag}, {l26}, {sWS}, {sF[2]} offen sc1')
            ppoll(A, sWo, 16, OPT['Dk'], 20, OPT['slpa'])
            stampe(A, 7)
            poll(A, '\n'.join(ld2), chk_words(A, [ldall[2*i+1] for i in range(8)], tm), sleep=OPT['slp'], mask_exec=True)
            stamp(A, 4)
            L = []
            for m in range(2): L += [f'v_mov_b32 {ldall[8*m+3]}, {ldall[8*m]}', f'v_mov_b32 {ldall[8*m+5]}, {ldall[8*m+6]}']
            kvA = [ldall[2:6], ldall[10:14]]
        for p in range(4):
            N = MR[p]; o = acc[2*p][2]
            L.append(f'v_mfma_f32_32x32x16_bf16 {N}, {kvA[0]}, {eq[p][0]}, 0')
            L.append(f'v_mfma_f32_32x32x16_bf16 {N}, {kvA[1]}, {eq[p][1]}, {N}')
            L += [f'v_add_f32 {N[8]}, {f2u(1e-6):#x}, {N[8]}', f'v_rcp_f32 {N[8]}, {N[8]}']
            if OPT['opk']:
                L.append(f'v_mov_b32 {N[9]}, {N[8]}')
                for i in range(4): L.append(f'v_pk_mul_f32 {N[2*i:2*i+2]}, {N[2*i:2*i+2]}, {N[8:10]}')
            else:
                for i in range(8): L.append(f'v_mul_f32 {N[i]}, {N[i]}, {N[8]}')
            for i in range(4): L.append(f'v_cvt_pk_bf16_f32 {o[i]}, {N[2*i]}, {N[2*i+1]}')
            L.append(f'buffer_store_dwordx4 {o}, {ad}, {sWS}, {[sF[0], e0, e1, e3][p]} offen sc1')
        stampe(A, 8)
        if OPT['snt']:
            L += [f'v_mov_b32 {fa}, 1', f'v_lshrrev_b32 {lrep}, 1, {l}', f'v_lshlrev_b32 {lrep}, 26, {lrep}', f'v_lshl_add_u32 {lrep}, {l}, 11, {lrep}',
                  f'buffer_atomic_add {fa}, {lrep}, {sWS}, {sF[1]} offen sc1']
        emit_sched(A, L, 'oside'); C.n += 4
        stampe(A, 9)
        if OPT['wo']: A(f'v_mov_b32 {t0}, {L_TAG}\nv_mov_b32 {t1}, 16\ns_mov_b64 exec, 1\nds_add_u32 {t0}, {t1} offset:8\ns_mov_b64 exec, -1')
        if not OPT['snt']: sarrive(A, *[f'{x} offset:{256*r}' for r in range(OPT['Ro']) for x in (sF[1], sHb)])
        stampe(A, 10)

def p2_C(A):
    l = lane; C = Ctx(A); G = LG(A)
    NP = OPT['npre']
    V = Pool('v', 4, 256)
    vab = [V.alloc() for _ in range(4)]
    go, vm_, t0, t1, xq2 = V.alloc(), V.alloc(), V.alloc(), V.alloc(), V.alloc()
    xq = V.alloc(8, 4); acc = V.alloc(16, 4); ao = V.alloc(64, 4)
    Bs = [V.alloc(16, 4) for _ in range(NP)]
    A(f'v_and_b32 {t0}, 15, {l}\nv_lshlrev_b32 {go}, 10, {t0}\nv_bfe_u32 {t0}, {l}, 4, 1\nv_lshl_add_u32 {go}, {t0}, 5, {go}\nv_lshrrev_b32 {t0}, 5, {l}\nv_lshl_add_u32 {go}, {t0}, 4, {go}')
    A(f's_lshl_b32 {sE[0]}, {sI2}, 16\ns_lshl_b32 {sT0}, {sWQ}, 14\ns_add_u32 {sE[0]}, {sE[0]}, {sT0}\ns_lshl_b32 {sT1}, {sJ2}, 7\ns_add_u32 {sE[0]}, {sE[0]}, {sT1}')
    for P in range(2): A(f'buffer_load_dwordx4 {xq[4*P:4*P+4]}, {go}, {sX}, {sE[0]} offen offset:{64*P}')
    A(f's_mul_i32 {sE[1]}, {sI2}, {72*4096}\ns_add_u32 {sE[1]}, {sE[1]}, {sT0}\ns_add_u32 {sE[1]}, {sE[1]}, {ACT + 56*4096}')
    for i in range(1, 4): A(f's_add_u32 {sE[1+i]}, {sE[1]}, {4096*i}')
    cnt_i2(A, sE[5], sI2, 5120)
    if OPT['Ro'] > 1: A(f's_and_b32 s4, {sJ2}, {OPT["Ro"]-1}\ns_lshl_b32 s4, s4, 8\ns_add_u32 {sE[5]}, {sE[5]}, s4')
    tr_addr(A, vab, WOB, t0, t1)
    A(f'v_mov_b32 {vm_}, {L_TAG}')
    stamph(A, 1)
    if OPT['eo']:
        l0, l1, l2 = A.lab('EO'), A.lab('EP'), A.lab('EQ')
        A(f's_cmp_lg_u32 {sWV}, 0\ns_cbranch_scc1 {l1}')
        A(f's_add_u32 {sT1}, {sTag}, 32\ns_mov_b32 {sSpin}, {OPT["spin"]}')
        A(f'{l0}:\ns_mov_b32 {sT0}, 0\ns_atomic_add {sT0}, {sWS[0:2]}, {sE[5]} glc\ns_waitcnt lgkmcnt(0)\nds_read_b32 {t0}, {vm_} offset:4\ns_cmp_eq_u32 {sT0}, {sT1}\ns_cbranch_scc1 {l2}')
        A(f's_waitcnt lgkmcnt(0)\nv_readfirstlane_b32 {sT0}, {t0}\ns_cmp_ge_u32 {sT0}, 4\ns_cbranch_scc1 {l1}')
        A(f's_sleep {OPT["slpo"]}\ns_sub_u32 {sSpin}, {sSpin}, 1\ns_cbranch_scc0 {l0}\ns_branch {l1}')
        A(f'{l2}:\ns_mov_b32 {sWV}, 8\nv_mov_b32 {xq2}, 16\ns_mov_b64 exec, 1\nds_add_u32 {vm_}, {xq2} offset:12\ns_mov_b64 exec, -1')
        A(f'{l1}:')
    lds_spin(A, vm_, 4, 4, t0, slp=4 if OPT['nsl'] & 4 else 1)
    stamph(A, 2)
    tokB = {}
    def trl(k): return [(f'ds_read_b64_tr_b16 {Bs[k % NP][4*q+2*hf:4*q+2*hf+2]}, {vab[q]} offset:{k*4096 + hf*2048}', (k, q)) for q in range(4) for hf in range(2)]
    if OPT['snt']: A(f's_movk_i32 {sCur}, 4096\nK_redo:')
    for k in range(NP):
        for s, key in trl(k): G.ds(s); tokB[key] = 0
    if OPT['snt']: A(f's_cmpk_lg_u32 {sCur}, 4096\ns_cbranch_scc1 K_ld')
    stamph(A, 3)
    if OPT['opoll']:
        ppoll(A, sE[5], 32, OPT['Do'], 20, OPT['slpo'])
        G.all()
    else:
        lk, le = A.lab('NO'), A.lab('OE')
        A(f's_cmp_lg_u32 {sWV}, 0\ns_cbranch_scc1 {lk}')
        ppoll(A, sE[5], 32, OPT['Do'], 20, OPT['slpo'])
        if OPT['gs']:
            stamp(A, 3)
            A(f'v_mov_b32 {t0}, 16\ns_mov_b64 exec, 1\nds_add_u32 {vm_}, {t0} offset:12\ns_mov_b64 exec, -1')
            A(f'{lk}:')
            stamph(A, 4)
            if OPT['pwg']:
                A(f's_lshl_b32 {sT1}, 1, {sWQ}\ns_or_b32 {sT1}, {sT1}, 16')
                lds_spin(A, vm_, 12, sT1, t0, mask=True, slp=0 if OPT['nsl'] & 2 else 1)
            else: lds_spin(A, vm_, 12, 20, t0)
            if OPT['eo']: A(f's_and_b32 {sWV}, {sWV}, 7')
        else:
            A(f'v_mov_b32 {t0}, 1\nds_write_b32 {vm_}, {t0} offset:12\ns_branch {le}')
            A(f'{lk}:')
            lds_spin(A, vm_, 12, 1, t0)
            A(f'{le}:')
    stamp(A, 9); stampf(A, 0)
    stamph(A, 5)
    if OPT['snt']: A('K_ld:')
    tok = {}
    for s in range(16):
        tok[s] = C.vm(f'buffer_load_dwordx4 {ao[4*s:4*s+4]}, {v_l16}, {sWS}, {sE[1 + s//4]} offen offset:{(s & 3)*1024} ' + ['sc1', '', 'sc0', 'nt', 'sc0 sc1'][OPT['old']])
    stampf(A, 1)
    G.all()
    A(f's_lshl_b32 {sT0}, {sWQ}, 12\nv_add_u32 {t1}, {sT0}, {v_l16}')
    Q = []
    for s in range(16):
        C.wait(tok[s])
        if s == 0 and not OPT['snt']:
            for P in range(2): A(f'v_permlane16_swap_b32 {xq[4*P]}, {xq[4*P+2]}\nv_permlane16_swap_b32 {xq[4*P+1]}, {xq[4*P+3]}')
        for q in range(4):
            G.need(tokB[(s, q)])
            A(f'v_mfma_f32_16x16x32_bf16 {acc[4*q:4*q+4]}, {Bs[s % NP][4*q:4*q+4]}, {ao[4*s:4*s+4]}, {acc[4*q:4*q+4] if s else 0}')
            for _ in range(2):
                if Q: x, key = Q.pop(0); tokB[key] = G.ds(x)
        if OPT['snt'] and s & 1: A(f'v_max3_u32 {t0}, {ao[4*s]}, {ao[4*s-4]}, {t0 if s > 1 else 0}')
        if OPT['xu'] and s >= 8:
            i = s - 8
            A(f'v_lshlrev_b32 {ao[2*i]}, 16, {xq[i]}\nv_and_b32 {ao[2*i+1]}, 0xffff0000, {xq[i]}')
        if s + NP < 16: Q += trl(s + NP)
        if s in (0, 3, 7, 11, 15): stampf(A, 2 + (s+1)//4)
    if OPT['snt']:
        A(f'v_cmp_eq_u32 vcc, -1, {t0}\ns_and_b64 s[4:5], vcc, exec\ns_cbranch_scc0 K_ok\ns_sleep 1\ns_sub_u32 {sCur}, {sCur}, 1\ns_cbranch_scc0 K_redo\nK_ok:')
        for P in range(2): A(f'v_permlane16_swap_b32 {xq[4*P]}, {xq[4*P+2]}\nv_permlane16_swap_b32 {xq[4*P+1]}, {xq[4*P+3]}')
    xf = ao[0:16]; g = ao[16:32]
    stamp(A, 10); stamph(A, 6)
    A('s_barrier')
    stampf(A, 7); stamph(A, 7)
    for u in range(4): A(f'ds_read_b128 {g[4*u:4*u+4]}, {t1} offset:{X0 + 1024*u}')
    assert not (OPT['xu'] and OPT['snt'])
    if not OPT['xu']:
        for i in range(8): A(f'v_lshlrev_b32 {xf[2*i]}, 16, {xq[i]}\nv_and_b32 {xf[2*i+1]}, 0xffff0000, {xq[i]}')
    for P in range(2):
        A(f's_waitcnt lgkmcnt({2 - 2*P})')
        for i in range(4*P, 4*P+4): A(f'v_pk_fma_f32 {g[2*i:2*i+2]}, {g[2*i:2*i+2]}, {acc[2*i:2*i+2]}, {xf[2*i:2*i+2]}')
        for i in range(4*P, 4*P+4): A(f'v_cvt_pk_bf16_f32 {xq[i]}, {g[2*i]}, {g[2*i+1]}')
    for P in range(2):
        A(f'v_permlane16_swap_b32 {xq[4*P]}, {xq[4*P+2]}\nv_permlane16_swap_b32 {xq[4*P+1]}, {xq[4*P+3]}')
    for P in range(2): A(f'buffer_store_dwordx4 {xq[4*P:4*P+4]}, {go}, {sOUT}, {sE[0]} offen offset:{64*P} ' + ['', 'sc1', 'nt', 'sc0 sc1', 'sc1 nt', 'sc0 sc1 nt'][OPT['ost']])
    stampf(A, 8); stamph(A, 8)
    if OPT['stamp'] == 6: A('s_waitcnt vmcnt(0)')
    stampf(A, 9)

vb = [R('v', 4+i, 1) for i in range(4)]
vb0, vb1 = R('v', 8, 1), R('v', 9, 1)
RS = [R('v', 80+16*i, 16) for i in range(11)]
ACCL = R('v', 16, 64)
vbh = [R('v', 13, 1), R('v', 14, 1), R('v', 15, 1), R('v', 2, 1)]
va = [R('v', 10, 1), R('v', 11, 1), R('v', 12, 1), R('v', 0, 1)]
vx2, vx3, vw1, vh, pt, pa, pm, p1 = [ACCL[48+i] for i in range(8)]
def nib(d, k): return f's_bfe_u32 {d}, {sCur if k < 8 else sCurA}, {(4 << 16) | (4 * (k % 8)):#x}'
LOAD = [0, 1, 8, 9, 2, 3, 4, 5, 6, 7, 10, 11, 12, 13] if OPT['lord'] else list(range(14))
RSL = {0: 0, 1: 1, 2: 2, 3: 3, 4: 4, 5: 5, 8: 6, 9: 7, 6: 0, 7: 1, 10: 2, 11: 3, 12: 4, 13: 5} if OPT['lord'] else {k: k % 8 for k in range(14)}
if OPT['lord'] == 2:
    LOAD = [0, 1, 2, 3, 8, 9, 10, 4, 5, 6, 7, 11, 12, 13]
    RSL = {0: 0, 1: 1, 2: 2, 3: 3, 8: 4, 9: 5, 10: 6, 4: 7, 5: 0, 6: 1, 7: 2, 11: 3, 12: 7, 13: 2}
if OPT['lord'] == 3:
    LOAD = [0, 4, 8, 12, 1, 2, 3, 5, 6, 7, 9, 10, 11, 13]
    RSL = {0: 0, 6: 0, 1: 1, 7: 1, 2: 2, 9: 2, 3: 3, 10: 3, 4: 4, 11: 4, 5: 5, 13: 5, 8: 6, 12: 7}
if OPT['lord'] == 4:
    LOAD = [0, 1, 4, 5, 8, 9, 12, 2, 3, 6, 7, 10, 11, 13]
    RSL = {1: 0, 6: 0, 2: 1, 7: 1, 0: 2, 3: 2, 10: 2, 4: 3, 11: 3, 5: 4, 13: 4, 8: 5, 9: 6, 12: 7}
PH = [int(c) for c in str(OPT['ph'])] if OPT['ph'] else [4, 7]
PHO = [0, 8192, 128, 8192 + 128]
sB0, sB1 = sM2[0], sM2[1]
sLi = [sXo, sHo, sWb, sRot]
vr0, vr1 = vb0, vb1
WFL = ['', 'nt', 'sc1', 'sc0 sc1'][OPT['wfl']]
class BP:
    def __init__(self, A, C, G):
        self.A, self.C, self.G = A, C, G
        self.next = 0; self.free = []; self.fly = []; self.slot = {}; self.tok = {}; self.cool = []; self.dep = 0; self.pend = []
    def dma(self, k, sl):
        A = self.A
        for f in self.dma_list(k, sl): f()
    def dma_list(self, k, sl):
        A = self.A
        self.slot[k] = sl
        def mk(i):
            def f():
                if OPT['xr'] & 2:
                    if i == 0: A(f'{nib(sB0, LOAD[k])}\ns_lshl_b32 {sB0}, {sB0}, 15\ns_add_u32 {sB0}, {sB0}, {sBb}\ns_xor_b32 {sB1}, {sB0}, 16384')
                    A(f's_add_u32 m0, {sLi[i]}, {sl}')
                else:
                    if i == 0: A(f'{nib(sB0, LOAD[k])}\ns_lshl_b32 {sB0}, {sB0}, 15\ns_add_u32 {sB0}, {sB0}, {sBb}\ns_add_u32 {sB1}, {sB0}, 16384')
                    A(f's_add_u32 m0, {sLb2}, {sl + 1024*i}')
                if self.dep: A(f's_waitcnt vmcnt({self.dep - 1})')
                if OPT['t64'] and LOAD[k] >= 12:
                    assert OPT['ph'] and not OPT['xr']
                    if i == 0: A(f's_mov_b32 exec_lo, 0\nv_add_u32 {vb0}, 0x1000, {vb0}\ns_mov_b32 exec_lo, -1')
                    if i == 2: A(f's_add_u32 {sB0}, {sB0}, 4096\ns_add_u32 {sB1}, {sB1}, 4096')
                    self.tok[k] = self.C.vm(f'buffer_load_dwordx4 {vb0}, {sW2}, {(sB0, sB1)[i & 1]} offen {WFL} lds')
                    if i == 3: A(f's_mov_b32 exec_lo, 0\nv_subrev_u32 {vb0}, 0x1000, {vb0}\ns_mov_b32 exec_lo, -1')
                    return
                self.tok[k] = self.C.vm(f'buffer_load_dwordx4 {(vb0, vb1)[i & 1]}, {sW2}, {(sB0, sB1)[i >> 1]} offen {WFL} lds')
            return f
        return [mk(i) for i in range(4)]
    def wo_list(self, k):
        A = self.A
        def mk(i):
            def f():
                if i == 0:
                    A(f's_xor_b32 {sT1}, {sF[2]}, {k}\ns_lshl_b32 {sF[3]}, {sT1}, 12\ns_lshl2_add_u32 {sF[3]}, {sLb2}, {sF[3]}')
                    A(f's_lshl_b32 {sT0}, {sT1}, 15\ns_add_u32 {sT0}, {sT0}, {sF[0]}\ns_add_u32 {sT1}, {sT0}, 16384')
                if OPT['xr'] & 2 and i == 0: A(f's_add_u32 {sF[3]}, {sF[3]}, {sHb}')
                if OPT['xr'] & 2 and i == 2: A(f's_sub_u32 {sF[3]}, {sF[3]}, {sHb}\ns_sub_u32 {sF[3]}, {sF[3]}, {sHb}')
                A(f's_add_u32 m0, {sF[3]}, {WOB + 1024*i}')
                if self.dep: A(f's_waitcnt vmcnt({self.dep - 1})')
                self.tokwo = self.C.vm(f'buffer_load_dwordx4 {(vb0, vb1)[i >> 1]}, {sWO}, {(sT0, sT1)[i & 1]} offen {WFL} lds')
            return f
        return [mk(i) for i in range(4)]
    def trl(self, k):
        sl = self.slot[k]; hi = sl >= Y0
        off = sl - Y0 if hi else sl
        dst = RS[RSL[LOAD[k]]]
        return [f'ds_read_b64_tr_b16 {dst[4*q+2*hf:4*q+2*hf+2]}, {(vbh if hi else vb)[q]} offset:{off + hf*2048}' for q in range(4) for hf in range(2)]
    def retire(self):
        k = self.fly.pop(0)
        self.C.wait(self.tok[k])
        for s in self.trl(k): tk = self.G.ds(s)
        self.cool.append((self.slot[k], tk))
    def step(self, run=True):
        self.flush()
        if self.next >= 13: return False
        if not self.free:
            if not self.cool: self.retire()
            if len(self.cool) == 1 and self.fly and self.next - self.fly[0] >= 3: self.retire()
            sl, tk = self.cool.pop(0); self.G.need(tk, 8); self.free.append(sl)
        k = self.next; self.next += 1
        self.pend = self.dma_list(k, self.free.pop(0))
        if k < 8: self.fly.append(k)
        if run: self.flush()
        return True
    def flush(self):
        while self.pend: self.pend.pop(0)()
    def quota(self, n):
        for _ in range(n):
            if not self.pend: self.step(run=False)
            self.pend.pop(0)()

def NT(o, st): return ['', ' nt', ' sc1', ' sc0 sc1', ' sc1 nt', ' sc0 sc1 nt', ' sc0 nt'][OPT['ntf']] if OPT[o] >> st & 1 else ''
class LW:
    def __init__(self, A, typ):
        self.A = A; self.typ = typ; self.C = Ctx(A); self.G = LG(A); self.B = BP(A, self.C, self.G)
        self.lrow = 3584 if typ == 'F' else 3072
        self.stok = {}; self.sq = []
    def issue(self, st, only_half=False, lo=0, hi=99):
        A = self.A if lo == 0 else (lambda x: None); buf = phys(st); F = self.typ == 'F'
        cs = 128 if F else 1024
        if not only_half:
            A(f's_bfe_u32 {sT0}, {sRot}, {(4 << 16) | (4*st):#x}\ns_lshl_b32 {sXo}, {sT0}, 7\ns_add_u32 {sXo}, {sXo}, {sXb}')
            A(f's_mul_i32 {sT0}, {sT0}, {64*self.lrow}\ns_add_u32 {sWo}, {sT0}, {sWb}')
            xs = [(buf + 4096*p, (vx0, vx2, vx1, vx3)[p], sX, sXo, 0) for p in range(4)]
            ws = [(buf + 16384 + 8192*b + 4096*h - b*cs, (vw, vw1)[h], sW, sWo, b*cs) for h in range(2) for b in range(3)]
            items = [xs[0], ws[0], ws[1], xs[1], ws[2], xs[2], ws[3], ws[4], xs[3], ws[5]]
        else: items = []
        if F:
            A(f's_add_u32 {sHo}, {sWo}, {sHb}')
            items.append((buf + 16384 + 24576, vh, sW, sHo, 0))
        A = self.A
        for m, v, sr, so, off in items[lo:hi]:
            A(f's_add_u32 m0, {sLb}, {m}')
            self.stok[st] = self.C.vm(f'buffer_load_dwordx4 {v}, {sr}, {so} offen' + (f' offset:{off}' if off else '') + NT('ntx' if sr is sX else 'ntw', st) + ' lds')
            while self.sq:
                x = self.sq.pop(0); A(x)
                if x.startswith('s_load'): break
    def run(self):
        A, C, G, B, l = self.A, self.C, self.G, self.B, lane
        F = self.typ == 'F'; lrow = self.lrow
        C.n = 5; self.stok[0] = 5
        T = [ACCL[i] for i in range(64)]
        if OPT['lprio']: A(f's_setprio {OPT["lprio"]}')
        srd(A, sW2, 48, SZ_W2); srd(A, sWO, 24, SZ_WO)
        if not F: srd(A, sPHI, 16, SZ_PHI)
        elif OPT['j3']: srd(A, sPHI, 8, SZ_QKV)
        vj3 = ACCL[62]
        def j3touch(second):
            A(f'v_lshrrev_b32 {vj3}, 3, {l}\nv_mul_u32_u24 {vj3}, 3072, {vj3}\nv_and_b32 {ACCL[63]}, 0x70, {v_l16}\nv_add_u32 {vj3}, {vj3}, {ACCL[63]}')
            A(f's_and_b32 {sT0}, {sI}, 7\ns_lshl2_add_u32 {sT0}, {sT0}, {sWQ}\ns_lshr_b32 {sT1}, s2, 1\ns_xor_b32 {sT1}, {sT1}, s2\ns_and_b32 {sT1}, {sT1}, 1' + (f'\ns_xor_b32 {sT1}, {sT1}, 1' if second else ''))
            A(f's_lshl_b32 {sT1}, {sT1}, 5\ns_add_u32 {sT0}, {sT0}, {sT1}\ns_mul_i32 {sT0}, {sT0}, {8*3072}')
            A(f's_sub_u32 {sT1}, {sJJ}, 4\ns_min_u32 s6, {sT1}, 2\ns_lshl_b32 s6, s6, 10\ns_add_u32 {sT0}, {sT0}, s6')
            A(f's_cmp_gt_u32 {sT1}, 3\ns_cselect_b32 {sT0}, {OOB}, {sT0}\ns_cmp_eq_u32 {sT1}, 2\ns_cselect_b32 {sT0}, {OOB}, {sT0}\ns_mov_b32 m0, {JUNK}')
            if F and not second: A('s_waitcnt lgkmcnt(0)')
            C.vm(f'buffer_load_dwordx4 {vj3}, {sPHI if F else sW}, {sT0} offen offset:384 lds')
        if OPT['j3'] & 1 and OPT['j3p'] == 0: j3touch(False)
        A(f's_sub_u32 {sLb}, {sLb}, 4096')
        A(f'v_or_b32 {vx2}, 0x8000, {vx0}\nv_or_b32 {vx3}, 0x8000, {vx1}\nv_and_b32 {vx0}, 0xffff7fff, {vx0}\nv_and_b32 {vx1}, 0xffff7fff, {vx1}')
        if OPT['flip'] & 1: A(f's_bitcmp1_b32 s2, 5\ns_cselect_b32 s4, 0, {32*lrow}\nv_subrev_u32 {vw}, s4, {vw}')
        else: A(f'v_subrev_u32 {vw}, {32*lrow}, {vw}')
        A(f'v_add_u32 {vw1}, {32*lrow}, {vw}')
        if OPT['rot'] == 4:
            A(f's_and_b32 s4, {sRot}, 3\ns_lshl_b32 s4, s4, 2\ns_lshr_b32 s4, 0x32103210, s4\ns_and_b32 s4, s4, 0xffff')
            if OPT['r3'] & 1:
                A(f's_lshl_b32 s4, s4, 16\ns_and_b32 s5, {sI}, 7\ns_and_b32 s6, {sJJ}, 3\ns_add_u32 s5, s5, s6\ns_lshl_b32 s5, s5, 1\ns_lshr_b32 s5, 1198372, s5\ns_and_b32 s5, s5, 3')
                A(f's_lshl_b32 s5, s5, 2\ns_lshr_b32 s5, 0x213210, s5\ns_and_b32 s5, s5, 0xfff0\ns_or_b32 s4, s4, s5')
            elif OPT['r2'] == 0: A(f's_mul_i32 s4, s4, 0x10001')
            elif OPT['r2'] == 1: A(f's_bitcmp1_b32 {sRot}, 0\ns_cselect_b32 s5, 0x11110000, 0\ns_xor_b32 s5, s5, 0x32100000\ns_or_b32 s4, s4, s5')
            else: A(f's_or_b32 s4, s4, 0x32100000')
            A(f's_cmp_ge_u32 {sRot}, 4\ns_cselect_b32 s5, 0x4444, 0x44440000\ns_or_b32 {sRot}, s4, s5'.replace('s_cselect_b32 s5, 0x4444, 0x44440000', 's_mov_b32 s5, 0x44440000\ns_cmovk_i32 s5, 0x4444'))
        elif OPT['rot'] == 2:
            A(f's_mul_i32 {sRot}, {sRot}, 0x11111111\ns_xor_b32 {sRot}, {sRot}, 0x76543210')
        else:
            A(f's_mov_b32 s4, 0x76543210\ns_mov_b32 s5, s4\ns_lshl_b32 s6, {sRot}, 2\ns_lshr_b64 s[4:5], s[4:5], s6\ns_mov_b32 {sRot}, s4')
        if F:
            t0, t1, t2 = T[0:3]
            A(f's_and_b32 {sT0}, {sJ}, 1\ns_mul_i32 {sT0}, {sT0}, 448\ns_sub_u32 {sHb}, 384, {sT0}')
            A(f's_mul_i32 {sT0}, {sWQ}, {16*lrow}\ns_add_u32 {sHb}, {sHb}, {sT0}')
            A(f'v_lshrrev_b32 {t0}, 2, {l}\nv_and_b32 {t1}, 3, {l}\nv_lshrrev_b32 {t2}, 4, {l}\nv_and_b32 {t2}, 2, {t2}\nv_xor_b32 {t2}, {t2}, {t1}\nv_lshlrev_b32 {t2}, 4, {t2}')
            A(f'v_mul_u32_u24 {vh}, {lrow}, {t0}\nv_add_u32 {vh}, {vh}, {t2}')
            self.issue(0, only_half=True)
        if OPT['e1']: self.issue(1, hi=OPT['e1'])
        p2_ids(A)
        t0, t1, f = T[0:3]
        if OPT['ph']:
            if OPT['brot'] and OPT['sw']: A(f's_and_b32 s7, {sJ2}, 3\ns_cmp_eq_u32 s7, 3\ns_cselect_b32 s7, 3, 2\ns_and_b32 s6, s6, s7')
            elif OPT['brot']: A('s_and_b32 s6, s6, 2')
            A(f's_add_u32 s6, s6, {sJ2}\ns_and_b32 s7, s6, 3\ns_lshl_b32 s7, s7, 2\ns_lshr_b32 s4, 0x98109810, s7\ns_and_b32 s4, s4, 0xffff')
            A(f's_mul_i32 {sCur}, s4, 0x10001\ns_add_u32 {sCur}, {sCur}, 0x22220000')
            A(f's_bitcmp1_b32 s6, {1 if OPT["brot"] else 0}\ns_cselect_b32 s5, 0x110000, 0\ns_xor_b32 s5, s5, 0x764444\ns_add_u32 {sCurA}, s4, s5')
        else:
            if OPT['brot'] and OPT['sw']: A(f's_and_b32 s7, {sJ2}, 3\ns_cmp_eq_u32 s7, 3\ns_cselect_b32 s7, 3, 2\ns_and_b32 s6, s6, s7')
            A(f's_lshl_b32 s6, s6, 1' + (f'\ns_and_b32 s6, s6, 4' if OPT['brot'] and not OPT['sw'] else '') + f'\ns_add_u32 s6, s6, {sJ2}' + ('\ns_add_u32 s6, s6, s2' if OPT['xr'] & 1 else '') + '\ns_and_b32 s6, s6, 7')
            A(f's_mov_b32 s4, 0xba983210\ns_mov_b32 s5, s4\ns_lshl_b32 s7, s6, 2\ns_lshr_b64 s[4:5], s[4:5], s7\ns_mov_b32 {sCur}, s4')
            A(f's_mul_i32 s6, s6, 3\ns_and_b32 s7, s6, 28\ns_mov_b32 s4, 0x547dc654\ns_mov_b32 s5, 0x7dc6\ns_lshr_b64 s[4:5], s[4:5], s7\ns_mov_b32 {sCurA}, s4')
        A(f's_mul_i32 s4, {sWQ}, 14\ns_mul_i32 {sAb}, {sI2}, 72\ns_add_u32 {sAb}, {sAb}, s4\ns_lshl_b32 {sAb}, {sAb}, 12\ns_add_u32 {sAb}, {sAb}, {ACT}')
        A(f's_lshl_b32 {sBb}, s4, 15\ns_lshl_b32 s5, {sJ2}, 7\ns_add_u32 {sBb}, {sBb}, s5')
        A(f's_lshl_b32 {sF[0]}, {sWQ}, 17\ns_add_u32 {sF[0]}, {sF[0]}, s5')
        A(f's_lshl_b32 {sLb2}, {sWQ}, 12')
        A(f'v_lshrrev_b32 {t0}, 3, {l}\nv_and_b32 {t1}, 6, {t0}\nv_and_b32 {f}, 7, {l}\nv_xor_b32 {t1}, {t1}, {f}\nv_lshlrev_b32 {t1}, 4, {t1}\nv_lshl_add_u32 {vb0}, {t0}, 10, {t1}\nv_add_u32 {vb1}, 0x2000, {vb0}')
        tr_addr(A, vb, sLb2, t0, t1)
        for q in range(4): A(f'v_add_u32 {vbh[q]}, {Y0}, {vb[q]}')
        A(f'v_mov_b32 {pm}, {L_TAG}\nv_mov_b32 {p1}, 1')
        cnt_i2(A, sF[1], sI2, 1024)
        A(f's_lshl_b32 s4, {sWQ}, 8\ns_add_u32 {sF[1]}, {sF[1]}, s4')
        if OPT['Rh'] > 1: A(f's_and_b32 s4, {sJ2}, 1\ns_lshl_b32 s4, s4, 7\ns_add_u32 {sF[1]}, {sF[1]}, s4')
        ca = T[4:8]; t, g = T[8], T[9]; ones = ACCL[12:16]; wfr = ACCL[16:32]; cs = ACCL[32:48]; vt = T[10]; ff = T[11]
        A(f'v_and_b32 {t}, 15, {l}\nv_lshrrev_b32 {g}, 4, {l}')
        if F: A(f's_cmp_eq_u32 {sWQ}, 3\ns_cselect_b32 s4, 6, 7\ns_cselect_b32 s5, 1, 3\ns_cselect_b32 s6, 1, 0\ns_lshl_b32 s7, {sWQ}, 13')
        else: A(f's_mov_b32 s4, 7\ns_mov_b32 s5, 3\ns_mov_b32 s6, 0\ns_min_u32 s7, {sWQ}, 2\ns_lshl_b32 s7, s7, 13')
        if OPT['r3'] & 1: A(f's_and_b32 {sT0}, {sI}, 7\ns_lshr_b32 {sT0}, 0xb8, {sT0}\ns_and_b32 {sT0}, {sT0}, 1\ns_lshl_b32 {sT0}, {sT0}, 5')
        else: A(f's_lshl_b32 {sT0}, {sI}, {dict([(2,4),(4,3),(8,2)])[OPT["rot"]]}\ns_and_b32 {sT0}, {sT0}, 32')
        HS = OPT['hs']
        sgr = ACCL[56:60]; sga = T[60]; sgs = T[61]
        if HS:
            A(f's_lshr_b32 {sSpin}, {sE[0]}, 15\ns_lshl_b32 {sSpin}, {sSpin}, 10\ns_and_b32 {sT1}, {sE[0]}, 512\ns_add_u32 {sSpin}, {sSpin}, {sT1}')
            A(f's_bfe_u32 {sT1}, {sE[0]}, 0x1000e\ns_lshl2_add_u32 {sT1}, {sT1}, {sWQ}\ns_lshl_b32 {sT1}, {sT1}, 6\ns_add_u32 {sSpin}, {sSpin}, {sT1}\ns_add_u32 {sSpin}, {sSpin}, {STAT}')
        else: A(f's_lshr_b32 {sE[0]}, {sE[0]}, 6\ns_lshl_b32 {sT1}, {sWQ}, 5\ns_add_u32 {sE[0]}, {sE[0]}, {sT1}\ns_add_u32 {sSpin}, {sE[0]}, {STAT}')
        A(f's_lshl_b32 {sT1}, {sWQ}, {4 + HS}\ns_add_u32 {sT1}, {sT1}, {L_SG}\nv_and_b32 {sga}, {1 + 2*HS}, {l}\nv_lshl_add_u32 {sga}, {sga}, 3, {sT1}')
        A(f'v_lshrrev_b32 {sgs}, {1 + HS}, {l}\nv_lshl_add_u32 {sgs}, {sgs}, 26, {v_l16}')
        A(f'v_lshrrev_b32 {t0}, 2, {t}\nv_lshl_add_u32 {t0}, {g}, 3, {t0}\nv_add_u32 {t0}, {sT0}, {t0}\nv_lshlrev_b32 {t0}, s4, {t0}')
        A(f'v_and_b32 {t1}, 3, {t}\nv_lshl_add_u32 {t0}, {t1}, 3, {t0}\ns_add_u32 s7, s7, {phys(0)+16384}')
        if OPT['rot'] == 2: A(f's_bitcmp1_b32 {sI}, 2\ns_cselect_b32 {sT1}, {phys(0) - phys(2)}, 0\ns_sub_u32 s7, s7, {sT1}')
        if OPT['r3'] & 1: A(f's_and_b32 {sT1}, {sI}, 6\ns_cmp_lg_u32 {sT1}, 6\ns_cselect_b32 {sT1}, {phys(0) - phys(1)}, 0\ns_sub_u32 s7, s7, {sT1}')
        A(f'v_add_u32 {t0}, s7, {t0}')
        A(f'v_lshrrev_b32 {f}, 3, {t}\nv_and_b32 {t1}, 1, {g}\nv_lshl_or_b32 {f}, {t1}, 1, {f}\nv_lshrrev_b32 {f}, s6, {f}')
        for q in range(4): A(f'v_xor_b32 {t1}, {q}, {f}\nv_and_b32 {t1}, s5, {t1}\nv_lshl_add_u32 {ca[q]}, {t1}, 5, {t0}')
        A(f's_lshl_b32 s5, 4, s4')
        for r in range(4): A(f'v_mov_b32 {ones[r]}, 0x3f803f80')
        A(f'v_mov_b32 {vt}, {L_TAG}\nv_mov_b32 {ff}, 0xff')
        A(f's_lshl_b32 {sE[1]}, {sJJ}, 14\ns_lshl_b32 {sT0}, {sWQ}, 8\ns_add_u32 {sE[1]}, {sE[1]}, {sT0}\ns_add_u32 {sE[1]}, {sE[1]}, {CSP}')
        A(f's_lshl_b32 {sT0}, {sI}, 10\ns_add_u32 {sE[2]}, {sE[1]}, {sT0}')
        A(f's_lshl_b32 {sE[0]}, {sI}, 2\ns_add_u32 {sE[0]}, {sE[0]}, {sWQ}\ns_lshl_b32 {sE[0]}, {sE[0]}, {9 + HS}\ns_add_u32 {sE[0]}, {sE[0]}, {STAT}')
        TFL = ['', 'nt', 'sc1', 'sc0 sc1', 'sc0 sc1 nt', 'sc1 nt'][OPT['tfl']]
        def mall():
            if OPT['touch'] & 8:
                A(f's_lshl2_add_u32 {sT0}, s2, {sWQ}\ns_lshl_b32 {sT0}, {sT0}, 10\ns_add_u32 {sT1}, {sT0}, 0x100000\ns_mov_b32 m0, {JUNK}')
                C.vm(f'buffer_load_dwordx4 {v_l16}, {sW2}, {sT0} offen {TFL} lds')
                C.vm(f'buffer_load_dwordx4 {v_l16}, {sW2}, {sT1} offen {TFL} lds')
                A(f's_xor_b32 {sT0}, {sT0}, 0x80000')
                C.vm(f'buffer_load_dwordx4 {v_l16}, {sWO}, {sT0} offen {TFL} lds')
                return
            if OPT['touch'] & 16:
                if not F: return
                A(f's_lshl4_add_u32 {sT0}, {sJ}, {sI}\ns_lshl2_add_u32 {sT0}, {sT0}, {sWQ}\ns_lshl_b32 {sT1}, {sT0}, 10\ns_lshl_b32 {sT0}, {sT0}, 12\ns_mov_b32 m0, {JUNK}')
                for i in range(4): C.vm(f'buffer_load_dwordx4 {v_l16}, {sW2}, {sT0} offen offset:{1024*i} {TFL} lds')
                C.vm(f'buffer_load_dwordx4 {v_l16}, {sWO}, {sT1} offen {TFL} lds')
                return
            if OPT['touch'] & 32:
                A(f's_cmp_gt_u32 {sJJ}, 6\ns_subb_u32 {sT0}, {sJJ}, 0\ns_lshl4_add_u32 {sT0}, {sT0}, {sI}\ns_lshl2_add_u32 {sT0}, {sT0}, {sWQ}')
                A(f's_cmp_eq_u32 {sJJ}, 6\ns_cselect_b32 {sT0}, 0x10000, {sT0}\ns_sub_u32 {sT1}, {sT0}, 448\ns_lshl_b32 {sT1}, {sT1}, 10\ns_lshl_b32 {sT0}, {sT0}, 11\ns_mov_b32 m0, {JUNK}')
                A(f's_min_u32 {sT1}, {sT1}, {OOB}')
                for i in range(2): C.vm(f'buffer_load_dwordx4 {v_l16}, {sW2}, {sT0} offen offset:{1024*i} {TFL} lds')
                C.vm(f'buffer_load_dwordx4 {v_l16}, {sWO}, {sT1} offen {TFL} lds')
                return
            if not OPT['touch'] & 4 or F: return
            A(f's_cmp_gt_u32 {sJ}, 3\ns_subb_u32 {sT0}, {sJ}, 0\ns_lshl_b32 {sT0}, {sT0}, 4\ns_add_u32 {sT0}, {sT0}, {sI}\ns_lshl2_add_u32 {sT0}, {sT0}, {sWQ}')
            A(f's_cmp_eq_u32 {sJ}, 3\ns_cselect_b32 {sT0}, 0x10000, {sT0}\ns_lshl_b32 {sT1}, {sT0}, 11\ns_lshl_b32 {sT0}, {sT0}, 12\ns_mov_b32 m0, {JUNK}')
            for i in range(4): C.vm(f'buffer_load_dwordx4 {v_l16}, {sW2}, {sT0} offen offset:{1024*i} {TFL} lds')
            for i in range(2): C.vm(f'buffer_load_dwordx4 {v_l16}, {sWO}, {sT1} offen offset:{1024*i} {TFL} lds')
        def w2h():
            a = ACCL[62]
            A(f'v_lshrrev_b32 {a}, 3, {l}\nv_mul_u32_u24 {a}, {lrow}, {a}\nv_and_b32 {ACCL[63]}, 0x70, {v_l16}\nv_add_u32 {a}, {a}, {ACCL[63]}')
            A(f's_bfe_u32 {sT0}, {sRot}, 0x10012\ns_lshl_b32 {sT0}, {sT0}, 3\ns_and_b32 {sT1}, {sI}, 7\ns_add_u32 {sT0}, {sT0}, {sT1}\ns_lshl2_add_u32 {sT0}, {sT0}, {sWQ}')
            A(f's_mul_i32 {sT0}, {sT0}, {8*lrow}\ns_add_u32 {sT0}, {sT0}, {sWb}\ns_mov_b32 m0, {JUNK}')
            for b in range(3): C.vm(f'buffer_load_dwordx4 {a}, {sW}, {sT0} offen offset:{b*(128 if F else 1024)}{NT("ntp", 0)} lds')
            if F:
                A(f's_bitcmp1_b32 {sJ}, 0\ns_cselect_b32 {sT0}, {OOB}, {sT0}')
                C.vm(f'buffer_load_dwordx4 {a}, {sW}, {sT0} offen offset:384{NT("ntp", 0)} lds')
        def x2h():
            a = ACCL[62]
            A(f'v_lshrrev_b32 {a}, 5, {l}\nv_lshlrev_b32 {a}, 10, {a}\nv_and_b32 {ACCL[63]}, 0x1f0, {v_l16}\nv_add_u32 {a}, {a}, {ACCL[63]}')
            A(f's_bfe_u32 {sT0}, {sRot}, 0x10012\ns_lshl_b32 {sT0}, {sT0}, 9\ns_and_b32 {sT1}, {sJJ}, 3\ns_lshl2_add_u32 {sT1}, {sT1}, {sWQ}\ns_lshl_b32 {sT1}, {sT1}, 13')
            A(f's_add_u32 {sT0}, {sT0}, {sT1}\ns_add_u32 {sT0}, {sT0}, {sXb}\ns_add_u32 {sT1}, {sT0}, 4096\ns_mov_b32 m0, {JUNK}')
            for b in range(4): C.vm(f'buffer_load_dwordx4 {a}, {sX}, {(sT0, sT1)[b >> 1]} offen offset:{(b & 1)*2048} lds')
        if not F:
            A(f's_lshl2_add_u32 {sT0}, {sJ}, {sWQ}\ns_lshr_b32 {sT0}, {sT0}, 1\ns_lshl_b32 {sT0}, {sT0}, 10\ns_add_u32 m0, {sLb}, {L_PHI}\ns_waitcnt lgkmcnt(0)')
            tkphi = C.vm(f'buffer_load_dwordx4 {v_l16}, {sPHI}, {sT0} offen lds')
        if OPT['j3'] & 1 and OPT['j3p'] == 1: j3touch(False)
        if OPT['kva'] and not F:
            z4 = RS[1][0:4]; za = RS[1][4]
            for r in range(4): A(f'v_mov_b32 {z4[r]}, 0')
            A(f's_lshl_b32 {sT1}, {sI}, 10\nv_add_u32 {za}, {sT1}, {v_l16}\nv_cmp_lt_u32 vcc, {2176-16}, {za}\nv_cndmask_b32 {za}, {za}, {ones[0]}, vcc')
            A(f's_lshl2_add_u32 {sT0}, {sJ}, {sWQ}\ns_mul_i32 {sT0}, {sT0}, 2176\ns_add_u32 {sT0}, {sT0}, {KT}')
            C.vm(f'buffer_store_dwordx4 {z4}, {za}, {sWS}, {sT0} offen sc1')
        stl = [int(c, 16) for c in OPT['st']] + [0]*3
        sc = [OPT['stc'] + OPT['stl']]
        if OPT['stl']:
            if F: A('s_waitcnt lgkmcnt(0)')
            stouch(A, OPT['stc'], sc[0])
        stampg(A, 4)
        if OPT['tk'] == -1:
            A('s_waitcnt lgkmcnt(0)'); mall()
        self.issue(1, lo=OPT['e1'], hi=OPT['sp1'])
        if OPT['w2h'] == -2: w2h()
        if OPT['x2h'] == -2: x2h()
        if OPT['tk'] == -2:
            A('s_waitcnt lgkmcnt(0)'); mall()
        stamp(A, 1); stampg(A, 5)
        C.wait(self.stok[0]); stampb(A, 1); stampg(A, 6); A('s_barrier')
        stampg(A, 7)
        stamp(A, 2)
        gq = [ACCL[16+4*i:20+4*i] for i in range(4)]; sg = ACCL[32:36]; ga, sa = T[4], T[5]; tm = ACCL[40:48]
        ldg = [f'buffer_load_dwordx4 {sg}, {v_l16 if HS else sa}, {sWS}, {sE[0]} offen sc1']
        ldg += [f'buffer_load_dwordx4 {gq[i]}, {ga}, {sWS}, {[sE[1], sE[3], sE[4], sE[5]][i]} offen sc1' for i in range(4)]
        nm = OPT['nmF'] if F else OPT['nmA']
        B.free = [TS]
        tl = [int(c) for c in f'{OPT["tl"+self.typ]:09d}']
        tc = [0]
        def touch(n):
            for _ in range(n):
                i = tc[0]
                if i >= 18: return
                tc[0] += 1
                r = i if i < 14 else i - 14
                if r % 4 == 0 or _ == 0:
                    A(f's_lshr_b32 {sT0}, s2, 3\ns_lshl2_add_u32 {sT0}, {sT0}, {sWQ}\ns_mul_i32 {sT0}, {sT0}, {14336 if i < 14 else 4096}\ns_add_u32 {sT0}, {sT0}, {r//4*4096}\ns_mov_b32 m0, {JUNK}')
                C.vm(f'buffer_load_dwordx4 {v_l16}, {sW2 if i < 14 else sWO}, {sT0} offen offset:{(r % 4)*1024} lds')
        c3l = [int(c) for c in f'{OPT["c3F"]:08d}'] + [0]*3
        c3c = [0]
        def c3touch(n):
            if n: A(f's_lshr_b32 {sT0}, s2, 4\ns_and_b32 {sT0}, {sT0}, 8\ns_and_b32 {sT1}, {sI}, 7\ns_add_u32 {sT0}, {sT0}, {sT1}\ns_lshl2_add_u32 {sT1}, {sT0}, {sWQ}\ns_mul_i32 {sT0}, {sT1}, {28*1024}\ns_mov_b32 m0, {JUNK}\ns_lshl_b32 {sT1}, {sT1}, 13')
            for _ in range(n):
                i = c3c[0]
                if i >= 5: return
                c3c[0] += 1
                if i < 4:
                    A(f's_add_u32 s6, {sT0}, {[0, 8192, 16384, 20480][i]}')
                    C.vm(f'buffer_load_dwordx4 {vb0}, {sW2}, s6 offen offset:384 lds')
                else: C.vm(f'buffer_load_dwordx4 {vb0}, {sWO}, {sT1} offen offset:384 lds')
        for k in range(9):
            if k == 3: stampc(A, 1)
            if k == 4: stampc(A, 8)
            if k == 0:
                A(f'ds_read_b32 {vt}, {vt}\nds_read_b64 {sgr[0:2]}, {sga}')
            if k == 0 or (k == 2 and OPT['rot'] == 2) or (k == 1 and OPT['r3'] & 1):
                lk = A.lab('CS')
                if OPT['r3'] & 1: A(f's_and_b32 {sT1}, {sI}, 6\ns_cmp_eq_u32 {sT1}, 6\ns_cbranch_scc{k} {lk}')
                if OPT['rot'] == 2: A(f's_bitcmp1_b32 {sI}, 2\ns_cbranch_scc{1 if k == 0 else 0} {lk}')
                for q in range(4): A(f'ds_read_b64_tr_b16 {wfr[4*q:4*q+2]}, {ca[q]}')
                for q in range(4): A(f'v_add_u32 {ca[q]}, s5, {ca[q]}')
                for q in range(4): A(f'ds_read_b64_tr_b16 {wfr[4*q+2:4*q+4]}, {ca[q]}')
                A(f'{lk}:')
            if OPT['sti'] and 1 <= k < 6:
                stouch(self.sq.append, sc[0], sc[0] + stl[k]); sc[0] += stl[k]; stl[k] = 0
            if k == 0: self.issue(1, lo=OPT['sp1'])
            if k == OPT['w2h'] - 10: w2h()
            if k == OPT['x2h'] - 10: x2h()
            if k == OPT['tk'] - 10: mall()
            spl = [int(c, 16) for c in OPT['spl' + self.typ]]
            if 1 <= k <= 6 and spl[k-1] < 15: self.issue(k + 1, lo=spl[k-1])
            if k == OPT['w2h'] - 20: w2h()
            if k == OPT['x2h'] - 20: x2h()
            if k == OPT['tk'] - 20: mall()
            if k < 6 and spl[k]: self.issue(k + 2, hi=spl[k])
            for x in self.sq: A(x)
            self.sq = []
            if k == 6 and OPT['xr'] & 2:
                A(f's_and_b32 {sT0}, s2, 6\ns_lshl_b32 {sT0}, {sT0}, 9')
                for i in range(4): A(f's_xor_b32 {sLi[i]}, {sT0}, {1024*i}\ns_add_u32 {sLi[i]}, {sLi[i]}, {sLb2}')
                A(f's_and_b32 {sT1}, {sT0}, 1024\ns_lshl_b32 {sT1}, {sT1}, 3\nv_xor_b32 {vr0}, {sT1}, {vb0}\nv_xor_b32 {vr1}, {sT1}, {vb1}')
                A(f's_lshr_b32 {sHb}, {sT1}, 2')
                A(f's_and_b32 {sT1}, {sT0}, 2048\ns_lshl_b32 {sT1}, {sT1}, 3\ns_add_u32 {sBb}, {sBb}, {sT1}')
            if k == 6:
                for i in range(4):
                    A(f's_add_u32 {sT0}, {sWQ}, {i}\ns_and_b32 {sT0}, {sT0}, 3\ns_lshl_b32 {sT0}, {sT0}, 10\nv_add_u32 {va[i]}, {sT0}, {v_l16}')
            if k == 3: stampc(A, 2)
            if k == OPT['stk']:
                if k == 0 or (k == 1 and OPT['r3'] & 1): A(f's_waitcnt lgkmcnt(0)')
                A(f'v_readfirstlane_b32 {sTag}, {vt}')
                A('s_setprio 3')
                for q in range(4): A(f'v_mfma_f32_16x16x32_bf16 {cs[4*q:4*q+4]}, {ones}, {wfr[4*q:4*q+4]}, 0')
                tag_consts(A)
                A(f'v_lshrrev_b32 {t0}, 4, {l}\nv_lshl_add_u32 {t0}, {t0}, 26, {v_l16}')
                for q in range(4): A(f'v_bfi_b32 {cs[q]}, {ff}, {sTB[q]}, {cs[4*q]}')
                A(f's_setprio {OPT["lprio"]}')
                A(f'v_mov_b32 {sgr[2]}, {vt}\nv_mov_b32 {sgr[3]}, {vt}')
                A(f'v_and_b32 {ga}, 15, {l}\nv_lshlrev_b32 {ga}, 4, {ga}\nv_lshl_add_u32 {ga}, {g}, 10, {ga}\nv_and_b32 {sa}, 0x1f0, {v_l16}')
                A(f's_add_u32 {sE[3]}, {sE[1]}, 4096\ns_add_u32 {sE[4]}, {sE[1]}, 8192\ns_add_u32 {sE[5]}, {sE[1]}, 12288')
            if k == OPT['stk']:
                assert (k >= 2 or OPT['rot'] != 2)
                C.vm(f'buffer_store_dwordx4 {cs[0:4]}, {t0}, {sWS}, {sE[2]} offen sc1')
                C.vm(f'buffer_store_dwordx4 {sgr}, {sgs}, {sWS}, {sSpin} offen sc1')
            if k == OPT['j3k'] and OPT['j3'] & 2: j3touch(True)
            if k == OPT['w2h']: w2h()
            if k == OPT['x2h']: x2h()
            if k == OPT['tk']: mall()
            if k == OPT['c3'] and not F:
                A(f's_lshr_b32 {sT0}, s2, 4\ns_and_b32 {sT0}, {sT0}, 8\ns_and_b32 {sT1}, {sI}, 7\ns_add_u32 {sT0}, {sT0}, {sT1}\ns_lshl2_add_u32 {sT1}, {sT0}, {sWQ}\ns_mul_i32 {sT0}, {sT1}, {28*1024}\ns_mov_b32 m0, {JUNK}')
                for o in (0, 8192, 8192, 4096):
                    if o: A(f's_add_u32 {sT0}, {sT0}, {o}')
                    C.vm(f'buffer_load_dwordx4 {vb0}, {sW2}, {sT0} offen offset:384 lds')
                A(f's_lshl_b32 {sT1}, {sT1}, 13')
                C.vm(f'buffer_load_dwordx4 {vb0}, {sWO}, {sT1} offen offset:384 lds')
            if F: c3touch(c3l[k])
            plo, phi_, pa_ = RS[10][0:4], RS[10][4:8], RS[10][8]
            if k == OPT['pk'] and not F:
                if k == 0: C.wait(tkphi)
                A(f'v_bfe_u32 {pa_}, {l}, 3, 2\nv_lshlrev_b32 {pa_}, 3, {pa_}\nv_and_b32 {t1}, 3, {l}\nv_lshl_add_u32 {pa_}, {t1}, 1, {pa_}')
                A(f'v_lshrrev_b32 {t1}, 5, {l}\nv_lshl_add_u32 {pa_}, {t1}, 8, {pa_}')
                A(f's_and_b32 {sT0}, {sWQ}, 1\ns_lshl_b32 {sT0}, {sT0}, 9\ns_add_u32 {sT0}, {sT0}, {sLb}\ns_add_u32 {sT0}, {sT0}, {L_PHI}\nv_add_u32 {pa_}, {sT0}, {pa_}')
                for j in range(8): A(f'ds_read_u16 {(phi_ if j & 1 else plo)[j//2]}, {pa_} offset:{32*j}')
            if k == OPT['pk'] + 1 and not F:
                L = [f'v_bfe_u32 {t1}, {l}, 2, 1', f'v_mul_u32_u24 {t1}, 0x8000, {t1}', f'v_lshl_or_b32 {t1}, {t1}, 16, {t1}']
                for rr in range(4): L += [f'v_lshl_or_b32 {plo[rr]}, {phi_[rr]}, 16, {plo[rr]}', f'v_xor_b32 {plo[rr]}, {plo[rr]}, {t1}']
                L += [f's_add_u32 {sT0}, {sLb}, {L_PHI}', f'v_add_u32 {pa_}, {sT0}, {v_l16}', f'ds_write_b128 {pa_}, {plo}']
                for x in L: A(x)
            if k == OPT['sk'] and OPT['snt'] and not F:
                sn = RS[9][0:4]
                for r in range(4): A(f'v_mov_b32 {sn[r]}, -1')
                A(f's_mul_i32 {sT0}, {sI}, {2*72*4096}\ns_lshl_b32 {sT1}, {sJ}, 11\ns_add_u32 {sT0}, {sT0}, {sT1}\ns_lshl_b32 {sT1}, {sWQ}, 14\ns_add_u32 {sT0}, {sT0}, {sT1}')
                A(f's_add_u32 {sT0}, {sT0}, {ACT + 56*4096}\ns_add_u32 {sT1}, {sT0}, {72*4096}')
                for so in (sT0, sT1):
                    for o_ in (0, 1024): tks = C.vm(f'buffer_store_dwordx4 {sn}, {v_l16}, {sWS}, {so} offen offset:{o_} sc1')
            if k == OPT['gat']:
                for s in ldg: tkg = C.vm(s)
            touch(tl[k])
            if 6 - nm <= k < 6: B.step()
            if k == 6: B.free += [X0, X1]
            if k == 7: B.free += [Y0, Y1]
            if k in (6, 7) and (k != OPT['chk'] or OPT['qf']): B.quota(OPT[f'q{k}{self.typ}'])
            if k == OPT['chk']:
                C.wait(tkg)
                def chk():
                    for i in range(4): quad_diff(A, gq[i], tm[i], tm[4+i])
                    A(f'v_bitop3_b32 {tm[4]}, {sg[2]}, {sg[3]}, {sTag} bitop3:0x7e')
                    A(f'v_or3_b32 {tm[0]}, {tm[0]}, {tm[1]}, {tm[2]}\nv_or3_b32 {tm[0]}, {tm[0]}, {tm[3]}, {tm[4]}\nv_cmp_ne_u32 vcc, 0, {tm[0]}\ns_and_b64 s[4:5], vcc, exec')
                poll(A, '\n'.join(ldg), chk, first_loaded=True, sleep=OPT['slp'])
                L = []
                for i in range(4):
                    for r in range(4): L.append(f'v_and_b32 {gq[i][r]}, 0xffffff00, {gq[i][r]}')
                x = gq[0]
                for r in range(4): L += [f'v_add_f32 {x[r]}, {x[r]}, {gq[1][r]}', f'v_add_f32 {gq[2][r]}, {gq[2][r]}, {gq[3][r]}', f'v_add_f32 {x[r]}, {x[r]}, {gq[2][r]}']
                L += [f'v_permlane32_swap_b32 {x[0]}, {x[2]}', f'v_permlane32_swap_b32 {x[1]}, {x[3]}', f'v_add_f32 {x[0]}, {x[0]}, {x[2]}', f'v_add_f32 {x[1]}, {x[1]}, {x[3]}',
                      f'v_permlane16_swap_b32 {x[0]}, {x[1]}', f'v_add_f32 {x[0]}, {x[0]}, {x[1]}']
                L += [f's_lshl_b32 {sT0}, {sWQ}, 8', f's_add_u32 {sT0}, {sT0}, {L_CS}', f'v_lshl_add_u32 {ga}, {l}, 2, {sT0}', f'ds_write_b32 {ga}, {x[0]}']
                if HS:
                    L += [f'v_mov_b32 {sg[2]}, {sg[0]}', f'v_mov_b32 {sg[3]}, {sg[1]}', f'v_permlane32_swap_b32 {sg[0]}, {sg[2]}', f'v_permlane32_swap_b32 {sg[1]}, {sg[3]}',
                          f'v_add_f32 {sg[1]}, {sg[1]}, {sg[3]}', f'v_sub_f32 {sg[3]}, {sg[0]}, {sg[2]}', f'v_add_f32 {sg[0]}, {sg[0]}, {sg[2]}', f'v_mul_f32 {sg[0]}, 0.5, {sg[0]}',
                          f'v_mul_f32 {sg[3]}, {sg[3]}, {sg[3]}', f'v_fmac_f32 {sg[1]}, {f2u(128.0):#x}, {sg[3]}', f'v_mov_b32 {sg[3]}, {f2u(1e-5):#x}',
                          f'v_fmac_f32 {sg[3]}, {f2u(1/512):#x}, {sg[1]}', f'v_rsq_f32 {sg[1]}, {sg[3]}']
                L += [f's_lshl_b32 {sT1}, {sWQ}, 7', f's_add_u32 {sT1}, {sT1}, {L_NM}', f'v_lshrrev_b32 {sa}, 2, {sa}', f'v_add_u32 {sa}, {sT1}, {sa}',
                      f'v_sub_f32 {sg[0]}, 0, {sg[0]}', f'v_mul_f32 {sg[2]}, {f2u(-LOG2E if F else LOG2E):#x}, {sg[1]}',
                      f'ds_write_b32 {sa}, {sg[0]}', f'ds_write_b32 {sa}, {sg[2]} offset:512']
                if not F: L.append(f'ds_write_b32 {sa}, {sg[1]} offset:1024')
                emit_sched(A, L)
                if k in (6, 7) and not OPT['qf']: B.quota(OPT[f'q{k}{self.typ}'])
            if k == 0: stampg(A, 8)
            if k == 1: stampg(A, 10)
            if k < 8:
                lg = k == 0 or (k == 1 and OPT['r3'] & 1) or k >= 6 - nm or (k == OPT['pk'] and not F)
                if lg and stl[k]: A('s_waitcnt lgkmcnt(0)'); lg = False
                stouch(A, sc[0], sc[0] + stl[k]); sc[0] += stl[k]
                if k < 7: C.wait(self.stok[k+1], 'lgkmcnt(0)' if lg else '')
                elif OPT['snt'] and not F: C.wait(tks, 'lgkmcnt(0)')
                else: A('s_waitcnt lgkmcnt(0)')
                G.done = G.n
                if k == 0: stampg(A, 9)
                if k == 3: stampc(A, 3)
                stampb(A, 2 + k)
                A('s_barrier')
                if k == 3: stampc(A, 4)
        stamp(A, 5)
        if OPT['lprio']: A('s_setprio 0')
        if OPT['dbg'] & (1 if F else 2):
            A(f's_mov_b32 {sW2[2]}, 0\ns_mov_b32 {sWO[2]}, 0')
        if OPT['dbg'] & 4 and F:
            A('s_sleep 60')
        B.wleft = list(range(4 - OPT['wol' + self.typ], 4))
        def wo(ks):
            for k in ks:
                if k not in B.wleft:
                    for f in B.wo_list(k): f()
        A(f's_and_b32 {sF[2]}, {sI2}, 2')
        B.dep = OPT['dep' + self.typ]
        wob = OPT['wob'] if F else OPT['wobA']
        stampe(A, 1)
        mark = len(A.L)
        B.flush()
        while B.next < wob and B.step():
            if B.next % 2 == 1 and B.next > 2: stampe(A, 2 + (B.next-3)//2)
        wo([0, 1])
        stampe(A, 8)
        while B.step(): pass
        wo([2, 3])
        if OPT['ah']:
            idx = [i for i in range(mark, len(A.L)) if A.L[i].startswith('buffer_load')]
            i = idx[-(OPT['ahA'] if (OPT['ahA'] and not F) else OPT['ah'])] + 1
            at = [f's_mov_b32 {sE[2]}, 0', f's_atomic_add {sE[2]}, {sWS[0:2]}, {sF[1]} glc']
            a2 = OPT['a2' + self.typ]
            if a2:
                print('  waits after first check:', [x for x in A.L[idx[-a2] + 1:] if 'lgkmcnt' in x])
                lk = A.lab('H0')
                A.L[i:i] = ['s_waitcnt lgkmcnt(0)', f's_cmp_eq_u32 {sE[2]}, {sE[3]}', f's_cbranch_scc1 {lk}'] + at + [f'{lk}:']
                i = idx[-a2] + 1
            else: assert not any('lgkmcnt(0)' in x for x in A.L[i:])
            A.L[i:i] = at + [f's_add_u32 {sE[3]}, {sTag}, 4']
        stampe(A, 9)
        assert not B.fly
        stamp(A, 6)
        return B

def p2_L(A, B0, typ):
    l = lane; C = Ctx(A); G = LG(A)
    B = BP(A, C, G); B.slot = dict(B0.slot); B.tokwo = 0
    stamp(A, 7); stampe(A, 10); stamph(A, 1)
    if OPT['stamp'] == 12: A('s_memtime s[74:75]')
    if OPT['ah']:
        lk = A.lab('H1')
        A(f's_waitcnt lgkmcnt(0)\ns_cmp_eq_u32 {sE[2]}, {sE[3]}\ns_cbranch_scc1 {lk}')
    ppoll(A, sF[1], 4, OPT['Dh'], 44, OPT['slph'])
    if OPT['ah']: A(f'{lk}:')
    WO_ = OPT['wo'] and typ == 'A'
    if WO_ and not OPT['ns0']: lds_spin(A, pm, 8, 64, ACCL[0])
    stamp(A, 9); stampf(A, 0); stamph(A, 2)
    if OPT['stamp'] in (10, 11): A('s_memtime s[72:73]')
    if OPT['stamp'] == 12: A('s_memtime s[76:77]')
    tok = {}
    TM = OPT['tm']
    assert not TM or (max(o for o in RSL if RSL[o] == 1) <= 7 and max(o for o in RSL if RSL[o] == 0) <= 9 and max(o for o in RSL if RSL[o] == RSL[8]) == 8)
    sOf = lambda s: {12: sXo, 13: sHo}.get(s, sE[1]) if TM else sE[1]
    abuf = lambda s: {12: RS[1], 13: RS[RSL[8]]}.get(s, RS[8 + s % 3]) if TM else RS[8 + s % 3]
    def a_off(s): return [nib(sOf(s), s), f's_lshl_b32 {sOf(s)}, {sOf(s)}, 12', f's_add_u32 {sOf(s)}, {sOf(s)}, {sAb}']
    def ld_a(s, tt):
        tok[(s, tt)] = C.vm(f'buffer_load_dwordx4 {abuf(s)[4*tt:4*tt+4]}, {va[tt]}, {sWS}, {sOf(s)} offen ' + ['sc1', '', 'sc0', 'nt', 'sc0 sc1'][OPT['hld']])
    la = OPT['la' + typ]
    if TM: seq = [(s, tt) for s in range(11) for tt in range(4)] + [(s, tt) for tt in (1, 2, 3, 0) for s in (11, 12, 13)]
    else: seq = [(s, tt) for s in range(14) for tt in ([1, 2, 3, 0] if s == 13 else [0, 1, 2, 3])]
    N0 = 4*OPT['ns0'] if WO_ else 0
    when = [max(-1, n - OPT['la0']) if n < N0 else max(N0 - 1, n - la) for n in range(56)]
    if OPT['lr'] and typ == 'A':
        when = []; n = 0
        for m in range(-1, 56):
            lim = m + 1 + min(la, OPT['la0'] + max(0, m - OPT['lr']))
            while n < min(56, lim): when.append(m); n += 1
    first = {}
    for n, (s, tt) in enumerate(seq): first.setdefault(s, n)
    for n, (s, tt) in enumerate(seq):
        if TM and s == 12: assert when[n] >= 31
        elif TM and s == 13: assert when[n] >= 35
        elif s >= 3: assert when[n] >= seq.index((s - 3, tt))
    def issue_after(m, S=None):
        for n in range(56):
            if when[n] == m:
                if first[seq[n][0]] == n and S != seq[n][0]:
                    for x in a_off(seq[n][0]): A(x)
                ld_a(*seq[n])
    issue_after(-1)
    chk_at = {}
    for p in range(1, len(PH)):
        w = when[first[2*PH[p-1]]]; assert w >= 0
        chk_at[w // 4 if w != N0 - 1 else 'b'] = p
    asy_at = {}
    prev = 0
    for st_, p in sorted(chk_at.items(), key=lambda x: x[1]):
        st_ = N0//4 if st_ == 'b' else st_
        asy_at[max(prev, st_ - OPT['pa3'])] = p; prev = st_
    assert len(asy_at) == len(chk_at) == len(PH) - 1
    A(f's_add_u32 {sE[3]}, {sTag}, 4')
    G.done = G.n
    tokB = {k: 0 for k in range(8)}
    Q = []; X = []
    for k in B0.wleft: X += B.wo_list(k)
    sig = False
    wa, t, a, vm_ = [RS[0][i] for i in range(4)]; ra = [RS[0][4+i] for i in range(3)]; c = RS[0][8:12]; W = []
    tail = [f's_add_u32 {sT0}, {sLb2}, {Y0}', f'v_add_u32 {wa}, {sT0}, {v_l16}']
    for sg in range(1, 4):
        tail += [f's_sub_u32 {sT0}, {sWQ}, {sg}', f's_and_b32 {sT0}, {sT0}, 3', f's_lshl_b32 {sT0}, {sT0}, 12', f's_add_u32 {sT0}, {sT0}, {Y0 + 16384*(sg-1)}', f'v_add_u32 {ra[sg-1]}, {sT0}, {v_l16}']
    tail += [f'v_mov_b32 {c[0]}, {f2u(-LOG2E):#x}', f'v_mov_b32 {c[1]}, {c[0]}', f'v_mov_b32 {c[2]}, 1.0', f'v_mov_b32 {c[3]}, 1.0', f'v_add_u32 {a}, {sLb2}, {v_l16}', f'v_mov_b32 {vm_}, {L_TAG}', f'v_mov_b32 {t}, 1']
    def check(p):
        lk = A.lab('H2')
        if OPT['stamp'] == 12: A(f's_memtime s[{72+4*p+2}:{73+4*p+2}]')
        G.all()
        A(f's_cmp_eq_u32 {sE[2]}, {sE[3]}\ns_cbranch_scc1 {lk}')
        A(f's_mov_b32 {sE[4]}, {sT0}\ns_mov_b32 {sE[5]}, {sT1}')
        spoll(A, f'{sF[1]} offset:{PHO[p]}', 4, OPT['slph'])
        A(f's_mov_b32 {sT0}, {sE[4]}\ns_mov_b32 {sT1}, {sE[5]}')
        A(f'{lk}:')
        if OPT['stamp'] == 12: A(f's_memtime s[{72+4*p+4}:{73+4*p+4}]')
    nm_ = 0; wrdy = []
    for g in range(14):
        if OPT['lp2'] and g == OPT['lpr']: A('s_setprio 0')
        if OPT['lp2'] and g == OPT['lps' + typ]: A(f's_setprio {OPT["lp2"]}')
        def asy():
            A(f's_mov_b32 {sE[2]}, 0\ns_atomic_add {sE[2]}, {sWS[0:2]}, {sF[1]} offset:{PHO[asy_at[g]]} glc')
        if g in asy_at and chk_at.get(g) == asy_at[g]: asy()
        if g in chk_at: check(chk_at[g])
        if g in asy_at and chk_at.get(g) != asy_at[g]: asy()
        nx = 0
        for n in range(4*g, 4*g + 4):
            s, tt = seq[n]
            Bk = RS[RSL[s]]; Ak = abuf(s)
            G.need(tokB[LOAD.index(s)], 0)
            nxt = [m for m in range(56) if when[m] == n]
            Ss = seq[nxt[0]][0] if (len(nxt) == 1 and first[seq[nxt[0]][0]] == nxt[0]) else None
            S = a_off(Ss) if Ss is not None else []
            C.wait(tok[(s, tt)])
            if not sig and not X and tok[(s, tt)] > B.tokwo and (g == 0 or g > 4):
                if g == 0: A(f's_mov_b64 exec, 1\nds_add_u32 {pm}, {p1} offset:4\ns_mov_b64 exec, -1')
                else: A(f'v_mov_b32 {vb0}, {L_TAG}\nv_mov_b32 {vb1}, 1\ns_mov_b64 exec, 1\nds_add_u32 {vb0}, {vb1} offset:4\ns_mov_b64 exec, -1')
                G.n += 1; sig = True; stamph(A, 3)
            for q in range(4):
                qq = 3 - q if (OPT['snk'] and n & 1 and n < 44) else q
                ac = ACCL[16*tt+4*qq:16*tt+4*qq+4]
                A(f'v_mfma_f32_16x16x32_bf16 {ac}, {Bk[4*qq:4*qq+4]}, {Ak[4*tt:4*tt+4]}, {ac if s else 0}')
                nm_ += 1
                if S: A(S.pop(0))
                elif q == 1 and X and nx < (4 if g == 3 else OPT['wper']): X.pop(0)(); nx += 1
                if Q and q < 3:
                    tokB[qk] = G.ds(Q.pop(0))
                elif g >= 10 and tail: A(tail.pop(0))
                if s == 13 and tt:
                    W.append(f'ds_write_b128 {wa}, {ac} offset:{16384*(tt-1) + 1024*q}')
                    wrdy.append(max(nm_ + 4 + OPT['wdel'], (wrdy[-1] + OPT['wsp']) if wrdy and TM else 0))
                if W and nm_ >= wrdy[len(wrdy) - len(W)]:
                    assert not tail or tail[0].startswith('v_mov') or 'v_add' in tail[0] or True
                    A(W.pop(0))
            if n == N0 - 1:
                A(f'v_mov_b32 {abuf(s)[0]}, {L_TAG}')
                A(f's_mov_b32 {sE[4]}, {sT0}')
                lds_spin(A, abuf(s)[0], 8, 64, abuf(s)[1]); G.done = G.n
                A(f's_mov_b32 {sT0}, {sE[4]}')
                if 'b' in chk_at: check(chk_at['b'])
                stamph(A, 9)
            issue_after(n, Ss)
            if OPT['gs'] and when[OPT['gs']] == n:
                assert not X and g > 4
                A(f'v_mov_b32 {vb0}, {L_TAG}\n' + (f'v_lshlrev_b32_e64 {vb1}, {sWQ}, 1' if OPT['pwg'] else f'v_mov_b32 {vb1}, 1') + f'\ns_mov_b64 exec, 1\nds_add_u32 {vb0}, {vb1} offset:12\ns_mov_b64 exec, -1')
                G.n += 1; stamph(A, 4)
        s = g
        assert not Q
        if s in (0, 1, 3, 5, 7, 9, 11, 13): stampf(A, 1 + (s+1)//2)
        if OPT['stamp'] in (10, 11) and 0 <= s - 4*(OPT['stamp'] - 10) < 10: A(f's_memtime s[{74+2*(s - 4*(OPT["stamp"] - 10))}:{75+2*(s - 4*(OPT["stamp"] - 10))}]')
        if s == 2:
            while len(X) % 4: X.pop(0)()
            G.need(tokB[8]); X = B.dma_list(13, B.slot[8]) + X
        if s == 3:
            while len(X) % 4: X.pop(0)()
        if s + 8 < 13: qk = s + 8; Q = B.trl(qk)
        if s == 8:
            assert tok[(8, 3)] > B.tok[13]
            qk = 13; Q = B.trl(13)
    assert sig and not tail and not X
    stamph(A, 5)
    if OPT['stamp'] == 12: A('s_memtime s[90:91]')
    for x in W: A(x)
    stamp(A, 10); stamph(A, 6)
    if OPT['lpt']: A(f's_setprio {OPT["lpt"]}')
    A(f's_mov_b64 exec, 1\nds_add_u32 {vm_}, {t} offset:8\ns_mov_b64 exec, -1')
    lds_spin(A, vm_, 8, 68 if WO_ else 4, t, slp=0 if OPT['nsl'] & 1 else 1)
    stampf(A, 9); stamph(A, 7)
    for u in range(4):
        for sg in range(3): A(f'ds_read_b128 {RS[2+sg][4*u:4*u+4]}, {ra[sg]} offset:{1024*u}')
    P = ACCL[0:16]; e = ACCL[16:32]
    if OPT['npk']:
        for u in range(4):
            A(f's_waitcnt lgkmcnt({9 - 3*u + u})')
            L = []
            for i in range(4*u, 4*u+4):
                L += [f'v_add_f32 {P[i]}, {P[i]}, {RS[2][i]}', f'v_add_f32 {RS[3][i]}, {RS[3][i]}, {RS[4][i]}', f'v_add_f32 {P[i]}, {P[i]}, {RS[3][i]}',
                      ] + ([f'v_exp_f32 {e[i]}, {P[i]}', f'v_fma_f32 {e[i]}, {e[i]}, {c[0]}, {c[0]}'] if OPT['psc'] else [f'v_mul_f32 {e[i]}, {P[i]}, {c[0]}', f'v_exp_f32 {e[i]}, {e[i]}', f'v_add_f32 {e[i]}, 1.0, {e[i]}']) + [
                      f'v_rcp_f32 {e[i]}, {e[i]}', f'v_mul_f32 {e[i]}, {e[i]}, {P[i]}']
            L.append(f'ds_write_b128 {a}, {e[4*u:4*u+4]} offset:{X0 + 1024*u}')
            emit_sched(A, L)
        L = []
    else:
        for u in range(4):
            A(f's_waitcnt lgkmcnt({9 - 3*u})')
            for i in (2*u, 2*u+1):
                A(f'v_pk_add_f32 {P[2*i:2*i+2]}, {P[2*i:2*i+2]}, {RS[2][2*i:2*i+2]}\nv_pk_add_f32 {RS[3][2*i:2*i+2]}, {RS[3][2*i:2*i+2]}, {RS[4][2*i:2*i+2]}')
            for i in (2*u, 2*u+1): A(f'v_pk_add_f32 {P[2*i:2*i+2]}, {P[2*i:2*i+2]}, {RS[3][2*i:2*i+2]}')
        L = []
        for u in range(4):
            for i in (2*u, 2*u+1): L.append(f'v_pk_mul_f32 {e[2*i:2*i+2]}, {P[2*i:2*i+2]}, {c[0:2]}')
            for i in range(4*u, 4*u+4): L.append(f'v_exp_f32 {e[i]}, {e[i]}')
            for i in (2*u, 2*u+1): L.append(f'v_pk_add_f32 {e[2*i:2*i+2]}, {e[2*i:2*i+2]}, {c[2:4]}')
            for i in range(4*u, 4*u+4): L.append(f'v_rcp_f32 {e[i]}, {e[i]}')
            for i in (2*u, 2*u+1): L.append(f'v_pk_mul_f32 {e[2*i:2*i+2]}, {e[2*i:2*i+2]}, {P[2*i:2*i+2]}')
            L.append(f'ds_write_b128 {a}, {e[4*u:4*u+4]} offset:{X0 + 1024*u}')
    emit_sched(A, L)
    A('s_waitcnt lgkmcnt(0)')
    stamp(A, 8); stampf(A, 10); stamph(A, 8)
    A('s_setprio 0\ns_barrier')

def kernel(A):
    K = NAME + '_kernel'
    l = lane
    A(f'.globl {K}\n.p2align {OPT["pa"]}\n.type {K},@function\n{K}:')
    if OPT['stamp']: A(f's_memrealtime s[72:73]' if OPT['stamp'] in (1, 2, 9) else 's_memtime s[72:73]')
    A(f's_load_dwordx2 {sX[0:2]}, s[0:1], 0')
    A(f's_bitcmp1_b32 s2, 6\ns_cselect_b32 s7, 40, 8')
    A(f's_load_dwordx2 {sW[0:2]}, s[0:1], s7')
    A(f's_load_dwordx2 {sWS[0:2]}, s[0:1], 72')
    if OPT['warm']:
        A(f'v_lshlrev_b32 v2, {OPT["warm"]}, v0\ns_waitcnt lgkmcnt(0)')
        stampg(A, 1)
        A(f'global_load_dword v255, v2, {sX[0:2]}\nglobal_load_dword v255, v2, {sW[0:2]}')
    A(f's_movk_i32 {sLrow}, 3072\ns_cmovk_i32 {sLrow}, 3584\ns_movk_i32 {sWb}, 128\ns_cmovk_i32 {sWb}, 448\ns_cselect_b32 s3, 2, 0')
    A('s_lshr_b32 s4, s2, 8\ns_cbranch_scc1 K_done')
    rho, t, k = R('v',13,1), R('v',14,1), R('v',15,1)
    A(f'v_readfirstlane_b32 {sLb}, v0\ns_lshr_b32 s5, s2, 3')
    if OPT['touch'] & 1:
        A(f's_getpc_b64 s[6:7]\nL_pc:')
        A(f's_lshl_b32 s4, s5, 11\nv_lshl_add_u32 v2, v0, 2, s4\nv_min_u32 v2, K_done-L_pc, v2')
        A(f'global_load_dword v255, v2, s[6:7]')
    fx, fw = OPT['flip'] & 2, OPT['flip'] & 1
    sLx, sLw = sE[4], sE[5]
    A(f'v_lshrrev_b32 {t}, 4, v0\nv_xor_b32 {k}, {t}, v0\nv_and_b32 {k}, 7, {k}\nv_lshlrev_b32 {k}, 4, {k}\nv_lshrrev_b32 {rho}, 3, v0')
    A(f'v_lshl_add_u32 {vx0}, {rho}, 10, {k}')
    A(f's_and_b32 s4, s5, 7\ns_and_b32 s6, s2, 1\ns_lshl3_add_u32 {sI}, s6, s4\ns_lshr_b32 s6, s2, 6\ns_lshr_b32 s7, s2, 1')
    assert OPT['rot'] == 4
    if fx: A(f's_lshr_b32 s5, s2, 2\ns_and_b32 s5, s5, 1\ns_add_u32 s5, s5, s4\ns_lshl1_add_u32 s5, s6, s5')
    else: A(f's_add_u32 s5, s4, s6')
    A(f's_and_b32 s5, s5, 3\ns_xor_b32 {sRot}, s7, s2\ns_and_b32 {sRot}, {sRot}, 1\ns_lshl2_add_u32 {sRot}, {sRot}, s5')
    if OPT['sh'] == 1: A(f's_mov_b32 {sRot}, s5')
    if OPT['sh'] == 2: A(f's_or_b32 {sRot}, s5, 4')
    A(f's_and_b32 s7, s7, 3\ns_lshl2_add_u32 {sJJ}, s7, s6')
    b0 = phys(0)
    if OPT['ent']:
        assert not fx
        st0 = sHo
        A(f's_and_b32 {st0}, {sRot}, {4 if OPT["r3"] & 1 else 7}')
        A(f's_lshl_b32 {sXb}, {sI}, 17\ns_lshl_b32 {sXo}, {st0}, 7\ns_add_u32 {sXo}, {sXo}, {sXb}')
        A(f's_lshl_b32 {sX[2]}, 1, 21\ns_lshl_b32 {sX[3]}, 1, 17\ns_lshl_b32 {sLb}, {sLb}, 4')
        A(f'v_add_u32 {vx1}, 0x10000, {vx0}')
        if OPT['hs']:
            A(f'v_lshlrev_b32 {v_l16}, 4, v0\nv_and_b32 v9, 0xffffff00, {v_l16}\nv_mad_u32_u24 v9, v9, 3, {v_l16}')
            A(f's_lshr_b32 {sE[0]}, {sJJ}, 3\ns_lshl2_add_u32 {sE[0]}, {sE[0]}, s6\ns_lshl_b32 {sE[0]}, {sE[0]}, 14\ns_and_b32 s5, {sRot}, 4\ns_lshl_b32 s5, s5, 7\ns_add_u32 {sE[0]}, {sE[0]}, s5\ns_add_u32 {sE[0]}, {sE[0]}, {sXb}')
        else: A(f'v_lshlrev_b32 {v_l16}, 4, v0\nv_and_b32 v9, 0xfffffe00, {v_l16}\nv_add_u32 v9, v9, {v_l16}\ns_lshl_b32 {sE[0]}, {sJJ}, 13\ns_add_u32 {sE[0]}, {sE[0]}, {sXb}')
        A(f's_lshr_b32 {sJ}, {sJJ}, 1')
        A(f'v_bfi_b32 {k}, 2, {rho}, {t}\nv_and_b32 {k}, 6, {k}\nv_xor_b32 {k}, {k}, v0\nv_and_b32 {k}, 7, {k}\nv_lshlrev_b32 {k}, 4, {k}')
        if fw: A(f's_and_b32 s5, s2, 32\nv_xor_b32 {rho}, s5, {rho}\ns_lshl_b32 s5, s5, 7\ns_xor_b32 {sLw}, {sLb}, s5')
        else: A(f's_mov_b32 {sLw}, {sLb}')
        A(f'v_mad_u32_u24 {vw}, {rho}, {sLrow}, {k}')
        A(f's_mul_i32 {sWb}, {sWb}, {sJ}\ns_add_u32 {sWb}, {sWb}, 64\ns_and_b32 {sWb}, {sWb}, 0xffffff80')
        A(f's_lshl_b32 {sW[2]}, {sLrow}, 9\ns_mov_b32 {sW[3]}, {sX[3]}\ns_lshl_b32 {sT0}, {st0}, 6\ns_mul_i32 {sT0}, {sT0}, {sLrow}\ns_add_u32 {sWo}, {sT0}, {sWb}')
        mk3 = len(A.L)
        A(f's_cmp_eq_u32 s3, 0\ns_cselect_b32 {sT0}, 10, 7\ns_lshl_b32 {sT0}, 1, {sT0}\ns_add_u32 {sE[3]}, {sWo}, {sT0}')
        A(f's_add_u32 {sLw}, {sLw}, {b0+24576}\ns_movk_i32 {sT1}, 8192')
        if OPT['r3'] & 4: A(f's_bitcmp1_b32 s2, 4\ns_cselect_b32 s5, -1, 1\ns_mul_i32 {sT0}, {sT0}, s5\ns_mul_i32 {sT1}, {sT1}, s5')
        A(f's_sub_u32 {sE[1]}, {sE[3]}, {sT0}\ns_add_u32 {sE[2]}, {sE[3]}, {sT0}\ns_lshr_b32 {sWV}, {sLb}, 10')
        xl = [f's_add_u32 m0, {sLb}, {b0}\ns_nop 0\nbuffer_load_dwordx4 {vx0}, {sX}, {sXo} offen lds', f's_add_u32 m0, {sLb}, {b0+8192}\ns_nop 0\nbuffer_load_dwordx4 {vx1}, {sX}, {sXo} offen lds']
        wl = [f's_sub_u32 m0, {sLw}, {sT1}\ns_nop 0\nbuffer_load_dwordx4 {vw}, {sW}, {sE[1]} offen lds', f's_mov_b32 m0, {sLw}\ns_nop 0\nbuffer_load_dwordx4 {vw}, {sW}, {sE[3]} offen lds',
              f's_add_u32 m0, {sLw}, {sT1}\ns_nop 0\nbuffer_load_dwordx4 {vw}, {sW}, {sE[2]} offen lds']
        if OPT['b3']:
            del A.L[mk3:]
            A(f's_cmp_eq_u32 s3, 0\ns_cselect_b32 {sT0}, 10, 7\ns_and_b32 s5, s4, 6\ns_lshr_b32 s5, {OPT["b3"]}, s5\ns_and_b32 s5, s5, 3\ns_lshl_b32 s5, s5, 1\ns_lshr_b32 s5, 0x124, s5')
            A(f's_add_u32 {sLw}, {sLw}, {b0+16384}\ns_lshr_b32 {sWV}, {sLb}, 10')
            mm = [sT1, sCur, sCurA]
            for i in range(3):
                A(f's_bfe_u32 s7, s5, {(2 << 16) | 2*i:#x}\ns_lshl_b32 {sE[1+i]}, s7, {sT0}\ns_add_u32 {sE[1+i]}, {sE[1+i]}, {sWo}\ns_lshl_b32 s7, s7, 13\ns_add_u32 {mm[i]}, s7, {sLw}')
            wl = [f's_mov_b32 m0, {mm[i]}\ns_nop 0\nbuffer_load_dwordx4 {vw}, {sW}, {sE[1+i]} offen lds' for i in range(3)]
        xl = [x.replace(' lds', NT('ntx', 0) + ' lds') for x in xl]; wl = [x.replace(' lds', NT('ntw', 0) + ' lds') for x in wl]
        A(f's_cmp_ge_u32 {sLb}, 4096')
        stampg(A, 1)
        A('s_waitcnt lgkmcnt(0)')
        stampg(A, 2)
        A('s_cbranch_scc1 K_norow')
        A(f's_load_dword {sTag}, {sWS[0:2]}, {EPOCH}')
        A(f'buffer_load_dwordx4 {xrow[0:4]}, v9, {sX}, {sE[0]} offen{NT("ntr",0)}\nbuffer_load_dwordx4 {xrow[4:8]}, v9, {sX}, {sE[0]} offen offset:{256 if OPT["hs"] else 512}{NT("ntr",0)}')
        A('K_norow:')
        if OPT['r3'] & 2:
            if OPT['w6']: A(f's_cmp_eq_u32 {sJJ}, 6\ns_cbranch_scc1 K_wx')
            A(f's_bitcmp1_b32 {sRot}, 0\ns_cbranch_scc1 K_wx')
            for x in xl + wl: A(x)
            A('s_branch K_xw\nK_wx:')
            for x in wl + xl: A(x)
            A('K_xw:')
        else:
            for x in xl + wl: A(x)
    else:
        A(f's_lshl_b32 {sXb}, {sI}, 17\ns_lshl_b32 {sXo}, {sRot}, 7\ns_add_u32 {sXo}, {sXo}, {sXb}')
        A(f's_lshl_b32 {sX[2]}, 1, 21\ns_lshl_b32 {sX[3]}, 1, 17\ns_lshl_b32 {sLb}, {sLb}, 4')
        if fx:
            A(f's_lshr_b32 s5, s2, 7\ns_lshl_b32 s7, s5, 15\nv_xor_b32 {vx0}, s7, {vx0}\ns_lshl_b32 s5, s5, 12\ns_xor_b32 {sLx}, {sLb}, s5')
        else: sLx = sLb
        A(f'v_add_u32 {vx1}, 0x10000, {vx0}\ns_add_u32 m0, {sLx}, {b0}')
        A(f'v_lshlrev_b32 {v_l16}, 4, v0\nv_and_b32 v9, 0xfffffe00, {v_l16}\nv_add_u32 v9, v9, {v_l16}\ns_lshl_b32 {sE[0]}, {sJJ}, 13\ns_add_u32 {sE[0]}, {sE[0]}, {sXb}')
        A(f's_cmp_ge_u32 {sLb}, 4096')
        if not OPT['warm']: stampg(A, 1)
        A('s_waitcnt lgkmcnt(0)')
        stampg(A, 2)
        A('s_cbranch_scc1 K_norow')
        A(f's_load_dword {sTag}, {sWS[0:2]}, {EPOCH}')
        A(f'buffer_load_dwordx4 {xrow[0:4]}, v9, {sX}, {sE[0]} offen\nbuffer_load_dwordx4 {xrow[4:8]}, v9, {sX}, {sE[0]} offen offset:512')
        A('K_norow:')
        A(f'buffer_load_dwordx4 {vx0}, {sX}, {sXo} offen lds')
        A(f's_add_u32 m0, {sLx}, {b0+8192}\ns_lshr_b32 {sJ}, {sJJ}, 1\nbuffer_load_dwordx4 {vx1}, {sX}, {sXo} offen lds')
        A(f'v_bfi_b32 {k}, 2, {rho}, {t}\nv_and_b32 {k}, 6, {k}\nv_xor_b32 {k}, {k}, v0\nv_and_b32 {k}, 7, {k}\nv_lshlrev_b32 {k}, 4, {k}')
        if fw: A(f's_and_b32 s5, s2, 32\nv_xor_b32 {rho}, s5, {rho}\ns_lshl_b32 s5, s5, 7\ns_xor_b32 {sLw}, {sLb}, s5')
        else: sLw = sLb
        A(f'v_mad_u32_u24 {vw}, {rho}, {sLrow}, {k}')
        A(f's_mul_i32 {sWb}, {sWb}, {sJ}\ns_add_u32 {sWb}, {sWb}, 64\ns_and_b32 {sWb}, {sWb}, 0xffffff80')
        A(f's_lshl_b32 {sW[2]}, {sLrow}, 9\ns_mov_b32 {sW[3]}, {sX[3]}\ns_lshl_b32 {sT0}, {sRot}, 6\ns_mul_i32 {sT0}, {sT0}, {sLrow}\ns_add_u32 {sWo}, {sT0}, {sWb}')
        A(f's_add_u32 m0, {sLw}, {b0+16384}\ns_cmp_eq_u32 s3, 0\nbuffer_load_dwordx4 {vw}, {sW}, {sWo} offen lds')
        A(f's_cselect_b32 {sE[2]}, 10, 7\ns_lshl_b32 {sE[2]}, 1, {sE[2]}\ns_add_u32 {sE[3]}, {sWo}, {sE[2]}')
        A(f's_add_u32 m0, {sLw}, {b0+24576}\ns_add_u32 {sE[2]}, {sE[3]}, {sE[2]}\nbuffer_load_dwordx4 {vw}, {sW}, {sE[3]} offen lds')
        A(f's_add_u32 m0, {sLw}, {b0+32768}\ns_lshr_b32 {sWV}, {sLb}, 10\nbuffer_load_dwordx4 {vw}, {sW}, {sE[2]} offen lds')
    A(f'v_and_b32 v1, 63, v0\nv_lshlrev_b32 {v_l16}, 4, v1')
    if OPT['stamp']:
        for i in range(3 if OPT['stamp'] == 7 else 1, NS): A(f's_mov_b64 s[{72+2*i}:{73+2*i}], 0')
    A(f's_lshl_b32 {sWS[2]}, 1, 24\ns_mov_b32 {sWS[3]}, {sX[3]}')
    A(f's_and_b32 {sWQ}, {sWV}, 3\ns_lshr_b32 s4, {sWV}, 2\ns_add_u32 s3, s3, s4')
    stampg(A, 3)
    A('s_cmp_eq_u32 s3, 1\ns_cbranch_scc1 K_LA\ns_cmp_eq_u32 s3, 0\ns_cbranch_scc1 K_CA\ns_cmp_eq_u32 s3, 2\ns_cbranch_scc1 K_CF')
    Bs = []
    for typ in 'FA':
        A(f'K_L{typ}:')
        Bs.append(LW(A, typ).run())
        p2_L(A, Bs[-1], typ); A('s_branch K_end')
    A('K_CF:')
    c = CW(A, 'F'); c.prologue(); c.main(); c.epi_F()
    A('s_branch K_C2')
    A('K_CA:')
    c = CW(A, 'A'); c.prologue(); c.main(); c.epi_A()
    A('K_C2:')
    p2_C(A)
    A('K_end:')
    stamp_out(A)
    A('K_done:\ns_endpgm')

def add_stubs(body):
    dummy = [f'WS_{t}{c}:' for t in 'FA' for c in range(4)]
    S = sizes_of(body + dummy)
    reg = None; off = 0x300; n = 0; page = 0
    marks = []; nb = {}
    for k, l in enumerate(body):
        if l.endswith(':'):
            if l[:-1] in ('K_LF', 'K_LA', 'K_CF', 'K_CA', 'K_C2', 'K_end'):
                reg = l[2:-1] if l != 'K_end:' else None
                if reg == 'C2': marks.append((k + 1, reg)); off += 8
                if reg == 'LA' and OPT['ia']:
                    body[k] = '.p2align 12\n' + l; off = (off + 4095) & ~4095; page = off >> 10
            continue
        if l.startswith('.'): continue
        if l == 's_barrier': nb[reg] = nb.get(reg, 0) + 1
        fine = reg and ((OPT['stub'] >= 2 and reg in ('CF', 'CA') and 1 <= nb.get(reg, 0) < OPT['stbe']) or (OPT['stub'] >= 3 and reg[0] == 'L' and 1 <= nb.get(reg, 0) < 9))
        if off >> 10 != page:
            pg = off >> 12 != page >> 2
            page = off >> 10
            if reg and (pg or fine) and (reg == 'C2' or nb.get(reg, 0) >= 1): marks.append((k, reg)); off += 8
        off += S[n]; n += 1
    lst = {r: [k for k, rr in marks if rr == r] for r in ('LF', 'LA', 'CF', 'CA', 'C2')}
    print('stubs', {r: len(v) for r, v in lst.items()})
    ins = {}
    for k in lst['C2']: ins[k] = [f'WS_{k}:', 's_cbranch_execz K_wret', 's_nop 0']
    for t in 'FA':
        own = lst['C' + t] + lst['L' + t]
        ch = [own[c::4] for c in range(4)]
        for i, k in enumerate(lst['C2']): ch[3 - i].append(k)
        for c in range(4):
            for i, k in enumerate(ch[c]):
                if k not in ins: ins[k] = [f'WS_{k}:', f's_cbranch_execz ' + (f'WS_{ch[c][i+1]}' if i + 1 < len(ch[c]) else f'WR_{t}'), 's_nop 0']
            ins[ch[c][0]].insert(0, f'WS_{t}{c}:')
    out = []
    for k, l in enumerate(body):
        out += ins.get(k, []); out.append(l)
    z = False
    for l in out:
        if l == 's_mov_b64 exec, 0': z = True
        elif l.startswith('s_mov_b64 exec'): z = False
        assert not (z and 'execz' in l)
    return out
def build():
    A = Asm(); kernel(A)
    body = fix_hazards(A.L, verbose=True)
    dummy = [f'WS_{t}{c}:' for t in 'FA' for c in range(4)] if OPT['stub'] else []
    if OPT['al']: body = align8(body + dummy, verbose=True)
    if OPT['stub']: body = add_stubs(body[:-8])
    K = NAME + '_kernel'
    hdr = ['; @launch grid=(256,1,1) block=(512,1,1) lds=163840', '.amdgcn_target "amdgcn-amd-amdhsa--gfx950"', '.text']
    tail = ['.section .rodata,"a"', '.p2align 6', f'''.amdhsa_kernel {K}
  .amdhsa_next_free_vgpr 256
  .amdhsa_next_free_sgpr 102
  .amdhsa_accum_offset 256
  .amdhsa_group_segment_fixed_size 0
  .amdhsa_kernarg_size 80
  .amdhsa_user_sgpr_count 2
  .amdhsa_user_sgpr_kernarg_segment_ptr 1
  .amdhsa_system_sgpr_workgroup_id_x 1
.end_amdhsa_kernel''']
    return '\n'.join(hdr + body + tail) + '\n'
if __name__ == '__main__':
    open(sys.argv[1], 'w').write(build())
```

```python
import sys, struct
from asmlib import *
NAME = 'recurrent_scan__linear_kernel_hedgehog__dense_activation_silu__prompt'
SZ_X, SZ_QKV, SZ_PHI, SZ_WO, SZ_W1, SZ_W2, SZ_OUT, SZ_WS = 2048*512*2, 512*1536*2, 32*16*16*2, 512*512*2, 512*1792*2, 1792*512*2, 2048*512*2, 0x1000000
EPOCH, STAT, KT, CSP, CNT, ACT, KP = 0, 0x30000, 0x10000, 0x40000, 0x80000, 0x100000, 0xB00000
OOB = 0x40000000
SB = 45056
def phys(s): return (2 - s % 3) * SB
X0, X1, WOB, Y0, Y1, TS, MISC = 0, 16384, 32768, 102400, 118784, 135168, 151552
L_NM, L_RL, L_R, L_CS, L_TAG = MISC, MISC+512, MISC+1024, MISC+1536, MISC+2560
L_SG, L_PHI = MISC+2624, MISC+4096
JUNK = MISC + 8192
LOG2E = 1.4426950408889634
def f2u(x): return struct.unpack('<I', struct.pack('<f', x))[0]
OPT = dict(stamp=0, touch=33, spin=1<<16, slp=2, hold=3, keep=8, nmA=0, nmF=0, n6A=2, n7A=2, n6F=2, n7F=2, sp0=6, wob=4, wobA=4, tlA=0, tlF=0, gat=5, chk=7, opoll=0, lprio=1, brot=1, npre=9, vmgap=64, dbg=0, hst=0, rot=4, lord=4, r2=0, j3=0, c3=6, flip=1, warm=0, qf=0, tk=1, pk=0, spm=3, stk=1, q6A=4, q7A=8, q6F=12, q7F=8, sp1=99, laA=10, laF=11, wdel=2, lag=3, wolA=0, wolF=2, wper=4, cprio=0, opk=1, depA=7, depF=8, al=1, ack1=0, ack2=0, slpa=0, slph=2, slpo=4, ost=1, hld=0, old=0, j3k=1, j3p=0, st='0000000', stl=0, stcp=0, sti=0, c3F=0, ph0=0, stub=1, stc=0, sc3=0, pa=12, ia=1, stbe=9, kva=1, lp2=2, xr=0, ph=2467, pa3=3, gs=55, ah=3, ahA=8, pwg=1, lr=0, xu=1, hs=0, psc=1, nsl=5, splA='a6ffff', splF='a6ffff', t64=1, tfl=0, wfl=0, snk=1, holdF=2, lpr=14, lpt=2, lpsA=8, lpsF=3, wo=0, snt=0, eo=1, la0=4, ns0=0, tm=1, wsp=3, npk=1, r3=7, ent=1, e1=5, sw=1, sk=6, tto=0, qa=2, qb=1, Rk=1, Dk=0, Ro=1, Do=0, Rh=1, Dh=0, psl=5, ntx=0, ntw=0, ntr=0, ntf=1, xm=0, w2h=99, ntp=1, x2h=99, a2A=0, a2F=11, b3=0, w6=0, sh=0, ra=0, o2=0, tk2=99)
for a in sys.argv[2:]:
    k, v = a.split('='); assert k in OPT, k; OPT[k] = v if k in ('st', 'splA', 'splF') else int(v)

sX, sW, sWS, sPHI, sW2, sOUT, sWO = [R('s', 8+4*i, 4) for i in range(7)]
(sI, sJ, sWV, sWQ, sRot, sT0, sT1, sXo, sWo, sHo, sXb, sWb, sHb, sLb, sTag, sSpin,
 sI2, sJ2, sCur, sCurA, sBb, sAb, sLb2, sJJ, sLrow, sTB1, sTB2, sTB3) = [R('s', 36+i, 1) for i in range(28)]
sTB = [sTag, sTB1, sTB2, sTB3]
sM2 = R('s', 64, 2)
sE = [R('s', 66+i, 1) for i in range(6)]
NS = 12
sSel = [R('s', 96, 1), R('s', 97, 1)]; sF = [R('s', 98+i, 1) for i in range(4)]
lane = R('v', 1, 1)
v_l16 = R('v', 3, 1)
vx0, vx1, vw = R('v', 10, 1), R('v', 11, 1), R('v', 12, 1)
xrow = R('v', 240, 8)

class Ctx:
    def __init__(self, A): self.A = A; self.n = 0
    def vm(self, s):
        self.A(s); self.n += 1; return self.n
    def wait(self, tok, extra=''):
        k = min(self.n - tok, 63); assert k >= 0
        self.A(f's_waitcnt vmcnt({k}) {extra}'.strip())
class LG:
    def __init__(self, A): self.A = A; self.n = 0; self.done = 0
    def ds(self, s):
        self.A(s); self.n += 1; return self.n
    def need(self, tok, keep=None):
        if tok <= self.done: return
        k = min(self.n - tok, OPT['keep'] if keep is None else keep, 15)
        self.A(f's_waitcnt lgkmcnt({k})'); self.done = self.n - k
    def all(self):
        self.A('s_waitcnt lgkmcnt(0)'); self.done = self.n
def stamp(A, i):
    if OPT['stamp'] == 9:
        A(f's_memrealtime s[{72+2*i}:{73+2*i}]'); return
    if OPT['stamp'] == 3: A(f's_memtime s[{72+2*i}:{73+2*i}]')
    elif OPT['stamp'] == 1 or (OPT['stamp'] and i == NS-1): A(f's_memrealtime s[{72+2*i}:{73+2*i}]')
def stampb(A, i):
    if OPT['stamp'] == 4: A(f's_memtime s[{72+2*i}:{73+2*i}]')
def stampe(A, i):
    if OPT['stamp'] == 5 and i < 11: A(f's_memtime s[{72+2*i}:{73+2*i}]')
def stampf(A, i):
    if OPT['stamp'] == 6 and i < 11: A(f's_memtime s[{72+2*i}:{73+2*i}]')
def stampg(A, i):
    if OPT['stamp'] == 7 and i < 11: A(f's_memtime s[{72+2*i}:{73+2*i}]')
def stamph(A, i):
    if OPT['stamp'] == 8 and i < 11: A(f's_memtime s[{72+2*i}:{73+2*i}]')
def stampc(A, i):
    if OPT['stamp'] == 2: A(f's_memtime s[{72+2*i}:{73+2*i}]')
def stamp_out(A):
    if not OPT['stamp']: return
    A(f's_waitcnt vmcnt(0)')
    stamp(A, NS-1)
    A('s_waitcnt lgkmcnt(0)')
    if OPT['stamp'] == 9:
        A('s_load_dwordx2 s[4:5], s[0:1], 64\ns_waitcnt lgkmcnt(0)')
        for i in range(NS): A(f's_atomic_umax s{72+2*i}, s[4:5], {4*i}')
        A('s_not_b32 s72, s72\ns_atomic_umax s72, s[4:5], 48\ns_waitcnt lgkmcnt(0)')
        return
    A(f's_lshl_b32 s4, s2, 3\ns_add_u32 s4, s4, {sWV}\ns_lshl_b32 s4, s4, 7\ns_add_u32 s4, s4, {15*1024*1024}')
    A(f'v_lshlrev_b32 v2, 26, v1')
    for i in range(NS):
        A(f'v_mov_b32 v4, s{72+2*i}\nv_mov_b32 v5, s{73+2*i}\nbuffer_store_dwordx2 v[4:5], v2, {sWS}, s4 offen offset:{8*i}')
    A(f's_getreg_b32 s5, hwreg(HW_REG_XCC_ID)\ns_getreg_b32 s6, hwreg(HW_REG_HW_ID)\nv_mov_b32 v4, s5\nv_mov_b32 v5, s6\nbuffer_store_dwordx2 v[4:5], v2, {sWS}, s4 offen offset:96')
def srd(A, s, off, size):
    A(f's_load_dwordx2 {s[0:2]}, s[0:1], {off}\ns_mov_b32 {s[2]}, {size}\ns_mov_b32 {s[3]}, 0x20000')
def dpp_add(v, m): return f'v_add_f32_dpp {v}, {v}, {v} {m} row_mask:0xf bank_mask:0xf'
def emit_sched(A, L, name='', **kw):
    out, t, nops = sched(L, **kw)
    if name: print(f'  sched {name}: {len(out)} instrs, est {t} clk, nops {nops}')
    for x in out: A(x)
def poll(A, ld, check, first_loaded=False, sleep=1, mask_exec=False):
    l0, l1, l2 = A.lab('PL'), A.lab('PC'), A.lab('PD')
    A(f's_mov_b32 {sSpin}, {OPT["spin"]}')
    if first_loaded: A(f's_branch {l1}')
    A(f'{l0}:'); A(ld); A('s_waitcnt vmcnt(0)')
    if mask_exec: A('s_mov_b64 exec, -1')
    A(f'{l1}:')
    check()
    A(f's_cbranch_scc0 {l2}')
    if sleep: A(f's_sleep {sleep}')
    if mask_exec: A('s_mov_b64 exec, s[4:5]')
    A(f's_sub_u32 {sSpin}, {sSpin}, 1\ns_cbranch_scc0 {l0}')
    if mask_exec: A('s_mov_b64 exec, -1')
    A(f'{l2}:')
def chk_words(A, regs, tmp):
    def f():
        if len(regs) == 1: A(f'v_cmp_ne_u32 vcc, {sTag}, {regs[0]}')
        else:
            np_ = len(regs)//2
            for i in range(np_): A(f'v_bitop3_b32 {tmp[i]}, {regs[2*i]}, {regs[2*i+1]}, {sTag} bitop3:0x7e')
            i = 1
            while i < np_:
                if i + 1 < np_: A(f'v_or3_b32 {tmp[0]}, {tmp[0]}, {tmp[i]}, {tmp[i+1]}'); i += 2
                else: A(f'v_or_b32 {tmp[0]}, {tmp[0]}, {tmp[i]}'); i += 1
            A(f'v_cmp_ne_u32 vcc, 0, {tmp[0]}')
        A(f's_and_b64 s[4:5], vcc, exec')
    return f
def spoll(A, so, n, sleep):
    l0, l1 = A.lab('SP'), A.lab('SD')
    A(f's_add_u32 {sT1}, {sTag}, {n}\ns_mov_b32 {sSpin}, {OPT["spin"]}')
    A(f'{l0}:\ns_mov_b32 {sT0}, 0\ns_atomic_add {sT0}, {sWS[0:2]}, {so} glc\ns_waitcnt lgkmcnt(0)\ns_cmp_eq_u32 {sT0}, {sT1}\ns_cbranch_scc1 {l1}')
    if sleep: A(f's_sleep {sleep}')
    A(f's_sub_u32 {sSpin}, {sSpin}, 1\ns_cbranch_scc0 {l0}\n{l1}:')
def ppoll_pre(A, so, D, base, clear=True):
    if not D: return
    if clear:
        A('s_waitcnt lgkmcnt(0)')
        for d in range(D): A(f's_mov_b32 s{base+2*d}, {sTag}\ns_sub_u32 s{base+2*d+1}, {sTag}, 1')
def ppoll(A, so, n, D, base, sleep, pre=True):
    if not D: return spoll(A, so, n, sleep)
    l0, l1 = A.lab('PP'), A.lab('PQ')
    ppoll_pre(A, so, D, base, pre)
    A(f's_add_u32 {sT1}, {sTag}, {n}\ns_mov_b32 {sSpin}, {OPT["spin"]}')
    at = lambda d: f's_atomic_cmpswap s[{base+2*d}:{base+2*d+1}], {sWS[0:2]}, {so} glc'
    for d in range(1, D): A(at(d) + f'\ns_sleep {2*OPT["psl"]//D}')
    A(f'{l0}:')
    for d in range(D):
        A(at(d) + f'\ns_waitcnt lgkmcnt({D-1})\ns_cmp_eq_u32 s{base + 2*((d+1) % D)}, {sT1}\ns_cbranch_scc1 {l1}')
    A(f's_sub_u32 {sSpin}, {sSpin}, 1\ns_cbranch_scc0 {l0}\n{l1}:')
def sarrive(A, *sos):
    A(f's_waitcnt vmcnt(0)')
    for so in sos: A(f's_atomic_add {sLrow}, {sWS[0:2]}, {so}')
def cnt_i2(A, d, i2, extra):
    A(f's_lshr_b32 {d}, {i2}, 1\ns_lshl_b32 {d}, {d}, 14\ns_and_b32 s4, {i2}, 1\ns_lshl_b32 s4, s4, 11\ns_add_u32 {d}, {d}, s4\ns_add_u32 {d}, {d}, {CNT + extra}')
def quad_diff(A, q, d, t):
    A(f'v_perm_b32 {d}, {q[1]}, {q[0]}, {sSel[0]}\nv_perm_b32 {t}, {q[3]}, {q[2]}, {sSel[1]}\nv_bitop3_b32 {d}, {d}, {t}, {sTag} bitop3:0x96')
def tag_consts(A):
    A(f's_lshr_b32 {sTB1}, {sTag}, 8\ns_lshr_b32 {sTB2}, {sTag}, 16\ns_lshr_b32 {sTB3}, {sTag}, 24')
    A(f's_mov_b32 {sSel[0]}, 0x0c0c0400\ns_mov_b32 {sSel[1]}, 0x04000c0c')
def tag_quad(q, ff): return [f'v_bfi_b32 {q[k]}, {ff}, {sTB[k]}, {q[k]}' for k in range(4)]
def lds_spin(A, va, off, n, vt, mask=False, slp=1):
    l0, l1 = A.lab('LS'), A.lab('LD')
    A(f's_mov_b32 {sSpin}, {OPT["spin"]*4}')
    A(f'{l0}:\nds_read_b32 {vt}, {va} offset:{off}\ns_waitcnt lgkmcnt(0)\nv_readfirstlane_b32 {sT0}, {vt}\n' + (f's_and_b32 {sT0}, {sT0}, {n}\n' if mask else '') + f's_cmp_ge_u32 {sT0}, {n}\ns_cbranch_scc1 {l1}')
    if slp: A(f's_sleep {slp}')
    A(f's_sub_u32 {sSpin}, {sSpin}, 1\ns_cbranch_scc0 {l0}\n{l1}:')
def lds_inc(A, va, off, vt):
    A(f'v_mov_b32 {vt}, 1\ns_mov_b64 exec, 1\nds_add_u32 {va}, {vt} offset:{off}\ns_mov_b64 exec, -1')
def p2_ids(A):
    A(f's_and_b32 s4, s2, 7\ns_lshr_b32 s5, s2, 3')
    if OPT['xm']: A(f's_lshl_b32 s4, s4, 2\ns_lshr_b32 s4, {[0, 0x73625140, 0x37261504][OPT["xm"]]:#x}, s4\ns_and_b32 s4, s4, 7')
    if OPT['sw']:
        A(f's_and_b32 s6, s5, 15\ns_lshr_b32 s6, 0x880, s6\ns_and_b32 s6, s6, 1\ns_mul_i32 s6, s6, 12\ns_xor_b32 s5, s5, s6')
    A(f's_lshl_b32 s4, s4, 2\ns_lshr_b32 s6, s5, 3\ns_add_u32 {sI2}, s4, s6\ns_and_b32 {sJ2}, s5, 7')
def tr_addr(A, vab, base, t0, t1):
    l = lane
    A(f'v_lshrrev_b32 {t0}, 2, {l}\nv_lshlrev_b32 {t0}, 7, {t0}\nv_and_b32 {t1}, 3, {l}\nv_lshl_add_u32 {t0}, {t1}, 3, {t0}\nv_add_u32 {t0}, {base}, {t0}')
    A(f'v_bfe_u32 {t1}, {l}, 3, 2')
    for q in range(4):
        A(f'v_xor_b32 {vab[q]}, {q}, {t1}\nv_lshl_add_u32 {vab[q]}, {vab[q]}, 5, {t0}')

def stouch(A, lo, hi, junk='s3'):
    if lo < min(hi, 36): A(f's_lshl2_add_u32 s6, s2, {sWQ}\ns_lshl_b32 s7, s6, 9\ns_mul_i32 s6, s6, 1792')
    for i in range(lo, min(hi, 72 if OPT['sc3'] else 36)):
        if i == max(lo, 36): A(f's_lshr_b32 s6, s2, 3\ns_lshl2_add_u32 s6, s6, {sWQ}\ns_lshl_b32 s7, s6, 12\ns_mul_i32 s6, s6, {14*1024}')
        if i < 28: A(f's_load_dword {junk}, {sW2[0:2]}, s6 offset:{64*i}')
        elif i < 36: A(f's_load_dword {junk}, {sWO[0:2]}, s7 offset:{64*(i-28)}')
        elif i < 64: A(f's_load_dword {junk}, {sW2[0:2]}, s6 offset:{(i-36)//2*1024 + 384 + 64*(i & 1)}')
        else: A(f's_load_dword {junk}, {sWO[0:2]}, s7 offset:{(i-64)//2*1024 + 384 + 64*(i & 1)}')
class CW:
    def __init__(self, A, typ):
        self.A = A; self.typ = typ
        self.C = Ctx(A); self.G = LG(A)
        self.V = Pool('v', 4, 256); self.V.at(9, 4); self.V.at(240, 16)
    def prologue(self):
        A, V, C, l, typ = self.A, self.V, self.C, lane, self.typ
        C.n = 7; tk_row = 2; self.tk0 = 7
        F = typ == 'F'
        srd(A, sOUT, 56, SZ_OUT)
        if OPT['stc']: A(f's_load_dwordx2 {sW2[0:2]}, s[0:1], 48')
        if not F: self.aphi = V.alloc(4, 4)
        self.ax = [V.alloc(), V.alloc()]
        T64 = F and OPT['t64']
        self.aw = [V.alloc() for _ in range(3 if T64 else 6 if F else 1)]
        t, g, t0, t1, f = [R('v', 232+i, 1) for i in range(5)]
        b0 = phys(0)
        A(f'v_and_b32 {t}, 15, {l}\nv_lshrrev_b32 {g}, 4, {l}')
        A(f'v_lshrrev_b32 {t0}, 1, {t}\nv_xor_b32 {t0}, {t0}, {g}\nv_lshlrev_b32 {t0}, 4, {t0}\nv_lshl_add_u32 {t0}, {t}, 7, {t0}')
        if T64: A(f's_lshr_b32 {sT0}, {sWQ}, 1\ns_lshl_b32 {sT0}, {sT0}, 13\nv_add_u32 {t0}, {sT0}, {t0}')
        elif F: A(f's_lshl_b32 {sT0}, {sWQ}, 12\nv_add_u32 {t0}, {sT0}, {t0}')
        A(f'v_add_u32 {self.ax[0]}, {b0}, {t0}\nv_xor_b32 {t0}, 64, {t0}\nv_add_u32 {self.ax[1]}, {b0}, {t0}')
        A(f'v_lshrrev_b32 {f}, 3, {t}\nv_and_b32 {t0}, 1, {g}\nv_lshl_or_b32 {f}, {t0}, 1, {f}')
        A(f'v_lshrrev_b32 {t0}, 2, {t}\nv_lshlrev_b32 {t0}, 7, {t0}\nv_lshl_add_u32 {t0}, {g}, 10, {t0}\nv_and_b32 {t1}, 3, {t}\nv_lshl_add_u32 {t0}, {t1}, 3, {t0}\nv_add_u32 {t0}, {b0+16384}, {t0}')
        if not F:
            A(f'v_xor_b32 {t1}, {sWQ}, {f}\nv_lshl_add_u32 {self.aw[0]}, {t1}, 5, {t0}')
        else:
            if T64:
                A(f's_and_b32 {sT1}, {sWQ}, 1\ns_lshl_b32 {sT0}, {sT1}, 1\nv_xor_b32 {t1}, {sT0}, {f}\nv_lshl_add_u32 {self.aw[0]}, {t1}, 5, {t0}\nv_xor_b32 {t1}, 1, {t1}\nv_lshl_add_u32 {self.aw[1]}, {t1}, 5, {t0}')
            else:
                for q in range(4): A(f'v_xor_b32 {t1}, {q}, {f}\nv_lshl_add_u32 {self.aw[q]}, {t1}, 5, {t0}')
            A(f'v_lshrrev_b32 {t0}, 2, {t}\nv_lshlrev_b32 {t0}, 6, {t0}\nv_lshl_add_u32 {t0}, {g}, 9, {t0}\nv_and_b32 {t1}, 3, {t}\nv_lshl_add_u32 {t0}, {t1}, 3, {t0}\nv_add_u32 {t0}, {b0+16384}, {t0}')
            A(f'v_and_b32 {f}, 1, {g}')
            if T64: A(f'v_xor_b32 {t1}, {sT1}, {f}\nv_lshl_add_u32 {self.aw[2]}, {t1}, 5, {t0}')
            else:
                for q in range(2): A(f'v_xor_b32 {t1}, {q}, {f}\nv_lshl_add_u32 {self.aw[4+q]}, {t1}, 5, {t0}')
        A(f's_lshl_b32 {sT0}, {sI}, 4\ns_add_u32 {sT0}, {sT0}, {sJJ}\ns_lshl2_add_u32 {sT0}, {sT0}, {sWQ}\ns_lshl_b32 {sT0}, {sT0}, 8\ns_add_u32 {sT0}, {sT0}, {CNT}')
        stampg(A, 4)
        A('s_waitcnt lgkmcnt(0)')
        stampg(A, 5)
        A(f's_mul_i32 {sTag}, {sTag}, 0x9E3779B1\ns_add_u32 {sTag}, {sTag}, 0x7F4A7C15\ns_mov_b32 {sSpin}, {sTag}')
        A(f's_atomic_swap {sSpin}, {sWS[0:2]}, {sT0} glc')
        if OPT['Rh'] > 1 or len(PH) > 2: A(f's_mov_b32 {sCurA}, {sTag}\ns_atomic_swap {sCurA}, {sWS[0:2]}, {sT0} offset:128 glc')
        if OPT['stcp'] == 0: stouch(A, 0, OPT['stc'], sCur)
        p2_ids(A)
        if not F: self.consts_A()
        tag_consts(A)
        A(f's_mov_b32 {sLrow}, 1')
        V.release(R('v', 240, 16), R('v', 9, 4))
        self.tk_row = tk_row
    def stats(self):
        A, C, l, tk_row = self.A, self.C, lane, self.tk_row
        x = R('v', 216, 16); o = R('v', 248, 4); t = R('v', 252, 1); ad = R('v', 253, 1); u = R('v', 254, 1)
        HS = OPT['hs']
        A(f's_lshl_b32 {sT0}, {sWQ}, {4 + HS}\ns_add_u32 {sT0}, {sT0}, {L_SG}\nv_lshrrev_b32 {ad}, {5 - HS}, {l}\nv_lshl_add_u32 {ad}, {ad}, 3, {sT0}')
        z = R('v', 232, 4)
        A(f'v_mov_b32 {u}, {L_TAG}\nv_mov_b32 {z[0]}, {sTag}\nv_mov_b32 {z[1]}, 0\nv_mov_b32 {z[2]}, 0\nv_mov_b32 {z[3]}, 0\nds_write_b128 {u}, {z}')
        stampg(A, 6)
        if OPT['stcp'] == 1: stouch(A, 0, OPT['stc'], sCur)
        C.wait(tk_row)
        stampg(A, 7)
        for i in range(8): A(f'v_lshlrev_b32 {x[2*i]}, 16, {xrow[i]}\nv_and_b32 {x[2*i+1]}, 0xffff0000, {xrow[i]}')
        y = xrow
        for i in range(4): A(f'v_pk_add_f32 {y[2*i:2*i+2]}, {x[4*i:4*i+2]}, {x[4*i+2:4*i+4]}')
        A(f'v_pk_add_f32 {y[0:2]}, {y[0:2]}, {y[2:4]}\nv_pk_add_f32 {y[4:6]}, {y[4:6]}, {y[6:8]}\nv_pk_add_f32 {y[0:2]}, {y[0:2]}, {y[4:6]}\nv_add_f32 {o[0]}, {y[0]}, {y[1]}')
        def hsum(v):
            for m in ('quad_perm:[1,0,3,2]', 'quad_perm:[2,3,0,1]', 'row_half_mirror', 'row_mirror'): A(dpp_add(v, m))
            if not HS: A(f'v_mov_b32 {t}, {v}\nv_permlane16_swap_b32 {v}, {t}\nv_add_f32 {v}, {v}, {t}')
        hsum(o[0])
        A(f'v_mul_f32 {o[0]}, {f2u(1/256 if HS else 1/512):#x}, {o[0]}')
        for i in range(16): A(f'v_sub_f32 {x[i]}, {x[i]}, {o[0]}')
        A(f'v_pk_mul_f32 {y[0:2]}, {x[0:2]}, {x[0:2]}\nv_pk_mul_f32 {y[2:4]}, {x[2:4]}, {x[2:4]}')
        for i in range(2, 8): A(f'v_pk_fma_f32 {y[2*(i&1):2*(i&1)+2]}, {x[2*i:2*i+2]}, {x[2*i:2*i+2]}, {y[2*(i&1):2*(i&1)+2]}')
        A(f'v_pk_add_f32 {y[0:2]}, {y[0:2]}, {y[2:4]}\nv_add_f32 {o[2]}, {y[0]}, {y[1]}')
        hsum(o[2])
        if HS: A(f'v_mov_b32 {o[1]}, {o[2]}')
        else: A(f'v_mov_b32 {o[1]}, {f2u(1e-5):#x}\nv_fmac_f32 {o[1]}, {f2u(1/512):#x}, {o[2]}\nv_rsq_f32 {o[1]}, {o[1]}')
        stampg(A, 8)
        A(f'ds_write_b64 {ad}, {o[0:2]}')
    def consts_A(self):
        A, V, l = self.A, self.V, lane
        t0, t1, val, key = [R('v', 232+i, 1) for i in range(4)]
        self.sel16 = V.alloc(16, 4)
        self.bsel = [self.sel16[0:4], self.sel16[4:8]]; self.zsel = [self.sel16[8:12], self.sel16[12:16]]
        A(f'v_and_b32 {t1}, 1, {l}\nv_lshlrev_b32 {t1}, 4, {t1}\nv_mov_b32 {val}, 0x3f80\nv_lshlrev_b32 {val}, {t1}, {val}')
        A(f'v_bfe_u32 {key}, {l}, 1, 2\nv_bfe_u32 {t1}, {l}, 4, 1\nv_lshl_or_b32 {key}, {t1}, 2, {key}')
        A(f'v_lshrrev_b32 {t1}, 2, {l}\nv_xor_b32 {t1}, {t1}, {l}\nv_and_b32 {t1}, 8, {t1}\nv_or_b32 {key}, {key}, {t1}')
        for T in range(2):
            for rr in range(4):
                A(f'v_cmp_eq_u32 vcc, {rr + 4*T}, {key}\nv_cndmask_b32 {self.bsel[T][rr]}, 0, {val}, vcc')
        A(f'v_and_b32 {key}, 15, {l}\nv_mov_b32 {val}, 0x3f803f80')
        for m in range(2):
            A(f'v_cmp_eq_u32 vcc, {4*m if OPT["kva"] else m}, {key}\nv_cndmask_b32 {self.zsel[m][0]}, 0, {val}, vcc')
            for rr in range(1, 4): A(f'v_mov_b32 {self.zsel[m][rr]}, {self.zsel[m][0]}')
    def rd_w(self, dst, u, kk):
        b, q = self.units[u]
        return [f'ds_read_b64_tr_b16 {dst[2*hf:2*hf+2]}, {self.aw[q]} offset:{b*8192 + (kk*4096 + hf*512 if b < 3 else kk*2048 + hf*256)}' for hf in range(2)]
    def rd_x(self, dst, tt, kk): return [f'ds_read_b128 {dst}, {self.ax[kk]} offset:{tt*2048}']
    def main(self):
        A, V, C, G, typ = self.A, self.V, self.C, self.G, self.typ
        F = typ == 'F'
        if F and OPT['t64']:
            self.ntt = 4; self.units = [(b, q) for b in range(3) for q in range(2)] + [(3, 2)]
        elif F:
            self.ntt = 2; self.units = [(b, q) for b in range(3) for q in range(4)] + [(3, 4), (3, 5)]
        else:
            self.ntt = 8; self.units = [(0, 0), (1, 0), (2, 0)]
        nu = len(self.units)
        self.acc = [[V.alloc(4, 4) for u in range(nu)] for tt in range(self.ntt)]
        nr, nd = (nu, self.ntt) if F else (self.ntt, nu)
        self.Rg = [V.alloc(4, 4) for _ in range(nr)]
        self.Dg = [V.alloc(4*nd, 4) for _ in range(2)]
        rdR, rdD = (self.rd_w, self.rd_x) if F else (self.rd_x, self.rd_w)
        last_R, last_pre, fill = self.pre_epi()
        self.stats()
        if OPT['stub']:
            A('s_mov_b64 exec, 0')
            for c in range(3): A(f's_cmp_eq_u32 {sWQ}, {c}\ns_cbranch_scc1 WS_{typ}{c}')
            A(f's_branch WS_{typ}3')
            if not F: A(f'K_wret:\ns_cmp_lg_u32 s3, 0\ns_cbranch_scc1 WR_F')
            A(f'WR_{typ}:\ns_mov_b64 exec, -1')
        if OPT['stcp'] == 2: stouch(A, 0, OPT['stc'], sCur)
        stamp(A, 1); stampg(A, 9)
        C.wait(self.tk0, 'lgkmcnt(0)'); stampg(A, 10); A('s_barrier')
        stampb(A, 1)
        stamp(A, 2)
        tokR = {}; tokD = {}
        Q = []
        def issue(k):
            for _ in range(k):
                if not Q: return
                s, key = Q.pop(0); tk = G.ds(s)
                if key: (tokR if key[0] == 'R' else tokD)[key[1:]] = tk
        def kq(L, key): return [(s, key if i == len(L)-1 else None) for i, s in enumerate(L)]
        for d in range(nd): Q += kq(rdD(self.Dg[0][4*d:4*d+4], d, 0), ('D', 0, d))
        for j in range(nr): Q += kq(rdR(self.Rg[j], j, 0), ('R', 0, j))
        issue(12)
        for n in range(16):
            st, kk = n >> 1, n & 1
            pend = []
            blocked = kk == 1
            nD = []
            if n < 15:
                for d in range(nd): nD += kq(rdD(self.Dg[(n+1) & 1][4*d:4*d+4], d, kk ^ 1), ('D', n+1, d))
            else: nD = [(s, None) for s in last_pre]
            if blocked: pend += nD
            else: Q += nD
            adds = []
            if kk == 1 and st < 7:
                dlt = phys(st+1) - phys(st)
                adds = [f'v_add_u32 {r}, {dlt & 0xffffffff:#x}, {r}' for r in self.ax + self.aw]
            if n == 15: adds = list(self.pre_v)
            fl = list(fill.get(n, []))
            if n == 6: stampc(A, 1)
            if n == 8: stampc(A, 8)
            for j in range(nr):
                if blocked and j == OPT['holdF' if (F and OPT['t64']) else 'hold']:
                    assert not Q
                    for a in adds: A(a)
                    adds = []
                    if n == 7: stampc(A, 2)
                    G.all()
                    if n == 7: stampc(A, 3)
                    A('s_barrier')
                    if n == 7: stampc(A, 4)
                    if n == 7: stamp(A, 3)
                    stampb(A, 2 + st)
                    blocked = False; Q += pend; pend = []
                for d in (range(nd-1, -1, -1) if (OPT['snk'] and j & 1) else range(nd)):
                    tt, u = (d, j) if F else (j, d)
                    G.need(max(tokR[(n, j)], tokD[(n, d)]))
                    w, x = (self.Rg[j], self.Dg[n & 1][4*d:4*d+4]) if F else (self.Dg[n & 1][4*d:4*d+4], self.Rg[j])
                    a, b = (x, w) if (not F and u == 2) else (w, x)
                    acc = self.acc[tt][u]
                    A(f'v_mfma_f32_16x16x32_bf16 {acc}, {a}, {b}, {acc if n else 0}')
                    if Q: issue(2 if len(Q) > 3 else 1)
                    elif adds:
                        A(adds.pop(0))
                        if adds: A(adds.pop(0))
                    elif fl: A(fl.pop(0))
                nw = kq(rdR(self.Rg[j], j, kk ^ 1), ('R', n+1, j)) if n < 15 else [(s, None) for s in last_R[j]]
                if blocked: pend += nw
                else: Q += nw
            for x in fl: A(x)
        issue(100)
        stampb(A, 10)
        stamp(A, 5)
        V.release(*self.ax); V.release(*self.aw)
    def pre_epi(self):
        A, V, l = self.A, self.V, lane
        if self.typ == 'F' and OPT['t64']:
            at, ag, ag2, self.vsp = V.alloc(), V.alloc(), V.alloc(), V.alloc()
            A(f's_lshr_b32 {sT1}, {sWQ}, 1\ns_lshl_b32 {sT0}, {sT1}, 8\ns_add_u32 {sT0}, {sT0}, {L_NM}\nv_and_b32 {at}, 15, {l}\nv_lshl_add_u32 {at}, {at}, 2, {sT0}')
            A(f's_and_b32 {sF[1]}, {sWQ}, 1\ns_lshl_b32 {sT0}, {sF[1]}, 6\ns_add_u32 {sF[0]}, {sT0}, {L_CS}\nv_and_b32 {ag2}, 48, {l}\nv_add_u32 {ag2}, {sF[0]}, {ag2}\nv_add_u32 {ag}, {sT0}, {ag2}')
            self.ms = [V.alloc(2) for _ in range(4)]; self.nr = [V.alloc(2) for _ in range(4)]
            pre = []
            for tt in range(4):
                pre += [f'ds_read2_b32 {self.ms[tt]}, {at} offset0:{16*tt} offset1:{16*tt}', f'ds_read2_b32 {self.nr[tt]}, {at} offset0:{128+16*tt} offset1:{128+16*tt}']
            lastR = [[f'ds_read_b128 {self.Rg[u]}, {ag} offset:{256*(u >> 1) + 64*(u & 1)}'] for u in range(6)] + [[f'ds_read_b128 {self.Rg[6]}, {ag2} offset:768']]
            self.kL = V.alloc(2)
            A(f'v_mov_b32 {self.kL[0]}, {f2u(1.0 if OPT["psc"] else -LOG2E):#x}\nv_mov_b32 {self.kL[1]}, {self.kL[0]}')
            A(f's_lshl1_add_u32 {sT0}, {sI}, {sT1}')
            cnt_i2(A, sF[2], sT0, 1024)
            A(f's_lshr_b32 {sT1}, {sJ}, 1\ns_lshl_b32 {sT1}, {sT1}, 8\ns_add_u32 {sF[2]}, {sF[2]}, {sT1}')
            A(f's_mul_i32 {sT0}, {sT0}, 72\ns_mul_i32 {sT1}, {sJ}, 7\ns_add_u32 {sT0}, {sT0}, {sT1}\ns_lshl_b32 {sT0}, {sT0}, 12\ns_add_u32 {sT0}, {sT0}, {ACT}')
            A(f's_and_b32 {sT1}, {sJ}, 1\ns_add_u32 {sF[0]}, {sT1}, {sF[1]}\ns_lshl_b32 {sF[0]}, {sF[0]}, 12\ns_add_u32 {sF[0]}, {sF[0]}, {sT0}')
            A(f's_lshl_b32 {sF[1]}, {sF[1]}, 9\ns_add_u32 {sF[1]}, {sF[1]}, {sT0}\ns_xor_b32 {sT1}, {sT1}, 1\ns_mul_i32 {sT1}, {sT1}, {6*4096}\ns_add_u32 {sF[1]}, {sF[1]}, {sT1}')
            tv = self.Dg[0][0]
            self.pre_v = [f'v_and_b32 {self.vsp}, 0xf0, {v_l16}', f'v_bfe_u32 {tv}, {l}, 4, 1', f'v_lshl_add_u32 {self.vsp}, {tv}, 10, {self.vsp}', f'v_lshrrev_b32 {tv}, 5, {l}', f'v_lshl_add_u32 {self.vsp}, {tv}, 8, {self.vsp}']
            return lastR, pre, {}
        if self.typ == 'F':
            at, ag = V.alloc(), V.alloc()
            A(f's_lshl_b32 {sT0}, {sWQ}, 7\ns_add_u32 {sT0}, {sT0}, {L_NM}\nv_and_b32 {at}, 15, {l}\nv_lshl_add_u32 {at}, {at}, 2, {sT0}')
            A(f'v_and_b32 {ag}, 48, {l}\nv_add_u32 {ag}, {L_CS}, {ag}')
            self.ms = [V.alloc(2) for _ in range(2)]; self.nr = [V.alloc(2) for _ in range(2)]
            pre = []
            for tt in range(2):
                pre += [f'ds_read2_b32 {self.ms[tt]}, {at} offset0:{16*tt} offset1:{16*tt}', f'ds_read2_b32 {self.nr[tt]}, {at} offset0:{128+16*tt} offset1:{128+16*tt}']
            lastR = [[f'ds_read_b128 {self.Rg[u]}, {ag} offset:{64*u}'] for u in range(14)]
            self.kL = V.alloc(2)
            A(f'v_mov_b32 {self.kL[0]}, {f2u(1.0 if OPT["psc"] else -LOG2E):#x}\nv_mov_b32 {self.kL[1]}, {self.kL[0]}')
            A(f's_lshl_b32 {sT0}, {sI}, 1\ns_lshr_b32 {sT1}, {sWQ}, 1\ns_add_u32 {sT0}, {sT0}, {sT1}')
            cnt_i2(A, sF[2], sT0, 1024)
            A(f's_lshr_b32 {sT1}, {sJ}, 1\ns_lshl_b32 {sT1}, {sT1}, 8\ns_add_u32 {sF[2]}, {sF[2]}, {sT1}')
            A(f's_mul_i32 {sT0}, {sT0}, 72\ns_mul_i32 {sT1}, {sJ}, 7\ns_add_u32 {sT0}, {sT0}, {sT1}\ns_lshl_b32 {sT0}, {sT0}, 12')
            A(f's_and_b32 {sT1}, {sWQ}, 1\ns_lshl_b32 {sF[0]}, {sT1}, 11\ns_add_u32 {sT0}, {sT0}, {sF[0]}\ns_add_u32 {sT0}, {sT0}, {ACT}')
            A(f's_and_b32 {sT1}, {sJ}, 1')
            A(f's_lshl_b32 {sF[0]}, {sT1}, 12\ns_add_u32 {sF[0]}, {sF[0]}, {sT0}')
            A(f's_xor_b32 {sT1}, {sT1}, 1\ns_mul_i32 {sT1}, {sT1}, {6*4096}\ns_add_u32 {sF[1]}, {sT0}, {sT1}')
            self.pre_v = []
            return lastR, pre, {}
        self.MR = [V.alloc(16, 4) for _ in range(4)]
        self.cv = V.alloc(2)
        R_ = self.Rg
        self.negm = [R_[T//2][2*(T & 1):2*(T & 1)+2] for T in range(8)]
        self.rl = [R_[4 + p//2][2*(p & 1):2*(p & 1)+2] for p in range(4)]
        self.ck, self.cq = R_[6], R_[7]
        D0 = self.Dg[0]
        a4, ag, a32, ac = D0[0], D0[1], D0[2], D0[3]
        pre_v = [f'v_and_b32 {a4}, 15, {l}', f'v_lshlrev_b32 {a4}, 2, {a4}', f'v_and_b32 {ag}, 48, {l}', f'v_and_b32 {a32}, 31, {l}',
                 f'v_add_u32 {ac}, {sF[3]}, {a4}', f'v_add_u32 {a4}, {L_NM}, {a4}', f'v_lshlrev_b32 {a32}, 2, {a32}', f'v_add_u32 {a32}, {L_RL}, {a32}',
                 f'v_add_u32 {D0[4]}, {sF[3]}, {ag}', f'v_add_u32 {ag}, {L_NM}, {ag}']
        A(f's_lshl_b32 {sF[3]}, {sWQ}, 6\ns_add_u32 {sF[3]}, {sF[3]}, {L_CS}')
        pre = [f'ds_read2_b32 {self.cv}, {ac} offset0:128 offset1:128']
        for p in range(4):
            for T in range(2):
                pre += [f'ds_read_b128 {self.MR[p][8*T:8*T+4]}, {ag} offset:{64*(2*p+T)}', f'ds_read_b128 {self.MR[p][8*T+4:8*T+8]}, {ag} offset:{1024+64*(2*p+T)}']
        lastR = [[f'ds_read2_b32 {self.negm[T]}, {a4} offset0:{16*T} offset1:{16*T}' for T in (2*j, 2*j+1)] for j in range(4)]
        lastR += [[f'ds_read2_b32 {self.rl[p]}, {a32} offset0:{32*p} offset1:{32*p}' for p in (2*j, 2*j+1)] for j in range(2)]
        lastR += [[f'ds_read_b128 {self.ck}, {D0[4]} offset:256'], [f'ds_read_b128 {self.cq}, {D0[4]}']]
        pre_v.append(f'v_add_u32 {D0[5]}, {sHo}, {v_l16}')
        A(f's_lshl_b32 {sHo}, {sWQ}, 10\ns_add_u32 {sHo}, {sHo}, {L_PHI}')
        pre.append(f'ds_read_b128 {self.aphi}, {D0[5]}')
        self.pre_v = pre_v
        e0, e1, e2, e3 = sE[0:4]
        A(f's_lshl_b32 {e2}, {sJ}, 2\ns_add_u32 {e2}, {e2}, {sWQ}\ns_mul_i32 {e3}, {e2}, {16*2176}\ns_add_u32 {e3}, {e3}, {KP}')
        A(f's_mul_i32 {e0}, {sI}, 2176\ns_add_u32 {e0}, {e0}, {e3}')
        A(f's_lshl2_add_u32 {sXb}, {sJJ}, {sWQ}\ns_lshl_b32 {sXb}, {sXb}, 8\ns_add_u32 {sXb}, {sXb}, {CNT}\ns_add_u32 {sWb}, {sXb}, {4*16384}')
        A(f's_and_b32 {sXo}, {sI}, {OPT["Rk"]-1}\ns_lshl_b32 {sXo}, {sXo}, 14\ns_add_u32 {sWo}, {sXo}, {sWb}\ns_add_u32 {sXo}, {sXo}, {sXb}')
        A(f's_lshl_b32 {sT0}, {sI}, 6\ns_add_u32 {e1}, {e3}, {sT0}')
        A(f's_mul_i32 {e2}, {e2}, 2176\ns_add_u32 {e2}, {e2}, {KT}\ns_add_u32 {e3}, {e2}, {sT0}')
        A(f's_cmp_eq_u32 {sI}, 0\ns_cselect_b32 {sE[4]}, {e1}, {OOB}\ns_cselect_b32 {sE[5]}, {e3}, {OOB}\ns_cselect_b64 {sM2}, -1, 0')
        A(f's_mul_i32 {sF[0]}, {sI}, {2*72*4096}\ns_lshl_b32 {sT0}, {sJ}, 11\ns_add_u32 {sF[0]}, {sF[0]}, {sT0}\ns_lshl_b32 {sT0}, {sWQ}, 9\ns_add_u32 {sF[0]}, {sF[0]}, {sT0}\ns_add_u32 {sF[0]}, {sF[0]}, {ACT + 56*4096}')
        A(f's_lshl_b32 {sF[1]}, {sI}, 14\ns_add_u32 {sF[1]}, {sF[1]}, {CNT + 5120}\ns_add_u32 {sHb}, {sF[1]}, 2048')
        A(f's_or_b32 {sT0}, {sWQ}, {sJ}\ns_or_b32 {sT0}, {sT0}, {sI}\ns_cselect_b32 {sF[2]}, {OOB}, {EPOCH}')
        return lastR, pre, {}
    def epi_F(self):
        A, V, C = self.A, self.V, self.C
        cc = self.Rg
        NT = 3
        tmp = [V.alloc(8, 4) for _ in range(NT)]; outp = [V.alloc(4, 4) for _ in range(NT)]
        T64 = OPT['t64']
        if T64:
            for pr in range(1, 3): A(f's_add_u32 {sE[pr]}, {sF[0]}, {pr*8192}')
        else:
            for pr in range(1, 6): A(f's_add_u32 {sE[pr]}, {sF[0]}, {pr*4096}')
        so = [sF[0]] + sE[1:6] + [sF[1]]
        self.G.all()
        L = []; k = 0
        for pr in range(4 if T64 else 7):
            for tt in range(2 if (pr == 3 or not T64) else 4):
                p = tmp[k % NT]; o = outp[k % NT]; k += 1
                spl = T64 and pr == 3
                if spl: a0, a1, c0, c1, tk = self.acc[2*tt][6], self.acc[2*tt+1][6], cc[6], cc[6], [2*tt, 2*tt, 2*tt+1, 2*tt+1]
                else: a0, a1, c0, c1, tk = self.acc[tt][2*pr], self.acc[tt][2*pr+1], cc[2*pr], cc[2*pr+1], [tt]*4
                src = [a0[0:2], a0[2:4], a1[0:2], a1[2:4]]
                cs = [c0[0:2], c0[2:4], c1[0:2], c1[2:4]]
                for i in range(4): L.append(f'v_pk_fma_f32 {src[i]}, {cs[i]}, {self.ms[tk[i]]}, {src[i]}')
                for i in range(4): L.append(f'v_pk_mul_f32 {src[i]}, {src[i]}, {self.nr[tk[i]]}')
                for i in range(8): L.append(f'v_exp_f32 {p[i]}, {src[i//2][i&1]}')
                for i in range(4): L.append(f'v_pk_add_f32 {p[2*i:2*i+2]}, {p[2*i:2*i+2]}, {self.kL}' if OPT['psc'] else f'v_pk_fma_f32 {p[2*i:2*i+2]}, {p[2*i:2*i+2]}, {self.kL}, {self.kL}')
                for i in range(8): L.append(f'v_rcp_f32 {p[i]}, {p[i]}')
                for i in range(4): L.append(f'v_pk_mul_f32 {p[2*i:2*i+2]}, {src[i]}, {p[2*i:2*i+2]}')
                for i in range(4): L.append(f'v_cvt_pk_bf16_f32 {o[i]}, {p[2*i]}, {p[2*i+1]}')
                if spl:
                    L += [f'v_permlane16_swap_b32 {o[0]}, {o[2]}', f'v_permlane16_swap_b32 {o[1]}, {o[3]}', f'buffer_store_dwordx4 {o}, {self.vsp}, {sWS}, {sF[1]} offen offset:{tt*2048} sc1']
                    continue
                L.append(f'buffer_store_dwordx4 {o}, {v_l16}, {sWS}, {so[pr]} offen offset:{tt*1024} ' + ['sc1', '', 'sc1 nt', 'sc0 sc1', 'nt'][OPT['hst']])
        if OPT['dbg'] & 8: L = [x for x in L if not x.startswith('buffer')]
        stampe(A, 1); ns = 0
        for x in L:
            A(x)
            if x.startswith('buffer'):
                ns += 1
                if ns % 2 == 0: stampe(A, 1 + ns//2)
                for p, e in enumerate(PH):
                    if ns == 2*e + OPT['lag']: A(f's_waitcnt vmcnt({OPT["lag"]})\ns_atomic_add {sLrow}, {sWS[0:2]}, {sF[2]} offset:{PHO[p]}')
        C.n += 14
        stamp(A, 6)
        for p, e in enumerate(PH):
            if 2*e + OPT['lag'] > 14: A(f's_waitcnt vmcnt({14 - 2*e})\ns_atomic_add {sLrow}, {sWS[0:2]}, {sF[2]} offset:{PHO[p]}')
        stampe(A, 9)
        stamp(A, 7)
    def feat(self, a0, a1, cvec, negm, rl, P16, E):
        L = []; B4 = a0
        for T, a in enumerate((a0, a1)):
            for h in range(2): L.append(f'v_pk_fma_f32 {a[2*h:2*h+2]}, {cvec[2*h:2*h+2]}, {negm[T]}, {a[2*h:2*h+2]}')
        for T, a in enumerate((a0, a1)):
            for h in range(2): L.append(f'v_cvt_pk_bf16_f32 {B4[2*T+h]}, {a[2*h]}, {a[2*h+1]}')
        L += [f'v_permlane16_swap_b32 {B4[0]}, {B4[2]}', f'v_permlane16_swap_b32 {B4[1]}, {B4[3]}']
        L.append(f'v_mfma_f32_32x32x16_bf16 {P16}, {self.aphi}, {B4}, 0')
        mx = B4[0]; m2 = B4[1]
        L += [f'v_max3_f32 {mx}, {P16[0]}, {P16[1]}, {P16[2]}', f'v_max3_f32 {m2}, {P16[3]}, {P16[4]}, {P16[5]}',
              f'v_max3_f32 {mx}, {mx}, {P16[6]}, {P16[7]}', f'v_max3_f32 {m2}, {m2}, {P16[8]}, {P16[9]}',
              f'v_max3_f32 {mx}, {mx}, {P16[10]}, {P16[11]}', f'v_max3_f32 {m2}, {m2}, {P16[12]}, {P16[13]}',
              f'v_max3_f32 {mx}, {mx}, {P16[14]}, {P16[15]}', f'v_max_f32 {mx}, {mx}, {m2}',
              f'v_mul_f32_e64 {B4[2]}, -{mx}, {rl[0]}', f'v_mul_f32_e64 {B4[3]}, -{mx}, {rl[0]}']
        for i in range(8): L.append(f'v_pk_fma_f32 {P16[2*i:2*i+2]}, {P16[2*i:2*i+2]}, {rl}, {B4[2:4]}')
        for i in range(16): L.append(f'v_exp_f32 {P16[i]}, {P16[i]}')
        s0, s1 = B4[0:2], B4[2:4]
        L += [f'v_pk_add_f32 {s0}, {P16[0:2]}, {P16[2:4]}', f'v_pk_add_f32 {s1}, {P16[4:6]}, {P16[6:8]}']
        for i in range(4, 8): L.append(f'v_pk_add_f32 {(s0, s1)[i&1]}, {(s0, s1)[i&1]}, {P16[2*i:2*i+2]}')
        L += [f'v_pk_add_f32 {s0}, {s0}, {s1}', f'v_add_f32 {B4[0]}, {B4[0]}, {B4[1]}', f'v_rcp_f32 {B4[0]}, {B4[0]}', f'v_mov_b32 {B4[1]}, {B4[0]}']
        for i in range(8): L.append(f'v_pk_mul_f32 {P16[2*i:2*i+2]}, {P16[2*i:2*i+2]}, {B4[0:2]}')
        for i in range(8): L.append(f'v_cvt_pk_bf16_f32 {E(i)}, {P16[2*i]}, {P16[2*i+1]}')
        return L
    def epi_A(self):
        A, V, C, l = self.A, self.V, self.C, lane
        e0, e1, e2, e3 = sE[0:4]
        acc, MR, negm, rl, bsel, zsel = self.acc, self.MR, self.negm, self.rl, self.bsel, self.zsel
        D0, D1 = self.Dg
        if OPT['cprio']: A(f's_setprio {OPT["cprio"]}')
        self.G.all()
        kv = [D0[0:4], D0[4:8]]; zz = D0[8:12]
        KA = OPT['kva']; lrep = V.alloc()
        a0, a1, ff, t0, t1, ah, as_, ak, ad, l26, vtag, fa = [D1[i] for i in range(12)]
        L = []
        for p in range(4):
            P16 = MR[p]; VB = acc[2*p][2]; Eq = [acc[2*p+1][1], acc[2*p+1][2]]
            for T in range(2):
                a = acc[2*p+T][2]; M4 = P16[8*T:8*T+4]; R4 = P16[8*T+4:8*T+8]
                for h in range(2): L.append(f'v_pk_fma_f32 {a[2*h:2*h+2]}, {M4[2*h:2*h+2]}, {self.cv}, {a[2*h:2*h+2]}')
                for h in range(2): L.append(f'v_pk_mul_f32 {a[2*h:2*h+2]}, {a[2*h:2*h+2]}, {R4[2*h:2*h+2]}')
                for h in range(2): L.append(f'v_cvt_pk_bf16_f32 {VB[2*T+h]}, {a[2*h]}, {a[2*h+1]}')
            L += self.feat(acc[2*p][1], acc[2*p+1][1], self.ck, negm[2*p:2*p+2], rl[p], P16, lambda i: Eq[i//4][i % 4])
            for m in range(2):
                for T in range(2): L.append(f'v_mfma_f32_16x16x32_bf16 {P16[8*m+4*T:8*m+4*T+4]}, {Eq[m]}, {bsel[T]}, 0')
            for i in range(8): L.append(f'v_cvt_pk_bf16_f32 {Eq[i//4][i%4]}, {P16[2*i]}, {P16[2*i+1]}')
            if KA:
                for m in range(2): L.append(f'v_mfma_f32_16x16x32_bf16 {kv[m]}, {VB}, {Eq[m]}, {kv[m] if p else 0}')
                for m in range(2): L.append(f'v_mfma_f32_16x16x32_bf16 {zz}, {zsel[m]}, {Eq[m]}, {zz if (p or m) else 0}')
                continue
            for m in range(2): L.append(f'v_mfma_f32_16x16x32_bf16 {kv[m]}, {Eq[m]}, {VB}, {kv[m] if p else 0}')
            for m in range(2): L.append(f'v_mfma_f32_16x16x32_bf16 {zz}, {Eq[m]}, {zsel[m]}, {zz if (p or m) else 0}')
        if KA:
            L += [f'v_and_b32 {t0}, 15, {l}', f'v_lshrrev_b32 {t1}, 4, {l}', f'v_lshlrev_b32 {t0}, 2, {t0}', f'v_lshl_add_u32 {a0}, {t1}, 8, {t0}',
                  f'v_mul_u32_u24 {a1}, 1088, {t1}', f'v_add_u32 {a1}, {a1}, {t0}', f'v_lshrrev_b32 {t1}, 1, {t1}', f'v_lshl_add_u32 {a1}, {t1}, 27, {a1}']
            for m in range(2):
                for r in range(4): L.append(f'buffer_atomic_add_f32 {kv[m][r]}, {a0}, {sWS}, {e2} offen offset:{1088*m + 64*r} sc1')
            L.append(f'buffer_atomic_add_f32 {zz[0]}, {a1}, {sWS}, {e2} offen offset:1024 sc1')
            L += [f'v_lshlrev_b32 {l26}, 26, {l}', f'v_mov_b32 {vtag}, {sTag}']
        else:
            L += [f'v_and_b32 {t0}, 15, {l}', f'v_and_b32 {t1}, 48, {l}', f'v_lshl_add_u32 {a0}, {t0}, 6, {t1}', f'v_mov_b32 {ff}, 0xff',
                  f'v_mul_u32_u24 {a1}, 1088, {t0}', f'v_add_u32 {a1}, {a1}, {t1}', f'v_lshrrev_b32 {t0}, 1, {t0}', f'v_lshl_add_u32 {a1}, {t0}, 27, {a1}']
            for m in range(2):
                L += tag_quad(kv[m], ff) + [f'buffer_store_dwordx4 {kv[m]}, {a0}, {sWS}, {e0} offen offset:{1088*m} sc1']
            L += tag_quad(zz, ff) + [f'buffer_store_dwordx4 {zz}, {a1}, {sWS}, {e0} offen offset:1024 sc1']
            L += [f'v_lshlrev_b32 {l26}, 26, {l}', f'v_mov_b32 {vtag}, {sTag}', f'v_mov_b32 {fa}, 1', f'v_lshrrev_b32 {lrep}, {OPT["Rk"].bit_length()-1}, {l}', f'v_lshlrev_b32 {lrep}, 26, {lrep}', f'v_lshl_add_u32 {lrep}, {l}, 14, {lrep}']
            if not OPT['ack1']: L.append(f'buffer_atomic_add {fa}, {lrep}, {sWS}, {sXb} offen sc1')
        stampe(A, 1)
        emit_sched(A, L, 'kside'); C.n += 4
        stampe(A, 2)
        stamp(A, 6)
        h1 = [self.sel16[4*i:4*i+4] for i in range(4)]
        ld1 = [f'buffer_load_dwordx4 {h1[0]}, {ah}, {sWS}, {e1} offen sc1', f'buffer_load_dwordx4 {h1[1]}, {ah}, {sWS}, {e1} offen offset:1088 sc1',
               f'buffer_load_dwordx4 {h1[2]}, {ah}, {sWS}, {sE[4]} offen offset:1024 sc1', f'buffer_load_dwordx4 {h1[3]}, {ah}, {sWS}, {sE[4]} offen offset:2112 sc1']
        perm = [0, 1, 2, 3] if KA else [1, 0, 2, 3]
        eq = [[acc[2*p+1][0], acc[2*p][1]] for p in range(4)]
        def qside(ps):
            L = []
            for p in ps:
                L += self.feat(acc[2*p][0], acc[2*p+1][0], self.cq, negm[2*p:2*p+2], rl[p], MR[p], lambda i: eq[p][i//4][perm[i % 4]])
            return L
        adr = [f'v_lshrrev_b32 {ah}, 2, {l}', f'v_mul_u32_u24 {ah}, 2176, {ah}', f'v_and_b32 {t0}, 3, {l}', f'v_lshl_add_u32 {ah}, {t0}, 4, {ah}',
               f'v_lshrrev_b32 {as_}, 5, {l}', f'v_mul_u32_u24 {as_}, 1088, {as_}', f'v_lshl_add_u32 {as_}, {t0}, 4, {as_}', f'v_bfe_u32 {t0}, {l}, 4, 1', f'v_lshl_add_u32 {as_}, {t0}, 3, {as_}',
               f'v_and_b32 {t1}, 12, {l}', f'v_lshl_add_u32 {as_}, {t1}, 26, {as_}',
               f'v_and_b32 {ad}, 15, {l}', f'v_lshlrev_b32 {ad}, 4, {ad}', f'v_lshl_add_u32 {ad}, {t0}, 14, {ad}', f'v_lshrrev_b32 {t0}, 5, {l}', f'v_lshl_add_u32 {ad}, {t0}, 8, {ad}',
               f'v_and_b32 {ak}, 31, {l}', f'v_min_u32 {ak}, 16, {ak}', f'v_lshlrev_b32 {ak}, 6, {ak}', f'v_lshl_add_u32 {ak}, {t0}, 5, {ak}']
        if KA:
            qa, qb = OPT['qa'], OPT['qb']
            ldall = self.sel16
            emit_sched(A, qside(range(qa)) + [adr[7]] + adr[11:], 'qa')
            stampe(A, 3)
            if OPT['ra']:
                assert OPT['Rk'] == 1
                A(f's_mov_b32 {sE[4]}, 1\ns_add_u32 {sE[5]}, {sTag}, 15\ns_waitcnt vmcnt(0)\ns_atomic_add {sE[4]}, {sWS[0:2]}, {sXb} glc')
            else: sarrive(A, *[f'{sXb} offset:{16384*r}' for r in range(OPT['Rk'])])
            stampe(A, 4); stamp(A, 7)
            A(f's_add_u32 {e0}, {sF[0]}, 32768\ns_add_u32 {e1}, {sF[0]}, {72*4096}\ns_add_u32 {e3}, {e1}, 32768')
            if qb: emit_sched(A, qside(range(qa, qa+qb)), 'qb')
            stampe(A, 5)
            if OPT['ra'] == 1: A(f's_waitcnt lgkmcnt(0)\ns_cmp_eq_u32 {sE[4]}, {sE[5]}\ns_cbranch_scc1 K_last')
            if OPT['ra'] == 2:
                A(f's_mov_b32 {sWb}, 0\ns_atomic_add {sWb}, {sWS[0:2]}, {sXo} glc\ns_waitcnt lgkmcnt(1)\ns_cmp_eq_u32 {sE[4]}, {sE[5]}\ns_cbranch_scc1 K_last')
                A(f's_add_u32 {sE[5]}, {sE[5]}, 1\ns_waitcnt lgkmcnt(0)\ns_cmp_eq_u32 {sWb}, {sE[5]}\ns_cbranch_scc1 K_last')
            ppoll(A, sXo, 16, OPT['Dk'], 20, OPT['slpa'])
            if OPT['ra']: A('K_last:')
            stampe(A, 6); stamp(A, 8)
            for m in range(2):
                for h in range(2): A(f'buffer_load_dwordx4 {ldall[8*m+4*h:8*m+4*h+4]}, {ak}, {sWS}, {e2} offen offset:{1088*m+16*h} sc1')
            A(f'buffer_store_dword {vtag}, {l26}, {sWS}, {sF[2]} offen sc1')
            if qa + qb < 4: emit_sched(A, qside(range(qa+qb, 4)), 'qc')
            stampe(A, 7)
            A('s_waitcnt vmcnt(1)')
            stamp(A, 4)
            L = []
            for m in range(2):
                for i in range(4): L.append(f'v_cvt_pk_bf16_f32 {D0[4*m+i]}, {ldall[8*m+2*i]}, {ldall[8*m+2*i+1]}')
            kvA = [D0[0:4], D0[4:8]]
        else:
            if OPT['ack1']:
                emit_sched(A, qside([0]) + adr, 'q0')
                sarrive(A, sXb)
                emit_sched(A, qside([1]), 'q1')
            else: emit_sched(A, qside([0, 1]) + adr, 'q01')
            stampe(A, 3)
            ppoll(A, sXo, 16, OPT['Dk'], 20, OPT['slpa'])
            stamp(A, 7)
            stampe(A, 4)
            for x in ld1: A(x)
            emit_sched(A, qside([2]), 'q2')
            stampe(A, 5)
            A('s_waitcnt vmcnt(0)')
            tm = D0
            def chk1():
                for i in range(4): quad_diff(A, h1[i], tm[i], tm[4+i])
                A(f'v_or_b32 {tm[0]}, {tm[0]}, {tm[1]}\nv_or_b32 {tm[2]}, {tm[2]}, {tm[3]}\nv_cmp_ne_u32 vcc, 0, {tm[2]}\nv_cmp_ne_u32 s[4:5], 0, {tm[0]}')
                A(f's_and_b64 vcc, vcc, {sM2}\ns_or_b64 s[4:5], s[4:5], vcc')
            poll(A, '\n'.join(ld1), chk1, sleep=OPT['slp'], mask_exec=True, first_loaded=True)
            stampe(A, 6)
            L = []
            for x, y, so, off in ((h1[0], h1[1], e3, 0), (h1[2], h1[3], sE[5], 1024)):
                for k in range(4): L += [f'v_and_b32 {x[k]}, 0xffffff00, {x[k]}', f'v_and_b32 {y[k]}, 0xffffff00, {y[k]}']
                for k in range(4): L += [f'v_permlane32_swap_b32 {x[k]}, {y[k]}', f'v_add_f32 {x[k]}, {x[k]}, {y[k]}']
                for k in range(2): L += [f'v_permlane16_swap_b32 {x[k]}, {x[k+2]}', f'v_add_f32 {x[k]}, {x[k]}, {x[k+2]}', dpp_add(x[k], 'row_ror:4'), dpp_add(x[k], 'row_ror:8')]
                L += [f'v_cvt_pk_bf16_f32 {x[0]}, {x[0]}, {x[1]}', f'v_mov_b32 {x[1]}, {sTag}', f'buffer_store_dwordx2 {x[0:2]}, {as_}, {sWS}, {so} offen offset:{off} sc1']
            if not OPT['ack2']: L.append(f'buffer_atomic_add {fa}, {lrep}, {sWS}, {sWb} offen sc1')
            emit_sched(A, L, 'reduce'); C.n += 3
            stamp(A, 8)
            ld = [self.Rg[0], self.Rg[1], self.Rg[2], self.Rg[3]]; assert all(ld[i].b == ld[0].b + 4*i for i in range(4))
            ldall = R('v', ld[0].b, 16)
            ld2 = [f'buffer_load_dwordx4 {ld[2*m+h]}, {ak}, {sWS}, {e2} offen offset:{1088*m+16*h} sc1' for m in range(2) for h in range(2)]
            A(f's_add_u32 {e0}, {sF[0]}, 32768\ns_add_u32 {e1}, {sF[0]}, {72*4096}\ns_add_u32 {e3}, {e1}, 32768')
            emit_sched(A, qside([3]), 'q3')
            if OPT['ack2']: sarrive(A, sWb)
            A(f'buffer_store_dword {vtag}, {l26}, {sWS}, {sF[2]} offen sc1')
            ppoll(A, sWo, 16, OPT['Dk'], 20, OPT['slpa'])
            stampe(A, 7)
            poll(A, '\n'.join(ld2), chk_words(A, [ldall[2*i+1] for i in range(8)], tm), sleep=OPT['slp'], mask_exec=True)
            stamp(A, 4)
            L = []
            for m in range(2): L += [f'v_mov_b32 {ldall[8*m+3]}, {ldall[8*m]}', f'v_mov_b32 {ldall[8*m+5]}, {ldall[8*m+6]}']
            kvA = [ldall[2:6], ldall[10:14]]
        for p in range(4):
            N = MR[p]; o = acc[2*p][2]
            L.append(f'v_mfma_f32_32x32x16_bf16 {N}, {kvA[0]}, {eq[p][0]}, 0')
            L.append(f'v_mfma_f32_32x32x16_bf16 {N}, {kvA[1]}, {eq[p][1]}, {N}')
            L += [f'v_add_f32 {N[8]}, {f2u(1e-6):#x}, {N[8]}', f'v_rcp_f32 {N[8]}, {N[8]}']
            if OPT['opk']:
                L.append(f'v_mov_b32 {N[9]}, {N[8]}')
                for i in range(4): L.append(f'v_pk_mul_f32 {N[2*i:2*i+2]}, {N[2*i:2*i+2]}, {N[8:10]}')
            else:
                for i in range(8): L.append(f'v_mul_f32 {N[i]}, {N[i]}, {N[8]}')
            for i in range(4): L.append(f'v_cvt_pk_bf16_f32 {o[i]}, {N[2*i]}, {N[2*i+1]}')
            L.append(f'buffer_store_dwordx4 {o}, {ad}, {sWS}, {[sF[0], e0, e1, e3][p]} offen sc1')
        stampe(A, 8)
        if OPT['snt']:
            L += [f'v_mov_b32 {fa}, 1', f'v_lshrrev_b32 {lrep}, 1, {l}', f'v_lshlrev_b32 {lrep}, 26, {lrep}', f'v_lshl_add_u32 {lrep}, {l}, 11, {lrep}',
                  f'buffer_atomic_add {fa}, {lrep}, {sWS}, {sF[1]} offen sc1']
        emit_sched(A, L, 'oside'); C.n += 4
        stampe(A, 9)
        if OPT['wo']: A(f'v_mov_b32 {t0}, {L_TAG}\nv_mov_b32 {t1}, 16\ns_mov_b64 exec, 1\nds_add_u32 {t0}, {t1} offset:8\ns_mov_b64 exec, -1')
        if OPT['o2']: A(f's_waitcnt vmcnt(2)\ns_atomic_add {sLrow}, {sWS[0:2]}, {sF[1]}\ns_waitcnt vmcnt(0)\ns_atomic_add {sLrow}, {sWS[0:2]}, {sHb}')
        elif not OPT['snt']: sarrive(A, *[f'{x} offset:{256*r}' for r in range(OPT['Ro']) for x in (sF[1], sHb)])
        stampe(A, 10)

def p2_C(A):
    l = lane; C = Ctx(A); G = LG(A)
    NP = OPT['npre']
    V = Pool('v', 4, 256)
    vab = [V.alloc() for _ in range(4)]
    go, vm_, t0, t1, xq2 = V.alloc(), V.alloc(), V.alloc(), V.alloc(), V.alloc()
    xq = V.alloc(8, 4); acc = V.alloc(16, 4); ao = V.alloc(64, 4)
    Bs = [V.alloc(16, 4) for _ in range(NP)]
    A(f'v_and_b32 {t0}, 15, {l}\nv_lshlrev_b32 {go}, 10, {t0}\nv_bfe_u32 {t0}, {l}, 4, 1\nv_lshl_add_u32 {go}, {t0}, 5, {go}\nv_lshrrev_b32 {t0}, 5, {l}\nv_lshl_add_u32 {go}, {t0}, 4, {go}')
    A(f's_lshl_b32 {sE[0]}, {sI2}, 16\ns_lshl_b32 {sT0}, {sWQ}, 14\ns_add_u32 {sE[0]}, {sE[0]}, {sT0}\ns_lshl_b32 {sT1}, {sJ2}, 7\ns_add_u32 {sE[0]}, {sE[0]}, {sT1}')
    for P in range(2): A(f'buffer_load_dwordx4 {xq[4*P:4*P+4]}, {go}, {sX}, {sE[0]} offen offset:{64*P}')
    A(f's_mul_i32 {sE[1]}, {sI2}, {72*4096}\ns_add_u32 {sE[1]}, {sE[1]}, {sT0}\ns_add_u32 {sE[1]}, {sE[1]}, {ACT + 56*4096}')
    for i in range(1, 4): A(f's_add_u32 {sE[1+i]}, {sE[1]}, {4096*i}')
    cnt_i2(A, sE[5], sI2, 5120)
    if OPT['Ro'] > 1: A(f's_and_b32 s4, {sJ2}, {OPT["Ro"]-1}\ns_lshl_b32 s4, s4, 8\ns_add_u32 {sE[5]}, {sE[5]}, s4')
    tr_addr(A, vab, WOB, t0, t1)
    A(f'v_mov_b32 {vm_}, {L_TAG}')
    stamph(A, 1)
    if OPT['eo']:
        l0, l1, l2 = A.lab('EO'), A.lab('EP'), A.lab('EQ')
        A(f's_cmp_lg_u32 {sWV}, 0\ns_cbranch_scc1 {l1}')
        A(f's_add_u32 {sT1}, {sTag}, 32\ns_mov_b32 {sSpin}, {OPT["spin"]}')
        A(f'{l0}:\ns_mov_b32 {sT0}, 0\ns_atomic_add {sT0}, {sWS[0:2]}, {sE[5]} glc\ns_waitcnt lgkmcnt(0)\nds_read_b32 {t0}, {vm_} offset:4\ns_cmp_eq_u32 {sT0}, {sT1}\ns_cbranch_scc1 {l2}')
        A(f's_waitcnt lgkmcnt(0)\nv_readfirstlane_b32 {sT0}, {t0}\ns_cmp_ge_u32 {sT0}, 4\ns_cbranch_scc1 {l1}')
        A(f's_sleep {OPT["slpo"]}\ns_sub_u32 {sSpin}, {sSpin}, 1\ns_cbranch_scc0 {l0}\ns_branch {l1}')
        A(f'{l2}:\ns_mov_b32 {sWV}, 8\nv_mov_b32 {xq2}, 16\ns_mov_b64 exec, 1\nds_add_u32 {vm_}, {xq2} offset:12\ns_mov_b64 exec, -1')
        A(f'{l1}:')
    lds_spin(A, vm_, 4, 4, t0, slp=4 if OPT['nsl'] & 4 else 1)
    stamph(A, 2)
    tokB = {}
    def trl(k): return [(f'ds_read_b64_tr_b16 {Bs[k % NP][4*q+2*hf:4*q+2*hf+2]}, {vab[q]} offset:{k*4096 + hf*2048}', (k, q)) for q in range(4) for hf in range(2)]
    if OPT['snt']: A(f's_movk_i32 {sCur}, 4096\nK_redo:')
    for k in range(NP):
        for s, key in trl(k): G.ds(s); tokB[key] = 0
    if OPT['snt']: A(f's_cmpk_lg_u32 {sCur}, 4096\ns_cbranch_scc1 K_ld')
    stamph(A, 3)
    if OPT['opoll']:
        ppoll(A, sE[5], 32, OPT['Do'], 20, OPT['slpo'])
        G.all()
    else:
        lk, le = A.lab('NO'), A.lab('OE')
        A(f's_cmp_lg_u32 {sWV}, 0\ns_cbranch_scc1 {lk}')
        ppoll(A, sE[5], 32, OPT['Do'], 20, OPT['slpo'])
        if OPT['gs']:
            stamp(A, 3)
            A(f'v_mov_b32 {t0}, 16\ns_mov_b64 exec, 1\nds_add_u32 {vm_}, {t0} offset:12\ns_mov_b64 exec, -1')
            A(f'{lk}:')
            stamph(A, 4)
            if OPT['pwg']:
                A(f's_lshl_b32 {sT1}, 1, {sWQ}\ns_or_b32 {sT1}, {sT1}, 16')
                lds_spin(A, vm_, 12, sT1, t0, mask=True, slp=0 if OPT['nsl'] & 2 else 1)
            else: lds_spin(A, vm_, 12, 20, t0)
            if OPT['eo']: A(f's_and_b32 {sWV}, {sWV}, 7')
        else:
            A(f'v_mov_b32 {t0}, 1\nds_write_b32 {vm_}, {t0} offset:12\ns_branch {le}')
            A(f'{lk}:')
            lds_spin(A, vm_, 12, 1, t0)
            A(f'{le}:')
    stamp(A, 9); stampf(A, 0)
    stamph(A, 5)
    if OPT['snt']: A('K_ld:')
    tok = {}
    for s in range(16):
        tok[s] = C.vm(f'buffer_load_dwordx4 {ao[4*s:4*s+4]}, {v_l16}, {sWS}, {sE[1 + s//4]} offen offset:{(s & 3)*1024} ' + ['sc1', '', 'sc0', 'nt', 'sc0 sc1'][OPT['old']])
    stampf(A, 1)
    G.all()
    A(f's_lshl_b32 {sT0}, {sWQ}, 12\nv_add_u32 {t1}, {sT0}, {v_l16}')
    Q = []
    for s in range(16):
        C.wait(tok[s])
        if s == 0 and not OPT['snt']:
            for P in range(2): A(f'v_permlane16_swap_b32 {xq[4*P]}, {xq[4*P+2]}\nv_permlane16_swap_b32 {xq[4*P+1]}, {xq[4*P+3]}')
        for q in range(4):
            G.need(tokB[(s, q)])
            A(f'v_mfma_f32_16x16x32_bf16 {acc[4*q:4*q+4]}, {Bs[s % NP][4*q:4*q+4]}, {ao[4*s:4*s+4]}, {acc[4*q:4*q+4] if s else 0}')
            for _ in range(2):
                if Q: x, key = Q.pop(0); tokB[key] = G.ds(x)
        if OPT['snt'] and s & 1: A(f'v_max3_u32 {t0}, {ao[4*s]}, {ao[4*s-4]}, {t0 if s > 1 else 0}')
        if OPT['xu'] and s >= 8:
            i = s - 8
            A(f'v_lshlrev_b32 {ao[2*i]}, 16, {xq[i]}\nv_and_b32 {ao[2*i+1]}, 0xffff0000, {xq[i]}')
        if s + NP < 16: Q += trl(s + NP)
        if s in (0, 3, 7, 11, 15): stampf(A, 2 + (s+1)//4)
    if OPT['snt']:
        A(f'v_cmp_eq_u32 vcc, -1, {t0}\ns_and_b64 s[4:5], vcc, exec\ns_cbranch_scc0 K_ok\ns_sleep 1\ns_sub_u32 {sCur}, {sCur}, 1\ns_cbranch_scc0 K_redo\nK_ok:')
        for P in range(2): A(f'v_permlane16_swap_b32 {xq[4*P]}, {xq[4*P+2]}\nv_permlane16_swap_b32 {xq[4*P+1]}, {xq[4*P+3]}')
    xf = ao[0:16]; g = ao[16:32]
    stamp(A, 10); stamph(A, 6)
    A('s_barrier')
    stampf(A, 7); stamph(A, 7)
    for u in range(4): A(f'ds_read_b128 {g[4*u:4*u+4]}, {t1} offset:{X0 + 1024*u}')
    assert not (OPT['xu'] and OPT['snt'])
    if not OPT['xu']:
        for i in range(8): A(f'v_lshlrev_b32 {xf[2*i]}, 16, {xq[i]}\nv_and_b32 {xf[2*i+1]}, 0xffff0000, {xq[i]}')
    for P in range(2):
        A(f's_waitcnt lgkmcnt({2 - 2*P})')
        for i in range(4*P, 4*P+4): A(f'v_pk_fma_f32 {g[2*i:2*i+2]}, {g[2*i:2*i+2]}, {acc[2*i:2*i+2]}, {xf[2*i:2*i+2]}')
        for i in range(4*P, 4*P+4): A(f'v_cvt_pk_bf16_f32 {xq[i]}, {g[2*i]}, {g[2*i+1]}')
    for P in range(2):
        A(f'v_permlane16_swap_b32 {xq[4*P]}, {xq[4*P+2]}\nv_permlane16_swap_b32 {xq[4*P+1]}, {xq[4*P+3]}')
    for P in range(2): A(f'buffer_store_dwordx4 {xq[4*P:4*P+4]}, {go}, {sOUT}, {sE[0]} offen offset:{64*P} ' + ['', 'sc1', 'nt', 'sc0 sc1', 'sc1 nt', 'sc0 sc1 nt'][OPT['ost']])
    stampf(A, 8); stamph(A, 8)
    if OPT['stamp'] == 6: A('s_waitcnt vmcnt(0)')
    stampf(A, 9)

vb = [R('v', 4+i, 1) for i in range(4)]
vb0, vb1 = R('v', 8, 1), R('v', 9, 1)
RS = [R('v', 80+16*i, 16) for i in range(11)]
ACCL = R('v', 16, 64)
vbh = [R('v', 13, 1), R('v', 14, 1), R('v', 15, 1), R('v', 2, 1)]
va = [R('v', 10, 1), R('v', 11, 1), R('v', 12, 1), R('v', 0, 1)]
vx2, vx3, vw1, vh, pt, pa, pm, p1 = [ACCL[48+i] for i in range(8)]
def nib(d, k): return f's_bfe_u32 {d}, {sCur if k < 8 else sCurA}, {(4 << 16) | (4 * (k % 8)):#x}'
LOAD = [0, 1, 8, 9, 2, 3, 4, 5, 6, 7, 10, 11, 12, 13] if OPT['lord'] else list(range(14))
RSL = {0: 0, 1: 1, 2: 2, 3: 3, 4: 4, 5: 5, 8: 6, 9: 7, 6: 0, 7: 1, 10: 2, 11: 3, 12: 4, 13: 5} if OPT['lord'] else {k: k % 8 for k in range(14)}
if OPT['lord'] == 2:
    LOAD = [0, 1, 2, 3, 8, 9, 10, 4, 5, 6, 7, 11, 12, 13]
    RSL = {0: 0, 1: 1, 2: 2, 3: 3, 8: 4, 9: 5, 10: 6, 4: 7, 5: 0, 6: 1, 7: 2, 11: 3, 12: 7, 13: 2}
if OPT['lord'] == 3:
    LOAD = [0, 4, 8, 12, 1, 2, 3, 5, 6, 7, 9, 10, 11, 13]
    RSL = {0: 0, 6: 0, 1: 1, 7: 1, 2: 2, 9: 2, 3: 3, 10: 3, 4: 4, 11: 4, 5: 5, 13: 5, 8: 6, 12: 7}
if OPT['lord'] == 4:
    LOAD = [0, 1, 4, 5, 8, 9, 12, 2, 3, 6, 7, 10, 11, 13]
    RSL = {1: 0, 6: 0, 2: 1, 7: 1, 0: 2, 3: 2, 10: 2, 4: 3, 11: 3, 5: 4, 13: 4, 8: 5, 9: 6, 12: 7}
PH = [int(c) for c in str(OPT['ph'])] if OPT['ph'] else [4, 7]
PHO = [0, 8192, 128, 8192 + 128]
sB0, sB1 = sM2[0], sM2[1]
sLi = [sXo, sHo, sWb, sRot]
vr0, vr1 = vb0, vb1
WFL = ['', 'nt', 'sc1', 'sc0 sc1'][OPT['wfl']]
class BP:
    def __init__(self, A, C, G):
        self.A, self.C, self.G = A, C, G
        self.next = 0; self.free = []; self.fly = []; self.slot = {}; self.tok = {}; self.cool = []; self.dep = 0; self.pend = []
    def dma(self, k, sl):
        A = self.A
        for f in self.dma_list(k, sl): f()
    def dma_list(self, k, sl):
        A = self.A
        self.slot[k] = sl
        def mk(i):
            def f():
                if OPT['xr'] & 2:
                    if i == 0: A(f'{nib(sB0, LOAD[k])}\ns_lshl_b32 {sB0}, {sB0}, 15\ns_add_u32 {sB0}, {sB0}, {sBb}\ns_xor_b32 {sB1}, {sB0}, 16384')
                    A(f's_add_u32 m0, {sLi[i]}, {sl}')
                else:
                    if i == 0: A(f'{nib(sB0, LOAD[k])}\ns_lshl_b32 {sB0}, {sB0}, 15\ns_add_u32 {sB0}, {sB0}, {sBb}\ns_add_u32 {sB1}, {sB0}, 16384')
                    A(f's_add_u32 m0, {sLb2}, {sl + 1024*i}')
                if self.dep: A(f's_waitcnt vmcnt({self.dep - 1})')
                if OPT['t64'] and LOAD[k] >= 12:
                    assert OPT['ph'] and not OPT['xr']
                    if i == 0: A(f's_mov_b32 exec_lo, 0\nv_add_u32 {vb0}, 0x1000, {vb0}\ns_mov_b32 exec_lo, -1')
                    if i == 2: A(f's_add_u32 {sB0}, {sB0}, 4096\ns_add_u32 {sB1}, {sB1}, 4096')
                    self.tok[k] = self.C.vm(f'buffer_load_dwordx4 {vb0}, {sW2}, {(sB0, sB1)[i & 1]} offen {WFL} lds')
                    if i == 3: A(f's_mov_b32 exec_lo, 0\nv_subrev_u32 {vb0}, 0x1000, {vb0}\ns_mov_b32 exec_lo, -1')
                    return
                self.tok[k] = self.C.vm(f'buffer_load_dwordx4 {(vb0, vb1)[i & 1]}, {sW2}, {(sB0, sB1)[i >> 1]} offen {WFL} lds')
            return f
        return [mk(i) for i in range(4)]
    def wo_list(self, k):
        A = self.A
        def mk(i):
            def f():
                if i == 0:
                    A(f's_xor_b32 {sT1}, {sF[2]}, {k}\ns_lshl_b32 {sF[3]}, {sT1}, 12\ns_lshl2_add_u32 {sF[3]}, {sLb2}, {sF[3]}')
                    A(f's_lshl_b32 {sT0}, {sT1}, 15\ns_add_u32 {sT0}, {sT0}, {sF[0]}\ns_add_u32 {sT1}, {sT0}, 16384')
                if OPT['xr'] & 2 and i == 0: A(f's_add_u32 {sF[3]}, {sF[3]}, {sHb}')
                if OPT['xr'] & 2 and i == 2: A(f's_sub_u32 {sF[3]}, {sF[3]}, {sHb}\ns_sub_u32 {sF[3]}, {sF[3]}, {sHb}')
                A(f's_add_u32 m0, {sF[3]}, {WOB + 1024*i}')
                if self.dep: A(f's_waitcnt vmcnt({self.dep - 1})')
                self.tokwo = self.C.vm(f'buffer_load_dwordx4 {(vb0, vb1)[i >> 1]}, {sWO}, {(sT0, sT1)[i & 1]} offen {WFL} lds')
            return f
        return [mk(i) for i in range(4)]
    def trl(self, k):
        sl = self.slot[k]; hi = sl >= Y0
        off = sl - Y0 if hi else sl
        dst = RS[RSL[LOAD[k]]]
        return [f'ds_read_b64_tr_b16 {dst[4*q+2*hf:4*q+2*hf+2]}, {(vbh if hi else vb)[q]} offset:{off + hf*2048}' for q in range(4) for hf in range(2)]
    def retire(self):
        k = self.fly.pop(0)
        self.C.wait(self.tok[k])
        for s in self.trl(k): tk = self.G.ds(s)
        self.cool.append((self.slot[k], tk))
    def step(self, run=True):
        self.flush()
        if self.next >= 13: return False
        if not self.free:
            if not self.cool: self.retire()
            if len(self.cool) == 1 and self.fly and self.next - self.fly[0] >= 3: self.retire()
            sl, tk = self.cool.pop(0); self.G.need(tk, 8); self.free.append(sl)
        k = self.next; self.next += 1
        self.pend = self.dma_list(k, self.free.pop(0))
        if k < 8: self.fly.append(k)
        if run: self.flush()
        return True
    def flush(self):
        while self.pend: self.pend.pop(0)()
    def quota(self, n):
        for _ in range(n):
            if not self.pend: self.step(run=False)
            self.pend.pop(0)()

def NT(o, st): return ['', ' nt', ' sc1', ' sc0 sc1', ' sc1 nt', ' sc0 sc1 nt', ' sc0 nt'][OPT['ntf']] if OPT[o] >> st & 1 else ''
class LW:
    def __init__(self, A, typ):
        self.A = A; self.typ = typ; self.C = Ctx(A); self.G = LG(A); self.B = BP(A, self.C, self.G)
        self.lrow = 3584 if typ == 'F' else 3072
        self.stok = {}; self.sq = []
    def issue(self, st, only_half=False, lo=0, hi=99):
        A = self.A if lo == 0 else (lambda x: None); buf = phys(st); F = self.typ == 'F'
        cs = 128 if F else 1024
        if not only_half:
            A(f's_bfe_u32 {sT0}, {sRot}, {(4 << 16) | (4*st):#x}\ns_lshl_b32 {sXo}, {sT0}, 7\ns_add_u32 {sXo}, {sXo}, {sXb}')
            A(f's_mul_i32 {sT0}, {sT0}, {64*self.lrow}\ns_add_u32 {sWo}, {sT0}, {sWb}')
            xs = [(buf + 4096*p, (vx0, vx2, vx1, vx3)[p], sX, sXo, 0) for p in range(4)]
            ws = [(buf + 16384 + 8192*b + 4096*h - b*cs, (vw, vw1)[h], sW, sWo, b*cs) for h in range(2) for b in range(3)]
            items = [xs[0], ws[0], ws[1], xs[1], ws[2], xs[2], ws[3], ws[4], xs[3], ws[5]]
        else: items = []
        if F:
            A(f's_add_u32 {sHo}, {sWo}, {sHb}')
            items.append((buf + 16384 + 24576, vh, sW, sHo, 0))
        A = self.A
        for m, v, sr, so, off in items[lo:hi]:
            A(f's_add_u32 m0, {sLb}, {m}')
            self.stok[st] = self.C.vm(f'buffer_load_dwordx4 {v}, {sr}, {so} offen' + (f' offset:{off}' if off else '') + NT('ntx' if sr is sX else 'ntw', st) + ' lds')
            while self.sq:
                x = self.sq.pop(0); A(x)
                if x.startswith('s_load'): break
    def run(self):
        A, C, G, B, l = self.A, self.C, self.G, self.B, lane
        F = self.typ == 'F'; lrow = self.lrow
        C.n = 5; self.stok[0] = 5
        T = [ACCL[i] for i in range(64)]
        if OPT['lprio']: A(f's_setprio {OPT["lprio"]}')
        srd(A, sW2, 48, SZ_W2); srd(A, sWO, 24, SZ_WO)
        if not F: srd(A, sPHI, 16, SZ_PHI)
        elif OPT['j3']: srd(A, sPHI, 8, SZ_QKV)
        vj3 = ACCL[62]
        def j3touch(second):
            A(f'v_lshrrev_b32 {vj3}, 3, {l}\nv_mul_u32_u24 {vj3}, 3072, {vj3}\nv_and_b32 {ACCL[63]}, 0x70, {v_l16}\nv_add_u32 {vj3}, {vj3}, {ACCL[63]}')
            A(f's_and_b32 {sT0}, {sI}, 7\ns_lshl2_add_u32 {sT0}, {sT0}, {sWQ}\ns_lshr_b32 {sT1}, s2, 1\ns_xor_b32 {sT1}, {sT1}, s2\ns_and_b32 {sT1}, {sT1}, 1' + (f'\ns_xor_b32 {sT1}, {sT1}, 1' if second else ''))
            A(f's_lshl_b32 {sT1}, {sT1}, 5\ns_add_u32 {sT0}, {sT0}, {sT1}\ns_mul_i32 {sT0}, {sT0}, {8*3072}')
            A(f's_sub_u32 {sT1}, {sJJ}, 4\ns_min_u32 s6, {sT1}, 2\ns_lshl_b32 s6, s6, 10\ns_add_u32 {sT0}, {sT0}, s6')
            A(f's_cmp_gt_u32 {sT1}, 3\ns_cselect_b32 {sT0}, {OOB}, {sT0}\ns_cmp_eq_u32 {sT1}, 2\ns_cselect_b32 {sT0}, {OOB}, {sT0}\ns_mov_b32 m0, {JUNK}')
            if F and not second: A('s_waitcnt lgkmcnt(0)')
            C.vm(f'buffer_load_dwordx4 {vj3}, {sPHI if F else sW}, {sT0} offen offset:384 lds')
        if OPT['j3'] & 1 and OPT['j3p'] == 0: j3touch(False)
        A(f's_sub_u32 {sLb}, {sLb}, 4096')
        A(f'v_or_b32 {vx2}, 0x8000, {vx0}\nv_or_b32 {vx3}, 0x8000, {vx1}\nv_and_b32 {vx0}, 0xffff7fff, {vx0}\nv_and_b32 {vx1}, 0xffff7fff, {vx1}')
        if OPT['flip'] & 1: A(f's_bitcmp1_b32 s2, 5\ns_cselect_b32 s4, 0, {32*lrow}\nv_subrev_u32 {vw}, s4, {vw}')
        else: A(f'v_subrev_u32 {vw}, {32*lrow}, {vw}')
        A(f'v_add_u32 {vw1}, {32*lrow}, {vw}')
        if OPT['rot'] == 4:
            A(f's_and_b32 s4, {sRot}, 3\ns_lshl_b32 s4, s4, 2\ns_lshr_b32 s4, 0x32103210, s4\ns_and_b32 s4, s4, 0xffff')
            if OPT['r3'] & 1:
                A(f's_lshl_b32 s4, s4, 16\ns_and_b32 s5, {sI}, 7\ns_and_b32 s6, {sJJ}, 3\ns_add_u32 s5, s5, s6\ns_lshl_b32 s5, s5, 1\ns_lshr_b32 s5, 1198372, s5\ns_and_b32 s5, s5, 3')
                A(f's_lshl_b32 s5, s5, 2\ns_lshr_b32 s5, 0x213210, s5\ns_and_b32 s5, s5, 0xfff0\ns_or_b32 s4, s4, s5')
            elif OPT['r2'] == 0: A(f's_mul_i32 s4, s4, 0x10001')
            elif OPT['r2'] == 1: A(f's_bitcmp1_b32 {sRot}, 0\ns_cselect_b32 s5, 0x11110000, 0\ns_xor_b32 s5, s5, 0x32100000\ns_or_b32 s4, s4, s5')
            else: A(f's_or_b32 s4, s4, 0x32100000')
            A(f's_cmp_ge_u32 {sRot}, 4\ns_cselect_b32 s5, 0x4444, 0x44440000\ns_or_b32 {sRot}, s4, s5'.replace('s_cselect_b32 s5, 0x4444, 0x44440000', 's_mov_b32 s5, 0x44440000\ns_cmovk_i32 s5, 0x4444'))
        elif OPT['rot'] == 2:
            A(f's_mul_i32 {sRot}, {sRot}, 0x11111111\ns_xor_b32 {sRot}, {sRot}, 0x76543210')
        else:
            A(f's_mov_b32 s4, 0x76543210\ns_mov_b32 s5, s4\ns_lshl_b32 s6, {sRot}, 2\ns_lshr_b64 s[4:5], s[4:5], s6\ns_mov_b32 {sRot}, s4')
        if F:
            t0, t1, t2 = T[0:3]
            A(f's_and_b32 {sT0}, {sJ}, 1\ns_mul_i32 {sT0}, {sT0}, 448\ns_sub_u32 {sHb}, 384, {sT0}')
            A(f's_mul_i32 {sT0}, {sWQ}, {16*lrow}\ns_add_u32 {sHb}, {sHb}, {sT0}')
            A(f'v_lshrrev_b32 {t0}, 2, {l}\nv_and_b32 {t1}, 3, {l}\nv_lshrrev_b32 {t2}, 4, {l}\nv_and_b32 {t2}, 2, {t2}\nv_xor_b32 {t2}, {t2}, {t1}\nv_lshlrev_b32 {t2}, 4, {t2}')
            A(f'v_mul_u32_u24 {vh}, {lrow}, {t0}\nv_add_u32 {vh}, {vh}, {t2}')
            self.issue(0, only_half=True)
        if OPT['e1']: self.issue(1, hi=OPT['e1'])
        p2_ids(A)
        t0, t1, f = T[0:3]
        if OPT['ph']:
            if OPT['brot'] and OPT['sw']: A(f's_and_b32 s7, {sJ2}, 3\ns_cmp_eq_u32 s7, 3\ns_cselect_b32 s7, 3, 2\ns_and_b32 s6, s6, s7')
            elif OPT['brot']: A('s_and_b32 s6, s6, 2')
            A(f's_add_u32 s6, s6, {sJ2}\ns_and_b32 s7, s6, 3\ns_lshl_b32 s7, s7, 2\ns_lshr_b32 s4, 0x98109810, s7\ns_and_b32 s4, s4, 0xffff')
            A(f's_mul_i32 {sCur}, s4, 0x10001\ns_add_u32 {sCur}, {sCur}, 0x22220000')
            A(f's_bitcmp1_b32 s6, {1 if OPT["brot"] else 0}\ns_cselect_b32 s5, 0x110000, 0\ns_xor_b32 s5, s5, 0x764444\ns_add_u32 {sCurA}, s4, s5')
        else:
            if OPT['brot'] and OPT['sw']: A(f's_and_b32 s7, {sJ2}, 3\ns_cmp_eq_u32 s7, 3\ns_cselect_b32 s7, 3, 2\ns_and_b32 s6, s6, s7')
            A(f's_lshl_b32 s6, s6, 1' + (f'\ns_and_b32 s6, s6, 4' if OPT['brot'] and not OPT['sw'] else '') + f'\ns_add_u32 s6, s6, {sJ2}' + ('\ns_add_u32 s6, s6, s2' if OPT['xr'] & 1 else '') + '\ns_and_b32 s6, s6, 7')
            A(f's_mov_b32 s4, 0xba983210\ns_mov_b32 s5, s4\ns_lshl_b32 s7, s6, 2\ns_lshr_b64 s[4:5], s[4:5], s7\ns_mov_b32 {sCur}, s4')
            A(f's_mul_i32 s6, s6, 3\ns_and_b32 s7, s6, 28\ns_mov_b32 s4, 0x547dc654\ns_mov_b32 s5, 0x7dc6\ns_lshr_b64 s[4:5], s[4:5], s7\ns_mov_b32 {sCurA}, s4')
        A(f's_mul_i32 s4, {sWQ}, 14\ns_mul_i32 {sAb}, {sI2}, 72\ns_add_u32 {sAb}, {sAb}, s4\ns_lshl_b32 {sAb}, {sAb}, 12\ns_add_u32 {sAb}, {sAb}, {ACT}')
        A(f's_lshl_b32 {sBb}, s4, 15\ns_lshl_b32 s5, {sJ2}, 7\ns_add_u32 {sBb}, {sBb}, s5')
        A(f's_lshl_b32 {sF[0]}, {sWQ}, 17\ns_add_u32 {sF[0]}, {sF[0]}, s5')
        A(f's_lshl_b32 {sLb2}, {sWQ}, 12')
        A(f'v_lshrrev_b32 {t0}, 3, {l}\nv_and_b32 {t1}, 6, {t0}\nv_and_b32 {f}, 7, {l}\nv_xor_b32 {t1}, {t1}, {f}\nv_lshlrev_b32 {t1}, 4, {t1}\nv_lshl_add_u32 {vb0}, {t0}, 10, {t1}\nv_add_u32 {vb1}, 0x2000, {vb0}')
        tr_addr(A, vb, sLb2, t0, t1)
        for q in range(4): A(f'v_add_u32 {vbh[q]}, {Y0}, {vb[q]}')
        A(f'v_mov_b32 {pm}, {L_TAG}\nv_mov_b32 {p1}, 1')
        cnt_i2(A, sF[1], sI2, 1024)
        A(f's_lshl_b32 s4, {sWQ}, 8\ns_add_u32 {sF[1]}, {sF[1]}, s4')
        if OPT['Rh'] > 1: A(f's_and_b32 s4, {sJ2}, 1\ns_lshl_b32 s4, s4, 7\ns_add_u32 {sF[1]}, {sF[1]}, s4')
        ca = T[4:8]; t, g = T[8], T[9]; ones = ACCL[12:16]; wfr = ACCL[16:32]; cs = ACCL[32:48]; vt = T[10]; ff = T[11]
        A(f'v_and_b32 {t}, 15, {l}\nv_lshrrev_b32 {g}, 4, {l}')
        if F: A(f's_cmp_eq_u32 {sWQ}, 3\ns_cselect_b32 s4, 6, 7\ns_cselect_b32 s5, 1, 3\ns_cselect_b32 s6, 1, 0\ns_lshl_b32 s7, {sWQ}, 13')
        else: A(f's_mov_b32 s4, 7\ns_mov_b32 s5, 3\ns_mov_b32 s6, 0\ns_min_u32 s7, {sWQ}, 2\ns_lshl_b32 s7, s7, 13')
        if OPT['r3'] & 1: A(f's_and_b32 {sT0}, {sI}, 7\ns_lshr_b32 {sT0}, 0xb8, {sT0}\ns_and_b32 {sT0}, {sT0}, 1\ns_lshl_b32 {sT0}, {sT0}, 5')
        else: A(f's_lshl_b32 {sT0}, {sI}, {dict([(2,4),(4,3),(8,2)])[OPT["rot"]]}\ns_and_b32 {sT0}, {sT0}, 32')
        HS = OPT['hs']
        sgr = ACCL[56:60]; sga = T[60]; sgs = T[61]
        if HS:
            A(f's_lshr_b32 {sSpin}, {sE[0]}, 15\ns_lshl_b32 {sSpin}, {sSpin}, 10\ns_and_b32 {sT1}, {sE[0]}, 512\ns_add_u32 {sSpin}, {sSpin}, {sT1}')
            A(f's_bfe_u32 {sT1}, {sE[0]}, 0x1000e\ns_lshl2_add_u32 {sT1}, {sT1}, {sWQ}\ns_lshl_b32 {sT1}, {sT1}, 6\ns_add_u32 {sSpin}, {sSpin}, {sT1}\ns_add_u32 {sSpin}, {sSpin}, {STAT}')
        else: A(f's_lshr_b32 {sE[0]}, {sE[0]}, 6\ns_lshl_b32 {sT1}, {sWQ}, 5\ns_add_u32 {sE[0]}, {sE[0]}, {sT1}\ns_add_u32 {sSpin}, {sE[0]}, {STAT}')
        A(f's_lshl_b32 {sT1}, {sWQ}, {4 + HS}\ns_add_u32 {sT1}, {sT1}, {L_SG}\nv_and_b32 {sga}, {1 + 2*HS}, {l}\nv_lshl_add_u32 {sga}, {sga}, 3, {sT1}')
        A(f'v_lshrrev_b32 {sgs}, {1 + HS}, {l}\nv_lshl_add_u32 {sgs}, {sgs}, 26, {v_l16}')
        A(f'v_lshrrev_b32 {t0}, 2, {t}\nv_lshl_add_u32 {t0}, {g}, 3, {t0}\nv_add_u32 {t0}, {sT0}, {t0}\nv_lshlrev_b32 {t0}, s4, {t0}')
        A(f'v_and_b32 {t1}, 3, {t}\nv_lshl_add_u32 {t0}, {t1}, 3, {t0}\ns_add_u32 s7, s7, {phys(0)+16384}')
        if OPT['rot'] == 2: A(f's_bitcmp1_b32 {sI}, 2\ns_cselect_b32 {sT1}, {phys(0) - phys(2)}, 0\ns_sub_u32 s7, s7, {sT1}')
        if OPT['r3'] & 1: A(f's_and_b32 {sT1}, {sI}, 6\ns_cmp_lg_u32 {sT1}, 6\ns_cselect_b32 {sT1}, {phys(0) - phys(1)}, 0\ns_sub_u32 s7, s7, {sT1}')
        A(f'v_add_u32 {t0}, s7, {t0}')
        A(f'v_lshrrev_b32 {f}, 3, {t}\nv_and_b32 {t1}, 1, {g}\nv_lshl_or_b32 {f}, {t1}, 1, {f}\nv_lshrrev_b32 {f}, s6, {f}')
        for q in range(4): A(f'v_xor_b32 {t1}, {q}, {f}\nv_and_b32 {t1}, s5, {t1}\nv_lshl_add_u32 {ca[q]}, {t1}, 5, {t0}')
        A(f's_lshl_b32 s5, 4, s4')
        for r in range(4): A(f'v_mov_b32 {ones[r]}, 0x3f803f80')
        A(f'v_mov_b32 {vt}, {L_TAG}\nv_mov_b32 {ff}, 0xff')
        A(f's_lshl_b32 {sE[1]}, {sJJ}, 14\ns_lshl_b32 {sT0}, {sWQ}, 8\ns_add_u32 {sE[1]}, {sE[1]}, {sT0}\ns_add_u32 {sE[1]}, {sE[1]}, {CSP}')
        A(f's_lshl_b32 {sT0}, {sI}, 10\ns_add_u32 {sE[2]}, {sE[1]}, {sT0}')
        A(f's_lshl_b32 {sE[0]}, {sI}, 2\ns_add_u32 {sE[0]}, {sE[0]}, {sWQ}\ns_lshl_b32 {sE[0]}, {sE[0]}, {9 + HS}\ns_add_u32 {sE[0]}, {sE[0]}, {STAT}')
        TFL = ['', 'nt', 'sc1', 'sc0 sc1', 'sc0 sc1 nt', 'sc1 nt'][OPT['tfl']]
        def mall(fl=0):
            if OPT['touch'] & 8:
                A(f's_lshl2_add_u32 {sT0}, s2, {sWQ}\ns_lshl_b32 {sT0}, {sT0}, 10\ns_add_u32 {sT1}, {sT0}, 0x100000\ns_mov_b32 m0, {JUNK}')
                C.vm(f'buffer_load_dwordx4 {v_l16}, {sW2}, {sT0} offen {TFL} lds')
                C.vm(f'buffer_load_dwordx4 {v_l16}, {sW2}, {sT1} offen {TFL} lds')
                A(f's_xor_b32 {sT0}, {sT0}, 0x80000')
                C.vm(f'buffer_load_dwordx4 {v_l16}, {sWO}, {sT0} offen {TFL} lds')
                return
            if OPT['touch'] & 16:
                if not F: return
                A(f's_lshl4_add_u32 {sT0}, {sJ}, {sI}\ns_lshl2_add_u32 {sT0}, {sT0}, {sWQ}\ns_lshl_b32 {sT1}, {sT0}, 10\ns_lshl_b32 {sT0}, {sT0}, 12\ns_mov_b32 m0, {JUNK}')
                for i in range(4): C.vm(f'buffer_load_dwordx4 {v_l16}, {sW2}, {sT0} offen offset:{1024*i} {TFL} lds')
                C.vm(f'buffer_load_dwordx4 {v_l16}, {sWO}, {sT1} offen {TFL} lds')
                return
            if OPT['touch'] & 32:
                A(f's_cmp_gt_u32 {sJJ}, 6\ns_subb_u32 {sT0}, {sJJ}, 0\ns_lshl4_add_u32 {sT0}, {sT0}, {sI}\ns_lshl2_add_u32 {sT0}, {sT0}, {sWQ}')
                if fl: A(f's_xor_b32 {sT0}, {sT0}, 32')
                A(f's_cmp_eq_u32 {sJJ}, 6\ns_cselect_b32 {sT0}, 0x10000, {sT0}\ns_sub_u32 {sT1}, {sT0}, 448\ns_lshl_b32 {sT1}, {sT1}, 10\ns_lshl_b32 {sT0}, {sT0}, 11\ns_mov_b32 m0, {JUNK}')
                A(f's_min_u32 {sT1}, {sT1}, {OOB}')
                for i in range(2): C.vm(f'buffer_load_dwordx4 {v_l16}, {sW2}, {sT0} offen offset:{1024*i} {TFL} lds')
                C.vm(f'buffer_load_dwordx4 {v_l16}, {sWO}, {sT1} offen {TFL} lds')
                return
            if not OPT['touch'] & 4 or F: return
            A(f's_cmp_gt_u32 {sJ}, 3\ns_subb_u32 {sT0}, {sJ}, 0\ns_lshl_b32 {sT0}, {sT0}, 4\ns_add_u32 {sT0}, {sT0}, {sI}\ns_lshl2_add_u32 {sT0}, {sT0}, {sWQ}')
            A(f's_cmp_eq_u32 {sJ}, 3\ns_cselect_b32 {sT0}, 0x10000, {sT0}\ns_lshl_b32 {sT1}, {sT0}, 11\ns_lshl_b32 {sT0}, {sT0}, 12\ns_mov_b32 m0, {JUNK}')
            for i in range(4): C.vm(f'buffer_load_dwordx4 {v_l16}, {sW2}, {sT0} offen offset:{1024*i} {TFL} lds')
            for i in range(2): C.vm(f'buffer_load_dwordx4 {v_l16}, {sWO}, {sT1} offen offset:{1024*i} {TFL} lds')
        def w2h():
            a = ACCL[62]
            A(f'v_lshrrev_b32 {a}, 3, {l}\nv_mul_u32_u24 {a}, {lrow}, {a}\nv_and_b32 {ACCL[63]}, 0x70, {v_l16}\nv_add_u32 {a}, {a}, {ACCL[63]}')
            A(f's_bfe_u32 {sT0}, {sRot}, 0x10012\ns_lshl_b32 {sT0}, {sT0}, 3\ns_and_b32 {sT1}, {sI}, 7\ns_add_u32 {sT0}, {sT0}, {sT1}\ns_lshl2_add_u32 {sT0}, {sT0}, {sWQ}')
            A(f's_mul_i32 {sT0}, {sT0}, {8*lrow}\ns_add_u32 {sT0}, {sT0}, {sWb}\ns_mov_b32 m0, {JUNK}')
            for b in range(3): C.vm(f'buffer_load_dwordx4 {a}, {sW}, {sT0} offen offset:{b*(128 if F else 1024)}{NT("ntp", 0)} lds')
            if F:
                A(f's_bitcmp1_b32 {sJ}, 0\ns_cselect_b32 {sT0}, {OOB}, {sT0}')
                C.vm(f'buffer_load_dwordx4 {a}, {sW}, {sT0} offen offset:384{NT("ntp", 0)} lds')
        def x2h():
            a = ACCL[62]
            A(f'v_lshrrev_b32 {a}, 5, {l}\nv_lshlrev_b32 {a}, 10, {a}\nv_and_b32 {ACCL[63]}, 0x1f0, {v_l16}\nv_add_u32 {a}, {a}, {ACCL[63]}')
            A(f's_bfe_u32 {sT0}, {sRot}, 0x10012\ns_lshl_b32 {sT0}, {sT0}, 9\ns_and_b32 {sT1}, {sJJ}, 3\ns_lshl2_add_u32 {sT1}, {sT1}, {sWQ}\ns_lshl_b32 {sT1}, {sT1}, 13')
            A(f's_add_u32 {sT0}, {sT0}, {sT1}\ns_add_u32 {sT0}, {sT0}, {sXb}\ns_add_u32 {sT1}, {sT0}, 4096\ns_mov_b32 m0, {JUNK}')
            for b in range(4): C.vm(f'buffer_load_dwordx4 {a}, {sX}, {(sT0, sT1)[b >> 1]} offen offset:{(b & 1)*2048} lds')
        if not F:
            A(f's_lshl2_add_u32 {sT0}, {sJ}, {sWQ}\ns_lshr_b32 {sT0}, {sT0}, 1\ns_lshl_b32 {sT0}, {sT0}, 10\ns_add_u32 m0, {sLb}, {L_PHI}\ns_waitcnt lgkmcnt(0)')
            tkphi = C.vm(f'buffer_load_dwordx4 {v_l16}, {sPHI}, {sT0} offen lds')
        if OPT['j3'] & 1 and OPT['j3p'] == 1: j3touch(False)
        if OPT['kva'] and not F:
            z4 = RS[1][0:4]; za = RS[1][4]
            for r in range(4): A(f'v_mov_b32 {z4[r]}, 0')
            A(f's_lshl_b32 {sT1}, {sI}, 10\nv_add_u32 {za}, {sT1}, {v_l16}\nv_cmp_lt_u32 vcc, {2176-16}, {za}\nv_cndmask_b32 {za}, {za}, {ones[0]}, vcc')
            A(f's_lshl2_add_u32 {sT0}, {sJ}, {sWQ}\ns_mul_i32 {sT0}, {sT0}, 2176\ns_add_u32 {sT0}, {sT0}, {KT}')
            C.vm(f'buffer_store_dwordx4 {z4}, {za}, {sWS}, {sT0} offen sc1')
        stl = [int(c, 16) for c in OPT['st']] + [0]*3
        sc = [OPT['stc'] + OPT['stl']]
        if OPT['stl']:
            if F: A('s_waitcnt lgkmcnt(0)')
            stouch(A, OPT['stc'], sc[0])
        stampg(A, 4)
        if OPT['tk'] == -1:
            A('s_waitcnt lgkmcnt(0)'); mall()
        self.issue(1, lo=OPT['e1'], hi=OPT['sp1'])
        if OPT['w2h'] == -2: w2h()
        if OPT['x2h'] == -2: x2h()
        if OPT['tk'] == -2:
            A('s_waitcnt lgkmcnt(0)'); mall()
        stamp(A, 1); stampg(A, 5)
        C.wait(self.stok[0]); stampb(A, 1); stampg(A, 6); A('s_barrier')
        stampg(A, 7)
        stamp(A, 2)
        gq = [ACCL[16+4*i:20+4*i] for i in range(4)]; sg = ACCL[32:36]; ga, sa = T[4], T[5]; tm = ACCL[40:48]
        ldg = [f'buffer_load_dwordx4 {sg}, {v_l16 if HS else sa}, {sWS}, {sE[0]} offen sc1']
        ldg += [f'buffer_load_dwordx4 {gq[i]}, {ga}, {sWS}, {[sE[1], sE[3], sE[4], sE[5]][i]} offen sc1' for i in range(4)]
        nm = OPT['nmF'] if F else OPT['nmA']
        B.free = [TS]
        tl = [int(c) for c in f'{OPT["tl"+self.typ]:09d}']
        tc = [0]
        def touch(n):
            for _ in range(n):
                i = tc[0]
                if i >= 18: return
                tc[0] += 1
                r = i if i < 14 else i - 14
                if r % 4 == 0 or _ == 0:
                    A(f's_lshr_b32 {sT0}, s2, 3\ns_lshl2_add_u32 {sT0}, {sT0}, {sWQ}\ns_mul_i32 {sT0}, {sT0}, {14336 if i < 14 else 4096}\ns_add_u32 {sT0}, {sT0}, {r//4*4096}\ns_mov_b32 m0, {JUNK}')
                C.vm(f'buffer_load_dwordx4 {v_l16}, {sW2 if i < 14 else sWO}, {sT0} offen offset:{(r % 4)*1024} lds')
        c3l = [int(c) for c in f'{OPT["c3F"]:08d}'] + [0]*3
        c3c = [0]
        def c3touch(n):
            if n: A(f's_lshr_b32 {sT0}, s2, 4\ns_and_b32 {sT0}, {sT0}, 8\ns_and_b32 {sT1}, {sI}, 7\ns_add_u32 {sT0}, {sT0}, {sT1}\ns_lshl2_add_u32 {sT1}, {sT0}, {sWQ}\ns_mul_i32 {sT0}, {sT1}, {28*1024}\ns_mov_b32 m0, {JUNK}\ns_lshl_b32 {sT1}, {sT1}, 13')
            for _ in range(n):
                i = c3c[0]
                if i >= 5: return
                c3c[0] += 1
                if i < 4:
                    A(f's_add_u32 s6, {sT0}, {[0, 8192, 16384, 20480][i]}')
                    C.vm(f'buffer_load_dwordx4 {vb0}, {sW2}, s6 offen offset:384 lds')
                else: C.vm(f'buffer_load_dwordx4 {vb0}, {sWO}, {sT1} offen offset:384 lds')
        for k in range(9):
            if k == 3: stampc(A, 1)
            if k == 4: stampc(A, 8)
            if k == 0:
                A(f'ds_read_b32 {vt}, {vt}\nds_read_b64 {sgr[0:2]}, {sga}')
            if k == 0 or (k == 2 and OPT['rot'] == 2) or (k == 1 and OPT['r3'] & 1):
                lk = A.lab('CS')
                if OPT['r3'] & 1: A(f's_and_b32 {sT1}, {sI}, 6\ns_cmp_eq_u32 {sT1}, 6\ns_cbranch_scc{k} {lk}')
                if OPT['rot'] == 2: A(f's_bitcmp1_b32 {sI}, 2\ns_cbranch_scc{1 if k == 0 else 0} {lk}')
                for q in range(4): A(f'ds_read_b64_tr_b16 {wfr[4*q:4*q+2]}, {ca[q]}')
                for q in range(4): A(f'v_add_u32 {ca[q]}, s5, {ca[q]}')
                for q in range(4): A(f'ds_read_b64_tr_b16 {wfr[4*q+2:4*q+4]}, {ca[q]}')
                A(f'{lk}:')
            if OPT['sti'] and 1 <= k < 6:
                stouch(self.sq.append, sc[0], sc[0] + stl[k]); sc[0] += stl[k]; stl[k] = 0
            if k == 0: self.issue(1, lo=OPT['sp1'])
            if k == OPT['w2h'] - 10: w2h()
            if k == OPT['x2h'] - 10: x2h()
            if k == OPT['tk'] - 10: mall()
            spl = [int(c, 16) for c in OPT['spl' + self.typ]]
            if 1 <= k <= 6 and spl[k-1] < 15: self.issue(k + 1, lo=spl[k-1])
            if k == OPT['w2h'] - 20: w2h()
            if k == OPT['x2h'] - 20: x2h()
            if k == OPT['tk'] - 20: mall()
            if k < 6 and spl[k]: self.issue(k + 2, hi=spl[k])
            for x in self.sq: A(x)
            self.sq = []
            if k == 6 and OPT['xr'] & 2:
                A(f's_and_b32 {sT0}, s2, 6\ns_lshl_b32 {sT0}, {sT0}, 9')
                for i in range(4): A(f's_xor_b32 {sLi[i]}, {sT0}, {1024*i}\ns_add_u32 {sLi[i]}, {sLi[i]}, {sLb2}')
                A(f's_and_b32 {sT1}, {sT0}, 1024\ns_lshl_b32 {sT1}, {sT1}, 3\nv_xor_b32 {vr0}, {sT1}, {vb0}\nv_xor_b32 {vr1}, {sT1}, {vb1}')
                A(f's_lshr_b32 {sHb}, {sT1}, 2')
                A(f's_and_b32 {sT1}, {sT0}, 2048\ns_lshl_b32 {sT1}, {sT1}, 3\ns_add_u32 {sBb}, {sBb}, {sT1}')
            if k == 6:
                for i in range(4):
                    A(f's_add_u32 {sT0}, {sWQ}, {i}\ns_and_b32 {sT0}, {sT0}, 3\ns_lshl_b32 {sT0}, {sT0}, 10\nv_add_u32 {va[i]}, {sT0}, {v_l16}')
            if k == 3: stampc(A, 2)
            if k == OPT['stk']:
                if k == 0 or (k == 1 and OPT['r3'] & 1): A(f's_waitcnt lgkmcnt(0)')
                A(f'v_readfirstlane_b32 {sTag}, {vt}')
                A('s_setprio 3')
                for q in range(4): A(f'v_mfma_f32_16x16x32_bf16 {cs[4*q:4*q+4]}, {ones}, {wfr[4*q:4*q+4]}, 0')
                tag_consts(A)
                A(f'v_lshrrev_b32 {t0}, 4, {l}\nv_lshl_add_u32 {t0}, {t0}, 26, {v_l16}')
                for q in range(4): A(f'v_bfi_b32 {cs[q]}, {ff}, {sTB[q]}, {cs[4*q]}')
                A(f's_setprio {OPT["lprio"]}')
                A(f'v_mov_b32 {sgr[2]}, {vt}\nv_mov_b32 {sgr[3]}, {vt}')
                A(f'v_and_b32 {ga}, 15, {l}\nv_lshlrev_b32 {ga}, 4, {ga}\nv_lshl_add_u32 {ga}, {g}, 10, {ga}\nv_and_b32 {sa}, 0x1f0, {v_l16}')
                A(f's_add_u32 {sE[3]}, {sE[1]}, 4096\ns_add_u32 {sE[4]}, {sE[1]}, 8192\ns_add_u32 {sE[5]}, {sE[1]}, 12288')
            if k == OPT['stk']:
                assert (k >= 2 or OPT['rot'] != 2)
                C.vm(f'buffer_store_dwordx4 {cs[0:4]}, {t0}, {sWS}, {sE[2]} offen sc1')
                C.vm(f'buffer_store_dwordx4 {sgr}, {sgs}, {sWS}, {sSpin} offen sc1')
            if k == OPT['j3k'] and OPT['j3'] & 2: j3touch(True)
            if k == OPT['w2h']: w2h()
            if k == OPT['x2h']: x2h()
            if k == OPT['tk']: mall()
            if k == OPT['tk2']: mall(1)
            if k == OPT['c3'] and not F:
                A(f's_lshr_b32 {sT0}, s2, 4\ns_and_b32 {sT0}, {sT0}, 8\ns_and_b32 {sT1}, {sI}, 7\ns_add_u32 {sT0}, {sT0}, {sT1}\ns_lshl2_add_u32 {sT1}, {sT0}, {sWQ}\ns_mul_i32 {sT0}, {sT1}, {28*1024}\ns_mov_b32 m0, {JUNK}')
                for o in (0, 8192, 8192, 4096):
                    if o: A(f's_add_u32 {sT0}, {sT0}, {o}')
                    C.vm(f'buffer_load_dwordx4 {vb0}, {sW2}, {sT0} offen offset:384 lds')
                A(f's_lshl_b32 {sT1}, {sT1}, 13')
                C.vm(f'buffer_load_dwordx4 {vb0}, {sWO}, {sT1} offen offset:384 lds')
            if F: c3touch(c3l[k])
            plo, phi_, pa_ = RS[10][0:4], RS[10][4:8], RS[10][8]
            if k == OPT['pk'] and not F:
                if k == 0: C.wait(tkphi)
                A(f'v_bfe_u32 {pa_}, {l}, 3, 2\nv_lshlrev_b32 {pa_}, 3, {pa_}\nv_and_b32 {t1}, 3, {l}\nv_lshl_add_u32 {pa_}, {t1}, 1, {pa_}')
                A(f'v_lshrrev_b32 {t1}, 5, {l}\nv_lshl_add_u32 {pa_}, {t1}, 8, {pa_}')
                A(f's_and_b32 {sT0}, {sWQ}, 1\ns_lshl_b32 {sT0}, {sT0}, 9\ns_add_u32 {sT0}, {sT0}, {sLb}\ns_add_u32 {sT0}, {sT0}, {L_PHI}\nv_add_u32 {pa_}, {sT0}, {pa_}')
                for j in range(8): A(f'ds_read_u16 {(phi_ if j & 1 else plo)[j//2]}, {pa_} offset:{32*j}')
            if k == OPT['pk'] + 1 and not F:
                L = [f'v_bfe_u32 {t1}, {l}, 2, 1', f'v_mul_u32_u24 {t1}, 0x8000, {t1}', f'v_lshl_or_b32 {t1}, {t1}, 16, {t1}']
                for rr in range(4): L += [f'v_lshl_or_b32 {plo[rr]}, {phi_[rr]}, 16, {plo[rr]}', f'v_xor_b32 {plo[rr]}, {plo[rr]}, {t1}']
                L += [f's_add_u32 {sT0}, {sLb}, {L_PHI}', f'v_add_u32 {pa_}, {sT0}, {v_l16}', f'ds_write_b128 {pa_}, {plo}']
                for x in L: A(x)
            if k == OPT['sk'] and OPT['snt'] and not F:
                sn = RS[9][0:4]
                for r in range(4): A(f'v_mov_b32 {sn[r]}, -1')
                A(f's_mul_i32 {sT0}, {sI}, {2*72*4096}\ns_lshl_b32 {sT1}, {sJ}, 11\ns_add_u32 {sT0}, {sT0}, {sT1}\ns_lshl_b32 {sT1}, {sWQ}, 14\ns_add_u32 {sT0}, {sT0}, {sT1}')
                A(f's_add_u32 {sT0}, {sT0}, {ACT + 56*4096}\ns_add_u32 {sT1}, {sT0}, {72*4096}')
                for so in (sT0, sT1):
                    for o_ in (0, 1024): tks = C.vm(f'buffer_store_dwordx4 {sn}, {v_l16}, {sWS}, {so} offen offset:{o_} sc1')
            if k == OPT['gat']:
                for s in ldg: tkg = C.vm(s)
            touch(tl[k])
            if 6 - nm <= k < 6: B.step()
            if k == 6: B.free += [X0, X1]
            if k == 7: B.free += [Y0, Y1]
            if k in (6, 7) and (k != OPT['chk'] or OPT['qf']): B.quota(OPT[f'q{k}{self.typ}'])
            if k == OPT['chk']:
                C.wait(tkg)
                def chk():
                    for i in range(4): quad_diff(A, gq[i], tm[i], tm[4+i])
                    A(f'v_bitop3_b32 {tm[4]}, {sg[2]}, {sg[3]}, {sTag} bitop3:0x7e')
                    A(f'v_or3_b32 {tm[0]}, {tm[0]}, {tm[1]}, {tm[2]}\nv_or3_b32 {tm[0]}, {tm[0]}, {tm[3]}, {tm[4]}\nv_cmp_ne_u32 vcc, 0, {tm[0]}\ns_and_b64 s[4:5], vcc, exec')
                poll(A, '\n'.join(ldg), chk, first_loaded=True, sleep=OPT['slp'])
                L = []
                for i in range(4):
                    for r in range(4): L.append(f'v_and_b32 {gq[i][r]}, 0xffffff00, {gq[i][r]}')
                x = gq[0]
                for r in range(4): L += [f'v_add_f32 {x[r]}, {x[r]}, {gq[1][r]}', f'v_add_f32 {gq[2][r]}, {gq[2][r]}, {gq[3][r]}', f'v_add_f32 {x[r]}, {x[r]}, {gq[2][r]}']
                L += [f'v_permlane32_swap_b32 {x[0]}, {x[2]}', f'v_permlane32_swap_b32 {x[1]}, {x[3]}', f'v_add_f32 {x[0]}, {x[0]}, {x[2]}', f'v_add_f32 {x[1]}, {x[1]}, {x[3]}',
                      f'v_permlane16_swap_b32 {x[0]}, {x[1]}', f'v_add_f32 {x[0]}, {x[0]}, {x[1]}']
                L += [f's_lshl_b32 {sT0}, {sWQ}, 8', f's_add_u32 {sT0}, {sT0}, {L_CS}', f'v_lshl_add_u32 {ga}, {l}, 2, {sT0}', f'ds_write_b32 {ga}, {x[0]}']
                if HS:
                    L += [f'v_mov_b32 {sg[2]}, {sg[0]}', f'v_mov_b32 {sg[3]}, {sg[1]}', f'v_permlane32_swap_b32 {sg[0]}, {sg[2]}', f'v_permlane32_swap_b32 {sg[1]}, {sg[3]}',
                          f'v_add_f32 {sg[1]}, {sg[1]}, {sg[3]}', f'v_sub_f32 {sg[3]}, {sg[0]}, {sg[2]}', f'v_add_f32 {sg[0]}, {sg[0]}, {sg[2]}', f'v_mul_f32 {sg[0]}, 0.5, {sg[0]}',
                          f'v_mul_f32 {sg[3]}, {sg[3]}, {sg[3]}', f'v_fmac_f32 {sg[1]}, {f2u(128.0):#x}, {sg[3]}', f'v_mov_b32 {sg[3]}, {f2u(1e-5):#x}',
                          f'v_fmac_f32 {sg[3]}, {f2u(1/512):#x}, {sg[1]}', f'v_rsq_f32 {sg[1]}, {sg[3]}']
                L += [f's_lshl_b32 {sT1}, {sWQ}, 7', f's_add_u32 {sT1}, {sT1}, {L_NM}', f'v_lshrrev_b32 {sa}, 2, {sa}', f'v_add_u32 {sa}, {sT1}, {sa}',
                      f'v_sub_f32 {sg[0]}, 0, {sg[0]}', f'v_mul_f32 {sg[2]}, {f2u(-LOG2E if F else LOG2E):#x}, {sg[1]}',
                      f'ds_write_b32 {sa}, {sg[0]}', f'ds_write_b32 {sa}, {sg[2]} offset:512']
                if not F: L.append(f'ds_write_b32 {sa}, {sg[1]} offset:1024')
                emit_sched(A, L)
                if k in (6, 7) and not OPT['qf']: B.quota(OPT[f'q{k}{self.typ}'])
            if k == 0: stampg(A, 8)
            if k == 1: stampg(A, 10)
            if k < 8:
                lg = k == 0 or (k == 1 and OPT['r3'] & 1) or k >= 6 - nm or (k == OPT['pk'] and not F)
                if lg and stl[k]: A('s_waitcnt lgkmcnt(0)'); lg = False
                stouch(A, sc[0], sc[0] + stl[k]); sc[0] += stl[k]
                if k < 7: C.wait(self.stok[k+1], 'lgkmcnt(0)' if lg else '')
                elif OPT['snt'] and not F: C.wait(tks, 'lgkmcnt(0)')
                else: A('s_waitcnt lgkmcnt(0)')
                G.done = G.n
                if k == 0: stampg(A, 9)
                if k == 3: stampc(A, 3)
                stampb(A, 2 + k)
                A('s_barrier')
                if k == 3: stampc(A, 4)
        stamp(A, 5)
        if OPT['lprio']: A('s_setprio 0')
        if OPT['dbg'] & (1 if F else 2):
            A(f's_mov_b32 {sW2[2]}, 0\ns_mov_b32 {sWO[2]}, 0')
        if OPT['dbg'] & 4 and F:
            A('s_sleep 60')
        B.wleft = list(range(4 - OPT['wol' + self.typ], 4))
        def wo(ks):
            for k in ks:
                if k not in B.wleft:
                    for f in B.wo_list(k): f()
        A(f's_and_b32 {sF[2]}, {sI2}, 2')
        B.dep = OPT['dep' + self.typ]
        wob = OPT['wob'] if F else OPT['wobA']
        stampe(A, 1)
        mark = len(A.L)
        B.flush()
        while B.next < wob and B.step():
            if B.next % 2 == 1 and B.next > 2: stampe(A, 2 + (B.next-3)//2)
        wo([0, 1])
        stampe(A, 8)
        while B.step(): pass
        wo([2, 3])
        if OPT['ah']:
            idx = [i for i in range(mark, len(A.L)) if A.L[i].startswith('buffer_load')]
            i = idx[-(OPT['ahA'] if (OPT['ahA'] and not F) else OPT['ah'])] + 1
            at = [f's_mov_b32 {sE[2]}, 0', f's_atomic_add {sE[2]}, {sWS[0:2]}, {sF[1]} glc']
            a2 = OPT['a2' + self.typ]
            if a2:
                print('  waits after first check:', [x for x in A.L[idx[-a2] + 1:] if 'lgkmcnt' in x])
                lk = A.lab('H0')
                A.L[i:i] = ['s_waitcnt lgkmcnt(0)', f's_cmp_eq_u32 {sE[2]}, {sE[3]}', f's_cbranch_scc1 {lk}'] + at + [f'{lk}:']
                i = idx[-a2] + 1
            else: assert not any('lgkmcnt(0)' in x for x in A.L[i:])
            A.L[i:i] = at + [f's_add_u32 {sE[3]}, {sTag}, 4']
        stampe(A, 9)
        assert not B.fly
        stamp(A, 6)
        return B

def p2_L(A, B0, typ):
    l = lane; C = Ctx(A); G = LG(A)
    B = BP(A, C, G); B.slot = dict(B0.slot); B.tokwo = 0
    stamp(A, 7); stampe(A, 10); stamph(A, 1)
    if OPT['stamp'] == 12: A('s_memtime s[74:75]')
    if OPT['ah']:
        lk = A.lab('H1')
        A(f's_waitcnt lgkmcnt(0)\ns_cmp_eq_u32 {sE[2]}, {sE[3]}\ns_cbranch_scc1 {lk}')
    ppoll(A, sF[1], 4, OPT['Dh'], 44, OPT['slph'])
    if OPT['ah']: A(f'{lk}:')
    WO_ = OPT['wo'] and typ == 'A'
    if WO_ and not OPT['ns0']: lds_spin(A, pm, 8, 64, ACCL[0])
    stamp(A, 9); stampf(A, 0); stamph(A, 2)
    if OPT['stamp'] in (10, 11): A('s_memtime s[72:73]')
    if OPT['stamp'] == 12: A('s_memtime s[76:77]')
    tok = {}
    TM = OPT['tm']
    assert not TM or (max(o for o in RSL if RSL[o] == 1) <= 7 and max(o for o in RSL if RSL[o] == 0) <= 9 and max(o for o in RSL if RSL[o] == RSL[8]) == 8)
    sOf = lambda s: {12: sXo, 13: sHo}.get(s, sE[1]) if TM else sE[1]
    abuf = lambda s: {12: RS[1], 13: RS[RSL[8]]}.get(s, RS[8 + s % 3]) if TM else RS[8 + s % 3]
    def a_off(s): return [nib(sOf(s), s), f's_lshl_b32 {sOf(s)}, {sOf(s)}, 12', f's_add_u32 {sOf(s)}, {sOf(s)}, {sAb}']
    def ld_a(s, tt):
        tok[(s, tt)] = C.vm(f'buffer_load_dwordx4 {abuf(s)[4*tt:4*tt+4]}, {va[tt]}, {sWS}, {sOf(s)} offen ' + ['sc1', '', 'sc0', 'nt', 'sc0 sc1'][OPT['hld']])
    la = OPT['la' + typ]
    if TM: seq = [(s, tt) for s in range(11) for tt in range(4)] + [(s, tt) for tt in (1, 2, 3, 0) for s in (11, 12, 13)]
    else: seq = [(s, tt) for s in range(14) for tt in ([1, 2, 3, 0] if s == 13 else [0, 1, 2, 3])]
    N0 = 4*OPT['ns0'] if WO_ else 0
    when = [max(-1, n - OPT['la0']) if n < N0 else max(N0 - 1, n - la) for n in range(56)]
    if OPT['lr'] and typ == 'A':
        when = []; n = 0
        for m in range(-1, 56):
            lim = m + 1 + min(la, OPT['la0'] + max(0, m - OPT['lr']))
            while n < min(56, lim): when.append(m); n += 1
    first = {}
    for n, (s, tt) in enumerate(seq): first.setdefault(s, n)
    for n, (s, tt) in enumerate(seq):
        if TM and s == 12: assert when[n] >= 31
        elif TM and s == 13: assert when[n] >= 35
        elif s >= 3: assert when[n] >= seq.index((s - 3, tt))
    def issue_after(m, S=None):
        for n in range(56):
            if when[n] == m:
                if first[seq[n][0]] == n and S != seq[n][0]:
                    for x in a_off(seq[n][0]): A(x)
                ld_a(*seq[n])
    issue_after(-1)
    chk_at = {}
    for p in range(1, len(PH)):
        w = when[first[2*PH[p-1]]]; assert w >= 0
        chk_at[w // 4 if w != N0 - 1 else 'b'] = p
    asy_at = {}
    prev = 0
    for st_, p in sorted(chk_at.items(), key=lambda x: x[1]):
        st_ = N0//4 if st_ == 'b' else st_
        asy_at[max(prev, st_ - OPT['pa3'])] = p; prev = st_
    assert len(asy_at) == len(chk_at) == len(PH) - 1
    A(f's_add_u32 {sE[3]}, {sTag}, 4')
    G.done = G.n
    tokB = {k: 0 for k in range(8)}
    Q = []; X = []
    for k in B0.wleft: X += B.wo_list(k)
    sig = False
    wa, t, a, vm_ = [RS[0][i] for i in range(4)]; ra = [RS[0][4+i] for i in range(3)]; c = RS[0][8:12]; W = []
    tail = [f's_add_u32 {sT0}, {sLb2}, {Y0}', f'v_add_u32 {wa}, {sT0}, {v_l16}']
    for sg in range(1, 4):
        tail += [f's_sub_u32 {sT0}, {sWQ}, {sg}', f's_and_b32 {sT0}, {sT0}, 3', f's_lshl_b32 {sT0}, {sT0}, 12', f's_add_u32 {sT0}, {sT0}, {Y0 + 16384*(sg-1)}', f'v_add_u32 {ra[sg-1]}, {sT0}, {v_l16}']
    tail += [f'v_mov_b32 {c[0]}, {f2u(-LOG2E):#x}', f'v_mov_b32 {c[1]}, {c[0]}', f'v_mov_b32 {c[2]}, 1.0', f'v_mov_b32 {c[3]}, 1.0', f'v_add_u32 {a}, {sLb2}, {v_l16}', f'v_mov_b32 {vm_}, {L_TAG}', f'v_mov_b32 {t}, 1']
    def check(p):
        lk = A.lab('H2')
        if OPT['stamp'] == 12: A(f's_memtime s[{72+4*p+2}:{73+4*p+2}]')
        G.all()
        A(f's_cmp_eq_u32 {sE[2]}, {sE[3]}\ns_cbranch_scc1 {lk}')
        A(f's_mov_b32 {sE[4]}, {sT0}\ns_mov_b32 {sE[5]}, {sT1}')
        spoll(A, f'{sF[1]} offset:{PHO[p]}', 4, OPT['slph'])
        A(f's_mov_b32 {sT0}, {sE[4]}\ns_mov_b32 {sT1}, {sE[5]}')
        A(f'{lk}:')
        if OPT['stamp'] == 12: A(f's_memtime s[{72+4*p+4}:{73+4*p+4}]')
    nm_ = 0; wrdy = []
    for g in range(14):
        if OPT['lp2'] and g == OPT['lpr']: A('s_setprio 0')
        if OPT['lp2'] and g == OPT['lps' + typ]: A(f's_setprio {OPT["lp2"]}')
        def asy():
            A(f's_mov_b32 {sE[2]}, 0\ns_atomic_add {sE[2]}, {sWS[0:2]}, {sF[1]} offset:{PHO[asy_at[g]]} glc')
        if g in asy_at and chk_at.get(g) == asy_at[g]: asy()
        if g in chk_at: check(chk_at[g])
        if g in asy_at and chk_at.get(g) != asy_at[g]: asy()
        nx = 0
        for n in range(4*g, 4*g + 4):
            s, tt = seq[n]
            Bk = RS[RSL[s]]; Ak = abuf(s)
            G.need(tokB[LOAD.index(s)], 0)
            nxt = [m for m in range(56) if when[m] == n]
            Ss = seq[nxt[0]][0] if (len(nxt) == 1 and first[seq[nxt[0]][0]] == nxt[0]) else None
            S = a_off(Ss) if Ss is not None else []
            C.wait(tok[(s, tt)])
            if not sig and not X and tok[(s, tt)] > B.tokwo and (g == 0 or g > 4):
                if g == 0: A(f's_mov_b64 exec, 1\nds_add_u32 {pm}, {p1} offset:4\ns_mov_b64 exec, -1')
                else: A(f'v_mov_b32 {vb0}, {L_TAG}\nv_mov_b32 {vb1}, 1\ns_mov_b64 exec, 1\nds_add_u32 {vb0}, {vb1} offset:4\ns_mov_b64 exec, -1')
                G.n += 1; sig = True; stamph(A, 3)
            for q in range(4):
                qq = 3 - q if (OPT['snk'] and n & 1 and n < 44) else q
                ac = ACCL[16*tt+4*qq:16*tt+4*qq+4]
                A(f'v_mfma_f32_16x16x32_bf16 {ac}, {Bk[4*qq:4*qq+4]}, {Ak[4*tt:4*tt+4]}, {ac if s else 0}')
                nm_ += 1
                if S: A(S.pop(0))
                elif q == 1 and X and nx < (4 if g == 3 else OPT['wper']): X.pop(0)(); nx += 1
                if Q and q < 3:
                    tokB[qk] = G.ds(Q.pop(0))
                elif g >= 10 and tail: A(tail.pop(0))
                if s == 13 and tt:
                    W.append(f'ds_write_b128 {wa}, {ac} offset:{16384*(tt-1) + 1024*q}')
                    wrdy.append(max(nm_ + 4 + OPT['wdel'], (wrdy[-1] + OPT['wsp']) if wrdy and TM else 0))
                if W and nm_ >= wrdy[len(wrdy) - len(W)]:
                    assert not tail or tail[0].startswith('v_mov') or 'v_add' in tail[0] or True
                    A(W.pop(0))
            if n == N0 - 1:
                A(f'v_mov_b32 {abuf(s)[0]}, {L_TAG}')
                A(f's_mov_b32 {sE[4]}, {sT0}')
                lds_spin(A, abuf(s)[0], 8, 64, abuf(s)[1]); G.done = G.n
                A(f's_mov_b32 {sT0}, {sE[4]}')
                if 'b' in chk_at: check(chk_at['b'])
                stamph(A, 9)
            issue_after(n, Ss)
            if OPT['gs'] and when[OPT['gs']] == n:
                assert not X and g > 4
                A(f'v_mov_b32 {vb0}, {L_TAG}\n' + (f'v_lshlrev_b32_e64 {vb1}, {sWQ}, 1' if OPT['pwg'] else f'v_mov_b32 {vb1}, 1') + f'\ns_mov_b64 exec, 1\nds_add_u32 {vb0}, {vb1} offset:12\ns_mov_b64 exec, -1')
                G.n += 1; stamph(A, 4)
        s = g
        assert not Q
        if s in (0, 1, 3, 5, 7, 9, 11, 13): stampf(A, 1 + (s+1)//2)
        if OPT['stamp'] in (10, 11) and 0 <= s - 4*(OPT['stamp'] - 10) < 10: A(f's_memtime s[{74+2*(s - 4*(OPT["stamp"] - 10))}:{75+2*(s - 4*(OPT["stamp"] - 10))}]')
        if s == 2:
            while len(X) % 4: X.pop(0)()
            G.need(tokB[8]); X = B.dma_list(13, B.slot[8]) + X
        if s == 3:
            while len(X) % 4: X.pop(0)()
        if s + 8 < 13: qk = s + 8; Q = B.trl(qk)
        if s == 8:
            assert tok[(8, 3)] > B.tok[13]
            qk = 13; Q = B.trl(13)
    assert sig and not tail and not X
    stamph(A, 5)
    if OPT['stamp'] == 12: A('s_memtime s[90:91]')
    for x in W: A(x)
    stamp(A, 10); stamph(A, 6)
    if OPT['lpt']: A(f's_setprio {OPT["lpt"]}')
    A(f's_mov_b64 exec, 1\nds_add_u32 {vm_}, {t} offset:8\ns_mov_b64 exec, -1')
    lds_spin(A, vm_, 8, 68 if WO_ else 4, t, slp=0 if OPT['nsl'] & 1 else 1)
    stampf(A, 9); stamph(A, 7)
    for u in range(4):
        for sg in range(3): A(f'ds_read_b128 {RS[2+sg][4*u:4*u+4]}, {ra[sg]} offset:{1024*u}')
    P = ACCL[0:16]; e = ACCL[16:32]
    if OPT['npk']:
        for u in range(4):
            A(f's_waitcnt lgkmcnt({9 - 3*u + u})')
            L = []
            for i in range(4*u, 4*u+4):
                L += [f'v_add_f32 {P[i]}, {P[i]}, {RS[2][i]}', f'v_add_f32 {RS[3][i]}, {RS[3][i]}, {RS[4][i]}', f'v_add_f32 {P[i]}, {P[i]}, {RS[3][i]}',
                      ] + ([f'v_exp_f32 {e[i]}, {P[i]}', f'v_fma_f32 {e[i]}, {e[i]}, {c[0]}, {c[0]}'] if OPT['psc'] else [f'v_mul_f32 {e[i]}, {P[i]}, {c[0]}', f'v_exp_f32 {e[i]}, {e[i]}', f'v_add_f32 {e[i]}, 1.0, {e[i]}']) + [
                      f'v_rcp_f32 {e[i]}, {e[i]}', f'v_mul_f32 {e[i]}, {e[i]}, {P[i]}']
            L.append(f'ds_write_b128 {a}, {e[4*u:4*u+4]} offset:{X0 + 1024*u}')
            emit_sched(A, L)
        L = []
    else:
        for u in range(4):
            A(f's_waitcnt lgkmcnt({9 - 3*u})')
            for i in (2*u, 2*u+1):
                A(f'v_pk_add_f32 {P[2*i:2*i+2]}, {P[2*i:2*i+2]}, {RS[2][2*i:2*i+2]}\nv_pk_add_f32 {RS[3][2*i:2*i+2]}, {RS[3][2*i:2*i+2]}, {RS[4][2*i:2*i+2]}')
            for i in (2*u, 2*u+1): A(f'v_pk_add_f32 {P[2*i:2*i+2]}, {P[2*i:2*i+2]}, {RS[3][2*i:2*i+2]}')
        L = []
        for u in range(4):
            for i in (2*u, 2*u+1): L.append(f'v_pk_mul_f32 {e[2*i:2*i+2]}, {P[2*i:2*i+2]}, {c[0:2]}')
            for i in range(4*u, 4*u+4): L.append(f'v_exp_f32 {e[i]}, {e[i]}')
            for i in (2*u, 2*u+1): L.append(f'v_pk_add_f32 {e[2*i:2*i+2]}, {e[2*i:2*i+2]}, {c[2:4]}')
            for i in range(4*u, 4*u+4): L.append(f'v_rcp_f32 {e[i]}, {e[i]}')
            for i in (2*u, 2*u+1): L.append(f'v_pk_mul_f32 {e[2*i:2*i+2]}, {e[2*i:2*i+2]}, {P[2*i:2*i+2]}')
            L.append(f'ds_write_b128 {a}, {e[4*u:4*u+4]} offset:{X0 + 1024*u}')
    emit_sched(A, L)
    A('s_waitcnt lgkmcnt(0)')
    stamp(A, 8); stampf(A, 10); stamph(A, 8)
    A('s_setprio 0\ns_barrier')

def kernel(A):
    K = NAME + '_kernel'
    l = lane
    A(f'.globl {K}\n.p2align {OPT["pa"]}\n.type {K},@function\n{K}:')
    if OPT['stamp']: A(f's_memrealtime s[72:73]' if OPT['stamp'] in (1, 2, 9) else 's_memtime s[72:73]')
    A(f's_load_dwordx2 {sX[0:2]}, s[0:1], 0')
    A(f's_bitcmp1_b32 s2, 6\ns_cselect_b32 s7, 40, 8')
    A(f's_load_dwordx2 {sW[0:2]}, s[0:1], s7')
    A(f's_load_dwordx2 {sWS[0:2]}, s[0:1], 72')
    if OPT['warm']:
        A(f'v_lshlrev_b32 v2, {OPT["warm"]}, v0\ns_waitcnt lgkmcnt(0)')
        stampg(A, 1)
        A(f'global_load_dword v255, v2, {sX[0:2]}\nglobal_load_dword v255, v2, {sW[0:2]}')
    A(f's_movk_i32 {sLrow}, 3072\ns_cmovk_i32 {sLrow}, 3584\ns_movk_i32 {sWb}, 128\ns_cmovk_i32 {sWb}, 448\ns_cselect_b32 s3, 2, 0')
    A('s_lshr_b32 s4, s2, 8\ns_cbranch_scc1 K_done')
    rho, t, k = R('v',13,1), R('v',14,1), R('v',15,1)
    A(f'v_readfirstlane_b32 {sLb}, v0\ns_lshr_b32 s5, s2, 3')
    if OPT['touch'] & 1:
        A(f's_getpc_b64 s[6:7]\nL_pc:')
        A(f's_lshl_b32 s4, s5, 11\nv_lshl_add_u32 v2, v0, 2, s4\nv_min_u32 v2, K_done-L_pc, v2')
        A(f'global_load_dword v255, v2, s[6:7]')
    fx, fw = OPT['flip'] & 2, OPT['flip'] & 1
    sLx, sLw = sE[4], sE[5]
    A(f'v_lshrrev_b32 {t}, 4, v0\nv_xor_b32 {k}, {t}, v0\nv_and_b32 {k}, 7, {k}\nv_lshlrev_b32 {k}, 4, {k}\nv_lshrrev_b32 {rho}, 3, v0')
    A(f'v_lshl_add_u32 {vx0}, {rho}, 10, {k}')
    A(f's_and_b32 s4, s5, 7\ns_and_b32 s6, s2, 1\ns_lshl3_add_u32 {sI}, s6, s4\ns_lshr_b32 s6, s2, 6\ns_lshr_b32 s7, s2, 1')
    assert OPT['rot'] == 4
    if fx: A(f's_lshr_b32 s5, s2, 2\ns_and_b32 s5, s5, 1\ns_add_u32 s5, s5, s4\ns_lshl1_add_u32 s5, s6, s5')
    else: A(f's_add_u32 s5, s4, s6')
    A(f's_and_b32 s5, s5, 3\ns_xor_b32 {sRot}, s7, s2\ns_and_b32 {sRot}, {sRot}, 1\ns_lshl2_add_u32 {sRot}, {sRot}, s5')
    if OPT['sh'] == 1: A(f's_mov_b32 {sRot}, s5')
    if OPT['sh'] == 2: A(f's_or_b32 {sRot}, s5, 4')
    A(f's_and_b32 s7, s7, 3\ns_lshl2_add_u32 {sJJ}, s7, s6')
    b0 = phys(0)
    if OPT['ent']:
        assert not fx
        st0 = sHo
        A(f's_and_b32 {st0}, {sRot}, {4 if OPT["r3"] & 1 else 7}')
        A(f's_lshl_b32 {sXb}, {sI}, 17\ns_lshl_b32 {sXo}, {st0}, 7\ns_add_u32 {sXo}, {sXo}, {sXb}')
        A(f's_lshl_b32 {sX[2]}, 1, 21\ns_lshl_b32 {sX[3]}, 1, 17\ns_lshl_b32 {sLb}, {sLb}, 4')
        A(f'v_add_u32 {vx1}, 0x10000, {vx0}')
        if OPT['hs']:
            A(f'v_lshlrev_b32 {v_l16}, 4, v0\nv_and_b32 v9, 0xffffff00, {v_l16}\nv_mad_u32_u24 v9, v9, 3, {v_l16}')
            A(f's_lshr_b32 {sE[0]}, {sJJ}, 3\ns_lshl2_add_u32 {sE[0]}, {sE[0]}, s6\ns_lshl_b32 {sE[0]}, {sE[0]}, 14\ns_and_b32 s5, {sRot}, 4\ns_lshl_b32 s5, s5, 7\ns_add_u32 {sE[0]}, {sE[0]}, s5\ns_add_u32 {sE[0]}, {sE[0]}, {sXb}')
        else: A(f'v_lshlrev_b32 {v_l16}, 4, v0\nv_and_b32 v9, 0xfffffe00, {v_l16}\nv_add_u32 v9, v9, {v_l16}\ns_lshl_b32 {sE[0]}, {sJJ}, 13\ns_add_u32 {sE[0]}, {sE[0]}, {sXb}')
        A(f's_lshr_b32 {sJ}, {sJJ}, 1')
        A(f'v_bfi_b32 {k}, 2, {rho}, {t}\nv_and_b32 {k}, 6, {k}\nv_xor_b32 {k}, {k}, v0\nv_and_b32 {k}, 7, {k}\nv_lshlrev_b32 {k}, 4, {k}')
        if fw: A(f's_and_b32 s5, s2, 32\nv_xor_b32 {rho}, s5, {rho}\ns_lshl_b32 s5, s5, 7\ns_xor_b32 {sLw}, {sLb}, s5')
        else: A(f's_mov_b32 {sLw}, {sLb}')
        A(f'v_mad_u32_u24 {vw}, {rho}, {sLrow}, {k}')
        A(f's_mul_i32 {sWb}, {sWb}, {sJ}\ns_add_u32 {sWb}, {sWb}, 64\ns_and_b32 {sWb}, {sWb}, 0xffffff80')
        A(f's_lshl_b32 {sW[2]}, {sLrow}, 9\ns_mov_b32 {sW[3]}, {sX[3]}\ns_lshl_b32 {sT0}, {st0}, 6\ns_mul_i32 {sT0}, {sT0}, {sLrow}\ns_add_u32 {sWo}, {sT0}, {sWb}')
        mk3 = len(A.L)
        A(f's_cmp_eq_u32 s3, 0\ns_cselect_b32 {sT0}, 10, 7\ns_lshl_b32 {sT0}, 1, {sT0}\ns_add_u32 {sE[3]}, {sWo}, {sT0}')
        A(f's_add_u32 {sLw}, {sLw}, {b0+24576}\ns_movk_i32 {sT1}, 8192')
        if OPT['r3'] & 4: A(f's_bitcmp1_b32 s2, 4\ns_cselect_b32 s5, -1, 1\ns_mul_i32 {sT0}, {sT0}, s5\ns_mul_i32 {sT1}, {sT1}, s5')
        A(f's_sub_u32 {sE[1]}, {sE[3]}, {sT0}\ns_add_u32 {sE[2]}, {sE[3]}, {sT0}\ns_lshr_b32 {sWV}, {sLb}, 10')
        xl = [f's_add_u32 m0, {sLb}, {b0}\ns_nop 0\nbuffer_load_dwordx4 {vx0}, {sX}, {sXo} offen lds', f's_add_u32 m0, {sLb}, {b0+8192}\ns_nop 0\nbuffer_load_dwordx4 {vx1}, {sX}, {sXo} offen lds']
        wl = [f's_sub_u32 m0, {sLw}, {sT1}\ns_nop 0\nbuffer_load_dwordx4 {vw}, {sW}, {sE[1]} offen lds', f's_mov_b32 m0, {sLw}\ns_nop 0\nbuffer_load_dwordx4 {vw}, {sW}, {sE[3]} offen lds',
              f's_add_u32 m0, {sLw}, {sT1}\ns_nop 0\nbuffer_load_dwordx4 {vw}, {sW}, {sE[2]} offen lds']
        if OPT['b3']:
            del A.L[mk3:]
            A(f's_cmp_eq_u32 s3, 0\ns_cselect_b32 {sT0}, 10, 7\ns_and_b32 s5, s4, 6\ns_lshr_b32 s5, {OPT["b3"]}, s5\ns_and_b32 s5, s5, 3\ns_lshl_b32 s5, s5, 1\ns_lshr_b32 s5, 0x124, s5')
            A(f's_add_u32 {sLw}, {sLw}, {b0+16384}\ns_lshr_b32 {sWV}, {sLb}, 10')
            mm = [sT1, sCur, sCurA]
            for i in range(3):
                A(f's_bfe_u32 s7, s5, {(2 << 16) | 2*i:#x}\ns_lshl_b32 {sE[1+i]}, s7, {sT0}\ns_add_u32 {sE[1+i]}, {sE[1+i]}, {sWo}\ns_lshl_b32 s7, s7, 13\ns_add_u32 {mm[i]}, s7, {sLw}')
            wl = [f's_mov_b32 m0, {mm[i]}\ns_nop 0\nbuffer_load_dwordx4 {vw}, {sW}, {sE[1+i]} offen lds' for i in range(3)]
        xl = [x.replace(' lds', NT('ntx', 0) + ' lds') for x in xl]; wl = [x.replace(' lds', NT('ntw', 0) + ' lds') for x in wl]
        A(f's_cmp_ge_u32 {sLb}, 4096')
        stampg(A, 1)
        A('s_waitcnt lgkmcnt(0)')
        stampg(A, 2)
        A('s_cbranch_scc1 K_norow')
        A(f's_load_dword {sTag}, {sWS[0:2]}, {EPOCH}')
        A(f'buffer_load_dwordx4 {xrow[0:4]}, v9, {sX}, {sE[0]} offen{NT("ntr",0)}\nbuffer_load_dwordx4 {xrow[4:8]}, v9, {sX}, {sE[0]} offen offset:{256 if OPT["hs"] else 512}{NT("ntr",0)}')
        A('K_norow:')
        if OPT['r3'] & 2:
            if OPT['w6']: A(f's_cmp_eq_u32 {sJJ}, 6\ns_cbranch_scc1 K_wx')
            A(f's_bitcmp1_b32 {sRot}, 0\ns_cbranch_scc1 K_wx')
            for x in xl + wl: A(x)
            A('s_branch K_xw\nK_wx:')
            for x in wl + xl: A(x)
            A('K_xw:')
        else:
            for x in xl + wl: A(x)
    else:
        A(f's_lshl_b32 {sXb}, {sI}, 17\ns_lshl_b32 {sXo}, {sRot}, 7\ns_add_u32 {sXo}, {sXo}, {sXb}')
        A(f's_lshl_b32 {sX[2]}, 1, 21\ns_lshl_b32 {sX[3]}, 1, 17\ns_lshl_b32 {sLb}, {sLb}, 4')
        if fx:
            A(f's_lshr_b32 s5, s2, 7\ns_lshl_b32 s7, s5, 15\nv_xor_b32 {vx0}, s7, {vx0}\ns_lshl_b32 s5, s5, 12\ns_xor_b32 {sLx}, {sLb}, s5')
        else: sLx = sLb
        A(f'v_add_u32 {vx1}, 0x10000, {vx0}\ns_add_u32 m0, {sLx}, {b0}')
        A(f'v_lshlrev_b32 {v_l16}, 4, v0\nv_and_b32 v9, 0xfffffe00, {v_l16}\nv_add_u32 v9, v9, {v_l16}\ns_lshl_b32 {sE[0]}, {sJJ}, 13\ns_add_u32 {sE[0]}, {sE[0]}, {sXb}')
        A(f's_cmp_ge_u32 {sLb}, 4096')
        if not OPT['warm']: stampg(A, 1)
        A('s_waitcnt lgkmcnt(0)')
        stampg(A, 2)
        A('s_cbranch_scc1 K_norow')
        A(f's_load_dword {sTag}, {sWS[0:2]}, {EPOCH}')
        A(f'buffer_load_dwordx4 {xrow[0:4]}, v9, {sX}, {sE[0]} offen\nbuffer_load_dwordx4 {xrow[4:8]}, v9, {sX}, {sE[0]} offen offset:512')
        A('K_norow:')
        A(f'buffer_load_dwordx4 {vx0}, {sX}, {sXo} offen lds')
        A(f's_add_u32 m0, {sLx}, {b0+8192}\ns_lshr_b32 {sJ}, {sJJ}, 1\nbuffer_load_dwordx4 {vx1}, {sX}, {sXo} offen lds')
        A(f'v_bfi_b32 {k}, 2, {rho}, {t}\nv_and_b32 {k}, 6, {k}\nv_xor_b32 {k}, {k}, v0\nv_and_b32 {k}, 7, {k}\nv_lshlrev_b32 {k}, 4, {k}')
        if fw: A(f's_and_b32 s5, s2, 32\nv_xor_b32 {rho}, s5, {rho}\ns_lshl_b32 s5, s5, 7\ns_xor_b32 {sLw}, {sLb}, s5')
        else: sLw = sLb
        A(f'v_mad_u32_u24 {vw}, {rho}, {sLrow}, {k}')
        A(f's_mul_i32 {sWb}, {sWb}, {sJ}\ns_add_u32 {sWb}, {sWb}, 64\ns_and_b32 {sWb}, {sWb}, 0xffffff80')
        A(f's_lshl_b32 {sW[2]}, {sLrow}, 9\ns_mov_b32 {sW[3]}, {sX[3]}\ns_lshl_b32 {sT0}, {sRot}, 6\ns_mul_i32 {sT0}, {sT0}, {sLrow}\ns_add_u32 {sWo}, {sT0}, {sWb}')
        A(f's_add_u32 m0, {sLw}, {b0+16384}\ns_cmp_eq_u32 s3, 0\nbuffer_load_dwordx4 {vw}, {sW}, {sWo} offen lds')
        A(f's_cselect_b32 {sE[2]}, 10, 7\ns_lshl_b32 {sE[2]}, 1, {sE[2]}\ns_add_u32 {sE[3]}, {sWo}, {sE[2]}')
        A(f's_add_u32 m0, {sLw}, {b0+24576}\ns_add_u32 {sE[2]}, {sE[3]}, {sE[2]}\nbuffer_load_dwordx4 {vw}, {sW}, {sE[3]} offen lds')
        A(f's_add_u32 m0, {sLw}, {b0+32768}\ns_lshr_b32 {sWV}, {sLb}, 10\nbuffer_load_dwordx4 {vw}, {sW}, {sE[2]} offen lds')
    A(f'v_and_b32 v1, 63, v0\nv_lshlrev_b32 {v_l16}, 4, v1')
    if OPT['stamp']:
        for i in range(3 if OPT['stamp'] == 7 else 1, NS): A(f's_mov_b64 s[{72+2*i}:{73+2*i}], 0')
    A(f's_lshl_b32 {sWS[2]}, 1, 24\ns_mov_b32 {sWS[3]}, {sX[3]}')
    A(f's_and_b32 {sWQ}, {sWV}, 3\ns_lshr_b32 s4, {sWV}, 2\ns_add_u32 s3, s3, s4')
    stampg(A, 3)
    A('s_cmp_eq_u32 s3, 1\ns_cbranch_scc1 K_LA\ns_cmp_eq_u32 s3, 0\ns_cbranch_scc1 K_CA\ns_cmp_eq_u32 s3, 2\ns_cbranch_scc1 K_CF')
    Bs = []
    for typ in 'FA':
        A(f'K_L{typ}:')
        Bs.append(LW(A, typ).run())
        p2_L(A, Bs[-1], typ); A('s_branch K_end')
    A('K_CF:')
    c = CW(A, 'F'); c.prologue(); c.main(); c.epi_F()
    A('s_branch K_C2')
    A('K_CA:')
    c = CW(A, 'A'); c.prologue(); c.main(); c.epi_A()
    A('K_C2:')
    p2_C(A)
    A('K_end:')
    stamp_out(A)
    A('K_done:\ns_endpgm')

def add_stubs(body):
    dummy = [f'WS_{t}{c}:' for t in 'FA' for c in range(4)]
    S = sizes_of(body + dummy)
    reg = None; off = 0x300; n = 0; page = 0
    marks = []; nb = {}
    for k, l in enumerate(body):
        if l.endswith(':'):
            if l[:-1] in ('K_LF', 'K_LA', 'K_CF', 'K_CA', 'K_C2', 'K_end'):
                reg = l[2:-1] if l != 'K_end:' else None
                if reg == 'C2': marks.append((k + 1, reg)); off += 8
                if reg == 'LA' and OPT['ia']:
                    body[k] = '.p2align 12\n' + l; off = (off + 4095) & ~4095; page = off >> 10
            continue
        if l.startswith('.'): continue
        if l == 's_barrier': nb[reg] = nb.get(reg, 0) + 1
        fine = reg and ((OPT['stub'] >= 2 and reg in ('CF', 'CA') and 1 <= nb.get(reg, 0) < OPT['stbe']) or (OPT['stub'] >= 3 and reg[0] == 'L' and 1 <= nb.get(reg, 0) < 9))
        if off >> 10 != page:
            pg = off >> 12 != page >> 2
            page = off >> 10
            if reg and (pg or fine) and (reg == 'C2' or nb.get(reg, 0) >= 1): marks.append((k, reg)); off += 8
        off += S[n]; n += 1
    lst = {r: [k for k, rr in marks if rr == r] for r in ('LF', 'LA', 'CF', 'CA', 'C2')}
    print('stubs', {r: len(v) for r, v in lst.items()})
    ins = {}
    for k in lst['C2']: ins[k] = [f'WS_{k}:', 's_cbranch_execz K_wret', 's_nop 0']
    for t in 'FA':
        own = lst['C' + t] + lst['L' + t]
        ch = [own[c::4] for c in range(4)]
        for i, k in enumerate(lst['C2']): ch[3 - i].append(k)
        for c in range(4):
            for i, k in enumerate(ch[c]):
                if k not in ins: ins[k] = [f'WS_{k}:', f's_cbranch_execz ' + (f'WS_{ch[c][i+1]}' if i + 1 < len(ch[c]) else f'WR_{t}'), 's_nop 0']
            ins[ch[c][0]].insert(0, f'WS_{t}{c}:')
    out = []
    for k, l in enumerate(body):
        out += ins.get(k, []); out.append(l)
    z = False
    for l in out:
        if l == 's_mov_b64 exec, 0': z = True
        elif l.startswith('s_mov_b64 exec'): z = False
        assert not (z and 'execz' in l)
    return out
def build():
    A = Asm(); kernel(A)
    body = fix_hazards(A.L, verbose=True)
    dummy = [f'WS_{t}{c}:' for t in 'FA' for c in range(4)] if OPT['stub'] else []
    if OPT['al']: body = align8(body + dummy, verbose=True)
    if OPT['stub']: body = add_stubs(body[:-8])
    K = NAME + '_kernel'
    hdr = ['; @launch grid=(256,1,1) block=(512,1,1) lds=163840', '.amdgcn_target "amdgcn-amd-amdhsa--gfx950"', '.text']
    tail = ['.section .rodata,"a"', '.p2align 6', f'''.amdhsa_kernel {K}
  .amdhsa_next_free_vgpr 256
  .amdhsa_next_free_sgpr 102
  .amdhsa_accum_offset 256
  .amdhsa_group_segment_fixed_size 0
  .amdhsa_kernarg_size 80
  .amdhsa_user_sgpr_count 2
  .amdhsa_user_sgpr_kernarg_segment_ptr 1
  .amdhsa_system_sgpr_workgroup_id_x 1
.end_amdhsa_kernel''']
    return '\n'.join(hdr + body + tail) + '\n'
if __name__ == '__main__':
    open(sys.argv[1], 'w').write(build())
```
